```python
import torch

def _softmax(x, axis=-1):
    return torch.softmax(x, dim=axis)
def _gelu(x):
    return torch.nn.functional.gelu(x, approximate="tanh")
def _silu(x):
    return torch.nn.functional.silu(x)
def _sigmoid(x):
    return torch.sigmoid(x)
def _layernorm(x, axis=-1, eps=1e-5):
    m = x.mean(dim=axis, keepdim=True)
    v = x.var(dim=axis, keepdim=True, unbiased=False)
    return (x - m) / torch.sqrt(v + eps)
def _scatter_add(tgt, idx, src, axis=0):
    return tgt.clone().index_add_(axis, idx, src)
def _segment_sum(src, seg, n):
    out = torch.zeros((n,) + src.shape[1:], dtype=src.dtype)
    return out.index_add_(0, seg, src)
def _pad(x, pw):
    flat = tuple(v for pair in reversed(pw) for v in pair)
    return torch.nn.functional.pad(x, flat)

kernel_name = 'gather_scatter__mpnn_edge_mlp__graph'

def setup_inputs():

    _w = (lambda a: (lambda t: t.to(torch.bfloat16) if t.is_floating_point() else t)(torch.as_tensor(a)))
    N, deg, D, De = 10000, 32, 128, max(4, 1)
    E = N * deg
    return {
        "x": _w((lambda *s: torch.randn(*s, dtype=torch.bfloat16) * 0.05)(N, D)),
        "e_attr": _w((lambda *s: torch.randn(*s, dtype=torch.bfloat16) * 0.4)(E, De)),
        "src": _w((lambda lo, hi, *s: torch.randint(lo, hi, s))(0, N, E).to(torch.int64)),
        "dst": _w((lambda lo, hi, *s: torch.randint(lo, hi, s))(0, N, E).to(torch.int64)),
        "w_msg": _w((lambda *s: torch.randn(*s, dtype=torch.bfloat16) * 0.4)(2 * D + De, D)),
        "w_upd": _w((lambda *s: torch.randn(*s, dtype=torch.bfloat16) * 0.05)(2 * D, D)),
    }

def reference(x, e_attr, src, dst, w_msg, w_upd):
    N, D = x.shape
    m_in = torch.concatenate([x[src], x[dst], e_attr], axis=-1)
    msg = _silu(m_in @ w_msg)
    agg = _segment_sum(msg, dst, N)
    return _silu(torch.concatenate([x, agg], axis=-1) @ w_upd)
```

```python
import sys, struct, math

def f2u(x): return struct.unpack("<I", struct.pack("<f", x))[0]

OPT = dict(safe=0, stamps=0, prio=1)
for a in sys.argv[2:]:
    k, v = a.split("="); OPT[k] = int(v)

N, E = 10000, 320000
NB = 256
EPW = 1250
PT    = 0
DESC  = 0x280000
REC   = 0x2C0000
RSTR  = 15360
W2F   = REC + NB * RSTR
WUT   = W2F + 0x8000
WUB   = WUT + 0x8000
W3F   = WUB + 0x8000
STAMP = W3F + 0x800
WSEND = STAMP + (0x80000 if OPT["stamps"] else 0)
NL2E = f2u(-1.4426950408889634)
KC   = f2u(1.0 / (2.0 ** 31 * math.log(2.0)))
NSC  = f2u(-2.0 ** -31)

L = []
def e(s=""):
    for ln in s.strip("\n").split("\n"):
        L.append(ln)
def vr(a, n): return f"v[{a}:{a + n - 1}]" if n > 1 else f"v{a}"
def sr(a, n): return f"s[{a}:{a + n - 1}]" if n > 1 else f"s{a}"

def srd(s, nrec, w3=0x20000):
    e(f"    s_mov_b32 s{s + 2}, {nrec:#x}\n    s_mov_b32 s{s + 3}, {w3:#x}")

def scan64(v):
    for c in ("row_shr:1 row_mask:0xf", "row_shr:2 row_mask:0xf", "row_shr:4 row_mask:0xf", "row_shr:8 row_mask:0xf",
              "row_bcast:15 row_mask:0xa", "row_bcast:31 row_mask:0xc"):
        e(f"    s_nop 1\n    v_add_u32_dpp v{v}, v{v}, v{v} {c} bank_mask:0xf")

NST = 16
def stamp(i, srd_s, kern):
    if not OPT["stamps"]: return
    e(f"""
    s_memtime s[90:91]
    s_waitcnt lgkmcnt(0)
    v_writelane_b32 v127, s90, {i}
""")
def stamp_out(srd_s, kern):
    if not OPT["stamps"]: return
    e(f"""
    s_mov_b64 exec, 0xffff
    s_lshl_b32 s90, s2, 4
    s_add_u32 s90, s90, s21
    s_lshl_b32 s90, s90, 6
    s_add_u32 s90, s90, {STAMP + kern * 0x40000}
    v_mbcnt_lo_u32_b32 v126, -1, 0
    v_lshlrev_b32 v126, 2, v126
    buffer_store_dword v127, v126, s[{srd_s}:{srd_s + 3}], s90 offen
    s_mov_b64 exec, -1
""")

K1_CNT, K1_ST, K1_STG, K1_WL = 0, 1024, 2048, 2048 + RSTR
K1_LDS = 84 * 1024
def kernel1():
    e("""
.text
.globl mpnn_bin_kernel
.p2align 8
.type mpnn_bin_kernel,@function
mpnn_bin_kernel:
    s_cmp_ge_u32 s2, 256
    s_cbranch_scc1 K1_END
    s_load_dwordx4 s[4:7], s[0:1], 0        ; x, e_attr
    s_load_dwordx4 s[8:11], s[0:1], 16
    s_load_dwordx4 s[12:15], s[0:1], 32
    s_load_dwordx2 s[16:17], s[0:1], 64     ; ws
    v_lshrrev_b32 v2, 6, v0
    v_and_b32 v1, 63, v0
    v_readfirstlane_b32 s21, v2
""")
    stamp(0, 16, 0)
    e("""
    s_cmp_ge_u32 s21, 10
    s_cbranch_scc1 K1_GEMM
    s_mul_i32 s22, s2, 5000
    s_lshl_b32 s23, s22, 1
    v_lshlrev_b32 v3, 3, v0
    v_lshlrev_b32 v4, 4, v0
    v_cmp_gt_u32 vcc, 625, v0
    v_mov_b32 v20, 0
    v_mov_b32 v21, 0
    v_mov_b32 v22, 0
    v_mov_b32 v23, 0
    s_mov_b64 s[44:45], vcc
    s_waitcnt lgkmcnt(0)
    s_mov_b32 s24, s10
    s_mov_b32 s25, s11
""")
    srd(24, E * 4)
    e("    s_mov_b32 s28, s8\n    s_mov_b32 s29, s9"); srd(28, E * 4)
    e("    s_mov_b32 s32, s6\n    s_mov_b32 s33, s7"); srd(32, E * 8)
    srd(16, WSEND)
    e(f"""
    s_mov_b64 exec, s[44:45]
    buffer_load_dwordx2 v[6:7], v3, s[24:27], s22 offen      ; dst
    buffer_load_dwordx2 v[8:9], v3, s[28:31], s22 offen      ; src
    buffer_load_dwordx4 v[10:13], v4, s[32:35], s23 offen
    s_mov_b64 exec, -1
    s_cmp_lg_u32 s21, 0
    s_cbranch_scc1 K1_NOZ
    ds_write_b128 v4, v[20:23] offset:{K1_CNT}
K1_NOZ:
    v_mov_b32 v24, 1
    s_waitcnt lgkmcnt(0)
    s_barrier
    s_mov_b64 exec, s[44:45]
    s_waitcnt vmcnt(2)
""")
    stamp(1, 16, 0)
    e(f"""
    v_and_b32 v14, 0xff, v6
    v_and_b32 v15, 0xff, v7
    v_lshlrev_b32 v14, 2, v14
    v_lshlrev_b32 v15, 2, v15
    ds_add_rtn_u32 v16, v14, v24 offset:{K1_CNT}
    ds_add_rtn_u32 v17, v15, v24 offset:{K1_CNT}
    v_lshrrev_b32 v6, 8, v6
    v_lshrrev_b32 v7, 8, v7
    v_lshlrev_b32 v6, 26, v6
    v_lshlrev_b32 v7, 26, v7
    s_mov_b64 exec, -1
    v_lshlrev_b32 v5, 4, v1
    s_waitcnt lgkmcnt(0)
    s_barrier
""")
    stamp(2, 16, 0)
    e(f"""
    ds_read_b128 v[20:23], v5 offset:{K1_CNT}
    s_waitcnt vmcnt(1)
    v_lshl_or_b32 v8, v8, 3, v6
    v_lshl_or_b32 v9, v9, 3, v7
    s_waitcnt lgkmcnt(0)
    v_add_u32 v25, v20, v21
    v_add_u32 v26, v25, v22
    v_add_u32 v27, v26, v23
    v_mov_b32 v28, v27
""")
    scan64(28)
    e(f"""
    v_sub_u32 v28, v28, v27
    v_add_u32 v29, v28, v20
    v_add_u32 v30, v28, v25
    v_add_u32 v31, v28, v26
    ds_write_b128 v5, v[28:31] offset:{K1_ST}
    ds_read_b32 v18, v14 offset:{K1_ST}
    ds_read_b32 v19, v15 offset:{K1_ST}
    s_cmp_lg_u32 s21, 9
    s_cbranch_scc1 K1_NOD
    v_lshl_or_b32 v32, v20, 16, v28
    v_lshl_or_b32 v33, v21, 16, v29
    v_lshl_or_b32 v34, v22, 16, v30
    v_lshl_or_b32 v35, v23, 16, v31
    s_lshl_b32 s36, s2, 10
    s_add_u32 s36, s36, {DESC}
    buffer_store_dwordx4 v[32:35], v5, s[16:19], s36 offen
K1_NOD:
    s_mov_b64 exec, s[44:45]
    s_waitcnt lgkmcnt(0)
    v_add_u32 v18, v18, v16
    v_add_u32 v19, v19, v17
    v_mul_u32_u24 v18, 12, v18
    v_mul_u32_u24 v19, 12, v19
    v_add_u32 v18, {K1_STG}, v18
    v_add_u32 v19, {K1_STG}, v19
    s_cmp_lg_u32 s21, 9
    s_cbranch_scc1 K1_W0
    s_waitcnt vmcnt(1)
    s_branch K1_W1
K1_W0:
    s_waitcnt vmcnt(0)
K1_W1:
    ds_write2_b32 v18, v10, v11 offset0:0 offset1:1
    ds_write_b32 v18, v8 offset:8
    ds_write2_b32 v19, v12, v13 offset0:0 offset1:1
    ds_write_b32 v19, v9 offset:8
    s_mov_b64 exec, -1
    s_mul_i32 s36, s2, {RSTR}
    s_add_u32 s36, s36, {REC}
    s_add_u32 s37, s36, 10240
    s_waitcnt lgkmcnt(0)
    s_barrier
""")
    stamp(3, 16, 0)
    e(f"""
    ds_read_b128 v[20:23], v4 offset:{K1_STG}
    s_cmp_ge_u32 s21, 5
    s_cbranch_scc1 K1_C1
    ds_read_b128 v[24:27], v4 offset:{K1_STG + 10240}
    s_waitcnt lgkmcnt(0)
    buffer_store_dwordx4 v[24:27], v4, s[16:19], s37 offen
K1_C1:
    s_waitcnt lgkmcnt(0)
    buffer_store_dwordx4 v[20:23], v4, s[16:19], s36 offen
""")
    if OPT["stamps"]:
        stamp(4, 16, 0); e("    s_waitcnt vmcnt(0)"); stamp(5, 16, 0); stamp_out(16, 0)
    e(f"""
    s_endpgm
K1_GEMM:
    s_sub_u32 s22, s21, 10                  ; gi
    v_lshrrev_b32 v2, 4, v1                 ; g
    v_and_b32 v3, 15, v1                    ; n / i
    s_cmp_ge_u32 s2, 209
    s_cbranch_scc1 K1_JOBS
    s_lshr_b32 s23, s22, 1                  ; T
    s_and_b32 s24, s22, 1                   ; fh
    ; W1 -> LDS source offset: row (l/16), chunk (l%16) ^ ((l/16)<<1)
    v_lshlrev_b32 v4, 1, v2
    v_xor_b32 v4, v4, v3
    v_lshlrev_b32 v4, 4, v4
    v_lshl_or_b32 v4, v2, 8, v4
    s_mul_i32 s25, s2, 48
    s_lshl_b32 s26, s23, 4
    s_add_u32 s25, s25, s26
    v_add_u32 v5, s25, v3
    v_lshlrev_b32 v5, 8, v5
    v_lshl_or_b32 v5, v2, 4, v5
    s_waitcnt lgkmcnt(0)
""")
    srd(4, N * 256)
    srd(12, 128 * 256)
    srd(16, N * 256)
    for m in range(6):
        if m == 5:
            e("    s_cmp_ge_u32 s22, 2\n    s_cbranch_scc1 K1_DMAD")
        e(f"""
    s_add_u32 s27, s22, {6 * m}
    s_lshl_b32 s28, s27, 6
    s_and_b32 s28, s28, 0x80
    s_lshl_b32 s27, s27, 10
    v_xor_b32 v6, s28, v4
    s_add_u32 s28, s27, {K1_WL}
    s_mov_b32 m0, s28
    s_nop 0
    buffer_load_dwordx4 v6, s[12:15], s27 offen lds
""")
    e("K1_DMAD:")
    for s in range(4):
        e(f"    buffer_load_dwordx4 {vr(8 + 4 * s, 4)}, v5, s[4:7], 0 offen offset:{64 * s}")
    e(f"""
    v_lshrrev_b32 v24, 2, v3                ; r'
    v_and_b32 v25, 3, v3                    ; c'
    v_and_b32 v26, 1, v2
    v_lshl_or_b32 v26, v26, 2, v24          ; h(k)
    v_lshl_add_u32 v27, v2, 3, v24          ; 8g + r'
    v_lshlrev_b32 v27, 8, v27
    v_lshl_or_b32 v27, v25, 3, v27
    v_add_u32 v27, {K1_WL}, v27
    s_lshl_b32 s27, s24, 2
    v_xor_b32 v26, s27, v26
""")
    for f in range(4):
        e(f"    v_xor_b32 v{28 + f}, {f}, v26\n    v_lshl_add_u32 v{28 + f}, v{28 + f}, 5, v27")
    e(f"""
    s_lshl_b32 s27, s24, 7
    v_add_u32 v5, s27, v5
    s_mov_b32 s28, {NL2E:#x}
    s_mov_b32 s29, {NL2E:#x}
    s_barrier
    s_barrier
    s_waitcnt vmcnt(0)
    s_barrier
""")
    stamp(3, 16, 0)
    for s in range(4):
        for f in range(4):
            for u2 in range(2):
                e(f"    ds_read_b64_tr_b16 {vr(32 + 16 * f + 4 * s + 2 * u2, 2)}, v{28 + f} offset:{s * 8192 + u2 * 1024}")
    for s in range(4):
        for f in range(4):
            left = 32 - (8 * s + 2 * f + 2)
            e(f"    s_waitcnt lgkmcnt({min(left, 15)})")
            c = "0" if s == 0 else vr(96 + 4 * f, 4)
            e(f"    v_mfma_f32_16x16x32_bf16 {vr(96 + 4 * f, 4)}, {vr(32 + 16 * f + 4 * s, 4)}, {vr(8 + 4 * s, 4)}, {c}")
    e("    s_nop 4")
    for f in range(4):
        for h in range(2):
            r = 96 + 4 * f + 2 * h
            e(f"    v_pk_mul_f32 {vr(r, 2)}, {vr(r, 2)}, s[28:29]")
        for h in range(2):
            r = 96 + 4 * f + 2 * h
            e(f"    v_cvt_pk_bf16_f32 v{112 + 2 * f + h}, v{r}, v{r + 1}")
        if f % 2 == 1:
            e(f"    buffer_store_dwordx4 {vr(112 + 2 * (f - 1), 4)}, v5, s[16:19], 0 offen offset:{64 * (f // 2)}")
    if OPT["stamps"]:
        srd(16, WSEND); stamp(4, 16, 0); e("    s_waitcnt vmcnt(0)"); stamp(5, 16, 0); stamp_out(16, 0)
    e(f"""
    s_endpgm
K1_JOBS:
    s_sub_u32 s23, s2, 209
    s_mul_i32 s23, s23, 6
    s_add_u32 s23, s23, s22
    s_waitcnt lgkmcnt(0)
""")
    srd(16, WSEND)
    e(f"""
    s_cmp_ge_u32 s23, 96
    s_cbranch_scc1 K1_JOB2
    s_lshr_b32 s24, s23, 5
    s_bfe_u32 s25, s23, 0x30002             ; f
    s_and_b32 s26, s23, 3                   ; s
    s_cmp_eq_u32 s24, 0
    s_cselect_b32 s28, s12, s14
    s_cselect_b32 s29, s13, s15
    s_mov_b32 s30, {256 * 256}
    s_mov_b32 s31, 0x20000
    ; column
    s_lshr_b32 s32, s25, 1
    s_lshl_b32 s32, s32, 5
    s_and_b32 s33, s25, 1
    s_lshl_b32 s33, s33, 2
    s_add_u32 s32, s32, s33                 ; 32(f>>1) + 4(f&1)
    s_lshl_b32 s33, s25, 4                  ; 16 f
    v_lshrrev_b32 v4, 2, v3
    v_and_b32 v5, 3, v3
    v_lshl_or_b32 v4, v4, 3, v5
    v_add_u32 v4, s32, v4
    v_add_u32 v5, s33, v3
    s_cmp_eq_u32 s24, 0
    s_cselect_b64 vcc, -1, 0
    s_nop 1
    v_cndmask_b32 v4, v4, v5, vcc
    v_lshlrev_b32 v4, 1, v4
    ; row
    s_cmp_eq_u32 s24, 2
    s_cselect_b32 s32, 10, 11
    s_movk_i32 s33, 1024
    s_cmovk_i32 s33, 4096
    s_cselect_b32 s34, {NSC:#x}, 1.0
    v_lshlrev_b32 v5, s32, v2
    v_add_u32 v4, v4, v5
    s_lshl_b32 s35, s26, 13
    s_cmp_eq_u32 s24, 1
    s_cselect_b32 s36, 0, 0x8000
    s_add_u32 s35, s35, s36
    s_add_u32 s36, s35, s33
""")
    for m in range(8):
        e(f"    buffer_load_ushort v{8 + m}, v4, s[28:31], s{35 + m // 4} offen offset:{(m & 3) * 256}")
    e(f"""
    s_lshl_b32 s37, s23, 10
    s_add_u32 s37, s37, {W2F}
    v_lshlrev_b32 v6, 4, v1
    s_mov_b32 s38, 0x07060302
    s_waitcnt vmcnt(0)
""")
    for m in range(8):
        e(f"    v_lshlrev_b32 v{8 + m}, 16, v{8 + m}\n    v_mul_f32 v{8 + m}, s34, v{8 + m}")
    for m in range(4):
        e(f"    v_perm_b32 v{16 + m}, v{9 + 2 * m}, v{8 + 2 * m}, s38")
    e(f"""
    buffer_store_dwordx4 v[16:19], v6, s[16:19], s37 offen
    s_endpgm
K1_JOB2:
    s_cmp_ge_u32 s23, 98
    s_cbranch_scc1 K1_JOB3
    s_sub_u32 s24, s23, 96                  ; c
    s_mov_b32 s14, {260 * 256}
    s_mov_b32 s15, 0x20000
    v_and_b32 v2, 31, v1
    v_lshrrev_b32 v3, 5, v1
    v_lshl_or_b32 v2, v2, 1, v3             ; p & 63
    v_and_b32 v4, 0x23, v2
    v_bfe_u32 v5, v2, 2, 1
    v_lshl_or_b32 v4, v5, 4, v4
    v_bfe_u32 v5, v2, 3, 2
    v_lshl_or_b32 v4, v5, 2, v4             ; feature & 63
    v_lshlrev_b32 v4, 1, v4
    s_lshl_b32 s25, s24, 7
    s_add_u32 s25, s25, {256 * 256}
""")
    for d in range(4):
        e(f"    buffer_load_ushort v{8 + d}, v4, s[12:15], s25 offen offset:{d * 256}")
    e(f"""
    s_lshl_b32 s37, s24, 10
    s_add_u32 s37, s37, {W3F}
    v_lshlrev_b32 v6, 4, v1
    s_mov_b32 s34, {NL2E:#x}
    s_waitcnt vmcnt(0)
""")
    for d in range(4):
        e(f"    v_lshlrev_b32 v{8 + d}, 16, v{8 + d}\n    v_mul_f32 v{8 + d}, s34, v{8 + d}")
    e("""
    v_cvt_pk_bf16_f32 v16, v8, v9
    v_cvt_pk_bf16_f32 v17, v10, v11
    v_lshlrev_b32 v12, 16, v16
    v_and_b32 v13, 0xffff0000, v16
    v_lshlrev_b32 v14, 16, v17
    v_and_b32 v15, 0xffff0000, v17
    v_sub_f32 v8, v8, v12
    v_sub_f32 v9, v9, v13
    v_sub_f32 v10, v10, v14
    v_sub_f32 v11, v11, v15
    v_cvt_pk_bf16_f32 v18, v8, v9
    v_cvt_pk_bf16_f32 v19, v10, v11
    buffer_store_dwordx4 v[16:19], v6, s[16:19], s37 offen
    s_endpgm
K1_JOB3:
    s_cmp_lg_u32 s23, 98
    s_cbranch_scc1 K1_END
    v_mov_b32 v8, 0
    v_lshlrev_b32 v6, 2, v1
""")
    e(f"""
    s_mov_b32 s37, {PT + N * 256}
    buffer_store_dword v8, v6, s[16:19], s37 offen
K1_END:
    s_endpgm
""")

RS = 528
EA, SO = 0, 32768
ZR, CNT, FL, MORE = 49152, 49152 + 256, 49152 + 512, 49152 + 512 + 1024
QL = 51200
AG = QL + 48 * RS
UL = AG + 48 * RS
XL = UL + 48 * RS
K2_LDS = XL + 12288
PADV = N * 8
SMAX = 1016
vSO, vP, vD, vE, vAe, vBw, vQ, vAc, vI = 8, (16, 24), 32, 48, 64, 68, (72, 76), (80, 82), 84
vaS, vaE, vInc, vaN, vWb = (86, 87), 88, 89, (90, 91), 92
sM = [40 + 2 * k for k in range(6)]
sFM = (28, 30)
UNR = 4

def flush_block(y, lab, back):
    e(f"""
{lab}:
    s_sub_u32 exec_lo, 0, s36
    s_sub_u32 exec_hi, 0, s37
    ds_add_f32 v{vaN[y]}, v{vAc[y]} offset:{AG - QL}
    ds_add_f32 v{vaN[y]}, v{vAc[y] + 1} offset:{AG - QL + 4}
    v_add_u32 v{vaN[y]}, {RS}, v{vaN[y]}
    v_mov_b64 {vr(vAc[y], 2)}, 0
    ds_read2_b64 {vr(vQ[y], 4)}, v{vaN[y]} offset0:0 offset1:0
    s_mov_b64 exec, -1
    s_branch {back}
""")

def gathers(b):
    for k in range(8):
        if OPT["safe"]:
            e(f"    v_min_u32 v{vSO + k}, {PADV}, v{vSO + k}\n    v_and_b32 v{vSO + k}, -8, v{vSO + k}")
        e(f"    buffer_load_dword v{vP[b] + k}, v{vSO + k}, s[8:11], 0 offen")

def wb_loads():
    for t in range(2):
        for s in range(4):
            e(f"    buffer_load_dwordx4 {vr(vWb + 16 * t + 4 * s, 4)}, v7, s[4:7], s{52 + t} offen offset:{1024 * s}")

def core():
    D, Ee = vD, vE
    def p(r): return vr(r, 2)
    for k in range(16):
        e(f"    v_exp_f32 v{Ee + k}, v{D + k}")
        if k in (9, 11, 13, 15):
            m = (k - 9) // 2
            e(f"    v_pk_fma_f32 {p(Ee + 2 * m)}, {p(Ee + 2 * m)}, s[26:27], s[26:27] clamp")
    for m in range(4, 8):
        e(f"    v_pk_fma_f32 {p(Ee + 2 * m)}, {p(Ee + 2 * m)}, s[26:27], s[26:27] clamp")
    seq = [
        lambda o: f"v_pk_mul_f32 {p(D + o)}, {p(D + o)}, {p(Ee + o + 2)}",
        lambda o: f"v_pk_mul_f32 {p(D + o + 4)}, {p(D + o + 4)}, {p(Ee + o + 6)}",
        lambda o: f"v_pk_fma_f32 {p(D + o)}, {p(D + o + 2)}, {p(Ee + o)}, {p(D + o)}",
        lambda o: f"v_pk_fma_f32 {p(D + o + 4)}, {p(D + o + 6)}, {p(Ee + o + 4)}, {p(D + o + 4)}",
        lambda o: f"v_pk_mul_f32 {p(Ee + o)}, {p(Ee + o)}, {p(Ee + o + 2)}",
        lambda o: f"v_pk_mul_f32 {p(Ee + o + 4)}, {p(Ee + o + 4)}, {p(Ee + o + 6)}",
        lambda o: f"v_pk_mul_f32 {p(Ee + o + 2)}, {p(Ee + o)}, {p(Ee + o + 4)}",
        lambda o: f"v_pk_mul_f32 {p(D + o)}, {p(D + o)}, {p(Ee + o + 4)}",
        lambda o: f"v_rcp_f32 v{Ee + o + 2}, v{Ee + o + 2}",
        lambda o: f"v_rcp_f32 v{Ee + o + 3}, v{Ee + o + 3}",
        lambda o: f"v_pk_fma_f32 {p(D + o)}, {p(D + o + 4)}, {p(Ee + o)}, {p(D + o)}",
        lambda o: f"v_pk_fma_f32 {p(vAc[o // 8])}, {p(D + o)}, {p(Ee + o + 2)}, {p(vAc[o // 8])}",
    ]
    for fn in seq:
        for o in (0, 8):
            e("    " + fn(o))

def kernel2():
    e("""
.text
.globl mpnn_edge_kernel
.p2align 8
.type mpnn_edge_kernel,@function
mpnn_edge_kernel:
    s_cmp_ge_u32 s2, 256
    s_cbranch_scc1 K2_END
    s_load_dwordx2 s[4:5], s[0:1], 64       ; ws
    s_load_dwordx2 s[12:13], s[0:1], 0      ; x
    s_load_dwordx2 s[16:17], s[0:1], 48     ; out
    v_lshrrev_b32 v2, 6, v0
    v_and_b32 v1, 63, v0
    v_readfirstlane_b32 s21, v2
    s_and_b32 s20, s2, 7
    s_lshl_b32 s20, s20, 5
    s_lshr_b32 s3, s2, 3
    s_or_b32 s20, s20, s3                   ; bucket
    s_cmp_lt_u32 s20, 16
    s_cselect_b32 s22, 40, 39
""")
    stamp(0, 4, 1)
    e(f"""
    v_lshrrev_b32 v3, 2, v0
    v_lshlrev_b32 v4, 10, v3
    s_lshl_b32 s34, s20, 2
    s_add_u32 s34, s34, {DESC}
    v_lshlrev_b32 v7, 4, v1                 ; lane*16
    v_lshrrev_b32 v5, 4, v1                 ; g
    v_and_b32 v6, 15, v1                    ; n
    s_lshl_b32 s35, s21, 2
    v_add_u32 v124, s35, v5
    v_and_b32 v125, 15, v124
    v_xor_b32 v125, v125, v6
    v_lshlrev_b32 v125, 4, v125
    v_lshl_or_b32 v124, v124, 16, v125
    s_lshl_b32 s35, s20, 8
    v_add_u32 v124, s35, v124
    s_lshl_b32 s36, s21, 10
    s_add_u32 s36, s36, {XL}
    s_lshl_b32 s37, s21, 12
    s_add_u32 s37, s37, {W2F}
    s_and_b32 s23, s21, 1                   ; c
    s_lshl_b32 s38, s23, 10
    s_add_u32 s38, s38, {W3F}
    s_mov_b32 m0, s36
    s_waitcnt lgkmcnt(0)
""")
    srd(4, WSEND); srd(12, N * 256); srd(16, N * 256)
    e(f"""
    buffer_load_dword v2, v4, s[4:7], s34 offen
    s_cmp_ge_u32 s21, 12
    s_cbranch_scc1 K2_NOX
    buffer_load_dwordx4 v124, s[12:15], 0 offen lds
K2_NOX:
""")
    for s in range(4):
        e(f"    buffer_load_dwordx4 {vr(32 + 4 * s, 4)}, v7, s[4:7], s37 offen offset:{1024 * s}")
    e(f"""
    buffer_load_dwordx4 {vr(vBw, 4)}, v7, s[4:7], s38 offen
    s_lshl_b32 s39, s23, 7
    s_add_u32 s8, s4, s39
    s_addc_u32 s9, s5, 0
    s_or_b32 s9, s9, 0x80000000
    s_mov_b32 s10, 0x10000
    s_mov_b32 s11, 0x00c00000
    s_mov_b32 s26, {KC:#x}
    s_mov_b32 s27, {KC:#x}
    s_mov_b32 s32, 1
    s_mov_b32 s33, 1
    s_and_b32 s52, s21, 3
    s_lshl_b32 s52, s52, 13
    s_add_u32 s52, s52, {WUB}
    s_add_u32 s53, s52, 4096
    v_and_b32 v124, 3, v1
    v_and_b32 v125, 1, v1
    v_lshlrev_b32 v125, 4, v125
    v_mov_b32 v126, 0x3f80
    v_lshlrev_b32 v126, v125, v126
    v_cmp_gt_u32 vcc, 2, v124
    v_mul_u32_u24 v3, {RSTR}, v3
    v_and_b32 v4, 3, v0
    v_cndmask_b32 v{vI}, 0, v126, vcc
    v_cndmask_b32 v{vI + 1}, v126, 0, vcc
    s_mov_b32 s24, 0
    s_mov_b32 s25, 24
    s_mov_b32 s54, 0
    s_mov_b32 s55, 0
    s_cmp_ge_u32 s21, 12
    s_cselect_b32 s56, 1, 0
K2_ROUND:
    v_lshlrev_b32 v124, 4, v0
    v_mov_b32 v8, {PADV}
    v_mov_b32 v9, v8
    v_mov_b32 v10, v8
    v_mov_b32 v11, v8
    v_mov_b32 v12, 0
    v_mov_b32 v13, 0
    v_mov_b32 v14, 0
    v_mov_b32 v15, 0
    ds_write_b128 v124, v[8:11] offset:{SO}
    ds_write_b128 v124, v[12:15] offset:{EA}
    ds_write_b128 v124, v[12:15] offset:{EA + 16384}
    s_cmp_ge_u32 s21, 2
    s_cbranch_scc1 K2_NOZ
    ds_write_b128 v124, v[12:15] offset:{ZR}
K2_NOZ:
    s_cmp_ge_u32 s21, 12
    s_cbranch_scc1 K2_WD5
    s_waitcnt vmcnt(6)
    s_branch K2_WD6
K2_WD5:
    s_waitcnt vmcnt(5)
K2_WD6:
""")
    stamp(1, 4, 1)
    e(f"""
    v_lshrrev_b32 v120, 16, v2              ; count
    v_and_b32 v121, 0xffff, v2              ; start
    v_subrev_u32 v120, s24, v120
    v_add3_u32 v121, v121, s24, v4
    v_mad_u32_u24 v121, v121, 12, v3
    v_min_i32 v122, s25, v120
    v_sub_u32 v122, v122, v4
    v_cmp_lt_i32 s[58:59], s25, v120
""")
    for k in range(6):
        e(f"    v_cmp_lt_i32 {sr(sM[k], 2)}, {4 * k}, v122")
    e(f"    s_mov_b32 s34, {REC}\n    s_waitcnt lgkmcnt(0)")
    for k in range(6):
        e(f"    s_mov_b64 exec, {sr(sM[k], 2)}\n    buffer_load_dwordx3 {vr(8 + 4 * k, 3)}, v121, s[4:7], s34 offen offset:{48 * k}")
    e(f"""
    s_mov_b64 exec, -1
    s_waitcnt vmcnt(6)
    s_barrier
""")
    stamp(2, 4, 1)
    e(f"""
    s_and_b32 s34, s21, 7
    s_lshr_b32 s35, s34, 1
    s_lshl_b32 s35, s35, 7
    s_and_b32 s34, s34, 1
    s_lshl_b32 s34, s34, 4
    s_add_u32 s34, s34, s35
    s_cmp_lt_u32 s21, 8
    s_cselect_b32 s35, 0, {UL - QL}
    s_cselect_b32 s36, {NL2E:#x}, 1.0
    s_mov_b32 s37, s36
    s_add_u32 s34, s34, s35
    s_add_u32 s34, s34, {QL}
    v_mul_u32_u24 v86, {RS}, v6
    v_lshl_add_u32 v86, v5, 5, v86
    v_add_u32 v86, s34, v86
    s_cmp_lg_u32 s54, 0
    s_cbranch_scc1 K2_NOGEMM
    s_mov_b32 s54, 1
    v_xor_b32 v60, v5, v6
    v_lshlrev_b32 v60, 4, v60
    v_lshl_or_b32 v60, v6, 8, v60
    v_add_u32 v60, {XL}, v60
    v_xor_b32 v61, 64, v60
    v_xor_b32 v62, 0x80, v60
    v_xor_b32 v63, 0xc0, v60
""")
    def xb(T, s): return (92 + 16 * T + 4 * s) if T < 2 else (72 + 4 * s if s < 3 else 64)
    for T in range(3):
        for s in range(4):
            e(f"    ds_read_b128 {vr(xb(T, s), 4)}, v{60 + s} offset:{4096 * T}")
    for T in range(3):
        for s in range(4):
            e(f"    s_waitcnt lgkmcnt({11 - 4 * T - s})")
            c = "0" if s == 0 else vr(48 + 4 * T, 4)
            e(f"    v_mfma_f32_16x16x32_bf16 {vr(48 + 4 * T, 4)}, {vr(32 + 4 * s, 4)}, {vr(xb(T, s), 4)}, {c}")
    e("    s_nop 1")
    for T in range(3):
        if T == 2: e("    s_nop 1")
        for h in range(2):
            r = 48 + 4 * T + 2 * h
            e(f"    v_pk_mul_f32 {vr(r, 2)}, {vr(r, 2)}, s[36:37]")
        e(f"    ds_write_b128 v86, {vr(48 + 4 * T, 4)} offset:{16 * RS * T}")
    e(f"""
K2_NOGEMM:
    s_cmp_ge_u32 s21, 8
    s_cbranch_scc1 K2_NOG
""")
    for T in range(3):
        e(f"    ds_read_b128 {vr(48 + 4 * T, 4)}, v86 offset:{16 * RS * T}")
    e("    s_cmp_lg_u32 s55, 0\n    s_cbranch_scc1 K2_RDAG")
    for r in range(104, 116, 2):
        e(f"    v_mov_b64 {vr(r, 2)}, 0")
    e("    s_branch K2_RDAG2\nK2_RDAG:")
    for T in range(3):
        e(f"    ds_read_b128 {vr(104 + 4 * T, 4)}, v86 offset:{AG - QL + 16 * RS * T}")
    e("K2_RDAG2:\n    s_waitcnt lgkmcnt(0)")
    for r in range(12):
        e(f"    v_exp_f32 v{92 + r}, v{48 + r}")
    for r in range(0, 12, 2):
        e(f"    v_pk_fma_f32 {vr(92 + r, 2)}, {vr(92 + r, 2)}, s[26:27], s[26:27] clamp")
    for r in range(12):
        e(f"    v_rcp_f32 v{92 + r}, v{92 + r}")
    for r in range(0, 12, 2):
        e(f"    v_pk_mul_f32 {vr(92 + r, 2)}, {vr(92 + r, 2)}, {vr(48 + r, 2)}")
    e(f"""
K2_NOG:
    v_mov_b32 v116, 1
    s_mov_b64 exec, s[58:59]
    s_cbranch_execz K2_NOMORE
    v_mov_b32 v117, {MORE}
    ds_write_b32 v117, v116
K2_NOMORE:
    s_mov_b64 exec, -1
    s_waitcnt vmcnt(0)
""")
    stamp(3, 4, 1)
    for k in range(6):
        e(f"""
    s_mov_b64 exec, {sr(sM[k], 2)}
    s_cbranch_execz K2_HISTD
    v_lshrrev_b32 v{32 + k}, 24, v{10 + 4 * k}
    ds_add_rtn_u32 v{11 + 4 * k}, v{32 + k}, v116 offset:{CNT}
""")
    e(f"""
K2_HISTD:
    s_mov_b64 exec, -1
    v_lshlrev_b32 v117, 2, v1
    v_mov_b32 v118, {MORE}
    s_waitcnt lgkmcnt(0)
    s_barrier
""")
    stamp(4, 4, 1)
    e(f"""
    ds_read_b32 v38, v117 offset:{CNT}
    ds_read_b32 v39, v118
    v_cmp_gt_u32 vcc, s22, v1
    s_waitcnt lgkmcnt(0)
    v_add_u32 v40, 3, v38
    v_lshrrev_b32 v40, 2, v40
    v_max_u32 v40, 1, v40
    v_cndmask_b32 v40, 0, v40, vcc
    v_readfirstlane_b32 s57, v39
    v_mov_b32 v41, v40
    v_lshlrev_b32 v42, 2, v40
    v_sub_u32 v42, v42, v38
""")
    scan64(41)
    e(f"""
    v_sub_u32 v43, v41, v40
    v_readlane_b32 s34, v41, 63
    v_lshlrev_b32 v43, 2, v43
    s_cmp_le_u32 s34, {SMAX}
    s_cbranch_scc1 K2_FITS
    s_mov_b32 s25, 12
    s_barrier
    s_branch K2_ROUND
K2_FITS:
""")
    for k in range(6):
        if k >= 2:
            e(f"    s_cmp_eq_u64 {sr(sM[k], 2)}, 0\n    s_cbranch_scc1 K2_BPD")
        e(f"    ds_bpermute_b32 v{32 + k}, v{32 + k}, v43")
    e(f"""
K2_BPD:
    s_add_u32 s34, s34, 3
    s_lshr_b32 s34, s34, 2                  ; T
    s_lshr_b32 s35, s34, 3
    s_and_b32 s34, s34, 7
    s_lshr_b32 s36, s21, 1                  ; group
    s_mul_i32 s37, s36, s35
    s_min_u32 s38, s36, s34
    s_add_u32 s37, s37, s38
    s_lshl_b32 s60, s37, 2
    s_cmp_lt_u32 s36, s34
    s_addc_u32 s35, s35, 0
    s_add_u32 s61, s60, s35
    s_add_u32 s62, s61, s35
    s_add_u32 s63, s62, s35
""")
    for k in range(4):
        e(f"    v_cmp_ge_u32 vcc, s{60 + k}, v41\n    s_bcnt1_i32_b64 s{64 + k}, vcc\n    s_min_u32 s{64 + k}, s{64 + k}, s22\n    s_mul_i32 s{64 + k}, s{64 + k}, {RS}")
    e(f"""
    s_cmp_lg_u32 s21, 15
    s_cbranch_scc1 K2_NOFL
    v_cmp_gt_u32 vcc, s22, v1
    s_mov_b64 exec, vcc
    ds_write_b8 v41, v116 offset:{FL - 1}
    s_mov_b64 exec, -1
K2_NOFL:
    s_cmp_ge_u32 s21, 8
    s_cbranch_scc1 K2_NOAG
    v_cvt_f32_u32 v42, v42
    v_lshlrev_b32 v44, 2, v6
    v_add_u32 v45, 64, v44
    v_add_u32 v46, 0x80, v44
    ds_bpermute_b32 v44, v44, v42
    ds_bpermute_b32 v45, v45, v42
    ds_bpermute_b32 v46, v46, v42
    s_waitcnt lgkmcnt(0)
""")
    for T in range(3):
        for r in range(4):
            e(f"    v_fma_f32 v{104 + 4 * T + r}, -v{44 + T}, v{92 + 4 * T + r}, v{104 + 4 * T + r}")
        e(f"    ds_write_b128 v86, {vr(104 + 4 * T, 4)} offset:{AG - QL + 16 * RS * T}")
    e("""
K2_NOAG:
    s_mov_b32 s55, 1
    s_waitcnt lgkmcnt(0)
""")
    for k in range(6):
        e(f"""
    s_mov_b64 exec, {sr(sM[k], 2)}
    s_cbranch_execz K2_SCATD
    v_add_u32 v{32 + k}, v{32 + k}, v{11 + 4 * k}
    v_and_b32 v{10 + 4 * k}, 0x3ffffff, v{10 + 4 * k}
    v_lshlrev_b32 v{11 + 4 * k}, 3, v{32 + k}
    v_lshlrev_b32 v{32 + k}, 2, v{32 + k}
    ds_write_b64 v{11 + 4 * k}, {vr(8 + 4 * k, 2)} offset:{EA}
    ds_write_b32 v{32 + k}, v{10 + 4 * k} offset:{SO}
""")
    e(f"""
K2_SCATD:
    s_mov_b64 exec, -1
    v_cmp_gt_u32 vcc, 32, v1
    v_and_b32 v44, 31, v1
    v_mov_b32 v45, s62
    v_mov_b32 v46, s60
    v_cndmask_b32 v45, v45, v46, vcc
    v_mov_b32 v46, s66
    v_mov_b32 v47, s64
    v_cndmask_b32 v{vaN[0]}, v46, v47, vcc
    v_mov_b32 v46, s67
    v_mov_b32 v47, s65
    v_cndmask_b32 v{vaN[1]}, v46, v47, vcc
    s_lshl_b32 s36, s23, 8
    s_add_u32 s36, s36, {QL}
    v_lshl_add_u32 v46, v44, 3, s36
    v_add_u32 v{vaN[0]}, v{vaN[0]}, v46
    v_add_u32 v{vaN[1]}, v{vaN[1]}, v46
    v_lshlrev_b32 v{vaS[0]}, 4, v45
    s_lshl_b32 s36, s35, 4
    v_add_u32 v{vaS[1]}, s36, v{vaS[0]}
    v_add_u32 v47, v45, v44
    v_add_u32 v48, s35, v47
    v_bfe_u32 v49, v1, 2, 1
    v_bfe_u32 v50, v1, 4, 1
    v_lshl_or_b32 v49, v49, 1, v50          ; stream 2h + y
    v_mul_u32_u24 v49, s35, v49
    v_add_u32 v49, s60, v49
    v_bfe_u32 v50, v1, 3, 1
    v_bfe_u32 v51, v1, 1, 1
    v_lshl_or_b32 v50, v50, 1, v51
    v_lshlrev_b32 v50, 3, v50
    v_lshl_add_u32 v49, v49, 5, v50
    v_lshrrev_b32 v50, 5, v1
    v_and_b32 v51, 1, v1
    v_cmp_eq_u32 vcc, v50, v51
    v_mov_b32 v50, {ZR}
    v_mov_b32 v51, {32 * UNR}
    v_cndmask_b32 v{vaE}, v50, v49, vcc
    v_cndmask_b32 v{vInc}, 0, v51, vcc
    v_mov_b64 {vr(vAc[0], 2)}, 0
    v_mov_b64 {vr(vAc[1], 2)}, 0
    s_waitcnt lgkmcnt(0)
    s_barrier
""")
    stamp(5, 4, 1)
    e(f"""
    ds_read_b128 {vr(vSO, 4)}, v{vaS[0]} offset:{SO}
    ds_read_b128 {vr(vSO + 4, 4)}, v{vaS[1]} offset:{SO}
    ds_read_b128 {vr(vD, 4)}, v{vaS[0]} offset:{SO + 16}
    ds_read_b128 {vr(vD + 4, 4)}, v{vaS[1]} offset:{SO + 16}
    ds_read_u8 v47, v47 offset:{FL}
    ds_read_u8 v48, v48 offset:{FL}
    ds_read2_b64 {vr(vQ[0], 4)}, v{vaN[0]} offset0:0 offset1:0
    ds_read2_b64 {vr(vQ[1], 4)}, v{vaN[1]} offset0:0 offset1:0
    ds_read2_b64 {vr(vAe, 4)}, v{vaE} offset0:0 offset1:0
    s_waitcnt lgkmcnt(7)
""")
    gathers(0)
    e("    s_waitcnt lgkmcnt(5)")
    for k in range(8):
        if OPT["safe"]:
            e(f"    v_min_u32 v{vD + k}, {PADV}, v{vD + k}\n    v_and_b32 v{vD + k}, -8, v{vD + k}")
        e(f"    buffer_load_dword v{vP[1] + k}, v{vD + k}, s[8:11], 0 offen")
    e(f"""
    ds_read_b128 {vr(vSO, 4)}, v{vaS[0]} offset:{SO + 32}
    ds_read_b128 {vr(vSO + 4, 4)}, v{vaS[1]} offset:{SO + 32}
    s_waitcnt lgkmcnt(5)
    v_cmp_ne_u32 {sr(sFM[0], 2)}, 0, v47
    v_cmp_ne_u32 {sr(sFM[1], 2)}, 0, v48
    s_mov_b32 s34, s35
""")
    if OPT["prio"]:
        e("    s_setprio 3\n    s_lshr_b32 s68, s35, 2\n    s_mul_i32 s69, s68, 3\n    s_lshl_b32 s70, s68, 1")
    e("K2_LOOP:")
    for u in range(UNR):
        b = u % 2
        e("    s_waitcnt vmcnt(8) lgkmcnt(0)")
        if u == 0 and OPT["stamps"]:
            e("    s_cmp_lg_u32 s34, s35\n    s_cbranch_scc1 K2_ST6"); stamp(6, 4, 1); e("K2_ST6:")
        for q in range(4):
            e(f"    v_mfma_f32_4x4x4_16b_bf16 {vr(vD + 4 * q, 4)}, {vr(vI, 2)}, {vr(vP[b] + 2 * q, 2)}, {vr(vQ[q // 2], 4)}")
        gathers(b)
        e(f"    v_mfma_f32_32x32x16_bf16 {vr(vD, 16)}, {vr(vAe, 4)}, {vr(vBw, 4)}, {vr(vD, 16)}")
        if u == UNR - 1:
            e(f"    v_add_u32 v{vaE}, v{vInc}, v{vaE}")
        oe = ((u + 1) % UNR) * 4
        e(f"""
    ds_read_b128 {vr(vSO, 4)}, v{vaS[0]} offset:{SO + 16 * (u + 3)}
    ds_read_b128 {vr(vSO + 4, 4)}, v{vaS[1]} offset:{SO + 16 * (u + 3)}
    ds_read2_b64 {vr(vAe, 4)}, v{vaE} offset0:{oe} offset1:{oe}
""")
        nop = 12 - 3
        if u == UNR - 1:
            e(f"    v_add_u32 v{vaS[0]}, {16 * UNR}, v{vaS[0]}\n    v_add_u32 v{vaS[1]}, {16 * UNR}, v{vaS[1]}")
            nop -= 3
        if OPT["prio"]:
            e(f"""
    s_cmp_gt_u32 s34, s69
    s_cbranch_scc1 K2_PR{u}
    s_setprio 2
    s_cmp_gt_u32 s34, s70
    s_cbranch_scc1 K2_PR{u}
    s_setprio 1
    s_cmp_gt_u32 s34, s68
    s_cbranch_scc1 K2_PR{u}
    s_setprio 0
K2_PR{u}:
""")
            nop -= 2
        e(f"    s_nop {nop - 1}")
        core()
        for y in range(2):
            e(f"""
    s_and_b64 s[36:37], {sr(sFM[y], 2)}, s[32:33]
    s_cbranch_scc1 K2_FL{u}{y}
K2_FB{u}{y}:
    s_lshr_b64 {sr(sFM[y], 2)}, {sr(sFM[y], 2)}, 1
""")
        if u == 1:
            e(f"""
    s_cmp_eq_u32 s56, 0
    s_cbranch_scc1 K2_WBL
K2_WBB:
""")
        e("    s_sub_u32 s34, s34, 1\n    s_cmp_eq_u32 s34, 0")
        if u < UNR - 1:
            e("    s_cbranch_scc1 K2_LDONE")
        else:
            e("    s_cbranch_scc0 K2_LOOP")
    e("K2_LDONE:")
    for y in range(2):
        e(f"""
    ds_add_f32 v{vaN[y]}, v{vAc[y]} offset:{AG - QL}
    ds_add_f32 v{vaN[y]}, v{vAc[y] + 1} offset:{AG - QL + 4}
""")
    stamp(7, 4, 1)
    e(f"""
    s_cmp_lg_u32 s56, 0
    s_cbranch_scc1 K2_WBOK
    s_mov_b32 s56, 1
""")
    wb_loads()
    e(f"""
K2_WBOK:
    s_lshr_b32 s34, s21, 2
    s_and_b32 s35, s21, 3
    s_lshl_b32 s36, s34, 4
    v_add_u32 v124, s36, v6
    v_mul_u32_u24 v125, {RS}, v124
    v_lshl_add_u32 v125, v5, 5, v125
    s_lshl_b32 s36, s35, 7
    v_add_u32 v126, s36, v125
    v_lshlrev_b32 v124, 16, v124
    v_lshl_or_b32 v124, v5, 4, v124
    s_lshl_b32 s36, s20, 8
    s_lshl_b32 s37, s35, 6
    s_add_u32 s60, s36, s37
    v_add_u32 v124, s60, v124
    s_mov_b32 s36, {NL2E:#x}
    s_mov_b32 s37, {NL2E:#x}
    s_waitcnt vmcnt(0) lgkmcnt(0)
    s_barrier
""")
    stamp(8, 4, 1)
    e(f"""
    s_cmp_eq_u32 s57, 0
    s_cbranch_scc1 K2_EPI
    s_add_u32 s24, s24, s25
    s_cmp_ge_u32 s21, 12
    s_cselect_b32 s56, 1, 0
    s_branch K2_ROUND
K2_EPI:
    s_cmp_ge_u32 s21, 12
    s_cbranch_scc1 K2_FIN
""")
    add = AG
    e(f"    v_add_u32 v125, {AG}, v125\n    v_add_u32 v126, {UL}, v126")
    for s in range(4):
        for h in range(2):
            e(f"    ds_read_b128 {vr(16 + 8 * s + 4 * h, 4)}, v125 offset:{128 * s + 16 * h}")
        if s == 0:
            e("    ds_read_b128 v[64:67], v126\n    ds_read_b128 v[68:71], v126 offset:16")
    for s in range(4):
        e(f"    s_waitcnt lgkmcnt({[6, 4, 2, 0][s]})")
        for m in range(4):
            e(f"    v_cvt_pk_bf16_f32 v{48 + 4 * s + m}, v{16 + 8 * s + 2 * m}, v{17 + 8 * s + 2 * m}")
        e("    s_nop 1")
        for t in range(2):
            e(f"    v_mfma_f32_16x16x32_bf16 {vr(64 + 4 * t, 4)}, {vr(vWb + 16 * t + 4 * s, 4)}, {vr(48 + 4 * s, 4)}, {vr(64 + 4 * t, 4)}")
    e("    s_nop 6")
    for m in range(4):
        if m == 2: e("    s_nop 0")
        e(f"    v_pk_mul_f32 {vr(72 + 2 * m, 2)}, {vr(64 + 2 * m, 2)}, s[36:37]")
    for m in range(8):
        e(f"    v_exp_f32 v{72 + m}, v{72 + m}")
    for m in range(4):
        e(f"    v_pk_add_f32 {vr(72 + 2 * m, 2)}, {vr(72 + 2 * m, 2)}, 1.0 op_sel_hi:[1,0]")
    for m in range(8):
        e(f"    v_rcp_f32 v{72 + m}, v{72 + m}")
    for m in range(4):
        e(f"    v_pk_mul_f32 {vr(72 + 2 * m, 2)}, {vr(72 + 2 * m, 2)}, {vr(64 + 2 * m, 2)}")
    for m in range(4):
        e(f"    v_cvt_pk_bf16_f32 v{80 + m}, v{72 + 2 * m}, v{73 + 2 * m}")
    e("    buffer_store_dwordx4 v[80:83], v124, s[16:19], 0 offen")
    e("K2_FIN:")
    if OPT["stamps"]:
        stamp(9, 4, 1); e("    s_waitcnt vmcnt(0)"); stamp(10, 4, 1); stamp_out(4, 1)
    e("K2_END:\n    s_endpgm")
    for u in range(UNR):
        for y in range(2):
            flush_block(y, f"K2_FL{u}{y}", f"K2_FB{u}{y}")
    e("K2_WBL:\n    s_mov_b32 s56, 1")
    wb_loads()
    e("    s_branch K2_WBB")

def desc(name, vg, sg):
    e(f"""
.p2align 6
.amdhsa_kernel {name}
  .amdhsa_next_free_vgpr {vg}
  .amdhsa_next_free_sgpr {sg}
  .amdhsa_accum_offset {vg}
  .amdhsa_group_segment_fixed_size 0
  .amdhsa_kernarg_size 72
  .amdhsa_user_sgpr_count 2
  .amdhsa_user_sgpr_kernarg_segment_ptr 1
  .amdhsa_system_sgpr_workgroup_id_x 1
.end_amdhsa_kernel
""")

e(f"""
; @launch kernel=mpnn_bin_kernel grid=(256,1,1) block=(1024,1,1) lds={K1_LDS}
; @launch kernel=mpnn_edge_kernel grid=(256,1,1) block=(1024,1,1) lds={K2_LDS}
.amdgcn_target "amdgcn-amd-amdhsa--gfx950"
""")
kernel1()
kernel2()
e('.section .rodata,"a"')
desc("mpnn_bin_kernel", 128, 96)
desc("mpnn_edge_kernel", 128, 96)
open(sys.argv[1], "w").write("\n".join(L) + "\n")
```

```python
import sys, struct, math

def f2u(x): return struct.unpack("<I", struct.pack("<f", x))[0]

OPT = dict(safe=0, stamps=0, prio=1, nogather=0, nocore=0, nolds=0, nomfma=0, noflush=0)
for a in sys.argv[2:]:
    k, v = a.split("="); OPT[k] = int(v)

N, E = 10000, 320000
NB = 256
EPW = 1250
PT    = 0
DESC  = 0x280000
REC   = 0x2C0000
RSTR  = 15360
W2F   = REC + NB * RSTR
WUT   = W2F + 0x8000
WUB   = WUT + 0x8000
W3F   = WUB + 0x8000
STAMP = W3F + 0x800
WSEND = STAMP + (0x80000 if OPT["stamps"] else 0)
NL2E = f2u(-1.4426950408889634)
KC   = f2u(1.0 / (2.0 ** 31 * math.log(2.0)))
NSC  = f2u(-2.0 ** -31)

L = []
def e(s=""):
    for ln in s.strip("\n").split("\n"):
        L.append(ln)
def vr(a, n): return f"v[{a}:{a + n - 1}]" if n > 1 else f"v{a}"
def sr(a, n): return f"s[{a}:{a + n - 1}]" if n > 1 else f"s{a}"

def srd(s, nrec, w3=0x20000):
    e(f"    s_mov_b32 s{s + 2}, {nrec:#x}\n    s_mov_b32 s{s + 3}, {w3:#x}")

def scan64(v):
    for c in ("row_shr:1 row_mask:0xf", "row_shr:2 row_mask:0xf", "row_shr:4 row_mask:0xf", "row_shr:8 row_mask:0xf",
              "row_bcast:15 row_mask:0xa", "row_bcast:31 row_mask:0xc"):
        e(f"    s_nop 1\n    v_add_u32_dpp v{v}, v{v}, v{v} {c} bank_mask:0xf")

NST = 16
def stamp(i, srd_s, kern):
    if not OPT["stamps"]: return
    e(f"""
    s_memtime s[90:91]
    s_waitcnt lgkmcnt(0)
    v_writelane_b32 v127, s90, {i}
""")
    if i == 0:
        e("    s_memrealtime s[90:91]\n    s_waitcnt lgkmcnt(0)\n    v_writelane_b32 v127, s90, 14")
def stamp_out(srd_s, kern):
    if not OPT["stamps"]: return
    e(f"""
    s_memrealtime s[90:91]
    s_waitcnt lgkmcnt(0)
    v_writelane_b32 v127, s90, 15
    s_mov_b64 exec, 0xffff
    s_lshl_b32 s90, s2, 4
    s_add_u32 s90, s90, s21
    s_lshl_b32 s90, s90, 6
    s_add_u32 s90, s90, {STAMP + kern * 0x40000}
    v_mbcnt_lo_u32_b32 v126, -1, 0
    v_lshlrev_b32 v126, 2, v126
    buffer_store_dword v127, v126, s[{srd_s}:{srd_s + 3}], s90 offen
    s_mov_b64 exec, -1
""")

K1_CNT, K1_ST, K1_STG, K1_WL = 0, 1024, 2048, 2048 + RSTR
K1_LDS = 84 * 1024
def kernel1():
    e("""
.text
.globl mpnn_bin_kernel
.p2align 8
.type mpnn_bin_kernel,@function
mpnn_bin_kernel:
    s_cmp_ge_u32 s2, 256
    s_cbranch_scc1 K1_END
    s_load_dwordx4 s[4:7], s[0:1], 0        ; x, e_attr
    s_load_dwordx4 s[8:11], s[0:1], 16
    s_load_dwordx4 s[12:15], s[0:1], 32
    s_load_dwordx2 s[16:17], s[0:1], 64     ; ws
    v_lshrrev_b32 v2, 6, v0
    v_and_b32 v1, 63, v0
    v_readfirstlane_b32 s21, v2
""")
    stamp(0, 16, 0)
    e("""
    s_cmp_ge_u32 s21, 10
    s_cbranch_scc1 K1_GEMM
    s_mul_i32 s22, s2, 5000
    s_lshl_b32 s23, s22, 1
    v_lshlrev_b32 v3, 3, v0
    v_lshlrev_b32 v4, 4, v0
    v_cmp_gt_u32 vcc, 625, v0
    v_mov_b32 v20, 0
    v_mov_b32 v21, 0
    v_mov_b32 v22, 0
    v_mov_b32 v23, 0
    s_mov_b64 s[44:45], vcc
    s_waitcnt lgkmcnt(0)
    s_mov_b32 s24, s10
    s_mov_b32 s25, s11
""")
    srd(24, E * 4)
    e("    s_mov_b32 s28, s8\n    s_mov_b32 s29, s9"); srd(28, E * 4)
    e("    s_mov_b32 s32, s6\n    s_mov_b32 s33, s7"); srd(32, E * 8)
    srd(16, WSEND)
    e(f"""
    s_mov_b64 exec, s[44:45]
    buffer_load_dwordx2 v[6:7], v3, s[24:27], s22 offen      ; dst
    buffer_load_dwordx2 v[8:9], v3, s[28:31], s22 offen      ; src
    buffer_load_dwordx4 v[10:13], v4, s[32:35], s23 offen
    s_mov_b64 exec, -1
    s_cmp_lg_u32 s21, 0
    s_cbranch_scc1 K1_NOZ
    ds_write_b128 v4, v[20:23] offset:{K1_CNT}
K1_NOZ:
    v_mov_b32 v24, 1
    s_waitcnt lgkmcnt(0)
    s_barrier
    s_mov_b64 exec, s[44:45]
    s_waitcnt vmcnt(2)
""")
    stamp(1, 16, 0)
    e(f"""
    v_and_b32 v14, 0xff, v6
    v_and_b32 v15, 0xff, v7
    v_lshlrev_b32 v14, 2, v14
    v_lshlrev_b32 v15, 2, v15
    ds_add_rtn_u32 v16, v14, v24 offset:{K1_CNT}
    ds_add_rtn_u32 v17, v15, v24 offset:{K1_CNT}
    v_lshrrev_b32 v6, 8, v6
    v_lshrrev_b32 v7, 8, v7
    v_lshlrev_b32 v6, 26, v6
    v_lshlrev_b32 v7, 26, v7
    s_mov_b64 exec, -1
    v_lshlrev_b32 v5, 4, v1
    s_waitcnt lgkmcnt(0)
    s_barrier
""")
    stamp(2, 16, 0)
    e(f"""
    ds_read_b128 v[20:23], v5 offset:{K1_CNT}
    s_waitcnt vmcnt(1)
    v_lshl_or_b32 v8, v8, 3, v6
    v_lshl_or_b32 v9, v9, 3, v7
    s_waitcnt lgkmcnt(0)
    v_add_u32 v25, v20, v21
    v_add_u32 v26, v25, v22
    v_add_u32 v27, v26, v23
    v_mov_b32 v28, v27
""")
    scan64(28)
    e(f"""
    v_sub_u32 v28, v28, v27
    v_add_u32 v29, v28, v20
    v_add_u32 v30, v28, v25
    v_add_u32 v31, v28, v26
    ds_write_b128 v5, v[28:31] offset:{K1_ST}
    ds_read_b32 v18, v14 offset:{K1_ST}
    ds_read_b32 v19, v15 offset:{K1_ST}
    s_cmp_lg_u32 s21, 9
    s_cbranch_scc1 K1_NOD
    v_lshl_or_b32 v32, v20, 16, v28
    v_lshl_or_b32 v33, v21, 16, v29
    v_lshl_or_b32 v34, v22, 16, v30
    v_lshl_or_b32 v35, v23, 16, v31
    s_lshl_b32 s36, s2, 10
    s_add_u32 s36, s36, {DESC}
    buffer_store_dwordx4 v[32:35], v5, s[16:19], s36 offen
K1_NOD:
    s_mov_b64 exec, s[44:45]
    s_waitcnt lgkmcnt(0)
    v_add_u32 v18, v18, v16
    v_add_u32 v19, v19, v17
    v_mul_u32_u24 v18, 12, v18
    v_mul_u32_u24 v19, 12, v19
    v_add_u32 v18, {K1_STG}, v18
    v_add_u32 v19, {K1_STG}, v19
    s_cmp_lg_u32 s21, 9
    s_cbranch_scc1 K1_W0
    s_waitcnt vmcnt(1)
    s_branch K1_W1
K1_W0:
    s_waitcnt vmcnt(0)
K1_W1:
    ds_write2_b32 v18, v10, v11 offset0:0 offset1:1
    ds_write_b32 v18, v8 offset:8
    ds_write2_b32 v19, v12, v13 offset0:0 offset1:1
    ds_write_b32 v19, v9 offset:8
    s_mov_b64 exec, -1
    s_mul_i32 s36, s2, {RSTR}
    s_add_u32 s36, s36, {REC}
    s_add_u32 s37, s36, 10240
    s_waitcnt lgkmcnt(0)
    s_barrier
""")
    stamp(3, 16, 0)
    e(f"""
    ds_read_b128 v[20:23], v4 offset:{K1_STG}
    s_cmp_ge_u32 s21, 5
    s_cbranch_scc1 K1_C1
    ds_read_b128 v[24:27], v4 offset:{K1_STG + 10240}
    s_waitcnt lgkmcnt(0)
    buffer_store_dwordx4 v[24:27], v4, s[16:19], s37 offen
K1_C1:
    s_waitcnt lgkmcnt(0)
    buffer_store_dwordx4 v[20:23], v4, s[16:19], s36 offen
""")
    if OPT["stamps"]:
        stamp(4, 16, 0); e("    s_waitcnt vmcnt(0)"); stamp(5, 16, 0); stamp_out(16, 0)
    e(f"""
    s_endpgm
K1_GEMM:
    s_sub_u32 s22, s21, 10                  ; gi
    v_lshrrev_b32 v2, 4, v1                 ; g
    v_and_b32 v3, 15, v1                    ; n / i
    s_cmp_ge_u32 s2, 209
    s_cbranch_scc1 K1_JOBS
    s_lshr_b32 s23, s22, 1                  ; T
    s_and_b32 s24, s22, 1                   ; fh
    ; W1 -> LDS source offset: row (l/16), chunk (l%16) ^ ((l/16)<<1)
    v_lshlrev_b32 v4, 1, v2
    v_xor_b32 v4, v4, v3
    v_lshlrev_b32 v4, 4, v4
    v_lshl_or_b32 v4, v2, 8, v4
    s_mul_i32 s25, s2, 48
    s_lshl_b32 s26, s23, 4
    s_add_u32 s25, s25, s26
    v_add_u32 v5, s25, v3
    v_lshlrev_b32 v5, 8, v5
    v_lshl_or_b32 v5, v2, 4, v5
    s_waitcnt lgkmcnt(0)
""")
    srd(4, N * 256)
    srd(12, 128 * 256)
    srd(16, N * 256)
    for m in range(6):
        if m == 5:
            e("    s_cmp_ge_u32 s22, 2\n    s_cbranch_scc1 K1_DMAD")
        e(f"""
    s_add_u32 s27, s22, {6 * m}
    s_lshl_b32 s28, s27, 6
    s_and_b32 s28, s28, 0x80
    s_lshl_b32 s27, s27, 10
    v_xor_b32 v6, s28, v4
    s_add_u32 s28, s27, {K1_WL}
    s_mov_b32 m0, s28
    s_nop 0
    buffer_load_dwordx4 v6, s[12:15], s27 offen lds
""")
    e("K1_DMAD:")
    for s in range(4):
        e(f"    buffer_load_dwordx4 {vr(8 + 4 * s, 4)}, v5, s[4:7], 0 offen offset:{64 * s}")
    e(f"""
    v_lshrrev_b32 v24, 2, v3                ; r'
    v_and_b32 v25, 3, v3                    ; c'
    v_and_b32 v26, 1, v2
    v_lshl_or_b32 v26, v26, 2, v24          ; h(k)
    v_lshl_add_u32 v27, v2, 3, v24          ; 8g + r'
    v_lshlrev_b32 v27, 8, v27
    v_lshl_or_b32 v27, v25, 3, v27
    v_add_u32 v27, {K1_WL}, v27
    s_lshl_b32 s27, s24, 2
    v_xor_b32 v26, s27, v26
""")
    for f in range(4):
        e(f"    v_xor_b32 v{28 + f}, {f}, v26\n    v_lshl_add_u32 v{28 + f}, v{28 + f}, 5, v27")
    e(f"""
    s_lshl_b32 s27, s24, 7
    v_add_u32 v5, s27, v5
    s_mov_b32 s28, {NL2E:#x}
    s_mov_b32 s29, {NL2E:#x}
    s_barrier
    s_barrier
    s_waitcnt vmcnt(0)
    s_barrier
""")
    stamp(3, 16, 0)
    for s in range(4):
        for f in range(4):
            for u2 in range(2):
                e(f"    ds_read_b64_tr_b16 {vr(32 + 16 * f + 4 * s + 2 * u2, 2)}, v{28 + f} offset:{s * 8192 + u2 * 1024}")
    for s in range(4):
        for f in range(4):
            left = 32 - (8 * s + 2 * f + 2)
            e(f"    s_waitcnt lgkmcnt({min(left, 15)})")
            c = "0" if s == 0 else vr(96 + 4 * f, 4)
            e(f"    v_mfma_f32_16x16x32_bf16 {vr(96 + 4 * f, 4)}, {vr(32 + 16 * f + 4 * s, 4)}, {vr(8 + 4 * s, 4)}, {c}")
    e("    s_nop 4")
    for f in range(4):
        for h in range(2):
            r = 96 + 4 * f + 2 * h
            e(f"    v_pk_mul_f32 {vr(r, 2)}, {vr(r, 2)}, s[28:29]")
        for h in range(2):
            r = 96 + 4 * f + 2 * h
            e(f"    v_cvt_pk_bf16_f32 v{112 + 2 * f + h}, v{r}, v{r + 1}")
        if f % 2 == 1:
            e(f"    buffer_store_dwordx4 {vr(112 + 2 * (f - 1), 4)}, v5, s[16:19], 0 offen offset:{64 * (f // 2)}")
    if OPT["stamps"]:
        srd(16, WSEND); stamp(4, 16, 0); e("    s_waitcnt vmcnt(0)"); stamp(5, 16, 0); stamp_out(16, 0)
    e(f"""
    s_endpgm
K1_JOBS:
    s_sub_u32 s23, s2, 209
    s_mul_i32 s23, s23, 6
    s_add_u32 s23, s23, s22
    s_waitcnt lgkmcnt(0)
""")
    srd(16, WSEND)
    e(f"""
    s_cmp_ge_u32 s23, 96
    s_cbranch_scc1 K1_JOB2
    s_lshr_b32 s24, s23, 5
    s_bfe_u32 s25, s23, 0x30002             ; f
    s_and_b32 s26, s23, 3                   ; s
    s_cmp_eq_u32 s24, 0
    s_cselect_b32 s28, s12, s14
    s_cselect_b32 s29, s13, s15
    s_mov_b32 s30, {256 * 256}
    s_mov_b32 s31, 0x20000
    ; column
    s_lshr_b32 s32, s25, 1
    s_lshl_b32 s32, s32, 5
    s_and_b32 s33, s25, 1
    s_lshl_b32 s33, s33, 2
    s_add_u32 s32, s32, s33                 ; 32(f>>1) + 4(f&1)
    s_lshl_b32 s33, s25, 4                  ; 16 f
    v_lshrrev_b32 v4, 2, v3
    v_and_b32 v5, 3, v3
    v_lshl_or_b32 v4, v4, 3, v5
    v_add_u32 v4, s32, v4
    v_add_u32 v5, s33, v3
    s_cmp_eq_u32 s24, 0
    s_cselect_b64 vcc, -1, 0
    s_nop 1
    v_cndmask_b32 v4, v4, v5, vcc
    v_lshlrev_b32 v4, 1, v4
    ; row
    v_lshlrev_b32 v5, 11, v2                ; 8 g rows
    v_lshrrev_b32 v7, 1, v2
    v_lshlrev_b32 v7, 12, v7
    v_and_b32 v6, 1, v2
    v_lshl_or_b32 v7, v6, 9, v7             ; 16 (g>>1) + 2 (g&1) rows
    s_cmp_eq_u32 s24, 2
    s_cselect_b64 vcc, -1, 0
    s_cselect_b32 s32, 10, 13
    s_movk_i32 s33, 512
    s_cmovk_i32 s33, 8192
    s_cselect_b32 s34, {NSC:#x}, 1.0
    v_cndmask_b32 v5, v5, v7, vcc
    v_add_u32 v4, v4, v5
    s_lshl_b32 s40, s26, s32
    s_cmp_eq_u32 s24, 1
    s_cselect_b32 s36, 0, 0x8000
    s_add_u32 s40, s40, s36
    s_add_u32 s41, s40, s33
    s_add_u32 s42, s41, s33
    s_add_u32 s43, s42, s33
""")
    for m in range(8):
        e(f"    buffer_load_ushort v{8 + m}, v4, s[28:31], s{40 + m // 2} offen offset:{(m & 1) * 256}")
    e(f"""
    s_lshl_b32 s37, s23, 10
    s_add_u32 s37, s37, {W2F}
    v_lshlrev_b32 v6, 4, v1
    s_mov_b32 s38, 0x07060302
    s_waitcnt vmcnt(0)
""")
    for m in range(8):
        e(f"    v_lshlrev_b32 v{8 + m}, 16, v{8 + m}\n    v_mul_f32 v{8 + m}, s34, v{8 + m}")
    for m in range(4):
        e(f"    v_perm_b32 v{16 + m}, v{9 + 2 * m}, v{8 + 2 * m}, s38")
    e(f"""
    buffer_store_dwordx4 v[16:19], v6, s[16:19], s37 offen
    s_endpgm
K1_JOB2:
    s_cmp_ge_u32 s23, 98
    s_cbranch_scc1 K1_JOB3
    s_sub_u32 s24, s23, 96                  ; c
    s_mov_b32 s14, {260 * 256}
    s_mov_b32 s15, 0x20000
    v_and_b32 v2, 31, v1
    v_lshrrev_b32 v3, 5, v1
    v_lshl_or_b32 v2, v2, 1, v3             ; p & 63
    v_and_b32 v4, 0x23, v2
    v_bfe_u32 v5, v2, 2, 1
    v_lshl_or_b32 v4, v5, 4, v4
    v_bfe_u32 v5, v2, 3, 2
    v_lshl_or_b32 v4, v5, 2, v4             ; feature & 63
    v_lshlrev_b32 v4, 1, v4
    s_lshl_b32 s25, s24, 7
    s_add_u32 s25, s25, {256 * 256}
""")
    for d in range(4):
        e(f"    buffer_load_ushort v{8 + d}, v4, s[12:15], s25 offen offset:{d * 256}")
    e(f"""
    s_lshl_b32 s37, s24, 10
    s_add_u32 s37, s37, {W3F}
    v_lshlrev_b32 v6, 4, v1
    s_mov_b32 s34, {NL2E:#x}
    s_waitcnt vmcnt(0)
""")
    for d in range(4):
        e(f"    v_lshlrev_b32 v{8 + d}, 16, v{8 + d}\n    v_mul_f32 v{8 + d}, s34, v{8 + d}")
    e("""
    v_cvt_pk_bf16_f32 v16, v8, v9
    v_cvt_pk_bf16_f32 v17, v10, v11
    v_lshlrev_b32 v12, 16, v16
    v_and_b32 v13, 0xffff0000, v16
    v_lshlrev_b32 v14, 16, v17
    v_and_b32 v15, 0xffff0000, v17
    v_sub_f32 v8, v8, v12
    v_sub_f32 v9, v9, v13
    v_sub_f32 v10, v10, v14
    v_sub_f32 v11, v11, v15
    v_cvt_pk_bf16_f32 v18, v8, v9
    v_cvt_pk_bf16_f32 v19, v10, v11
    buffer_store_dwordx4 v[16:19], v6, s[16:19], s37 offen
    s_endpgm
K1_JOB3:
    s_cmp_lg_u32 s23, 98
    s_cbranch_scc1 K1_END
    v_mov_b32 v8, 0
    v_lshlrev_b32 v6, 2, v1
""")
    e(f"""
    s_mov_b32 s37, {PT + N * 256}
    buffer_store_dword v8, v6, s[16:19], s37 offen
K1_END:
    s_endpgm
""")

RS = 1056
CAP = 2048
EA, SO = 0, CAP * 8
MISC = SO + CAP * 4
ZR, CNT, MORE, FL = MISC, MISC + 256, MISC + 512, MISC + 1024
QU = MISC + 2048
AG = QU + 41 * RS
XL = (AG + 8 * 6 * 1024 + 255) // 256 * 256
AGB = XL + 12288
RB = 272
K2_LDS = AGB + 48 * RB
PADV = N * 8
S16MAX = (CAP // 4 - 6) * 16
vSO, vP, vD, vE, vAe, vBw, vQ, vAc, vI = 8, (16, 24), 32, 48, 64, 68, (72, 76), (80, 82), 84
vaS, vaE, vInc, vaN, vWb = (86, 87), 88, 89, (90, 91), 92
sM = [40 + 2 * k for k in range(6)]
sFM = (28, 30)
UNR = 4
M9 = "0x01ff01ff"

def flush_adds(y):
    t = vE + 8 * y
    e(f"""
    v_cvt_f64_f32 {vr(t, 2)}, v{vAc[y]}
    v_cvt_f64_f32 {vr(t + 2, 2)}, v{vAc[y] + 1}
    ds_add_f64 v{vaN[y]}, {vr(t, 2)} offset:{AG - QU}
    ds_add_f64 v{vaN[y]}, {vr(t + 2, 2)} offset:{AG - QU + 8}
""")

def flush_block(y, lab, back):
    e(f"""
{lab}:
    s_sub_u32 exec_lo, 0, s36
    s_sub_u32 exec_hi, 0, s37
""")
    flush_adds(y)
    e(f"""
    v_add_u32 v{vaN[y]}, {RS}, v{vaN[y]}
    v_mov_b64 {vr(vAc[y], 2)}, 0
    ds_read2_b64 {vr(vQ[y], 4)}, v{vaN[y]} offset0:0 offset1:0
    s_mov_b64 exec, -1
    s_branch {back}
""")

def gathers(dst, adr):
    for k in range(8):
        if OPT["safe"]:
            e(f"    v_min_u32 v{adr + k}, {PADV}, v{adr + k}\n    v_and_b32 v{adr + k}, -8, v{adr + k}")
        e(f"    buffer_load_dword v{dst + k}, v{adr + k}, s[8:11], 0 offen")

def wb_loads():
    for t in range(2):
        for s in range(4):
            e(f"    buffer_load_dwordx4 {vr(vWb + 16 * t + 4 * s, 4)}, v7, s[4:7], s{52 + t} offen offset:{1024 * s}")

def core():
    D, Ee = vD, vE
    def p(r): return vr(r, 2)
    for k in range(16):
        e(f"    v_exp_f32 v{Ee + k}, v{D + k}")
        if k in (9, 11, 13, 15):
            m = (k - 9) // 2
            e(f"    v_pk_fma_f32 {p(Ee + 2 * m)}, {p(Ee + 2 * m)}, s[26:27], s[26:27] clamp")
    for m in range(4, 8):
        e(f"    v_pk_fma_f32 {p(Ee + 2 * m)}, {p(Ee + 2 * m)}, s[26:27], s[26:27] clamp")
    seq = [
        lambda o: f"v_pk_mul_f32 {p(D + o)}, {p(D + o)}, {p(Ee + o + 2)}",
        lambda o: f"v_pk_mul_f32 {p(D + o + 4)}, {p(D + o + 4)}, {p(Ee + o + 6)}",
        lambda o: f"v_pk_fma_f32 {p(D + o)}, {p(D + o + 2)}, {p(Ee + o)}, {p(D + o)}",
        lambda o: f"v_pk_fma_f32 {p(D + o + 4)}, {p(D + o + 6)}, {p(Ee + o + 4)}, {p(D + o + 4)}",
        lambda o: f"v_pk_mul_f32 {p(Ee + o)}, {p(Ee + o)}, {p(Ee + o + 2)}",
        lambda o: f"v_pk_mul_f32 {p(Ee + o + 4)}, {p(Ee + o + 4)}, {p(Ee + o + 6)}",
        lambda o: f"v_pk_mul_f32 {p(Ee + o + 2)}, {p(Ee + o)}, {p(Ee + o + 4)}",
        lambda o: f"v_pk_mul_f32 {p(D + o)}, {p(D + o)}, {p(Ee + o + 4)}",
        lambda o: f"v_rcp_f32 v{Ee + o + 2}, v{Ee + o + 2}",
        lambda o: f"v_rcp_f32 v{Ee + o + 3}, v{Ee + o + 3}",
        lambda o: f"v_pk_fma_f32 {p(D + o)}, {p(D + o + 4)}, {p(Ee + o)}, {p(D + o)}",
        lambda o: f"v_pk_fma_f32 {p(vAc[o // 8])}, {p(D + o)}, {p(Ee + o + 2)}, {p(vAc[o // 8])}",
    ]
    for fn in seq:
        for o in (0, 8):
            e("    " + fn(o))

def tile_addr(a, plus):
    e(f"""
    v_mul_u32_u24 v{a}, {RS}, v6
    v_lshl_add_u32 v{a}, v5, 6, v{a}
    v_add_u32 v{a}, s71, v{a}
    v_add_u32 v{a + 1}, {16 * RS}, v{a}
    v_add_u32 v{a + 2}, {32 * RS}, v{a}
""")

def node_gemm(W, acc, xa, xb, ta, scale):
    e(f"""
    v_xor_b32 v{xa}, v5, v6
    v_lshlrev_b32 v{xa}, 4, v{xa}
    v_lshl_or_b32 v{xa}, v6, 8, v{xa}
    v_add_u32 v{xa}, {XL}, v{xa}
    v_xor_b32 v{xa + 1}, 64, v{xa}
    v_xor_b32 v{xa + 2}, 0x80, v{xa}
    v_xor_b32 v{xa + 3}, 0xc0, v{xa}
""")
    for T in range(3):
        for s in range(4):
            e(f"    ds_read_b128 {vr(xb(T, s), 4)}, v{xa + s} offset:{4096 * T}")
    tile_addr(ta, 0)
    for T in range(3):
        for s in range(4):
            e(f"    s_waitcnt lgkmcnt({11 - 4 * T - s})")
            c = "0" if s == 0 else vr(acc + 4 * T, 4)
            e(f"    v_mfma_f32_16x16x32_bf16 {vr(acc + 4 * T, 4)}, {vr(W + 4 * s, 4)}, {vr(xb(T, s), 4)}, {c}")
    for T in range(3):
        if T == 2:
            e(f"    s_mov_b32 exec_lo, {M9}\n    s_mov_b32 exec_hi, {M9}\n    s_nop {1 if scale else 3}")
        if scale:
            for h in range(2):
                r = acc + 4 * T + 2 * h
                e(f"    v_pk_mul_f32 {vr(r, 2)}, {vr(r, 2)}, s[72:73]")
        e(f"    ds_write2_b64 v{ta + T}, {vr(acc + 4 * T, 2)}, {vr(acc + 4 * T + 2, 2)} offset0:0 offset1:2")
    e("    s_mov_b64 exec, -1")

def kernel2():
    e(f"""
.text
.globl mpnn_edge_kernel
.p2align 8
.type mpnn_edge_kernel,@function
mpnn_edge_kernel:
    s_load_dwordx2 s[4:5], s[0:1], 64       ; ws
    s_load_dwordx2 s[12:13], s[0:1], 0      ; x
    s_load_dwordx2 s[16:17], s[0:1], 48     ; out
    s_cmp_ge_u32 s2, 256
    s_cbranch_scc1 K2_END
    s_and_b32 s20, s2, 7
    s_lshl_b32 s20, s20, 5
    s_lshr_b32 s3, s2, 3
    s_or_b32 s20, s20, s3                   ; bucket
    v_lshrrev_b32 v3, 2, v0
    v_lshlrev_b32 v4, 10, v3
    s_lshl_b32 s34, s20, 2
    s_add_u32 s34, s34, {DESC}
    s_mov_b32 s6, {WSEND:#x}
    s_mov_b32 s7, 0x20000
    v_lshrrev_b32 v2, 6, v0
    v_and_b32 v1, 63, v0
    v_readfirstlane_b32 s21, v2
""")
    stamp(0, 4, 1)
    e(f"""
    s_waitcnt lgkmcnt(0)
    buffer_load_dword v2, v4, s[4:7], s34 offen
    v_lshlrev_b32 v7, 4, v1                 ; lane*16
    v_lshrrev_b32 v5, 4, v1                 ; g
    v_and_b32 v6, 15, v1                    ; n
    s_lshl_b32 s35, s21, 2
    v_add_u32 v124, s35, v5
    v_and_b32 v125, 15, v124
    v_xor_b32 v125, v125, v6
    v_lshlrev_b32 v125, 4, v125
    v_lshl_or_b32 v124, v124, 16, v125
    s_lshl_b32 s35, s20, 8
    v_add_u32 v124, s35, v124
    s_lshl_b32 s36, s21, 10
    s_add_u32 s36, s36, {XL}
    s_mov_b32 m0, s36
    s_lshl_b32 s74, s21, 12
    s_add_u32 s74, s74, {W2F}
""")
    srd(12, N * 256)
    e(f"""
    s_barrier
    s_cmp_ge_u32 s21, 12
    s_cbranch_scc1 K2_NOX
    buffer_load_dwordx4 v124, s[12:15], 0 offen lds
    s_cmp_ge_u32 s21, 8
    s_cbranch_scc1 K2_NOX
""")
    for s in range(4):
        e(f"    buffer_load_dwordx4 {vr(32 + 4 * s, 4)}, v7, s[4:7], s74 offen offset:{1024 * s}")
    e("K2_NOX:")
    srd(16, N * 256)
    e(f"""
    s_cmp_lt_u32 s20, 16
    s_cselect_b32 s22, 40, 39
    s_and_b32 s23, s21, 1                   ; c
    s_lshl_b32 s38, s23, 10
    s_add_u32 s75, s38, {W3F}
    s_lshl_b32 s39, s23, 7
    s_add_u32 s8, s4, s39
    s_addc_u32 s9, s5, 0
    s_or_b32 s9, s9, 0x80000000
    s_mov_b32 s10, 0x10000
    s_mov_b32 s11, 0x00c00000
    s_mov_b32 s26, {KC:#x}
    s_mov_b32 s27, {KC:#x}
    s_mov_b32 s32, 1
    s_mov_b32 s33, 1
    s_mov_b32 s72, {NL2E:#x}
    s_mov_b32 s73, {NL2E:#x}
    s_and_b32 s52, s21, 3
    s_lshl_b32 s52, s52, 13
    s_add_u32 s52, s52, {WUB}
    s_add_u32 s53, s52, 4096
    s_bfe_u32 s34, s21, 0x20001
    s_lshl_b32 s34, s34, 8
    s_lshl_b32 s35, s23, 5
    s_add_u32 s34, s34, s35
    s_and_b32 s35, s21, 8
    s_add_u32 s34, s34, s35
    s_add_u32 s71, s34, {QU}
    s_lshr_b32 s76, s21, 1                  ; group
    v_bfe_u32 v125, v1, 1, 1
    v_mul_u32_u24 v{vI + 1}, 0x3f80, v125
    v_sub_u32 v{vI}, 0x3f80, v{vI + 1}
    v_and_b32 v125, 1, v1
    v_lshlrev_b32 v125, 4, v125
    v_lshlrev_b32 v{vI}, v125, v{vI}
    v_lshlrev_b32 v{vI + 1}, v125, v{vI + 1}
    v_mul_u32_u24 v3, {RSTR}, v3
    v_and_b32 v4, 3, v0
    s_mov_b32 s24, 0
    s_mov_b32 s25, 24
    s_mov_b32 s54, 0
    s_mov_b32 s55, 0
K2_ROUND:
    s_cmp_ge_u32 s21, 12
    s_cselect_b32 s56, 1, 0
    v_lshlrev_b32 v124, 4, v0
    v_mov_b64 v[12:13], 0
    v_mov_b64 v[14:15], 0
    ds_write_b128 v124, v[12:15] offset:{EA}
    s_cmp_ge_u32 s21, 10
    s_cbranch_scc1 K2_NOZ
    s_cmp_ge_u32 s21, 8
    s_cselect_b32 s34, 0, {PADV}
    v_mov_b32 v8, s34
    v_mov_b32 v9, s34
    v_mov_b32 v10, s34
    v_mov_b32 v11, s34
    ds_write_b128 v124, v[8:11] offset:{SO}
K2_NOZ:
    v_sub_u32 v126, s22, v1
    v_med3_i32 v126, v126, 0, 1
    v_lshlrev_b32 v126, 4, v126
    v_lshrrev_b32 v{vaS[0]}, 5, v1
    v_and_b32 v{vaS[1]}, 31, v1
    v_xor_b32 v125, v{vaS[0]}, v1
    v_and_b32 v125, 1, v125
    v_mul_u32_u24 v{vaE}, {ZR}, v125
    v_lshlrev_b32 v125, 1, v125
    v_sub_u32 v125, 2, v125
    v_lshlrev_b32 v{vaS[0]}, 1, v{vaS[0]}   ; 2h
    v_bfe_u32 v124, v1, 3, 1
    v_bfe_u32 v{vInc}, v1, 1, 1
    v_lshl_or_b32 v124, v124, 1, v{vInc}
    v_lshlrev_b32 v124, 2, v124
    v_mad_u32_u24 v{vaE}, v124, v125, v{vaE}
    v_bfe_u32 v124, v1, 2, 1
    v_bfe_u32 v{vInc}, v1, 4, 1
    v_lshl_or_b32 v124, v124, 1, v{vInc}
    v_mul_u32_u24 v124, v124, v125
    v_lshlrev_b32 v{vInc}, {4 + UNR.bit_length() - 1}, v125
    s_lshl_b32 s36, s23, 9
    s_add_u32 s36, s36, {QU}
    v_lshl_add_u32 v{vaN[0]}, v{vaS[1]}, 4, s36
    s_cmp_ge_u32 s21, 8
    s_cbranch_scc1 K2_WD1
    s_waitcnt vmcnt(5)
    s_branch K2_WD2
K2_WD1:
    s_cmp_ge_u32 s21, 12
    s_cbranch_scc1 K2_WD0
    s_waitcnt vmcnt(1)
    s_branch K2_WD2
K2_WD0:
    s_waitcnt vmcnt(0)
K2_WD2:
""")
    stamp(1, 4, 1)
    e(f"""
    v_lshrrev_b32 v60, 16, v2               ; count
    v_and_b32 v61, 0xffff, v2               ; start
    v_subrev_u32 v60, s24, v60
    v_add3_u32 v61, v61, s24, v4
    v_mad_u32_u24 v61, v61, 12, v3
    v_min_i32 v62, s25, v60
    v_sub_u32 v62, v62, v4
    s_mov_b32 s34, {REC}
""")
    e(f"    v_cmp_lt_i32 {sr(sM[0], 2)}, 0, v62\n    v_cmp_lt_i32 {sr(sM[1], 2)}, 4, v62\n    s_waitcnt lgkmcnt(0)")
    for k in range(6):
        if k >= 2:
            e(f"    s_mov_b64 exec, -1\n    v_cmp_lt_i32 {sr(sM[k], 2)}, {4 * k}, v62")
        e(f"    s_mov_b64 exec, {sr(sM[k], 2)}")
        if k >= 2:
            e(f"    s_cbranch_execz K2_RL{k}")
        e(f"    buffer_load_dwordx3 {vr(8 + 4 * k, 3)}, v61, s[4:7], s34 offen offset:{48 * k}")
    e("    s_waitcnt vmcnt(6)\n    s_branch K2_RLD")
    for k in (5, 4, 2, 3):
        e(f"K2_RL{k}:\n    s_waitcnt vmcnt({k})")
        if k != 3: e("    s_branch K2_RLD")
    e(f"""
K2_RLD:
    s_mov_b64 exec, -1
    v_cmp_lt_i32 s[58:59], s25, v60
    s_barrier
""")
    stamp(2, 4, 1)
    e(f"""
    s_cmp_lg_u32 s54, 0
    s_cbranch_scc1 K2_NOGEMM
    s_mov_b32 s54, 1
    s_cmp_ge_u32 s21, 8
    s_cbranch_scc1 K2_ZAG
""")
    node_gemm(32, 48, 60, lambda T, s: (92 + 16 * T + 4 * s) if T < 2 else (72 + 4 * s if s < 3 else 64), 68, True)
    e(f"""
    s_branch K2_NOGEMM
K2_ZAG:
    v_mov_b64 v[32:33], 0
    v_mov_b64 v[34:35], 0
    v_lshlrev_b32 v36, 4, v0
    v_add_u32 v36, {AG - 8192}, v36
""")
    for i in range(6):
        e(f"    ds_write_b128 v36, v[32:35] offset:{8192 * i}")
    e(f"""
K2_NOGEMM:
    v_mov_b32 v63, 4
    s_mov_b64 exec, s[58:59]
    s_cbranch_execz K2_NOMORE
    v_mov_b32 v62, {MORE}
    ds_write_b32 v62, v63
K2_NOMORE:
    s_waitcnt vmcnt(0)
""")
    stamp(3, 4, 1)
    for k in range(6):
        e(f"    s_mov_b64 exec, {sr(sM[k], 2)}")
        if k >= 2: e("    s_cbranch_execz K2_HISTD")
        e(f"""
    v_lshrrev_b32 v{32 + k}, 24, v{10 + 4 * k}
    ds_add_rtn_u32 v{11 + 4 * k}, v{32 + k}, v63 offset:{CNT}
    v_and_b32 v{10 + 4 * k}, 0x3ffffff, v{10 + 4 * k}
""")
    e(f"""
K2_HISTD:
    s_mov_b64 exec, -1
    v_lshlrev_b32 v62, 2, v1
    s_cmp_lg_u32 s55, 0
    s_cbranch_scc1 K2_NOW3
    buffer_load_dwordx4 {vr(vBw, 4)}, v7, s[4:7], s75 offen
    s_cmp_lt_u32 s21, 8
    s_cbranch_scc1 K2_NOW3
""")
    for s in range(4):
        e(f"    buffer_load_dwordx4 {vr(92 + 4 * s, 4)}, v7, s[4:7], s74 offen offset:{1024 * s}")
    e(f"""
K2_NOW3:
    s_waitcnt lgkmcnt(0)
    s_barrier
""")
    stamp(4, 4, 1)
    e(f"""
    ds_read_b32 v40, v62 offset:{CNT}
    s_waitcnt lgkmcnt(0)
    v_add_u32 v41, 12, v40
    v_and_b32 v41, -16, v41
    v_max_u32 v41, v126, v41                ; 16*quads
    s_nop 1
    v_add_u32_dpp v42, v41, v41 row_shr:1 row_mask:0xf bank_mask:0xf bound_ctrl:1
""")
    for c in ("row_shr:2 row_mask:0xf", "row_shr:4 row_mask:0xf", "row_shr:8 row_mask:0xf", "row_bcast:15 row_mask:0xa", "row_bcast:31 row_mask:0xc"):
        e(f"    s_nop 1\n    v_add_u32_dpp v42, v42, v42 {c} bank_mask:0xf")
    e(f"""
    v_sub_u32 v43, v42, v41
    v_readlane_b32 s34, v42, 63
""")
    for k in range(6):
        if k >= 2:
            e(f"    s_cmp_eq_u64 {sr(sM[k], 2)}, 0\n    s_cbranch_scc1 K2_BPD")
        e(f"    ds_bpermute_b32 v{32 + k}, v{32 + k}, v43")
    e(f"""
K2_BPD:
    s_cmp_gt_u32 s34, {S16MAX}
    s_cbranch_scc1 K2_REDO
    s_add_u32 s34, s34, 48
    s_lshr_b32 s35, s34, 9
    s_bfe_u32 s34, s34, 0x30006
    s_mul_i32 s37, s76, s35
    s_min_u32 s38, s76, s34
    s_add_u32 s37, s37, s38
    s_lshl_b32 s60, s37, 6                  ; stream (0,X)
    s_cmp_lt_u32 s76, s34
    s_addc_u32 s35, s35, 0
    s_lshl_b32 s77, s35, 4
    v_mul_u32_u24 v44, s77, v{vaS[0]}
    v_add_u32 v44, s60, v44
    v_add_u32 v45, s77, v44
    s_cmp_lg_u32 s21, 15
    s_cbranch_scc1 K2_NOFL
    v_lshrrev_b32 v46, 4, v42
    v_cmp_gt_u32 vcc, s22, v1
    s_mov_b64 exec, vcc
    ds_write_b8 v46, v63 offset:{FL - 1}
K2_NOFL:
    s_waitcnt lgkmcnt(0)
""")
    for k in range(6):
        e(f"    s_mov_b64 exec, {sr(sM[k], 2)}")
        if k >= 2: e("    s_cbranch_execz K2_SCATD")
        e(f"""
    v_add_u32 v{32 + k}, v{32 + k}, v{11 + 4 * k}
    v_add_u32 v{11 + 4 * k}, v{32 + k}, v{32 + k}
    ds_write_b32 v{32 + k}, v{10 + 4 * k} offset:{SO}
    ds_write_b64 v{11 + 4 * k}, {vr(8 + 4 * k, 2)} offset:{EA}
""")
    e(f"""
K2_SCATD:
    s_mov_b64 exec, -1
    s_waitcnt lgkmcnt(0)
    s_barrier
""")
    stamp(5, 4, 1)
    e(f"""
    ds_read_b128 {vr(vSO, 4)}, v44 offset:{SO}
    ds_read_b128 {vr(vSO + 4, 4)}, v45 offset:{SO}
    ds_read_b128 {vr(vE, 4)}, v44 offset:{SO + 16}
    ds_read_b128 {vr(vE + 4, 4)}, v45 offset:{SO + 16}
    s_add_u32 s61, s60, s77
    s_add_u32 s62, s61, s77
    s_add_u32 s63, s62, s77
    v_lshrrev_b32 v46, 4, v44
    v_add_u32 v46, v46, v{vaS[1]}
    v_add_u32 v47, s35, v46
    s_waitcnt lgkmcnt(2)
""")
    gathers(vP[0], vSO)
    e("    s_waitcnt lgkmcnt(0)")
    gathers(vP[1], vE)
    e(f"""
    ds_read_u8 v46, v46 offset:{FL}
    ds_read_u8 v47, v47 offset:{FL}
    ds_read_b128 {vr(vSO, 4)}, v44 offset:{SO + 32}
    ds_read_b128 {vr(vSO + 4, 4)}, v45 offset:{SO + 32}
""")
    for k in range(4):
        e(f"    v_cmp_ge_u32 vcc, s{60 + k}, v42\n    s_bcnt1_i32_b64 s{64 + k}, vcc\n    s_min_u32 s{64 + k}, s{64 + k}, s22")
    e(f"""
    s_sub_u32 s66, s66, s64
    s_sub_u32 s67, s67, s65
    s_mulk_i32 s64, {RS}
    s_mulk_i32 s65, {RS}
    s_mulk_i32 s66, {RS // 2}
    s_mulk_i32 s67, {RS // 2}
    v_mad_u32_u24 v{vaN[1]}, v{vaS[0]}, s67, v{vaN[0]}
    v_mad_u32_u24 v{vaN[0]}, v{vaS[0]}, s66, v{vaN[0]}
    v_add_u32 v{vaN[1]}, s65, v{vaN[1]}
    v_add_u32 v{vaN[0]}, s64, v{vaN[0]}
    v_mad_u32_u24 v{vaE}, v124, s77, v{vaE}
    v_mad_u32_u24 v{vaE}, v125, s60, v{vaE}
    v_mov_b32 v{vaS[0]}, v44
    v_mov_b32 v{vaS[1]}, v45
    s_waitcnt lgkmcnt(2)
    v_cmp_ne_u32 {sr(sFM[0], 2)}, 0, v46
    v_cmp_ne_u32 {sr(sFM[1], 2)}, 0, v47
    s_cmp_ge_u32 s21, 8
    s_cbranch_scc1 K2_UG
    v_sub_u32 v41, v41, v40
    v_cvt_f32_u32 v41, v41
    v_lshlrev_b32 v44, 2, v6
    v_mul_f32 v41, 0xbe800000, v41
    v_add_u32 v45, 64, v44
    v_add_u32 v46, 0x80, v44
""")
    tile_addr(36, 0)
    e("""
    ds_bpermute_b32 v32, v44, v41
    ds_bpermute_b32 v33, v45, v41
    ds_bpermute_b32 v34, v46, v41
""")
    for T in range(3):
        e(f"    ds_read2_b64 {vr(48 + 4 * T, 4)}, v{36 + T} offset0:0 offset1:2")
    e("    s_waitcnt lgkmcnt(0)")
    for r in range(12):
        e(f"    v_exp_f32 v{92 + r}, v{48 + r}")
    for r in range(0, 12, 2):
        e(f"    v_pk_fma_f32 {vr(92 + r, 2)}, {vr(92 + r, 2)}, s[26:27], s[26:27] clamp")
    for r in range(12):
        e(f"    v_mul_f32 v{48 + r}, v{32 + r // 4}, v{48 + r}")
    for r in range(12):
        e(f"    v_rcp_f32 v{92 + r}, v{92 + r}")
    for r in range(0, 12, 2):
        e(f"    v_pk_mul_f32 {vr(48 + r, 2)}, {vr(92 + r, 2)}, {vr(48 + r, 2)}")
    for T in range(3):
        if T == 2:
            e(f"    s_mov_b32 exec_lo, {M9}\n    s_mov_b32 exec_hi, {M9}")
        for r in range(4):
            e(f"    v_cvt_f64_f32 {vr(92 + 8 * T + 2 * r, 2)}, v{48 + 4 * T + r}")
        for r in range(4):
            e(f"    ds_add_f64 v{36 + T}, {vr(92 + 8 * T + 2 * r, 2)} offset:{AG - QU + 8 * r}")
    e(f"""
    s_mov_b64 exec, -1
    s_branch K2_UGD
K2_UG:
    s_cmp_lg_u32 s55, 0
    s_cbranch_scc1 K2_UGD
    s_waitcnt vmcnt(16)
""")
    node_gemm(92, 32, 44, lambda T, s: (48 + 4 * s) if T == 0 else (108 + 4 * s) if T == 1 else (72 + 4 * s if s < 3 else 64), 124, False)
    e(f"""
K2_UGD:
    s_mov_b32 s55, 1
    ds_read2_b64 {vr(vQ[0], 4)}, v{vaN[0]} offset0:0 offset1:0
    ds_read2_b64 {vr(vQ[1], 4)}, v{vaN[1]} offset0:0 offset1:0
    ds_read2_b64 {vr(vAe, 4)}, v{vaE} offset0:0 offset1:0
    v_mov_b64 {vr(vAc[0], 2)}, 0
    v_mov_b64 {vr(vAc[1], 2)}, 0
    s_mov_b32 s34, s35
""")
    if OPT["prio"]:
        e("    s_setprio 3\n    s_lshr_b32 s68, s35, 2\n    s_mul_i32 s69, s68, 3\n    s_lshl_b32 s70, s68, 1")
    e("K2_LOOP:")
    for u in range(UNR):
        b = u % 2
        e("    s_waitcnt vmcnt(8) lgkmcnt(0)")
        if u == 0 and OPT["stamps"]:
            e("    s_cmp_lg_u32 s34, s35\n    s_cbranch_scc1 K2_ST6"); stamp(6, 4, 1); e("K2_ST6:")
        for q in range(0 if OPT["nomfma"] else 4):
            e(f"    v_mfma_f32_4x4x4_16b_bf16 {vr(vD + 4 * q, 4)}, {vr(vI, 2)}, {vr(vP[b] + 2 * q, 2)}, {vr(vQ[q // 2], 4)}")
        if OPT["nogather"]: e("    s_nop 7")
        else: gathers(vP[b], vSO)
        if not OPT["nomfma"]: e(f"    v_mfma_f32_32x32x16_bf16 {vr(vD, 16)}, {vr(vAe, 4)}, {vr(vBw, 4)}, {vr(vD, 16)}")
        if u == UNR - 1:
            e(f"    v_add_u32 v{vaE}, v{vInc}, v{vaE}")
        oe = ((u + 1) % UNR) * 4
        if OPT["nolds"]: e("    s_nop 2")
        else: e(f"""
    ds_read_b128 {vr(vSO, 4)}, v{vaS[0]} offset:{SO + 16 * (u + 3)}
    ds_read_b128 {vr(vSO + 4, 4)}, v{vaS[1]} offset:{SO + 16 * (u + 3)}
    ds_read2_b64 {vr(vAe, 4)}, v{vaE} offset0:{oe} offset1:{oe}
""")
        nop = 12 - 3
        if u == UNR - 1:
            e(f"    v_add_u32 v{vaS[0]}, {16 * UNR}, v{vaS[0]}\n    v_add_u32 v{vaS[1]}, {16 * UNR}, v{vaS[1]}")
            nop -= 3
        if OPT["prio"]:
            e(f"""
    s_cmp_gt_u32 s34, s69
    s_cbranch_scc1 K2_PR{u}
    s_setprio 2
    s_cmp_gt_u32 s34, s70
    s_cbranch_scc1 K2_PR{u}
    s_setprio 1
    s_cmp_gt_u32 s34, s68
    s_cbranch_scc1 K2_PR{u}
    s_setprio 0
K2_PR{u}:
""")
            nop -= 2
        e(f"    s_nop {nop - 1}")
        if not OPT['nocore']: core()
        for y in range(0 if OPT['noflush'] else 2):
            e(f"""
    s_and_b64 s[36:37], {sr(sFM[y], 2)}, s[32:33]
    s_cbranch_scc1 K2_FL{u}{y}
K2_FB{u}{y}:
    s_lshr_b64 {sr(sFM[y], 2)}, {sr(sFM[y], 2)}, 1
""")
        if u == 1:
            e(f"""
    s_cmp_eq_u32 s56, 0
    s_cbranch_scc1 K2_WBL
K2_WBB:
""")
        e("    s_sub_u32 s34, s34, 1\n    s_cmp_eq_u32 s34, 0")
        if u < UNR - 1:
            e("    s_cbranch_scc1 K2_LDONE")
        else:
            e("    s_cbranch_scc0 K2_LOOP")
    e("K2_LDONE:")
    for y in range(2):
        flush_adds(y)
    e(f"""
    v_mov_b32 v124, {MORE}
    ds_read_b32 v{vInc}, v124
""")
    stamp(7, 4, 1)
    e(f"""
    s_cmp_lg_u32 s56, 0
    s_cbranch_scc1 K2_WBOK
""")
    wb_loads()
    e(f"""
K2_WBOK:
    v_lshrrev_b32 v{vaS[0]}, 4, v0
    v_mul_u32_u24 v{vaS[1]}, {RB}, v{vaS[0]}
    v_mul_u32_u24 v{vaS[0]}, {RS}, v{vaS[0]}
    v_lshl_add_u32 v{vaS[1]}, v6, 4, v{vaS[1]}
    v_lshl_add_u32 v{vaS[0]}, v6, 4, v{vaS[0]}
    v_add_u32 v{vaS[1]}, {AGB}, v{vaS[1]}
    v_add_u32 v{vaS[0]}, {AG}, v{vaS[0]}
    s_lshr_b32 s34, s21, 2
    s_and_b32 s35, s21, 3
    s_lshl_b32 s36, s34, 4
    v_add_u32 v124, s36, v6
    v_mul_u32_u24 v125, {RB}, v124
    v_lshl_add_u32 v125, v5, 4, v125
    v_add_u32 v125, {AGB}, v125
    v_mul_u32_u24 v126, {RS}, v124
    v_lshl_add_u32 v126, v5, 6, v126
    s_lshl_b32 s36, s35, 8
    s_add_u32 s36, s36, {QU}
    v_add_u32 v126, s36, v126
    v_lshlrev_b32 v124, 16, v124
    v_lshl_or_b32 v124, v5, 4, v124
    s_lshl_b32 s36, s20, 8
    s_lshl_b32 s37, s35, 6
    s_add_u32 s60, s36, s37
    v_add_u32 v124, s60, v124
    s_waitcnt vmcnt(0) lgkmcnt(0)
    v_readfirstlane_b32 s57, v{vInc}
    s_barrier
""")
    stamp(8, 4, 1)
    e(f"""
    s_cmp_lg_u32 s57, 0
    s_cbranch_scc1 K2_NEXT
    s_cmp_ge_u32 s21, 12
    s_cbranch_scc1 K2_FIN
    s_cmp_ge_u32 s21, 10
    s_cbranch_scc1 K2_NOCV
""")
    for k in range(4):
        e(f"    ds_read_b128 {vr(16 + 4 * k, 4)}, v{vaS[0]} offset:{256 * k}")
    e("K2_NOCV:\n    ds_read2_b64 v[64:67], v126 offset0:1 offset1:3\n    ds_read2_b64 v[68:71], v126 offset0:5 offset1:7")
    e("    s_cbranch_scc1 K2_NOCV2")
    for k in range(4):
        e(f"    s_waitcnt lgkmcnt({5 - k})")
        e(f"    v_cvt_f32_f64 v{32 + 2 * k}, {vr(16 + 4 * k, 2)}\n    v_cvt_f32_f64 v{33 + 2 * k}, {vr(18 + 4 * k, 2)}")
        e(f"    v_cvt_pk_bf16_f32 v{40 + k}, v{32 + 2 * k}, v{33 + 2 * k}")
    e(f"""
    ds_write_b128 v{vaS[1]}, v[40:43]
K2_NOCV2:
    s_waitcnt lgkmcnt(0)
    s_barrier
""")
    for s in range(4):
        e(f"    ds_read_b128 {vr(48 + 4 * s, 4)}, v125 offset:{64 * s}")
    for s in range(4):
        e(f"    s_waitcnt lgkmcnt({3 - s})")
        for t in range(2):
            e(f"    v_mfma_f32_16x16x32_bf16 {vr(64 + 4 * t, 4)}, {vr(vWb + 16 * t + 4 * s, 4)}, {vr(48 + 4 * s, 4)}, {vr(64 + 4 * t, 4)}")
    e("    s_nop 6")
    for m in range(4):
        e(f"    v_pk_mul_f32 {vr(72 + 2 * m, 2)}, {vr(64 + 2 * m, 2)}, s[72:73]")
    for m in range(8):
        e(f"    v_exp_f32 v{72 + m}, v{72 + m}")
    for m in range(4):
        e(f"    v_pk_add_f32 {vr(72 + 2 * m, 2)}, {vr(72 + 2 * m, 2)}, 1.0 op_sel_hi:[1,0]")
    for m in range(8):
        e(f"    v_rcp_f32 v{72 + m}, v{72 + m}")
    for m in range(4):
        e(f"    v_pk_mul_f32 {vr(72 + 2 * m, 2)}, {vr(72 + 2 * m, 2)}, {vr(64 + 2 * m, 2)}")
    for m in range(4):
        e(f"    v_cvt_pk_bf16_f32 v{80 + m}, v{72 + 2 * m}, v{73 + 2 * m}")
    e("    buffer_store_dwordx4 v[80:83], v124, s[16:19], 0 offen")
    e("K2_FIN:")
    if OPT["stamps"]:
        stamp(9, 4, 1); e("    s_waitcnt vmcnt(0)"); stamp(10, 4, 1); stamp_out(4, 1)
    e("K2_END:\n    s_endpgm")
    for u in range(UNR):
        for y in range(0 if OPT['noflush'] else 2):
            flush_block(y, f"K2_FL{u}{y}", f"K2_FB{u}{y}")
    e("K2_WBL:\n    s_mov_b32 s56, 1")
    wb_loads()
    e("""
    s_branch K2_WBB
K2_NEXT:
    s_add_u32 s24, s24, s25
    s_branch K2_ROUND
K2_REDO:
    s_mov_b32 s25, 4
    s_waitcnt vmcnt(0) lgkmcnt(0)
    s_barrier
    s_branch K2_ROUND
""")

def desc(name, vg, sg):
    e(f"""
.p2align 6
.amdhsa_kernel {name}
  .amdhsa_next_free_vgpr {vg}
  .amdhsa_next_free_sgpr {sg}
  .amdhsa_accum_offset {vg}
  .amdhsa_group_segment_fixed_size 0
  .amdhsa_kernarg_size 72
  .amdhsa_user_sgpr_count 2
  .amdhsa_user_sgpr_kernarg_segment_ptr 1
  .amdhsa_system_sgpr_workgroup_id_x 1
.end_amdhsa_kernel
""")

e(f"""
; @launch kernel=mpnn_bin_kernel grid=(256,1,1) block=(1024,1,1) lds={K1_LDS}
; @launch kernel=mpnn_edge_kernel grid=(256,1,1) block=(1024,1,1) lds={K2_LDS}
.amdgcn_target "amdgcn-amd-amdhsa--gfx950"
""")
kernel1()
kernel2()
e('.section .rodata,"a"')
desc("mpnn_bin_kernel", 128, 96)
desc("mpnn_edge_kernel", 128, 96)
open(sys.argv[1], "w").write("\n".join(L) + "\n")
```

```python
import sys, struct, math

def f2u(x): return struct.unpack("<I", struct.pack("<f", x))[0]

OPT = dict(safe=0, stamps=0, prio=1, nogather=0, nocore=0, nolds=0, nomfma=0, noflush=0)
for a in sys.argv[2:]:
    k, v = a.split("="); OPT[k] = int(v)

N, E = 10000, 320000
NB = 256
EPW = 1250
PT    = 0
DESC  = 0x280000
REC   = 0x2C0000
RSTR  = 15488
W2F   = 0x690000
WUT   = W2F + 0x8000
WUB   = WUT + 0x8000
W3F   = WUB + 0x8000
STAMP = W3F + 0x800
WSEND = STAMP + (0x80000 if OPT["stamps"] else 0)
NL2E = f2u(-1.4426950408889634)
KC   = f2u(1.0 / (2.0 ** 31 * math.log(2.0)))
NSC  = f2u(-2.0 ** -31)

L = []
def e(s=""):
    for ln in s.strip("\n").split("\n"):
        L.append(ln)
def vr(a, n): return f"v[{a}:{a + n - 1}]" if n > 1 else f"v{a}"
def sr(a, n): return f"s[{a}:{a + n - 1}]" if n > 1 else f"s{a}"

def srd(s, nrec, w3=0x20000):
    e(f"    s_mov_b32 s{s + 2}, {nrec:#x}\n    s_mov_b32 s{s + 3}, {w3:#x}")

def scan64(v):
    for c in ("row_shr:1 row_mask:0xf", "row_shr:2 row_mask:0xf", "row_shr:4 row_mask:0xf", "row_shr:8 row_mask:0xf",
              "row_bcast:15 row_mask:0xa", "row_bcast:31 row_mask:0xc"):
        e(f"    s_nop 1\n    v_add_u32_dpp v{v}, v{v}, v{v} {c} bank_mask:0xf")

NST = 16
def stamp(i, srd_s, kern):
    if not OPT["stamps"]: return
    e(f"""
    s_memtime s[90:91]
    s_waitcnt lgkmcnt(0)
    v_writelane_b32 v127, s90, {i}
""")
    if i == 0:
        e("    s_memrealtime s[90:91]\n    s_waitcnt lgkmcnt(0)\n    v_writelane_b32 v127, s90, 14")
def stamp_out(srd_s, kern):
    if not OPT["stamps"]: return
    e(f"""
    s_memrealtime s[90:91]
    s_waitcnt lgkmcnt(0)
    v_writelane_b32 v127, s90, 15
    s_mov_b64 exec, 0xffff
    s_lshl_b32 s90, s2, 4
    s_add_u32 s90, s90, s21
    s_lshl_b32 s90, s90, 6
    s_add_u32 s90, s90, {STAMP + kern * 0x40000}
    v_mbcnt_lo_u32_b32 v125, -1, 0
    v_lshlrev_b32 v125, 2, v125
    buffer_store_dword v127, v125, s[{srd_s}:{srd_s + 3}], s90 offen
    s_mov_b64 exec, -1
""")

K1_CNT, K1_ST, K1_STG, K1_WL = 0, 1024, 2048, 2048 + 15360
K1_LDS = 84 * 1024
def kernel1():
    e("""
.text
.globl mpnn_bin_kernel
.p2align 8
.type mpnn_bin_kernel,@function
mpnn_bin_kernel:
    s_cmp_ge_u32 s2, 256
    s_cbranch_scc1 K1_END
    s_load_dwordx4 s[4:7], s[0:1], 0        ; x, e_attr
    s_load_dwordx4 s[8:11], s[0:1], 16
    s_load_dwordx4 s[12:15], s[0:1], 32
    s_load_dwordx2 s[16:17], s[0:1], 64     ; ws
    v_lshrrev_b32 v2, 6, v0
    v_and_b32 v1, 63, v0
    v_readfirstlane_b32 s21, v2
""")
    stamp(0, 16, 0)
    e("""
    s_cmp_ge_u32 s21, 10
    s_cbranch_scc1 K1_GEMM
    s_and_b32 s20, s2, 7
    s_lshl_b32 s20, s20, 5
    s_lshr_b32 s3, s2, 3
    s_or_b32 s20, s20, s3
    s_mul_i32 s22, s20, 5000
    s_lshl_b32 s23, s22, 1
    v_lshlrev_b32 v3, 3, v0
    v_lshlrev_b32 v4, 4, v0
    v_cmp_gt_u32 vcc, 625, v0
    v_mov_b32 v20, 0
    v_mov_b32 v21, 0
    v_mov_b32 v22, 0
    v_mov_b32 v23, 0
    s_mov_b64 s[44:45], vcc
    s_waitcnt lgkmcnt(0)
    s_mov_b32 s24, s10
    s_mov_b32 s25, s11
""")
    srd(24, E * 4)
    e("    s_mov_b32 s28, s8\n    s_mov_b32 s29, s9"); srd(28, E * 4)
    e("    s_mov_b32 s32, s6\n    s_mov_b32 s33, s7"); srd(32, E * 8)
    srd(16, WSEND)
    e(f"""
    s_mov_b64 exec, s[44:45]
    buffer_load_dwordx2 v[6:7], v3, s[24:27], s22 offen      ; dst
    buffer_load_dwordx2 v[8:9], v3, s[28:31], s22 offen      ; src
    buffer_load_dwordx4 v[10:13], v4, s[32:35], s23 offen
    s_mov_b64 exec, -1
    s_cmp_lg_u32 s21, 0
    s_cbranch_scc1 K1_NOZ
    ds_write_b128 v4, v[20:23] offset:{K1_CNT}
K1_NOZ:
    v_mov_b32 v24, 1
    s_waitcnt lgkmcnt(0)
    s_barrier
    s_mov_b64 exec, s[44:45]
    s_waitcnt vmcnt(2)
""")
    stamp(1, 16, 0)
    e(f"""
    v_and_b32 v14, 0xff, v6
    v_and_b32 v15, 0xff, v7
    v_lshlrev_b32 v14, 2, v14
    v_lshlrev_b32 v15, 2, v15
    ds_add_rtn_u32 v16, v14, v24 offset:{K1_CNT}
    ds_add_rtn_u32 v17, v15, v24 offset:{K1_CNT}
    v_lshrrev_b32 v6, 8, v6
    v_lshrrev_b32 v7, 8, v7
    v_lshlrev_b32 v6, 26, v6
    v_lshlrev_b32 v7, 26, v7
    s_mov_b64 exec, -1
    v_lshlrev_b32 v5, 4, v1
    s_waitcnt lgkmcnt(0)
    s_barrier
""")
    stamp(2, 16, 0)
    e(f"""
    ds_read_b128 v[20:23], v5 offset:{K1_CNT}
    s_waitcnt vmcnt(1)
    v_lshl_or_b32 v8, v8, 3, v6
    v_lshl_or_b32 v9, v9, 3, v7
    s_waitcnt lgkmcnt(0)
    v_add_u32 v25, v20, v21
    v_add_u32 v26, v25, v22
    v_add_u32 v27, v26, v23
    v_mov_b32 v28, v27
""")
    scan64(28)
    e(f"""
    v_sub_u32 v28, v28, v27
    v_add_u32 v29, v28, v20
    v_add_u32 v30, v28, v25
    v_add_u32 v31, v28, v26
    ds_write_b128 v5, v[28:31] offset:{K1_ST}
    ds_read_b32 v18, v14 offset:{K1_ST}
    ds_read_b32 v19, v15 offset:{K1_ST}
    s_cmp_lg_u32 s21, 9
    s_cbranch_scc1 K1_NOD
    v_lshl_or_b32 v32, v20, 16, v28
    v_lshl_or_b32 v33, v21, 16, v29
    v_lshl_or_b32 v34, v22, 16, v30
    v_lshl_or_b32 v35, v23, 16, v31
    s_lshl_b32 s36, s20, 4
    s_add_u32 s36, s36, {DESC}
    v_lshlrev_b32 v36, 12, v1
    buffer_store_dwordx4 v[32:35], v36, s[16:19], s36 offen
K1_NOD:
    s_mov_b64 exec, s[44:45]
    s_waitcnt lgkmcnt(0)
    v_add_u32 v18, v18, v16
    v_add_u32 v19, v19, v17
    v_mul_u32_u24 v18, 12, v18
    v_mul_u32_u24 v19, 12, v19
    v_add_u32 v18, {K1_STG}, v18
    v_add_u32 v19, {K1_STG}, v19
    s_cmp_lg_u32 s21, 9
    s_cbranch_scc1 K1_W0
    s_waitcnt vmcnt(1)
    s_branch K1_W1
K1_W0:
    s_waitcnt vmcnt(0)
K1_W1:
    ds_write2_b32 v18, v10, v11 offset0:0 offset1:1
    ds_write_b32 v18, v8 offset:8
    ds_write2_b32 v19, v12, v13 offset0:0 offset1:1
    ds_write_b32 v19, v9 offset:8
    s_mov_b64 exec, -1
    s_mul_i32 s36, s20, {RSTR}
    s_add_u32 s36, s36, {REC}
    s_add_u32 s37, s36, 10240
    s_waitcnt lgkmcnt(0)
    s_barrier
""")
    stamp(3, 16, 0)
    e(f"""
    ds_read_b128 v[20:23], v4 offset:{K1_STG}
    s_cmp_ge_u32 s21, 5
    s_cbranch_scc1 K1_C1
    ds_read_b128 v[24:27], v4 offset:{K1_STG + 10240}
    s_waitcnt lgkmcnt(0)
    buffer_store_dwordx4 v[24:27], v4, s[16:19], s37 offen
K1_C1:
    s_waitcnt lgkmcnt(0)
    buffer_store_dwordx4 v[20:23], v4, s[16:19], s36 offen
""")
    if OPT["stamps"]:
        stamp(4, 16, 0); e("    s_waitcnt vmcnt(0)"); stamp(5, 16, 0); stamp_out(16, 0)
    e(f"""
    s_endpgm
K1_GEMM:
    s_sub_u32 s22, s21, 10                  ; gi
    v_lshrrev_b32 v2, 4, v1                 ; g
    v_and_b32 v3, 15, v1                    ; n / i
    s_cmp_ge_u32 s2, 209
    s_cbranch_scc1 K1_JOBS
    s_lshr_b32 s23, s22, 1                  ; T
    s_and_b32 s24, s22, 1                   ; fh
    ; W1 -> LDS source offset: row (l/16), chunk (l%16) ^ ((l/16)<<1)
    v_lshlrev_b32 v4, 1, v2
    v_xor_b32 v4, v4, v3
    v_lshlrev_b32 v4, 4, v4
    v_lshl_or_b32 v4, v2, 8, v4
    s_mul_i32 s25, s2, 48
    s_lshl_b32 s26, s23, 4
    s_add_u32 s25, s25, s26
    v_add_u32 v5, s25, v3
    v_lshlrev_b32 v5, 8, v5
    v_lshl_or_b32 v5, v2, 4, v5
    s_waitcnt lgkmcnt(0)
""")
    srd(4, N * 256)
    srd(12, 128 * 256)
    srd(16, N * 256)
    for m in range(6):
        if m == 5:
            e("    s_cmp_ge_u32 s22, 2\n    s_cbranch_scc1 K1_DMAD")
        e(f"""
    s_add_u32 s27, s22, {6 * m}
    s_lshl_b32 s28, s27, 6
    s_and_b32 s28, s28, 0x80
    s_lshl_b32 s27, s27, 10
    v_xor_b32 v6, s28, v4
    s_add_u32 s28, s27, {K1_WL}
    s_mov_b32 m0, s28
    s_nop 0
    buffer_load_dwordx4 v6, s[12:15], s27 offen lds
""")
    e("K1_DMAD:")
    for s in range(4):
        e(f"    buffer_load_dwordx4 {vr(8 + 4 * s, 4)}, v5, s[4:7], 0 offen offset:{64 * s}")
    e(f"""
    v_lshrrev_b32 v24, 2, v3                ; r'
    v_and_b32 v25, 3, v3                    ; c'
    v_and_b32 v26, 1, v2
    v_lshl_or_b32 v26, v26, 2, v24          ; h(k)
    v_lshl_add_u32 v27, v2, 3, v24          ; 8g + r'
    v_lshlrev_b32 v27, 8, v27
    v_lshl_or_b32 v27, v25, 3, v27
    v_add_u32 v27, {K1_WL}, v27
    s_lshl_b32 s27, s24, 2
    v_xor_b32 v26, s27, v26
""")
    for f in range(4):
        e(f"    v_xor_b32 v{28 + f}, {f}, v26\n    v_lshl_add_u32 v{28 + f}, v{28 + f}, 5, v27")
    e(f"""
    s_lshl_b32 s27, s24, 7
    v_add_u32 v5, s27, v5
    s_mov_b32 s28, {NL2E:#x}
    s_mov_b32 s29, {NL2E:#x}
    s_barrier
    s_barrier
    s_waitcnt vmcnt(0)
    s_barrier
""")
    stamp(3, 16, 0)
    for s in range(4):
        for f in range(4):
            for u2 in range(2):
                e(f"    ds_read_b64_tr_b16 {vr(32 + 16 * f + 4 * s + 2 * u2, 2)}, v{28 + f} offset:{s * 8192 + u2 * 1024}")
    for s in range(4):
        for f in range(4):
            left = 32 - (8 * s + 2 * f + 2)
            e(f"    s_waitcnt lgkmcnt({min(left, 15)})")
            c = "0" if s == 0 else vr(96 + 4 * f, 4)
            e(f"    v_mfma_f32_16x16x32_bf16 {vr(96 + 4 * f, 4)}, {vr(32 + 16 * f + 4 * s, 4)}, {vr(8 + 4 * s, 4)}, {c}")
    e("    s_nop 4")
    for f in range(4):
        for h in range(2):
            r = 96 + 4 * f + 2 * h
            e(f"    v_pk_mul_f32 {vr(r, 2)}, {vr(r, 2)}, s[28:29]")
        for h in range(2):
            r = 96 + 4 * f + 2 * h
            e(f"    v_cvt_pk_bf16_f32 v{112 + 2 * f + h}, v{r}, v{r + 1}")
        if f % 2 == 1:
            e(f"    buffer_store_dwordx4 {vr(112 + 2 * (f - 1), 4)}, v5, s[16:19], 0 offen offset:{64 * (f // 2)}")
    if OPT["stamps"]:
        srd(16, WSEND); stamp(4, 16, 0); e("    s_waitcnt vmcnt(0)"); stamp(5, 16, 0); stamp_out(16, 0)
    e(f"""
    s_endpgm
K1_JOBS:
    s_sub_u32 s23, s2, 209
    s_mul_i32 s23, s23, 6
    s_add_u32 s23, s23, s22
    s_waitcnt lgkmcnt(0)
""")
    srd(16, WSEND)
    e(f"""
    s_cmp_ge_u32 s23, 96
    s_cbranch_scc1 K1_JOB2
    s_lshr_b32 s24, s23, 5
    s_bfe_u32 s25, s23, 0x30002             ; f
    s_and_b32 s26, s23, 3                   ; s
    s_cmp_eq_u32 s24, 0
    s_cselect_b32 s28, s12, s14
    s_cselect_b32 s29, s13, s15
    s_mov_b32 s30, {256 * 256}
    s_mov_b32 s31, 0x20000
    ; column
    s_lshl_b32 s33, s25, 4                  ; 16 f
    v_add_u32 v4, s33, v3
    v_lshlrev_b32 v4, 1, v4
    ; row
    v_lshlrev_b32 v5, 11, v2                ; 8 g rows
    v_lshrrev_b32 v7, 1, v2
    v_lshlrev_b32 v7, 12, v7
    v_and_b32 v6, 1, v2
    v_lshl_or_b32 v7, v6, 9, v7             ; 16 (g>>1) + 2 (g&1) rows
    s_cmp_eq_u32 s24, 2
    s_cselect_b64 vcc, -1, 0
    s_cselect_b32 s32, 10, 13
    s_movk_i32 s33, 512
    s_cmovk_i32 s33, 8192
    s_cselect_b32 s34, {NSC:#x}, 1.0
    v_cndmask_b32 v5, v5, v7, vcc
    v_add_u32 v4, v4, v5
    s_lshl_b32 s40, s26, s32
    s_cmp_eq_u32 s24, 1
    s_cselect_b32 s36, 0, 0x8000
    s_add_u32 s40, s40, s36
    s_add_u32 s41, s40, s33
    s_add_u32 s42, s41, s33
    s_add_u32 s43, s42, s33
""")
    for m in range(8):
        e(f"    buffer_load_ushort v{8 + m}, v4, s[28:31], s{40 + m // 2} offen offset:{(m & 1) * 256}")
    e(f"""
    s_lshl_b32 s37, s23, 10
    s_add_u32 s37, s37, {W2F}
    v_lshlrev_b32 v6, 4, v1
    s_mov_b32 s38, 0x07060302
    s_waitcnt vmcnt(0)
""")
    for m in range(8):
        e(f"    v_lshlrev_b32 v{8 + m}, 16, v{8 + m}\n    v_mul_f32 v{8 + m}, s34, v{8 + m}")
    for m in range(4):
        e(f"    v_perm_b32 v{16 + m}, v{9 + 2 * m}, v{8 + 2 * m}, s38")
    e(f"""
    buffer_store_dwordx4 v[16:19], v6, s[16:19], s37 offen
    s_endpgm
K1_JOB2:
    s_cmp_ge_u32 s23, 98
    s_cbranch_scc1 K1_JOB3
    s_sub_u32 s24, s23, 96                  ; c
    s_mov_b32 s14, {260 * 256}
    s_mov_b32 s15, 0x20000
    v_and_b32 v2, 31, v1
    v_lshrrev_b32 v3, 5, v1
    v_lshl_or_b32 v2, v2, 1, v3             ; p & 63
    v_and_b32 v4, 0x23, v2
    v_bfe_u32 v5, v2, 2, 1
    v_lshl_or_b32 v4, v5, 4, v4
    v_bfe_u32 v5, v2, 3, 2
    v_lshl_or_b32 v4, v5, 2, v4             ; feature & 63
    v_lshlrev_b32 v4, 1, v4
    s_lshl_b32 s25, s24, 7
    s_add_u32 s25, s25, {256 * 256}
""")
    for d in range(4):
        e(f"    buffer_load_ushort v{8 + d}, v4, s[12:15], s25 offen offset:{d * 256}")
    e(f"""
    s_lshl_b32 s37, s24, 10
    s_add_u32 s37, s37, {W3F}
    v_lshlrev_b32 v6, 4, v1
    s_mov_b32 s34, {NL2E:#x}
    s_waitcnt vmcnt(0)
""")
    for d in range(4):
        e(f"    v_lshlrev_b32 v{8 + d}, 16, v{8 + d}\n    v_mul_f32 v{8 + d}, s34, v{8 + d}")
    e("""
    v_cvt_pk_bf16_f32 v16, v8, v9
    v_cvt_pk_bf16_f32 v17, v10, v11
    v_lshlrev_b32 v12, 16, v16
    v_and_b32 v13, 0xffff0000, v16
    v_lshlrev_b32 v14, 16, v17
    v_and_b32 v15, 0xffff0000, v17
    v_sub_f32 v8, v8, v12
    v_sub_f32 v9, v9, v13
    v_sub_f32 v10, v10, v14
    v_sub_f32 v11, v11, v15
    v_cvt_pk_bf16_f32 v18, v8, v9
    v_cvt_pk_bf16_f32 v19, v10, v11
    buffer_store_dwordx4 v[16:19], v6, s[16:19], s37 offen
    s_endpgm
K1_JOB3:
    s_cmp_lg_u32 s23, 98
    s_cbranch_scc1 K1_END
    v_mov_b32 v8, 0
    v_lshlrev_b32 v6, 2, v1
""")
    e(f"""
    s_mov_b32 s37, {PT + N * 256}
    buffer_store_dword v8, v6, s[16:19], s37 offen
K1_END:
    s_endpgm
""")

RS = 1056
RG, RB = 528, 272
CAP = 2048
EA, SO = 0, CAP * 8
MISC = SO + CAP * 4
ZR, CNT, MORE, FL = MISC, MISC + 256, MISC + 512, MISC + 1024
QU = MISC + 2048
AG = QU + 41 * RS
XL = (AG + 2 * 16384 + 11 * 1024 + 255) // 256 * 256
AGB = XL
K2_LDS = AGB + 48 * RB
PADV = N * 8
S16MAX = (CAP // 4 - 8) * 16
vSO, vP, vD, vE, vAe, vBw, vQ, vNp, vAc, vI = 8, (16, 24), (32, 92), 48, 64, 68, 72, 126, (80, 82), 84
vU, vW = 108, 92
vC4, vQ16, vE16, vS16 = 76, 77, 78, 79
vaS, vaE, vInc, vaN = (86, 87), 88, 89, (90, 91)
sM = [40 + 2 * k for k in range(6)]
sFM = (28, 30)
UNR = 4
M9 = "0x01ff01ff"
KCOP = "s[26:27], s[26:27] op_sel_hi:[1,0,0] clamp"

def flush_adds(y):
    t = vE + 8 * y
    e(f"""
    v_cvt_f64_f32 {vr(t, 2)}, v{vAc[y]}
    v_cvt_f64_f32 {vr(t + 2, 2)}, v{vAc[y] + 1}
    ds_add_f64 v{vaN[y]}, {vr(t, 2)} offset:{AG - QU}
    ds_add_f64 v{vaN[y]}, {vr(t + 2, 2)} offset:{AG - QU + 8}
""")

def flush_block(y, lab, back):
    e(f"""
{lab}:
    s_sub_u32 exec_lo, 0, s36
    s_sub_u32 exec_hi, 0, s37
""")
    flush_adds(y)
    e(f"""
    v_add_u32 v{vaN[y]}, {RS}, v{vaN[y]}
    v_mov_b64 {vr(vAc[y], 2)}, 0
    s_mov_b64 exec, -1
    s_branch {back}
""")

def qadv_block(y, lab, back):
    e(f"""
{lab}:
    s_sub_u32 exec_lo, 0, s36
    s_sub_u32 exec_hi, 0, s37
    ds_read_b64 {vr(vQ + 2 * y, 2)}, v{vaN[y]} offset:{RS}
    s_mov_b64 exec, -1
    s_branch {back}
""")

def gather_lines(dst, adr):
    out = []
    for q in range(4):
        for y in range(2):
            a = adr + 4 * y + q
            pre = f"    v_min_u32 v{a}, {PADV}, v{a}\n    v_and_b32 v{a}, -8, v{a}\n" if OPT["safe"] else ""
            out.append(pre + f"    buffer_load_dword v{dst + 2 * q + y}, v{a}, s[8:11], 0 offen")
    return out
def gathers(dst, adr):
    for l in gather_lines(dst, adr): e(l)

def mfma4(D, P, q): return f"    v_mfma_f32_4x4x4_16b_bf16 {vr(D + 4 * q, 4)}, {vr(vI, 2)}, {vr(P + 2 * q, 2)}, {vr(vQ, 4)}"
def mfma32(D): return f"    v_mfma_f32_32x32x16_bf16 {vr(D, 16)}, {vr(vAe, 4)}, {vr(vBw, 4)}, {vr(D, 16)}"

def core_lines(D):
    Ee = vE
    def p(r): return vr(r, 2)
    ex = [f"    v_exp_f32 v{Ee + k}, v{D + k}" for k in range(16)]
    sc = [f"    v_pk_fma_f32 {p(Ee + 2 * m)}, {p(Ee + 2 * m)}, {KCOP}" for m in range(8)]
    seq = [
        lambda o: f"v_pk_mul_f32 {p(D + o)}, {p(D + o)}, {p(Ee + o + 4)}",
        lambda o: f"v_pk_mul_f32 {p(D + o + 8)}, {p(D + o + 8)}, {p(Ee + o + 12)}",
        lambda o: f"v_pk_fma_f32 {p(D + o)}, {p(D + o + 4)}, {p(Ee + o)}, {p(D + o)}",
        lambda o: f"v_pk_fma_f32 {p(D + o + 8)}, {p(D + o + 12)}, {p(Ee + o + 8)}, {p(D + o + 8)}",
        lambda o: f"v_pk_mul_f32 {p(Ee + o)}, {p(Ee + o)}, {p(Ee + o + 4)}",
        lambda o: f"v_pk_mul_f32 {p(Ee + o + 8)}, {p(Ee + o + 8)}, {p(Ee + o + 12)}",
        lambda o: f"v_pk_mul_f32 {p(Ee + o + 4)}, {p(Ee + o)}, {p(Ee + o + 8)}",
        lambda o: f"v_pk_mul_f32 {p(D + o)}, {p(D + o)}, {p(Ee + o + 8)}",
        lambda o: f"v_rcp_f32 v{Ee + o + 4}, v{Ee + o + 4}",
        lambda o: f"v_rcp_f32 v{Ee + o + 5}, v{Ee + o + 5}",
        lambda o: f"v_pk_fma_f32 {p(D + o)}, {p(D + o + 8)}, {p(Ee + o)}, {p(D + o)}",
        lambda o: f"v_pk_fma_f32 {p(vAc[o // 2])}, {p(D + o)}, {p(Ee + o + 4)}, {p(vAc[o // 2])}",
    ]
    rest = ["    " + fn(o) for fn in seq for o in (0, 2)]
    if OPT["nocore"]: return ["    s_nop 0"] * 16, [], []
    return ex, sc, rest

def tile_iter(u):
    a = u % 2
    ex, sc, rest = core_lines(vD[a])
    Dn, Pn = vD[1 - a], vP[1 - a]
    m4 = [mfma4(Dn, Pn, q) if not OPT["nomfma"] else "    s_nop 0" for q in range(4)]
    for l in ex[0:3]: e(l)
    e(f"    s_cmp_lt_u32 s34, 3\n    s_cbranch_scc1 K2_LW{u}\n    s_waitcnt vmcnt(8) lgkmcnt(0)\nK2_LWB{u}:")
    for q in range(4):
        e(m4[q]); e(ex[3 + 2 * q]); e(ex[4 + 2 * q])
    e(f"    s_cmp_lt_u32 s34, 4\n    s_cbranch_scc1 K2_NG{u}")
    if not OPT["nogather"]: gathers(Pn, vSO)
    e(f"K2_NG{u}:")
    e(ex[11]); e(ex[12])
    if not OPT["nomfma"]: e(mfma32(Dn))
    for l in ex[13:16]: e(l)
    if not OPT["nolds"]: e(f"""
    ds_read_b128 {vr(vSO, 4)}, v{vaS[0]} offset:{SO + 16 * (u + 4)}
    ds_read_b128 {vr(vSO + 4, 4)}, v{vaS[1]} offset:{SO + 16 * (u + 4)}
    ds_read2_b64 {vr(vAe, 4)}, v{vaE} offset0:{4 * (u + 2)} offset1:{4 * (u + 2)}
""")
    for l in sc: e(l)
    if u == UNR - 1:
        e(f"    v_add_u32 v{vaE}, v{vInc}, v{vaE}\n    v_add_u32 v{vaS[0]}, {16 * UNR}, v{vaS[0]}\n    v_add_u32 v{vaS[1]}, {16 * UNR}, v{vaS[1]}")
    if OPT["prio"]:
        e(f"""
    s_cmp_gt_u32 s34, s69
    s_cbranch_scc1 K2_PR{u}
    s_setprio 2
    s_cmp_gt_u32 s34, s70
    s_cbranch_scc1 K2_PR{u}
    s_setprio 1
    s_cmp_gt_u32 s34, s68
    s_cbranch_scc1 K2_PR{u}
    s_setprio 0
K2_PR{u}:
""")
    for l in rest: e(l)
    for y in range(0 if OPT['noflush'] else 2):
        e(f"""
    s_and_b64 s[36:37], {sr(sFM[y], 2)}, s[32:33]
    s_cbranch_scc1 K2_FL{u}{y}
K2_FB{u}{y}:
    s_lshr_b64 {sr(sFM[y], 2)}, {sr(sFM[y], 2)}, 1
    s_and_b64 s[36:37], {sr(sFM[y], 2)}, s[32:33]
    s_cbranch_scc1 K2_QA{u}{y}
K2_QB{u}{y}:
""")
    e("    s_sub_u32 s34, s34, 1\n    s_cmp_eq_u32 s34, 0")
    e("    s_cbranch_scc1 K2_LDONE" if u < UNR - 1 else "    s_cbranch_scc0 K2_LOOP")

def x_frags(xa, xb):
    e(f"""
    v_xor_b32 v{xa}, v5, v6
    v_lshlrev_b32 v{xa}, 4, v{xa}
    v_lshl_or_b32 v{xa}, v6, 8, v{xa}
    v_add_u32 v{xa}, {XL}, v{xa}
    v_xor_b32 v{xa + 1}, 64, v{xa}
    v_xor_b32 v{xa + 2}, 0x80, v{xa}
    v_xor_b32 v{xa + 3}, 0xc0, v{xa}
""")
    for s in range(4):
        for T in range(3):
            e(f"    ds_read_b128 {vr(xb(T, s), 4)}, v{xa + s} offset:{4096 * T}")

def tile_addr(ta):
    e(f"""
    s_bfe_u32 s36, s21, 0x20001
    s_lshl_b32 s36, s36, 8
    s_lshl_b32 s37, s23, 5
    s_add_u32 s36, s36, s37
    s_add_u32 s36, s36, {QU}
    v_mul_u32_u24 v{ta}, {RS}, v6
    v_lshl_add_u32 v{ta}, v5, 6, v{ta}
    v_add_u32 v{ta}, s36, v{ta}
    v_add_u32 v{ta + 1}, {16 * RS}, v{ta}
    v_add_u32 v{ta + 2}, {32 * RS}, v{ta}
""")

def tile_mfma(W, acc, xb):
    for s in range(4):
        for T in range(3):
            e(f"    s_waitcnt lgkmcnt({11 - 3 * s - T})")
            c = "0" if s == 0 else vr(acc + 4 * T, 4)
            e(f"    v_mfma_f32_16x16x32_bf16 {vr(acc + 4 * T, 4)}, {vr(W + 4 * s, 4)}, {vr(xb(T, s), 4)}, {c}")

def prio(n):
    if OPT["prio"]: e(f"    s_setprio {n}")

def kernel2():
    e(f"""
.text
.globl mpnn_edge_kernel
.p2align 8
.type mpnn_edge_kernel,@function
mpnn_edge_kernel:
    s_load_dwordx2 s[4:5], s[0:1], 64       ; ws
    s_load_dwordx2 s[12:13], s[0:1], 0      ; x
    s_load_dwordx2 s[16:17], s[0:1], 48     ; out
    s_cmp_ge_u32 s2, 256
    s_cbranch_scc1 K2_END
    s_and_b32 s20, s2, 7
    s_lshl_b32 s20, s20, 5
    s_lshr_b32 s3, s2, 3
    s_or_b32 s20, s20, s3                   ; bucket
    v_lshrrev_b32 v3, 2, v0
    v_lshlrev_b32 v4, 4, v3
    s_lshr_b32 s34, s20, 2
    s_lshl_b32 s34, s34, 10
    s_and_b32 s35, s20, 3
    s_or_b32 s34, s34, s35
    s_lshl_b32 s34, s34, 2
    s_add_u32 s34, s34, {DESC}
    s_mov_b32 s6, {WSEND:#x}
    s_mov_b32 s7, 0x20000
    v_lshrrev_b32 v2, 6, v0
    v_and_b32 v1, 63, v0
    v_readfirstlane_b32 s21, v2
""")
    stamp(0, 4, 1)
    e(f"""
    v_lshrrev_b32 v124, 4, v0
    v_xor_b32 v125, v124, v0
    v_and_b32 v125, 15, v125
    v_lshlrev_b32 v125, 4, v125
    v_lshl_or_b32 v125, v124, 16, v125
    s_lshl_b32 s35, s20, 8
    v_add_u32 v125, s35, v125
    s_lshl_b32 s36, s21, 10
    s_add_u32 s36, s36, {XL}
    s_mov_b32 m0, s36
""")
    srd(12, N * 256)
    e(f"""
    s_mov_b32 s24, 0
    s_mov_b32 s25, 24
    s_mov_b32 s54, 0
    s_waitcnt lgkmcnt(0)
    buffer_load_dword v2, v4, s[4:7], s34 offen
    s_cmp_ge_u32 s21, 12
    s_cbranch_scc1 K2_NOX
    buffer_load_dwordx4 v125, s[12:15], 0 offen lds
K2_NOX:
    v_mul_u32_u24 v3, {RSTR}, v3
    v_and_b32 v4, 3, v0
    v_lshlrev_b32 v7, 4, v1                 ; lane*16
    v_mov_b32 v{vNp}, 0
K2_ROUND:
    v_lshlrev_b32 v124, 4, v0
    v_mov_b64 v[32:33], 0
    v_mov_b64 v[34:35], 0
    s_cmp_ge_u32 s21, 2
    s_cbranch_scc1 K2_NOZ
    ds_write_b128 v124, v[32:35] offset:{MISC}
    s_waitcnt lgkmcnt(0)
K2_NOZ:
    s_mov_b32 s34, {REC}
    s_barrier
""")
    stamp(13, 4, 1)
    e(f"""
    s_cmp_lt_u32 s21, 12
    s_cbranch_scc1 K2_WD1
    s_waitcnt vmcnt(0)
K2_WD1:
    s_waitcnt vmcnt(1)
""")
    stamp(1, 4, 1)
    e(f"""
    v_lshrrev_b32 v60, 16, v2               ; count
    v_and_b32 v61, 0xffff, v2               ; start
    v_subrev_u32 v60, s24, v60
    v_add3_u32 v61, v61, s24, v4
    v_min_i32 v62, s25, v60
    v_mad_u32_u24 v61, v61, 12, v3
    v_sub_u32 v62, v62, v4
""")
    e(f"    v_cmp_lt_i32 {sr(sM[0], 2)}, 0, v62\n    v_cmp_lt_i32 {sr(sM[1], 2)}, 4, v62\n    v_cmp_lt_i32 {sr(sM[2], 2)}, 8, v62")
    for k in range(6):
        if k >= 3:
            e(f"    v_cmp_lt_i32 {sr(sM[k], 2)}, {4 * k}, v62")
        e(f"    s_mov_b64 exec, {sr(sM[k], 2)}")
        if k >= 2:
            e(f"    s_cbranch_execz K2_RLD")
        e(f"    buffer_load_dwordx3 {vr(8 + 4 * k, 3)}, v61, s[4:7], s34 offen offset:{48 * k}")
    e(f"""
K2_RLD:
    s_mov_b64 exec, -1
""")
    stamp(2, 4, 1)
    e(f"""
    ds_write_b128 v124, v[32:35] offset:{EA}
    v_cmp_lt_i32 s[58:59], s25, v60
    v_mov_b32 v63, 4
    v_lshlrev_b32 v62, 2, v1
    s_cmp_ge_u32 s21, 8
    s_cbranch_scc1 K2_NOSO
    v_mov_b32 v36, {PADV}
    v_mov_b32 v37, v36
    v_mov_b32 v38, v36
    v_mov_b32 v39, v36
    ds_write_b128 v124, v[36:39] offset:{SO}
K2_NOSO:
    s_cmp_lg_u32 s54, 0
    s_cbranch_scc1 K2_SETD
    v_add_u32 v40, {AG}, v124
    ds_write_b128 v40, v[32:35]
    ds_write_b128 v40, v[32:35] offset:16384
    s_cmp_ge_u32 s21, 11
    s_cbranch_scc1 K2_NOZ3
    ds_write_b128 v40, v[32:35] offset:32768
K2_NOZ3:
    v_lshrrev_b32 v5, 4, v1                 ; g
    v_and_b32 v6, 15, v1                    ; n
    s_cmp_lt_u32 s20, 16
    s_cselect_b32 s22, 40, 39
    s_bfm_b64 s[78:79], s22, 0
    s_and_b32 s23, s21, 1                   ; c
    s_lshr_b32 s76, s21, 1                  ; group
    s_mov_b32 s26, {KC:#x}
    s_mov_b32 s72, {NL2E:#x}
    s_lshl_b32 s39, s23, 7
    s_add_u32 s8, s4, s39
    s_addc_u32 s9, s5, 0
    s_or_b32 s9, s9, 0x80000000
    s_mov_b32 s10, 0x10000
    s_mov_b32 s11, 0x00c00000
    s_lshl_b32 s38, s23, 10
    s_add_u32 s75, s38, {W3F}
    s_xor_b32 s74, s21, 8
    s_lshl_b32 s74, s74, 12
    s_add_u32 s74, s74, {W2F}
    s_mov_b32 s32, 1
    s_mov_b32 s33, 1
""")
    for s in range(4):
        e(f"    buffer_load_dwordx4 {vr(vW + 4 * s, 4)}, v7, s[4:7], s74 offen offset:{1024 * s}")
    e(f"    buffer_load_dwordx4 {vr(vBw, 4)}, v7, s[4:7], s75 offen")
    e(f"""
    s_mov_b64 exec, s[58:59]
    s_cbranch_execnz K2_MORE
K2_MOREB:
    s_waitcnt vmcnt(5)
    s_branch K2_RECS
K2_SETD:
    s_mov_b64 exec, s[58:59]
    s_cbranch_execnz K2_MORE2
K2_MOREB2:
    s_waitcnt vmcnt(0)
K2_RECS:
""")
    stamp(3, 4, 1)
    for k in range(6):
        e(f"    s_mov_b64 exec, {sr(sM[k], 2)}")
        if k >= 2: e("    s_cbranch_execz K2_HISTD")
        e(f"""
    v_lshrrev_b32 v{32 + k}, 24, v{10 + 4 * k}
    ds_add_rtn_u32 v{11 + 4 * k}, v{32 + k}, v63 offset:{CNT}
    v_and_b32 v{10 + 4 * k}, 0x3ffffff, v{10 + 4 * k}
""")
    e(f"""
K2_HISTD:
    s_mov_b64 exec, -1
    s_waitcnt lgkmcnt(0)
    s_barrier
""")
    stamp(4, 4, 1)
    e(f"""
    ds_read_b32 v{vC4}, v62 offset:{CNT}
    s_waitcnt lgkmcnt(0)
    v_add_u32 v{vQ16}, 12, v{vC4}
    v_and_b32 v{vQ16}, -16, v{vQ16}
    s_mov_b64 exec, s[78:79]
    v_max_u32 v{vQ16}, 16, v{vQ16}                  ; 16*quads
    s_mov_b64 exec, -1
    s_nop 0
    v_add_u32_dpp v{vE16}, v{vQ16}, v{vQ16} row_shr:1 row_mask:0xf bank_mask:0xf bound_ctrl:1
""")
    for c in ("row_shr:2 row_mask:0xf", "row_shr:4 row_mask:0xf", "row_shr:8 row_mask:0xf", "row_bcast:15 row_mask:0xa", "row_bcast:31 row_mask:0xc"):
        e(f"    s_nop 1\n    v_add_u32_dpp v{vE16}, v{vE16}, v{vE16} {c} bank_mask:0xf")
    e(f"""
    v_sub_u32 v{vS16}, v{vE16}, v{vQ16}
    v_readlane_b32 s34, v{vE16}, 63
""")
    for k in range(6):
        if k >= 3:
            e(f"    s_cmp_eq_u64 {sr(sM[k - 1], 2)}, 0\n    s_cbranch_scc1 K2_BPD") if k == 3 else None
            e(f"    s_cmp_eq_u64 {sr(sM[k], 2)}, 0\n    s_cbranch_scc1 K2_BPD")
        e(f"    ds_bpermute_b32 v{32 + k}, v{32 + k}, v{vS16}")
    e(f"""
K2_BPD:
    s_cmp_gt_u32 s34, {S16MAX}
    s_cbranch_scc1 K2_REDO
    s_add_u32 s34, s34, 48
    s_lshr_b32 s35, s34, 9
    s_bfe_u32 s34, s34, 0x30006
    s_mul_i32 s37, s76, s35
    s_waitcnt lgkmcnt(0)
""")
    for k in range(6):
        e(f"    s_mov_b64 exec, {sr(sM[k], 2)}")
        if k >= 2: e("    s_cbranch_execz K2_SCATD")
        e(f"""
    v_add_u32 v{32 + k}, v{32 + k}, v{11 + 4 * k}
    v_add_u32 v{11 + 4 * k}, v{32 + k}, v{32 + k}
    ds_write_b32 v{32 + k}, v{10 + 4 * k} offset:{SO}
    ds_write_b64 v{11 + 4 * k}, {vr(8 + 4 * k, 2)} offset:{EA}
""")
    e(f"""
K2_SCATD:
    s_cmp_lg_u32 s21, 15
    s_cbranch_scc1 K2_NOFL
    s_mov_b64 exec, s[78:79]
    v_lshrrev_b32 v46, 4, v{vE16}
    ds_write_b8 v46, v63 offset:{FL - 1}
K2_NOFL:
    s_min_u32 s38, s76, s34
    s_add_u32 s37, s37, s38
    s_lshl_b32 s60, s37, 6                  ; stream (0,X)
    s_cmp_lt_u32 s76, s34
    s_addc_u32 s35, s35, 0
    s_lshl_b32 s77, s35, 4
    s_add_u32 s61, s60, s77
    s_add_u32 s62, s61, s77
    s_mov_b64 exec, -1
    v_mov_b32 v{vaS[0]}, s60
    s_mov_b32 exec_lo, 0
    v_mov_b32 v{vaS[0]}, s62
    s_mov_b32 exec_lo, -1
    v_add_u32 v{vaS[1]}, s77, v{vaS[0]}
""")
    prio(3)
    e(f"""
    s_waitcnt lgkmcnt(0)
    s_barrier
""")
    stamp(5, 4, 1)
    def first_gathers():
        e(f"""
    ds_read_b128 {vr(vSO, 4)}, v{vaS[0]} offset:{SO}
    ds_read_b128 {vr(vSO + 4, 4)}, v{vaS[1]} offset:{SO}
    ds_read_b128 {vr(vE, 4)}, v{vaS[0]} offset:{SO + 16}
    ds_read_b128 {vr(vE + 4, 4)}, v{vaS[1]} offset:{SO + 16}
    s_waitcnt lgkmcnt(2)
""")
        gathers(vP[0], vSO)
        prio(2)
        e("    s_waitcnt lgkmcnt(0)")
        gathers(vP[1], vE)
    def addresses():
        e(f"""
    v_and_b32 v44, 31, v1
    v_lshrrev_b32 v46, 4, v{vaS[0]}
    v_add_u32 v46, v46, v44
    v_add_u32 v47, s35, v46
    ds_read_u8 v46, v46 offset:{FL}
    ds_read_u8 v47, v47 offset:{FL}
    s_add_u32 s63, s62, s77
    s_lshl_b32 s36, s23, 9
    s_add_u32 s36, s36, {QU}
    v_lshl_add_u32 v44, v44, 4, s36
""")
        for k in range(4):
            e(f"    v_cmp_ge_u32 vcc, s{60 + k}, v{vE16}\n    s_bcnt1_i32_b64 s{64 + k}, vcc\n    s_min_u32 s{64 + k}, s{64 + k}, s22\n    s_mulk_i32 s{64 + k}, {RS}")
        e(f"""
    v_sub_u32 v{vQ16}, v{vQ16}, v{vC4}
    v_add_u32 v{vNp}, v{vNp}, v{vQ16}
    v_add_u32 v{vaN[0]}, s64, v44
    v_add_u32 v{vaN[1]}, s65, v44
    v_mov_b32 v{vaE}, {ZR}
    v_mov_b32 v{vInc}, 0
    s_mov_b32 exec_lo, 0
    v_add_u32 v{vaN[0]}, s66, v44
    v_add_u32 v{vaN[1]}, s67, v44
    s_mov_b32 exec_lo, 0x55555555
    s_mov_b32 exec_hi, 0xaaaaaaaa
    v_bfe_u32 v45, v1, 1, 2
    v_mul_u32_u24 v45, s77, v45
    v_add_u32 v45, s60, v45
    v_and_b32 v{vaE}, 0x18, v1
    v_lshl_add_u32 v{vaE}, v45, 1, v{vaE}
    v_mov_b32 v{vInc}, {32 * UNR}
    s_mov_b64 exec, -1
    s_movk_i32 s36, 0x3f80
    s_mov_b32 s37, 0
    v_and_b32 v45, 0x30, v7
    v_lshlrev_b64 {vr(vI, 2)}, v45, s[36:37]
    s_mov_b32 s34, s35
""")
        if OPT["prio"]:
            e("    s_lshr_b32 s68, s35, 2\n    s_mul_i32 s69, s68, 3\n    s_lshl_b32 s70, s68, 1")
        e(f"""
    s_waitcnt lgkmcnt(0)
    v_cmp_ne_u32 {sr(sFM[0], 2)}, 0, v46
    v_cmp_ne_u32 {sr(sFM[1], 2)}, 0, v47
""")
    e(f"""
    s_cmp_lg_u32 s54, 0
    s_cbranch_scc1 K2_W3U
    s_cmp_lt_u32 s21, 8
    s_cbranch_scc1 K2_W3U
""")
    xbq = lambda T, s: 16 + 16 * T + 4 * s
    x_frags(8, xbq)
    tile_addr(120)
    e("    s_waitcnt vmcnt(0)")
    tile_mfma(vW, vU, xbq)
    e("    s_nop 3")
    for T in range(3):
        if T == 2:
            e(f"    s_mov_b32 exec_lo, {M9}\n    s_mov_b32 exec_hi, {M9}")
        for h in range(2):
            r = vU + 4 * T + 2 * h
            e(f"    v_pk_mul_f32 {vr(r, 2)}, {vr(r, 2)}, s[72:73] op_sel_hi:[1,0]")
        e(f"    ds_write2_b64 v{120 + T}, {vr(vU + 4 * T, 2)}, {vr(vU + 4 * T + 2, 2)} offset0:0 offset1:2")
    e("    s_mov_b64 exec, -1\n    s_waitcnt lgkmcnt(0)\n    s_barrier")
    first_gathers()
    stamp(11, 4, 1)
    prio(0)
    g = vW
    for r in range(12):
        e(f"    v_exp_f32 v{g + r}, v{vU + r}")
    for r in range(0, 12, 2):
        e(f"    v_pk_fma_f32 {vr(g + r, 2)}, {vr(g + r, 2)}, {KCOP}")
    for r in range(12):
        e(f"    v_rcp_f32 v{g + r}, v{g + r}")
    for T in range(3):
        if T == 2:
            e(f"    s_mov_b32 exec_lo, {M9}\n    s_mov_b32 exec_hi, {M9}")
        for r in (4 * T, 4 * T + 2):
            e(f"    v_pk_mul_f32 {vr(g + r, 2)}, {vr(g + r, 2)}, {vr(vU + r, 2)}")
        e(f"    ds_write2_b64 v{120 + T}, {vr(g + 4 * T, 2)}, {vr(g + 4 * T + 2, 2)} offset0:1 offset1:3")
    e("    s_mov_b64 exec, -1")
    addresses()
    e("    s_branch K2_W3D\nK2_W3U:")
    first_gathers()
    stamp(11, 4, 1)
    prio(0)
    addresses()
    e(f"""
    s_barrier
    s_cmp_lg_u32 s54, 0
    s_cbranch_scc1 K2_W3D
""")
    xbu = lambda T, s: (32 + 16 * T + 4 * s) if T < 2 else (8, 12, 64, 72)[s]
    x_frags(120, xbu)
    e("    s_waitcnt vmcnt(16)")
    tile_mfma(vW, vU, xbu)
    e(f"""
K2_W3D:
    ds_read_b64 {vr(vQ, 2)}, v{vaN[0]}
    ds_read_b64 {vr(vQ + 2, 2)}, v{vaN[1]}
    ds_read2_b64 {vr(vAe, 4)}, v{vaE} offset0:0 offset1:0
    ds_read_b128 {vr(vSO, 4)}, v{vaS[0]} offset:{SO + 32}
    ds_read_b128 {vr(vSO + 4, 4)}, v{vaS[1]} offset:{SO + 32}
    v_mov_b64 {vr(vAc[0], 2)}, 0
    v_mov_b64 {vr(vAc[1], 2)}, 0
    s_mov_b32 s54, 1
""")
    stamp(12, 4, 1)
    prio(3)
    e("    s_waitcnt vmcnt(8) lgkmcnt(0)")
    stamp(6, 4, 1)
    for q in range(4): e(mfma4(vD[0], vP[0], q))
    e("    s_cmp_lt_u32 s34, 3\n    s_cbranch_scc1 K2_NGP")
    gathers(vP[0], vSO)
    e(f"""
K2_NGP:
    s_nop 1
{mfma32(vD[0])}
    ds_read_b128 {vr(vSO, 4)}, v{vaS[0]} offset:{SO + 48}
    ds_read_b128 {vr(vSO + 4, 4)}, v{vaS[1]} offset:{SO + 48}
    ds_read2_b64 {vr(vAe, 4)}, v{vaE} offset0:4 offset1:4
""")
    for y in range(2):
        e(f"""
    s_and_b64 s[36:37], {sr(sFM[y], 2)}, s[32:33]
    s_cbranch_scc1 K2_QAP{y}
K2_QBP{y}:
""")
    e("    s_nop 4\nK2_LOOP:")
    for u in range(UNR):
        tile_iter(u)
    e("K2_LDONE:")
    for y in range(2):
        flush_adds(y)
    e(f"""
    v_mov_b32 v124, {MORE}
    ds_read_b32 v91, v124
    s_cmp_ge_u32 s21, 8
    s_cbranch_scc1 K2_NOU
    s_add_u32 s36, s74, 0x8000
""")
    for s in range(4):
        e(f"    buffer_load_dwordx4 {vr(vW + 4 * s, 4)}, v7, s[4:7], s36 offen offset:{1024 * s}")
    e(f"""
    v_mul_u32_u24 v88, {RB}, v6
    v_lshl_add_u32 v88, v5, 4, v88
    v_add_u32 v88, {AGB}, v88
    v_lshlrev_b32 v90, 16, v6
    v_lshl_or_b32 v90, v5, 3, v90
    s_lshl_b32 s36, s20, 8
    s_lshl_b32 s37, s21, 5
    s_add_u32 s36, s36, s37
    v_add_u32 v90, s36, v90
K2_NOU:
""")
    stamp(7, 4, 1)
    srd(16, N * 256)
    e(f"""
    v_lshrrev_b32 v84, 4, v0
    v_subrev_u32 v84, 24, v84               ; node
    v_lshlrev_b32 v87, 2, v84
    v_cvt_f32_u32 v125, v{vNp}
    v_mul_u32_u24 v85, {RB}, v84
    v_mul_u32_u24 v84, {RS}, v84
    v_mul_f32 v125, 0xbe800000, v125
    v_lshl_add_u32 v85, v6, 4, v85
    v_lshl_add_u32 v84, v6, 4, v84
    ds_bpermute_b32 v86, v87, v125
    v_add_u32 v85, {AGB}, v85
    v_add_u32 v84, {QU}, v84
    s_waitcnt vmcnt(0) lgkmcnt(0)
    v_readfirstlane_b32 s57, v91
    s_barrier
""")
    stamp(8, 4, 1)
    e(f"""
    s_cmp_lg_u32 s57, 0
    s_cbranch_scc1 K2_NEXT
    s_cmp_lt_u32 s21, 6
    s_cbranch_scc1 K2_NOCV
""")
    for k in range(4):
        e(f"    ds_read_b128 {vr(16 + 4 * k, 4)}, v84 offset:{AG - QU + 256 * k}\n    ds_read_b64 {vr(8 + 2 * k, 2)}, v84 offset:{256 * k + 8}")
    for k in range(4):
        e(f"    s_waitcnt lgkmcnt({6 - 2 * k})")
        e(f"    v_cvt_f32_f64 v{32 + 2 * k}, {vr(16 + 4 * k, 2)}\n    v_cvt_f32_f64 v{33 + 2 * k}, {vr(18 + 4 * k, 2)}")
        e(f"    v_pk_fma_f32 {vr(32 + 2 * k, 2)}, {vr(8 + 2 * k, 2)}, v[86:87], {vr(32 + 2 * k, 2)} op_sel_hi:[1,0,1]")
        e(f"    v_cvt_pk_bf16_f32 v{40 + k}, v{32 + 2 * k}, v{33 + 2 * k}")
    e(f"""
    ds_write_b128 v85, v[40:43]
    s_waitcnt lgkmcnt(0)
K2_NOCV:
    s_barrier
    s_cmp_ge_u32 s21, 8
    s_cbranch_scc1 K2_FIN
""")
    for s in range(4):
        for T in range(3):
            e(f"    ds_read_b128 {vr(xbq(T, s), 4)}, v88 offset:{16 * RB * T + 64 * s}")
    for s in range(4):
        for T in range(3):
            e(f"    s_waitcnt lgkmcnt({11 - 3 * s - T})")
            e(f"    v_mfma_f32_16x16x32_bf16 {vr(vU + 4 * T, 4)}, {vr(vW + 4 * s, 4)}, {vr(xbq(T, s), 4)}, {vr(vU + 4 * T, 4)}")
    e("    v_add_u32 v89, 0x100000, v90\n    v_add_u32 v91, 0x200000, v90\n    s_nop 1")
    for m in range(6):
        if m == 2: e("    s_nop 0")
        e(f"    v_pk_mul_f32 {vr(16 + 2 * m, 2)}, {vr(vU + 2 * m, 2)}, s[72:73] op_sel_hi:[1,0]")
    for m in range(12):
        e(f"    v_exp_f32 v{16 + m}, v{16 + m}")
    for m in range(6):
        e(f"    v_pk_add_f32 {vr(16 + 2 * m, 2)}, {vr(16 + 2 * m, 2)}, 1.0 op_sel_hi:[1,0]")
    for T in range(3):
        for m in range(4 * T, 4 * T + 4):
            e(f"    v_rcp_f32 v{16 + m}, v{16 + m}")
        e("    s_nop 0")
        for m in (2 * T, 2 * T + 1):
            e(f"    v_pk_mul_f32 {vr(16 + 2 * m, 2)}, {vr(16 + 2 * m, 2)}, {vr(vU + 2 * m, 2)}")
        for m in (2 * T, 2 * T + 1):
            e(f"    v_cvt_pk_bf16_f32 v{32 + m}, v{16 + 2 * m}, v{17 + 2 * m}")
        e(f"    buffer_store_dwordx2 {vr(32 + 2 * T, 2)}, v{(90, 89, 91)[T]}, s[16:19], 0 offen")
    e("K2_FIN:")
    if OPT["stamps"]:
        stamp(9, 4, 1); e("    s_waitcnt vmcnt(0)"); stamp(10, 4, 1); stamp_out(4, 1)
    e("K2_END:\n    s_endpgm")
    for u in range(UNR):
        for y in range(0 if OPT['noflush'] else 2):
            flush_block(y, f"K2_FL{u}{y}", f"K2_FB{u}{y}")
            qadv_block(y, f"K2_QA{u}{y}", f"K2_QB{u}{y}")
        e(f"K2_LW{u}:\n    s_waitcnt vmcnt(0) lgkmcnt(0)\n    s_branch K2_LWB{u}")
    for y in range(2):
        qadv_block(y, f"K2_QAP{y}", f"K2_QBP{y}")
    for sfx in ("", "2"):
        e(f"""
K2_MORE{sfx}:
    v_mov_b32 v61, {MORE}
    ds_write_b32 v61, v63
    s_branch K2_MOREB{sfx}
""")
    e("""
K2_NEXT:
    s_add_u32 s24, s24, s25
    s_branch K2_ROUND
K2_REDO:
    s_mov_b32 s25, 4
    s_waitcnt vmcnt(0) lgkmcnt(0)
    s_barrier
    s_branch K2_ROUND
""")

def desc(name, vg, sg):
    e(f"""
.p2align 6
.amdhsa_kernel {name}
  .amdhsa_next_free_vgpr {vg}
  .amdhsa_next_free_sgpr {sg}
  .amdhsa_accum_offset {vg}
  .amdhsa_group_segment_fixed_size 0
  .amdhsa_kernarg_size 72
  .amdhsa_user_sgpr_count 2
  .amdhsa_user_sgpr_kernarg_segment_ptr 1
  .amdhsa_system_sgpr_workgroup_id_x 1
.end_amdhsa_kernel
""")

e(f"""
; @launch kernel=mpnn_bin_kernel grid=(256,1,1) block=(1024,1,1) lds={K1_LDS}
; @launch kernel=mpnn_edge_kernel grid=(256,1,1) block=(1024,1,1) lds={K2_LDS}
.amdgcn_target "amdgcn-amd-amdhsa--gfx950"
""")
kernel1()
kernel2()
e('.section .rodata,"a"')
desc("mpnn_bin_kernel", 128, 96)
desc("mpnn_edge_kernel", 128, 96)
open(sys.argv[1], "w").write("\n".join(L) + "\n")
```

```python
import sys, struct, math

def f2u(x): return struct.unpack("<I", struct.pack("<f", x))[0]

OPT = dict(dbg=0, safe=0, stamps=0, prio=1, nogather=0, nocore=0, nolds=0, nomfma=0, noflush=0)
for a in sys.argv[2:]:
    k, v = a.split("="); OPT[k] = int(v)

N, E = 10000, 320000
NB = 256
EPW = 1250
PT    = 0
DESC  = 0x280000
REC   = 0x2C0000
RSTR  = 15488
W2F   = 0x690000
WUT   = W2F + 0x8000
WUB   = WUT + 0x8000
W3F   = WUB + 0x8000
STAMP = W3F + 0x800
WSEND = STAMP + (0x80000 if OPT["stamps"] else 0)
NL2E = f2u(-1.4426950408889634)
KC   = f2u(1.0 / (2.0 ** 31 * math.log(2.0)))
NSC  = f2u(-2.0 ** -31)

L = []
def e(s=""):
    for ln in s.strip("\n").split("\n"):
        L.append(ln)
def vr(a, n): return f"v[{a}:{a + n - 1}]" if n > 1 else f"v{a}"
def sr(a, n): return f"s[{a}:{a + n - 1}]" if n > 1 else f"s{a}"

def srd(s, nrec, w3=0x20000):
    e(f"    s_mov_b32 s{s + 2}, {nrec:#x}\n    s_mov_b32 s{s + 3}, {w3:#x}")

def scan64(v):
    for c in ("row_shr:1 row_mask:0xf", "row_shr:2 row_mask:0xf", "row_shr:4 row_mask:0xf", "row_shr:8 row_mask:0xf",
              "row_bcast:15 row_mask:0xa", "row_bcast:31 row_mask:0xc"):
        e(f"    s_nop 1\n    v_add_u32_dpp v{v}, v{v}, v{v} {c} bank_mask:0xf")

NST = 16
def dbg(slot, kern, neg):
    if not OPT["dbg"]: return
    e(f"""
    s_load_dwordx2 s[84:85], s[0:1], 56
    s_memrealtime s[88:89]
    s_waitcnt lgkmcnt(0)
    s_sub_u32 s84, s84, {512 * kern}
    s_subb_u32 s85, s85, 0
    s_mov_b32 s86, 256
    s_mov_b32 s87, 0x20000
    {"s_not_b32 s88, s88" if neg else ""}
    s_mov_b64 s[92:93], exec
    s_mov_b64 exec, 1
    v_mov_b32 v127, s88
    buffer_atomic_umax v127, off, s[84:87], 0 offset:{4 * slot}
    s_mov_b64 exec, s[92:93]
""")
def stamp(i, srd_s, kern):
    if not OPT["stamps"]: return
    e(f"""
    s_memtime s[90:91]
    s_waitcnt lgkmcnt(0)
    v_writelane_b32 v127, s90, {i}
""")
    if i == 0:
        e("    s_memrealtime s[90:91]\n    s_waitcnt lgkmcnt(0)\n    v_writelane_b32 v127, s90, 14")
def stamp_out(srd_s, kern):
    if not OPT["stamps"]: return
    e(f"""
    s_memrealtime s[90:91]
    s_waitcnt lgkmcnt(0)
    v_writelane_b32 v127, s90, 15
    s_mov_b64 exec, 0xffff
    s_lshl_b32 s90, s2, 4
    s_add_u32 s90, s90, s21
    s_lshl_b32 s90, s90, 6
    s_add_u32 s90, s90, {STAMP + kern * 0x40000}
    v_mbcnt_lo_u32_b32 v125, -1, 0
    v_lshlrev_b32 v125, 2, v125
    buffer_store_dword v127, v125, s[{srd_s}:{srd_s + 3}], s90 offen
    s_mov_b64 exec, -1
""")

K1_CNT, K1_ST, K1_STG, K1_WL = 0, 1024, 2048, 2048 + 15360
K1_LDS = 84 * 1024
def kernel1():
    e("""
.text
.globl mpnn_bin_kernel
.p2align 8
.type mpnn_bin_kernel,@function
mpnn_bin_kernel:
    s_cmp_ge_u32 s2, 256
    s_cbranch_scc1 K1_END
    s_load_dwordx4 s[4:7], s[0:1], 0        ; x, e_attr
    s_load_dwordx4 s[8:11], s[0:1], 16
    s_load_dwordx4 s[12:15], s[0:1], 32
    s_load_dwordx2 s[16:17], s[0:1], 64     ; ws
    v_lshrrev_b32 v2, 6, v0
    v_and_b32 v1, 63, v0
    v_readfirstlane_b32 s21, v2
""")
    stamp(0, 16, 0)
    dbg(0, 0, True); dbg(1, 0, False)
    if OPT["dbg"]: e("    s_waitcnt vmcnt(0)")
    e("""
    s_cmp_ge_u32 s21, 10
    s_cbranch_scc1 K1_GEMM
    s_and_b32 s20, s2, 7
    s_lshl_b32 s20, s20, 5
    s_lshr_b32 s3, s2, 3
    s_or_b32 s20, s20, s3
    s_mul_i32 s22, s20, 5000
    s_lshl_b32 s23, s22, 1
    v_lshlrev_b32 v3, 3, v0
    v_lshlrev_b32 v4, 4, v0
    v_cmp_gt_u32 vcc, 625, v0
    v_mov_b32 v20, 0
    v_mov_b32 v21, 0
    v_mov_b32 v22, 0
    v_mov_b32 v23, 0
    s_mov_b64 s[44:45], vcc
    s_waitcnt lgkmcnt(0)
    s_mov_b32 s24, s10
    s_mov_b32 s25, s11
""")
    srd(24, E * 4)
    e("    s_mov_b32 s28, s8\n    s_mov_b32 s29, s9"); srd(28, E * 4)
    e("    s_mov_b32 s32, s6\n    s_mov_b32 s33, s7"); srd(32, E * 8)
    srd(16, WSEND)
    e(f"""
    s_mov_b64 exec, s[44:45]
    buffer_load_dwordx2 v[6:7], v3, s[24:27], s22 offen      ; dst
    buffer_load_dwordx2 v[8:9], v3, s[28:31], s22 offen      ; src
    buffer_load_dwordx4 v[10:13], v4, s[32:35], s23 offen
    s_mov_b64 exec, -1
    s_cmp_lg_u32 s21, 0
    s_cbranch_scc1 K1_NOZ
    ds_write_b128 v4, v[20:23] offset:{K1_CNT}
K1_NOZ:
    v_mov_b32 v24, 1
    s_waitcnt lgkmcnt(0)
    s_barrier
    s_mov_b64 exec, s[44:45]
    s_waitcnt vmcnt(2)
""")
    stamp(1, 16, 0)
    e(f"""
    v_and_b32 v14, 0xff, v6
    v_and_b32 v15, 0xff, v7
    v_lshlrev_b32 v14, 2, v14
    v_lshlrev_b32 v15, 2, v15
    ds_add_rtn_u32 v16, v14, v24 offset:{K1_CNT}
    ds_add_rtn_u32 v17, v15, v24 offset:{K1_CNT}
    v_lshrrev_b32 v6, 8, v6
    v_lshrrev_b32 v7, 8, v7
    v_lshlrev_b32 v6, 26, v6
    v_lshlrev_b32 v7, 26, v7
    s_mov_b64 exec, -1
    v_lshlrev_b32 v5, 4, v1
    s_waitcnt lgkmcnt(0)
    s_barrier
""")
    stamp(2, 16, 0)
    e(f"""
    ds_read_b128 v[20:23], v5 offset:{K1_CNT}
    s_waitcnt vmcnt(1)
    v_lshl_or_b32 v8, v8, 3, v6
    v_lshl_or_b32 v9, v9, 3, v7
    s_waitcnt lgkmcnt(0)
    v_add_u32 v25, v20, v21
    v_add_u32 v26, v25, v22
    v_add_u32 v27, v26, v23
    v_mov_b32 v28, v27
""")
    scan64(28)
    e(f"""
    v_sub_u32 v28, v28, v27
    v_add_u32 v29, v28, v20
    v_add_u32 v30, v28, v25
    v_add_u32 v31, v28, v26
    ds_write_b128 v5, v[28:31] offset:{K1_ST}
    ds_read_b32 v18, v14 offset:{K1_ST}
    ds_read_b32 v19, v15 offset:{K1_ST}
    s_cmp_lg_u32 s21, 9
    s_cbranch_scc1 K1_NOD
    v_lshl_or_b32 v32, v20, 16, v28
    v_lshl_or_b32 v33, v21, 16, v29
    v_lshl_or_b32 v34, v22, 16, v30
    v_lshl_or_b32 v35, v23, 16, v31
    s_lshl_b32 s36, s20, 4
    s_add_u32 s36, s36, {DESC}
    v_lshlrev_b32 v36, 12, v1
    buffer_store_dwordx4 v[32:35], v36, s[16:19], s36 offen
K1_NOD:
    s_mov_b64 exec, s[44:45]
    s_waitcnt lgkmcnt(0)
    v_add_u32 v18, v18, v16
    v_add_u32 v19, v19, v17
    v_mul_u32_u24 v18, 12, v18
    v_mul_u32_u24 v19, 12, v19
    v_add_u32 v18, {K1_STG}, v18
    v_add_u32 v19, {K1_STG}, v19
    s_cmp_lg_u32 s21, 9
    s_cbranch_scc1 K1_W0
    s_waitcnt vmcnt(1)
    s_branch K1_W1
K1_W0:
    s_waitcnt vmcnt(0)
K1_W1:
    ds_write2_b32 v18, v10, v11 offset0:0 offset1:1
    ds_write_b32 v18, v8 offset:8
    ds_write2_b32 v19, v12, v13 offset0:0 offset1:1
    ds_write_b32 v19, v9 offset:8
    s_mov_b64 exec, -1
    s_mul_i32 s36, s20, {RSTR}
    s_add_u32 s36, s36, {REC}
    s_add_u32 s37, s36, 10240
    s_waitcnt lgkmcnt(0)
    s_barrier
""")
    stamp(3, 16, 0)
    e(f"""
    ds_read_b128 v[20:23], v4 offset:{K1_STG}
    s_cmp_ge_u32 s21, 5
    s_cbranch_scc1 K1_C1
    ds_read_b128 v[24:27], v4 offset:{K1_STG + 10240}
    s_waitcnt lgkmcnt(0)
    buffer_store_dwordx4 v[24:27], v4, s[16:19], s37 offen
K1_C1:
    s_waitcnt lgkmcnt(0)
    buffer_store_dwordx4 v[20:23], v4, s[16:19], s36 offen
""")
    if OPT["dbg"]: e("    s_waitcnt vmcnt(0)"); dbg(2, 0, False)
    if OPT["stamps"]:
        stamp(4, 16, 0); e("    s_waitcnt vmcnt(0)"); stamp(5, 16, 0); stamp_out(16, 0)
    e(f"""
    s_endpgm
K1_GEMM:
    s_sub_u32 s22, s21, 10                  ; gi
    v_lshrrev_b32 v2, 4, v1                 ; g
    v_and_b32 v3, 15, v1                    ; n / i
    s_cmp_ge_u32 s2, 209
    s_cbranch_scc1 K1_JOBS
    s_lshr_b32 s23, s22, 1                  ; T
    s_and_b32 s24, s22, 1                   ; fh
    ; W1 -> LDS source offset: row (l/16), chunk (l%16) ^ ((l/16)<<1)
    v_lshlrev_b32 v4, 1, v2
    v_xor_b32 v4, v4, v3
    v_lshlrev_b32 v4, 4, v4
    v_lshl_or_b32 v4, v2, 8, v4
    s_mul_i32 s25, s2, 48
    s_lshl_b32 s26, s23, 4
    s_add_u32 s25, s25, s26
    v_add_u32 v5, s25, v3
    v_lshlrev_b32 v5, 8, v5
    v_lshl_or_b32 v5, v2, 4, v5
    s_waitcnt lgkmcnt(0)
""")
    srd(4, N * 256)
    srd(12, 128 * 256)
    srd(16, N * 256)
    for m in range(6):
        if m == 5:
            e("    s_cmp_ge_u32 s22, 2\n    s_cbranch_scc1 K1_DMAD")
        e(f"""
    s_add_u32 s27, s22, {6 * m}
    s_lshl_b32 s28, s27, 6
    s_and_b32 s28, s28, 0x80
    s_lshl_b32 s27, s27, 10
    v_xor_b32 v6, s28, v4
    s_add_u32 s28, s27, {K1_WL}
    s_mov_b32 m0, s28
    s_nop 0
    buffer_load_dwordx4 v6, s[12:15], s27 offen lds
""")
    e("K1_DMAD:")
    for s in range(4):
        e(f"    buffer_load_dwordx4 {vr(8 + 4 * s, 4)}, v5, s[4:7], 0 offen offset:{64 * s}")
    e(f"""
    v_lshrrev_b32 v24, 2, v3                ; r'
    v_and_b32 v25, 3, v3                    ; c'
    v_and_b32 v26, 1, v2
    v_lshl_or_b32 v26, v26, 2, v24          ; h(k)
    v_lshl_add_u32 v27, v2, 3, v24          ; 8g + r'
    v_lshlrev_b32 v27, 8, v27
    v_lshl_or_b32 v27, v25, 3, v27
    v_add_u32 v27, {K1_WL}, v27
    s_lshl_b32 s27, s24, 2
    v_xor_b32 v26, s27, v26
""")
    for f in range(4):
        e(f"    v_xor_b32 v{28 + f}, {f}, v26\n    v_lshl_add_u32 v{28 + f}, v{28 + f}, 5, v27")
    e(f"""
    s_lshl_b32 s27, s24, 7
    v_add_u32 v5, s27, v5
    s_mov_b32 s28, {NL2E:#x}
    s_mov_b32 s29, {NL2E:#x}
    s_barrier
    s_barrier
    s_waitcnt vmcnt(0)
    s_barrier
""")
    stamp(3, 16, 0)
    for s in range(4):
        for f in range(4):
            for u2 in range(2):
                e(f"    ds_read_b64_tr_b16 {vr(32 + 16 * f + 4 * s + 2 * u2, 2)}, v{28 + f} offset:{s * 8192 + u2 * 1024}")
    for s in range(4):
        for f in range(4):
            left = 32 - (8 * s + 2 * f + 2)
            e(f"    s_waitcnt lgkmcnt({min(left, 15)})")
            c = "0" if s == 0 else vr(96 + 4 * f, 4)
            e(f"    v_mfma_f32_16x16x32_bf16 {vr(96 + 4 * f, 4)}, {vr(32 + 16 * f + 4 * s, 4)}, {vr(8 + 4 * s, 4)}, {c}")
    e("    s_nop 4")
    for f in range(4):
        for h in range(2):
            r = 96 + 4 * f + 2 * h
            e(f"    v_pk_mul_f32 {vr(r, 2)}, {vr(r, 2)}, s[28:29]")
        for h in range(2):
            r = 96 + 4 * f + 2 * h
            e(f"    v_cvt_pk_bf16_f32 v{112 + 2 * f + h}, v{r}, v{r + 1}")
        if f % 2 == 1:
            e(f"    buffer_store_dwordx4 {vr(112 + 2 * (f - 1), 4)}, v5, s[16:19], 0 offen offset:{64 * (f // 2)}")
    if OPT["dbg"]: e("    s_waitcnt vmcnt(0)"); dbg(3, 0, False)
    if OPT["stamps"]:
        srd(16, WSEND); stamp(4, 16, 0); e("    s_waitcnt vmcnt(0)"); stamp(5, 16, 0); stamp_out(16, 0)
    e(f"""
    s_endpgm
K1_JOBS:
    s_sub_u32 s23, s2, 209
    s_mul_i32 s23, s23, 6
    s_add_u32 s23, s23, s22
    s_waitcnt lgkmcnt(0)
""")
    srd(16, WSEND)
    e(f"""
    s_cmp_ge_u32 s23, 96
    s_cbranch_scc1 K1_JOB2
    s_lshr_b32 s24, s23, 5
    s_bfe_u32 s25, s23, 0x30002             ; f
    s_and_b32 s26, s23, 3                   ; s
    s_cmp_eq_u32 s24, 0
    s_cselect_b32 s28, s12, s14
    s_cselect_b32 s29, s13, s15
    s_mov_b32 s30, {256 * 256}
    s_mov_b32 s31, 0x20000
    ; column
    s_lshl_b32 s33, s25, 4                  ; 16 f
    v_add_u32 v4, s33, v3
    v_lshlrev_b32 v4, 1, v4
    ; row
    v_lshlrev_b32 v5, 11, v2                ; 8 g rows
    v_lshrrev_b32 v7, 1, v2
    v_lshlrev_b32 v7, 12, v7
    v_and_b32 v6, 1, v2
    v_lshl_or_b32 v7, v6, 9, v7             ; 16 (g>>1) + 2 (g&1) rows
    s_cmp_eq_u32 s24, 2
    s_cselect_b64 vcc, -1, 0
    s_cselect_b32 s32, 10, 13
    s_movk_i32 s33, 512
    s_cmovk_i32 s33, 8192
    s_cselect_b32 s34, {NSC:#x}, 1.0
    v_cndmask_b32 v5, v5, v7, vcc
    v_add_u32 v4, v4, v5
    s_lshl_b32 s40, s26, s32
    s_cmp_eq_u32 s24, 1
    s_cselect_b32 s36, 0, 0x8000
    s_add_u32 s40, s40, s36
    s_add_u32 s41, s40, s33
    s_add_u32 s42, s41, s33
    s_add_u32 s43, s42, s33
""")
    for m in range(8):
        e(f"    buffer_load_ushort v{8 + m}, v4, s[28:31], s{40 + m // 2} offen offset:{(m & 1) * 256}")
    e(f"""
    s_lshl_b32 s37, s23, 10
    s_add_u32 s37, s37, {W2F}
    v_lshlrev_b32 v6, 4, v1
    s_mov_b32 s38, 0x07060302
    s_waitcnt vmcnt(0)
""")
    for m in range(8):
        e(f"    v_lshlrev_b32 v{8 + m}, 16, v{8 + m}\n    v_mul_f32 v{8 + m}, s34, v{8 + m}")
    for m in range(4):
        e(f"    v_perm_b32 v{16 + m}, v{9 + 2 * m}, v{8 + 2 * m}, s38")
    e(f"""
    buffer_store_dwordx4 v[16:19], v6, s[16:19], s37 offen
    s_endpgm
K1_JOB2:
    s_cmp_ge_u32 s23, 98
    s_cbranch_scc1 K1_JOB3
    s_sub_u32 s24, s23, 96                  ; c
    s_mov_b32 s14, {260 * 256}
    s_mov_b32 s15, 0x20000
    v_and_b32 v2, 31, v1
    v_lshrrev_b32 v3, 5, v1
    v_lshl_or_b32 v2, v2, 1, v3             ; p & 63
    v_and_b32 v4, 0x23, v2
    v_bfe_u32 v5, v2, 2, 1
    v_lshl_or_b32 v4, v5, 4, v4
    v_bfe_u32 v5, v2, 3, 2
    v_lshl_or_b32 v4, v5, 2, v4             ; feature & 63
    v_lshlrev_b32 v4, 1, v4
    s_lshl_b32 s25, s24, 7
    s_add_u32 s25, s25, {256 * 256}
""")
    for d in range(4):
        e(f"    buffer_load_ushort v{8 + d}, v4, s[12:15], s25 offen offset:{d * 256}")
    e(f"""
    s_lshl_b32 s37, s24, 10
    s_add_u32 s37, s37, {W3F}
    v_lshlrev_b32 v6, 4, v1
    s_mov_b32 s34, {NL2E:#x}
    s_waitcnt vmcnt(0)
""")
    for d in range(4):
        e(f"    v_lshlrev_b32 v{8 + d}, 16, v{8 + d}\n    v_mul_f32 v{8 + d}, s34, v{8 + d}")
    e("""
    v_cvt_pk_bf16_f32 v16, v8, v9
    v_cvt_pk_bf16_f32 v17, v10, v11
    v_lshlrev_b32 v12, 16, v16
    v_and_b32 v13, 0xffff0000, v16
    v_lshlrev_b32 v14, 16, v17
    v_and_b32 v15, 0xffff0000, v17
    v_sub_f32 v8, v8, v12
    v_sub_f32 v9, v9, v13
    v_sub_f32 v10, v10, v14
    v_sub_f32 v11, v11, v15
    v_cvt_pk_bf16_f32 v18, v8, v9
    v_cvt_pk_bf16_f32 v19, v10, v11
    buffer_store_dwordx4 v[16:19], v6, s[16:19], s37 offen
    s_endpgm
K1_JOB3:
    s_cmp_lg_u32 s23, 98
    s_cbranch_scc1 K1_END
    v_mov_b32 v8, 0
    v_lshlrev_b32 v6, 2, v1
""")
    e(f"""
    s_mov_b32 s37, {PT + N * 256}
    buffer_store_dword v8, v6, s[16:19], s37 offen
K1_END:
    s_endpgm
""")

RS = 1056
RG, RB = 528, 272
CAP = 2048
EA, SO = 0, CAP * 8
MISC = SO + CAP * 4
ZR, CNT, MORE, FL = MISC, MISC + 256, MISC + 512, MISC + 1024
QU = MISC + 2048
AG = QU + 41 * RS
XL = (AG + 2 * 16384 + 11 * 1024 + 255) // 256 * 256
AGB = XL
K2_LDS = AGB + 48 * RB
PADV = N * 8
S16MAX = (CAP // 4 - 8) * 16
vSO, vP, vD, vE, vAe, vBw, vQ, vNp, vAc, vI = 8, (16, 24), (32, 92), 48, 64, 68, 72, 126, (80, 82), 84
vU, vW = 108, 92
vC4, vQ16, vE16, vS16 = 76, 77, 78, 79
vaS, vaE, vInc, vaN = (86, 87), 88, 89, (90, 91)
sM = [40 + 2 * k for k in range(6)]
sFM = (28, 30)
UNR = 4
M9 = "0x01ff01ff"
KCOP = "s[26:27], s[26:27] op_sel_hi:[1,0,0] clamp"

def flush_adds(y):
    t = vE + 8 * y
    e(f"""
    v_cvt_f64_f32 {vr(t, 2)}, v{vAc[y]}
    v_cvt_f64_f32 {vr(t + 2, 2)}, v{vAc[y] + 1}
    ds_add_f64 v{vaN[y]}, {vr(t, 2)} offset:{AG - QU}
    ds_add_f64 v{vaN[y]}, {vr(t + 2, 2)} offset:{AG - QU + 8}
""")

def flush_block(y, lab, back):
    e(f"""
{lab}:
    s_sub_u32 exec_lo, 0, s36
    s_sub_u32 exec_hi, 0, s37
""")
    flush_adds(y)
    e(f"""
    v_add_u32 v{vaN[y]}, {RS}, v{vaN[y]}
    v_mov_b64 {vr(vAc[y], 2)}, 0
    s_mov_b64 exec, -1
    s_branch {back}
""")

def qadv_block(y, lab, back):
    e(f"""
{lab}:
    s_sub_u32 exec_lo, 0, s36
    s_sub_u32 exec_hi, 0, s37
    ds_read_b64 {vr(vQ + 2 * y, 2)}, v{vaN[y]} offset:{RS}
    s_mov_b64 exec, -1
    s_branch {back}
""")

def gather_lines(dst, adr):
    out = []
    for q in range(4):
        for y in range(2):
            a = adr + 4 * y + q
            pre = f"    v_min_u32 v{a}, {PADV}, v{a}\n    v_and_b32 v{a}, -8, v{a}\n" if OPT["safe"] else ""
            out.append(pre + f"    buffer_load_dword v{dst + 2 * q + y}, v{a}, s[8:11], 0 offen")
    return out
def gathers(dst, adr):
    for l in gather_lines(dst, adr): e(l)

def mfma4(D, P, q): return f"    v_mfma_f32_4x4x4_16b_bf16 {vr(D + 4 * q, 4)}, {vr(vI, 2)}, {vr(P + 2 * q, 2)}, {vr(vQ, 4)}"
def mfma32(D): return f"    v_mfma_f32_32x32x16_bf16 {vr(D, 16)}, {vr(vAe, 4)}, {vr(vBw, 4)}, {vr(D, 16)}"

def core_lines(D):
    Ee = vE
    def p(r): return vr(r, 2)
    ex = [f"    v_exp_f32 v{Ee + k}, v{D + k}" for k in range(16)]
    sc = [f"    v_pk_fma_f32 {p(Ee + 2 * m)}, {p(Ee + 2 * m)}, {KCOP}" for m in range(8)]
    seq = [
        lambda o: f"v_pk_mul_f32 {p(D + o)}, {p(D + o)}, {p(Ee + o + 4)}",
        lambda o: f"v_pk_mul_f32 {p(D + o + 8)}, {p(D + o + 8)}, {p(Ee + o + 12)}",
        lambda o: f"v_pk_fma_f32 {p(D + o)}, {p(D + o + 4)}, {p(Ee + o)}, {p(D + o)}",
        lambda o: f"v_pk_fma_f32 {p(D + o + 8)}, {p(D + o + 12)}, {p(Ee + o + 8)}, {p(D + o + 8)}",
        lambda o: f"v_pk_mul_f32 {p(Ee + o)}, {p(Ee + o)}, {p(Ee + o + 4)}",
        lambda o: f"v_pk_mul_f32 {p(Ee + o + 8)}, {p(Ee + o + 8)}, {p(Ee + o + 12)}",
        lambda o: f"v_pk_mul_f32 {p(Ee + o + 4)}, {p(Ee + o)}, {p(Ee + o + 8)}",
        lambda o: f"v_pk_mul_f32 {p(D + o)}, {p(D + o)}, {p(Ee + o + 8)}",
        lambda o: f"v_rcp_f32 v{Ee + o + 4}, v{Ee + o + 4}",
        lambda o: f"v_rcp_f32 v{Ee + o + 5}, v{Ee + o + 5}",
        lambda o: f"v_pk_fma_f32 {p(D + o)}, {p(D + o + 8)}, {p(Ee + o)}, {p(D + o)}",
        lambda o: f"v_pk_fma_f32 {p(vAc[o // 2])}, {p(D + o)}, {p(Ee + o + 4)}, {p(vAc[o // 2])}",
    ]
    rest = ["    " + fn(o) for fn in seq for o in (0, 2)]
    if OPT["nocore"]: return ["    s_nop 0"] * 16, [], []
    return ex, sc, rest

def tile_iter(u):
    a = u % 2
    ex, sc, rest = core_lines(vD[a])
    Dn, Pn = vD[1 - a], vP[1 - a]
    m4 = [mfma4(Dn, Pn, q) if not OPT["nomfma"] else "    s_nop 0" for q in range(4)]
    for l in ex[0:3]: e(l)
    e(f"    s_cmp_lt_u32 s34, 3\n    s_cbranch_scc1 K2_LW{u}\n    s_waitcnt vmcnt(8) lgkmcnt(0)\nK2_LWB{u}:")
    for q in range(4):
        e(m4[q]); e(ex[3 + 2 * q]); e(ex[4 + 2 * q])
    e(f"    s_cmp_lt_u32 s34, 4\n    s_cbranch_scc1 K2_NG{u}")
    if not OPT["nogather"]: gathers(Pn, vSO)
    e(f"K2_NG{u}:")
    e(ex[11]); e(ex[12])
    if not OPT["nomfma"]: e(mfma32(Dn))
    for l in ex[13:16]: e(l)
    if not OPT["nolds"]: e(f"""
    ds_read_b128 {vr(vSO, 4)}, v{vaS[0]} offset:{SO + 16 * (u + 4)}
    ds_read_b128 {vr(vSO + 4, 4)}, v{vaS[1]} offset:{SO + 16 * (u + 4)}
    ds_read2_b64 {vr(vAe, 4)}, v{vaE} offset0:{4 * (u + 2)} offset1:{4 * (u + 2)}
""")
    for l in sc: e(l)
    if u == UNR - 1:
        e(f"    v_add_u32 v{vaE}, v{vInc}, v{vaE}\n    v_add_u32 v{vaS[0]}, {16 * UNR}, v{vaS[0]}\n    v_add_u32 v{vaS[1]}, {16 * UNR}, v{vaS[1]}")
    if OPT["prio"]:
        e(f"""
    s_cmp_gt_u32 s34, s69
    s_cbranch_scc1 K2_PR{u}
    s_setprio 2
    s_cmp_gt_u32 s34, s70
    s_cbranch_scc1 K2_PR{u}
    s_setprio 1
    s_cmp_gt_u32 s34, s68
    s_cbranch_scc1 K2_PR{u}
    s_setprio 0
K2_PR{u}:
""")
    for l in rest: e(l)
    for y in range(0 if OPT['noflush'] else 2):
        e(f"""
    s_and_b64 s[36:37], {sr(sFM[y], 2)}, s[32:33]
    s_cbranch_scc1 K2_FL{u}{y}
K2_FB{u}{y}:
    s_lshr_b64 {sr(sFM[y], 2)}, {sr(sFM[y], 2)}, 1
    s_and_b64 s[36:37], {sr(sFM[y], 2)}, s[32:33]
    s_cbranch_scc1 K2_QA{u}{y}
K2_QB{u}{y}:
""")
    e("    s_sub_u32 s34, s34, 1\n    s_cmp_eq_u32 s34, 0")
    e("    s_cbranch_scc1 K2_LDONE" if u < UNR - 1 else "    s_cbranch_scc0 K2_LOOP")

def x_frags(xa, xb):
    e(f"""
    v_xor_b32 v{xa}, v5, v6
    v_lshlrev_b32 v{xa}, 4, v{xa}
    v_lshl_or_b32 v{xa}, v6, 8, v{xa}
    v_add_u32 v{xa}, {XL}, v{xa}
    v_xor_b32 v{xa + 1}, 64, v{xa}
    v_xor_b32 v{xa + 2}, 0x80, v{xa}
    v_xor_b32 v{xa + 3}, 0xc0, v{xa}
""")
    for s in range(4):
        for T in range(3):
            e(f"    ds_read_b128 {vr(xb(T, s), 4)}, v{xa + s} offset:{4096 * T}")

def tile_addr(ta):
    e(f"""
    s_bfe_u32 s36, s21, 0x20001
    s_lshl_b32 s36, s36, 8
    s_lshl_b32 s37, s23, 5
    s_add_u32 s36, s36, s37
    s_add_u32 s36, s36, {QU}
    v_mul_u32_u24 v{ta}, {RS}, v6
    v_lshl_add_u32 v{ta}, v5, 6, v{ta}
    v_add_u32 v{ta}, s36, v{ta}
    v_add_u32 v{ta + 1}, {16 * RS}, v{ta}
    v_add_u32 v{ta + 2}, {32 * RS}, v{ta}
""")

def tile_mfma(W, acc, xb):
    for s in range(4):
        for T in range(3):
            e(f"    s_waitcnt lgkmcnt({11 - 3 * s - T})")
            c = "0" if s == 0 else vr(acc + 4 * T, 4)
            e(f"    v_mfma_f32_16x16x32_bf16 {vr(acc + 4 * T, 4)}, {vr(W + 4 * s, 4)}, {vr(xb(T, s), 4)}, {c}")

def prio(n):
    if OPT["prio"]: e(f"    s_setprio {n}")

def kernel2():
    e(f"""
.text
.globl mpnn_edge_kernel
.p2align 8
.type mpnn_edge_kernel,@function
mpnn_edge_kernel:
    s_load_dwordx2 s[4:5], s[0:1], 64       ; ws
    s_load_dwordx2 s[12:13], s[0:1], 0      ; x
    s_load_dwordx2 s[16:17], s[0:1], 48     ; out
    s_cmp_ge_u32 s2, 256
    s_cbranch_scc1 K2_END
    s_and_b32 s20, s2, 7
    s_lshl_b32 s20, s20, 5
    s_lshr_b32 s3, s2, 3
    s_or_b32 s20, s20, s3                   ; bucket
    v_lshrrev_b32 v3, 2, v0
    v_lshlrev_b32 v4, 4, v3
    s_lshr_b32 s34, s20, 2
    s_lshl_b32 s34, s34, 10
    s_and_b32 s35, s20, 3
    s_or_b32 s34, s34, s35
    s_lshl_b32 s34, s34, 2
    s_add_u32 s34, s34, {DESC}
    s_mov_b32 s6, {WSEND:#x}
    s_mov_b32 s7, 0x20000
    v_lshrrev_b32 v2, 6, v0
    v_and_b32 v1, 63, v0
    v_readfirstlane_b32 s21, v2
""")
    stamp(0, 4, 1)
    dbg(4, 1, True); dbg(5, 1, False)
    if OPT["dbg"]: e("    s_waitcnt vmcnt(0)")
    e(f"""
    v_lshrrev_b32 v124, 4, v0
    v_xor_b32 v125, v124, v0
    v_and_b32 v125, 15, v125
    v_lshlrev_b32 v125, 4, v125
    v_lshl_or_b32 v125, v124, 16, v125
    s_lshl_b32 s35, s20, 8
    v_add_u32 v125, s35, v125
    s_lshl_b32 s36, s21, 10
    s_add_u32 s36, s36, {XL}
    s_mov_b32 m0, s36
""")
    srd(12, N * 256)
    e(f"""
    s_mov_b32 s24, 0
    s_mov_b32 s25, 24
    s_mov_b32 s54, 0
    s_waitcnt lgkmcnt(0)
    buffer_load_dword v2, v4, s[4:7], s34 offen
    s_cmp_ge_u32 s21, 12
    s_cbranch_scc1 K2_NOX
    buffer_load_dwordx4 v125, s[12:15], 0 offen lds
K2_NOX:
    v_mul_u32_u24 v3, {RSTR}, v3
    v_and_b32 v4, 3, v0
    v_lshlrev_b32 v7, 4, v1                 ; lane*16
    v_mov_b32 v{vNp}, 0
K2_ROUND:
    v_lshlrev_b32 v124, 4, v0
    v_mov_b64 v[32:33], 0
    v_mov_b64 v[34:35], 0
    s_cmp_ge_u32 s21, 2
    s_cbranch_scc1 K2_NOZ
    ds_write_b128 v124, v[32:35] offset:{MISC}
    s_waitcnt lgkmcnt(0)
K2_NOZ:
    s_mov_b32 s34, {REC}
    s_barrier
""")
    stamp(13, 4, 1)
    e(f"""
    s_cmp_lt_u32 s21, 12
    s_cbranch_scc1 K2_WD1
    s_waitcnt vmcnt(0)
K2_WD1:
    s_waitcnt vmcnt(1)
""")
    stamp(1, 4, 1)
    e(f"""
    v_lshrrev_b32 v60, 16, v2               ; count
    v_and_b32 v61, 0xffff, v2               ; start
    v_subrev_u32 v60, s24, v60
    v_add3_u32 v61, v61, s24, v4
    v_min_i32 v62, s25, v60
    v_mad_u32_u24 v61, v61, 12, v3
    v_sub_u32 v62, v62, v4
""")
    e(f"    v_cmp_lt_i32 {sr(sM[0], 2)}, 0, v62\n    v_cmp_lt_i32 {sr(sM[1], 2)}, 4, v62\n    v_cmp_lt_i32 {sr(sM[2], 2)}, 8, v62")
    for k in range(6):
        if k >= 3:
            e(f"    v_cmp_lt_i32 {sr(sM[k], 2)}, {4 * k}, v62")
        e(f"    s_mov_b64 exec, {sr(sM[k], 2)}")
        if k >= 2:
            e(f"    s_cbranch_execz K2_RLD")
        e(f"    buffer_load_dwordx3 {vr(8 + 4 * k, 3)}, v61, s[4:7], s34 offen offset:{48 * k}")
    e(f"""
K2_RLD:
    s_mov_b64 exec, -1
""")
    stamp(2, 4, 1)
    e(f"""
    ds_write_b128 v124, v[32:35] offset:{EA}
    v_cmp_lt_i32 s[58:59], s25, v60
    v_mov_b32 v63, 4
    v_lshlrev_b32 v62, 2, v1
    s_cmp_ge_u32 s21, 8
    s_cbranch_scc1 K2_NOSO
    v_mov_b32 v36, {PADV}
    v_mov_b32 v37, v36
    v_mov_b32 v38, v36
    v_mov_b32 v39, v36
    ds_write_b128 v124, v[36:39] offset:{SO}
K2_NOSO:
    s_cmp_lg_u32 s54, 0
    s_cbranch_scc1 K2_SETD
    v_add_u32 v40, {AG}, v124
    ds_write_b128 v40, v[32:35]
    ds_write_b128 v40, v[32:35] offset:16384
    s_cmp_ge_u32 s21, 11
    s_cbranch_scc1 K2_NOZ3
    ds_write_b128 v40, v[32:35] offset:32768
K2_NOZ3:
    v_lshrrev_b32 v5, 4, v1                 ; g
    v_and_b32 v6, 15, v1                    ; n
    s_cmp_lt_u32 s20, 16
    s_cselect_b32 s22, 40, 39
    s_bfm_b64 s[78:79], s22, 0
    s_and_b32 s23, s21, 1                   ; c
    s_lshr_b32 s76, s21, 1                  ; group
    s_mov_b32 s26, {KC:#x}
    s_mov_b32 s72, {NL2E:#x}
    s_lshl_b32 s39, s23, 7
    s_add_u32 s8, s4, s39
    s_addc_u32 s9, s5, 0
    s_or_b32 s9, s9, 0x80000000
    s_mov_b32 s10, 0x10000
    s_mov_b32 s11, 0x00c00000
    s_lshl_b32 s38, s23, 10
    s_add_u32 s75, s38, {W3F}
    s_xor_b32 s74, s21, 8
    s_lshl_b32 s74, s74, 12
    s_add_u32 s74, s74, {W2F}
    s_mov_b32 s32, 1
    s_mov_b32 s33, 1
""")
    for s in range(4):
        e(f"    buffer_load_dwordx4 {vr(vW + 4 * s, 4)}, v7, s[4:7], s74 offen offset:{1024 * s}")
    e(f"    buffer_load_dwordx4 {vr(vBw, 4)}, v7, s[4:7], s75 offen")
    e(f"""
    s_mov_b64 exec, s[58:59]
    s_cbranch_execnz K2_MORE
K2_MOREB:
    s_waitcnt vmcnt(5)
    s_branch K2_RECS
K2_SETD:
    s_mov_b64 exec, s[58:59]
    s_cbranch_execnz K2_MORE2
K2_MOREB2:
    s_waitcnt vmcnt(0)
K2_RECS:
""")
    stamp(3, 4, 1)
    for k in range(6):
        e(f"    s_mov_b64 exec, {sr(sM[k], 2)}")
        if k >= 2: e("    s_cbranch_execz K2_HISTD")
        e(f"""
    v_lshrrev_b32 v{32 + k}, 24, v{10 + 4 * k}
    ds_add_rtn_u32 v{11 + 4 * k}, v{32 + k}, v63 offset:{CNT}
    v_and_b32 v{10 + 4 * k}, 0x3ffffff, v{10 + 4 * k}
""")
    e(f"""
K2_HISTD:
    s_mov_b64 exec, -1
    s_waitcnt lgkmcnt(0)
    s_barrier
""")
    stamp(4, 4, 1)
    e(f"""
    ds_read_b32 v{vC4}, v62 offset:{CNT}
    s_waitcnt lgkmcnt(0)
    v_add_u32 v{vQ16}, 12, v{vC4}
    v_and_b32 v{vQ16}, -16, v{vQ16}
    s_mov_b64 exec, s[78:79]
    v_max_u32 v{vQ16}, 16, v{vQ16}                  ; 16*quads
    s_mov_b64 exec, -1
    s_nop 0
    v_add_u32_dpp v{vE16}, v{vQ16}, v{vQ16} row_shr:1 row_mask:0xf bank_mask:0xf bound_ctrl:1
""")
    for c in ("row_shr:2 row_mask:0xf", "row_shr:4 row_mask:0xf", "row_shr:8 row_mask:0xf", "row_bcast:15 row_mask:0xa", "row_bcast:31 row_mask:0xc"):
        e(f"    s_nop 1\n    v_add_u32_dpp v{vE16}, v{vE16}, v{vE16} {c} bank_mask:0xf")
    e(f"""
    v_sub_u32 v{vS16}, v{vE16}, v{vQ16}
    v_readlane_b32 s34, v{vE16}, 63
""")
    for k in range(6):
        if k >= 3:
            e(f"    s_cmp_eq_u64 {sr(sM[k - 1], 2)}, 0\n    s_cbranch_scc1 K2_BPD") if k == 3 else None
            e(f"    s_cmp_eq_u64 {sr(sM[k], 2)}, 0\n    s_cbranch_scc1 K2_BPD")
        e(f"    ds_bpermute_b32 v{32 + k}, v{32 + k}, v{vS16}")
    e(f"""
K2_BPD:
    s_cmp_gt_u32 s34, {S16MAX}
    s_cbranch_scc1 K2_REDO
    s_add_u32 s34, s34, 48
    s_lshr_b32 s35, s34, 9
    s_bfe_u32 s34, s34, 0x30006
    s_mul_i32 s37, s76, s35
    s_waitcnt lgkmcnt(0)
""")
    for k in range(6):
        e(f"    s_mov_b64 exec, {sr(sM[k], 2)}")
        if k >= 2: e("    s_cbranch_execz K2_SCATD")
        e(f"""
    v_add_u32 v{32 + k}, v{32 + k}, v{11 + 4 * k}
    v_add_u32 v{11 + 4 * k}, v{32 + k}, v{32 + k}
    ds_write_b32 v{32 + k}, v{10 + 4 * k} offset:{SO}
    ds_write_b64 v{11 + 4 * k}, {vr(8 + 4 * k, 2)} offset:{EA}
""")
    e(f"""
K2_SCATD:
    s_cmp_lg_u32 s21, 15
    s_cbranch_scc1 K2_NOFL
    s_mov_b64 exec, s[78:79]
    v_lshrrev_b32 v46, 4, v{vE16}
    ds_write_b8 v46, v63 offset:{FL - 1}
K2_NOFL:
    s_min_u32 s38, s76, s34
    s_add_u32 s37, s37, s38
    s_lshl_b32 s60, s37, 6                  ; stream (0,X)
    s_cmp_lt_u32 s76, s34
    s_addc_u32 s35, s35, 0
    s_lshl_b32 s77, s35, 4
    s_add_u32 s61, s60, s77
    s_add_u32 s62, s61, s77
    s_mov_b64 exec, -1
    v_mov_b32 v{vaS[0]}, s60
    s_mov_b32 exec_lo, 0
    v_mov_b32 v{vaS[0]}, s62
    s_mov_b32 exec_lo, -1
    v_add_u32 v{vaS[1]}, s77, v{vaS[0]}
""")
    prio(3)
    e(f"""
    s_waitcnt lgkmcnt(0)
    s_barrier
""")
    stamp(5, 4, 1)
    def first_gathers():
        e(f"""
    ds_read_b128 {vr(vSO, 4)}, v{vaS[0]} offset:{SO}
    ds_read_b128 {vr(vSO + 4, 4)}, v{vaS[1]} offset:{SO}
    ds_read_b128 {vr(vE, 4)}, v{vaS[0]} offset:{SO + 16}
    ds_read_b128 {vr(vE + 4, 4)}, v{vaS[1]} offset:{SO + 16}
    s_waitcnt lgkmcnt(2)
""")
        gathers(vP[0], vSO)
        prio(2)
        e("    s_waitcnt lgkmcnt(0)")
        gathers(vP[1], vE)
    def addresses():
        e(f"""
    v_and_b32 v44, 31, v1
    v_lshrrev_b32 v46, 4, v{vaS[0]}
    v_add_u32 v46, v46, v44
    v_add_u32 v47, s35, v46
    ds_read_u8 v46, v46 offset:{FL}
    ds_read_u8 v47, v47 offset:{FL}
    s_add_u32 s63, s62, s77
    s_lshl_b32 s36, s23, 9
    s_add_u32 s36, s36, {QU}
    v_lshl_add_u32 v44, v44, 4, s36
""")
        for k in range(4):
            e(f"    v_cmp_ge_u32 vcc, s{60 + k}, v{vE16}\n    s_bcnt1_i32_b64 s{64 + k}, vcc\n    s_min_u32 s{64 + k}, s{64 + k}, s22\n    s_mulk_i32 s{64 + k}, {RS}")
        e(f"""
    v_sub_u32 v{vQ16}, v{vQ16}, v{vC4}
    v_add_u32 v{vNp}, v{vNp}, v{vQ16}
    v_add_u32 v{vaN[0]}, s64, v44
    v_add_u32 v{vaN[1]}, s65, v44
    v_mov_b32 v{vaE}, {ZR}
    v_mov_b32 v{vInc}, 0
    s_mov_b32 exec_lo, 0
    v_add_u32 v{vaN[0]}, s66, v44
    v_add_u32 v{vaN[1]}, s67, v44
    s_mov_b32 exec_lo, 0x55555555
    s_mov_b32 exec_hi, 0xaaaaaaaa
    v_bfe_u32 v45, v1, 1, 2
    v_mul_u32_u24 v45, s77, v45
    v_add_u32 v45, s60, v45
    v_and_b32 v{vaE}, 0x18, v1
    v_lshl_add_u32 v{vaE}, v45, 1, v{vaE}
    v_mov_b32 v{vInc}, {32 * UNR}
    s_mov_b64 exec, -1
    s_movk_i32 s36, 0x3f80
    s_mov_b32 s37, 0
    v_and_b32 v45, 0x30, v7
    v_lshlrev_b64 {vr(vI, 2)}, v45, s[36:37]
    s_mov_b32 s34, s35
""")
        if OPT["prio"]:
            e("    s_lshr_b32 s68, s35, 2\n    s_mul_i32 s69, s68, 3\n    s_lshl_b32 s70, s68, 1")
        e(f"""
    s_waitcnt lgkmcnt(0)
    v_cmp_ne_u32 {sr(sFM[0], 2)}, 0, v46
    v_cmp_ne_u32 {sr(sFM[1], 2)}, 0, v47
""")
    e(f"""
    s_cmp_lg_u32 s54, 0
    s_cbranch_scc1 K2_W3U
    s_cmp_lt_u32 s21, 8
    s_cbranch_scc1 K2_W3U
""")
    xbq = lambda T, s: 16 + 16 * T + 4 * s
    x_frags(8, xbq)
    tile_addr(120)
    e("    s_waitcnt vmcnt(0)")
    tile_mfma(vW, vU, xbq)
    e("    s_nop 3")
    for T in range(3):
        if T == 2:
            e(f"    s_mov_b32 exec_lo, {M9}\n    s_mov_b32 exec_hi, {M9}")
        for h in range(2):
            r = vU + 4 * T + 2 * h
            e(f"    v_pk_mul_f32 {vr(r, 2)}, {vr(r, 2)}, s[72:73] op_sel_hi:[1,0]")
        e(f"    ds_write2_b64 v{120 + T}, {vr(vU + 4 * T, 2)}, {vr(vU + 4 * T + 2, 2)} offset0:0 offset1:2")
    e("    s_mov_b64 exec, -1\n    s_waitcnt lgkmcnt(0)\n    s_barrier")
    first_gathers()
    stamp(11, 4, 1)
    prio(0)
    g = vW
    for r in range(12):
        e(f"    v_exp_f32 v{g + r}, v{vU + r}")
    for r in range(0, 12, 2):
        e(f"    v_pk_fma_f32 {vr(g + r, 2)}, {vr(g + r, 2)}, {KCOP}")
    for r in range(12):
        e(f"    v_rcp_f32 v{g + r}, v{g + r}")
    for T in range(3):
        if T == 2:
            e(f"    s_mov_b32 exec_lo, {M9}\n    s_mov_b32 exec_hi, {M9}")
        for r in (4 * T, 4 * T + 2):
            e(f"    v_pk_mul_f32 {vr(g + r, 2)}, {vr(g + r, 2)}, {vr(vU + r, 2)}")
        e(f"    ds_write2_b64 v{120 + T}, {vr(g + 4 * T, 2)}, {vr(g + 4 * T + 2, 2)} offset0:1 offset1:3")
    e("    s_mov_b64 exec, -1")
    addresses()
    e("    s_branch K2_W3D\nK2_W3U:")
    first_gathers()
    stamp(11, 4, 1)
    prio(0)
    addresses()
    e(f"""
    s_barrier
    s_cmp_lg_u32 s54, 0
    s_cbranch_scc1 K2_W3D
""")
    xbu = lambda T, s: (32 + 16 * T + 4 * s) if T < 2 else (8, 12, 64, 72)[s]
    x_frags(120, xbu)
    e("    s_waitcnt vmcnt(16)")
    tile_mfma(vW, vU, xbu)
    e(f"""
K2_W3D:
    ds_read_b64 {vr(vQ, 2)}, v{vaN[0]}
    ds_read_b64 {vr(vQ + 2, 2)}, v{vaN[1]}
    ds_read2_b64 {vr(vAe, 4)}, v{vaE} offset0:0 offset1:0
    ds_read_b128 {vr(vSO, 4)}, v{vaS[0]} offset:{SO + 32}
    ds_read_b128 {vr(vSO + 4, 4)}, v{vaS[1]} offset:{SO + 32}
    v_mov_b64 {vr(vAc[0], 2)}, 0
    v_mov_b64 {vr(vAc[1], 2)}, 0
    s_mov_b32 s54, 1
""")
    stamp(12, 4, 1)
    prio(3)
    e("    s_waitcnt vmcnt(8) lgkmcnt(0)")
    stamp(6, 4, 1)
    for q in range(4): e(mfma4(vD[0], vP[0], q))
    e("    s_cmp_lt_u32 s34, 3\n    s_cbranch_scc1 K2_NGP")
    gathers(vP[0], vSO)
    e(f"""
K2_NGP:
    s_nop 1
{mfma32(vD[0])}
    ds_read_b128 {vr(vSO, 4)}, v{vaS[0]} offset:{SO + 48}
    ds_read_b128 {vr(vSO + 4, 4)}, v{vaS[1]} offset:{SO + 48}
    ds_read2_b64 {vr(vAe, 4)}, v{vaE} offset0:4 offset1:4
""")
    for y in range(2):
        e(f"""
    s_and_b64 s[36:37], {sr(sFM[y], 2)}, s[32:33]
    s_cbranch_scc1 K2_QAP{y}
K2_QBP{y}:
""")
    e("    s_nop 4\nK2_LOOP:")
    for u in range(UNR):
        tile_iter(u)
    e("K2_LDONE:")
    for y in range(2):
        flush_adds(y)
    e(f"""
    v_mov_b32 v124, {MORE}
    ds_read_b32 v91, v124
    s_cmp_ge_u32 s21, 8
    s_cbranch_scc1 K2_NOU
    s_add_u32 s36, s74, 0x8000
""")
    for s in range(4):
        e(f"    buffer_load_dwordx4 {vr(vW + 4 * s, 4)}, v7, s[4:7], s36 offen offset:{1024 * s}")
    e(f"""
    v_mul_u32_u24 v88, {RB}, v6
    v_lshl_add_u32 v88, v5, 4, v88
    v_add_u32 v88, {AGB}, v88
    v_lshlrev_b32 v90, 16, v6
    v_lshl_or_b32 v90, v5, 3, v90
    s_lshl_b32 s36, s20, 8
    s_lshl_b32 s37, s21, 5
    s_add_u32 s36, s36, s37
    v_add_u32 v90, s36, v90
K2_NOU:
""")
    stamp(7, 4, 1)
    dbg(7, 1, False)
    srd(16, N * 256)
    e(f"""
    v_lshrrev_b32 v84, 4, v0
    v_subrev_u32 v84, 24, v84               ; node
    v_lshlrev_b32 v87, 2, v84
    v_cvt_f32_u32 v125, v{vNp}
    v_mul_u32_u24 v85, {RB}, v84
    v_mul_u32_u24 v84, {RS}, v84
    v_mul_f32 v125, 0xbe800000, v125
    v_lshl_add_u32 v85, v6, 4, v85
    v_lshl_add_u32 v84, v6, 4, v84
    ds_bpermute_b32 v86, v87, v125
    v_add_u32 v85, {AGB}, v85
    v_add_u32 v84, {QU}, v84
    s_waitcnt vmcnt(0) lgkmcnt(0)
    v_readfirstlane_b32 s57, v91
    s_barrier
""")
    stamp(8, 4, 1)
    e(f"""
    s_cmp_lg_u32 s57, 0
    s_cbranch_scc1 K2_NEXT
    s_cmp_lt_u32 s21, 6
    s_cbranch_scc1 K2_NOCV
""")
    for k in range(4):
        e(f"    ds_read_b128 {vr(16 + 4 * k, 4)}, v84 offset:{AG - QU + 256 * k}\n    ds_read_b64 {vr(8 + 2 * k, 2)}, v84 offset:{256 * k + 8}")
    for k in range(4):
        e(f"    s_waitcnt lgkmcnt({6 - 2 * k})")
        e(f"    v_cvt_f32_f64 v{32 + 2 * k}, {vr(16 + 4 * k, 2)}\n    v_cvt_f32_f64 v{33 + 2 * k}, {vr(18 + 4 * k, 2)}")
        e(f"    v_pk_fma_f32 {vr(32 + 2 * k, 2)}, {vr(8 + 2 * k, 2)}, v[86:87], {vr(32 + 2 * k, 2)} op_sel_hi:[1,0,1]")
        e(f"    v_cvt_pk_bf16_f32 v{40 + k}, v{32 + 2 * k}, v{33 + 2 * k}")
    e(f"""
    ds_write_b128 v85, v[40:43]
    s_waitcnt lgkmcnt(0)
K2_NOCV:
    s_barrier
    s_cmp_ge_u32 s21, 8
    s_cbranch_scc1 K2_FIN
""")
    for s in range(4):
        for T in range(3):
            e(f"    ds_read_b128 {vr(xbq(T, s), 4)}, v88 offset:{16 * RB * T + 64 * s}")
    for s in range(4):
        for T in range(3):
            e(f"    s_waitcnt lgkmcnt({11 - 3 * s - T})")
            e(f"    v_mfma_f32_16x16x32_bf16 {vr(vU + 4 * T, 4)}, {vr(vW + 4 * s, 4)}, {vr(xbq(T, s), 4)}, {vr(vU + 4 * T, 4)}")
    e("    v_add_u32 v89, 0x100000, v90\n    v_add_u32 v91, 0x200000, v90\n    s_nop 1")
    for m in range(6):
        if m == 2: e("    s_nop 0")
        e(f"    v_pk_mul_f32 {vr(16 + 2 * m, 2)}, {vr(vU + 2 * m, 2)}, s[72:73] op_sel_hi:[1,0]")
    for m in range(12):
        e(f"    v_exp_f32 v{16 + m}, v{16 + m}")
    for m in range(6):
        e(f"    v_pk_add_f32 {vr(16 + 2 * m, 2)}, {vr(16 + 2 * m, 2)}, 1.0 op_sel_hi:[1,0]")
    for T in range(3):
        for m in range(4 * T, 4 * T + 4):
            e(f"    v_rcp_f32 v{16 + m}, v{16 + m}")
        e("    s_nop 0")
        for m in (2 * T, 2 * T + 1):
            e(f"    v_pk_mul_f32 {vr(16 + 2 * m, 2)}, {vr(16 + 2 * m, 2)}, {vr(vU + 2 * m, 2)}")
        for m in (2 * T, 2 * T + 1):
            e(f"    v_cvt_pk_bf16_f32 v{32 + m}, v{16 + 2 * m}, v{17 + 2 * m}")
        e(f"    buffer_store_dwordx2 {vr(32 + 2 * T, 2)}, v{(90, 89, 91)[T]}, s[16:19], 0 offen")
    e("K2_FIN:")
    if OPT["dbg"]: e("    s_waitcnt vmcnt(0)"); dbg(8, 1, False)
    if OPT["stamps"]:
        stamp(9, 4, 1); e("    s_waitcnt vmcnt(0)"); stamp(10, 4, 1); stamp_out(4, 1)
    e("K2_END:\n    s_endpgm")
    for u in range(UNR):
        for y in range(0 if OPT['noflush'] else 2):
            flush_block(y, f"K2_FL{u}{y}", f"K2_FB{u}{y}")
            qadv_block(y, f"K2_QA{u}{y}", f"K2_QB{u}{y}")
        e(f"K2_LW{u}:\n    s_waitcnt vmcnt(0) lgkmcnt(0)\n    s_branch K2_LWB{u}")
    for y in range(2):
        qadv_block(y, f"K2_QAP{y}", f"K2_QBP{y}")
    for sfx in ("", "2"):
        e(f"""
K2_MORE{sfx}:
    v_mov_b32 v61, {MORE}
    ds_write_b32 v61, v63
    s_branch K2_MOREB{sfx}
""")
    e("""
K2_NEXT:
    s_add_u32 s24, s24, s25
    s_branch K2_ROUND
K2_REDO:
    s_mov_b32 s25, 4
    s_waitcnt vmcnt(0) lgkmcnt(0)
    s_barrier
    s_branch K2_ROUND
""")

def desc(name, vg, sg):
    e(f"""
.p2align 6
.amdhsa_kernel {name}
  .amdhsa_next_free_vgpr {vg}
  .amdhsa_next_free_sgpr {sg}
  .amdhsa_accum_offset {vg}
  .amdhsa_group_segment_fixed_size 0
  .amdhsa_kernarg_size 72
  .amdhsa_user_sgpr_count 2
  .amdhsa_user_sgpr_kernarg_segment_ptr 1
  .amdhsa_system_sgpr_workgroup_id_x 1
.end_amdhsa_kernel
""")

e(f"""
; @launch kernel=mpnn_bin_kernel grid=(256,1,1) block=(1024,1,1) lds={K1_LDS}
; @launch kernel=mpnn_edge_kernel grid=(256,1,1) block=(1024,1,1) lds={K2_LDS}
.amdgcn_target "amdgcn-amd-amdhsa--gfx950"
""")
kernel1()
kernel2()
e('.section .rodata,"a"')
desc("mpnn_bin_kernel", 128, 96)
desc("mpnn_edge_kernel", 128, 96)
open(sys.argv[1], "w").write("\n".join(L) + "\n")
```

```python
import sys, struct, math

def f2u(x): return struct.unpack("<I", struct.pack("<f", x))[0]

OPT = dict(dbg=0, safe=0, stamps=0, prio=1, nogather=0, nocore=0, nolds=0, nomfma=0, noflush=0)
for a in sys.argv[2:]:
    k, v = a.split("="); OPT[k] = int(v)

N, E = 10000, 320000
NB = 256
EPW = 1250
PT    = 0
DESC  = 0x280000
REC   = 0x2C0000
RSTR  = 15488
W2F   = 0x690000
WUT   = W2F + 0x8000
WUB   = WUT + 0x8000
W3F   = WUB + 0x8000
STAMP = W3F + 0x800
WSEND = STAMP + (0x80000 if OPT["stamps"] else 0)
NL2E = f2u(-1.4426950408889634)
KC   = f2u(1.0 / (2.0 ** 31 * math.log(2.0)))
NSC  = f2u(-2.0 ** -31)

L = []
def e(s=""):
    for ln in s.strip("\n").split("\n"):
        L.append(ln)
def vr(a, n): return f"v[{a}:{a + n - 1}]" if n > 1 else f"v{a}"
def sr(a, n): return f"s[{a}:{a + n - 1}]" if n > 1 else f"s{a}"

def srd(s, nrec, w3=0x20000):
    e(f"    s_mov_b32 s{s + 2}, {nrec:#x}\n    s_mov_b32 s{s + 3}, {w3:#x}")

def scan64(v):
    for c in ("row_shr:1 row_mask:0xf", "row_shr:2 row_mask:0xf", "row_shr:4 row_mask:0xf", "row_shr:8 row_mask:0xf",
              "row_bcast:15 row_mask:0xa", "row_bcast:31 row_mask:0xc"):
        e(f"    s_nop 1\n    v_add_u32_dpp v{v}, v{v}, v{v} {c} bank_mask:0xf")

NST = 16
def dbg(slot, kern, neg, wv=0):
    if not OPT["dbg"]: return
    e(f"""
    s_load_dwordx2 s[84:85], s[0:1], 56
    s_memrealtime s[88:89]
    s_waitcnt lgkmcnt(0)
    s_add_u32 s84, s84, {512 * (1 - kern)}
    s_addc_u32 s85, s85, 0
    s_mov_b32 s86, 256
    s_mov_b32 s87, 0x20000
    {"s_not_b32 s88, s88" if neg else ""}
    s_and_b32 s89, s21, 7
    s_cmp_lg_u32 s89, {wv}
    s_cbranch_scc1 DBG{slot}
    s_mov_b64 s[92:93], exec
    s_mov_b64 exec, 1
    v_mov_b32 v127, s88
    buffer_atomic_umax v127, off, s[84:87], 0 offset:{4 * slot}
    s_mov_b64 exec, s[92:93]
DBG{slot}:
""")
def stamp(i, srd_s, kern):
    if not OPT["stamps"]: return
    e(f"""
    s_memtime s[90:91]
    s_waitcnt lgkmcnt(0)
    v_writelane_b32 v127, s90, {i}
""")
    if i == 0:
        e("    s_memrealtime s[90:91]\n    s_waitcnt lgkmcnt(0)\n    v_writelane_b32 v127, s90, 14")
def stamp_out(srd_s, kern):
    if not OPT["stamps"]: return
    e(f"""
    s_memrealtime s[90:91]
    s_waitcnt lgkmcnt(0)
    v_writelane_b32 v127, s90, 15
    s_mov_b64 exec, 0xffff
    s_lshl_b32 s90, s2, 4
    s_add_u32 s90, s90, s21
    s_lshl_b32 s90, s90, 6
    s_add_u32 s90, s90, {STAMP + kern * 0x40000}
    v_mbcnt_lo_u32_b32 v125, -1, 0
    v_lshlrev_b32 v125, 2, v125
    buffer_store_dword v127, v125, s[{srd_s}:{srd_s + 3}], s90 offen
    s_mov_b64 exec, -1
""")

K1_CNT, K1_ST, K1_STG, K1_WL = 0, 1024, 2048, 2048 + 15360
K1_LDS = 84 * 1024
def kernel1():
    e("""
.text
.globl mpnn_bin_kernel
.p2align 8
.type mpnn_bin_kernel,@function
mpnn_bin_kernel:
    s_cmp_ge_u32 s2, 256
    s_cbranch_scc1 K1_END
    s_load_dwordx4 s[4:7], s[0:1], 0        ; x, e_attr
    s_load_dwordx4 s[8:11], s[0:1], 16
    s_load_dwordx4 s[12:15], s[0:1], 32
    s_load_dwordx2 s[16:17], s[0:1], 64     ; ws
    v_lshrrev_b32 v2, 6, v0
    v_and_b32 v1, 63, v0
    v_readfirstlane_b32 s21, v2
""")
    stamp(0, 16, 0)
    dbg(0, 0, True); dbg(1, 0, False)
    if OPT["dbg"]: e("    s_waitcnt vmcnt(0)")
    e("""
    s_cmp_ge_u32 s21, 10
    s_cbranch_scc1 K1_GEMM
    s_and_b32 s20, s2, 7
    s_lshl_b32 s20, s20, 5
    s_lshr_b32 s3, s2, 3
    s_or_b32 s20, s20, s3
    s_mul_i32 s22, s20, 5000
    s_lshl_b32 s23, s22, 1
    v_lshlrev_b32 v3, 3, v0
    v_lshlrev_b32 v4, 4, v0
    v_cmp_gt_u32 vcc, 625, v0
    v_mov_b32 v20, 0
    v_mov_b32 v21, 0
    v_mov_b32 v22, 0
    v_mov_b32 v23, 0
    s_mov_b64 s[44:45], vcc
    s_waitcnt lgkmcnt(0)
    s_mov_b32 s24, s10
    s_mov_b32 s25, s11
""")
    srd(24, E * 4)
    e("    s_mov_b32 s28, s8\n    s_mov_b32 s29, s9"); srd(28, E * 4)
    e("    s_mov_b32 s32, s6\n    s_mov_b32 s33, s7"); srd(32, E * 8)
    srd(16, WSEND)
    e(f"""
    s_mov_b64 exec, s[44:45]
    buffer_load_dwordx2 v[6:7], v3, s[24:27], s22 offen      ; dst
    buffer_load_dwordx2 v[8:9], v3, s[28:31], s22 offen      ; src
    buffer_load_dwordx4 v[10:13], v4, s[32:35], s23 offen
    s_mov_b64 exec, -1
    s_cmp_lg_u32 s21, 0
    s_cbranch_scc1 K1_NOZ
    ds_write_b128 v4, v[20:23] offset:{K1_CNT}
K1_NOZ:
    v_mov_b32 v24, 1
    s_waitcnt lgkmcnt(0)
    s_barrier
    s_mov_b64 exec, s[44:45]
    s_waitcnt vmcnt(2)
""")
    stamp(1, 16, 0)
    e(f"""
    v_and_b32 v14, 0xff, v6
    v_and_b32 v15, 0xff, v7
    v_lshlrev_b32 v14, 2, v14
    v_lshlrev_b32 v15, 2, v15
    ds_add_rtn_u32 v16, v14, v24 offset:{K1_CNT}
    ds_add_rtn_u32 v17, v15, v24 offset:{K1_CNT}
    v_lshrrev_b32 v6, 8, v6
    v_lshrrev_b32 v7, 8, v7
    v_lshlrev_b32 v6, 26, v6
    v_lshlrev_b32 v7, 26, v7
    s_mov_b64 exec, -1
    v_lshlrev_b32 v5, 4, v1
    s_waitcnt lgkmcnt(0)
    s_barrier
""")
    stamp(2, 16, 0)
    e(f"""
    ds_read_b128 v[20:23], v5 offset:{K1_CNT}
    s_waitcnt vmcnt(1)
    v_lshl_or_b32 v8, v8, 3, v6
    v_lshl_or_b32 v9, v9, 3, v7
    s_waitcnt lgkmcnt(0)
    v_add_u32 v25, v20, v21
    v_add_u32 v26, v25, v22
    v_add_u32 v27, v26, v23
    v_mov_b32 v28, v27
""")
    scan64(28)
    e(f"""
    v_sub_u32 v28, v28, v27
    v_add_u32 v29, v28, v20
    v_add_u32 v30, v28, v25
    v_add_u32 v31, v28, v26
    ds_write_b128 v5, v[28:31] offset:{K1_ST}
    ds_read_b32 v18, v14 offset:{K1_ST}
    ds_read_b32 v19, v15 offset:{K1_ST}
    s_cmp_lg_u32 s21, 9
    s_cbranch_scc1 K1_NOD
    v_lshl_or_b32 v32, v20, 16, v28
    v_lshl_or_b32 v33, v21, 16, v29
    v_lshl_or_b32 v34, v22, 16, v30
    v_lshl_or_b32 v35, v23, 16, v31
    s_lshl_b32 s36, s20, 4
    s_add_u32 s36, s36, {DESC}
    v_lshlrev_b32 v36, 12, v1
    buffer_store_dwordx4 v[32:35], v36, s[16:19], s36 offen
K1_NOD:
    s_mov_b64 exec, s[44:45]
    s_waitcnt lgkmcnt(0)
    v_add_u32 v18, v18, v16
    v_add_u32 v19, v19, v17
    v_mul_u32_u24 v18, 12, v18
    v_mul_u32_u24 v19, 12, v19
    v_add_u32 v18, {K1_STG}, v18
    v_add_u32 v19, {K1_STG}, v19
    s_cmp_lg_u32 s21, 9
    s_cbranch_scc1 K1_W0
    s_waitcnt vmcnt(1)
    s_branch K1_W1
K1_W0:
    s_waitcnt vmcnt(0)
K1_W1:
    ds_write2_b32 v18, v10, v11 offset0:0 offset1:1
    ds_write_b32 v18, v8 offset:8
    ds_write2_b32 v19, v12, v13 offset0:0 offset1:1
    ds_write_b32 v19, v9 offset:8
    s_mov_b64 exec, -1
    s_mul_i32 s36, s20, {RSTR}
    s_add_u32 s36, s36, {REC}
    s_add_u32 s37, s36, 10240
    s_waitcnt lgkmcnt(0)
    s_barrier
""")
    stamp(3, 16, 0)
    e(f"""
    ds_read_b128 v[20:23], v4 offset:{K1_STG}
    s_cmp_ge_u32 s21, 5
    s_cbranch_scc1 K1_C1
    ds_read_b128 v[24:27], v4 offset:{K1_STG + 10240}
    s_waitcnt lgkmcnt(0)
    buffer_store_dwordx4 v[24:27], v4, s[16:19], s37 offen
K1_C1:
    s_waitcnt lgkmcnt(0)
    buffer_store_dwordx4 v[20:23], v4, s[16:19], s36 offen
""")
    if OPT["dbg"]: e("    s_waitcnt vmcnt(0)"); dbg(2, 0, False)
    if OPT["stamps"]:
        stamp(4, 16, 0); e("    s_waitcnt vmcnt(0)"); stamp(5, 16, 0); stamp_out(16, 0)
    e(f"""
    s_endpgm
K1_GEMM:
    s_sub_u32 s22, s21, 10                  ; gi
    v_lshrrev_b32 v2, 4, v1                 ; g
    v_and_b32 v3, 15, v1                    ; n / i
    s_cmp_ge_u32 s2, 209
    s_cbranch_scc1 K1_JOBS
    s_lshr_b32 s23, s22, 1                  ; T
    s_and_b32 s24, s22, 1                   ; fh
    ; W1 -> LDS source offset: row (l/16), chunk (l%16) ^ ((l/16)<<1)
    v_lshlrev_b32 v4, 1, v2
    v_xor_b32 v4, v4, v3
    v_lshlrev_b32 v4, 4, v4
    v_lshl_or_b32 v4, v2, 8, v4
    s_mul_i32 s25, s2, 48
    s_lshl_b32 s26, s23, 4
    s_add_u32 s25, s25, s26
    v_add_u32 v5, s25, v3
    v_lshlrev_b32 v5, 8, v5
    v_lshl_or_b32 v5, v2, 4, v5
    s_waitcnt lgkmcnt(0)
""")
    srd(4, N * 256)
    srd(12, 128 * 256)
    srd(16, N * 256)
    for m in range(6):
        if m == 5:
            e("    s_cmp_ge_u32 s22, 2\n    s_cbranch_scc1 K1_DMAD")
        e(f"""
    s_add_u32 s27, s22, {6 * m}
    s_lshl_b32 s28, s27, 6
    s_and_b32 s28, s28, 0x80
    s_lshl_b32 s27, s27, 10
    v_xor_b32 v6, s28, v4
    s_add_u32 s28, s27, {K1_WL}
    s_mov_b32 m0, s28
    s_nop 0
    buffer_load_dwordx4 v6, s[12:15], s27 offen lds
""")
    e("K1_DMAD:")
    for s in range(4):
        e(f"    buffer_load_dwordx4 {vr(8 + 4 * s, 4)}, v5, s[4:7], 0 offen offset:{64 * s}")
    e(f"""
    v_lshrrev_b32 v24, 2, v3                ; r'
    v_and_b32 v25, 3, v3                    ; c'
    v_and_b32 v26, 1, v2
    v_lshl_or_b32 v26, v26, 2, v24          ; h(k)
    v_lshl_add_u32 v27, v2, 3, v24          ; 8g + r'
    v_lshlrev_b32 v27, 8, v27
    v_lshl_or_b32 v27, v25, 3, v27
    v_add_u32 v27, {K1_WL}, v27
    s_lshl_b32 s27, s24, 2
    v_xor_b32 v26, s27, v26
""")
    for f in range(4):
        e(f"    v_xor_b32 v{28 + f}, {f}, v26\n    v_lshl_add_u32 v{28 + f}, v{28 + f}, 5, v27")
    e(f"""
    s_lshl_b32 s27, s24, 7
    v_add_u32 v5, s27, v5
    s_mov_b32 s28, {NL2E:#x}
    s_mov_b32 s29, {NL2E:#x}
    s_barrier
    s_barrier
    s_waitcnt vmcnt(0)
    s_barrier
""")
    stamp(3, 16, 0)
    for s in range(4):
        for f in range(4):
            for u2 in range(2):
                e(f"    ds_read_b64_tr_b16 {vr(32 + 16 * f + 4 * s + 2 * u2, 2)}, v{28 + f} offset:{s * 8192 + u2 * 1024}")
    for s in range(4):
        for f in range(4):
            left = 32 - (8 * s + 2 * f + 2)
            e(f"    s_waitcnt lgkmcnt({min(left, 15)})")
            c = "0" if s == 0 else vr(96 + 4 * f, 4)
            e(f"    v_mfma_f32_16x16x32_bf16 {vr(96 + 4 * f, 4)}, {vr(32 + 16 * f + 4 * s, 4)}, {vr(8 + 4 * s, 4)}, {c}")
    e("    s_nop 4")
    for f in range(4):
        for h in range(2):
            r = 96 + 4 * f + 2 * h
            e(f"    v_pk_mul_f32 {vr(r, 2)}, {vr(r, 2)}, s[28:29]")
        for h in range(2):
            r = 96 + 4 * f + 2 * h
            e(f"    v_cvt_pk_bf16_f32 v{112 + 2 * f + h}, v{r}, v{r + 1}")
        if f % 2 == 1:
            e(f"    buffer_store_dwordx4 {vr(112 + 2 * (f - 1), 4)}, v5, s[16:19], 0 offen offset:{64 * (f // 2)}")
    if OPT["dbg"]: e("    s_waitcnt vmcnt(0)"); dbg(3, 0, False, 7)
    if OPT["stamps"]:
        srd(16, WSEND); stamp(4, 16, 0); e("    s_waitcnt vmcnt(0)"); stamp(5, 16, 0); stamp_out(16, 0)
    e(f"""
    s_endpgm
K1_JOBS:
    s_sub_u32 s23, s2, 209
    s_mul_i32 s23, s23, 6
    s_add_u32 s23, s23, s22
    s_waitcnt lgkmcnt(0)
""")
    srd(16, WSEND)
    e(f"""
    s_cmp_ge_u32 s23, 96
    s_cbranch_scc1 K1_JOB2
    s_lshr_b32 s24, s23, 5
    s_bfe_u32 s25, s23, 0x30002             ; f
    s_and_b32 s26, s23, 3                   ; s
    s_cmp_eq_u32 s24, 0
    s_cselect_b32 s28, s12, s14
    s_cselect_b32 s29, s13, s15
    s_mov_b32 s30, {256 * 256}
    s_mov_b32 s31, 0x20000
    ; column
    s_lshl_b32 s33, s25, 4                  ; 16 f
    v_add_u32 v4, s33, v3
    v_lshlrev_b32 v4, 1, v4
    ; row
    v_lshlrev_b32 v5, 11, v2                ; 8 g rows
    v_lshrrev_b32 v7, 1, v2
    v_lshlrev_b32 v7, 12, v7
    v_and_b32 v6, 1, v2
    v_lshl_or_b32 v7, v6, 9, v7             ; 16 (g>>1) + 2 (g&1) rows
    s_cmp_eq_u32 s24, 2
    s_cselect_b64 vcc, -1, 0
    s_cselect_b32 s32, 10, 13
    s_movk_i32 s33, 512
    s_cmovk_i32 s33, 8192
    s_cselect_b32 s34, {NSC:#x}, 1.0
    v_cndmask_b32 v5, v5, v7, vcc
    v_add_u32 v4, v4, v5
    s_lshl_b32 s40, s26, s32
    s_cmp_eq_u32 s24, 1
    s_cselect_b32 s36, 0, 0x8000
    s_add_u32 s40, s40, s36
    s_add_u32 s41, s40, s33
    s_add_u32 s42, s41, s33
    s_add_u32 s43, s42, s33
""")
    for m in range(8):
        e(f"    buffer_load_ushort v{8 + m}, v4, s[28:31], s{40 + m // 2} offen offset:{(m & 1) * 256}")
    e(f"""
    s_lshl_b32 s37, s23, 10
    s_add_u32 s37, s37, {W2F}
    v_lshlrev_b32 v6, 4, v1
    s_mov_b32 s38, 0x07060302
    s_waitcnt vmcnt(0)
""")
    for m in range(8):
        e(f"    v_lshlrev_b32 v{8 + m}, 16, v{8 + m}\n    v_mul_f32 v{8 + m}, s34, v{8 + m}")
    for m in range(4):
        e(f"    v_perm_b32 v{16 + m}, v{9 + 2 * m}, v{8 + 2 * m}, s38")
    e(f"""
    buffer_store_dwordx4 v[16:19], v6, s[16:19], s37 offen
    s_endpgm
K1_JOB2:
    s_cmp_ge_u32 s23, 98
    s_cbranch_scc1 K1_JOB3
    s_sub_u32 s24, s23, 96                  ; c
    s_mov_b32 s14, {260 * 256}
    s_mov_b32 s15, 0x20000
    v_and_b32 v2, 31, v1
    v_lshrrev_b32 v3, 5, v1
    v_lshl_or_b32 v2, v2, 1, v3             ; p & 63
    v_and_b32 v4, 0x23, v2
    v_bfe_u32 v5, v2, 2, 1
    v_lshl_or_b32 v4, v5, 4, v4
    v_bfe_u32 v5, v2, 3, 2
    v_lshl_or_b32 v4, v5, 2, v4             ; feature & 63
    v_lshlrev_b32 v4, 1, v4
    s_lshl_b32 s25, s24, 7
    s_add_u32 s25, s25, {256 * 256}
""")
    for d in range(4):
        e(f"    buffer_load_ushort v{8 + d}, v4, s[12:15], s25 offen offset:{d * 256}")
    e(f"""
    s_lshl_b32 s37, s24, 10
    s_add_u32 s37, s37, {W3F}
    v_lshlrev_b32 v6, 4, v1
    s_mov_b32 s34, {NL2E:#x}
    s_waitcnt vmcnt(0)
""")
    for d in range(4):
        e(f"    v_lshlrev_b32 v{8 + d}, 16, v{8 + d}\n    v_mul_f32 v{8 + d}, s34, v{8 + d}")
    e("""
    v_cvt_pk_bf16_f32 v16, v8, v9
    v_cvt_pk_bf16_f32 v17, v10, v11
    v_lshlrev_b32 v12, 16, v16
    v_and_b32 v13, 0xffff0000, v16
    v_lshlrev_b32 v14, 16, v17
    v_and_b32 v15, 0xffff0000, v17
    v_sub_f32 v8, v8, v12
    v_sub_f32 v9, v9, v13
    v_sub_f32 v10, v10, v14
    v_sub_f32 v11, v11, v15
    v_cvt_pk_bf16_f32 v18, v8, v9
    v_cvt_pk_bf16_f32 v19, v10, v11
    buffer_store_dwordx4 v[16:19], v6, s[16:19], s37 offen
    s_endpgm
K1_JOB3:
    s_cmp_lg_u32 s23, 98
    s_cbranch_scc1 K1_END
    v_mov_b32 v8, 0
    v_lshlrev_b32 v6, 2, v1
""")
    e(f"""
    s_mov_b32 s37, {PT + N * 256}
    buffer_store_dword v8, v6, s[16:19], s37 offen
K1_END:
    s_endpgm
""")

RS = 1056
RG, RB = 528, 272
CAP = 2048
EA, SO = 0, CAP * 8
MISC = SO + CAP * 4
ZR, CNT, MORE, FL = MISC, MISC + 256, MISC + 512, MISC + 1024
QU = MISC + 2048
AG = QU + 41 * RS
XL = (AG + 2 * 16384 + 11 * 1024 + 255) // 256 * 256
AGB = XL
K2_LDS = AGB + 48 * RB
PADV = N * 8
S16MAX = (CAP // 4 - 8) * 16
vSO, vP, vD, vE, vAe, vBw, vQ, vNp, vAc, vI = 8, (16, 24), (32, 92), 48, 64, 68, 72, 126, (80, 82), 84
vU, vW = 108, 92
vC4, vQ16, vE16, vS16 = 76, 77, 78, 79
vaS, vaE, vInc, vaN = (86, 87), 88, 89, (90, 91)
sM = [40 + 2 * k for k in range(6)]
sFM = (28, 30)
UNR = 4
M9 = "0x01ff01ff"
KCOP = "s[26:27], s[26:27] op_sel_hi:[1,0,0] clamp"

def flush_adds(y):
    t = vE + 8 * y
    e(f"""
    v_cvt_f64_f32 {vr(t, 2)}, v{vAc[y]}
    v_cvt_f64_f32 {vr(t + 2, 2)}, v{vAc[y] + 1}
    ds_add_f64 v{vaN[y]}, {vr(t, 2)} offset:{AG - QU}
    ds_add_f64 v{vaN[y]}, {vr(t + 2, 2)} offset:{AG - QU + 8}
""")

def flush_block(y, lab, back):
    e(f"""
{lab}:
    s_sub_u32 exec_lo, 0, s36
    s_sub_u32 exec_hi, 0, s37
""")
    flush_adds(y)
    e(f"""
    v_add_u32 v{vaN[y]}, {RS}, v{vaN[y]}
    v_mov_b64 {vr(vAc[y], 2)}, 0
    s_mov_b64 exec, -1
    s_branch {back}
""")

def qadv_block(y, lab, back):
    e(f"""
{lab}:
    s_sub_u32 exec_lo, 0, s36
    s_sub_u32 exec_hi, 0, s37
    ds_read_b64 {vr(vQ + 2 * y, 2)}, v{vaN[y]} offset:{RS}
    s_mov_b64 exec, -1
    s_branch {back}
""")

def gather_lines(dst, adr):
    out = []
    for q in range(4):
        for y in range(2):
            a = adr + 4 * y + q
            pre = f"    v_min_u32 v{a}, {PADV}, v{a}\n    v_and_b32 v{a}, -8, v{a}\n" if OPT["safe"] else ""
            out.append(pre + f"    buffer_load_dword v{dst + 2 * q + y}, v{a}, s[8:11], 0 offen")
    return out
def gathers(dst, adr):
    for l in gather_lines(dst, adr): e(l)

def mfma4(D, P, q): return f"    v_mfma_f32_4x4x4_16b_bf16 {vr(D + 4 * q, 4)}, {vr(vI, 2)}, {vr(P + 2 * q, 2)}, {vr(vQ, 4)}"
def mfma32(D): return f"    v_mfma_f32_32x32x16_bf16 {vr(D, 16)}, {vr(vAe, 4)}, {vr(vBw, 4)}, {vr(D, 16)}"

def core_lines(D):
    Ee = vE
    def p(r): return vr(r, 2)
    ex = [f"    v_exp_f32 v{Ee + k}, v{D + k}" for k in range(16)]
    sc = [f"    v_pk_fma_f32 {p(Ee + 2 * m)}, {p(Ee + 2 * m)}, {KCOP}" for m in range(8)]
    seq = [
        lambda o: f"v_pk_mul_f32 {p(D + o)}, {p(D + o)}, {p(Ee + o + 4)}",
        lambda o: f"v_pk_mul_f32 {p(D + o + 8)}, {p(D + o + 8)}, {p(Ee + o + 12)}",
        lambda o: f"v_pk_fma_f32 {p(D + o)}, {p(D + o + 4)}, {p(Ee + o)}, {p(D + o)}",
        lambda o: f"v_pk_fma_f32 {p(D + o + 8)}, {p(D + o + 12)}, {p(Ee + o + 8)}, {p(D + o + 8)}",
        lambda o: f"v_pk_mul_f32 {p(Ee + o)}, {p(Ee + o)}, {p(Ee + o + 4)}",
        lambda o: f"v_pk_mul_f32 {p(Ee + o + 8)}, {p(Ee + o + 8)}, {p(Ee + o + 12)}",
        lambda o: f"v_pk_mul_f32 {p(Ee + o + 4)}, {p(Ee + o)}, {p(Ee + o + 8)}",
        lambda o: f"v_pk_mul_f32 {p(D + o)}, {p(D + o)}, {p(Ee + o + 8)}",
        lambda o: f"v_rcp_f32 v{Ee + o + 4}, v{Ee + o + 4}",
        lambda o: f"v_rcp_f32 v{Ee + o + 5}, v{Ee + o + 5}",
        lambda o: f"v_pk_fma_f32 {p(D + o)}, {p(D + o + 8)}, {p(Ee + o)}, {p(D + o)}",
        lambda o: f"v_pk_fma_f32 {p(vAc[o // 2])}, {p(D + o)}, {p(Ee + o + 4)}, {p(vAc[o // 2])}",
    ]
    rest = ["    " + fn(o) for fn in seq for o in (0, 2)]
    if OPT["nocore"]: return ["    s_nop 0"] * 16, [], []
    return ex, sc, rest

def tile_iter(u):
    a = u % 2
    ex, sc, rest = core_lines(vD[a])
    Dn, Pn = vD[1 - a], vP[1 - a]
    m4 = [mfma4(Dn, Pn, q) if not OPT["nomfma"] else "    s_nop 0" for q in range(4)]
    for l in ex[0:3]: e(l)
    e(f"    s_cmp_lt_u32 s34, 3\n    s_cbranch_scc1 K2_LW{u}\n    s_waitcnt vmcnt(8) lgkmcnt(0)\nK2_LWB{u}:")
    for q in range(4):
        e(m4[q]); e(ex[3 + 2 * q]); e(ex[4 + 2 * q])
    e(f"    s_cmp_lt_u32 s34, 4\n    s_cbranch_scc1 K2_NG{u}")
    if not OPT["nogather"]: gathers(Pn, vSO)
    e(f"K2_NG{u}:")
    e(ex[11]); e(ex[12])
    if not OPT["nomfma"]: e(mfma32(Dn))
    for l in ex[13:16]: e(l)
    if not OPT["nolds"]: e(f"""
    ds_read_b128 {vr(vSO, 4)}, v{vaS[0]} offset:{SO + 16 * (u + 4)}
    ds_read_b128 {vr(vSO + 4, 4)}, v{vaS[1]} offset:{SO + 16 * (u + 4)}
    ds_read2_b64 {vr(vAe, 4)}, v{vaE} offset0:{4 * (u + 2)} offset1:{4 * (u + 2)}
""")
    for l in sc: e(l)
    if u == UNR - 1:
        e(f"    v_add_u32 v{vaE}, v{vInc}, v{vaE}\n    v_add_u32 v{vaS[0]}, {16 * UNR}, v{vaS[0]}\n    v_add_u32 v{vaS[1]}, {16 * UNR}, v{vaS[1]}")
    if OPT["prio"]:
        e(f"""
    s_cmp_gt_u32 s34, s69
    s_cbranch_scc1 K2_PR{u}
    s_setprio 2
    s_cmp_gt_u32 s34, s70
    s_cbranch_scc1 K2_PR{u}
    s_setprio 1
    s_cmp_gt_u32 s34, s68
    s_cbranch_scc1 K2_PR{u}
    s_setprio 0
K2_PR{u}:
""")
    for l in rest: e(l)
    for y in range(0 if OPT['noflush'] else 2):
        e(f"""
    s_and_b64 s[36:37], {sr(sFM[y], 2)}, s[32:33]
    s_cbranch_scc1 K2_FL{u}{y}
K2_FB{u}{y}:
    s_lshr_b64 {sr(sFM[y], 2)}, {sr(sFM[y], 2)}, 1
    s_and_b64 s[36:37], {sr(sFM[y], 2)}, s[32:33]
    s_cbranch_scc1 K2_QA{u}{y}
K2_QB{u}{y}:
""")
    e("    s_sub_u32 s34, s34, 1\n    s_cmp_eq_u32 s34, 0")
    e("    s_cbranch_scc1 K2_LDONE" if u < UNR - 1 else "    s_cbranch_scc0 K2_LOOP")

def x_frags(xa, xb):
    e(f"""
    v_xor_b32 v{xa}, v5, v6
    v_lshlrev_b32 v{xa}, 4, v{xa}
    v_lshl_or_b32 v{xa}, v6, 8, v{xa}
    v_add_u32 v{xa}, {XL}, v{xa}
    v_xor_b32 v{xa + 1}, 64, v{xa}
    v_xor_b32 v{xa + 2}, 0x80, v{xa}
    v_xor_b32 v{xa + 3}, 0xc0, v{xa}
""")
    for s in range(4):
        for T in range(3):
            e(f"    ds_read_b128 {vr(xb(T, s), 4)}, v{xa + s} offset:{4096 * T}")

def tile_addr(ta):
    e(f"""
    s_bfe_u32 s36, s21, 0x20001
    s_lshl_b32 s36, s36, 8
    s_lshl_b32 s37, s23, 5
    s_add_u32 s36, s36, s37
    s_add_u32 s36, s36, {QU}
    v_mul_u32_u24 v{ta}, {RS}, v6
    v_lshl_add_u32 v{ta}, v5, 6, v{ta}
    v_add_u32 v{ta}, s36, v{ta}
    v_add_u32 v{ta + 1}, {16 * RS}, v{ta}
    v_add_u32 v{ta + 2}, {32 * RS}, v{ta}
""")

def tile_mfma(W, acc, xb):
    for s in range(4):
        for T in range(3):
            e(f"    s_waitcnt lgkmcnt({11 - 3 * s - T})")
            c = "0" if s == 0 else vr(acc + 4 * T, 4)
            e(f"    v_mfma_f32_16x16x32_bf16 {vr(acc + 4 * T, 4)}, {vr(W + 4 * s, 4)}, {vr(xb(T, s), 4)}, {c}")

def prio(n):
    if OPT["prio"]: e(f"    s_setprio {n}")

def kernel2():
    e(f"""
.text
.globl mpnn_edge_kernel
.p2align 8
.type mpnn_edge_kernel,@function
mpnn_edge_kernel:
    s_load_dwordx2 s[4:5], s[0:1], 64       ; ws
    s_load_dwordx2 s[12:13], s[0:1], 0      ; x
    s_load_dwordx2 s[16:17], s[0:1], 48     ; out
    s_cmp_ge_u32 s2, 256
    s_cbranch_scc1 K2_END
    s_and_b32 s20, s2, 7
    s_lshl_b32 s20, s20, 5
    s_lshr_b32 s3, s2, 3
    s_or_b32 s20, s20, s3                   ; bucket
    v_lshrrev_b32 v3, 2, v0
    v_lshlrev_b32 v4, 4, v3
    s_lshr_b32 s34, s20, 2
    s_lshl_b32 s34, s34, 10
    s_and_b32 s35, s20, 3
    s_or_b32 s34, s34, s35
    s_lshl_b32 s34, s34, 2
    s_add_u32 s34, s34, {DESC}
    s_mov_b32 s6, {WSEND:#x}
    s_mov_b32 s7, 0x20000
    v_lshrrev_b32 v2, 6, v0
    v_and_b32 v1, 63, v0
    v_readfirstlane_b32 s21, v2
""")
    stamp(0, 4, 1)
    dbg(4, 1, True); dbg(5, 1, False)
    if OPT["dbg"]: e("    s_waitcnt vmcnt(0)")
    e(f"""
    v_lshrrev_b32 v124, 4, v0
    v_xor_b32 v125, v124, v0
    v_and_b32 v125, 15, v125
    v_lshlrev_b32 v125, 4, v125
    v_lshl_or_b32 v125, v124, 16, v125
    s_lshl_b32 s35, s20, 8
    v_add_u32 v125, s35, v125
    s_lshl_b32 s36, s21, 10
    s_add_u32 s36, s36, {XL}
    s_mov_b32 m0, s36
""")
    srd(12, N * 256)
    e(f"""
    s_mov_b32 s24, 0
    s_mov_b32 s25, 24
    s_mov_b32 s54, 0
    s_waitcnt lgkmcnt(0)
    buffer_load_dword v2, v4, s[4:7], s34 offen
    s_cmp_ge_u32 s21, 12
    s_cbranch_scc1 K2_NOX
    buffer_load_dwordx4 v125, s[12:15], 0 offen lds
K2_NOX:
    v_mul_u32_u24 v3, {RSTR}, v3
    v_and_b32 v4, 3, v0
    v_lshlrev_b32 v7, 4, v1                 ; lane*16
    v_mov_b32 v{vNp}, 0
K2_ROUND:
    v_lshlrev_b32 v124, 4, v0
    v_mov_b64 v[32:33], 0
    v_mov_b64 v[34:35], 0
    s_cmp_ge_u32 s21, 2
    s_cbranch_scc1 K2_NOZ
    ds_write_b128 v124, v[32:35] offset:{MISC}
    s_waitcnt lgkmcnt(0)
K2_NOZ:
    s_mov_b32 s34, {REC}
    s_barrier
""")
    stamp(13, 4, 1)
    e(f"""
    s_cmp_lt_u32 s21, 12
    s_cbranch_scc1 K2_WD1
    s_waitcnt vmcnt(0)
K2_WD1:
    s_waitcnt vmcnt(1)
""")
    stamp(1, 4, 1)
    e(f"""
    v_lshrrev_b32 v60, 16, v2               ; count
    v_and_b32 v61, 0xffff, v2               ; start
    v_subrev_u32 v60, s24, v60
    v_add3_u32 v61, v61, s24, v4
    v_min_i32 v62, s25, v60
    v_mad_u32_u24 v61, v61, 12, v3
    v_sub_u32 v62, v62, v4
""")
    e(f"    v_cmp_lt_i32 {sr(sM[0], 2)}, 0, v62\n    v_cmp_lt_i32 {sr(sM[1], 2)}, 4, v62\n    v_cmp_lt_i32 {sr(sM[2], 2)}, 8, v62")
    for k in range(6):
        if k >= 3:
            e(f"    v_cmp_lt_i32 {sr(sM[k], 2)}, {4 * k}, v62")
        e(f"    s_mov_b64 exec, {sr(sM[k], 2)}")
        if k >= 2:
            e(f"    s_cbranch_execz K2_RLD")
        e(f"    buffer_load_dwordx3 {vr(8 + 4 * k, 3)}, v61, s[4:7], s34 offen offset:{48 * k}")
    e(f"""
K2_RLD:
    s_mov_b64 exec, -1
""")
    stamp(2, 4, 1)
    e(f"""
    ds_write_b128 v124, v[32:35] offset:{EA}
    v_cmp_lt_i32 s[58:59], s25, v60
    v_mov_b32 v63, 4
    v_lshlrev_b32 v62, 2, v1
    s_cmp_ge_u32 s21, 8
    s_cbranch_scc1 K2_NOSO
    v_mov_b32 v36, {PADV}
    v_mov_b32 v37, v36
    v_mov_b32 v38, v36
    v_mov_b32 v39, v36
    ds_write_b128 v124, v[36:39] offset:{SO}
K2_NOSO:
    s_cmp_lg_u32 s54, 0
    s_cbranch_scc1 K2_SETD
    v_add_u32 v40, {AG}, v124
    ds_write_b128 v40, v[32:35]
    ds_write_b128 v40, v[32:35] offset:16384
    s_cmp_ge_u32 s21, 11
    s_cbranch_scc1 K2_NOZ3
    ds_write_b128 v40, v[32:35] offset:32768
K2_NOZ3:
    v_lshrrev_b32 v5, 4, v1                 ; g
    v_and_b32 v6, 15, v1                    ; n
    s_cmp_lt_u32 s20, 16
    s_cselect_b32 s22, 40, 39
    s_bfm_b64 s[78:79], s22, 0
    s_and_b32 s23, s21, 1                   ; c
    s_lshr_b32 s76, s21, 1                  ; group
    s_mov_b32 s26, {KC:#x}
    s_mov_b32 s72, {NL2E:#x}
    s_lshl_b32 s39, s23, 7
    s_add_u32 s8, s4, s39
    s_addc_u32 s9, s5, 0
    s_or_b32 s9, s9, 0x80000000
    s_mov_b32 s10, 0x10000
    s_mov_b32 s11, 0x00c00000
    s_lshl_b32 s38, s23, 10
    s_add_u32 s75, s38, {W3F}
    s_xor_b32 s74, s21, 8
    s_lshl_b32 s74, s74, 12
    s_add_u32 s74, s74, {W2F}
    s_mov_b32 s32, 1
    s_mov_b32 s33, 1
""")
    for s in range(4):
        e(f"    buffer_load_dwordx4 {vr(vW + 4 * s, 4)}, v7, s[4:7], s74 offen offset:{1024 * s}")
    e(f"    buffer_load_dwordx4 {vr(vBw, 4)}, v7, s[4:7], s75 offen")
    e(f"""
    s_mov_b64 exec, s[58:59]
    s_cbranch_execnz K2_MORE
K2_MOREB:
    s_waitcnt vmcnt(5)
    s_branch K2_RECS
K2_SETD:
    s_mov_b64 exec, s[58:59]
    s_cbranch_execnz K2_MORE2
K2_MOREB2:
    s_waitcnt vmcnt(0)
K2_RECS:
""")
    stamp(3, 4, 1)
    for k in range(6):
        e(f"    s_mov_b64 exec, {sr(sM[k], 2)}")
        if k >= 2: e("    s_cbranch_execz K2_HISTD")
        e(f"""
    v_lshrrev_b32 v{32 + k}, 24, v{10 + 4 * k}
    ds_add_rtn_u32 v{11 + 4 * k}, v{32 + k}, v63 offset:{CNT}
    v_and_b32 v{10 + 4 * k}, 0x3ffffff, v{10 + 4 * k}
""")
    e(f"""
K2_HISTD:
    s_mov_b64 exec, -1
    s_waitcnt lgkmcnt(0)
    s_barrier
""")
    stamp(4, 4, 1)
    e(f"""
    ds_read_b32 v{vC4}, v62 offset:{CNT}
    s_waitcnt lgkmcnt(0)
    v_add_u32 v{vQ16}, 12, v{vC4}
    v_and_b32 v{vQ16}, -16, v{vQ16}
    s_mov_b64 exec, s[78:79]
    v_max_u32 v{vQ16}, 16, v{vQ16}                  ; 16*quads
    s_mov_b64 exec, -1
    s_nop 0
    v_add_u32_dpp v{vE16}, v{vQ16}, v{vQ16} row_shr:1 row_mask:0xf bank_mask:0xf bound_ctrl:1
""")
    for c in ("row_shr:2 row_mask:0xf", "row_shr:4 row_mask:0xf", "row_shr:8 row_mask:0xf", "row_bcast:15 row_mask:0xa", "row_bcast:31 row_mask:0xc"):
        e(f"    s_nop 1\n    v_add_u32_dpp v{vE16}, v{vE16}, v{vE16} {c} bank_mask:0xf")
    e(f"""
    v_sub_u32 v{vS16}, v{vE16}, v{vQ16}
    v_readlane_b32 s34, v{vE16}, 63
""")
    for k in range(6):
        if k >= 3:
            e(f"    s_cmp_eq_u64 {sr(sM[k - 1], 2)}, 0\n    s_cbranch_scc1 K2_BPD") if k == 3 else None
            e(f"    s_cmp_eq_u64 {sr(sM[k], 2)}, 0\n    s_cbranch_scc1 K2_BPD")
        e(f"    ds_bpermute_b32 v{32 + k}, v{32 + k}, v{vS16}")
    e(f"""
K2_BPD:
    s_cmp_gt_u32 s34, {S16MAX}
    s_cbranch_scc1 K2_REDO
    s_add_u32 s34, s34, 48
    s_lshr_b32 s35, s34, 9
    s_bfe_u32 s34, s34, 0x30006
    s_mul_i32 s37, s76, s35
    s_waitcnt lgkmcnt(0)
""")
    for k in range(6):
        e(f"    s_mov_b64 exec, {sr(sM[k], 2)}")
        if k >= 2: e("    s_cbranch_execz K2_SCATD")
        e(f"""
    v_add_u32 v{32 + k}, v{32 + k}, v{11 + 4 * k}
    v_add_u32 v{11 + 4 * k}, v{32 + k}, v{32 + k}
    ds_write_b32 v{32 + k}, v{10 + 4 * k} offset:{SO}
    ds_write_b64 v{11 + 4 * k}, {vr(8 + 4 * k, 2)} offset:{EA}
""")
    e(f"""
K2_SCATD:
    s_cmp_lg_u32 s21, 15
    s_cbranch_scc1 K2_NOFL
    s_mov_b64 exec, s[78:79]
    v_lshrrev_b32 v46, 4, v{vE16}
    ds_write_b8 v46, v63 offset:{FL - 1}
K2_NOFL:
    s_min_u32 s38, s76, s34
    s_add_u32 s37, s37, s38
    s_lshl_b32 s60, s37, 6                  ; stream (0,X)
    s_cmp_lt_u32 s76, s34
    s_addc_u32 s35, s35, 0
    s_lshl_b32 s77, s35, 4
    s_add_u32 s61, s60, s77
    s_add_u32 s62, s61, s77
    s_mov_b64 exec, -1
    v_mov_b32 v{vaS[0]}, s60
    s_mov_b32 exec_lo, 0
    v_mov_b32 v{vaS[0]}, s62
    s_mov_b32 exec_lo, -1
    v_add_u32 v{vaS[1]}, s77, v{vaS[0]}
""")
    prio(3)
    e(f"""
    s_waitcnt lgkmcnt(0)
    s_barrier
""")
    stamp(5, 4, 1)
    def first_gathers():
        e(f"""
    ds_read_b128 {vr(vSO, 4)}, v{vaS[0]} offset:{SO}
    ds_read_b128 {vr(vSO + 4, 4)}, v{vaS[1]} offset:{SO}
    ds_read_b128 {vr(vE, 4)}, v{vaS[0]} offset:{SO + 16}
    ds_read_b128 {vr(vE + 4, 4)}, v{vaS[1]} offset:{SO + 16}
    s_waitcnt lgkmcnt(2)
""")
        gathers(vP[0], vSO)
        prio(2)
        e("    s_waitcnt lgkmcnt(0)")
        gathers(vP[1], vE)
    def addresses():
        e(f"""
    v_and_b32 v44, 31, v1
    v_lshrrev_b32 v46, 4, v{vaS[0]}
    v_add_u32 v46, v46, v44
    v_add_u32 v47, s35, v46
    ds_read_u8 v46, v46 offset:{FL}
    ds_read_u8 v47, v47 offset:{FL}
    s_add_u32 s63, s62, s77
    s_lshl_b32 s36, s23, 9
    s_add_u32 s36, s36, {QU}
    v_lshl_add_u32 v44, v44, 4, s36
""")
        for k in range(4):
            e(f"    v_cmp_ge_u32 vcc, s{60 + k}, v{vE16}\n    s_bcnt1_i32_b64 s{64 + k}, vcc\n    s_min_u32 s{64 + k}, s{64 + k}, s22\n    s_mulk_i32 s{64 + k}, {RS}")
        e(f"""
    v_sub_u32 v{vQ16}, v{vQ16}, v{vC4}
    v_add_u32 v{vNp}, v{vNp}, v{vQ16}
    v_add_u32 v{vaN[0]}, s64, v44
    v_add_u32 v{vaN[1]}, s65, v44
    v_mov_b32 v{vaE}, {ZR}
    v_mov_b32 v{vInc}, 0
    s_mov_b32 exec_lo, 0
    v_add_u32 v{vaN[0]}, s66, v44
    v_add_u32 v{vaN[1]}, s67, v44
    s_mov_b32 exec_lo, 0x55555555
    s_mov_b32 exec_hi, 0xaaaaaaaa
    v_bfe_u32 v45, v1, 1, 2
    v_mul_u32_u24 v45, s77, v45
    v_add_u32 v45, s60, v45
    v_and_b32 v{vaE}, 0x18, v1
    v_lshl_add_u32 v{vaE}, v45, 1, v{vaE}
    v_mov_b32 v{vInc}, {32 * UNR}
    s_mov_b64 exec, -1
    s_movk_i32 s36, 0x3f80
    s_mov_b32 s37, 0
    v_and_b32 v45, 0x30, v7
    v_lshlrev_b64 {vr(vI, 2)}, v45, s[36:37]
    s_mov_b32 s34, s35
""")
        if OPT["prio"]:
            e("    s_lshr_b32 s68, s35, 2\n    s_mul_i32 s69, s68, 3\n    s_lshl_b32 s70, s68, 1")
        e(f"""
    s_waitcnt lgkmcnt(0)
    v_cmp_ne_u32 {sr(sFM[0], 2)}, 0, v46
    v_cmp_ne_u32 {sr(sFM[1], 2)}, 0, v47
""")
    e(f"""
    s_cmp_lg_u32 s54, 0
    s_cbranch_scc1 K2_W3U
    s_cmp_lt_u32 s21, 8
    s_cbranch_scc1 K2_W3U
""")
    xbq = lambda T, s: 16 + 16 * T + 4 * s
    x_frags(8, xbq)
    tile_addr(120)
    e("    s_waitcnt vmcnt(0)")
    tile_mfma(vW, vU, xbq)
    e("    s_nop 3")
    for T in range(3):
        if T == 2:
            e(f"    s_mov_b32 exec_lo, {M9}\n    s_mov_b32 exec_hi, {M9}")
        for h in range(2):
            r = vU + 4 * T + 2 * h
            e(f"    v_pk_mul_f32 {vr(r, 2)}, {vr(r, 2)}, s[72:73] op_sel_hi:[1,0]")
        e(f"    ds_write2_b64 v{120 + T}, {vr(vU + 4 * T, 2)}, {vr(vU + 4 * T + 2, 2)} offset0:0 offset1:2")
    e("    s_mov_b64 exec, -1\n    s_waitcnt lgkmcnt(0)\n    s_barrier")
    first_gathers()
    stamp(11, 4, 1)
    prio(0)
    g = vW
    for r in range(12):
        e(f"    v_exp_f32 v{g + r}, v{vU + r}")
    for r in range(0, 12, 2):
        e(f"    v_pk_fma_f32 {vr(g + r, 2)}, {vr(g + r, 2)}, {KCOP}")
    for r in range(12):
        e(f"    v_rcp_f32 v{g + r}, v{g + r}")
    for T in range(3):
        if T == 2:
            e(f"    s_mov_b32 exec_lo, {M9}\n    s_mov_b32 exec_hi, {M9}")
        for r in (4 * T, 4 * T + 2):
            e(f"    v_pk_mul_f32 {vr(g + r, 2)}, {vr(g + r, 2)}, {vr(vU + r, 2)}")
        e(f"    ds_write2_b64 v{120 + T}, {vr(g + 4 * T, 2)}, {vr(g + 4 * T + 2, 2)} offset0:1 offset1:3")
    e("    s_mov_b64 exec, -1")
    addresses()
    e("    s_branch K2_W3D\nK2_W3U:")
    first_gathers()
    stamp(11, 4, 1)
    prio(0)
    addresses()
    e(f"""
    s_barrier
    s_cmp_lg_u32 s54, 0
    s_cbranch_scc1 K2_W3D
""")
    xbu = lambda T, s: (32 + 16 * T + 4 * s) if T < 2 else (8, 12, 64, 72)[s]
    x_frags(120, xbu)
    e("    s_waitcnt vmcnt(16)")
    tile_mfma(vW, vU, xbu)
    e(f"""
K2_W3D:
    ds_read_b64 {vr(vQ, 2)}, v{vaN[0]}
    ds_read_b64 {vr(vQ + 2, 2)}, v{vaN[1]}
    ds_read2_b64 {vr(vAe, 4)}, v{vaE} offset0:0 offset1:0
    ds_read_b128 {vr(vSO, 4)}, v{vaS[0]} offset:{SO + 32}
    ds_read_b128 {vr(vSO + 4, 4)}, v{vaS[1]} offset:{SO + 32}
    v_mov_b64 {vr(vAc[0], 2)}, 0
    v_mov_b64 {vr(vAc[1], 2)}, 0
    s_mov_b32 s54, 1
""")
    stamp(12, 4, 1)
    prio(3)
    e("    s_waitcnt vmcnt(8) lgkmcnt(0)")
    stamp(6, 4, 1)
    for q in range(4): e(mfma4(vD[0], vP[0], q))
    e("    s_cmp_lt_u32 s34, 3\n    s_cbranch_scc1 K2_NGP")
    gathers(vP[0], vSO)
    e(f"""
K2_NGP:
    s_nop 1
{mfma32(vD[0])}
    ds_read_b128 {vr(vSO, 4)}, v{vaS[0]} offset:{SO + 48}
    ds_read_b128 {vr(vSO + 4, 4)}, v{vaS[1]} offset:{SO + 48}
    ds_read2_b64 {vr(vAe, 4)}, v{vaE} offset0:4 offset1:4
""")
    for y in range(2):
        e(f"""
    s_and_b64 s[36:37], {sr(sFM[y], 2)}, s[32:33]
    s_cbranch_scc1 K2_QAP{y}
K2_QBP{y}:
""")
    e("    s_nop 4\nK2_LOOP:")
    for u in range(UNR):
        tile_iter(u)
    e("K2_LDONE:")
    for y in range(2):
        flush_adds(y)
    e(f"""
    v_mov_b32 v124, {MORE}
    ds_read_b32 v91, v124
    s_cmp_ge_u32 s21, 8
    s_cbranch_scc1 K2_NOU
    s_add_u32 s36, s74, 0x8000
""")
    for s in range(4):
        e(f"    buffer_load_dwordx4 {vr(vW + 4 * s, 4)}, v7, s[4:7], s36 offen offset:{1024 * s}")
    e(f"""
    v_mul_u32_u24 v88, {RB}, v6
    v_lshl_add_u32 v88, v5, 4, v88
    v_add_u32 v88, {AGB}, v88
    v_lshlrev_b32 v90, 16, v6
    v_lshl_or_b32 v90, v5, 3, v90
    s_lshl_b32 s36, s20, 8
    s_lshl_b32 s37, s21, 5
    s_add_u32 s36, s36, s37
    v_add_u32 v90, s36, v90
K2_NOU:
""")
    stamp(7, 4, 1)
    dbg(7, 1, False, 7)
    srd(16, N * 256)
    e(f"""
    v_lshrrev_b32 v84, 4, v0
    v_subrev_u32 v84, 24, v84               ; node
    v_lshlrev_b32 v87, 2, v84
    v_cvt_f32_u32 v125, v{vNp}
    v_mul_u32_u24 v85, {RB}, v84
    v_mul_u32_u24 v84, {RS}, v84
    v_mul_f32 v125, 0xbe800000, v125
    v_lshl_add_u32 v85, v6, 4, v85
    v_lshl_add_u32 v84, v6, 4, v84
    ds_bpermute_b32 v86, v87, v125
    v_add_u32 v85, {AGB}, v85
    v_add_u32 v84, {QU}, v84
    s_waitcnt vmcnt(0) lgkmcnt(0)
    v_readfirstlane_b32 s57, v91
    s_barrier
""")
    stamp(8, 4, 1)
    e(f"""
    s_cmp_lg_u32 s57, 0
    s_cbranch_scc1 K2_NEXT
    s_cmp_lt_u32 s21, 6
    s_cbranch_scc1 K2_NOCV
""")
    for k in range(4):
        e(f"    ds_read_b128 {vr(16 + 4 * k, 4)}, v84 offset:{AG - QU + 256 * k}\n    ds_read_b64 {vr(8 + 2 * k, 2)}, v84 offset:{256 * k + 8}")
    for k in range(4):
        e(f"    s_waitcnt lgkmcnt({6 - 2 * k})")
        e(f"    v_cvt_f32_f64 v{32 + 2 * k}, {vr(16 + 4 * k, 2)}\n    v_cvt_f32_f64 v{33 + 2 * k}, {vr(18 + 4 * k, 2)}")
        e(f"    v_pk_fma_f32 {vr(32 + 2 * k, 2)}, {vr(8 + 2 * k, 2)}, v[86:87], {vr(32 + 2 * k, 2)} op_sel_hi:[1,0,1]")
        e(f"    v_cvt_pk_bf16_f32 v{40 + k}, v{32 + 2 * k}, v{33 + 2 * k}")
    e(f"""
    ds_write_b128 v85, v[40:43]
    s_waitcnt lgkmcnt(0)
K2_NOCV:
    s_barrier
    s_cmp_ge_u32 s21, 8
    s_cbranch_scc1 K2_FIN
""")
    for s in range(4):
        for T in range(3):
            e(f"    ds_read_b128 {vr(xbq(T, s), 4)}, v88 offset:{16 * RB * T + 64 * s}")
    for s in range(4):
        for T in range(3):
            e(f"    s_waitcnt lgkmcnt({11 - 3 * s - T})")
            e(f"    v_mfma_f32_16x16x32_bf16 {vr(vU + 4 * T, 4)}, {vr(vW + 4 * s, 4)}, {vr(xbq(T, s), 4)}, {vr(vU + 4 * T, 4)}")
    e("    v_add_u32 v89, 0x100000, v90\n    v_add_u32 v91, 0x200000, v90\n    s_nop 1")
    for m in range(6):
        if m == 2: e("    s_nop 0")
        e(f"    v_pk_mul_f32 {vr(16 + 2 * m, 2)}, {vr(vU + 2 * m, 2)}, s[72:73] op_sel_hi:[1,0]")
    for m in range(12):
        e(f"    v_exp_f32 v{16 + m}, v{16 + m}")
    for m in range(6):
        e(f"    v_pk_add_f32 {vr(16 + 2 * m, 2)}, {vr(16 + 2 * m, 2)}, 1.0 op_sel_hi:[1,0]")
    for T in range(3):
        for m in range(4 * T, 4 * T + 4):
            e(f"    v_rcp_f32 v{16 + m}, v{16 + m}")
        e("    s_nop 0")
        for m in (2 * T, 2 * T + 1):
            e(f"    v_pk_mul_f32 {vr(16 + 2 * m, 2)}, {vr(16 + 2 * m, 2)}, {vr(vU + 2 * m, 2)}")
        for m in (2 * T, 2 * T + 1):
            e(f"    v_cvt_pk_bf16_f32 v{32 + m}, v{16 + 2 * m}, v{17 + 2 * m}")
        e(f"    buffer_store_dwordx2 {vr(32 + 2 * T, 2)}, v{(90, 89, 91)[T]}, s[16:19], 0 offen")
    e("K2_FIN:")
    if OPT["dbg"]: e("    s_waitcnt vmcnt(0)"); dbg(8, 1, False, 7)
    if OPT["stamps"]:
        stamp(9, 4, 1); e("    s_waitcnt vmcnt(0)"); stamp(10, 4, 1); stamp_out(4, 1)
    e("K2_END:\n    s_endpgm")
    for u in range(UNR):
        for y in range(0 if OPT['noflush'] else 2):
            flush_block(y, f"K2_FL{u}{y}", f"K2_FB{u}{y}")
            qadv_block(y, f"K2_QA{u}{y}", f"K2_QB{u}{y}")
        e(f"K2_LW{u}:\n    s_waitcnt vmcnt(0) lgkmcnt(0)\n    s_branch K2_LWB{u}")
    for y in range(2):
        qadv_block(y, f"K2_QAP{y}", f"K2_QBP{y}")
    for sfx in ("", "2"):
        e(f"""
K2_MORE{sfx}:
    v_mov_b32 v61, {MORE}
    ds_write_b32 v61, v63
    s_branch K2_MOREB{sfx}
""")
    e("""
K2_NEXT:
    s_add_u32 s24, s24, s25
    s_branch K2_ROUND
K2_REDO:
    s_mov_b32 s25, 4
    s_waitcnt vmcnt(0) lgkmcnt(0)
    s_barrier
    s_branch K2_ROUND
""")

def desc(name, vg, sg):
    e(f"""
.p2align 6
.amdhsa_kernel {name}
  .amdhsa_next_free_vgpr {vg}
  .amdhsa_next_free_sgpr {sg}
  .amdhsa_accum_offset {vg}
  .amdhsa_group_segment_fixed_size 0
  .amdhsa_kernarg_size 72
  .amdhsa_user_sgpr_count 2
  .amdhsa_user_sgpr_kernarg_segment_ptr 1
  .amdhsa_system_sgpr_workgroup_id_x 1
.end_amdhsa_kernel
""")

e(f"""
; @launch kernel=mpnn_bin_kernel grid=(256,1,1) block=(1024,1,1) lds={K1_LDS}
; @launch kernel=mpnn_edge_kernel grid=(256,1,1) block=(1024,1,1) lds={K2_LDS}
.amdgcn_target "amdgcn-amd-amdhsa--gfx950"
""")
kernel1()
kernel2()
e('.section .rodata,"a"')
desc("mpnn_bin_kernel", 128, 96)
desc("mpnn_edge_kernel", 128, 96)
open(sys.argv[1], "w").write("\n".join(L) + "\n")
```

```python
import sys, struct, math

def f2u(x): return struct.unpack("<I", struct.pack("<f", x))[0]

OPT = dict(dbg=0, safe=0, stamps=0, prio=1, nogather=0, nocore=0, nolds=0, nomfma=0, noflush=0)
for a in sys.argv[2:]:
    k, v = a.split("="); OPT[k] = int(v)

N, E = 10000, 320000
NB = 256
EPW = 1250
PT    = 0
DESC  = 0x280000
REC   = 0x2C0000
RSTR  = 15488
W2F   = 0x690000
WUT   = W2F + 0x8000
WUB   = WUT + 0x8000
W3F   = WUB + 0x8000
STAMP = W3F + 0x800
WSEND = STAMP + (0x80000 if OPT["stamps"] else 0)
NL2E = f2u(-1.4426950408889634)
KC   = f2u(1.0 / (2.0 ** 31 * math.log(2.0)))
NSC  = f2u(-2.0 ** -31)

L = []
def e(s=""):
    for ln in s.strip("\n").split("\n"):
        L.append(ln)
def vr(a, n): return f"v[{a}:{a + n - 1}]" if n > 1 else f"v{a}"
def sr(a, n): return f"s[{a}:{a + n - 1}]" if n > 1 else f"s{a}"

def srd(s, nrec, w3=0x20000):
    e(f"    s_mov_b32 s{s + 2}, {nrec:#x}\n    s_mov_b32 s{s + 3}, {w3:#x}")

def scan64(v):
    for c in ("row_shr:1 row_mask:0xf", "row_shr:2 row_mask:0xf", "row_shr:4 row_mask:0xf", "row_shr:8 row_mask:0xf",
              "row_bcast:15 row_mask:0xa", "row_bcast:31 row_mask:0xc"):
        e(f"    s_nop 1\n    v_add_u32_dpp v{v}, v{v}, v{v} {c} bank_mask:0xf")

NST = 16
def dbg(slot):
    if not OPT["dbg"]: return
    e(f"    s_memrealtime s[{80 + 2 * slot}:{81 + 2 * slot}]")
def dbg_out(kern, wv, base, n, lab):
    if not OPT["dbg"]: return
    e(f"""
    s_waitcnt vmcnt(0)
    s_memrealtime s[{80 + 2 * (n - 1)}:{81 + 2 * (n - 1)}]
    s_cmp_lg_u32 s2, 200
    s_cbranch_scc1 {lab}
    s_cmp_lg_u32 s21, {wv}
    s_cbranch_scc1 {lab}
    s_load_dwordx2 s[92:93], s[0:1], 56
    s_waitcnt lgkmcnt(0)
    s_add_u32 s92, s92, {512 * (1 - kern)}
    s_addc_u32 s93, s93, 0
    s_mov_b32 s94, 256
    s_mov_b32 s95, 0x20000
    s_mov_b64 exec, 1
""")
    for i in range(n):
        e(f"    v_mov_b32 v127, s{80 + 2 * i}\n    buffer_store_dword v127, off, s[92:95], 0 offset:{4 * (base + i)}\n    s_waitcnt vmcnt(0)")
    e(f"{lab}:")
def stamp(i, srd_s, kern):
    if not OPT["stamps"]: return
    e(f"""
    s_memtime s[90:91]
    s_waitcnt lgkmcnt(0)
    v_writelane_b32 v127, s90, {i}
""")
    if i == 0:
        e("    s_memrealtime s[90:91]\n    s_waitcnt lgkmcnt(0)\n    v_writelane_b32 v127, s90, 14")
def stamp_out(srd_s, kern):
    if not OPT["stamps"]: return
    e(f"""
    s_memrealtime s[90:91]
    s_waitcnt lgkmcnt(0)
    v_writelane_b32 v127, s90, 15
    s_mov_b64 exec, 0xffff
    s_lshl_b32 s90, s2, 4
    s_add_u32 s90, s90, s21
    s_lshl_b32 s90, s90, 6
    s_add_u32 s90, s90, {STAMP + kern * 0x40000}
    v_mbcnt_lo_u32_b32 v125, -1, 0
    v_lshlrev_b32 v125, 2, v125
    buffer_store_dword v127, v125, s[{srd_s}:{srd_s + 3}], s90 offen
    s_mov_b64 exec, -1
""")

K1_CNT, K1_ST, K1_STG, K1_WL = 0, 1024, 2048, 2048 + 15360
K1_LDS = 84 * 1024
def kernel1():
    e("""
.text
.globl mpnn_bin_kernel
.p2align 8
.type mpnn_bin_kernel,@function
mpnn_bin_kernel:
    s_cmp_ge_u32 s2, 256
    s_cbranch_scc1 K1_END
    s_load_dwordx4 s[4:7], s[0:1], 0        ; x, e_attr
    s_load_dwordx4 s[8:11], s[0:1], 16
    s_load_dwordx4 s[12:15], s[0:1], 32
    s_load_dwordx2 s[16:17], s[0:1], 64     ; ws
    v_lshrrev_b32 v2, 6, v0
    v_and_b32 v1, 63, v0
    v_readfirstlane_b32 s21, v2
""")
    stamp(0, 16, 0)
    dbg(0)
    e("""
    s_cmp_ge_u32 s21, 10
    s_cbranch_scc1 K1_GEMM
    s_and_b32 s20, s2, 7
    s_lshl_b32 s20, s20, 5
    s_lshr_b32 s3, s2, 3
    s_or_b32 s20, s20, s3
    s_mul_i32 s22, s20, 5000
    s_lshl_b32 s23, s22, 1
    v_lshlrev_b32 v3, 3, v0
    v_lshlrev_b32 v4, 4, v0
    v_cmp_gt_u32 vcc, 625, v0
    v_mov_b32 v20, 0
    v_mov_b32 v21, 0
    v_mov_b32 v22, 0
    v_mov_b32 v23, 0
    s_mov_b64 s[44:45], vcc
    s_waitcnt lgkmcnt(0)
    s_mov_b32 s24, s10
    s_mov_b32 s25, s11
""")
    srd(24, E * 4)
    e("    s_mov_b32 s28, s8\n    s_mov_b32 s29, s9"); srd(28, E * 4)
    e("    s_mov_b32 s32, s6\n    s_mov_b32 s33, s7"); srd(32, E * 8)
    srd(16, WSEND)
    e(f"""
    s_mov_b64 exec, s[44:45]
    buffer_load_dwordx2 v[6:7], v3, s[24:27], s22 offen      ; dst
    buffer_load_dwordx2 v[8:9], v3, s[28:31], s22 offen      ; src
    buffer_load_dwordx4 v[10:13], v4, s[32:35], s23 offen
    s_mov_b64 exec, -1
    s_cmp_lg_u32 s21, 0
    s_cbranch_scc1 K1_NOZ
    ds_write_b128 v4, v[20:23] offset:{K1_CNT}
K1_NOZ:
    v_mov_b32 v24, 1
    s_waitcnt lgkmcnt(0)
    s_barrier
    s_mov_b64 exec, s[44:45]
    s_waitcnt vmcnt(2)
""")
    stamp(1, 16, 0)
    dbg(1)
    e(f"""
    v_and_b32 v14, 0xff, v6
    v_and_b32 v15, 0xff, v7
    v_lshlrev_b32 v14, 2, v14
    v_lshlrev_b32 v15, 2, v15
    ds_add_rtn_u32 v16, v14, v24 offset:{K1_CNT}
    ds_add_rtn_u32 v17, v15, v24 offset:{K1_CNT}
    v_lshrrev_b32 v6, 8, v6
    v_lshrrev_b32 v7, 8, v7
    v_lshlrev_b32 v6, 26, v6
    v_lshlrev_b32 v7, 26, v7
    s_mov_b64 exec, -1
    v_lshlrev_b32 v5, 4, v1
    s_waitcnt lgkmcnt(0)
    s_barrier
""")
    stamp(2, 16, 0)
    e(f"""
    ds_read_b128 v[20:23], v5 offset:{K1_CNT}
    s_waitcnt vmcnt(1)
    v_lshl_or_b32 v8, v8, 3, v6
    v_lshl_or_b32 v9, v9, 3, v7
    s_waitcnt lgkmcnt(0)
    v_add_u32 v25, v20, v21
    v_add_u32 v26, v25, v22
    v_add_u32 v27, v26, v23
    v_mov_b32 v28, v27
""")
    scan64(28)
    e(f"""
    v_sub_u32 v28, v28, v27
    v_add_u32 v29, v28, v20
    v_add_u32 v30, v28, v25
    v_add_u32 v31, v28, v26
    ds_write_b128 v5, v[28:31] offset:{K1_ST}
    ds_read_b32 v18, v14 offset:{K1_ST}
    ds_read_b32 v19, v15 offset:{K1_ST}
    s_cmp_lg_u32 s21, 9
    s_cbranch_scc1 K1_NOD
    v_lshl_or_b32 v32, v20, 16, v28
    v_lshl_or_b32 v33, v21, 16, v29
    v_lshl_or_b32 v34, v22, 16, v30
    v_lshl_or_b32 v35, v23, 16, v31
    s_lshl_b32 s36, s20, 4
    s_add_u32 s36, s36, {DESC}
    v_lshlrev_b32 v36, 12, v1
    buffer_store_dwordx4 v[32:35], v36, s[16:19], s36 offen
K1_NOD:
    s_mov_b64 exec, s[44:45]
    s_waitcnt lgkmcnt(0)
    v_add_u32 v18, v18, v16
    v_add_u32 v19, v19, v17
    v_mul_u32_u24 v18, 12, v18
    v_mul_u32_u24 v19, 12, v19
    v_add_u32 v18, {K1_STG}, v18
    v_add_u32 v19, {K1_STG}, v19
    s_cmp_lg_u32 s21, 9
    s_cbranch_scc1 K1_W0
    s_waitcnt vmcnt(1)
    s_branch K1_W1
K1_W0:
    s_waitcnt vmcnt(0)
K1_W1:
    ds_write2_b32 v18, v10, v11 offset0:0 offset1:1
    ds_write_b32 v18, v8 offset:8
    ds_write2_b32 v19, v12, v13 offset0:0 offset1:1
    ds_write_b32 v19, v9 offset:8
    s_mov_b64 exec, -1
    s_mul_i32 s36, s20, {RSTR}
    s_add_u32 s36, s36, {REC}
    s_add_u32 s37, s36, 10240
    s_waitcnt lgkmcnt(0)
    s_barrier
""")
    stamp(3, 16, 0)
    e(f"""
    ds_read_b128 v[20:23], v4 offset:{K1_STG}
    s_cmp_ge_u32 s21, 5
    s_cbranch_scc1 K1_C1
    ds_read_b128 v[24:27], v4 offset:{K1_STG + 10240}
    s_waitcnt lgkmcnt(0)
    buffer_store_dwordx4 v[24:27], v4, s[16:19], s37 offen
K1_C1:
    s_waitcnt lgkmcnt(0)
    buffer_store_dwordx4 v[20:23], v4, s[16:19], s36 offen
""")
    dbg_out(0, 9, 0, 3, 'DBGA')
    if OPT["stamps"]:
        stamp(4, 16, 0); e("    s_waitcnt vmcnt(0)"); stamp(5, 16, 0); stamp_out(16, 0)
    e(f"""
    s_endpgm
K1_GEMM:
    s_sub_u32 s22, s21, 10                  ; gi
    v_lshrrev_b32 v2, 4, v1                 ; g
    v_and_b32 v3, 15, v1                    ; n / i
    s_cmp_ge_u32 s2, 209
    s_cbranch_scc1 K1_JOBS
    s_lshr_b32 s23, s22, 1                  ; T
    s_and_b32 s24, s22, 1                   ; fh
    ; W1 -> LDS source offset: row (l/16), chunk (l%16) ^ ((l/16)<<1)
    v_lshlrev_b32 v4, 1, v2
    v_xor_b32 v4, v4, v3
    v_lshlrev_b32 v4, 4, v4
    v_lshl_or_b32 v4, v2, 8, v4
    s_mul_i32 s25, s2, 48
    s_lshl_b32 s26, s23, 4
    s_add_u32 s25, s25, s26
    v_add_u32 v5, s25, v3
    v_lshlrev_b32 v5, 8, v5
    v_lshl_or_b32 v5, v2, 4, v5
    s_waitcnt lgkmcnt(0)
""")
    srd(4, N * 256)
    srd(12, 128 * 256)
    srd(16, N * 256)
    for m in range(6):
        if m == 5:
            e("    s_cmp_ge_u32 s22, 2\n    s_cbranch_scc1 K1_DMAD")
        e(f"""
    s_add_u32 s27, s22, {6 * m}
    s_lshl_b32 s28, s27, 6
    s_and_b32 s28, s28, 0x80
    s_lshl_b32 s27, s27, 10
    v_xor_b32 v6, s28, v4
    s_add_u32 s28, s27, {K1_WL}
    s_mov_b32 m0, s28
    s_nop 0
    buffer_load_dwordx4 v6, s[12:15], s27 offen lds
""")
    e("K1_DMAD:")
    for s in range(4):
        e(f"    buffer_load_dwordx4 {vr(8 + 4 * s, 4)}, v5, s[4:7], 0 offen offset:{64 * s}")
    e(f"""
    v_lshrrev_b32 v24, 2, v3                ; r'
    v_and_b32 v25, 3, v3                    ; c'
    v_and_b32 v26, 1, v2
    v_lshl_or_b32 v26, v26, 2, v24          ; h(k)
    v_lshl_add_u32 v27, v2, 3, v24          ; 8g + r'
    v_lshlrev_b32 v27, 8, v27
    v_lshl_or_b32 v27, v25, 3, v27
    v_add_u32 v27, {K1_WL}, v27
    s_lshl_b32 s27, s24, 2
    v_xor_b32 v26, s27, v26
""")
    for f in range(4):
        e(f"    v_xor_b32 v{28 + f}, {f}, v26\n    v_lshl_add_u32 v{28 + f}, v{28 + f}, 5, v27")
    e(f"""
    s_lshl_b32 s27, s24, 7
    v_add_u32 v5, s27, v5
    s_mov_b32 s28, {NL2E:#x}
    s_mov_b32 s29, {NL2E:#x}
    s_barrier
    s_barrier
    s_waitcnt vmcnt(0)
    s_barrier
""")
    stamp(3, 16, 0)
    for s in range(4):
        for f in range(4):
            for u2 in range(2):
                e(f"    ds_read_b64_tr_b16 {vr(32 + 16 * f + 4 * s + 2 * u2, 2)}, v{28 + f} offset:{s * 8192 + u2 * 1024}")
    for s in range(4):
        for f in range(4):
            left = 32 - (8 * s + 2 * f + 2)
            e(f"    s_waitcnt lgkmcnt({min(left, 15)})")
            c = "0" if s == 0 else vr(96 + 4 * f, 4)
            e(f"    v_mfma_f32_16x16x32_bf16 {vr(96 + 4 * f, 4)}, {vr(32 + 16 * f + 4 * s, 4)}, {vr(8 + 4 * s, 4)}, {c}")
    e("    s_nop 4")
    for f in range(4):
        for h in range(2):
            r = 96 + 4 * f + 2 * h
            e(f"    v_pk_mul_f32 {vr(r, 2)}, {vr(r, 2)}, s[28:29]")
        for h in range(2):
            r = 96 + 4 * f + 2 * h
            e(f"    v_cvt_pk_bf16_f32 v{112 + 2 * f + h}, v{r}, v{r + 1}")
        if f % 2 == 1:
            e(f"    buffer_store_dwordx4 {vr(112 + 2 * (f - 1), 4)}, v5, s[16:19], 0 offen offset:{64 * (f // 2)}")
    dbg_out(0, 15, 3, 2, 'DBGB')
    if OPT["stamps"]:
        srd(16, WSEND); stamp(4, 16, 0); e("    s_waitcnt vmcnt(0)"); stamp(5, 16, 0); stamp_out(16, 0)
    e(f"""
    s_endpgm
K1_JOBS:
    s_sub_u32 s23, s2, 209
    s_mul_i32 s23, s23, 6
    s_add_u32 s23, s23, s22
    s_waitcnt lgkmcnt(0)
""")
    srd(16, WSEND)
    e(f"""
    s_cmp_ge_u32 s23, 96
    s_cbranch_scc1 K1_JOB2
    s_lshr_b32 s24, s23, 5
    s_bfe_u32 s25, s23, 0x30002             ; f
    s_and_b32 s26, s23, 3                   ; s
    s_cmp_eq_u32 s24, 0
    s_cselect_b32 s28, s12, s14
    s_cselect_b32 s29, s13, s15
    s_mov_b32 s30, {256 * 256}
    s_mov_b32 s31, 0x20000
    ; column
    s_lshl_b32 s33, s25, 4                  ; 16 f
    v_add_u32 v4, s33, v3
    v_lshlrev_b32 v4, 1, v4
    ; row
    v_lshlrev_b32 v5, 11, v2                ; 8 g rows
    v_lshrrev_b32 v7, 1, v2
    v_lshlrev_b32 v7, 12, v7
    v_and_b32 v6, 1, v2
    v_lshl_or_b32 v7, v6, 9, v7             ; 16 (g>>1) + 2 (g&1) rows
    s_cmp_eq_u32 s24, 2
    s_cselect_b64 vcc, -1, 0
    s_cselect_b32 s32, 10, 13
    s_movk_i32 s33, 512
    s_cmovk_i32 s33, 8192
    s_cselect_b32 s34, {NSC:#x}, 1.0
    v_cndmask_b32 v5, v5, v7, vcc
    v_add_u32 v4, v4, v5
    s_lshl_b32 s40, s26, s32
    s_cmp_eq_u32 s24, 1
    s_cselect_b32 s36, 0, 0x8000
    s_add_u32 s40, s40, s36
    s_add_u32 s41, s40, s33
    s_add_u32 s42, s41, s33
    s_add_u32 s43, s42, s33
""")
    for m in range(8):
        e(f"    buffer_load_ushort v{8 + m}, v4, s[28:31], s{40 + m // 2} offen offset:{(m & 1) * 256}")
    e(f"""
    s_lshl_b32 s37, s23, 10
    s_add_u32 s37, s37, {W2F}
    v_lshlrev_b32 v6, 4, v1
    s_mov_b32 s38, 0x07060302
    s_waitcnt vmcnt(0)
""")
    for m in range(8):
        e(f"    v_lshlrev_b32 v{8 + m}, 16, v{8 + m}\n    v_mul_f32 v{8 + m}, s34, v{8 + m}")
    for m in range(4):
        e(f"    v_perm_b32 v{16 + m}, v{9 + 2 * m}, v{8 + 2 * m}, s38")
    e(f"""
    buffer_store_dwordx4 v[16:19], v6, s[16:19], s37 offen
    s_endpgm
K1_JOB2:
    s_cmp_ge_u32 s23, 98
    s_cbranch_scc1 K1_JOB3
    s_sub_u32 s24, s23, 96                  ; c
    s_mov_b32 s14, {260 * 256}
    s_mov_b32 s15, 0x20000
    v_and_b32 v2, 31, v1
    v_lshrrev_b32 v3, 5, v1
    v_lshl_or_b32 v2, v2, 1, v3             ; p & 63
    v_and_b32 v4, 0x23, v2
    v_bfe_u32 v5, v2, 2, 1
    v_lshl_or_b32 v4, v5, 4, v4
    v_bfe_u32 v5, v2, 3, 2
    v_lshl_or_b32 v4, v5, 2, v4             ; feature & 63
    v_lshlrev_b32 v4, 1, v4
    s_lshl_b32 s25, s24, 7
    s_add_u32 s25, s25, {256 * 256}
""")
    for d in range(4):
        e(f"    buffer_load_ushort v{8 + d}, v4, s[12:15], s25 offen offset:{d * 256}")
    e(f"""
    s_lshl_b32 s37, s24, 10
    s_add_u32 s37, s37, {W3F}
    v_lshlrev_b32 v6, 4, v1
    s_mov_b32 s34, {NL2E:#x}
    s_waitcnt vmcnt(0)
""")
    for d in range(4):
        e(f"    v_lshlrev_b32 v{8 + d}, 16, v{8 + d}\n    v_mul_f32 v{8 + d}, s34, v{8 + d}")
    e("""
    v_cvt_pk_bf16_f32 v16, v8, v9
    v_cvt_pk_bf16_f32 v17, v10, v11
    v_lshlrev_b32 v12, 16, v16
    v_and_b32 v13, 0xffff0000, v16
    v_lshlrev_b32 v14, 16, v17
    v_and_b32 v15, 0xffff0000, v17
    v_sub_f32 v8, v8, v12
    v_sub_f32 v9, v9, v13
    v_sub_f32 v10, v10, v14
    v_sub_f32 v11, v11, v15
    v_cvt_pk_bf16_f32 v18, v8, v9
    v_cvt_pk_bf16_f32 v19, v10, v11
    buffer_store_dwordx4 v[16:19], v6, s[16:19], s37 offen
    s_endpgm
K1_JOB3:
    s_cmp_lg_u32 s23, 98
    s_cbranch_scc1 K1_END
    v_mov_b32 v8, 0
    v_lshlrev_b32 v6, 2, v1
""")
    e(f"""
    s_mov_b32 s37, {PT + N * 256}
    buffer_store_dword v8, v6, s[16:19], s37 offen
K1_END:
    s_endpgm
""")

RS = 1056
RG, RB = 528, 272
CAP = 2048
EA, SO = 0, CAP * 8
MISC = SO + CAP * 4
ZR, CNT, MORE, FL = MISC, MISC + 256, MISC + 512, MISC + 1024
QU = MISC + 2048
AG = QU + 41 * RS
XL = (AG + 2 * 16384 + 11 * 1024 + 255) // 256 * 256
AGB = XL
K2_LDS = AGB + 48 * RB
PADV = N * 8
S16MAX = (CAP // 4 - 8) * 16
vSO, vP, vD, vE, vAe, vBw, vQ, vNp, vAc, vI = 8, (16, 24), (32, 92), 48, 64, 68, 72, 126, (80, 82), 84
vU, vW = 108, 92
vC4, vQ16, vE16, vS16 = 76, 77, 78, 79
vaS, vaE, vInc, vaN = (86, 87), 88, 89, (90, 91)
sM = [40 + 2 * k for k in range(6)]
sFM = (28, 30)
UNR = 4
M9 = "0x01ff01ff"
KCOP = "s[26:27], s[26:27] op_sel_hi:[1,0,0] clamp"

def flush_adds(y):
    t = vE + 8 * y
    e(f"""
    v_cvt_f64_f32 {vr(t, 2)}, v{vAc[y]}
    v_cvt_f64_f32 {vr(t + 2, 2)}, v{vAc[y] + 1}
    ds_add_f64 v{vaN[y]}, {vr(t, 2)} offset:{AG - QU}
    ds_add_f64 v{vaN[y]}, {vr(t + 2, 2)} offset:{AG - QU + 8}
""")

def flush_block(y, lab, back):
    e(f"""
{lab}:
    s_sub_u32 exec_lo, 0, s36
    s_sub_u32 exec_hi, 0, s37
""")
    flush_adds(y)
    e(f"""
    v_add_u32 v{vaN[y]}, {RS}, v{vaN[y]}
    v_mov_b64 {vr(vAc[y], 2)}, 0
    s_mov_b64 exec, -1
    s_branch {back}
""")

def qadv_block(y, lab, back):
    e(f"""
{lab}:
    s_sub_u32 exec_lo, 0, s36
    s_sub_u32 exec_hi, 0, s37
    ds_read_b64 {vr(vQ + 2 * y, 2)}, v{vaN[y]} offset:{RS}
    s_mov_b64 exec, -1
    s_branch {back}
""")

def gather_lines(dst, adr):
    out = []
    for q in range(4):
        for y in range(2):
            a = adr + 4 * y + q
            pre = f"    v_min_u32 v{a}, {PADV}, v{a}\n    v_and_b32 v{a}, -8, v{a}\n" if OPT["safe"] else ""
            out.append(pre + f"    buffer_load_dword v{dst + 2 * q + y}, v{a}, s[8:11], 0 offen")
    return out
def gathers(dst, adr):
    for l in gather_lines(dst, adr): e(l)

def mfma4(D, P, q): return f"    v_mfma_f32_4x4x4_16b_bf16 {vr(D + 4 * q, 4)}, {vr(vI, 2)}, {vr(P + 2 * q, 2)}, {vr(vQ, 4)}"
def mfma32(D): return f"    v_mfma_f32_32x32x16_bf16 {vr(D, 16)}, {vr(vAe, 4)}, {vr(vBw, 4)}, {vr(D, 16)}"

def core_lines(D):
    Ee = vE
    def p(r): return vr(r, 2)
    ex = [f"    v_exp_f32 v{Ee + k}, v{D + k}" for k in range(16)]
    sc = [f"    v_pk_fma_f32 {p(Ee + 2 * m)}, {p(Ee + 2 * m)}, {KCOP}" for m in range(8)]
    seq = [
        lambda o: f"v_pk_mul_f32 {p(D + o)}, {p(D + o)}, {p(Ee + o + 4)}",
        lambda o: f"v_pk_mul_f32 {p(D + o + 8)}, {p(D + o + 8)}, {p(Ee + o + 12)}",
        lambda o: f"v_pk_fma_f32 {p(D + o)}, {p(D + o + 4)}, {p(Ee + o)}, {p(D + o)}",
        lambda o: f"v_pk_fma_f32 {p(D + o + 8)}, {p(D + o + 12)}, {p(Ee + o + 8)}, {p(D + o + 8)}",
        lambda o: f"v_pk_mul_f32 {p(Ee + o)}, {p(Ee + o)}, {p(Ee + o + 4)}",
        lambda o: f"v_pk_mul_f32 {p(Ee + o + 8)}, {p(Ee + o + 8)}, {p(Ee + o + 12)}",
        lambda o: f"v_pk_mul_f32 {p(Ee + o + 4)}, {p(Ee + o)}, {p(Ee + o + 8)}",
        lambda o: f"v_pk_mul_f32 {p(D + o)}, {p(D + o)}, {p(Ee + o + 8)}",
        lambda o: f"v_rcp_f32 v{Ee + o + 4}, v{Ee + o + 4}",
        lambda o: f"v_rcp_f32 v{Ee + o + 5}, v{Ee + o + 5}",
        lambda o: f"v_pk_fma_f32 {p(D + o)}, {p(D + o + 8)}, {p(Ee + o)}, {p(D + o)}",
        lambda o: f"v_pk_fma_f32 {p(vAc[o // 2])}, {p(D + o)}, {p(Ee + o + 4)}, {p(vAc[o // 2])}",
    ]
    rest = ["    " + fn(o) for fn in seq for o in (0, 2)]
    if OPT["nocore"]: return ["    s_nop 0"] * 16, [], []
    return ex, sc, rest

def tile_iter(u):
    a = u % 2
    ex, sc, rest = core_lines(vD[a])
    Dn, Pn = vD[1 - a], vP[1 - a]
    m4 = [mfma4(Dn, Pn, q) if not OPT["nomfma"] else "    s_nop 0" for q in range(4)]
    for l in ex[0:3]: e(l)
    e(f"    s_cmp_lt_u32 s34, 3\n    s_cbranch_scc1 K2_LW{u}\n    s_waitcnt vmcnt(8) lgkmcnt(0)\nK2_LWB{u}:")
    for q in range(4):
        e(m4[q]); e(ex[3 + 2 * q]); e(ex[4 + 2 * q])
    e(f"    s_cmp_lt_u32 s34, 4\n    s_cbranch_scc1 K2_NG{u}")
    if not OPT["nogather"]: gathers(Pn, vSO)
    e(f"K2_NG{u}:")
    e(ex[11]); e(ex[12])
    if not OPT["nomfma"]: e(mfma32(Dn))
    for l in ex[13:16]: e(l)
    if not OPT["nolds"]: e(f"""
    ds_read_b128 {vr(vSO, 4)}, v{vaS[0]} offset:{SO + 16 * (u + 4)}
    ds_read_b128 {vr(vSO + 4, 4)}, v{vaS[1]} offset:{SO + 16 * (u + 4)}
    ds_read2_b64 {vr(vAe, 4)}, v{vaE} offset0:{4 * (u + 2)} offset1:{4 * (u + 2)}
""")
    for l in sc: e(l)
    if u == UNR - 1:
        e(f"    v_add_u32 v{vaE}, v{vInc}, v{vaE}\n    v_add_u32 v{vaS[0]}, {16 * UNR}, v{vaS[0]}\n    v_add_u32 v{vaS[1]}, {16 * UNR}, v{vaS[1]}")
    if OPT["prio"]:
        e(f"""
    s_cmp_gt_u32 s34, s69
    s_cbranch_scc1 K2_PR{u}
    s_setprio 2
    s_cmp_gt_u32 s34, s70
    s_cbranch_scc1 K2_PR{u}
    s_setprio 1
    s_cmp_gt_u32 s34, s68
    s_cbranch_scc1 K2_PR{u}
    s_setprio 0
K2_PR{u}:
""")
    for l in rest: e(l)
    for y in range(0 if OPT['noflush'] else 2):
        e(f"""
    s_and_b64 s[36:37], {sr(sFM[y], 2)}, s[32:33]
    s_cbranch_scc1 K2_FL{u}{y}
K2_FB{u}{y}:
    s_lshr_b64 {sr(sFM[y], 2)}, {sr(sFM[y], 2)}, 1
    s_and_b64 s[36:37], {sr(sFM[y], 2)}, s[32:33]
    s_cbranch_scc1 K2_QA{u}{y}
K2_QB{u}{y}:
""")
    e("    s_sub_u32 s34, s34, 1\n    s_cmp_eq_u32 s34, 0")
    e("    s_cbranch_scc1 K2_LDONE" if u < UNR - 1 else "    s_cbranch_scc0 K2_LOOP")

def x_frags(xa, xb):
    e(f"""
    v_xor_b32 v{xa}, v5, v6
    v_lshlrev_b32 v{xa}, 4, v{xa}
    v_lshl_or_b32 v{xa}, v6, 8, v{xa}
    v_add_u32 v{xa}, {XL}, v{xa}
    v_xor_b32 v{xa + 1}, 64, v{xa}
    v_xor_b32 v{xa + 2}, 0x80, v{xa}
    v_xor_b32 v{xa + 3}, 0xc0, v{xa}
""")
    for s in range(4):
        for T in range(3):
            e(f"    ds_read_b128 {vr(xb(T, s), 4)}, v{xa + s} offset:{4096 * T}")

def tile_addr(ta):
    e(f"""
    s_bfe_u32 s36, s21, 0x20001
    s_lshl_b32 s36, s36, 8
    s_lshl_b32 s37, s23, 5
    s_add_u32 s36, s36, s37
    s_add_u32 s36, s36, {QU}
    v_mul_u32_u24 v{ta}, {RS}, v6
    v_lshl_add_u32 v{ta}, v5, 6, v{ta}
    v_add_u32 v{ta}, s36, v{ta}
    v_add_u32 v{ta + 1}, {16 * RS}, v{ta}
    v_add_u32 v{ta + 2}, {32 * RS}, v{ta}
""")

def tile_mfma(W, acc, xb):
    for s in range(4):
        for T in range(3):
            e(f"    s_waitcnt lgkmcnt({11 - 3 * s - T})")
            c = "0" if s == 0 else vr(acc + 4 * T, 4)
            e(f"    v_mfma_f32_16x16x32_bf16 {vr(acc + 4 * T, 4)}, {vr(W + 4 * s, 4)}, {vr(xb(T, s), 4)}, {c}")

def prio(n):
    if OPT["prio"]: e(f"    s_setprio {n}")

def kernel2():
    e(f"""
.text
.globl mpnn_edge_kernel
.p2align 8
.type mpnn_edge_kernel,@function
mpnn_edge_kernel:
    s_load_dwordx2 s[4:5], s[0:1], 64       ; ws
    s_load_dwordx2 s[12:13], s[0:1], 0      ; x
    s_load_dwordx2 s[16:17], s[0:1], 48     ; out
    s_cmp_ge_u32 s2, 256
    s_cbranch_scc1 K2_END
    s_and_b32 s20, s2, 7
    s_lshl_b32 s20, s20, 5
    s_lshr_b32 s3, s2, 3
    s_or_b32 s20, s20, s3                   ; bucket
    v_lshrrev_b32 v3, 2, v0
    v_lshlrev_b32 v4, 4, v3
    s_lshr_b32 s34, s20, 2
    s_lshl_b32 s34, s34, 10
    s_and_b32 s35, s20, 3
    s_or_b32 s34, s34, s35
    s_lshl_b32 s34, s34, 2
    s_add_u32 s34, s34, {DESC}
    s_mov_b32 s6, {WSEND:#x}
    s_mov_b32 s7, 0x20000
    v_lshrrev_b32 v2, 6, v0
    v_and_b32 v1, 63, v0
    v_readfirstlane_b32 s21, v2
""")
    stamp(0, 4, 1)
    dbg(0)
    e(f"""
    v_lshrrev_b32 v124, 4, v0
    v_xor_b32 v125, v124, v0
    v_and_b32 v125, 15, v125
    v_lshlrev_b32 v125, 4, v125
    v_lshl_or_b32 v125, v124, 16, v125
    s_lshl_b32 s35, s20, 8
    v_add_u32 v125, s35, v125
    s_lshl_b32 s36, s21, 10
    s_add_u32 s36, s36, {XL}
    s_mov_b32 m0, s36
""")
    srd(12, N * 256)
    e(f"""
    s_mov_b32 s24, 0
    s_mov_b32 s25, 24
    s_mov_b32 s54, 0
    s_waitcnt lgkmcnt(0)
    buffer_load_dword v2, v4, s[4:7], s34 offen
    s_cmp_ge_u32 s21, 12
    s_cbranch_scc1 K2_NOX
    buffer_load_dwordx4 v125, s[12:15], 0 offen lds
K2_NOX:
    v_mul_u32_u24 v3, {RSTR}, v3
    v_and_b32 v4, 3, v0
    v_lshlrev_b32 v7, 4, v1                 ; lane*16
    v_mov_b32 v{vNp}, 0
K2_ROUND:
    v_lshlrev_b32 v124, 4, v0
    v_mov_b64 v[32:33], 0
    v_mov_b64 v[34:35], 0
    s_cmp_ge_u32 s21, 2
    s_cbranch_scc1 K2_NOZ
    ds_write_b128 v124, v[32:35] offset:{MISC}
    s_waitcnt lgkmcnt(0)
K2_NOZ:
    s_mov_b32 s34, {REC}
    s_barrier
""")
    stamp(13, 4, 1)
    e(f"""
    s_cmp_lt_u32 s21, 12
    s_cbranch_scc1 K2_WD1
    s_waitcnt vmcnt(0)
K2_WD1:
    s_waitcnt vmcnt(1)
""")
    stamp(1, 4, 1)
    e(f"""
    v_lshrrev_b32 v60, 16, v2               ; count
    v_and_b32 v61, 0xffff, v2               ; start
    v_subrev_u32 v60, s24, v60
    v_add3_u32 v61, v61, s24, v4
    v_min_i32 v62, s25, v60
    v_mad_u32_u24 v61, v61, 12, v3
    v_sub_u32 v62, v62, v4
""")
    e(f"    v_cmp_lt_i32 {sr(sM[0], 2)}, 0, v62\n    v_cmp_lt_i32 {sr(sM[1], 2)}, 4, v62\n    v_cmp_lt_i32 {sr(sM[2], 2)}, 8, v62")
    for k in range(6):
        if k >= 3:
            e(f"    v_cmp_lt_i32 {sr(sM[k], 2)}, {4 * k}, v62")
        e(f"    s_mov_b64 exec, {sr(sM[k], 2)}")
        if k >= 2:
            e(f"    s_cbranch_execz K2_RLD")
        e(f"    buffer_load_dwordx3 {vr(8 + 4 * k, 3)}, v61, s[4:7], s34 offen offset:{48 * k}")
    e(f"""
K2_RLD:
    s_mov_b64 exec, -1
""")
    stamp(2, 4, 1)
    e(f"""
    ds_write_b128 v124, v[32:35] offset:{EA}
    v_cmp_lt_i32 s[58:59], s25, v60
    v_mov_b32 v63, 4
    v_lshlrev_b32 v62, 2, v1
    s_cmp_ge_u32 s21, 8
    s_cbranch_scc1 K2_NOSO
    v_mov_b32 v36, {PADV}
    v_mov_b32 v37, v36
    v_mov_b32 v38, v36
    v_mov_b32 v39, v36
    ds_write_b128 v124, v[36:39] offset:{SO}
K2_NOSO:
    s_cmp_lg_u32 s54, 0
    s_cbranch_scc1 K2_SETD
    v_add_u32 v40, {AG}, v124
    ds_write_b128 v40, v[32:35]
    ds_write_b128 v40, v[32:35] offset:16384
    s_cmp_ge_u32 s21, 11
    s_cbranch_scc1 K2_NOZ3
    ds_write_b128 v40, v[32:35] offset:32768
K2_NOZ3:
    v_lshrrev_b32 v5, 4, v1                 ; g
    v_and_b32 v6, 15, v1                    ; n
    s_cmp_lt_u32 s20, 16
    s_cselect_b32 s22, 40, 39
    s_bfm_b64 s[78:79], s22, 0
    s_and_b32 s23, s21, 1                   ; c
    s_lshr_b32 s76, s21, 1                  ; group
    s_mov_b32 s26, {KC:#x}
    s_mov_b32 s72, {NL2E:#x}
    s_lshl_b32 s39, s23, 7
    s_add_u32 s8, s4, s39
    s_addc_u32 s9, s5, 0
    s_or_b32 s9, s9, 0x80000000
    s_mov_b32 s10, 0x10000
    s_mov_b32 s11, 0x00c00000
    s_lshl_b32 s38, s23, 10
    s_add_u32 s75, s38, {W3F}
    s_xor_b32 s74, s21, 8
    s_lshl_b32 s74, s74, 12
    s_add_u32 s74, s74, {W2F}
    s_mov_b32 s32, 1
    s_mov_b32 s33, 1
""")
    for s in range(4):
        e(f"    buffer_load_dwordx4 {vr(vW + 4 * s, 4)}, v7, s[4:7], s74 offen offset:{1024 * s}")
    e(f"    buffer_load_dwordx4 {vr(vBw, 4)}, v7, s[4:7], s75 offen")
    e(f"""
    s_mov_b64 exec, s[58:59]
    s_cbranch_execnz K2_MORE
K2_MOREB:
    s_waitcnt vmcnt(5)
    s_branch K2_RECS
K2_SETD:
    s_mov_b64 exec, s[58:59]
    s_cbranch_execnz K2_MORE2
K2_MOREB2:
    s_waitcnt vmcnt(0)
K2_RECS:
""")
    stamp(3, 4, 1)
    for k in range(6):
        e(f"    s_mov_b64 exec, {sr(sM[k], 2)}")
        if k >= 2: e("    s_cbranch_execz K2_HISTD")
        e(f"""
    v_lshrrev_b32 v{32 + k}, 24, v{10 + 4 * k}
    ds_add_rtn_u32 v{11 + 4 * k}, v{32 + k}, v63 offset:{CNT}
    v_and_b32 v{10 + 4 * k}, 0x3ffffff, v{10 + 4 * k}
""")
    e(f"""
K2_HISTD:
    s_mov_b64 exec, -1
    s_waitcnt lgkmcnt(0)
    s_barrier
""")
    stamp(4, 4, 1)
    dbg(1)
    e(f"""
    ds_read_b32 v{vC4}, v62 offset:{CNT}
    s_waitcnt lgkmcnt(0)
    v_add_u32 v{vQ16}, 12, v{vC4}
    v_and_b32 v{vQ16}, -16, v{vQ16}
    s_mov_b64 exec, s[78:79]
    v_max_u32 v{vQ16}, 16, v{vQ16}                  ; 16*quads
    s_mov_b64 exec, -1
    s_nop 0
    v_add_u32_dpp v{vE16}, v{vQ16}, v{vQ16} row_shr:1 row_mask:0xf bank_mask:0xf bound_ctrl:1
""")
    for c in ("row_shr:2 row_mask:0xf", "row_shr:4 row_mask:0xf", "row_shr:8 row_mask:0xf", "row_bcast:15 row_mask:0xa", "row_bcast:31 row_mask:0xc"):
        e(f"    s_nop 1\n    v_add_u32_dpp v{vE16}, v{vE16}, v{vE16} {c} bank_mask:0xf")
    e(f"""
    v_sub_u32 v{vS16}, v{vE16}, v{vQ16}
    v_readlane_b32 s34, v{vE16}, 63
""")
    for k in range(6):
        if k >= 3:
            e(f"    s_cmp_eq_u64 {sr(sM[k - 1], 2)}, 0\n    s_cbranch_scc1 K2_BPD") if k == 3 else None
            e(f"    s_cmp_eq_u64 {sr(sM[k], 2)}, 0\n    s_cbranch_scc1 K2_BPD")
        e(f"    ds_bpermute_b32 v{32 + k}, v{32 + k}, v{vS16}")
    e(f"""
K2_BPD:
    s_cmp_gt_u32 s34, {S16MAX}
    s_cbranch_scc1 K2_REDO
    s_add_u32 s34, s34, 48
    s_lshr_b32 s35, s34, 9
    s_bfe_u32 s34, s34, 0x30006
    s_mul_i32 s37, s76, s35
    s_waitcnt lgkmcnt(0)
""")
    for k in range(6):
        e(f"    s_mov_b64 exec, {sr(sM[k], 2)}")
        if k >= 2: e("    s_cbranch_execz K2_SCATD")
        e(f"""
    v_add_u32 v{32 + k}, v{32 + k}, v{11 + 4 * k}
    v_add_u32 v{11 + 4 * k}, v{32 + k}, v{32 + k}
    ds_write_b32 v{32 + k}, v{10 + 4 * k} offset:{SO}
    ds_write_b64 v{11 + 4 * k}, {vr(8 + 4 * k, 2)} offset:{EA}
""")
    e(f"""
K2_SCATD:
    s_cmp_lg_u32 s21, 15
    s_cbranch_scc1 K2_NOFL
    s_mov_b64 exec, s[78:79]
    v_lshrrev_b32 v46, 4, v{vE16}
    ds_write_b8 v46, v63 offset:{FL - 1}
K2_NOFL:
    s_min_u32 s38, s76, s34
    s_add_u32 s37, s37, s38
    s_lshl_b32 s60, s37, 6                  ; stream (0,X)
    s_cmp_lt_u32 s76, s34
    s_addc_u32 s35, s35, 0
    s_lshl_b32 s77, s35, 4
    s_add_u32 s61, s60, s77
    s_add_u32 s62, s61, s77
    s_mov_b64 exec, -1
    v_mov_b32 v{vaS[0]}, s60
    s_mov_b32 exec_lo, 0
    v_mov_b32 v{vaS[0]}, s62
    s_mov_b32 exec_lo, -1
    v_add_u32 v{vaS[1]}, s77, v{vaS[0]}
""")
    prio(3)
    e(f"""
    s_waitcnt lgkmcnt(0)
    s_barrier
""")
    stamp(5, 4, 1)
    dbg(2)
    def first_gathers():
        e(f"""
    ds_read_b128 {vr(vSO, 4)}, v{vaS[0]} offset:{SO}
    ds_read_b128 {vr(vSO + 4, 4)}, v{vaS[1]} offset:{SO}
    ds_read_b128 {vr(vE, 4)}, v{vaS[0]} offset:{SO + 16}
    ds_read_b128 {vr(vE + 4, 4)}, v{vaS[1]} offset:{SO + 16}
    s_waitcnt lgkmcnt(2)
""")
        gathers(vP[0], vSO)
        prio(2)
        e("    s_waitcnt lgkmcnt(0)")
        gathers(vP[1], vE)
    def addresses():
        e(f"""
    v_and_b32 v44, 31, v1
    v_lshrrev_b32 v46, 4, v{vaS[0]}
    v_add_u32 v46, v46, v44
    v_add_u32 v47, s35, v46
    ds_read_u8 v46, v46 offset:{FL}
    ds_read_u8 v47, v47 offset:{FL}
    s_add_u32 s63, s62, s77
    s_lshl_b32 s36, s23, 9
    s_add_u32 s36, s36, {QU}
    v_lshl_add_u32 v44, v44, 4, s36
""")
        for k in range(4):
            e(f"    v_cmp_ge_u32 vcc, s{60 + k}, v{vE16}\n    s_bcnt1_i32_b64 s{64 + k}, vcc\n    s_min_u32 s{64 + k}, s{64 + k}, s22\n    s_mulk_i32 s{64 + k}, {RS}")
        e(f"""
    v_sub_u32 v{vQ16}, v{vQ16}, v{vC4}
    v_add_u32 v{vNp}, v{vNp}, v{vQ16}
    v_add_u32 v{vaN[0]}, s64, v44
    v_add_u32 v{vaN[1]}, s65, v44
    v_mov_b32 v{vaE}, {ZR}
    v_mov_b32 v{vInc}, 0
    s_mov_b32 exec_lo, 0
    v_add_u32 v{vaN[0]}, s66, v44
    v_add_u32 v{vaN[1]}, s67, v44
    s_mov_b32 exec_lo, 0x55555555
    s_mov_b32 exec_hi, 0xaaaaaaaa
    v_bfe_u32 v45, v1, 1, 2
    v_mul_u32_u24 v45, s77, v45
    v_add_u32 v45, s60, v45
    v_and_b32 v{vaE}, 0x18, v1
    v_lshl_add_u32 v{vaE}, v45, 1, v{vaE}
    v_mov_b32 v{vInc}, {32 * UNR}
    s_mov_b64 exec, -1
    s_movk_i32 s36, 0x3f80
    s_mov_b32 s37, 0
    v_and_b32 v45, 0x30, v7
    v_lshlrev_b64 {vr(vI, 2)}, v45, s[36:37]
    s_mov_b32 s34, s35
""")
        if OPT["prio"]:
            e("    s_lshr_b32 s68, s35, 2\n    s_mul_i32 s69, s68, 3\n    s_lshl_b32 s70, s68, 1")
        e(f"""
    s_waitcnt lgkmcnt(0)
    v_cmp_ne_u32 {sr(sFM[0], 2)}, 0, v46
    v_cmp_ne_u32 {sr(sFM[1], 2)}, 0, v47
""")
    e(f"""
    s_cmp_lg_u32 s54, 0
    s_cbranch_scc1 K2_W3U
    s_cmp_lt_u32 s21, 8
    s_cbranch_scc1 K2_W3U
""")
    xbq = lambda T, s: 16 + 16 * T + 4 * s
    x_frags(8, xbq)
    tile_addr(120)
    e("    s_waitcnt vmcnt(0)")
    tile_mfma(vW, vU, xbq)
    e("    s_nop 3")
    for T in range(3):
        if T == 2:
            e(f"    s_mov_b32 exec_lo, {M9}\n    s_mov_b32 exec_hi, {M9}")
        for h in range(2):
            r = vU + 4 * T + 2 * h
            e(f"    v_pk_mul_f32 {vr(r, 2)}, {vr(r, 2)}, s[72:73] op_sel_hi:[1,0]")
        e(f"    ds_write2_b64 v{120 + T}, {vr(vU + 4 * T, 2)}, {vr(vU + 4 * T + 2, 2)} offset0:0 offset1:2")
    e("    s_mov_b64 exec, -1\n    s_waitcnt lgkmcnt(0)\n    s_barrier")
    first_gathers()
    stamp(11, 4, 1)
    prio(0)
    g = vW
    for r in range(12):
        e(f"    v_exp_f32 v{g + r}, v{vU + r}")
    for r in range(0, 12, 2):
        e(f"    v_pk_fma_f32 {vr(g + r, 2)}, {vr(g + r, 2)}, {KCOP}")
    for r in range(12):
        e(f"    v_rcp_f32 v{g + r}, v{g + r}")
    for T in range(3):
        if T == 2:
            e(f"    s_mov_b32 exec_lo, {M9}\n    s_mov_b32 exec_hi, {M9}")
        for r in (4 * T, 4 * T + 2):
            e(f"    v_pk_mul_f32 {vr(g + r, 2)}, {vr(g + r, 2)}, {vr(vU + r, 2)}")
        e(f"    ds_write2_b64 v{120 + T}, {vr(g + 4 * T, 2)}, {vr(g + 4 * T + 2, 2)} offset0:1 offset1:3")
    e("    s_mov_b64 exec, -1")
    addresses()
    e("    s_branch K2_W3D\nK2_W3U:")
    first_gathers()
    stamp(11, 4, 1)
    prio(0)
    addresses()
    e(f"""
    s_barrier
    s_cmp_lg_u32 s54, 0
    s_cbranch_scc1 K2_W3D
""")
    xbu = lambda T, s: (32 + 16 * T + 4 * s) if T < 2 else (8, 12, 64, 72)[s]
    x_frags(120, xbu)
    e("    s_waitcnt vmcnt(16)")
    tile_mfma(vW, vU, xbu)
    e(f"""
K2_W3D:
    ds_read_b64 {vr(vQ, 2)}, v{vaN[0]}
    ds_read_b64 {vr(vQ + 2, 2)}, v{vaN[1]}
    ds_read2_b64 {vr(vAe, 4)}, v{vaE} offset0:0 offset1:0
    ds_read_b128 {vr(vSO, 4)}, v{vaS[0]} offset:{SO + 32}
    ds_read_b128 {vr(vSO + 4, 4)}, v{vaS[1]} offset:{SO + 32}
    v_mov_b64 {vr(vAc[0], 2)}, 0
    v_mov_b64 {vr(vAc[1], 2)}, 0
    s_mov_b32 s54, 1
""")
    stamp(12, 4, 1)
    prio(3)
    e("    s_waitcnt vmcnt(8) lgkmcnt(0)")
    stamp(6, 4, 1)
    dbg(3)
    for q in range(4): e(mfma4(vD[0], vP[0], q))
    e("    s_cmp_lt_u32 s34, 3\n    s_cbranch_scc1 K2_NGP")
    gathers(vP[0], vSO)
    e(f"""
K2_NGP:
    s_nop 1
{mfma32(vD[0])}
    ds_read_b128 {vr(vSO, 4)}, v{vaS[0]} offset:{SO + 48}
    ds_read_b128 {vr(vSO + 4, 4)}, v{vaS[1]} offset:{SO + 48}
    ds_read2_b64 {vr(vAe, 4)}, v{vaE} offset0:4 offset1:4
""")
    for y in range(2):
        e(f"""
    s_and_b64 s[36:37], {sr(sFM[y], 2)}, s[32:33]
    s_cbranch_scc1 K2_QAP{y}
K2_QBP{y}:
""")
    e("    s_nop 4\nK2_LOOP:")
    for u in range(UNR):
        tile_iter(u)
    e("K2_LDONE:")
    for y in range(2):
        flush_adds(y)
    e(f"""
    v_mov_b32 v124, {MORE}
    ds_read_b32 v91, v124
    s_cmp_ge_u32 s21, 8
    s_cbranch_scc1 K2_NOU
    s_add_u32 s36, s74, 0x8000
""")
    for s in range(4):
        e(f"    buffer_load_dwordx4 {vr(vW + 4 * s, 4)}, v7, s[4:7], s36 offen offset:{1024 * s}")
    e(f"""
    v_mul_u32_u24 v88, {RB}, v6
    v_lshl_add_u32 v88, v5, 4, v88
    v_add_u32 v88, {AGB}, v88
    v_lshlrev_b32 v90, 16, v6
    v_lshl_or_b32 v90, v5, 3, v90
    s_lshl_b32 s36, s20, 8
    s_lshl_b32 s37, s21, 5
    s_add_u32 s36, s36, s37
    v_add_u32 v90, s36, v90
K2_NOU:
""")
    stamp(7, 4, 1)
    dbg(4)
    srd(16, N * 256)
    e(f"""
    v_lshrrev_b32 v84, 4, v0
    v_subrev_u32 v84, 24, v84               ; node
    v_lshlrev_b32 v87, 2, v84
    v_cvt_f32_u32 v125, v{vNp}
    v_mul_u32_u24 v85, {RB}, v84
    v_mul_u32_u24 v84, {RS}, v84
    v_mul_f32 v125, 0xbe800000, v125
    v_lshl_add_u32 v85, v6, 4, v85
    v_lshl_add_u32 v84, v6, 4, v84
    ds_bpermute_b32 v86, v87, v125
    v_add_u32 v85, {AGB}, v85
    v_add_u32 v84, {QU}, v84
    s_waitcnt vmcnt(0) lgkmcnt(0)
    v_readfirstlane_b32 s57, v91
    s_barrier
""")
    stamp(8, 4, 1)
    e(f"""
    s_cmp_lg_u32 s57, 0
    s_cbranch_scc1 K2_NEXT
    s_cmp_lt_u32 s21, 6
    s_cbranch_scc1 K2_NOCV
""")
    for k in range(4):
        e(f"    ds_read_b128 {vr(16 + 4 * k, 4)}, v84 offset:{AG - QU + 256 * k}\n    ds_read_b64 {vr(8 + 2 * k, 2)}, v84 offset:{256 * k + 8}")
    for k in range(4):
        e(f"    s_waitcnt lgkmcnt({6 - 2 * k})")
        e(f"    v_cvt_f32_f64 v{32 + 2 * k}, {vr(16 + 4 * k, 2)}\n    v_cvt_f32_f64 v{33 + 2 * k}, {vr(18 + 4 * k, 2)}")
        e(f"    v_pk_fma_f32 {vr(32 + 2 * k, 2)}, {vr(8 + 2 * k, 2)}, v[86:87], {vr(32 + 2 * k, 2)} op_sel_hi:[1,0,1]")
        e(f"    v_cvt_pk_bf16_f32 v{40 + k}, v{32 + 2 * k}, v{33 + 2 * k}")
    e(f"""
    ds_write_b128 v85, v[40:43]
    s_waitcnt lgkmcnt(0)
K2_NOCV:
    s_barrier
    s_cmp_ge_u32 s21, 8
    s_cbranch_scc1 K2_FIN
""")
    for s in range(4):
        for T in range(3):
            e(f"    ds_read_b128 {vr(xbq(T, s), 4)}, v88 offset:{16 * RB * T + 64 * s}")
    for s in range(4):
        for T in range(3):
            e(f"    s_waitcnt lgkmcnt({11 - 3 * s - T})")
            e(f"    v_mfma_f32_16x16x32_bf16 {vr(vU + 4 * T, 4)}, {vr(vW + 4 * s, 4)}, {vr(xbq(T, s), 4)}, {vr(vU + 4 * T, 4)}")
    e("    v_add_u32 v89, 0x100000, v90\n    v_add_u32 v91, 0x200000, v90\n    s_nop 1")
    for m in range(6):
        if m == 2: e("    s_nop 0")
        e(f"    v_pk_mul_f32 {vr(16 + 2 * m, 2)}, {vr(vU + 2 * m, 2)}, s[72:73] op_sel_hi:[1,0]")
    for m in range(12):
        e(f"    v_exp_f32 v{16 + m}, v{16 + m}")
    for m in range(6):
        e(f"    v_pk_add_f32 {vr(16 + 2 * m, 2)}, {vr(16 + 2 * m, 2)}, 1.0 op_sel_hi:[1,0]")
    for T in range(3):
        for m in range(4 * T, 4 * T + 4):
            e(f"    v_rcp_f32 v{16 + m}, v{16 + m}")
        e("    s_nop 0")
        for m in (2 * T, 2 * T + 1):
            e(f"    v_pk_mul_f32 {vr(16 + 2 * m, 2)}, {vr(16 + 2 * m, 2)}, {vr(vU + 2 * m, 2)}")
        for m in (2 * T, 2 * T + 1):
            e(f"    v_cvt_pk_bf16_f32 v{32 + m}, v{16 + 2 * m}, v{17 + 2 * m}")
        e(f"    buffer_store_dwordx2 {vr(32 + 2 * T, 2)}, v{(90, 89, 91)[T]}, s[16:19], 0 offen")
    e("K2_FIN:")
    dbg_out(1, 7, 6, 6, 'DBGC')
    if OPT["stamps"]:
        stamp(9, 4, 1); e("    s_waitcnt vmcnt(0)"); stamp(10, 4, 1); stamp_out(4, 1)
    e("K2_END:\n    s_endpgm")
    for u in range(UNR):
        for y in range(0 if OPT['noflush'] else 2):
            flush_block(y, f"K2_FL{u}{y}", f"K2_FB{u}{y}")
            qadv_block(y, f"K2_QA{u}{y}", f"K2_QB{u}{y}")
        e(f"K2_LW{u}:\n    s_waitcnt vmcnt(0) lgkmcnt(0)\n    s_branch K2_LWB{u}")
    for y in range(2):
        qadv_block(y, f"K2_QAP{y}", f"K2_QBP{y}")
    for sfx in ("", "2"):
        e(f"""
K2_MORE{sfx}:
    v_mov_b32 v61, {MORE}
    ds_write_b32 v61, v63
    s_branch K2_MOREB{sfx}
""")
    e("""
K2_NEXT:
    s_add_u32 s24, s24, s25
    s_branch K2_ROUND
K2_REDO:
    s_mov_b32 s25, 4
    s_waitcnt vmcnt(0) lgkmcnt(0)
    s_barrier
    s_branch K2_ROUND
""")

def desc(name, vg, sg):
    e(f"""
.p2align 6
.amdhsa_kernel {name}
  .amdhsa_next_free_vgpr {vg}
  .amdhsa_next_free_sgpr {sg}
  .amdhsa_accum_offset {vg}
  .amdhsa_group_segment_fixed_size 0
  .amdhsa_kernarg_size 72
  .amdhsa_user_sgpr_count 2
  .amdhsa_user_sgpr_kernarg_segment_ptr 1
  .amdhsa_system_sgpr_workgroup_id_x 1
.end_amdhsa_kernel
""")

e(f"""
; @launch kernel=mpnn_bin_kernel grid=(256,1,1) block=(1024,1,1) lds={K1_LDS}
; @launch kernel=mpnn_edge_kernel grid=(256,1,1) block=(1024,1,1) lds={K2_LDS}
.amdgcn_target "amdgcn-amd-amdhsa--gfx950"
""")
kernel1()
kernel2()
e('.section .rodata,"a"')
desc("mpnn_bin_kernel", 128, 96)
desc("mpnn_edge_kernel", 128, 96)
open(sys.argv[1], "w").write("\n".join(L) + "\n")
```

```python
import sys, struct, math

def f2u(x): return struct.unpack("<I", struct.pack("<f", x))[0]

OPT = dict(g1late=0, pf=0, gpos=0, nom4=0, nom32=0, mpos=0, nochk=0, prio1=0, dbg=0, safe=0, stamps=0, prio=1, nogather=0, nocore=0, nolds=0, nomfma=0, noflush=0)
for a in sys.argv[2:]:
    k, v = a.split("="); OPT[k] = int(v)

N, E = 10000, 320000
NB = 256
EPW = 1250
PT    = 0
DESC  = 0x280000
REC   = 0x2C0000
RSTR  = 15488
W2F   = 0x690000
WUT   = W2F + 0x8000
WUB   = WUT + 0x8000
W3F   = WUB + 0x8000
STAMP = W3F + 0x800
WSEND = STAMP + (0x80000 if OPT["stamps"] else 0)
NL2E = f2u(-1.4426950408889634)
KC   = f2u(1.0 / (2.0 ** 31 * math.log(2.0)))
NSC  = f2u(-2.0 ** -31)

L = []
def e(s=""):
    for ln in s.strip("\n").split("\n"):
        L.append(ln)
def vr(a, n): return f"v[{a}:{a + n - 1}]" if n > 1 else f"v{a}"
def sr(a, n): return f"s[{a}:{a + n - 1}]" if n > 1 else f"s{a}"

def srd(s, nrec, w3=0x20000):
    e(f"    s_mov_b32 s{s + 2}, {nrec:#x}\n    s_mov_b32 s{s + 3}, {w3:#x}")

def scan64(v):
    for c in ("row_shr:1 row_mask:0xf", "row_shr:2 row_mask:0xf", "row_shr:4 row_mask:0xf", "row_shr:8 row_mask:0xf",
              "row_bcast:15 row_mask:0xa", "row_bcast:31 row_mask:0xc"):
        e(f"    s_nop 1\n    v_add_u32_dpp v{v}, v{v}, v{v} {c} bank_mask:0xf")

NST = 16
def dbg(slot):
    if not OPT["dbg"]: return
    e(f"    s_memrealtime s[{80 + 2 * slot}:{81 + 2 * slot}]")
def dbg_out(kern, wv, base, n, lab):
    if not OPT["dbg"]: return
    e(f"""
    s_waitcnt vmcnt(0)
    s_memrealtime s[{80 + 2 * (n - 1)}:{81 + 2 * (n - 1)}]
    s_cmp_lg_u32 s2, 200
    s_cbranch_scc1 {lab}
    s_cmp_lg_u32 s21, {wv}
    s_cbranch_scc1 {lab}
    s_load_dwordx2 s[92:93], s[0:1], 56
    s_waitcnt lgkmcnt(0)
    s_add_u32 s92, s92, {512 * (1 - kern)}
    s_addc_u32 s93, s93, 0
    s_mov_b32 s94, 256
    s_mov_b32 s95, 0x20000
    s_mov_b64 exec, 1
""")
    for i in range(n):
        e(f"    v_mov_b32 v127, s{80 + 2 * i}\n    buffer_store_dword v127, off, s[92:95], 0 offset:{4 * (base + i)}\n    s_waitcnt vmcnt(0)")
    e(f"{lab}:")
def stamp(i, srd_s, kern):
    if not OPT["stamps"]: return
    e(f"""
    s_memtime s[90:91]
    s_waitcnt lgkmcnt(0)
    v_writelane_b32 v127, s90, {i}
""")
    if i == 0:
        e("    s_memrealtime s[90:91]\n    s_waitcnt lgkmcnt(0)\n    v_writelane_b32 v127, s90, 14")
def stamp_out(srd_s, kern):
    if not OPT["stamps"]: return
    e(f"""
    s_memrealtime s[90:91]
    s_waitcnt lgkmcnt(0)
    v_writelane_b32 v127, s90, 15
    s_mov_b64 exec, 0xffff
    s_lshl_b32 s90, s2, 4
    s_add_u32 s90, s90, s21
    s_lshl_b32 s90, s90, 6
    s_add_u32 s90, s90, {STAMP + kern * 0x40000}
    v_mbcnt_lo_u32_b32 v125, -1, 0
    v_lshlrev_b32 v125, 2, v125
    buffer_store_dword v127, v125, s[{srd_s}:{srd_s + 3}], s90 offen
    s_mov_b64 exec, -1
""")

K1_CNT, K1_ST, K1_STG, K1_WL = 0, 1024, 2048, 2048 + 15360
K1_LDS = 84 * 1024
def kernel1():
    e("""
.text
.globl mpnn_bin_kernel
.p2align 8
.type mpnn_bin_kernel,@function
mpnn_bin_kernel:
    s_cmp_ge_u32 s2, 256
    s_cbranch_scc1 K1_END
    s_load_dwordx4 s[4:7], s[0:1], 0        ; x, e_attr
    s_load_dwordx4 s[8:11], s[0:1], 16
    s_load_dwordx4 s[12:15], s[0:1], 32
    s_load_dwordx2 s[16:17], s[0:1], 64     ; ws
    v_lshrrev_b32 v2, 6, v0
    v_and_b32 v1, 63, v0
    v_readfirstlane_b32 s21, v2
""")
    stamp(0, 16, 0)
    dbg(0)
    e("""
    s_cmp_ge_u32 s21, 10
    s_cbranch_scc1 K1_GEMM
    s_and_b32 s20, s2, 7
    s_lshl_b32 s20, s20, 5
    s_lshr_b32 s3, s2, 3
    s_or_b32 s20, s20, s3
    s_mul_i32 s22, s20, 5000
    s_lshl_b32 s23, s22, 1
    v_lshlrev_b32 v3, 3, v0
    v_lshlrev_b32 v4, 4, v0
    v_cmp_gt_u32 vcc, 625, v0
    v_mov_b32 v20, 0
    v_mov_b32 v21, 0
    v_mov_b32 v22, 0
    v_mov_b32 v23, 0
    s_mov_b64 s[44:45], vcc
    s_waitcnt lgkmcnt(0)
    s_mov_b32 s24, s10
    s_mov_b32 s25, s11
""")
    srd(24, E * 4)
    e("    s_mov_b32 s28, s8\n    s_mov_b32 s29, s9"); srd(28, E * 4)
    e("    s_mov_b32 s32, s6\n    s_mov_b32 s33, s7"); srd(32, E * 8)
    srd(16, WSEND)
    e(f"""
    s_mov_b64 exec, s[44:45]
    buffer_load_dwordx2 v[6:7], v3, s[24:27], s22 offen      ; dst
    buffer_load_dwordx2 v[8:9], v3, s[28:31], s22 offen      ; src
    buffer_load_dwordx4 v[10:13], v4, s[32:35], s23 offen
    s_mov_b64 exec, -1
    s_cmp_lg_u32 s21, 0
    s_cbranch_scc1 K1_NOZ
    ds_write_b128 v4, v[20:23] offset:{K1_CNT}
K1_NOZ:
    v_mov_b32 v24, 1
    s_waitcnt lgkmcnt(0)
    s_barrier
    s_mov_b64 exec, s[44:45]
    s_waitcnt vmcnt(2)
""")
    stamp(1, 16, 0)
    dbg(1)
    e(f"""
    v_and_b32 v14, 0xff, v6
    v_and_b32 v15, 0xff, v7
    v_lshlrev_b32 v14, 2, v14
    v_lshlrev_b32 v15, 2, v15
    ds_add_rtn_u32 v16, v14, v24 offset:{K1_CNT}
    ds_add_rtn_u32 v17, v15, v24 offset:{K1_CNT}
    v_lshrrev_b32 v6, 8, v6
    v_lshrrev_b32 v7, 8, v7
    v_lshlrev_b32 v6, 26, v6
    v_lshlrev_b32 v7, 26, v7
    s_mov_b64 exec, -1
    v_lshlrev_b32 v5, 4, v1
    s_waitcnt lgkmcnt(0)
    s_barrier
""")
    stamp(2, 16, 0)
    e(f"""
    ds_read_b128 v[20:23], v5 offset:{K1_CNT}
    s_waitcnt vmcnt(1)
    v_lshl_or_b32 v8, v8, 3, v6
    v_lshl_or_b32 v9, v9, 3, v7
    s_waitcnt lgkmcnt(0)
    v_add_u32 v25, v20, v21
    v_add_u32 v26, v25, v22
    v_add_u32 v27, v26, v23
    v_mov_b32 v28, v27
""")
    scan64(28)
    e(f"""
    v_sub_u32 v28, v28, v27
    v_add_u32 v29, v28, v20
    v_add_u32 v30, v28, v25
    v_add_u32 v31, v28, v26
    ds_write_b128 v5, v[28:31] offset:{K1_ST}
    ds_read_b32 v18, v14 offset:{K1_ST}
    ds_read_b32 v19, v15 offset:{K1_ST}
    s_cmp_lg_u32 s21, 9
    s_cbranch_scc1 K1_NOD
    v_lshl_or_b32 v32, v20, 16, v28
    v_lshl_or_b32 v33, v21, 16, v29
    v_lshl_or_b32 v34, v22, 16, v30
    v_lshl_or_b32 v35, v23, 16, v31
    s_lshl_b32 s36, s20, 4
    s_add_u32 s36, s36, {DESC}
    v_lshlrev_b32 v36, 12, v1
    buffer_store_dwordx4 v[32:35], v36, s[16:19], s36 offen
K1_NOD:
    s_mov_b64 exec, s[44:45]
    s_waitcnt lgkmcnt(0)
    v_add_u32 v18, v18, v16
    v_add_u32 v19, v19, v17
    v_mul_u32_u24 v18, 12, v18
    v_mul_u32_u24 v19, 12, v19
    v_add_u32 v18, {K1_STG}, v18
    v_add_u32 v19, {K1_STG}, v19
    s_cmp_lg_u32 s21, 9
    s_cbranch_scc1 K1_W0
    s_waitcnt vmcnt(1)
    s_branch K1_W1
K1_W0:
    s_waitcnt vmcnt(0)
K1_W1:
    ds_write2_b32 v18, v10, v11 offset0:0 offset1:1
    ds_write_b32 v18, v8 offset:8
    ds_write2_b32 v19, v12, v13 offset0:0 offset1:1
    ds_write_b32 v19, v9 offset:8
    s_mov_b64 exec, -1
    s_mul_i32 s36, s20, {RSTR}
    s_add_u32 s36, s36, {REC}
    s_add_u32 s37, s36, 10240
    s_waitcnt lgkmcnt(0)
    s_barrier
""")
    stamp(3, 16, 0)
    e(f"""
    ds_read_b128 v[20:23], v4 offset:{K1_STG}
    s_cmp_ge_u32 s21, 5
    s_cbranch_scc1 K1_C1
    ds_read_b128 v[24:27], v4 offset:{K1_STG + 10240}
    s_waitcnt lgkmcnt(0)
    buffer_store_dwordx4 v[24:27], v4, s[16:19], s37 offen
K1_C1:
    s_waitcnt lgkmcnt(0)
    buffer_store_dwordx4 v[20:23], v4, s[16:19], s36 offen
""")
    dbg_out(0, 9, 0, 3, 'DBGA')
    if OPT["stamps"]:
        stamp(4, 16, 0); e("    s_waitcnt vmcnt(0)"); stamp(5, 16, 0); stamp_out(16, 0)
    e(f"""
    s_endpgm
K1_GEMM:
    s_sub_u32 s22, s21, 10                  ; gi
    v_lshrrev_b32 v2, 4, v1                 ; g
    v_and_b32 v3, 15, v1                    ; n / i
    s_cmp_ge_u32 s2, 209
    s_cbranch_scc1 K1_JOBS
    s_lshr_b32 s23, s22, 1                  ; T
    s_and_b32 s24, s22, 1                   ; fh
    ; W1 -> LDS source offset: row (l/16), chunk (l%16) ^ ((l/16)<<1)
    v_lshlrev_b32 v4, 1, v2
    v_xor_b32 v4, v4, v3
    v_lshlrev_b32 v4, 4, v4
    v_lshl_or_b32 v4, v2, 8, v4
    s_mul_i32 s25, s2, 48
    s_lshl_b32 s26, s23, 4
    s_add_u32 s25, s25, s26
    v_add_u32 v5, s25, v3
    v_lshlrev_b32 v5, 8, v5
    v_lshl_or_b32 v5, v2, 4, v5
    s_waitcnt lgkmcnt(0)
""")
    srd(4, N * 256)
    srd(12, 128 * 256)
    srd(16, N * 256)
    for m in range(6):
        if m == 5:
            e("    s_cmp_ge_u32 s22, 2\n    s_cbranch_scc1 K1_DMAD")
        e(f"""
    s_add_u32 s27, s22, {6 * m}
    s_lshl_b32 s28, s27, 6
    s_and_b32 s28, s28, 0x80
    s_lshl_b32 s27, s27, 10
    v_xor_b32 v6, s28, v4
    s_add_u32 s28, s27, {K1_WL}
    s_mov_b32 m0, s28
    s_nop 0
    buffer_load_dwordx4 v6, s[12:15], s27 offen lds
""")
    e("K1_DMAD:")
    for s in range(4):
        e(f"    buffer_load_dwordx4 {vr(8 + 4 * s, 4)}, v5, s[4:7], 0 offen offset:{64 * s}")
    e(f"""
    v_lshrrev_b32 v24, 2, v3                ; r'
    v_and_b32 v25, 3, v3                    ; c'
    v_and_b32 v26, 1, v2
    v_lshl_or_b32 v26, v26, 2, v24          ; h(k)
    v_lshl_add_u32 v27, v2, 3, v24          ; 8g + r'
    v_lshlrev_b32 v27, 8, v27
    v_lshl_or_b32 v27, v25, 3, v27
    v_add_u32 v27, {K1_WL}, v27
    s_lshl_b32 s27, s24, 2
    v_xor_b32 v26, s27, v26
""")
    for f in range(4):
        e(f"    v_xor_b32 v{28 + f}, {f}, v26\n    v_lshl_add_u32 v{28 + f}, v{28 + f}, 5, v27")
    e(f"""
    s_lshl_b32 s27, s24, 7
    v_add_u32 v5, s27, v5
    s_mov_b32 s28, {NL2E:#x}
    s_mov_b32 s29, {NL2E:#x}
    s_barrier
    s_barrier
    s_waitcnt vmcnt(0)
    s_barrier
""")
    stamp(3, 16, 0)
    for s in range(4):
        for f in range(4):
            for u2 in range(2):
                e(f"    ds_read_b64_tr_b16 {vr(32 + 16 * f + 4 * s + 2 * u2, 2)}, v{28 + f} offset:{s * 8192 + u2 * 1024}")
    for s in range(4):
        for f in range(4):
            left = 32 - (8 * s + 2 * f + 2)
            e(f"    s_waitcnt lgkmcnt({min(left, 15)})")
            c = "0" if s == 0 else vr(96 + 4 * f, 4)
            e(f"    v_mfma_f32_16x16x32_bf16 {vr(96 + 4 * f, 4)}, {vr(32 + 16 * f + 4 * s, 4)}, {vr(8 + 4 * s, 4)}, {c}")
    e("    s_nop 4")
    for f in range(4):
        for h in range(2):
            r = 96 + 4 * f + 2 * h
            e(f"    v_pk_mul_f32 {vr(r, 2)}, {vr(r, 2)}, s[28:29]")
        for h in range(2):
            r = 96 + 4 * f + 2 * h
            e(f"    v_cvt_pk_bf16_f32 v{112 + 2 * f + h}, v{r}, v{r + 1}")
        if f % 2 == 1:
            e(f"    buffer_store_dwordx4 {vr(112 + 2 * (f - 1), 4)}, v5, s[16:19], 0 offen offset:{64 * (f // 2)}")
    dbg_out(0, 15, 3, 2, 'DBGB')
    if OPT["stamps"]:
        srd(16, WSEND); stamp(4, 16, 0); e("    s_waitcnt vmcnt(0)"); stamp(5, 16, 0); stamp_out(16, 0)
    e(f"""
    s_endpgm
K1_JOBS:
    s_sub_u32 s23, s2, 209
    s_mul_i32 s23, s23, 6
    s_add_u32 s23, s23, s22
    s_waitcnt lgkmcnt(0)
""")
    srd(16, WSEND)
    e(f"""
    s_cmp_ge_u32 s23, 96
    s_cbranch_scc1 K1_JOB2
    s_lshr_b32 s24, s23, 5
    s_bfe_u32 s25, s23, 0x30002             ; f
    s_and_b32 s26, s23, 3                   ; s
    s_cmp_eq_u32 s24, 0
    s_cselect_b32 s28, s12, s14
    s_cselect_b32 s29, s13, s15
    s_mov_b32 s30, {256 * 256}
    s_mov_b32 s31, 0x20000
    ; column
    s_lshl_b32 s33, s25, 4                  ; 16 f
    v_add_u32 v4, s33, v3
    v_lshlrev_b32 v4, 1, v4
    ; row
    v_lshlrev_b32 v5, 11, v2                ; 8 g rows
    v_lshrrev_b32 v7, 1, v2
    v_lshlrev_b32 v7, 12, v7
    v_and_b32 v6, 1, v2
    v_lshl_or_b32 v7, v6, 9, v7             ; 16 (g>>1) + 2 (g&1) rows
    s_cmp_eq_u32 s24, 2
    s_cselect_b64 vcc, -1, 0
    s_cselect_b32 s32, 10, 13
    s_movk_i32 s33, 512
    s_cmovk_i32 s33, 8192
    s_cselect_b32 s34, {NSC:#x}, 1.0
    v_cndmask_b32 v5, v5, v7, vcc
    v_add_u32 v4, v4, v5
    s_lshl_b32 s40, s26, s32
    s_cmp_eq_u32 s24, 1
    s_cselect_b32 s36, 0, 0x8000
    s_add_u32 s40, s40, s36
    s_add_u32 s41, s40, s33
    s_add_u32 s42, s41, s33
    s_add_u32 s43, s42, s33
""")
    for m in range(8):
        e(f"    buffer_load_ushort v{8 + m}, v4, s[28:31], s{40 + m // 2} offen offset:{(m & 1) * 256}")
    e(f"""
    s_lshl_b32 s37, s23, 10
    s_add_u32 s37, s37, {W2F}
    v_lshlrev_b32 v6, 4, v1
    s_mov_b32 s38, 0x07060302
    s_waitcnt vmcnt(0)
""")
    for m in range(8):
        e(f"    v_lshlrev_b32 v{8 + m}, 16, v{8 + m}\n    v_mul_f32 v{8 + m}, s34, v{8 + m}")
    for m in range(4):
        e(f"    v_perm_b32 v{16 + m}, v{9 + 2 * m}, v{8 + 2 * m}, s38")
    e(f"""
    buffer_store_dwordx4 v[16:19], v6, s[16:19], s37 offen
    s_endpgm
K1_JOB2:
    s_cmp_ge_u32 s23, 98
    s_cbranch_scc1 K1_JOB3
    s_sub_u32 s24, s23, 96                  ; c
    s_mov_b32 s14, {260 * 256}
    s_mov_b32 s15, 0x20000
    v_and_b32 v2, 31, v1
    v_lshrrev_b32 v3, 5, v1
    v_lshl_or_b32 v2, v2, 1, v3             ; p & 63
    v_and_b32 v4, 0x23, v2
    v_bfe_u32 v5, v2, 2, 1
    v_lshl_or_b32 v4, v5, 4, v4
    v_bfe_u32 v5, v2, 3, 2
    v_lshl_or_b32 v4, v5, 2, v4             ; feature & 63
    v_lshlrev_b32 v4, 1, v4
    s_lshl_b32 s25, s24, 7
    s_add_u32 s25, s25, {256 * 256}
""")
    for d in range(4):
        e(f"    buffer_load_ushort v{8 + d}, v4, s[12:15], s25 offen offset:{d * 256}")
    e(f"""
    s_lshl_b32 s37, s24, 10
    s_add_u32 s37, s37, {W3F}
    v_lshlrev_b32 v6, 4, v1
    s_mov_b32 s34, {NL2E:#x}
    s_waitcnt vmcnt(0)
""")
    for d in range(4):
        e(f"    v_lshlrev_b32 v{8 + d}, 16, v{8 + d}\n    v_mul_f32 v{8 + d}, s34, v{8 + d}")
    e("""
    v_cvt_pk_bf16_f32 v16, v8, v9
    v_cvt_pk_bf16_f32 v17, v10, v11
    v_lshlrev_b32 v12, 16, v16
    v_and_b32 v13, 0xffff0000, v16
    v_lshlrev_b32 v14, 16, v17
    v_and_b32 v15, 0xffff0000, v17
    v_sub_f32 v8, v8, v12
    v_sub_f32 v9, v9, v13
    v_sub_f32 v10, v10, v14
    v_sub_f32 v11, v11, v15
    v_cvt_pk_bf16_f32 v18, v8, v9
    v_cvt_pk_bf16_f32 v19, v10, v11
    buffer_store_dwordx4 v[16:19], v6, s[16:19], s37 offen
    s_endpgm
K1_JOB3:
    s_cmp_lg_u32 s23, 98
    s_cbranch_scc1 K1_END
    v_mov_b32 v8, 0
    v_lshlrev_b32 v6, 2, v1
""")
    e(f"""
    s_mov_b32 s37, {PT + N * 256}
    buffer_store_dword v8, v6, s[16:19], s37 offen
K1_END:
    s_endpgm
""")

RS = 1040
RB = 272
CAP = 2048
MISC = 0
ZR, CNT, MORE, FL = 0, 768, 1024, 1088
SO = 2048
EA = SO + CAP * 4
W3L = EA + CAP * 8
QU = W3L + 2048
AG = QU + 41 * RS
XL = (AG + 2 * 16384 + 11 * 1024 + 255) // 256 * 256
AGB = XL
K2_LDS = AGB + 48 * RB
PADV = N * 8
S16MAX = (CAP // 4 - 8) * 16
NT = 16
NK = 6
vSO, vP, vD, vE, vAe, vBw, vQ, vNp, vAc, vI = 8, (16, 24), (32, 92), 48, 64, 68, 72, 126, (80, 82), 84
vaS, vaE, vaN = (86, 87), 88, (90, 91)
vU = 108
vC4, vQ16, vE16, vS16 = 120, 121, 122, 123
vCA, vCW, vCN, vFR, vFO = 120, 121, 122, 124, 125
sM = [40 + 2 * k for k in range(NK)]
sFM, sEV = (28, 30), (32, 33)
sFirst, sMoreV, sMM = 56, 57, 58
M9 = "0x01ff01ff"
KCOP = "s[26:27], s[26:27] op_sel_hi:[1,0,0] clamp"

def flush_adds(y):
    t = vE + 8 * y
    e(f"""
    v_cvt_f64_f32 {vr(t, 2)}, v{vAc[y]}
    v_cvt_f64_f32 {vr(t + 2, 2)}, v{vAc[y] + 1}
    ds_add_f64 v{vaN[y]}, {vr(t, 2)} offset:{AG - QU}
    ds_add_f64 v{vaN[y]}, {vr(t + 2, 2)} offset:{AG - QU + 8}
""")

def exec_bit(y, t):
    e(f"    s_bfe_i32 exec_lo, s{sFM[y]}, {0x10000 | t:#x}\n    s_bfe_i32 exec_hi, s{sFM[y] + 1}, {0x10000 | t:#x}")

def event_block(t, y):
    e(f"K2_EV{t}_{y}:")
    exec_bit(y, t)
    e(f"    s_cbranch_execz K2_EQ{t}_{y}")
    flush_adds(y)
    e(f"""
    v_add_u32 v{vaN[y]}, {RS}, v{vaN[y]}
    v_mov_b64 {vr(vAc[y], 2)}, 0
K2_EQ{t}_{y}:
""")
    if t + 2 < NT:
        exec_bit(y, t + 1)
        e(f"    ds_read_b64 {vr(vQ + 2 * y, 2)}, v{vaN[y]} offset:{RS}")
    e(f"    s_mov_b64 exec, -1\n    s_branch K2_EB{t}_{y}")

def gather_lines(dst, adr):
    out = []
    for q in range(4):
        for y in range(2):
            a = adr + 4 * y + q
            pre = f"    v_min_u32 v{a}, {PADV}, v{a}\n    v_and_b32 v{a}, -8, v{a}\n" if OPT["safe"] else ""
            out.append(pre + f"    buffer_load_dword v{dst + 2 * q + y}, v{a}, s[8:11], 0 offen")
    return out
def gathers(dst, adr):
    for l in gather_lines(dst, adr): e(l)

def mfma4(D, P, q): return f"    v_mfma_f32_4x4x4_16b_bf16 {vr(D + 4 * q, 4)}, {vr(vI, 2)}, {vr(P + 2 * q, 2)}, {vr(vQ, 4)}"
def mfma32(D): return f"    v_mfma_f32_32x32x16_bf16 {vr(D, 16)}, {vr(vAe, 4)}, {vr(vBw, 4)}, {vr(D, 16)}"

def core_lines(D):
    Ee = vE
    def p(r): return vr(r, 2)
    ex = [f"    v_exp_f32 v{Ee + k}, v{D + k}" for k in range(16)]
    sc = [f"    v_pk_fma_f32 {p(Ee + 2 * m)}, {p(Ee + 2 * m)}, {KCOP}" for m in range(8)]
    seq = [
        lambda o: f"v_pk_mul_f32 {p(D + o)}, {p(D + o)}, {p(Ee + o + 4)}",
        lambda o: f"v_pk_mul_f32 {p(D + o + 8)}, {p(D + o + 8)}, {p(Ee + o + 12)}",
        lambda o: f"v_pk_fma_f32 {p(D + o)}, {p(D + o + 4)}, {p(Ee + o)}, {p(D + o)}",
        lambda o: f"v_pk_fma_f32 {p(D + o + 8)}, {p(D + o + 12)}, {p(Ee + o + 8)}, {p(D + o + 8)}",
        lambda o: f"v_pk_mul_f32 {p(Ee + o)}, {p(Ee + o)}, {p(Ee + o + 4)}",
        lambda o: f"v_pk_mul_f32 {p(Ee + o + 8)}, {p(Ee + o + 8)}, {p(Ee + o + 12)}",
        lambda o: f"v_pk_mul_f32 {p(Ee + o + 4)}, {p(Ee + o)}, {p(Ee + o + 8)}",
        lambda o: f"v_pk_mul_f32 {p(D + o)}, {p(D + o)}, {p(Ee + o + 8)}",
        lambda o: f"v_rcp_f32 v{Ee + o + 4}, v{Ee + o + 4}",
        lambda o: f"v_rcp_f32 v{Ee + o + 5}, v{Ee + o + 5}",
        lambda o: f"v_pk_fma_f32 {p(D + o)}, {p(D + o + 8)}, {p(Ee + o)}, {p(D + o)}",
        lambda o: f"v_pk_fma_f32 {p(vAc[o // 2])}, {p(D + o)}, {p(Ee + o + 4)}, {p(vAc[o // 2])}",
    ]
    rest = ["    " + fn(o) for fn in seq for o in (0, 2)]
    if OPT["nocore"]: return ["    s_nop 0"] * 16, [], []
    return ex, sc, rest

PRIO_AT = {NT - 7: 1, NT - 3: 0}
def tile(t):
    a, r = t % 2, NT - t
    ex, sc, rest = core_lines(vD[a])
    Dn, Pn = vD[1 - a], vP[1 - a]
    e(f"K2_T{t}:")
    if t in PRIO_AT: prio(PRIO_AT[t])
    k = 0
    if r >= 2:
        for l in ex[:2]: e(l)
        e(f"    s_waitcnt vmcnt({8 if r >= 3 else 0}) lgkmcnt(0)")
        for q in range(4):
            if not OPT["nomfma"]: e(mfma4(Dn, Pn, q))
            e(ex[2 + q])
        for l in ex[6:9]: e(l)
        if not OPT["nomfma"]: e(mfma32(Dn))
        for l in ex[9:14]: e(l)
        k = 14
        if r >= 4 and not OPT["nogather"]: gathers(Pn, vSO)
        if not OPT["nolds"]:
            if r >= 5:
                e(f"    ds_read_b128 {vr(vSO, 4)}, v{vaS[0]} offset:{16 * (t + 4)}\n    ds_read_b128 {vr(vSO + 4, 4)}, v{vaS[1]} offset:{16 * (t + 4)}")
            if r >= 3:
                e(f"    ds_read2_b64 {vr(vAe, 4)}, v{vaE} offset0:{4 * (t + 2)} offset1:{4 * (t + 2)}")
    for l in ex[k:]: e(l)
    for l in sc: e(l)
    for l in rest: e(l)
    if r >= 2 and not OPT["noflush"]:
        for y in range(2):
            e(f"    s_bitcmp1_b32 s{sEV[y]}, {t}\n    s_cbranch_scc1 K2_EV{t}_{y}\nK2_EB{t}_{y}:")

def x_frags(xa, xb):
    e(f"""
    v_xor_b32 v{xa}, v5, v6
    v_lshlrev_b32 v{xa}, 4, v{xa}
    v_lshl_or_b32 v{xa}, v6, 8, v{xa}
    v_add_u32 v{xa}, {XL}, v{xa}
    v_xor_b32 v{xa + 1}, 64, v{xa}
    v_xor_b32 v{xa + 2}, 0x80, v{xa}
    v_xor_b32 v{xa + 3}, 0xc0, v{xa}
""")
    for s in range(4):
        for T in range(3):
            e(f"    ds_read_b128 {vr(xb(T, s), 4)}, v{xa + s} offset:{4096 * T}")

def prio(n):
    if OPT["prio"]: e(f"    s_setprio {n}")

def setup_scalars():
    e(f"""
    s_cmp_lt_u32 s20, 16
    s_cselect_b32 s22, 40, 39
    s_bfm_b64 s[78:79], s22, 0
    s_and_b32 s23, s21, 1                   ; c
    s_lshr_b32 s76, s21, 1                  ; group
    s_mov_b32 s26, {KC:#x}
    s_mov_b32 s72, {NL2E:#x}
    s_lshl_b32 s39, s23, 7
    s_add_u32 s8, s4, s39
    s_addc_u32 s9, s5, 0
    s_or_b32 s9, s9, 0x80000000
    s_mov_b32 s10, 0x10000
    s_mov_b32 s11, 0x00c00000
""")
    srd(16, N * 256)

def scan():
    e(f"""
    ds_read_b32 v{vC4}, v62 offset:{CNT}
    s_waitcnt lgkmcnt(0)
    v_add_u32 v{vQ16}, 12, v{vC4}
    v_and_b32 v{vQ16}, -16, v{vQ16}
    s_mov_b64 exec, s[78:79]
    v_max_u32 v{vQ16}, 16, v{vQ16}          ; 16*quads
    s_mov_b64 exec, -1
    s_nop 0
    v_add_u32_dpp v{vE16}, v{vQ16}, v{vQ16} row_shr:1 row_mask:0xf bank_mask:0xf bound_ctrl:1
""")
    for c in ("row_shr:2 row_mask:0xf", "row_shr:4 row_mask:0xf", "row_shr:8 row_mask:0xf", "row_bcast:15 row_mask:0xa", "row_bcast:31 row_mask:0xc"):
        e(f"    s_nop 1\n    v_add_u32_dpp v{vE16}, v{vE16}, v{vE16} {c} bank_mask:0xf")
    e(f"""
    v_sub_u32 v{vS16}, v{vE16}, v{vQ16}
    v_readlane_b32 s34, v{vE16}, 63
""")

def x_addr(xa):
    e(f"""
    v_xor_b32 v{xa}, v5, v6
    v_lshlrev_b32 v{xa}, 4, v{xa}
    v_lshl_or_b32 v{xa}, v6, 8, v{xa}
    v_add_u32 v{xa}, {XL}, v{xa}
    v_xor_b32 v{xa + 1}, 64, v{xa}
    v_xor_b32 v{xa + 2}, 0x80, v{xa}
    v_xor_b32 v{xa + 3}, 0xc0, v{xa}
""")
def x_reads(xa, xb):
    for s in range(4):
        for T in range(3):
            e(f"    ds_read_b128 {vr(xb(T, s), 4)}, v{xa + s} offset:{4096 * T}")

def kernel2():
    e(f"""
.text
.globl mpnn_edge_kernel
.p2align 8
.type mpnn_edge_kernel,@function
mpnn_edge_kernel:
    s_load_dwordx2 s[4:5], s[0:1], 64       ; ws
    s_load_dwordx2 s[12:13], s[0:1], 0      ; x
    s_load_dwordx2 s[16:17], s[0:1], 48     ; out
    s_cmp_ge_u32 s2, 256
    s_cbranch_scc1 K2_END
    v_lshrrev_b32 v2, 6, v0
    s_and_b32 s20, s2, 7
    v_readfirstlane_b32 s21, v2
    s_lshl_b32 s20, s20, 5
    s_lshr_b32 s3, s2, 3
    s_or_b32 s20, s20, s3                   ; bucket
    s_mov_b32 s6, {WSEND:#x}
    s_mov_b32 s7, 0x20000
    v_and_b32 v4, -4, v0
    v_lshlrev_b32 v4, 2, v4
    s_lshr_b32 s34, s20, 2
    s_lshl_b32 s34, s34, 10
    s_and_b32 s35, s20, 3
    s_or_b32 s34, s34, s35
    s_lshl_b32 s34, s34, 2
    s_add_u32 s34, s34, {DESC}
""")
    stamp(0, 4, 1); dbg(0)
    e(f"""
    v_lshrrev_b32 v8, 4, v0
    v_xor_b32 v9, v8, v0
    s_lshl_b32 s35, s20, 8
    v_lshl_add_u32 v8, v8, 16, s35
    v_and_b32 v9, 15, v9
    s_lshl_b32 s36, s21, 10
    s_add_u32 s36, s36, {XL}
    s_mov_b32 m0, s36
""")
    srd(12, N * 256)
    e(f"""
    v_lshl_add_u32 v8, v9, 4, v8
    s_waitcnt lgkmcnt(0)
    buffer_load_dword v2, v4, s[4:7], s34 offen
    s_cmp_ge_u32 s21, 11
    s_cbranch_scc1 K2_NOX
    buffer_load_dwordx4 v8, s[12:15], 0 offen lds
K2_NOX:
    v_lshlrev_b32 v60, 4, v0
    v_mov_b64 v[48:49], 0
    v_mov_b64 v[50:51], 0
    v_add_u32 v61, {AG}, v60
    ds_write_b128 v61, v[48:51]
    ds_write_b128 v61, v[48:51] offset:16384
    s_cbranch_scc1 K2_NOZ3
    ds_write_b128 v61, v[48:51] offset:32768
K2_NOZ3:
    v_and_b32 v1, 63, v0
    v_lshrrev_b32 v3, 2, v0
    v_mul_u32_u24 v3, {RSTR}, v3
    v_and_b32 v4, 3, v0
    s_mov_b32 s24, 0
    s_mov_b32 s25, {4 * NK}
    s_mov_b32 s{sFirst}, 1
K2_ROUND:
    s_cmp_lt_u32 s21, 14
    s_cbranch_scc1 K2_NOZ
    v_subrev_u32 v61, {14 * 1024}, v60
    ds_write_b128 v61, v[48:51] offset:{MISC}
    s_waitcnt lgkmcnt(0)
K2_NOZ:
    s_mov_b32 s34, {REC}
""")
    prio(2)
    e("    s_barrier")
    stamp(13, 4, 1)
    e(f"""
    s_cmp_lt_u32 s21, 11
    s_cbranch_scc1 K2_WD1
    s_waitcnt vmcnt(0)
K2_WD1:
    s_waitcnt vmcnt(1)
""")
    stamp(1, 4, 1)
    e(f"""
    v_lshrrev_b32 v56, 16, v2               ; count
    v_and_b32 v57, 0xffff, v2               ; start
    v_subrev_u32 v56, s24, v56
    v_add3_u32 v57, v57, s24, v4
    v_min_i32 v58, s25, v56
    v_mad_u32_u24 v57, v57, 12, v3
    v_sub_u32 v58, v58, v4
""")
    for k in range(3): e(f"    v_cmp_lt_i32 {sr(sM[k], 2)}, {4 * k}, v58")
    for k in range(NK):
        if k >= 3:
            e(f"    v_cmp_lt_i32 {sr(sM[k], 2)}, {4 * k}, v58")
        e(f"    s_mov_b64 exec, {sr(sM[k], 2)}")
        if k >= 2:
            e(f"    s_cbranch_execz K2_RLD")
        e(f"    buffer_load_dwordx3 {vr(8 + 4 * k, 3)}, v57, s[4:7], s34 offen offset:{48 * k}")
    e(f"""
K2_RLD:
    s_mov_b64 exec, -1
""")
    stamp(2, 4, 1)
    prio(0)
    e(f"""
    ds_write_b128 v60, v[48:51] offset:{EA}
    v_lshlrev_b32 v7, 4, v1                 ; lane*16
    v_lshrrev_b32 v5, 4, v1                 ; g
    v_and_b32 v6, 15, v1                    ; n
    v_cmp_lt_i32 {sr(sMM, 2)}, s25, v56
    v_mov_b32 v63, 4
    v_lshlrev_b32 v62, 2, v1
    s_cmp_ge_u32 s21, 8
    s_cbranch_scc1 K2_NOSO
    v_mov_b32 v52, {PADV}
    v_mov_b32 v53, v52
    v_mov_b32 v54, v52
    v_mov_b32 v55, v52
    ds_write_b128 v60, v[52:55] offset:{SO}
K2_NOSO:
    s_cmp_eq_u32 s{sFirst}, 0
    s_cbranch_scc1 K2_SETD
    v_mov_b32 v{vNp}, 0
    v_mov_b32 v{vFO}, 0
""")
    setup_scalars()
    e(f"""
    s_cmp_lt_u32 s21, 8
    s_cbranch_scc1 K2_SETL
    s_lshl_b32 s74, s21, 12
    s_add_u32 s74, s74, {W2F - 8 * 4096}
""")
    for s in range(4):
        e(f"    buffer_load_dwordx4 {vr(92 + 4 * s, 4)}, v7, s[4:7], s74 offen offset:{1024 * s}")
    if OPT["pf"]:
        e(f"""
    s_cmp_lt_u32 s21, {16 - OPT["pf"]}
    s_cbranch_scc1 K2_NOPF
    s_lshr_b32 s34, s2, 3
    s_mul_i32 s34, s34, 80000
    s_sub_u32 s35, 15, s21
    s_lshl_b32 s35, s35, 13
    s_add_u32 s34, s34, s35
    v_lshlrev_b32 v119, 3, v7
    buffer_load_dword v119, v119, s[4:7], s34 offen
    s_branch K2_PFD
K2_NOPF:
    buffer_load_dword v119, off, s[4:7], s74
K2_PFD:
""")
    x_addr(108)
    e(f"""
    s_bfe_u32 s36, s21, 0x20001
    s_lshl_b32 s36, s36, 8
    s_lshl_b32 s37, s23, 5
    s_add_u32 s36, s36, s37
    s_add_u32 s36, s36, {QU}
    v_mul_u32_u24 v112, {RS}, v6
    v_lshl_add_u32 v112, v5, 6, v112
    v_add_u32 v112, s36, v112
    v_add_u32 v113, {16 * RS}, v112
    v_add_u32 v114, {32 * RS}, v112
    s_mov_b64 exec, {sr(sMM, 2)}
    s_cbranch_execnz K2_MORE1
K2_MOREB1:
""")
    prio(2)
    e(f"""
    s_waitcnt vmcnt({5 if OPT["pf"] else 4})
    s_branch K2_RECS
K2_SETL:
    s_cmp_ge_u32 s21, 2
    s_cbranch_scc1 K2_SETD
    s_lshl_b32 s34, s21, 10
    s_add_u32 s35, s34, {W3L}
    s_add_u32 s34, s34, {W3F}
    s_mov_b32 m0, s35
    s_nop 0
    buffer_load_dwordx4 v7, s[4:7], s34 offen lds
K2_SETD:
    s_mov_b64 exec, {sr(sMM, 2)}
    s_cbranch_execnz K2_MORE2
K2_MOREB2:
""")
    prio(2)
    e("    s_waitcnt vmcnt(0)\nK2_RECS:")
    stamp(3, 4, 1)
    for k in range(NK):
        e(f"    s_mov_b64 exec, {sr(sM[k], 2)}")
        if k >= 2: e("    s_cbranch_execz K2_HISTD")
        e(f"""
    v_lshrrev_b32 v{40 + k}, 24, v{10 + 4 * k}
    ds_add_rtn_u32 v{11 + 4 * k}, v{40 + k}, v63 offset:{CNT}
    v_and_b32 v{10 + 4 * k}, 0x3ffffff, v{10 + 4 * k}
""")
    e(f"""
K2_HISTD:
    s_mov_b64 exec, -1
    s_waitcnt lgkmcnt(0)
    s_barrier
""")
    stamp(4, 4, 1); dbg(1)
    scan()
    for k in range(NK):
        if k == 3: e(f"    s_cmp_eq_u64 {sr(sM[2], 2)}, 0\n    s_cbranch_scc1 K2_BPD")
        if k >= 3: e(f"    s_cmp_eq_u64 {sr(sM[k], 2)}, 0\n    s_cbranch_scc1 K2_BPD")
        e(f"    ds_bpermute_b32 v{40 + k}, v{40 + k}, v{vS16}")
    e(f"""
K2_BPD:
    s_cmp_gt_u32 s34, {S16MAX}
    s_cbranch_scc1 K2_REDO
    s_add_u32 s34, s34, 48
    s_lshr_b32 s35, s34, 9
    s_bfe_u32 s34, s34, 0x30006
    s_mul_i32 s37, s76, s35
    s_waitcnt lgkmcnt(0)
""")
    for k in range(NK):
        e(f"    s_mov_b64 exec, {sr(sM[k], 2)}")
        if k >= 2: e("    s_cbranch_execz K2_GEO")
        e(f"""
    v_add_u32 v{40 + k}, v{40 + k}, v{11 + 4 * k}
    v_add_u32 v{11 + 4 * k}, v{40 + k}, v{40 + k}
    ds_write_b32 v{40 + k}, v{10 + 4 * k} offset:{SO}
    ds_write_b64 v{11 + 4 * k}, {vr(8 + 4 * k, 2)} offset:{EA}
""")
    e(f"""
K2_GEO:
    s_cmp_lg_u32 s21, 0
    s_cbranch_scc1 K2_NOFL
    s_mov_b64 exec, s[78:79]
    v_lshrrev_b32 v46, 4, v{vE16}
    ds_write_b8 v46, v63 offset:{FL - 1}
K2_NOFL:
    s_min_u32 s38, s76, s34
    s_add_u32 s37, s37, s38
    s_lshl_b32 s60, s37, 6                  ; stream (0,X)
    s_cmp_lt_u32 s76, s34
    s_addc_u32 s35, s35, 0
    s_lshl_b32 s77, s35, 4
    s_add_u32 s61, s60, s77
    s_add_u32 s62, s61, s77
    s_mov_b64 exec, -1
    v_mov_b32 v{vaS[0]}, s60
    s_mov_b32 exec_lo, 0
    v_mov_b32 v{vaS[0]}, s62
    s_mov_b32 exec_lo, -1
    v_add_u32 v{vaS[1]}, s77, v{vaS[0]}
    s_lshr_b32 s36, s21, 3
    s_and_b32 s36, s36, s{sFirst}
""")
    prio(3)
    e(f"""
    s_waitcnt lgkmcnt(0)
    s_barrier
""")
    stamp(5, 4, 1); dbg(2)
    e(f"""
    s_cbranch_scc0 K2_FG
""")
    xbq = lambda T, s: 16 + 16 * T + 4 * s
    x_reads(108, xbq)
    e(f"    s_waitcnt vmcnt({1 if OPT['pf'] else 0})")
    for s in range(4):
        for T in range(3):
            e(f"    s_waitcnt lgkmcnt({11 - 3 * s - T})")
            c = "0" if s == 0 else vr(64 + 4 * T, 4)
            e(f"    v_mfma_f32_16x16x32_bf16 {vr(64 + 4 * T, 4)}, {vr(92 + 4 * s, 4)}, {vr(xbq(T, s), 4)}, {c}")
    e("    s_nop 3")
    for T in range(3):
        if T == 2:
            e(f"    s_mov_b32 exec_lo, {M9}\n    s_mov_b32 exec_hi, {M9}")
        for h in range(2):
            r = 64 + 4 * T + 2 * h
            e(f"    v_pk_mul_f32 {vr(r, 2)}, {vr(r, 2)}, s[72:73] op_sel_hi:[1,0]")
        e(f"    ds_write2_b64 v{112 + T}, {vr(64 + 4 * T, 2)}, {vr(64 + 4 * T + 2, 2)} offset0:0 offset1:2")
    e("    s_mov_b64 exec, -1\n    s_waitcnt lgkmcnt(0)\n    s_barrier")
    for r in range(12):
        e(f"    v_exp_f32 v{92 + r}, v{64 + r}")
    for r in range(0, 12, 2):
        e(f"    v_pk_fma_f32 {vr(92 + r, 2)}, {vr(92 + r, 2)}, {KCOP}")
    for r in range(12):
        e(f"    v_rcp_f32 v{92 + r}, v{92 + r}")
    for T in range(3):
        if T == 2:
            e(f"    s_mov_b32 exec_lo, {M9}\n    s_mov_b32 exec_hi, {M9}")
        for r in (4 * T, 4 * T + 2):
            e(f"    v_pk_mul_f32 {vr(92 + r, 2)}, {vr(92 + r, 2)}, {vr(64 + r, 2)}")
        e(f"    ds_write2_b64 v{112 + T}, {vr(92 + 4 * T, 2)}, {vr(92 + 4 * T + 2, 2)} offset0:1 offset1:3")
    e(f"""
    s_mov_b64 exec, -1
K2_FG:
    ds_read_b128 {vr(vSO, 4)}, v{vaS[0]} offset:{SO}
    ds_read_b128 {vr(vSO + 4, 4)}, v{vaS[1]} offset:{SO}
    ds_read_b128 {vr(vE, 4)}, v{vaS[0]} offset:{SO + 16}
    ds_read_b128 {vr(vE + 4, 4)}, v{vaS[1]} offset:{SO + 16}
    s_bitcmp1_b32 s35, 0
    s_cbranch_scc1 K2_FG1
""")
    for a in range(2):
        if a: e("K2_FG1:")
        e("    s_waitcnt lgkmcnt(2)")
        gathers(vP[a], vSO)
        e("    s_waitcnt lgkmcnt(0)")
        if OPT["g1late"]: e(f"    s_mov_b32 s75, {a}")
        else: gathers(vP[1 - a], vE)
        if not a: e("    s_branch K2_FGD")
    e("K2_FGD:")
    stamp(11, 4, 1)
    e(f"""
    v_and_b32 v44, 31, v1
    v_lshrrev_b32 v46, 4, v{vaS[0]}
    v_add_u32 v46, v46, v44
    v_add_u32 v47, s35, v46
    ds_read_u8 v46, v46 offset:{FL}
    ds_read_u8 v47, v47 offset:{FL}
    s_lshl_b32 s36, s23, 10
    v_add_u32 v45, s36, v7
    ds_read_b128 {vr(vBw, 4)}, v45 offset:{W3L}
    ds_read_b128 {vr(vSO, 4)}, v{vaS[0]} offset:{SO + 32}
    ds_read_b128 {vr(vSO + 4, 4)}, v{vaS[1]} offset:{SO + 32}
    s_add_u32 s63, s62, s77
    s_lshl_b32 s36, s23, 9
    s_add_u32 s36, s36, {QU}
    v_lshl_add_u32 v44, v44, 4, s36
""")
    for k in range(4):
        e(f"    v_cmp_ge_u32 vcc, s{60 + k}, v{vE16}\n    s_bcnt1_i32_b64 s{64 + k}, vcc\n    s_min_u32 s{64 + k}, s{64 + k}, s22\n    s_mulk_i32 s{64 + k}, {RS}")
    e(f"""
    v_sub_u32 v{vQ16}, v{vQ16}, v{vC4}
    v_add_u32 v{vNp}, v{vNp}, v{vQ16}
    v_add_u32 v{vaN[0]}, s64, v44
    v_add_u32 v{vaN[1]}, s65, v44
    v_mov_b32 v{vaE}, {ZR}
    s_mov_b32 exec_lo, 0
    v_add_u32 v{vaN[0]}, s66, v44
    v_add_u32 v{vaN[1]}, s67, v44
    s_mov_b32 exec_lo, 0x55555555
    s_mov_b32 exec_hi, 0xaaaaaaaa
    v_bfe_u32 v45, v1, 1, 2
    v_mul_u32_u24 v45, s77, v45
    s_add_u32 s36, s60, {EA // 2}
    v_add_u32 v45, s36, v45
    v_and_b32 v{vaE}, 0x18, v1
    v_lshl_add_u32 v{vaE}, v45, 1, v{vaE}
    s_mov_b64 exec, -1
    ds_read2_b64 {vr(vAe, 4)}, v{vaE} offset0:0 offset1:0
    s_movk_i32 s36, 0x3f80
    s_mov_b32 s37, 0
    v_and_b32 v45, 0x30, v7
    v_lshlrev_b64 {vr(vI, 2)}, v45, s[36:37]
    v_mov_b64 {vr(vAc[0], 2)}, 0
    v_mov_b64 {vr(vAc[1], 2)}, 0
    s_sub_u32 s34, {NT}, s35
    s_lshl_b32 s38, s34, 4
    s_sub_u32 s38, {SO}, s38
    s_lshl_b32 s39, s34, 5
    s_waitcnt lgkmcnt(4)
    v_cmp_ne_u32 {sr(sFM[0], 2)}, 0, v46
    v_cmp_ne_u32 {sr(sFM[1], 2)}, 0, v47
    s_lshr_b32 s36, s21, 3
    s_and_b32 s36, s36, s{sFirst}
    s_cbranch_scc1 K2_NOB
    s_barrier
K2_NOB:
    ds_read_b64 {vr(vQ, 2)}, v{vaN[0]}
    ds_read_b64 {vr(vQ + 2, 2)}, v{vaN[1]}
    s_mov_b32 s{sFirst}, 0
""")
    for y in range(2):
        e(f"""
    s_lshl_b32 s{sFM[y]}, s{sFM[y]}, s34
    s_lshl_b32 s{sFM[y] + 1}, s{sFM[y] + 1}, s34
    s_or_b32 s36, s{sFM[y]}, s{sFM[y] + 1}
    s_lshr_b32 s37, s36, 1
    s_or_b32 s{sEV[y]}, s36, s37
""")
    stamp(12, 4, 1)
    e(f"""
    s_or_b32 s34, s34, 0x10000
    s_bitcmp1_b32 s35, 0
    s_waitcnt vmcnt(8) lgkmcnt(0)
""")
    stamp(6, 4, 1); dbg(3)
    e("    s_cbranch_scc1 K2_PA1")
    for a in range(2):
        if a: e("K2_PA1:")
        for q in range(4): e(mfma4(vD[a], vP[a], q))
        e(f"    s_cmp_lt_u32 s35, 3\n    s_cbranch_scc1 K2_NGP{a}")
        gathers(vP[a], vSO)
        e(f"K2_NGP{a}:\n    s_nop 1\n{mfma32(vD[a])}")
        if not a: e("    s_branch K2_PAD")
    e(f"""
K2_PAD:
    ds_read_b128 {vr(vSO, 4)}, v{vaS[0]} offset:{SO + 48}
    ds_read_b128 {vr(vSO + 4, 4)}, v{vaS[1]} offset:{SO + 48}
    ds_read2_b64 {vr(vAe, 4)}, v{vaE} offset0:4 offset1:4
""")
    for y in range(2):
        e(f"""
    s_bfe_i32 exec_lo, s{sFM[y]}, s34
    s_bfe_i32 exec_hi, s{sFM[y] + 1}, s34
    ds_read_b64 {vr(vQ + 2 * y, 2)}, v{vaN[y]} offset:{RS}
""")
    e(f"""
    s_mov_b32 exec_lo, 0x55555555
    s_mov_b32 exec_hi, 0xaaaaaaaa
    v_subrev_u32 v{vaE}, s39, v{vaE}
    s_mov_b64 exec, -1
    v_add_u32 v{vaS[0]}, s38, v{vaS[0]}
    v_add_u32 v{vaS[1]}, s38, v{vaS[1]}
""")
    prio(2)
    order = [10, 11, 9, 12, 8, 13, 7, 14, 6, 15, 5, 4, 3, 2, 1]
    for Lv in order:
        e(f"    s_cmp_eq_u32 s35, {Lv}\n    s_cbranch_scc1 K2_T{NT - Lv}")
    e("K2_LOOP:")
    for t in range(NT):
        tile(t)
    e("K2_LDONE:")
    xbu = lambda T, s: 32 + 16 * T + 4 * s
    e(f"""
    s_cmp_ge_u32 s21, 8
    s_cbranch_scc1 K2_LD2
    s_lshl_b32 s36, s21, 12
    s_add_u32 s36, s36, {WUT}
    s_add_u32 s37, s36, {WUB - WUT}
""")
    for s in range(4):
        e(f"    buffer_load_dwordx4 {vr(16 + 4 * s, 4)}, v7, s[4:7], s36 offen offset:{1024 * s}")
    for s in range(4):
        e(f"    buffer_load_dwordx4 {vr(92 + 4 * s, 4)}, v7, s[4:7], s37 offen offset:{1024 * s}")
    e("K2_LD2:")
    for y in range(2):
        flush_adds(y)
    e(f"""
    v_mov_b32 v89, {MORE}
    ds_read_b32 v89, v89
""")
    stamp(7, 4, 1); dbg(4)
    e(f"""
    s_cmp_ge_u32 s21, 8
    s_cbranch_scc1 K2_NOU
""")
    x_frags(84, xbu)
    e("    s_waitcnt vmcnt(4)")
    for s in range(4):
        for T in range(3):
            e(f"    s_waitcnt lgkmcnt({11 - 3 * s - T})")
            c = "0" if s == 0 else vr(vU + 4 * T, 4)
            e(f"    v_mfma_f32_16x16x32_bf16 {vr(vU + 4 * T, 4)}, {vr(16 + 4 * s, 4)}, {vr(xbu(T, s), 4)}, {c}")
    e(f"""
    v_mul_u32_u24 v{vFR}, {RB}, v6
    v_lshl_add_u32 v{vFR}, v5, 4, v{vFR}
    v_add_u32 v{vFR}, {AGB}, v{vFR}
    v_lshlrev_b32 v{vFO}, 16, v6
    v_lshl_or_b32 v{vFO}, v5, 3, v{vFO}
    s_lshl_b32 s36, s20, 8
    s_lshl_b32 s37, s21, 5
    s_add_u32 s36, s36, s37
    v_add_u32 v{vFO}, s36, v{vFO}
    s_cmp_lt_u32 s21, 6
    s_cbranch_scc1 K2_NOCA
K2_NOU:
    v_lshrrev_b32 v{vCA}, 4, v0
    v_subrev_u32 v{vCA}, 24, v{vCA}
    v_cvt_f32_u32 v84, v{vNp}
    v_lshlrev_b32 v85, 2, v{vCA}
    v_mul_f32 v84, 0xbe800000, v84
    v_mul_u32_u24 v{vCW}, {RB}, v{vCA}
    v_mul_u32_u24 v{vCA}, {RS}, v{vCA}
    ds_bpermute_b32 v{vCN}, v85, v84
    v_lshl_add_u32 v{vCW}, v6, 4, v{vCW}
    v_lshl_add_u32 v{vCA}, v6, 4, v{vCA}
    v_add_u32 v{vCW}, {AGB}, v{vCW}
    v_add_u32 v{vCA}, {QU}, v{vCA}
K2_NOCA:
    s_waitcnt vmcnt(0) lgkmcnt(0)
    v_readfirstlane_b32 s{sMoreV}, v89
    s_barrier
""")
    stamp(8, 4, 1)
    e(f"""
    s_cmp_lg_u32 s{sMoreV}, 0
    s_cbranch_scc1 K2_NEXT
    s_cmp_lt_u32 s21, 6
    s_cbranch_scc1 K2_NOCV
""")
    for k in range(4):
        e(f"    ds_read_b128 {vr(16 + 4 * k, 4)}, v{vCA} offset:{AG - QU + 256 * k}\n    ds_read_b64 {vr(8 + 2 * k, 2)}, v{vCA} offset:{256 * k + 8}")
    for k in range(4):
        e(f"    s_waitcnt lgkmcnt({6 - 2 * k})")
        e(f"    v_cvt_f32_f64 v{32 + 2 * k}, {vr(16 + 4 * k, 2)}\n    v_cvt_f32_f64 v{33 + 2 * k}, {vr(18 + 4 * k, 2)}")
        e(f"    v_pk_fma_f32 {vr(32 + 2 * k, 2)}, {vr(8 + 2 * k, 2)}, {vr(vCN, 2)}, {vr(32 + 2 * k, 2)} op_sel_hi:[1,0,1]")
        e(f"    v_cvt_pk_bf16_f32 v{40 + k}, v{32 + 2 * k}, v{33 + 2 * k}")
    e(f"""
    ds_write_b128 v{vCW}, v[40:43]
    s_waitcnt lgkmcnt(0)
K2_NOCV:
    s_barrier
    s_cmp_ge_u32 s21, 8
    s_cbranch_scc1 K2_FIN
""")
    xbf = lambda T, s: 16 + 16 * T + 4 * s
    for s in range(4):
        for T in range(3):
            e(f"    ds_read_b128 {vr(xbf(T, s), 4)}, v{vFR} offset:{16 * RB * T + 64 * s}")
    for s in range(4):
        for T in range(3):
            e(f"    s_waitcnt lgkmcnt({11 - 3 * s - T})")
            e(f"    v_mfma_f32_16x16x32_bf16 {vr(vU + 4 * T, 4)}, {vr(92 + 4 * s, 4)}, {vr(xbf(T, s), 4)}, {vr(vU + 4 * T, 4)}")
    e(f"    v_add_u32 v88, 0x100000, v{vFO}\n    v_add_u32 v89, 0x200000, v{vFO}\n    s_nop 1")
    for m in range(6):
        if m == 2: e("    s_nop 0")
        e(f"    v_pk_mul_f32 {vr(16 + 2 * m, 2)}, {vr(vU + 2 * m, 2)}, s[72:73] op_sel_hi:[1,0]")
    for m in range(12):
        e(f"    v_exp_f32 v{16 + m}, v{16 + m}")
    for m in range(6):
        e(f"    v_pk_add_f32 {vr(16 + 2 * m, 2)}, {vr(16 + 2 * m, 2)}, 1.0 op_sel_hi:[1,0]")
    for T in range(3):
        for m in range(4 * T, 4 * T + 4):
            e(f"    v_rcp_f32 v{16 + m}, v{16 + m}")
        e("    s_nop 0")
        for m in (2 * T, 2 * T + 1):
            e(f"    v_pk_mul_f32 {vr(16 + 2 * m, 2)}, {vr(16 + 2 * m, 2)}, {vr(vU + 2 * m, 2)}")
        for m in (2 * T, 2 * T + 1):
            e(f"    v_cvt_pk_bf16_f32 v{32 + m}, v{16 + 2 * m}, v{17 + 2 * m}")
        e(f"    buffer_store_dwordx2 {vr(32 + 2 * T, 2)}, v{(vFO, 88, 89)[T]}, s[16:19], 0 offen")
    e("K2_FIN:")
    dbg_out(1, 7, 6, 6, 'DBGC')
    if OPT["stamps"]:
        stamp(9, 4, 1); e("    s_waitcnt vmcnt(0)"); stamp(10, 4, 1); stamp_out(4, 1)
    e("K2_END:\n    s_endpgm")
    if not OPT["noflush"]:
        for t in range(NT - 1):
            for y in range(2):
                event_block(t, y)
    e(f"""
K2_TAILBLOCKS:
K2_MORE1:
    v_mov_b32 v61, {MORE}
    ds_write_b32 v61, v63
    s_branch K2_MOREB1
K2_MORE2:
    v_mov_b32 v61, {MORE}
    ds_write_b32 v61, v63
    s_branch K2_MOREB2
K2_NEXT:
    s_add_u32 s24, s24, s25
    s_branch K2_AGAIN
K2_REDO:
    s_mov_b32 s25, 4
    s_waitcnt vmcnt(0) lgkmcnt(0)
    s_barrier
K2_AGAIN:
    v_lshlrev_b32 v60, 4, v0
    v_mov_b64 v[48:49], 0
    v_mov_b64 v[50:51], 0
    s_branch K2_ROUND
""")

def desc(name, vg, sg):
    e(f"""
.p2align 6
.amdhsa_kernel {name}
  .amdhsa_next_free_vgpr {vg}
  .amdhsa_next_free_sgpr {sg}
  .amdhsa_accum_offset {vg}
  .amdhsa_group_segment_fixed_size 0
  .amdhsa_kernarg_size 72
  .amdhsa_user_sgpr_count 2
  .amdhsa_user_sgpr_kernarg_segment_ptr 1
  .amdhsa_system_sgpr_workgroup_id_x 1
.end_amdhsa_kernel
""")

e(f"""
; @launch kernel=mpnn_bin_kernel grid=(256,1,1) block=(1024,1,1) lds={K1_LDS}
; @launch kernel=mpnn_edge_kernel grid=(256,1,1) block=(1024,1,1) lds={K2_LDS}
.amdgcn_target "amdgcn-amd-amdhsa--gfx950"
""")
kernel1()
kernel2()
e('.section .rodata,"a"')
desc("mpnn_bin_kernel", 128, 96)
desc("mpnn_edge_kernel", 128, 96)
open(sys.argv[1], "w").write("\n".join(L) + "\n")
```

```python
import sys, struct, math

def f2u(x): return struct.unpack("<I", struct.pack("<f", x))[0]

OPT = dict(st1=0, st2=0, nte=1, ntx=1, ntw=0, ntx2=1, ntr=0, light=0, g1late=0, pf=0, gpos=0, nom4=0, nom32=0, mpos=0, nochk=0, prio1=0, dbg=0, safe=0, stamps=0, prio=1, nogather=0, nocore=0, nolds=0, nomfma=0, noflush=0)
for a in sys.argv[2:]:
    k, v = a.split("="); OPT[k] = int(v)

N, E = 10000, 320000
NB = 256
EPW = 1250
PT    = 0
DESC  = 0x280000
REC   = 0x2C0000
RSTR  = 15488
W2F   = 0x690000
WUT   = W2F + 0x8000
WUB   = WUT + 0x8000
W3F   = WUB + 0x8000
STAMP = W3F + 0x800
WSEND = STAMP + (0x80000 if OPT["stamps"] or OPT["light"] else 0)
NL2E = f2u(-1.4426950408889634)
KC   = f2u(1.0 / (2.0 ** 31 * math.log(2.0)))
NSC  = f2u(-2.0 ** -31)

L = []
def e(s=""):
    for ln in s.strip("\n").split("\n"):
        L.append(ln)
def vr(a, n): return f"v[{a}:{a + n - 1}]" if n > 1 else f"v{a}"
def sr(a, n): return f"s[{a}:{a + n - 1}]" if n > 1 else f"s{a}"

def srd(s, nrec, w3=0x20000):
    e(f"    s_mov_b32 s{s + 2}, {nrec:#x}\n    s_mov_b32 s{s + 3}, {w3:#x}")

def scan64(v):
    for c in ("row_shr:1 row_mask:0xf", "row_shr:2 row_mask:0xf", "row_shr:4 row_mask:0xf", "row_shr:8 row_mask:0xf",
              "row_bcast:15 row_mask:0xa", "row_bcast:31 row_mask:0xc"):
        e(f"    s_nop 1\n    v_add_u32_dpp v{v}, v{v}, v{v} {c} bank_mask:0xf")

NST = 16
def light0():
    if OPT["light"]: e("    s_memrealtime s[80:81]")
def light1(srd_s, kern):
    if not OPT["light"]: return
    e(f"""
    s_waitcnt vmcnt(0)
    s_memrealtime s[82:83]
    s_mov_b32 s{srd_s + 2}, {WSEND:#x}
    s_lshl_b32 s90, s2, 4
    s_add_u32 s90, s90, s21
    s_lshl_b32 s90, s90, 3
    s_add_u32 s90, s90, {STAMP + kern * 0x40000}
    s_mov_b64 exec, 1
    s_waitcnt lgkmcnt(0)
    v_mov_b32 v2, s80
    v_mov_b32 v3, s82
    buffer_store_dwordx2 v[2:3], off, s[{srd_s}:{srd_s + 3}], s90
""")
def dbg(slot):
    if not OPT["dbg"]: return
    e(f"    s_memrealtime s[{80 + 2 * slot}:{81 + 2 * slot}]")
def dbg_out(kern, wv, base, n, lab):
    if not OPT["dbg"]: return
    e(f"""
    s_waitcnt vmcnt(0)
    s_memrealtime s[{80 + 2 * (n - 1)}:{81 + 2 * (n - 1)}]
    s_cmp_lg_u32 s2, 200
    s_cbranch_scc1 {lab}
    s_cmp_lg_u32 s21, {wv}
    s_cbranch_scc1 {lab}
    s_load_dwordx2 s[92:93], s[0:1], 56
    s_waitcnt lgkmcnt(0)
    s_add_u32 s92, s92, {512 * (1 - kern)}
    s_addc_u32 s93, s93, 0
    s_mov_b32 s94, 256
    s_mov_b32 s95, 0x20000
    s_mov_b64 exec, 1
""")
    for i in range(n):
        e(f"    v_mov_b32 v127, s{80 + 2 * i}\n    buffer_store_dword v127, off, s[92:95], 0 offset:{4 * (base + i)}\n    s_waitcnt vmcnt(0)")
    e(f"{lab}:")
def stamp(i, srd_s, kern):
    if not OPT["stamps"]: return
    e(f"""
    s_memtime s[90:91]
    s_waitcnt lgkmcnt(0)
    v_writelane_b32 v127, s90, {i}
""")
    if i == 0:
        e("    s_memrealtime s[90:91]\n    s_waitcnt lgkmcnt(0)\n    v_writelane_b32 v127, s90, 14")
def stamp_out(srd_s, kern):
    if not OPT["stamps"]: return
    e(f"""
    s_memrealtime s[90:91]
    s_waitcnt lgkmcnt(0)
    v_writelane_b32 v127, s90, 15
    s_mov_b64 exec, 0xffff
    s_lshl_b32 s90, s2, 4
    s_add_u32 s90, s90, s21
    s_lshl_b32 s90, s90, 6
    s_add_u32 s90, s90, {STAMP + kern * 0x40000}
    v_mbcnt_lo_u32_b32 v125, -1, 0
    v_lshlrev_b32 v125, 2, v125
    buffer_store_dword v127, v125, s[{srd_s}:{srd_s + 3}], s90 offen
    s_mov_b64 exec, -1
""")

K1_CNT, K1_ST, K1_STG, K1_WL = 0, 1024, 2048, 2048 + 15360
K1_LDS = 84 * 1024
def kernel1():
    e("""
.text
.globl mpnn_bin_kernel
.p2align 8
.type mpnn_bin_kernel,@function
mpnn_bin_kernel:
    s_cmp_ge_u32 s2, 256
    s_cbranch_scc1 K1_END
    s_load_dwordx4 s[4:7], s[0:1], 0        ; x, e_attr
    s_load_dwordx4 s[8:11], s[0:1], 16
    s_load_dwordx4 s[12:15], s[0:1], 32
    s_load_dwordx2 s[16:17], s[0:1], 64     ; ws
    v_lshrrev_b32 v2, 6, v0
    v_and_b32 v1, 63, v0
    v_readfirstlane_b32 s21, v2
""")
    stamp(0, 16, 0); light0()
    dbg(0)
    e("""
    s_cmp_ge_u32 s21, 10
    s_cbranch_scc1 K1_GEMM
    s_and_b32 s20, s2, 7
    s_lshl_b32 s20, s20, 5
    s_lshr_b32 s3, s2, 3
    s_or_b32 s20, s20, s3
    s_mul_i32 s22, s20, 5000
    s_lshl_b32 s23, s22, 1
    v_lshlrev_b32 v3, 3, v0
    v_lshlrev_b32 v4, 4, v0
    v_cmp_gt_u32 vcc, 625, v0
    v_mov_b32 v20, 0
    v_mov_b32 v21, 0
    v_mov_b32 v22, 0
    v_mov_b32 v23, 0
    s_mov_b64 s[44:45], vcc
    s_waitcnt lgkmcnt(0)
    s_mov_b32 s24, s10
    s_mov_b32 s25, s11
""")
    srd(24, E * 4)
    e("    s_mov_b32 s28, s8\n    s_mov_b32 s29, s9"); srd(28, E * 4)
    e("    s_mov_b32 s32, s6\n    s_mov_b32 s33, s7"); srd(32, E * 8)
    srd(16, WSEND)
    e(f"""
    s_mov_b64 exec, s[44:45]
    buffer_load_dwordx2 v[6:7], v3, s[24:27], s22 offen      ; dst
    buffer_load_dwordx2 v[8:9], v3, s[28:31], s22 offen      ; src
    buffer_load_dwordx4 v[10:13], v4, s[32:35], s23 offen
    s_mov_b64 exec, -1
    s_cmp_lg_u32 s21, 0
    s_cbranch_scc1 K1_NOZ
    ds_write_b128 v4, v[20:23] offset:{K1_CNT}
K1_NOZ:
    v_mov_b32 v24, 1
    s_waitcnt lgkmcnt(0)
    s_barrier
    s_mov_b64 exec, s[44:45]
    s_waitcnt vmcnt(2)
""")
    stamp(1, 16, 0)
    dbg(1)
    e(f"""
    v_and_b32 v14, 0xff, v6
    v_and_b32 v15, 0xff, v7
    v_lshlrev_b32 v14, 2, v14
    v_lshlrev_b32 v15, 2, v15
    ds_add_rtn_u32 v16, v14, v24 offset:{K1_CNT}
    ds_add_rtn_u32 v17, v15, v24 offset:{K1_CNT}
    v_lshrrev_b32 v6, 8, v6
    v_lshrrev_b32 v7, 8, v7
    v_lshlrev_b32 v6, 26, v6
    v_lshlrev_b32 v7, 26, v7
    s_mov_b64 exec, -1
    v_lshlrev_b32 v5, 4, v1
    s_waitcnt lgkmcnt(0)
    s_barrier
""")
    stamp(2, 16, 0)
    e(f"""
    ds_read_b128 v[20:23], v5 offset:{K1_CNT}
    s_waitcnt vmcnt(1)
    v_lshl_or_b32 v8, v8, 3, v6
    v_lshl_or_b32 v9, v9, 3, v7
    s_waitcnt lgkmcnt(0)
    v_add_u32 v25, v20, v21
    v_add_u32 v26, v25, v22
    v_add_u32 v27, v26, v23
    v_mov_b32 v28, v27
""")
    scan64(28)
    e(f"""
    v_sub_u32 v28, v28, v27
    v_add_u32 v29, v28, v20
    v_add_u32 v30, v28, v25
    v_add_u32 v31, v28, v26
    ds_write_b128 v5, v[28:31] offset:{K1_ST}
    ds_read_b32 v18, v14 offset:{K1_ST}
    ds_read_b32 v19, v15 offset:{K1_ST}
    s_cmp_lg_u32 s21, 9
    s_cbranch_scc1 K1_NOD
    v_lshl_or_b32 v32, v20, 16, v28
    v_lshl_or_b32 v33, v21, 16, v29
    v_lshl_or_b32 v34, v22, 16, v30
    v_lshl_or_b32 v35, v23, 16, v31
    s_lshl_b32 s36, s20, 4
    s_add_u32 s36, s36, {DESC}
    v_lshlrev_b32 v36, 12, v1
    buffer_store_dwordx4 v[32:35], v36, s[16:19], s36 offen
K1_NOD:
    s_mov_b64 exec, s[44:45]
    s_waitcnt lgkmcnt(0)
    v_add_u32 v18, v18, v16
    v_add_u32 v19, v19, v17
    v_mul_u32_u24 v18, 12, v18
    v_mul_u32_u24 v19, 12, v19
    v_add_u32 v18, {K1_STG}, v18
    v_add_u32 v19, {K1_STG}, v19
    s_cmp_lg_u32 s21, 9
    s_cbranch_scc1 K1_W0
    s_waitcnt vmcnt(1)
    s_branch K1_W1
K1_W0:
    s_waitcnt vmcnt(0)
K1_W1:
    ds_write2_b32 v18, v10, v11 offset0:0 offset1:1
    ds_write_b32 v18, v8 offset:8
    ds_write2_b32 v19, v12, v13 offset0:0 offset1:1
    ds_write_b32 v19, v9 offset:8
    s_mov_b64 exec, -1
    s_mul_i32 s36, s20, {RSTR}
    s_add_u32 s36, s36, {REC}
    s_add_u32 s37, s36, 10240
    s_waitcnt lgkmcnt(0)
    s_barrier
""")
    stamp(3, 16, 0)
    e(f"""
    ds_read_b128 v[20:23], v4 offset:{K1_STG}
    s_cmp_ge_u32 s21, 5
    s_cbranch_scc1 K1_C1
    ds_read_b128 v[24:27], v4 offset:{K1_STG + 10240}
    s_waitcnt lgkmcnt(0)
    buffer_store_dwordx4 v[24:27], v4, s[16:19], s37 offen
K1_C1:
    s_waitcnt lgkmcnt(0)
    buffer_store_dwordx4 v[20:23], v4, s[16:19], s36 offen
""")
    dbg_out(0, 9, 0, 3, 'DBGA'); light1(16, 0)
    if OPT["stamps"]:
        stamp(4, 16, 0); e("    s_waitcnt vmcnt(0)"); stamp(5, 16, 0); stamp_out(16, 0)
    e(f"""
    s_endpgm
K1_GEMM:
    s_sub_u32 s22, s21, 10                  ; gi
    v_lshrrev_b32 v2, 4, v1                 ; g
    v_and_b32 v3, 15, v1                    ; n / i
    s_cmp_ge_u32 s2, 209
    s_cbranch_scc1 K1_JOBS
    s_lshr_b32 s23, s22, 1                  ; T
    s_and_b32 s24, s22, 1                   ; fh
    ; W1 -> LDS source offset: row (l/16), chunk (l%16) ^ ((l/16)<<1)
    v_lshlrev_b32 v4, 1, v2
    v_xor_b32 v4, v4, v3
    v_lshlrev_b32 v4, 4, v4
    v_lshl_or_b32 v4, v2, 8, v4
    s_mul_i32 s25, s2, 48
    s_lshl_b32 s26, s23, 4
    s_add_u32 s25, s25, s26
    v_add_u32 v5, s25, v3
    v_lshlrev_b32 v5, 8, v5
    v_lshl_or_b32 v5, v2, 4, v5
    s_waitcnt lgkmcnt(0)
""")
    srd(4, N * 256)
    srd(12, 128 * 256)
    srd(16, N * 256)
    for m in range(6):
        if m == 5:
            e("    s_cmp_ge_u32 s22, 2\n    s_cbranch_scc1 K1_DMAD")
        e(f"""
    s_add_u32 s27, s22, {6 * m}
    s_lshl_b32 s28, s27, 6
    s_and_b32 s28, s28, 0x80
    s_lshl_b32 s27, s27, 10
    v_xor_b32 v6, s28, v4
    s_add_u32 s28, s27, {K1_WL}
    s_mov_b32 m0, s28
    s_nop 0
    buffer_load_dwordx4 v6, s[12:15], s27 offen lds
""")
    e("K1_DMAD:")
    for s in range(4):
        e(f"    buffer_load_dwordx4 {vr(8 + 4 * s, 4)}, v5, s[4:7], 0 offen offset:{64 * s}")
    e(f"""
    v_lshrrev_b32 v24, 2, v3                ; r'
    v_and_b32 v25, 3, v3                    ; c'
    v_and_b32 v26, 1, v2
    v_lshl_or_b32 v26, v26, 2, v24          ; h(k)
    v_lshl_add_u32 v27, v2, 3, v24          ; 8g + r'
    v_lshlrev_b32 v27, 8, v27
    v_lshl_or_b32 v27, v25, 3, v27
    v_add_u32 v27, {K1_WL}, v27
    s_lshl_b32 s27, s24, 2
    v_xor_b32 v26, s27, v26
""")
    for f in range(4):
        e(f"    v_xor_b32 v{28 + f}, {f}, v26\n    v_lshl_add_u32 v{28 + f}, v{28 + f}, 5, v27")
    e(f"""
    s_lshl_b32 s27, s24, 7
    v_add_u32 v5, s27, v5
    s_mov_b32 s28, {NL2E:#x}
    s_mov_b32 s29, {NL2E:#x}
    s_barrier
    s_barrier
    s_waitcnt vmcnt(0)
    s_barrier
""")
    stamp(3, 16, 0)
    for s in range(4):
        for f in range(4):
            for u2 in range(2):
                e(f"    ds_read_b64_tr_b16 {vr(32 + 16 * f + 4 * s + 2 * u2, 2)}, v{28 + f} offset:{s * 8192 + u2 * 1024}")
    for s in range(4):
        for f in range(4):
            left = 32 - (8 * s + 2 * f + 2)
            e(f"    s_waitcnt lgkmcnt({min(left, 15)})")
            c = "0" if s == 0 else vr(96 + 4 * f, 4)
            e(f"    v_mfma_f32_16x16x32_bf16 {vr(96 + 4 * f, 4)}, {vr(32 + 16 * f + 4 * s, 4)}, {vr(8 + 4 * s, 4)}, {c}")
    e("    s_nop 4")
    for f in range(4):
        for h in range(2):
            r = 96 + 4 * f + 2 * h
            e(f"    v_pk_mul_f32 {vr(r, 2)}, {vr(r, 2)}, s[28:29]")
        for h in range(2):
            r = 96 + 4 * f + 2 * h
            e(f"    v_cvt_pk_bf16_f32 v{112 + 2 * f + h}, v{r}, v{r + 1}")
        if f % 2 == 1:
            e(f"    buffer_store_dwordx4 {vr(112 + 2 * (f - 1), 4)}, v5, s[16:19], 0 offen offset:{64 * (f // 2)}")
    dbg_out(0, 15, 3, 2, 'DBGB'); light1(16, 0)
    if OPT["stamps"]:
        srd(16, WSEND); stamp(4, 16, 0); e("    s_waitcnt vmcnt(0)"); stamp(5, 16, 0); stamp_out(16, 0)
    e(f"""
    s_endpgm
K1_JOBS:
    s_sub_u32 s23, s2, 209
    s_mul_i32 s23, s23, 6
    s_add_u32 s23, s23, s22
    s_waitcnt lgkmcnt(0)
""")
    srd(16, WSEND)
    e(f"""
    s_cmp_ge_u32 s23, 96
    s_cbranch_scc1 K1_JOB2
    s_lshr_b32 s24, s23, 5
    s_bfe_u32 s25, s23, 0x30002             ; f
    s_and_b32 s26, s23, 3                   ; s
    s_cmp_eq_u32 s24, 0
    s_cselect_b32 s28, s12, s14
    s_cselect_b32 s29, s13, s15
    s_mov_b32 s30, {256 * 256}
    s_mov_b32 s31, 0x20000
    ; column
    s_lshl_b32 s33, s25, 4                  ; 16 f
    v_add_u32 v4, s33, v3
    v_lshlrev_b32 v4, 1, v4
    ; row
    v_lshlrev_b32 v5, 11, v2                ; 8 g rows
    v_lshrrev_b32 v7, 1, v2
    v_lshlrev_b32 v7, 12, v7
    v_and_b32 v6, 1, v2
    v_lshl_or_b32 v7, v6, 9, v7             ; 16 (g>>1) + 2 (g&1) rows
    s_cmp_eq_u32 s24, 2
    s_cselect_b64 vcc, -1, 0
    s_cselect_b32 s32, 10, 13
    s_movk_i32 s33, 512
    s_cmovk_i32 s33, 8192
    s_cselect_b32 s34, {NSC:#x}, 1.0
    v_cndmask_b32 v5, v5, v7, vcc
    v_add_u32 v4, v4, v5
    s_lshl_b32 s40, s26, s32
    s_cmp_eq_u32 s24, 1
    s_cselect_b32 s36, 0, 0x8000
    s_add_u32 s40, s40, s36
    s_add_u32 s41, s40, s33
    s_add_u32 s42, s41, s33
    s_add_u32 s43, s42, s33
""")
    for m in range(8):
        e(f"    buffer_load_ushort v{8 + m}, v4, s[28:31], s{40 + m // 2} offen offset:{(m & 1) * 256}")
    e(f"""
    s_lshl_b32 s37, s23, 10
    s_add_u32 s37, s37, {W2F}
    v_lshlrev_b32 v6, 4, v1
    s_mov_b32 s38, 0x07060302
    s_waitcnt vmcnt(0)
""")
    for m in range(8):
        e(f"    v_lshlrev_b32 v{8 + m}, 16, v{8 + m}\n    v_mul_f32 v{8 + m}, s34, v{8 + m}")
    for m in range(4):
        e(f"    v_perm_b32 v{16 + m}, v{9 + 2 * m}, v{8 + 2 * m}, s38")
    e(f"""
    buffer_store_dwordx4 v[16:19], v6, s[16:19], s37 offen
    s_endpgm
K1_JOB2:
    s_cmp_ge_u32 s23, 98
    s_cbranch_scc1 K1_JOB3
    s_sub_u32 s24, s23, 96                  ; c
    s_mov_b32 s14, {260 * 256}
    s_mov_b32 s15, 0x20000
    v_and_b32 v2, 31, v1
    v_lshrrev_b32 v3, 5, v1
    v_lshl_or_b32 v2, v2, 1, v3             ; p & 63
    v_and_b32 v4, 0x23, v2
    v_bfe_u32 v5, v2, 2, 1
    v_lshl_or_b32 v4, v5, 4, v4
    v_bfe_u32 v5, v2, 3, 2
    v_lshl_or_b32 v4, v5, 2, v4             ; feature & 63
    v_lshlrev_b32 v4, 1, v4
    s_lshl_b32 s25, s24, 7
    s_add_u32 s25, s25, {256 * 256}
""")
    for d in range(4):
        e(f"    buffer_load_ushort v{8 + d}, v4, s[12:15], s25 offen offset:{d * 256}")
    e(f"""
    s_lshl_b32 s37, s24, 10
    s_add_u32 s37, s37, {W3F}
    v_lshlrev_b32 v6, 4, v1
    s_mov_b32 s34, {NL2E:#x}
    s_waitcnt vmcnt(0)
""")
    for d in range(4):
        e(f"    v_lshlrev_b32 v{8 + d}, 16, v{8 + d}\n    v_mul_f32 v{8 + d}, s34, v{8 + d}")
    e("""
    v_cvt_pk_bf16_f32 v16, v8, v9
    v_cvt_pk_bf16_f32 v17, v10, v11
    v_lshlrev_b32 v12, 16, v16
    v_and_b32 v13, 0xffff0000, v16
    v_lshlrev_b32 v14, 16, v17
    v_and_b32 v15, 0xffff0000, v17
    v_sub_f32 v8, v8, v12
    v_sub_f32 v9, v9, v13
    v_sub_f32 v10, v10, v14
    v_sub_f32 v11, v11, v15
    v_cvt_pk_bf16_f32 v18, v8, v9
    v_cvt_pk_bf16_f32 v19, v10, v11
    buffer_store_dwordx4 v[16:19], v6, s[16:19], s37 offen
    s_endpgm
K1_JOB3:
    s_cmp_lg_u32 s23, 98
    s_cbranch_scc1 K1_END
    v_mov_b32 v8, 0
    v_lshlrev_b32 v6, 2, v1
""")
    e(f"""
    s_mov_b32 s37, {PT + N * 256}
    buffer_store_dword v8, v6, s[16:19], s37 offen
K1_END:
    s_endpgm
""")

RS = 1040
RB = 272
CAP = 2048
MISC = 0
ZR, CNT, MORE, FL = 0, 768, 1024, 1088
SO = 2048
EA = SO + CAP * 4
W3L = EA + CAP * 8
QU = W3L + 2048
AG = QU + 41 * RS
XL = (AG + 2 * 16384 + 11 * 1024 + 255) // 256 * 256
AGB = XL
K2_LDS = AGB + 48 * RB
PADV = N * 8
S16MAX = (CAP // 4 - 8) * 16
NT = 16
NK = 6
vSO, vP, vD, vE, vAe, vBw, vQ, vNp, vAc, vI = 8, (16, 24), (32, 92), 48, 64, 68, 72, 126, (80, 82), 84
vaS, vaE, vaN = (86, 87), 88, (90, 91)
vU = 108
vC4, vQ16, vE16, vS16 = 120, 121, 122, 123
vCA, vCW, vCN, vFR, vFO = 120, 121, 122, 124, 125
sM = [40 + 2 * k for k in range(NK)]
sFM, sEV = (28, 30), (32, 33)
sFirst, sMoreV, sMM = 56, 57, 58
M9 = "0x01ff01ff"
KCOP = "s[26:27], s[26:27] op_sel_hi:[1,0,0] clamp"

def flush_adds(y):
    t = vE + 8 * y
    e(f"""
    v_cvt_f64_f32 {vr(t, 2)}, v{vAc[y]}
    v_cvt_f64_f32 {vr(t + 2, 2)}, v{vAc[y] + 1}
    ds_add_f64 v{vaN[y]}, {vr(t, 2)} offset:{AG - QU}
    ds_add_f64 v{vaN[y]}, {vr(t + 2, 2)} offset:{AG - QU + 8}
""")

def exec_bit(y, t):
    e(f"    s_bfe_i32 exec_lo, s{sFM[y]}, {0x10000 | t:#x}\n    s_bfe_i32 exec_hi, s{sFM[y] + 1}, {0x10000 | t:#x}")

def event_block(t, y):
    e(f"K2_EV{t}_{y}:")
    exec_bit(y, t)
    e(f"    s_cbranch_execz K2_EQ{t}_{y}")
    flush_adds(y)
    e(f"""
    v_add_u32 v{vaN[y]}, {RS}, v{vaN[y]}
    v_mov_b64 {vr(vAc[y], 2)}, 0
K2_EQ{t}_{y}:
""")
    if t + 2 < NT:
        exec_bit(y, t + 1)
        e(f"    ds_read_b64 {vr(vQ + 2 * y, 2)}, v{vaN[y]} offset:{RS}")
    e(f"    s_mov_b64 exec, -1\n    s_branch K2_EB{t}_{y}")

def gather_lines(dst, adr):
    out = []
    for q in range(4):
        for y in range(2):
            a = adr + 4 * y + q
            pre = f"    v_min_u32 v{a}, {PADV}, v{a}\n    v_and_b32 v{a}, -8, v{a}\n" if OPT["safe"] else ""
            out.append(pre + f"    buffer_load_dword v{dst + 2 * q + y}, v{a}, s[8:11], 0 offen")
    return out
def gathers(dst, adr):
    for l in gather_lines(dst, adr): e(l)

def mfma4(D, P, q): return f"    v_mfma_f32_4x4x4_16b_bf16 {vr(D + 4 * q, 4)}, {vr(vI, 2)}, {vr(P + 2 * q, 2)}, {vr(vQ, 4)}"
def mfma32(D): return f"    v_mfma_f32_32x32x16_bf16 {vr(D, 16)}, {vr(vAe, 4)}, {vr(vBw, 4)}, {vr(D, 16)}"

def core_lines(D):
    Ee = vE
    def p(r): return vr(r, 2)
    ex = [f"    v_exp_f32 v{Ee + k}, v{D + k}" for k in range(16)]
    sc = [f"    v_pk_fma_f32 {p(Ee + 2 * m)}, {p(Ee + 2 * m)}, {KCOP}" for m in range(8)]
    seq = [
        lambda o: f"v_pk_mul_f32 {p(D + o)}, {p(D + o)}, {p(Ee + o + 4)}",
        lambda o: f"v_pk_mul_f32 {p(D + o + 8)}, {p(D + o + 8)}, {p(Ee + o + 12)}",
        lambda o: f"v_pk_fma_f32 {p(D + o)}, {p(D + o + 4)}, {p(Ee + o)}, {p(D + o)}",
        lambda o: f"v_pk_fma_f32 {p(D + o + 8)}, {p(D + o + 12)}, {p(Ee + o + 8)}, {p(D + o + 8)}",
        lambda o: f"v_pk_mul_f32 {p(Ee + o)}, {p(Ee + o)}, {p(Ee + o + 4)}",
        lambda o: f"v_pk_mul_f32 {p(Ee + o + 8)}, {p(Ee + o + 8)}, {p(Ee + o + 12)}",
        lambda o: f"v_pk_mul_f32 {p(Ee + o + 4)}, {p(Ee + o)}, {p(Ee + o + 8)}",
        lambda o: f"v_pk_mul_f32 {p(D + o)}, {p(D + o)}, {p(Ee + o + 8)}",
        lambda o: f"v_rcp_f32 v{Ee + o + 4}, v{Ee + o + 4}",
        lambda o: f"v_rcp_f32 v{Ee + o + 5}, v{Ee + o + 5}",
        lambda o: f"v_pk_fma_f32 {p(D + o)}, {p(D + o + 8)}, {p(Ee + o)}, {p(D + o)}",
        lambda o: f"v_pk_fma_f32 {p(vAc[o // 2])}, {p(D + o)}, {p(Ee + o + 4)}, {p(vAc[o // 2])}",
    ]
    rest = ["    " + fn(o) for fn in seq for o in (0, 2)]
    if OPT["nocore"]: return ["    s_nop 0"] * 16, [], []
    return ex, sc, rest

PRIO_AT = {NT - 7: 1, NT - 3: 0}
def tile(t):
    a, r = t % 2, NT - t
    ex, sc, rest = core_lines(vD[a])
    Dn, Pn = vD[1 - a], vP[1 - a]
    e(f"K2_T{t}:")
    if t in PRIO_AT: prio(PRIO_AT[t])
    k = 0
    if r >= 2:
        for l in ex[:2]: e(l)
        e(f"    s_waitcnt vmcnt({8 if r >= 3 else 0}) lgkmcnt(0)")
        for q in range(4):
            if not OPT["nomfma"]: e(mfma4(Dn, Pn, q))
            e(ex[2 + q])
        for l in ex[6:9]: e(l)
        if not OPT["nomfma"]: e(mfma32(Dn))
        for l in ex[9:14]: e(l)
        k = 14
        if r >= 4 and not OPT["nogather"]: gathers(Pn, vSO)
        if not OPT["nolds"]:
            if r >= 5:
                e(f"    ds_read_b128 {vr(vSO, 4)}, v{vaS[0]} offset:{16 * (t + 4)}\n    ds_read_b128 {vr(vSO + 4, 4)}, v{vaS[1]} offset:{16 * (t + 4)}")
            if r >= 3:
                e(f"    ds_read2_b64 {vr(vAe, 4)}, v{vaE} offset0:{4 * (t + 2)} offset1:{4 * (t + 2)}")
    for l in ex[k:]: e(l)
    for l in sc: e(l)
    for l in rest: e(l)
    if r >= 2 and not OPT["noflush"]:
        for y in range(2):
            e(f"    s_bitcmp1_b32 s{sEV[y]}, {t}\n    s_cbranch_scc1 K2_EV{t}_{y}\nK2_EB{t}_{y}:")

def x_frags(xa, xb):
    e(f"""
    v_xor_b32 v{xa}, v5, v6
    v_lshlrev_b32 v{xa}, 4, v{xa}
    v_lshl_or_b32 v{xa}, v6, 8, v{xa}
    v_add_u32 v{xa}, {XL}, v{xa}
    v_xor_b32 v{xa + 1}, 64, v{xa}
    v_xor_b32 v{xa + 2}, 0x80, v{xa}
    v_xor_b32 v{xa + 3}, 0xc0, v{xa}
""")
    for s in range(4):
        for T in range(3):
            e(f"    ds_read_b128 {vr(xb(T, s), 4)}, v{xa + s} offset:{4096 * T}")

def prio(n):
    if OPT["prio"]: e(f"    s_setprio {n}")

def setup_scalars():
    e(f"""
    s_cmp_lt_u32 s20, 16
    s_cselect_b32 s22, 40, 39
    s_bfm_b64 s[78:79], s22, 0
    s_and_b32 s23, s21, 1                   ; c
    s_lshr_b32 s76, s21, 1                  ; group
    s_mov_b32 s26, {KC:#x}
    s_mov_b32 s72, {NL2E:#x}
    s_lshl_b32 s39, s23, 7
    s_add_u32 s8, s4, s39
    s_addc_u32 s9, s5, 0
    s_or_b32 s9, s9, 0x80000000
    s_mov_b32 s10, 0x10000
    s_mov_b32 s11, 0x00c00000
""")
    srd(16, N * 256)

def scan():
    e(f"""
    ds_read_b32 v{vC4}, v62 offset:{CNT}
    s_waitcnt lgkmcnt(0)
    v_add_u32 v{vQ16}, 12, v{vC4}
    v_and_b32 v{vQ16}, -16, v{vQ16}
    s_mov_b64 exec, s[78:79]
    v_max_u32 v{vQ16}, 16, v{vQ16}          ; 16*quads
    s_mov_b64 exec, -1
    s_nop 0
    v_add_u32_dpp v{vE16}, v{vQ16}, v{vQ16} row_shr:1 row_mask:0xf bank_mask:0xf bound_ctrl:1
""")
    for c in ("row_shr:2 row_mask:0xf", "row_shr:4 row_mask:0xf", "row_shr:8 row_mask:0xf", "row_bcast:15 row_mask:0xa", "row_bcast:31 row_mask:0xc"):
        e(f"    s_nop 1\n    v_add_u32_dpp v{vE16}, v{vE16}, v{vE16} {c} bank_mask:0xf")
    e(f"""
    v_sub_u32 v{vS16}, v{vE16}, v{vQ16}
    v_readlane_b32 s34, v{vE16}, 63
""")

def x_addr(xa):
    e(f"""
    v_xor_b32 v{xa}, v5, v6
    v_lshlrev_b32 v{xa}, 4, v{xa}
    v_lshl_or_b32 v{xa}, v6, 8, v{xa}
    v_add_u32 v{xa}, {XL}, v{xa}
    v_xor_b32 v{xa + 1}, 64, v{xa}
    v_xor_b32 v{xa + 2}, 0x80, v{xa}
    v_xor_b32 v{xa + 3}, 0xc0, v{xa}
""")
def x_reads(xa, xb):
    for s in range(4):
        for T in range(3):
            e(f"    ds_read_b128 {vr(xb(T, s), 4)}, v{xa + s} offset:{4096 * T}")

def kernel2():
    e(f"""
.text
.globl mpnn_edge_kernel
.p2align 8
.type mpnn_edge_kernel,@function
mpnn_edge_kernel:
    s_load_dwordx2 s[4:5], s[0:1], 64       ; ws
    s_load_dwordx2 s[12:13], s[0:1], 0      ; x
    s_load_dwordx2 s[16:17], s[0:1], 48     ; out
    s_cmp_ge_u32 s2, 256
    s_cbranch_scc1 K2_END
    v_lshrrev_b32 v2, 6, v0
    s_and_b32 s20, s2, 7
    v_readfirstlane_b32 s21, v2
    s_lshl_b32 s20, s20, 5
    s_lshr_b32 s3, s2, 3
    s_or_b32 s20, s20, s3                   ; bucket
    s_mov_b32 s6, {WSEND:#x}
    s_mov_b32 s7, 0x20000
    v_and_b32 v4, -4, v0
    v_lshlrev_b32 v4, 2, v4
    s_lshr_b32 s34, s20, 2
    s_lshl_b32 s34, s34, 10
    s_and_b32 s35, s20, 3
    s_or_b32 s34, s34, s35
    s_lshl_b32 s34, s34, 2
    s_add_u32 s34, s34, {DESC}
""")
    stamp(0, 4, 1); dbg(0); light0()
    e(f"""
    v_lshrrev_b32 v8, 4, v0
    v_xor_b32 v9, v8, v0
    s_lshl_b32 s35, s20, 8
    v_lshl_add_u32 v8, v8, 16, s35
    v_and_b32 v9, 15, v9
    s_lshl_b32 s36, s21, 10
    s_add_u32 s36, s36, {XL}
    s_mov_b32 m0, s36
""")
    srd(12, N * 256)
    e(f"""
    v_lshl_add_u32 v8, v9, 4, v8
    s_waitcnt lgkmcnt(0)
    buffer_load_dword v2, v4, s[4:7], s34 offen
    s_cmp_ge_u32 s21, 11
    s_cbranch_scc1 K2_NOX
    buffer_load_dwordx4 v8, s[12:15], 0 offen lds
K2_NOX:
    v_lshlrev_b32 v60, 4, v0
    v_mov_b64 v[48:49], 0
    v_mov_b64 v[50:51], 0
    s_cmp_ge_u32 s21, 2
    s_cbranch_scc1 K2_NOZ0
    ds_write_b128 v60, v[48:51] offset:{MISC}
K2_NOZ0:
    v_add_u32 v61, {AG}, v60
    ds_write_b128 v61, v[48:51]
    ds_write_b128 v61, v[48:51] offset:16384
    s_cmp_ge_u32 s21, 11
    s_cbranch_scc1 K2_NOZ3
    ds_write_b128 v61, v[48:51] offset:32768
K2_NOZ3:
    v_and_b32 v1, 63, v0
    v_lshrrev_b32 v3, 2, v0
    v_mul_u32_u24 v3, {RSTR}, v3
    v_and_b32 v4, 3, v0
    s_mov_b32 s24, 0
    s_mov_b32 s25, {4 * NK}
    s_mov_b32 s{sFirst}, 1
    s_waitcnt lgkmcnt(3)
K2_ROUND:
    s_mov_b32 s34, {REC}
""")
    prio(2)
    e("    s_barrier")
    stamp(13, 4, 1)
    e(f"""
    s_cmp_lt_u32 s21, 11
    s_cbranch_scc1 K2_WD1
    s_waitcnt vmcnt(0)
K2_WD1:
    s_waitcnt vmcnt(1)
""")
    stamp(1, 4, 1)
    e(f"""
    v_lshrrev_b32 v56, 16, v2               ; count
    v_and_b32 v57, 0xffff, v2               ; start
    v_subrev_u32 v56, s24, v56
    v_add3_u32 v57, v57, s24, v4
    v_min_i32 v58, s25, v56
    v_mad_u32_u24 v57, v57, 12, v3
    v_sub_u32 v58, v58, v4
""")
    for k in range(3): e(f"    v_cmp_lt_i32 {sr(sM[k], 2)}, {4 * k}, v58")
    for k in range(NK):
        if k >= 3:
            e(f"    v_cmp_lt_i32 {sr(sM[k], 2)}, {4 * k}, v58")
        e(f"    s_mov_b64 exec, {sr(sM[k], 2)}")
        if k >= 2:
            e(f"    s_cbranch_execz K2_RLD")
        e(f"    buffer_load_dwordx3 {vr(8 + 4 * k, 3)}, v57, s[4:7], s34 offen offset:{48 * k}")
    e(f"""
K2_RLD:
    s_mov_b64 exec, -1
""")
    stamp(2, 4, 1)
    prio(0)
    e(f"""
    ds_write_b128 v60, v[48:51] offset:{EA}
    v_lshlrev_b32 v7, 4, v1                 ; lane*16
    v_lshrrev_b32 v5, 4, v1                 ; g
    v_and_b32 v6, 15, v1                    ; n
    v_cmp_lt_i32 {sr(sMM, 2)}, s25, v56
    v_mov_b32 v63, 4
    v_lshlrev_b32 v62, 2, v1
    s_cmp_ge_u32 s21, 8
    s_cbranch_scc1 K2_NOSO
    v_mov_b32 v52, {PADV}
    v_mov_b32 v53, v52
    v_mov_b32 v54, v52
    v_mov_b32 v55, v52
    ds_write_b128 v60, v[52:55] offset:{SO}
K2_NOSO:
    s_cmp_eq_u32 s{sFirst}, 0
    s_cbranch_scc1 K2_SETD
    v_mov_b32 v{vNp}, 0
    v_mov_b32 v{vFO}, 0
""")
    setup_scalars()
    e(f"""
    s_cmp_lt_u32 s21, 8
    s_cbranch_scc1 K2_SETD
    s_lshl_b32 s74, s21, 12
    s_add_u32 s74, s74, {W2F - 8 * 4096}
""")
    for s in range(4):
        e(f"    buffer_load_dwordx4 {vr(92 + 4 * s, 4)}, v7, s[4:7], s74 offen offset:{1024 * s}")
    if OPT["pf"]:
        e(f"""
    s_cmp_lt_u32 s21, {16 - OPT["pf"]}
    s_cbranch_scc1 K2_NOPF
    s_lshr_b32 s34, s2, 3
    s_mul_i32 s34, s34, 80000
    s_sub_u32 s35, 15, s21
    s_lshl_b32 s35, s35, 13
    s_add_u32 s34, s34, s35
    v_lshlrev_b32 v119, 3, v7
    buffer_load_dword v119, v119, s[4:7], s34 offen
    s_branch K2_PFD
K2_NOPF:
    buffer_load_dword v119, off, s[4:7], s74
K2_PFD:
""")
    x_addr(108)
    e(f"""
    s_bfe_u32 s36, s21, 0x20001
    s_lshl_b32 s36, s36, 8
    s_lshl_b32 s37, s23, 5
    s_add_u32 s36, s36, s37
    s_add_u32 s36, s36, {QU}
    v_mul_u32_u24 v112, {RS}, v6
    v_lshl_add_u32 v112, v5, 6, v112
    v_add_u32 v112, s36, v112
    v_add_u32 v113, {16 * RS}, v112
    v_add_u32 v114, {32 * RS}, v112
    s_mov_b64 exec, {sr(sMM, 2)}
    s_cbranch_execnz K2_MORE1
K2_MOREB1:
""")
    prio(2)
    e(f"""
    s_waitcnt vmcnt({5 if OPT["pf"] else 4})
    s_branch K2_RECS
K2_SETD:
    s_mov_b64 exec, {sr(sMM, 2)}
    s_cbranch_execnz K2_MORE2
K2_MOREB2:
""")
    prio(2)
    e("    s_waitcnt vmcnt(0)\nK2_RECS:")
    stamp(3, 4, 1)
    for k in range(NK):
        e(f"    s_mov_b64 exec, {sr(sM[k], 2)}")
        if k >= 2: e("    s_cbranch_execz K2_HISTD")
        e(f"""
    v_lshrrev_b32 v{40 + k}, 24, v{10 + 4 * k}
    ds_add_rtn_u32 v{11 + 4 * k}, v{40 + k}, v63 offset:{CNT}
    v_and_b32 v{10 + 4 * k}, 0x3ffffff, v{10 + 4 * k}
""")
    e(f"""
K2_HISTD:
    s_mov_b64 exec, -1
    s_cmp_ge_u32 s21, 2
    s_cbranch_scc1 K2_NOW3
    s_lshl_b32 s34, s21, 10
    s_add_u32 s35, s34, {W3L}
    s_add_u32 s34, s34, {W3F}
    s_mov_b32 m0, s35
    s_nop 0
    buffer_load_dwordx4 v7, s[4:7], s34 offen lds
K2_NOW3:
    s_waitcnt lgkmcnt(0)
    s_barrier
""")
    stamp(4, 4, 1); dbg(1)
    scan()
    for k in range(NK):
        if k == 3: e(f"    s_cmp_eq_u64 {sr(sM[2], 2)}, 0\n    s_cbranch_scc1 K2_BPD")
        if k >= 3: e(f"    s_cmp_eq_u64 {sr(sM[k], 2)}, 0\n    s_cbranch_scc1 K2_BPD")
        e(f"    ds_bpermute_b32 v{40 + k}, v{40 + k}, v{vS16}")
    e(f"""
K2_BPD:
    s_cmp_gt_u32 s34, {S16MAX}
    s_cbranch_scc1 K2_REDO
    s_add_u32 s34, s34, 48
    s_lshr_b32 s35, s34, 9
    s_bfe_u32 s34, s34, 0x30006
    s_mul_i32 s37, s76, s35
    s_waitcnt lgkmcnt(0)
""")
    for k in range(NK):
        e(f"    s_mov_b64 exec, {sr(sM[k], 2)}")
        if k >= 2: e("    s_cbranch_execz K2_GEO")
        e(f"""
    v_add_u32 v{40 + k}, v{40 + k}, v{11 + 4 * k}
    v_add_u32 v{11 + 4 * k}, v{40 + k}, v{40 + k}
    ds_write_b32 v{40 + k}, v{10 + 4 * k} offset:{SO}
    ds_write_b64 v{11 + 4 * k}, {vr(8 + 4 * k, 2)} offset:{EA}
""")
    e(f"""
K2_GEO:
    s_cmp_lg_u32 s21, 0
    s_cbranch_scc1 K2_NOFL
    s_mov_b64 exec, s[78:79]
    v_lshrrev_b32 v46, 4, v{vE16}
    ds_write_b8 v46, v63 offset:{FL - 1}
K2_NOFL:
    s_min_u32 s38, s76, s34
    s_add_u32 s37, s37, s38
    s_lshl_b32 s60, s37, 6                  ; stream (0,X)
    s_cmp_lt_u32 s76, s34
    s_addc_u32 s35, s35, 0
    s_lshl_b32 s77, s35, 4
    s_add_u32 s61, s60, s77
    s_add_u32 s62, s61, s77
    s_mov_b64 exec, -1
    v_mov_b32 v{vaS[0]}, s60
    s_mov_b32 exec_lo, 0
    v_mov_b32 v{vaS[0]}, s62
    s_mov_b32 exec_lo, -1
    v_add_u32 v{vaS[1]}, s77, v{vaS[0]}
    s_lshr_b32 s36, s21, 3
    s_and_b32 s36, s36, s{sFirst}
""")
    e(f"""
    s_waitcnt vmcnt({1 if OPT['pf'] else 0}) lgkmcnt(0)
    s_barrier
""")
    stamp(5, 4, 1); dbg(2)
    e("    s_cbranch_scc0 K2_FG")
    prio(3)
    e(f"""
""")
    xbq = lambda T, s: 16 + 16 * T + 4 * s
    x_reads(108, xbq)
    for s in range(4):
        for T in range(3):
            e(f"    s_waitcnt lgkmcnt({11 - 3 * s - T})")
            c = "0" if s == 0 else vr(64 + 4 * T, 4)
            e(f"    v_mfma_f32_16x16x32_bf16 {vr(64 + 4 * T, 4)}, {vr(92 + 4 * s, 4)}, {vr(xbq(T, s), 4)}, {c}")
    e("    s_nop 3")
    for T in range(3):
        if T == 2:
            e(f"    s_mov_b32 exec_lo, {M9}\n    s_mov_b32 exec_hi, {M9}")
        for h in range(2):
            r = 64 + 4 * T + 2 * h
            e(f"    v_pk_mul_f32 {vr(r, 2)}, {vr(r, 2)}, s[72:73] op_sel_hi:[1,0]")
        e(f"    ds_write2_b64 v{112 + T}, {vr(64 + 4 * T, 2)}, {vr(64 + 4 * T + 2, 2)} offset0:0 offset1:2")
    e("    s_mov_b64 exec, -1\n    s_waitcnt lgkmcnt(0)\n    s_barrier")
    for r in range(12):
        e(f"    v_exp_f32 v{92 + r}, v{64 + r}")
    for r in range(0, 12, 2):
        e(f"    v_pk_fma_f32 {vr(92 + r, 2)}, {vr(92 + r, 2)}, {KCOP}")
    for r in range(12):
        e(f"    v_rcp_f32 v{92 + r}, v{92 + r}")
    for T in range(3):
        if T == 2:
            e(f"    s_mov_b32 exec_lo, {M9}\n    s_mov_b32 exec_hi, {M9}")
        for r in (4 * T, 4 * T + 2):
            e(f"    v_pk_mul_f32 {vr(92 + r, 2)}, {vr(92 + r, 2)}, {vr(64 + r, 2)}")
        e(f"    ds_write2_b64 v{112 + T}, {vr(92 + 4 * T, 2)}, {vr(92 + 4 * T + 2, 2)} offset0:1 offset1:3")
    e(f"""
    s_mov_b64 exec, -1
K2_FG:
    ds_read_b128 {vr(vSO, 4)}, v{vaS[0]} offset:{SO}
    ds_read_b128 {vr(vSO + 4, 4)}, v{vaS[1]} offset:{SO}
    ds_read_b128 {vr(vE, 4)}, v{vaS[0]} offset:{SO + 16}
    ds_read_b128 {vr(vE + 4, 4)}, v{vaS[1]} offset:{SO + 16}
    s_bitcmp1_b32 s35, 0
    s_cbranch_scc1 K2_FG1
""")
    for a in range(2):
        if a: e("K2_FG1:")
        e("    s_waitcnt lgkmcnt(2)")
        gathers(vP[a], vSO)
        e("    s_waitcnt lgkmcnt(0)")
        if OPT["g1late"]: e(f"    s_mov_b32 s75, {a}")
        else: gathers(vP[1 - a], vE)
        if not a: e("    s_branch K2_FGD")
    e("K2_FGD:")
    stamp(11, 4, 1)
    e(f"""
    v_and_b32 v44, 31, v1
    v_lshrrev_b32 v46, 4, v{vaS[0]}
    v_add_u32 v46, v46, v44
    v_add_u32 v47, s35, v46
    ds_read_u8 v46, v46 offset:{FL}
    ds_read_u8 v47, v47 offset:{FL}
    s_lshl_b32 s36, s23, 10
    v_add_u32 v45, s36, v7
    ds_read_b128 {vr(vBw, 4)}, v45 offset:{W3L}
    ds_read_b128 {vr(vSO, 4)}, v{vaS[0]} offset:{SO + 32}
    ds_read_b128 {vr(vSO + 4, 4)}, v{vaS[1]} offset:{SO + 32}
    s_add_u32 s63, s62, s77
    s_lshl_b32 s36, s23, 9
    s_add_u32 s36, s36, {QU}
    v_lshl_add_u32 v44, v44, 4, s36
""")
    for k in range(4):
        e(f"    v_cmp_ge_u32 vcc, s{60 + k}, v{vE16}\n    s_bcnt1_i32_b64 s{64 + k}, vcc\n    s_min_u32 s{64 + k}, s{64 + k}, s22\n    s_mulk_i32 s{64 + k}, {RS}")
    e(f"""
    v_sub_u32 v{vQ16}, v{vQ16}, v{vC4}
    v_add_u32 v{vNp}, v{vNp}, v{vQ16}
    v_add_u32 v{vaN[0]}, s64, v44
    v_add_u32 v{vaN[1]}, s65, v44
    v_mov_b32 v{vaE}, {ZR}
    s_mov_b32 exec_lo, 0
    v_add_u32 v{vaN[0]}, s66, v44
    v_add_u32 v{vaN[1]}, s67, v44
    s_mov_b32 exec_lo, 0x55555555
    s_mov_b32 exec_hi, 0xaaaaaaaa
    v_bfe_u32 v45, v1, 1, 2
    v_mul_u32_u24 v45, s77, v45
    s_add_u32 s36, s60, {EA // 2}
    v_add_u32 v45, s36, v45
    v_and_b32 v{vaE}, 0x18, v1
    v_lshl_add_u32 v{vaE}, v45, 1, v{vaE}
    s_mov_b64 exec, -1
    ds_read2_b64 {vr(vAe, 4)}, v{vaE} offset0:0 offset1:0
    s_movk_i32 s36, 0x3f80
    s_mov_b32 s37, 0
    v_and_b32 v45, 0x30, v7
    v_lshlrev_b64 {vr(vI, 2)}, v45, s[36:37]
    v_mov_b64 {vr(vAc[0], 2)}, 0
    v_mov_b64 {vr(vAc[1], 2)}, 0
    s_sub_u32 s34, {NT}, s35
    s_lshl_b32 s38, s34, 4
    s_sub_u32 s38, {SO}, s38
    s_lshl_b32 s39, s34, 5
    s_waitcnt lgkmcnt(4)
    v_cmp_ne_u32 {sr(sFM[0], 2)}, 0, v46
    v_cmp_ne_u32 {sr(sFM[1], 2)}, 0, v47
    s_lshr_b32 s36, s21, 3
    s_and_b32 s36, s36, s{sFirst}
    s_cbranch_scc1 K2_NOB
    s_barrier
K2_NOB:
    ds_read_b64 {vr(vQ, 2)}, v{vaN[0]}
    ds_read_b64 {vr(vQ + 2, 2)}, v{vaN[1]}
    s_mov_b32 s{sFirst}, 0
""")
    for y in range(2):
        e(f"""
    s_lshl_b32 s{sFM[y]}, s{sFM[y]}, s34
    s_lshl_b32 s{sFM[y] + 1}, s{sFM[y] + 1}, s34
    s_or_b32 s36, s{sFM[y]}, s{sFM[y] + 1}
    s_lshr_b32 s37, s36, 1
    s_or_b32 s{sEV[y]}, s36, s37
""")
    stamp(12, 4, 1)
    e(f"""
    s_or_b32 s34, s34, 0x10000
    s_bitcmp1_b32 s35, 0
    s_waitcnt vmcnt(8) lgkmcnt(0)
""")
    stamp(6, 4, 1); dbg(3)
    e("    s_cbranch_scc1 K2_PA1")
    for a in range(2):
        if a: e("K2_PA1:")
        for q in range(4): e(mfma4(vD[a], vP[a], q))
        e(f"    s_cmp_lt_u32 s35, 3\n    s_cbranch_scc1 K2_NGP{a}")
        gathers(vP[a], vSO)
        e(f"K2_NGP{a}:\n    s_nop 1\n{mfma32(vD[a])}")
        if not a: e("    s_branch K2_PAD")
    e(f"""
K2_PAD:
    ds_read_b128 {vr(vSO, 4)}, v{vaS[0]} offset:{SO + 48}
    ds_read_b128 {vr(vSO + 4, 4)}, v{vaS[1]} offset:{SO + 48}
    ds_read2_b64 {vr(vAe, 4)}, v{vaE} offset0:4 offset1:4
""")
    for y in range(2):
        e(f"""
    s_bfe_i32 exec_lo, s{sFM[y]}, s34
    s_bfe_i32 exec_hi, s{sFM[y] + 1}, s34
    ds_read_b64 {vr(vQ + 2 * y, 2)}, v{vaN[y]} offset:{RS}
""")
    e(f"""
    s_mov_b32 exec_lo, 0x55555555
    s_mov_b32 exec_hi, 0xaaaaaaaa
    v_subrev_u32 v{vaE}, s39, v{vaE}
    s_mov_b64 exec, -1
    v_add_u32 v{vaS[0]}, s38, v{vaS[0]}
    v_add_u32 v{vaS[1]}, s38, v{vaS[1]}
""")
    prio(2)
    order = [10, 11, 9, 12, 8, 13, 7, 14, 6, 15, 5, 4, 3, 2, 1]
    for Lv in order:
        e(f"    s_cmp_eq_u32 s35, {Lv}\n    s_cbranch_scc1 K2_T{NT - Lv}")
    e("K2_LOOP:")
    for t in range(NT):
        tile(t)
    e("K2_LDONE:")
    xbu = lambda T, s: 32 + 16 * T + 4 * s
    e(f"""
    s_cmp_ge_u32 s21, 8
    s_cbranch_scc1 K2_LD2
    s_lshl_b32 s36, s21, 12
    s_add_u32 s36, s36, {WUT}
    s_add_u32 s37, s36, {WUB - WUT}
""")
    for s in range(4):
        e(f"    buffer_load_dwordx4 {vr(16 + 4 * s, 4)}, v7, s[4:7], s36 offen offset:{1024 * s}")
    for s in range(4):
        e(f"    buffer_load_dwordx4 {vr(92 + 4 * s, 4)}, v7, s[4:7], s37 offen offset:{1024 * s}")
    e("K2_LD2:")
    for y in range(2):
        flush_adds(y)
    e(f"""
    v_mov_b32 v89, {MORE}
    ds_read_b32 v89, v89
""")
    stamp(7, 4, 1); dbg(4)
    e(f"""
    s_cmp_ge_u32 s21, 8
    s_cbranch_scc1 K2_NOU
""")
    x_frags(84, xbu)
    e("    s_waitcnt vmcnt(4)")
    for s in range(4):
        for T in range(3):
            e(f"    s_waitcnt lgkmcnt({11 - 3 * s - T})")
            c = "0" if s == 0 else vr(vU + 4 * T, 4)
            e(f"    v_mfma_f32_16x16x32_bf16 {vr(vU + 4 * T, 4)}, {vr(16 + 4 * s, 4)}, {vr(xbu(T, s), 4)}, {c}")
    e(f"""
    v_mul_u32_u24 v{vFR}, {RB}, v6
    v_lshl_add_u32 v{vFR}, v5, 4, v{vFR}
    v_add_u32 v{vFR}, {AGB}, v{vFR}
    v_lshlrev_b32 v{vFO}, 16, v6
    v_lshl_or_b32 v{vFO}, v5, 3, v{vFO}
    s_lshl_b32 s36, s20, 8
    s_lshl_b32 s37, s21, 5
    s_add_u32 s36, s36, s37
    v_add_u32 v{vFO}, s36, v{vFO}
    s_cmp_lt_u32 s21, 6
    s_cbranch_scc1 K2_NOCA
K2_NOU:
    v_lshrrev_b32 v{vCA}, 4, v0
    v_subrev_u32 v{vCA}, 24, v{vCA}
    v_cvt_f32_u32 v84, v{vNp}
    v_lshlrev_b32 v85, 2, v{vCA}
    v_mul_f32 v84, 0xbe800000, v84
    v_mul_u32_u24 v{vCW}, {RB}, v{vCA}
    v_mul_u32_u24 v{vCA}, {RS}, v{vCA}
    ds_bpermute_b32 v{vCN}, v85, v84
    v_lshl_add_u32 v{vCW}, v6, 4, v{vCW}
    v_lshl_add_u32 v{vCA}, v6, 4, v{vCA}
    v_add_u32 v{vCW}, {AGB}, v{vCW}
    v_add_u32 v{vCA}, {QU}, v{vCA}
K2_NOCA:
    s_waitcnt vmcnt(0) lgkmcnt(0)
    v_readfirstlane_b32 s{sMoreV}, v89
    s_barrier
""")
    stamp(8, 4, 1)
    e(f"""
    s_cmp_lg_u32 s{sMoreV}, 0
    s_cbranch_scc1 K2_NEXT
    s_cmp_lt_u32 s21, 6
    s_cbranch_scc1 K2_NOCV
""")
    for k in range(4):
        e(f"    ds_read_b128 {vr(16 + 4 * k, 4)}, v{vCA} offset:{AG - QU + 256 * k}\n    ds_read_b64 {vr(8 + 2 * k, 2)}, v{vCA} offset:{256 * k + 8}")
    for k in range(4):
        e(f"    s_waitcnt lgkmcnt({6 - 2 * k})")
        e(f"    v_cvt_f32_f64 v{32 + 2 * k}, {vr(16 + 4 * k, 2)}\n    v_cvt_f32_f64 v{33 + 2 * k}, {vr(18 + 4 * k, 2)}")
        e(f"    v_pk_fma_f32 {vr(32 + 2 * k, 2)}, {vr(8 + 2 * k, 2)}, {vr(vCN, 2)}, {vr(32 + 2 * k, 2)} op_sel_hi:[1,0,1]")
        e(f"    v_cvt_pk_bf16_f32 v{40 + k}, v{32 + 2 * k}, v{33 + 2 * k}")
    e(f"""
    ds_write_b128 v{vCW}, v[40:43]
    s_waitcnt lgkmcnt(0)
K2_NOCV:
    s_barrier
    s_cmp_ge_u32 s21, 8
    s_cbranch_scc1 K2_FIN
""")
    xbf = lambda T, s: 16 + 16 * T + 4 * s
    for s in range(4):
        for T in range(3):
            e(f"    ds_read_b128 {vr(xbf(T, s), 4)}, v{vFR} offset:{16 * RB * T + 64 * s}")
    for s in range(4):
        for T in range(3):
            e(f"    s_waitcnt lgkmcnt({11 - 3 * s - T})")
            e(f"    v_mfma_f32_16x16x32_bf16 {vr(vU + 4 * T, 4)}, {vr(92 + 4 * s, 4)}, {vr(xbf(T, s), 4)}, {vr(vU + 4 * T, 4)}")
    e(f"    v_add_u32 v88, 0x100000, v{vFO}\n    v_add_u32 v89, 0x200000, v{vFO}\n    s_nop 1")
    for m in range(6):
        if m == 2: e("    s_nop 0")
        e(f"    v_pk_mul_f32 {vr(16 + 2 * m, 2)}, {vr(vU + 2 * m, 2)}, s[72:73] op_sel_hi:[1,0]")
    for m in range(12):
        e(f"    v_exp_f32 v{16 + m}, v{16 + m}")
    for m in range(6):
        e(f"    v_pk_add_f32 {vr(16 + 2 * m, 2)}, {vr(16 + 2 * m, 2)}, 1.0 op_sel_hi:[1,0]")
    for T in range(3):
        for m in range(4 * T, 4 * T + 4):
            e(f"    v_rcp_f32 v{16 + m}, v{16 + m}")
        e("    s_nop 0")
        for m in (2 * T, 2 * T + 1):
            e(f"    v_pk_mul_f32 {vr(16 + 2 * m, 2)}, {vr(16 + 2 * m, 2)}, {vr(vU + 2 * m, 2)}")
        for m in (2 * T, 2 * T + 1):
            e(f"    v_cvt_pk_bf16_f32 v{32 + m}, v{16 + 2 * m}, v{17 + 2 * m}")
        e(f"    buffer_store_dwordx2 {vr(32 + 2 * T, 2)}, v{(vFO, 88, 89)[T]}, s[16:19], 0 offen")
    e("K2_FIN:")
    dbg_out(1, 7, 6, 6, 'DBGC'); light1(4, 1)
    if OPT["stamps"]:
        stamp(9, 4, 1); e("    s_waitcnt vmcnt(0)"); stamp(10, 4, 1); stamp_out(4, 1)
    e("K2_END:\n    s_endpgm")
    if not OPT["noflush"]:
        for t in range(NT - 1):
            for y in range(2):
                event_block(t, y)
    e(f"""
K2_TAILBLOCKS:
K2_MORE1:
    v_mov_b32 v61, {MORE}
    ds_write_b32 v61, v63
    s_branch K2_MOREB1
K2_MORE2:
    v_mov_b32 v61, {MORE}
    ds_write_b32 v61, v63
    s_branch K2_MOREB2
K2_NEXT:
    s_add_u32 s24, s24, s25
    s_branch K2_AGAIN
K2_REDO:
    s_mov_b32 s25, 4
    s_waitcnt vmcnt(0) lgkmcnt(0)
    s_barrier
K2_AGAIN:
    v_lshlrev_b32 v60, 4, v0
    v_mov_b64 v[48:49], 0
    v_mov_b64 v[50:51], 0
    s_cmp_ge_u32 s21, 2
    s_cbranch_scc1 K2_ROUND
    ds_write_b128 v60, v[48:51] offset:{MISC}
    s_waitcnt lgkmcnt(0)
    s_branch K2_ROUND
""")

def desc(name, vg, sg):
    e(f"""
.p2align 6
.amdhsa_kernel {name}
  .amdhsa_next_free_vgpr {vg}
  .amdhsa_next_free_sgpr {sg}
  .amdhsa_accum_offset {vg}
  .amdhsa_group_segment_fixed_size 0
  .amdhsa_kernarg_size 72
  .amdhsa_user_sgpr_count 2
  .amdhsa_user_sgpr_kernarg_segment_ptr 1
  .amdhsa_system_sgpr_workgroup_id_x 1
.end_amdhsa_kernel
""")

e(f"""
; @launch kernel=mpnn_bin_kernel grid=(256,1,1) block=(1024,1,1) lds={K1_LDS}
; @launch kernel=mpnn_edge_kernel grid=(256,1,1) block=(1024,1,1) lds={K2_LDS}
.amdgcn_target "amdgcn-amd-amdhsa--gfx950"
""")
kernel1()
kernel2()
e('.section .rodata,"a"')
desc("mpnn_bin_kernel", 128, 96)
desc("mpnn_edge_kernel", 128, 96)
FL_ = {0: "", 1: " sc1", 2: " nt", 3: " sc0 sc1", 4: " sc1 nt", 5: " sc0"}
k2at = next(i for i, l in enumerate(L) if l.startswith("mpnn_edge_kernel:"))
for i, l in enumerate(L):
    c = l.split(";")
    fl = None
    if l.strip().startswith("buffer_store") and " off," not in l:
        fl = FL_[OPT["st1"] if i < k2at else OPT["st2"]]
    elif l.strip().startswith("buffer_load"):
        if i < k2at:
            if any(x in l for x in ("s[24:27]", "s[28:31], s22", "s[32:35]")): fl = " nt" * OPT["nte"]
            elif "s[4:7]" in l: fl = " nt" * OPT["ntx"]
            elif "s[12:15]" in l and "lds" in l: fl = " nt" * OPT["ntw"]
        else:
            if "s[12:15]" in l: fl = " nt" * OPT["ntx2"]
            elif "dwordx3" in l: fl = " nt" * OPT["ntr"]
    if fl:
        body = c[0].rstrip()
        body = body[:-4] + fl + " lds" if body.endswith(" lds") else body + fl
        L[i] = body + ("   ;" + c[1] if len(c) > 1 else "")
open(sys.argv[1], "w").write("\n".join(L) + "\n")
```

```python
import sys, struct, math

def f2u(x): return struct.unpack("<I", struct.pack("<f", x))[0]

OPT = dict(st1=0, st2=0, nte=0, ntx=0, ntw=0, ntx2=0, ntr=0, light=0, g1late=0, pf=0, gpos=0, nom4=0, nom32=0, mpos=0, nochk=0, prio1=0, dbg=0, safe=0, stamps=0, prio=1, nogather=0, nocore=0, nolds=0, nomfma=0, noflush=0)
for a in sys.argv[2:]:
    k, v = a.split("="); OPT[k] = int(v)

N, E = 10000, 320000
NB = 256
EPW = 1250
PT    = 0
DESC  = 0x280000
REC   = 0x2C0000
RSTR  = 15488
W2F   = 0x690000
WUT   = W2F + 0x8000
WUB   = WUT + 0x8000
W3F   = WUB + 0x8000
STAMP = W3F + 0x800
WSEND = STAMP + (0x100000 if OPT["stamps"] or OPT["light"] else 0)
NL2E = f2u(-1.4426950408889634)
KC   = f2u(1.0 / (2.0 ** 31 * math.log(2.0)))
NSC  = f2u(-2.0 ** -31)

L = []
def e(s=""):
    for ln in s.strip("\n").split("\n"):
        L.append(ln)
def vr(a, n): return f"v[{a}:{a + n - 1}]" if n > 1 else f"v{a}"
def sr(a, n): return f"s[{a}:{a + n - 1}]" if n > 1 else f"s{a}"

def srd(s, nrec, w3=0x20000):
    e(f"    s_mov_b32 s{s + 2}, {nrec:#x}\n    s_mov_b32 s{s + 3}, {w3:#x}")

def scan64(v):
    for c in ("row_shr:1 row_mask:0xf", "row_shr:2 row_mask:0xf", "row_shr:4 row_mask:0xf", "row_shr:8 row_mask:0xf",
              "row_bcast:15 row_mask:0xa", "row_bcast:31 row_mask:0xc"):
        e(f"    s_nop 1\n    v_add_u32_dpp v{v}, v{v}, v{v} {c} bank_mask:0xf")

NST = 16
def light0():
    if OPT["light"]: e("    s_memrealtime s[80:81]")
def light1(srd_s, kern):
    if not OPT["light"]: return
    e(f"""
    s_waitcnt vmcnt(0)
    s_memrealtime s[82:83]
    s_mov_b32 s{srd_s + 2}, {WSEND:#x}
    s_lshl_b32 s90, s2, 4
    s_add_u32 s90, s90, s21
    s_lshl_b32 s90, s90, 3
    s_add_u32 s90, s90, {STAMP + kern * 0x80000}
    s_mov_b64 exec, 1
    s_waitcnt lgkmcnt(0)
    v_mov_b32 v2, s80
    v_mov_b32 v3, s82
    buffer_store_dwordx2 v[2:3], off, s[{srd_s}:{srd_s + 3}], s90
""")
def dbg(slot):
    if not OPT["dbg"]: return
    e(f"    s_memrealtime s[{80 + 2 * slot}:{81 + 2 * slot}]")
def dbg_out(kern, wv, base, n, lab):
    if not OPT["dbg"]: return
    e(f"""
    s_waitcnt vmcnt(0)
    s_memrealtime s[{80 + 2 * (n - 1)}:{81 + 2 * (n - 1)}]
    s_cmp_lg_u32 s2, 200
    s_cbranch_scc1 {lab}
    s_cmp_lg_u32 s21, {wv}
    s_cbranch_scc1 {lab}
    s_load_dwordx2 s[92:93], s[0:1], 56
    s_waitcnt lgkmcnt(0)
    s_add_u32 s92, s92, {512 * (1 - kern)}
    s_addc_u32 s93, s93, 0
    s_mov_b32 s94, 256
    s_mov_b32 s95, 0x20000
    s_mov_b64 exec, 1
""")
    for i in range(n):
        e(f"    v_mov_b32 v127, s{80 + 2 * i}\n    buffer_store_dword v127, off, s[92:95], 0 offset:{4 * (base + i)}\n    s_waitcnt vmcnt(0)")
    e(f"{lab}:")
def stamp(i, srd_s, kern):
    if not OPT["stamps"]: return
    e(f"""
    s_memtime s[90:91]
    s_waitcnt lgkmcnt(0)
    v_writelane_b32 v127, s90, {i}
""")
    if i == 0:
        e("    s_memrealtime s[90:91]\n    s_waitcnt lgkmcnt(0)\n    v_writelane_b32 v127, s90, 14")
def stamp_out(srd_s, kern):
    if not OPT["stamps"]: return
    e(f"""
    s_memrealtime s[90:91]
    s_waitcnt lgkmcnt(0)
    v_writelane_b32 v127, s90, 15
    s_mov_b64 exec, 0xffff
    s_lshl_b32 s90, s2, 4
    s_add_u32 s90, s90, s21
    s_lshl_b32 s90, s90, 6
    s_add_u32 s90, s90, {STAMP + kern * 0x80000}
    v_mbcnt_lo_u32_b32 v125, -1, 0
    v_lshlrev_b32 v125, 2, v125
    buffer_store_dword v127, v125, s[{srd_s}:{srd_s + 3}], s90 offen
    s_mov_b64 exec, -1
""")

K1_CNT, K1_ST, K1_STG = 0, 1024, 2048
K1_WL, K1_XL = 0, 32768
K1_LDS = 66 * 1024
def kernel1():
    e("""
.text
.globl mpnn_bin_kernel
.p2align 8
.type mpnn_bin_kernel,@function
mpnn_bin_kernel:
    s_load_dwordx4 s[8:11], s[0:1], 16
    s_load_dwordx4 s[4:7], s[0:1], 0        ; x, e_attr
    s_load_dwordx4 s[12:15], s[0:1], 32
    s_load_dwordx2 s[16:17], s[0:1], 64     ; ws
    s_cmp_ge_u32 s2, 512
    s_cbranch_scc1 K1_END
    v_lshrrev_b32 v2, 6, v0
    v_and_b32 v1, 63, v0
    v_readfirstlane_b32 s21, v2
    s_and_b32 s20, s2, 7
    s_lshl_b32 s20, s20, 5
    s_lshr_b32 s3, s2, 4
    s_or_b32 s20, s20, s3
    s_lshr_b32 s3, s2, 5
    s_xor_b32 s3, s3, s2
""")
    stamp(0, 16, 0); light0()
    dbg(0)
    e("""
    s_bitcmp1_b32 s3, 3
    s_cbranch_scc1 K1_GEMM
    ; ---------------- binning workgroup (waves 0..9) ----------------
    s_cmp_ge_u32 s21, 10
    s_cbranch_scc1 K1_END
    s_mul_i32 s22, s20, 5000                ; byte offset of this workgroup's src/dst slice
    s_lshl_b32 s23, s22, 1                  ; e_attr slice
    v_lshlrev_b32 v3, 3, v0
    v_lshlrev_b32 v4, 4, v0
    v_cmp_gt_u32 s[44:45], 625, v0
""".replace("v_cmp_gt_u32 s[44:45], 625, v0", "v_cmp_gt_u32 vcc, 625, v0"))
    e("    s_mov_b32 s26, %#x\n    s_mov_b32 s27, 0x20000\n    s_mov_b64 s[44:45], vcc\n    s_mov_b64 exec, vcc\n    s_waitcnt lgkmcnt(0)\n    s_mov_b32 s24, s10\n    s_mov_b32 s25, s11" % (E * 4))
    e("    buffer_load_dwordx2 v[6:7], v3, s[24:27], s22 offen      ; dst")
    srd(8, E * 4)
    e("    s_mov_b32 s32, s6\n    s_mov_b32 s33, s7"); srd(32, E * 8)
    e(f"""
    buffer_load_dwordx2 v[8:9], v3, s[8:11], s22 offen       ; src
    buffer_load_dwordx4 v[10:13], v4, s[32:35], s23 offen
    s_mov_b64 exec, -1
    v_mov_b64 v[20:21], 0
    v_mov_b64 v[22:23], 0
    s_cmp_lg_u32 s21, 0
    s_cbranch_scc1 K1_NOZ
    ds_write_b128 v4, v[20:23] offset:{K1_CNT}
K1_NOZ:
    v_mov_b32 v24, 1
    v_lshlrev_b32 v5, 4, v1
""")
    srd(16, WSEND)
    e(f"""
    s_mul_i32 s38, s20, {RSTR}
    s_add_u32 s38, s38, {REC}
    s_add_u32 s39, s38, 10240
    s_waitcnt lgkmcnt(0)
    s_barrier
    s_mov_b64 exec, s[44:45]
    s_waitcnt vmcnt(2)
""")
    stamp(1, 16, 0)
    dbg(1)
    e(f"""
    v_lshlrev_b32 v14, 2, v6
    v_lshlrev_b32 v15, 2, v7
    v_and_b32 v14, 0x3fc, v14
    v_and_b32 v15, 0x3fc, v15
    ds_add_rtn_u32 v16, v14, v24 offset:{K1_CNT}
    ds_add_rtn_u32 v17, v15, v24 offset:{K1_CNT}
    v_lshrrev_b32 v6, 8, v6
    v_lshrrev_b32 v7, 8, v7
    v_lshlrev_b32 v6, 26, v6
    v_lshlrev_b32 v7, 26, v7
    s_mov_b64 exec, -1
    s_waitcnt lgkmcnt(0)
    s_barrier
""")
    stamp(2, 16, 0)
    e(f"""
    ds_read_b128 v[20:23], v5 offset:{K1_CNT}
    s_waitcnt lgkmcnt(0)
    v_add_u32 v25, v20, v21
    v_add_u32 v26, v25, v22
    v_add_u32 v27, v26, v23
    s_nop 1
    v_add_u32_dpp v28, v27, v27 row_shr:1 row_mask:0xf bank_mask:0xf bound_ctrl:1
""")
    for c in ("row_shr:2 row_mask:0xf", "row_shr:4 row_mask:0xf", "row_shr:8 row_mask:0xf", "row_bcast:15 row_mask:0xa", "row_bcast:31 row_mask:0xc"):
        e(f"    s_nop 1\n    v_add_u32_dpp v28, v28, v28 {c} bank_mask:0xf")
    e(f"""
    v_sub_u32 v28, v28, v27
    v_add_u32 v29, v28, v20
    v_add_u32 v30, v28, v25
    v_add_u32 v31, v28, v26
    ds_write_b128 v5, v[28:31] offset:{K1_ST}
    ds_read_b32 v18, v14 offset:{K1_ST}
    ds_read_b32 v19, v15 offset:{K1_ST}
    s_waitcnt vmcnt(1)
    v_lshl_or_b32 v8, v8, 3, v6
    v_lshl_or_b32 v9, v9, 3, v7
    s_mov_b64 exec, s[44:45]
    s_waitcnt lgkmcnt(0)
    v_add_u32 v18, v18, v16
    v_add_u32 v19, v19, v17
    v_mul_u32_u24 v18, 12, v18
    v_mul_u32_u24 v19, 12, v19
    ds_write_b32 v18, v8 offset:{K1_STG + 8}
    ds_write_b32 v19, v9 offset:{K1_STG + 8}
    v_add_u32 v18, {K1_STG}, v18
    v_add_u32 v19, {K1_STG}, v19
    s_waitcnt vmcnt(0)
    ds_write2_b32 v18, v10, v11 offset0:0 offset1:1
    ds_write2_b32 v19, v12, v13 offset0:0 offset1:1
    s_mov_b64 exec, -1
    s_cmp_lg_u32 s21, 9
    s_cbranch_scc1 K1_NOD
    v_lshl_or_b32 v32, v20, 16, v28
    v_lshl_or_b32 v33, v21, 16, v29
    v_lshl_or_b32 v34, v22, 16, v30
    v_lshl_or_b32 v35, v23, 16, v31
    s_lshl_b32 s36, s20, 4
    s_add_u32 s36, s36, {DESC}
    v_lshlrev_b32 v36, 12, v1
    buffer_store_dwordx4 v[32:35], v36, s[16:19], s36 offen
K1_NOD:
    s_waitcnt lgkmcnt(0)
    s_barrier
""")
    stamp(3, 16, 0)
    e(f"""
    ds_read_b128 v[20:23], v4 offset:{K1_STG}
    s_cmp_ge_u32 s21, 5
    s_cbranch_scc1 K1_C1
    ds_read_b128 v[24:27], v4 offset:{K1_STG + 10240}
    s_waitcnt lgkmcnt(0)
    buffer_store_dwordx4 v[24:27], v4, s[16:19], s39 offen
K1_C1:
    s_waitcnt lgkmcnt(0)
    buffer_store_dwordx4 v[20:23], v4, s[16:19], s38 offen
""")
    light1(16, 0)
    if OPT["stamps"]:
        stamp(4, 16, 0); e("    s_waitcnt vmcnt(0)"); stamp(5, 16, 0); stamp_out(16, 0)
    e(f"""
    s_endpgm
K1_GEMM:
    v_lshrrev_b32 v2, 4, v1                 ; g
    v_and_b32 v3, 15, v1                    ; n / i
    s_cmp_ge_u32 s20, 209
    s_cbranch_scc1 K1_JOBS
    ; x -> LDS: rows 4w + g, chunk (l%16) ^ (row & 15)
    v_lshrrev_b32 v5, 4, v0
    v_xor_b32 v6, v5, v0
    v_and_b32 v6, 15, v6
    s_mul_i32 s25, s20, 48
    v_add_u32 v5, s25, v5
    v_lshlrev_b32 v5, 8, v5
    v_lshl_or_b32 v5, v6, 4, v5
    s_lshl_b32 s27, s21, 10
    s_add_u32 s28, s27, {K1_XL}
    s_mov_b32 m0, s28
    ; W1 -> LDS: row (l/16), chunk (l%16) ^ ((l/16)<<1) ^ (8 if bit 3 of the row)
    v_lshlrev_b32 v4, 1, v2
    v_xor_b32 v4, v4, v3
    v_lshlrev_b32 v4, 4, v4
    v_lshl_or_b32 v4, v2, 8, v4
    s_lshl_b32 s28, s21, 6
    s_and_b32 s28, s28, 0x80
    v_xor_b32 v4, s28, v4
    s_waitcnt lgkmcnt(0)
""")
    srd(4, N * 256)
    srd(12, 128 * 256)
    e("    buffer_load_dwordx4 v5, s[4:7], 0 offen lds")
    for m in range(3):
        if m == 2:
            e("    s_cmp_ge_u32 s21, 8\n    s_cbranch_scc1 K1_DMAD")
        e(f"""
    s_mov_b32 m0, s27
    s_nop 0
    buffer_load_dwordx4 v4, s[12:15], s27 offen lds
""")
        if m < 2: e("    s_add_u32 s27, s27, 12288")
    e("K1_DMAD:")
    srd(16, N * 256)
    e(f"""
    s_lshr_b32 s23, s21, 2
    s_and_b32 s24, s21, 3
    v_lshrrev_b32 v24, 2, v3                ; r'
    v_and_b32 v25, 3, v3                    ; c'
    v_and_b32 v26, 1, v2
    v_lshl_or_b32 v26, v26, 2, v24          ; h(k)
    v_lshl_add_u32 v27, v2, 3, v24          ; 8g + r'
    v_lshlrev_b32 v27, 8, v27
    v_lshl_or_b32 v27, v25, 3, v27
    s_lshl_b32 s27, s24, 1
    v_xor_b32 v26, s27, v26
    v_lshl_add_u32 v28, v26, 5, v27
    v_xor_b32 v29, 32, v28
    ; x fragments
    v_xor_b32 v30, v2, v3
    v_lshlrev_b32 v30, 4, v30
    v_lshl_or_b32 v30, v3, 8, v30
    s_lshl_b32 s27, s23, 12
    s_add_u32 s27, s27, {K1_XL}
    v_add_u32 v30, s27, v30
    v_xor_b32 v31, 64, v30
    v_xor_b32 v32, 0x80, v30
    v_xor_b32 v33, 0xc0, v30
    s_lshl_b32 s26, s23, 4
    s_add_u32 s25, s25, s26
    v_add_u32 v5, s25, v3
    v_lshlrev_b32 v5, 8, v5
    v_lshl_or_b32 v5, v2, 4, v5
    s_lshl_b32 s27, s24, 6
    v_add_u32 v5, s27, v5
    s_mov_b32 s28, {NL2E:#x}
    s_waitcnt vmcnt(0)
    s_barrier
""")
    stamp(3, 16, 0)
    for s in range(4):
        e(f"    ds_read_b128 {vr(8 + 4 * s, 4)}, v{30 + s}")
        for f in range(2):
            for u2 in range(2):
                e(f"    ds_read_b64_tr_b16 {vr(36 + 16 * f + 4 * s + 2 * u2, 2)}, v{28 + f} offset:{s * 8192 + u2 * 1024}")
    for s in range(4):
        for f in range(2):
            left = 20 - (5 * s + 3 + 2 * f)
            e(f"    s_waitcnt lgkmcnt({min(left, 15)})")
            c = "0" if s == 0 else vr(68 + 4 * f, 4)
            e(f"    v_mfma_f32_16x16x32_bf16 {vr(68 + 4 * f, 4)}, {vr(36 + 16 * f + 4 * s, 4)}, {vr(8 + 4 * s, 4)}, {c}")
    e("    s_nop 5")
    for f in range(2):
        for h in range(2):
            r = 68 + 4 * f + 2 * h
            e(f"    v_pk_mul_f32 {vr(r, 2)}, {vr(r, 2)}, s[28:29] op_sel_hi:[1,0]")
        for h in range(2):
            r = 68 + 4 * f + 2 * h
            e(f"    v_cvt_pk_bf16_f32 v{76 + 2 * f + h}, v{r}, v{r + 1}")
    e(f"    buffer_store_dwordx4 v[76:79], v5, s[16:19], 0 offen")
    light1(16, 0)
    if OPT["stamps"]:
        srd(16, WSEND); stamp(4, 16, 0); e("    s_waitcnt vmcnt(0)"); stamp(5, 16, 0); stamp_out(16, 0)
    e(f"""
    s_endpgm
K1_JOBS:
    s_sub_u32 s23, s20, 209
    s_mul_i32 s23, s23, 12
    s_add_u32 s23, s23, s21
    s_waitcnt lgkmcnt(0)
""")
    srd(16, WSEND)
    e(f"""
    s_cmp_ge_u32 s23, 96
    s_cbranch_scc1 K1_JOB2
    s_lshr_b32 s24, s23, 5
    s_bfe_u32 s25, s23, 0x30002             ; f
    s_and_b32 s26, s23, 3                   ; s
    s_cmp_eq_u32 s24, 0
    s_cselect_b32 s28, s12, s14
    s_cselect_b32 s29, s13, s15
    s_mov_b32 s30, {256 * 256}
    s_mov_b32 s31, 0x20000
    ; column
    s_lshl_b32 s33, s25, 4                  ; 16 f
    v_add_u32 v4, s33, v3
    v_lshlrev_b32 v4, 1, v4
    ; row
    v_lshlrev_b32 v5, 11, v2                ; 8 g rows
    v_lshrrev_b32 v7, 1, v2
    v_lshlrev_b32 v7, 12, v7
    v_and_b32 v6, 1, v2
    v_lshl_or_b32 v7, v6, 9, v7             ; 16 (g>>1) + 2 (g&1) rows
    s_cmp_eq_u32 s24, 2
    s_cselect_b64 vcc, -1, 0
    s_cselect_b32 s32, 10, 13
    s_movk_i32 s33, 512
    s_cmovk_i32 s33, 8192
    s_cselect_b32 s34, {NSC:#x}, 1.0
    v_cndmask_b32 v5, v5, v7, vcc
    v_add_u32 v4, v4, v5
    s_lshl_b32 s40, s26, s32
    s_cmp_eq_u32 s24, 1
    s_cselect_b32 s36, 0, 0x8000
    s_add_u32 s40, s40, s36
    s_add_u32 s41, s40, s33
    s_add_u32 s42, s41, s33
    s_add_u32 s43, s42, s33
""")
    for m in range(8):
        e(f"    buffer_load_ushort v{8 + m}, v4, s[28:31], s{40 + m // 2} offen offset:{(m & 1) * 256}")
    e(f"""
    s_lshl_b32 s37, s23, 10
    s_add_u32 s37, s37, {W2F}
    v_lshlrev_b32 v6, 4, v1
    s_mov_b32 s38, 0x07060302
    s_waitcnt vmcnt(0)
""")
    for m in range(8):
        e(f"    v_lshlrev_b32 v{8 + m}, 16, v{8 + m}\n    v_mul_f32 v{8 + m}, s34, v{8 + m}")
    for m in range(4):
        e(f"    v_perm_b32 v{16 + m}, v{9 + 2 * m}, v{8 + 2 * m}, s38")
    e(f"""
    buffer_store_dwordx4 v[16:19], v6, s[16:19], s37 offen
    s_endpgm
K1_JOB2:
    s_cmp_ge_u32 s23, 98
    s_cbranch_scc1 K1_JOB3
    s_sub_u32 s24, s23, 96                  ; c
    s_mov_b32 s14, {260 * 256}
    s_mov_b32 s15, 0x20000
    v_and_b32 v2, 31, v1
    v_lshrrev_b32 v3, 5, v1
    v_lshl_or_b32 v2, v2, 1, v3             ; p & 63
    v_and_b32 v4, 0x23, v2
    v_bfe_u32 v5, v2, 2, 1
    v_lshl_or_b32 v4, v5, 4, v4
    v_bfe_u32 v5, v2, 3, 2
    v_lshl_or_b32 v4, v5, 2, v4             ; feature & 63
    v_lshlrev_b32 v4, 1, v4
    s_lshl_b32 s25, s24, 7
    s_add_u32 s25, s25, {256 * 256}
""")
    for d in range(4):
        e(f"    buffer_load_ushort v{8 + d}, v4, s[12:15], s25 offen offset:{d * 256}")
    e(f"""
    s_lshl_b32 s37, s24, 10
    s_add_u32 s37, s37, {W3F}
    v_lshlrev_b32 v6, 4, v1
    s_mov_b32 s34, {NL2E:#x}
    s_waitcnt vmcnt(0)
""")
    for d in range(4):
        e(f"    v_lshlrev_b32 v{8 + d}, 16, v{8 + d}\n    v_mul_f32 v{8 + d}, s34, v{8 + d}")
    e("""
    v_cvt_pk_bf16_f32 v16, v8, v9
    v_cvt_pk_bf16_f32 v17, v10, v11
    v_lshlrev_b32 v12, 16, v16
    v_and_b32 v13, 0xffff0000, v16
    v_lshlrev_b32 v14, 16, v17
    v_and_b32 v15, 0xffff0000, v17
    v_sub_f32 v8, v8, v12
    v_sub_f32 v9, v9, v13
    v_sub_f32 v10, v10, v14
    v_sub_f32 v11, v11, v15
    v_cvt_pk_bf16_f32 v18, v8, v9
    v_cvt_pk_bf16_f32 v19, v10, v11
    buffer_store_dwordx4 v[16:19], v6, s[16:19], s37 offen
    s_endpgm
K1_JOB3:
    s_cmp_lg_u32 s23, 98
    s_cbranch_scc1 K1_END
    v_mov_b32 v8, 0
    v_lshlrev_b32 v6, 2, v1
""")
    e(f"""
    s_mov_b32 s37, {PT + N * 256}
    buffer_store_dword v8, v6, s[16:19], s37 offen
K1_END:
    s_endpgm
""")

RS = 1040
RB = 272
CAP = 2048
MISC = 0
ZR, CNT, MORE, FL = 0, 768, 1024, 1088
SO = 2048
EA = SO + CAP * 4
W3L = EA + CAP * 8
QU = W3L + 2048
AG = QU + 41 * RS
XL = (AG + 2 * 16384 + 11 * 1024 + 255) // 256 * 256
AGB = XL
K2_LDS = AGB + 48 * RB
PADV = N * 8
S16MAX = (CAP // 4 - 8) * 16
NT = 16
NK = 6
vSO, vP, vD, vE, vAe, vBw, vQ, vNp, vAc, vI = 8, (16, 24), (32, 92), 48, 64, 68, 72, 126, (80, 82), 84
vaS, vaE, vaN = (86, 87), 88, (90, 91)
vU = 108
vC4, vQ16, vE16, vS16 = 120, 121, 122, 123
vCA, vCW, vCN, vFR, vFO = 120, 121, 122, 124, 125
sM = [40 + 2 * k for k in range(NK)]
sFM, sEV = (28, 30), (32, 33)
sFirst, sMoreV, sMM = 56, 57, 58
M9 = "0x01ff01ff"
KCOP = "s[26:27], s[26:27] op_sel_hi:[1,0,0] clamp"

def flush_adds(y):
    t = vE + 8 * y
    e(f"""
    v_cvt_f64_f32 {vr(t, 2)}, v{vAc[y]}
    v_cvt_f64_f32 {vr(t + 2, 2)}, v{vAc[y] + 1}
    ds_add_f64 v{vaN[y]}, {vr(t, 2)} offset:{AG - QU}
    ds_add_f64 v{vaN[y]}, {vr(t + 2, 2)} offset:{AG - QU + 8}
""")

def exec_bit(y, t):
    e(f"    s_bfe_i32 exec_lo, s{sFM[y]}, {0x10000 | t:#x}\n    s_bfe_i32 exec_hi, s{sFM[y] + 1}, {0x10000 | t:#x}")

def event_block(t, y):
    e(f"K2_EV{t}_{y}:")
    exec_bit(y, t)
    e(f"    s_cbranch_execz K2_EQ{t}_{y}")
    flush_adds(y)
    e(f"""
    v_add_u32 v{vaN[y]}, {RS}, v{vaN[y]}
    v_mov_b64 {vr(vAc[y], 2)}, 0
K2_EQ{t}_{y}:
""")
    if t + 2 < NT:
        exec_bit(y, t + 1)
        e(f"    ds_read_b64 {vr(vQ + 2 * y, 2)}, v{vaN[y]} offset:{RS}")
    e(f"    s_mov_b64 exec, -1\n    s_branch K2_EB{t}_{y}")

def gather_lines(dst, adr):
    out = []
    for q in range(4):
        for y in range(2):
            a = adr + 4 * y + q
            pre = f"    v_min_u32 v{a}, {PADV}, v{a}\n    v_and_b32 v{a}, -8, v{a}\n" if OPT["safe"] else ""
            out.append(pre + f"    buffer_load_dword v{dst + 2 * q + y}, v{a}, s[8:11], 0 offen")
    return out
def gathers(dst, adr):
    for l in gather_lines(dst, adr): e(l)

def mfma4(D, P, q): return f"    v_mfma_f32_4x4x4_16b_bf16 {vr(D + 4 * q, 4)}, {vr(vI, 2)}, {vr(P + 2 * q, 2)}, {vr(vQ, 4)}"
def mfma32(D): return f"    v_mfma_f32_32x32x16_bf16 {vr(D, 16)}, {vr(vAe, 4)}, {vr(vBw, 4)}, {vr(D, 16)}"

def core_lines(D):
    Ee = vE
    def p(r): return vr(r, 2)
    ex = [f"    v_exp_f32 v{Ee + k}, v{D + k}" for k in range(16)]
    sc = [f"    v_pk_fma_f32 {p(Ee + 2 * m)}, {p(Ee + 2 * m)}, {KCOP}" for m in range(8)]
    seq = [
        lambda o: f"v_pk_mul_f32 {p(D + o)}, {p(D + o)}, {p(Ee + o + 4)}",
        lambda o: f"v_pk_mul_f32 {p(D + o + 8)}, {p(D + o + 8)}, {p(Ee + o + 12)}",
        lambda o: f"v_pk_fma_f32 {p(D + o)}, {p(D + o + 4)}, {p(Ee + o)}, {p(D + o)}",
        lambda o: f"v_pk_fma_f32 {p(D + o + 8)}, {p(D + o + 12)}, {p(Ee + o + 8)}, {p(D + o + 8)}",
        lambda o: f"v_pk_mul_f32 {p(Ee + o)}, {p(Ee + o)}, {p(Ee + o + 4)}",
        lambda o: f"v_pk_mul_f32 {p(Ee + o + 8)}, {p(Ee + o + 8)}, {p(Ee + o + 12)}",
        lambda o: f"v_pk_mul_f32 {p(Ee + o + 4)}, {p(Ee + o)}, {p(Ee + o + 8)}",
        lambda o: f"v_pk_mul_f32 {p(D + o)}, {p(D + o)}, {p(Ee + o + 8)}",
        lambda o: f"v_rcp_f32 v{Ee + o + 4}, v{Ee + o + 4}",
        lambda o: f"v_rcp_f32 v{Ee + o + 5}, v{Ee + o + 5}",
        lambda o: f"v_pk_fma_f32 {p(D + o)}, {p(D + o + 8)}, {p(Ee + o)}, {p(D + o)}",
        lambda o: f"v_pk_fma_f32 {p(vAc[o // 2])}, {p(D + o)}, {p(Ee + o + 4)}, {p(vAc[o // 2])}",
    ]
    rest = ["    " + fn(o) for fn in seq for o in (0, 2)]
    if OPT["nocore"]: return ["    s_nop 0"] * 16, [], []
    return ex, sc, rest

PRIO_AT = {NT - 7: 1, NT - 3: 0}
def tile(t):
    a, r = t % 2, NT - t
    ex, sc, rest = core_lines(vD[a])
    Dn, Pn = vD[1 - a], vP[1 - a]
    e(f"K2_T{t}:")
    if t in PRIO_AT: prio(PRIO_AT[t])
    k = 0
    if r >= 2:
        for l in ex[:2]: e(l)
        e(f"    s_waitcnt vmcnt({8 if r >= 3 else 0}) lgkmcnt(0)")
        for q in range(4):
            if not OPT["nomfma"]: e(mfma4(Dn, Pn, q))
            e(ex[2 + q])
        for l in ex[6:9]: e(l)
        if not OPT["nomfma"]: e(mfma32(Dn))
        for l in ex[9:14]: e(l)
        k = 14
        if r >= 4 and not OPT["nogather"]: gathers(Pn, vSO)
        if not OPT["nolds"]:
            if r >= 5:
                e(f"    ds_read_b128 {vr(vSO, 4)}, v{vaS[0]} offset:{16 * (t + 4)}\n    ds_read_b128 {vr(vSO + 4, 4)}, v{vaS[1]} offset:{16 * (t + 4)}")
            if r >= 3:
                e(f"    ds_read2_b64 {vr(vAe, 4)}, v{vaE} offset0:{4 * (t + 2)} offset1:{4 * (t + 2)}")
    for l in ex[k:]: e(l)
    for l in sc: e(l)
    for l in rest: e(l)
    if r >= 2 and not OPT["noflush"]:
        for y in range(2):
            e(f"    s_bitcmp1_b32 s{sEV[y]}, {t}\n    s_cbranch_scc1 K2_EV{t}_{y}\nK2_EB{t}_{y}:")

def x_frags(xa, xb):
    e(f"""
    v_xor_b32 v{xa}, v5, v6
    v_lshlrev_b32 v{xa}, 4, v{xa}
    v_lshl_or_b32 v{xa}, v6, 8, v{xa}
    v_add_u32 v{xa}, {XL}, v{xa}
    v_xor_b32 v{xa + 1}, 64, v{xa}
    v_xor_b32 v{xa + 2}, 0x80, v{xa}
    v_xor_b32 v{xa + 3}, 0xc0, v{xa}
""")
    for s in range(4):
        for T in range(3):
            e(f"    ds_read_b128 {vr(xb(T, s), 4)}, v{xa + s} offset:{4096 * T}")

def prio(n):
    if OPT["prio"]: e(f"    s_setprio {n}")

def setup_scalars():
    e(f"""
    s_cmp_lt_u32 s20, 16
    s_cselect_b32 s22, 40, 39
    s_bfm_b64 s[78:79], s22, 0
    s_and_b32 s23, s21, 1                   ; c
    s_lshr_b32 s76, s21, 1                  ; group
    s_mov_b32 s26, {KC:#x}
    s_mov_b32 s72, {NL2E:#x}
    s_lshl_b32 s39, s23, 7
    s_add_u32 s8, s4, s39
    s_addc_u32 s9, s5, 0
    s_or_b32 s9, s9, 0x80000000
    s_mov_b32 s10, 0x10000
    s_mov_b32 s11, 0x00c00000
""")
    srd(16, N * 256)

def scan():
    e(f"""
    ds_read_b32 v{vC4}, v62 offset:{CNT}
    s_waitcnt lgkmcnt(0)
    v_add_u32 v{vQ16}, 12, v{vC4}
    v_and_b32 v{vQ16}, -16, v{vQ16}
    s_mov_b64 exec, s[78:79]
    v_max_u32 v{vQ16}, 16, v{vQ16}          ; 16*quads
    s_mov_b64 exec, -1
    s_nop 0
    v_add_u32_dpp v{vE16}, v{vQ16}, v{vQ16} row_shr:1 row_mask:0xf bank_mask:0xf bound_ctrl:1
""")
    for c in ("row_shr:2 row_mask:0xf", "row_shr:4 row_mask:0xf", "row_shr:8 row_mask:0xf", "row_bcast:15 row_mask:0xa", "row_bcast:31 row_mask:0xc"):
        e(f"    s_nop 1\n    v_add_u32_dpp v{vE16}, v{vE16}, v{vE16} {c} bank_mask:0xf")
    e(f"""
    v_sub_u32 v{vS16}, v{vE16}, v{vQ16}
    v_readlane_b32 s34, v{vE16}, 63
""")

def x_addr(xa):
    e(f"""
    v_xor_b32 v{xa}, v5, v6
    v_lshlrev_b32 v{xa}, 4, v{xa}
    v_lshl_or_b32 v{xa}, v6, 8, v{xa}
    v_add_u32 v{xa}, {XL}, v{xa}
    v_xor_b32 v{xa + 1}, 64, v{xa}
    v_xor_b32 v{xa + 2}, 0x80, v{xa}
    v_xor_b32 v{xa + 3}, 0xc0, v{xa}
""")
def x_reads(xa, xb):
    for s in range(4):
        for T in range(3):
            e(f"    ds_read_b128 {vr(xb(T, s), 4)}, v{xa + s} offset:{4096 * T}")

def kernel2():
    e(f"""
.text
.globl mpnn_edge_kernel
.p2align 8
.type mpnn_edge_kernel,@function
mpnn_edge_kernel:
    s_load_dwordx2 s[4:5], s[0:1], 64       ; ws
    s_load_dwordx2 s[12:13], s[0:1], 0      ; x
    s_load_dwordx2 s[16:17], s[0:1], 48     ; out
    s_cmp_ge_u32 s2, 256
    s_cbranch_scc1 K2_END
    v_lshrrev_b32 v2, 6, v0
    s_and_b32 s20, s2, 7
    v_readfirstlane_b32 s21, v2
    s_lshl_b32 s20, s20, 5
    s_lshr_b32 s3, s2, 3
    s_or_b32 s20, s20, s3                   ; bucket
    s_mov_b32 s6, {WSEND:#x}
    s_mov_b32 s7, 0x20000
    v_and_b32 v4, -4, v0
    v_lshlrev_b32 v4, 2, v4
    s_lshr_b32 s34, s20, 2
    s_lshl_b32 s34, s34, 10
    s_and_b32 s35, s20, 3
    s_or_b32 s34, s34, s35
    s_lshl_b32 s34, s34, 2
    s_add_u32 s34, s34, {DESC}
""")
    stamp(0, 4, 1); dbg(0); light0()
    e(f"""
    v_lshrrev_b32 v8, 4, v0
    v_xor_b32 v9, v8, v0
    s_lshl_b32 s35, s20, 8
    v_lshl_add_u32 v8, v8, 16, s35
    v_and_b32 v9, 15, v9
    s_lshl_b32 s36, s21, 10
    s_add_u32 s36, s36, {XL}
    s_mov_b32 m0, s36
""")
    srd(12, N * 256)
    e(f"""
    v_lshl_add_u32 v8, v9, 4, v8
    s_waitcnt lgkmcnt(0)
    buffer_load_dword v2, v4, s[4:7], s34 offen
    s_cmp_ge_u32 s21, 11
    s_cbranch_scc1 K2_NOX
    buffer_load_dwordx4 v8, s[12:15], 0 offen lds
K2_NOX:
    v_lshlrev_b32 v60, 4, v0
    v_mov_b64 v[48:49], 0
    v_mov_b64 v[50:51], 0
    s_cmp_ge_u32 s21, 2
    s_cbranch_scc1 K2_NOZ0
    ds_write_b128 v60, v[48:51] offset:{MISC}
K2_NOZ0:
    v_add_u32 v61, {AG}, v60
    ds_write_b128 v61, v[48:51]
    ds_write_b128 v61, v[48:51] offset:16384
    s_cmp_ge_u32 s21, 11
    s_cbranch_scc1 K2_NOZ3
    ds_write_b128 v61, v[48:51] offset:32768
K2_NOZ3:
    v_and_b32 v1, 63, v0
    v_lshrrev_b32 v3, 2, v0
    v_mul_u32_u24 v3, {RSTR}, v3
    v_and_b32 v4, 3, v0
    s_mov_b32 s24, 0
    s_mov_b32 s25, {4 * NK}
    s_mov_b32 s{sFirst}, 1
    s_waitcnt lgkmcnt(3)
K2_ROUND:
    s_mov_b32 s34, {REC}
""")
    prio(2)
    e("    s_barrier")
    stamp(13, 4, 1)
    e(f"""
    s_cmp_lt_u32 s21, 11
    s_cbranch_scc1 K2_WD1
    s_waitcnt vmcnt(0)
K2_WD1:
    s_waitcnt vmcnt(1)
""")
    stamp(1, 4, 1)
    e(f"""
    v_lshrrev_b32 v56, 16, v2               ; count
    v_and_b32 v57, 0xffff, v2               ; start
    v_subrev_u32 v56, s24, v56
    v_add3_u32 v57, v57, s24, v4
    v_min_i32 v58, s25, v56
    v_mad_u32_u24 v57, v57, 12, v3
    v_sub_u32 v58, v58, v4
""")
    for k in range(3): e(f"    v_cmp_lt_i32 {sr(sM[k], 2)}, {4 * k}, v58")
    for k in range(NK):
        if k >= 3:
            e(f"    v_cmp_lt_i32 {sr(sM[k], 2)}, {4 * k}, v58")
        e(f"    s_mov_b64 exec, {sr(sM[k], 2)}")
        if k >= 2:
            e(f"    s_cbranch_execz K2_RLD")
        e(f"    buffer_load_dwordx3 {vr(8 + 4 * k, 3)}, v57, s[4:7], s34 offen offset:{48 * k}")
    e(f"""
K2_RLD:
    s_mov_b64 exec, -1
""")
    stamp(2, 4, 1)
    prio(0)
    e(f"""
    ds_write_b128 v60, v[48:51] offset:{EA}
    v_lshlrev_b32 v7, 4, v1                 ; lane*16
    v_lshrrev_b32 v5, 4, v1                 ; g
    v_and_b32 v6, 15, v1                    ; n
    v_cmp_lt_i32 {sr(sMM, 2)}, s25, v56
    v_mov_b32 v63, 4
    v_lshlrev_b32 v62, 2, v1
    s_cmp_ge_u32 s21, 8
    s_cbranch_scc1 K2_NOSO
    v_mov_b32 v52, {PADV}
    v_mov_b32 v53, v52
    v_mov_b32 v54, v52
    v_mov_b32 v55, v52
    ds_write_b128 v60, v[52:55] offset:{SO}
K2_NOSO:
    s_cmp_eq_u32 s{sFirst}, 0
    s_cbranch_scc1 K2_SETD
    v_mov_b32 v{vNp}, 0
    v_mov_b32 v{vFO}, 0
""")
    setup_scalars()
    e(f"""
    s_cmp_lt_u32 s21, 8
    s_cbranch_scc1 K2_SETD
    s_lshl_b32 s74, s21, 12
    s_add_u32 s74, s74, {W2F - 8 * 4096}
""")
    for s in range(4):
        e(f"    buffer_load_dwordx4 {vr(92 + 4 * s, 4)}, v7, s[4:7], s74 offen offset:{1024 * s}")
    if OPT["pf"]:
        e(f"""
    s_cmp_lt_u32 s21, {16 - OPT["pf"]}
    s_cbranch_scc1 K2_NOPF
    s_lshr_b32 s34, s2, 3
    s_mul_i32 s34, s34, 80000
    s_sub_u32 s35, 15, s21
    s_lshl_b32 s35, s35, 13
    s_add_u32 s34, s34, s35
    v_lshlrev_b32 v119, 3, v7
    buffer_load_dword v119, v119, s[4:7], s34 offen
    s_branch K2_PFD
K2_NOPF:
    buffer_load_dword v119, off, s[4:7], s74
K2_PFD:
""")
    x_addr(108)
    e(f"""
    s_bfe_u32 s36, s21, 0x20001
    s_lshl_b32 s36, s36, 8
    s_lshl_b32 s37, s23, 5
    s_add_u32 s36, s36, s37
    s_add_u32 s36, s36, {QU}
    v_mul_u32_u24 v112, {RS}, v6
    v_lshl_add_u32 v112, v5, 6, v112
    v_add_u32 v112, s36, v112
    v_add_u32 v113, {16 * RS}, v112
    v_add_u32 v114, {32 * RS}, v112
    s_mov_b64 exec, {sr(sMM, 2)}
    s_cbranch_execnz K2_MORE1
K2_MOREB1:
""")
    prio(2)
    e(f"""
    s_waitcnt vmcnt({5 if OPT["pf"] else 4})
    s_branch K2_RECS
K2_SETD:
    s_mov_b64 exec, {sr(sMM, 2)}
    s_cbranch_execnz K2_MORE2
K2_MOREB2:
""")
    prio(2)
    e("    s_waitcnt vmcnt(0)\nK2_RECS:")
    stamp(3, 4, 1)
    for k in range(NK):
        e(f"    s_mov_b64 exec, {sr(sM[k], 2)}")
        if k >= 2: e("    s_cbranch_execz K2_HISTD")
        e(f"""
    v_lshrrev_b32 v{40 + k}, 24, v{10 + 4 * k}
    ds_add_rtn_u32 v{11 + 4 * k}, v{40 + k}, v63 offset:{CNT}
    v_and_b32 v{10 + 4 * k}, 0x3ffffff, v{10 + 4 * k}
""")
    e(f"""
K2_HISTD:
    s_mov_b64 exec, -1
    s_cmp_ge_u32 s21, 2
    s_cbranch_scc1 K2_NOW3
    s_lshl_b32 s34, s21, 10
    s_add_u32 s35, s34, {W3L}
    s_add_u32 s34, s34, {W3F}
    s_mov_b32 m0, s35
    s_nop 0
    buffer_load_dwordx4 v7, s[4:7], s34 offen lds
K2_NOW3:
    s_waitcnt lgkmcnt(0)
    s_barrier
""")
    stamp(4, 4, 1); dbg(1)
    scan()
    for k in range(NK):
        if k == 3: e(f"    s_cmp_eq_u64 {sr(sM[2], 2)}, 0\n    s_cbranch_scc1 K2_BPD")
        if k >= 3: e(f"    s_cmp_eq_u64 {sr(sM[k], 2)}, 0\n    s_cbranch_scc1 K2_BPD")
        e(f"    ds_bpermute_b32 v{40 + k}, v{40 + k}, v{vS16}")
    e(f"""
K2_BPD:
    s_cmp_gt_u32 s34, {S16MAX}
    s_cbranch_scc1 K2_REDO
    s_add_u32 s34, s34, 48
    s_lshr_b32 s35, s34, 9
    s_bfe_u32 s34, s34, 0x30006
    s_mul_i32 s37, s76, s35
    s_waitcnt lgkmcnt(0)
""")
    for k in range(NK):
        e(f"    s_mov_b64 exec, {sr(sM[k], 2)}")
        if k >= 2: e("    s_cbranch_execz K2_GEO")
        e(f"""
    v_add_u32 v{40 + k}, v{40 + k}, v{11 + 4 * k}
    v_add_u32 v{11 + 4 * k}, v{40 + k}, v{40 + k}
    ds_write_b32 v{40 + k}, v{10 + 4 * k} offset:{SO}
    ds_write_b64 v{11 + 4 * k}, {vr(8 + 4 * k, 2)} offset:{EA}
""")
    e(f"""
K2_GEO:
    s_cmp_lg_u32 s21, 0
    s_cbranch_scc1 K2_NOFL
    s_mov_b64 exec, s[78:79]
    v_lshrrev_b32 v46, 4, v{vE16}
    ds_write_b8 v46, v63 offset:{FL - 1}
K2_NOFL:
    s_min_u32 s38, s76, s34
    s_add_u32 s37, s37, s38
    s_lshl_b32 s60, s37, 6                  ; stream (0,X)
    s_cmp_lt_u32 s76, s34
    s_addc_u32 s35, s35, 0
    s_lshl_b32 s77, s35, 4
    s_add_u32 s61, s60, s77
    s_add_u32 s62, s61, s77
    s_mov_b64 exec, -1
    v_mov_b32 v{vaS[0]}, s60
    s_mov_b32 exec_lo, 0
    v_mov_b32 v{vaS[0]}, s62
    s_mov_b32 exec_lo, -1
    v_add_u32 v{vaS[1]}, s77, v{vaS[0]}
    s_lshr_b32 s36, s21, 3
    s_and_b32 s36, s36, s{sFirst}
""")
    e(f"""
    s_waitcnt vmcnt({1 if OPT['pf'] else 0}) lgkmcnt(0)
    s_barrier
""")
    stamp(5, 4, 1); dbg(2)
    e("    s_cbranch_scc0 K2_FG")
    prio(3)
    e(f"""
""")
    xbq = lambda T, s: 16 + 16 * T + 4 * s
    x_reads(108, xbq)
    for s in range(4):
        for T in range(3):
            e(f"    s_waitcnt lgkmcnt({11 - 3 * s - T})")
            c = "0" if s == 0 else vr(64 + 4 * T, 4)
            e(f"    v_mfma_f32_16x16x32_bf16 {vr(64 + 4 * T, 4)}, {vr(92 + 4 * s, 4)}, {vr(xbq(T, s), 4)}, {c}")
    e("    s_nop 3")
    for T in range(3):
        if T == 2:
            e(f"    s_mov_b32 exec_lo, {M9}\n    s_mov_b32 exec_hi, {M9}")
        for h in range(2):
            r = 64 + 4 * T + 2 * h
            e(f"    v_pk_mul_f32 {vr(r, 2)}, {vr(r, 2)}, s[72:73] op_sel_hi:[1,0]")
        e(f"    ds_write2_b64 v{112 + T}, {vr(64 + 4 * T, 2)}, {vr(64 + 4 * T + 2, 2)} offset0:0 offset1:2")
    e("    s_mov_b64 exec, -1\n    s_waitcnt lgkmcnt(0)\n    s_barrier")
    for r in range(12):
        e(f"    v_exp_f32 v{92 + r}, v{64 + r}")
    for r in range(0, 12, 2):
        e(f"    v_pk_fma_f32 {vr(92 + r, 2)}, {vr(92 + r, 2)}, {KCOP}")
    for r in range(12):
        e(f"    v_rcp_f32 v{92 + r}, v{92 + r}")
    for T in range(3):
        if T == 2:
            e(f"    s_mov_b32 exec_lo, {M9}\n    s_mov_b32 exec_hi, {M9}")
        for r in (4 * T, 4 * T + 2):
            e(f"    v_pk_mul_f32 {vr(92 + r, 2)}, {vr(92 + r, 2)}, {vr(64 + r, 2)}")
        e(f"    ds_write2_b64 v{112 + T}, {vr(92 + 4 * T, 2)}, {vr(92 + 4 * T + 2, 2)} offset0:1 offset1:3")
    e(f"""
    s_mov_b64 exec, -1
K2_FG:
    ds_read_b128 {vr(vSO, 4)}, v{vaS[0]} offset:{SO}
    ds_read_b128 {vr(vSO + 4, 4)}, v{vaS[1]} offset:{SO}
    ds_read_b128 {vr(vE, 4)}, v{vaS[0]} offset:{SO + 16}
    ds_read_b128 {vr(vE + 4, 4)}, v{vaS[1]} offset:{SO + 16}
    s_bitcmp1_b32 s35, 0
    s_cbranch_scc1 K2_FG1
""")
    for a in range(2):
        if a: e("K2_FG1:")
        e("    s_waitcnt lgkmcnt(2)")
        gathers(vP[a], vSO)
        e("    s_waitcnt lgkmcnt(0)")
        if OPT["g1late"]: e(f"    s_mov_b32 s75, {a}")
        else: gathers(vP[1 - a], vE)
        if not a: e("    s_branch K2_FGD")
    e("K2_FGD:")
    stamp(11, 4, 1)
    e(f"""
    v_and_b32 v44, 31, v1
    v_lshrrev_b32 v46, 4, v{vaS[0]}
    v_add_u32 v46, v46, v44
    v_add_u32 v47, s35, v46
    ds_read_u8 v46, v46 offset:{FL}
    ds_read_u8 v47, v47 offset:{FL}
    s_lshl_b32 s36, s23, 10
    v_add_u32 v45, s36, v7
    ds_read_b128 {vr(vBw, 4)}, v45 offset:{W3L}
    ds_read_b128 {vr(vSO, 4)}, v{vaS[0]} offset:{SO + 32}
    ds_read_b128 {vr(vSO + 4, 4)}, v{vaS[1]} offset:{SO + 32}
    s_add_u32 s63, s62, s77
    s_lshl_b32 s36, s23, 9
    s_add_u32 s36, s36, {QU}
    v_lshl_add_u32 v44, v44, 4, s36
""")
    for k in range(4):
        e(f"    v_cmp_ge_u32 vcc, s{60 + k}, v{vE16}\n    s_bcnt1_i32_b64 s{64 + k}, vcc\n    s_min_u32 s{64 + k}, s{64 + k}, s22\n    s_mulk_i32 s{64 + k}, {RS}")
    e(f"""
    v_sub_u32 v{vQ16}, v{vQ16}, v{vC4}
    v_add_u32 v{vNp}, v{vNp}, v{vQ16}
    v_add_u32 v{vaN[0]}, s64, v44
    v_add_u32 v{vaN[1]}, s65, v44
    v_mov_b32 v{vaE}, {ZR}
    s_mov_b32 exec_lo, 0
    v_add_u32 v{vaN[0]}, s66, v44
    v_add_u32 v{vaN[1]}, s67, v44
    s_mov_b32 exec_lo, 0x55555555
    s_mov_b32 exec_hi, 0xaaaaaaaa
    v_bfe_u32 v45, v1, 1, 2
    v_mul_u32_u24 v45, s77, v45
    s_add_u32 s36, s60, {EA // 2}
    v_add_u32 v45, s36, v45
    v_and_b32 v{vaE}, 0x18, v1
    v_lshl_add_u32 v{vaE}, v45, 1, v{vaE}
    s_mov_b64 exec, -1
    ds_read2_b64 {vr(vAe, 4)}, v{vaE} offset0:0 offset1:0
    s_movk_i32 s36, 0x3f80
    s_mov_b32 s37, 0
    v_and_b32 v45, 0x30, v7
    v_lshlrev_b64 {vr(vI, 2)}, v45, s[36:37]
    v_mov_b64 {vr(vAc[0], 2)}, 0
    v_mov_b64 {vr(vAc[1], 2)}, 0
    s_sub_u32 s34, {NT}, s35
    s_lshl_b32 s38, s34, 4
    s_sub_u32 s38, {SO}, s38
    s_lshl_b32 s39, s34, 5
    s_waitcnt lgkmcnt(4)
    v_cmp_ne_u32 {sr(sFM[0], 2)}, 0, v46
    v_cmp_ne_u32 {sr(sFM[1], 2)}, 0, v47
    s_lshr_b32 s36, s21, 3
    s_and_b32 s36, s36, s{sFirst}
    s_cbranch_scc1 K2_NOB
    s_barrier
K2_NOB:
    ds_read_b64 {vr(vQ, 2)}, v{vaN[0]}
    ds_read_b64 {vr(vQ + 2, 2)}, v{vaN[1]}
    s_mov_b32 s{sFirst}, 0
""")
    for y in range(2):
        e(f"""
    s_lshl_b32 s{sFM[y]}, s{sFM[y]}, s34
    s_lshl_b32 s{sFM[y] + 1}, s{sFM[y] + 1}, s34
    s_or_b32 s36, s{sFM[y]}, s{sFM[y] + 1}
    s_lshr_b32 s37, s36, 1
    s_or_b32 s{sEV[y]}, s36, s37
""")
    stamp(12, 4, 1)
    e(f"""
    s_or_b32 s34, s34, 0x10000
    s_bitcmp1_b32 s35, 0
    s_waitcnt vmcnt(8) lgkmcnt(0)
""")
    stamp(6, 4, 1); dbg(3)
    e("    s_cbranch_scc1 K2_PA1")
    for a in range(2):
        if a: e("K2_PA1:")
        for q in range(4): e(mfma4(vD[a], vP[a], q))
        e(f"    s_cmp_lt_u32 s35, 3\n    s_cbranch_scc1 K2_NGP{a}")
        gathers(vP[a], vSO)
        e(f"K2_NGP{a}:\n    s_nop 1\n{mfma32(vD[a])}")
        if not a: e("    s_branch K2_PAD")
    e(f"""
K2_PAD:
    ds_read_b128 {vr(vSO, 4)}, v{vaS[0]} offset:{SO + 48}
    ds_read_b128 {vr(vSO + 4, 4)}, v{vaS[1]} offset:{SO + 48}
    ds_read2_b64 {vr(vAe, 4)}, v{vaE} offset0:4 offset1:4
""")
    for y in range(2):
        e(f"""
    s_bfe_i32 exec_lo, s{sFM[y]}, s34
    s_bfe_i32 exec_hi, s{sFM[y] + 1}, s34
    ds_read_b64 {vr(vQ + 2 * y, 2)}, v{vaN[y]} offset:{RS}
""")
    e(f"""
    s_mov_b32 exec_lo, 0x55555555
    s_mov_b32 exec_hi, 0xaaaaaaaa
    v_subrev_u32 v{vaE}, s39, v{vaE}
    s_mov_b64 exec, -1
    v_add_u32 v{vaS[0]}, s38, v{vaS[0]}
    v_add_u32 v{vaS[1]}, s38, v{vaS[1]}
""")
    prio(2)
    order = [10, 11, 9, 12, 8, 13, 7, 14, 6, 15, 5, 4, 3, 2, 1]
    for Lv in order:
        e(f"    s_cmp_eq_u32 s35, {Lv}\n    s_cbranch_scc1 K2_T{NT - Lv}")
    e("K2_LOOP:")
    for t in range(NT):
        tile(t)
    e("K2_LDONE:")
    xbu = lambda T, s: 32 + 16 * T + 4 * s
    e(f"""
    s_cmp_ge_u32 s21, 8
    s_cbranch_scc1 K2_LD2
    s_lshl_b32 s36, s21, 12
    s_add_u32 s36, s36, {WUT}
    s_add_u32 s37, s36, {WUB - WUT}
""")
    for s in range(4):
        e(f"    buffer_load_dwordx4 {vr(16 + 4 * s, 4)}, v7, s[4:7], s36 offen offset:{1024 * s}")
    for s in range(4):
        e(f"    buffer_load_dwordx4 {vr(92 + 4 * s, 4)}, v7, s[4:7], s37 offen offset:{1024 * s}")
    e("K2_LD2:")
    for y in range(2):
        flush_adds(y)
    e(f"""
    v_mov_b32 v89, {MORE}
    ds_read_b32 v89, v89
""")
    stamp(7, 4, 1); dbg(4)
    e(f"""
    s_cmp_ge_u32 s21, 8
    s_cbranch_scc1 K2_NOU
""")
    x_frags(84, xbu)
    e("    s_waitcnt vmcnt(4)")
    for s in range(4):
        for T in range(3):
            e(f"    s_waitcnt lgkmcnt({11 - 3 * s - T})")
            c = "0" if s == 0 else vr(vU + 4 * T, 4)
            e(f"    v_mfma_f32_16x16x32_bf16 {vr(vU + 4 * T, 4)}, {vr(16 + 4 * s, 4)}, {vr(xbu(T, s), 4)}, {c}")
    e(f"""
    v_mul_u32_u24 v{vFR}, {RB}, v6
    v_lshl_add_u32 v{vFR}, v5, 4, v{vFR}
    v_add_u32 v{vFR}, {AGB}, v{vFR}
    v_lshlrev_b32 v{vFO}, 16, v6
    v_lshl_or_b32 v{vFO}, v5, 3, v{vFO}
    s_lshl_b32 s36, s20, 8
    s_lshl_b32 s37, s21, 5
    s_add_u32 s36, s36, s37
    v_add_u32 v{vFO}, s36, v{vFO}
    s_cmp_lt_u32 s21, 6
    s_cbranch_scc1 K2_NOCA
K2_NOU:
    v_lshrrev_b32 v{vCA}, 4, v0
    v_subrev_u32 v{vCA}, 24, v{vCA}
    v_cvt_f32_u32 v84, v{vNp}
    v_lshlrev_b32 v85, 2, v{vCA}
    v_mul_f32 v84, 0xbe800000, v84
    v_mul_u32_u24 v{vCW}, {RB}, v{vCA}
    v_mul_u32_u24 v{vCA}, {RS}, v{vCA}
    ds_bpermute_b32 v{vCN}, v85, v84
    v_lshl_add_u32 v{vCW}, v6, 4, v{vCW}
    v_lshl_add_u32 v{vCA}, v6, 4, v{vCA}
    v_add_u32 v{vCW}, {AGB}, v{vCW}
    v_add_u32 v{vCA}, {QU}, v{vCA}
K2_NOCA:
    s_waitcnt vmcnt(0) lgkmcnt(0)
    v_readfirstlane_b32 s{sMoreV}, v89
    s_barrier
""")
    stamp(8, 4, 1)
    e(f"""
    s_cmp_lg_u32 s{sMoreV}, 0
    s_cbranch_scc1 K2_NEXT
    s_cmp_lt_u32 s21, 6
    s_cbranch_scc1 K2_NOCV
""")
    for k in range(4):
        e(f"    ds_read_b128 {vr(16 + 4 * k, 4)}, v{vCA} offset:{AG - QU + 256 * k}\n    ds_read_b64 {vr(8 + 2 * k, 2)}, v{vCA} offset:{256 * k + 8}")
    for k in range(4):
        e(f"    s_waitcnt lgkmcnt({6 - 2 * k})")
        e(f"    v_cvt_f32_f64 v{32 + 2 * k}, {vr(16 + 4 * k, 2)}\n    v_cvt_f32_f64 v{33 + 2 * k}, {vr(18 + 4 * k, 2)}")
        e(f"    v_pk_fma_f32 {vr(32 + 2 * k, 2)}, {vr(8 + 2 * k, 2)}, {vr(vCN, 2)}, {vr(32 + 2 * k, 2)} op_sel_hi:[1,0,1]")
        e(f"    v_cvt_pk_bf16_f32 v{40 + k}, v{32 + 2 * k}, v{33 + 2 * k}")
    e(f"""
    ds_write_b128 v{vCW}, v[40:43]
    s_waitcnt lgkmcnt(0)
K2_NOCV:
    s_barrier
    s_cmp_ge_u32 s21, 8
    s_cbranch_scc1 K2_FIN
""")
    xbf = lambda T, s: 16 + 16 * T + 4 * s
    for s in range(4):
        for T in range(3):
            e(f"    ds_read_b128 {vr(xbf(T, s), 4)}, v{vFR} offset:{16 * RB * T + 64 * s}")
    for s in range(4):
        for T in range(3):
            e(f"    s_waitcnt lgkmcnt({11 - 3 * s - T})")
            e(f"    v_mfma_f32_16x16x32_bf16 {vr(vU + 4 * T, 4)}, {vr(92 + 4 * s, 4)}, {vr(xbf(T, s), 4)}, {vr(vU + 4 * T, 4)}")
    e(f"    v_add_u32 v88, 0x100000, v{vFO}\n    v_add_u32 v89, 0x200000, v{vFO}\n    s_nop 1")
    for m in range(6):
        if m == 2: e("    s_nop 0")
        e(f"    v_pk_mul_f32 {vr(16 + 2 * m, 2)}, {vr(vU + 2 * m, 2)}, s[72:73] op_sel_hi:[1,0]")
    for m in range(12):
        e(f"    v_exp_f32 v{16 + m}, v{16 + m}")
    for m in range(6):
        e(f"    v_pk_add_f32 {vr(16 + 2 * m, 2)}, {vr(16 + 2 * m, 2)}, 1.0 op_sel_hi:[1,0]")
    for T in range(3):
        for m in range(4 * T, 4 * T + 4):
            e(f"    v_rcp_f32 v{16 + m}, v{16 + m}")
        e("    s_nop 0")
        for m in (2 * T, 2 * T + 1):
            e(f"    v_pk_mul_f32 {vr(16 + 2 * m, 2)}, {vr(16 + 2 * m, 2)}, {vr(vU + 2 * m, 2)}")
        for m in (2 * T, 2 * T + 1):
            e(f"    v_cvt_pk_bf16_f32 v{32 + m}, v{16 + 2 * m}, v{17 + 2 * m}")
        e(f"    buffer_store_dwordx2 {vr(32 + 2 * T, 2)}, v{(vFO, 88, 89)[T]}, s[16:19], 0 offen")
    e("K2_FIN:")
    dbg_out(1, 7, 6, 6, 'DBGC'); light1(4, 1)
    if OPT["stamps"]:
        stamp(9, 4, 1); e("    s_waitcnt vmcnt(0)"); stamp(10, 4, 1); stamp_out(4, 1)
    e("K2_END:\n    s_endpgm")
    if not OPT["noflush"]:
        for t in range(NT - 1):
            for y in range(2):
                event_block(t, y)
    e(f"""
K2_TAILBLOCKS:
K2_MORE1:
    v_mov_b32 v61, {MORE}
    ds_write_b32 v61, v63
    s_branch K2_MOREB1
K2_MORE2:
    v_mov_b32 v61, {MORE}
    ds_write_b32 v61, v63
    s_branch K2_MOREB2
K2_NEXT:
    s_add_u32 s24, s24, s25
    s_branch K2_AGAIN
K2_REDO:
    s_mov_b32 s25, 4
    s_waitcnt vmcnt(0) lgkmcnt(0)
    s_barrier
K2_AGAIN:
    v_lshlrev_b32 v60, 4, v0
    v_mov_b64 v[48:49], 0
    v_mov_b64 v[50:51], 0
    s_cmp_ge_u32 s21, 2
    s_cbranch_scc1 K2_ROUND
    ds_write_b128 v60, v[48:51] offset:{MISC}
    s_waitcnt lgkmcnt(0)
    s_branch K2_ROUND
""")

def desc(name, vg, sg):
    e(f"""
.p2align 6
.amdhsa_kernel {name}
  .amdhsa_next_free_vgpr {vg}
  .amdhsa_next_free_sgpr {sg}
  .amdhsa_accum_offset {vg}
  .amdhsa_group_segment_fixed_size 0
  .amdhsa_kernarg_size 72
  .amdhsa_user_sgpr_count 2
  .amdhsa_user_sgpr_kernarg_segment_ptr 1
  .amdhsa_system_sgpr_workgroup_id_x 1
.end_amdhsa_kernel
""")

e(f"""
; @launch kernel=mpnn_bin_kernel grid=(512,1,1) block=(768,1,1) lds={K1_LDS}
; @launch kernel=mpnn_edge_kernel grid=(256,1,1) block=(1024,1,1) lds={K2_LDS}
.amdgcn_target "amdgcn-amd-amdhsa--gfx950"
""")
kernel1()
kernel2()
e('.section .rodata,"a"')
desc("mpnn_bin_kernel", 128 if OPT["stamps"] else 80, 96)
desc("mpnn_edge_kernel", 128, 96)
FL_ = {0: "", 1: " sc1", 2: " nt", 3: " sc0 sc1", 4: " sc1 nt", 5: " sc0"}
k2at = next(i for i, l in enumerate(L) if l.startswith("mpnn_edge_kernel:"))
for i, l in enumerate(L):
    c = l.split(";")
    fl = None
    if l.strip().startswith("buffer_store") and " off," not in l:
        fl = FL_[OPT["st1"] if i < k2at else OPT["st2"]]
    elif l.strip().startswith("buffer_load"):
        if i < k2at:
            if any(x in l for x in ("s[24:27]", "s[8:11], s22", "s[32:35]")): fl = " nt" * OPT["nte"]
            elif "s[4:7]" in l: fl = " nt" * OPT["ntx"]
            elif "s[12:15]" in l and "lds" in l: fl = " nt" * OPT["ntw"]
        else:
            if "s[12:15]" in l: fl = " nt" * OPT["ntx2"]
            elif "dwordx3" in l: fl = " nt" * OPT["ntr"]
    if fl:
        body = c[0].rstrip()
        body = body[:-4] + fl + " lds" if body.endswith(" lds") else body + fl
        L[i] = body + ("   ;" + c[1] if len(c) > 1 else "")
open(sys.argv[1], "w").write("\n".join(L) + "\n")
```

```python
import sys, struct, math

def f2u(x): return struct.unpack("<I", struct.pack("<f", x))[0]

OPT = dict(dst1=0, fin=1, wpf=0, cpf=0, ps=2, bdl=1, rb=288, st1=0, st2=0, nte=0, ntx=0, ntw=0, ntx2=0, ntr=0, light=0, g1late=0, pf=0, gpos=0, nom4=0, nom32=0, mpos=0, nochk=0, prio1=0, dbg=0, safe=0, stamps=0, prio=1, nogather=0, nocore=0, nolds=0, nomfma=0, noflush=0)
for a in sys.argv[2:]:
    k, v = a.split("="); OPT[k] = int(v)

N, E = 10000, 320000
NB = 256
EPW = 1250
PT    = 0
DESC  = 0x280000
REC   = 0x2C0000
RSTR  = 15488
W2F   = 0x690000
WUT   = W2F + 0x8000
WUB   = WUT + 0x8000
W3F   = WUB + 0x8000
STAMP = W3F + 0x800
WSEND = STAMP + (0x100000 if OPT["stamps"] or OPT["light"] else 0)
NL2E = f2u(-1.4426950408889634)
KC   = f2u(1.0 / (2.0 ** 31 * math.log(2.0)))
NSC  = f2u(-2.0 ** -31)

L = []
def e(s=""):
    for ln in s.strip("\n").split("\n"):
        L.append(ln)
def vr(a, n): return f"v[{a}:{a + n - 1}]" if n > 1 else f"v{a}"
def sr(a, n): return f"s[{a}:{a + n - 1}]" if n > 1 else f"s{a}"

def srd(s, nrec, w3=0x20000):
    e(f"    s_mov_b32 s{s + 2}, {nrec:#x}\n    s_mov_b32 s{s + 3}, {w3:#x}")

def scan64(v):
    for c in ("row_shr:1 row_mask:0xf", "row_shr:2 row_mask:0xf", "row_shr:4 row_mask:0xf", "row_shr:8 row_mask:0xf",
              "row_bcast:15 row_mask:0xa", "row_bcast:31 row_mask:0xc"):
        e(f"    s_nop 1\n    v_add_u32_dpp v{v}, v{v}, v{v} {c} bank_mask:0xf")

NST = 16
def light0():
    if OPT["light"]: e("    s_memrealtime s[80:81]")
def light1(srd_s, kern):
    if not OPT["light"]: return
    e(f"""
    s_waitcnt vmcnt(0)
    s_memrealtime s[82:83]
    s_mov_b32 s{srd_s + 2}, {WSEND:#x}
    s_lshl_b32 s90, s2, 4
    s_add_u32 s90, s90, s21
    s_lshl_b32 s90, s90, 3
    s_add_u32 s90, s90, {STAMP + kern * 0x80000}
    s_mov_b64 exec, 1
    s_waitcnt lgkmcnt(0)
    v_mov_b32 v2, s80
    v_mov_b32 v3, s82
    buffer_store_dwordx2 v[2:3], off, s[{srd_s}:{srd_s + 3}], s90
""")
def dbg(slot):
    if not OPT["dbg"]: return
    e(f"    s_memrealtime s[{80 + 2 * slot}:{81 + 2 * slot}]")
def dbg_out(kern, wv, base, n, lab):
    if not OPT["dbg"]: return
    e(f"""
    s_waitcnt vmcnt(0)
    s_memrealtime s[{80 + 2 * (n - 1)}:{81 + 2 * (n - 1)}]
    s_cmp_lg_u32 s2, 200
    s_cbranch_scc1 {lab}
    s_cmp_lg_u32 s21, {wv}
    s_cbranch_scc1 {lab}
    s_load_dwordx2 s[92:93], s[0:1], 56
    s_waitcnt lgkmcnt(0)
    s_add_u32 s92, s92, {512 * (1 - kern)}
    s_addc_u32 s93, s93, 0
    s_mov_b32 s94, 256
    s_mov_b32 s95, 0x20000
    s_mov_b64 exec, 1
""")
    for i in range(n):
        e(f"    v_mov_b32 v127, s{80 + 2 * i}\n    buffer_store_dword v127, off, s[92:95], 0 offset:{4 * (base + i)}\n    s_waitcnt vmcnt(0)")
    e(f"{lab}:")
SMAP = {}
def stamp(i, srd_s, kern):
    if not OPT["stamps"]: return
    sel = [0, 1, 2, 3, 4, 5] if kern == 0 else {1: [0, 1, 3, 4, 5, 11, 6, 7, 8, 9, 10], 2: [0, 2, 4, 5, 12, 6, 7, 8, 13, 9, 10]}[OPT["stamps"]]
    if i not in sel: return
    r = 80 + 2 * sel.index(i)
    SMAP[(kern, i)] = r
    if i == 0: e("    s_memrealtime vcc\n    s_waitcnt lgkmcnt(0)\n    v_writelane_b32 v127, vcc_lo, 14")
    e(f"    s_memtime s[{r}:{r + 1}]")
def stamp_out(srd_s, kern):
    if not OPT["stamps"]: return
    e("    s_memrealtime vcc\n    s_waitcnt lgkmcnt(0)\n    v_writelane_b32 v127, vcc_lo, 15")
    for (k, i), r in SMAP.items():
        if k == kern: e(f"    v_writelane_b32 v127, s{r}, {i}")
    e(f"""
    s_mov_b64 exec, 0xffff
    s_lshl_b32 s3, s2, 4
    s_add_u32 s3, s3, s21
    s_lshl_b32 s3, s3, 6
    s_add_u32 s3, s3, {STAMP + kern * 0x80000}
    v_mbcnt_lo_u32_b32 v125, -1, 0
    v_lshlrev_b32 v125, 2, v125
    buffer_store_dword v127, v125, s[{srd_s}:{srd_s + 3}], s3 offen
    s_mov_b64 exec, -1
""")

K1_CNT, K1_ST, K1_STG = 0, 1024, 2048
K1_WL, K1_XL = 0, 32768
K1_LDS = 66 * 1024
def kernel1():
    e("""
.text
.globl mpnn_bin_kernel
.p2align 8
.type mpnn_bin_kernel,@function
mpnn_bin_kernel:
    s_load_dwordx4 s[8:11], s[0:1], 16
    s_load_dwordx4 s[4:7], s[0:1], 0        ; x, e_attr
    s_load_dwordx4 s[12:15], s[0:1], 32
    s_load_dwordx2 s[16:17], s[0:1], 64     ; ws
    s_cmp_ge_u32 s2, 512
    s_cbranch_scc1 K1_END
    v_lshrrev_b32 v2, 6, v0
    v_and_b32 v1, 63, v0
    v_readfirstlane_b32 s21, v2
    s_and_b32 s20, s2, 7
    s_lshl_b32 s20, s20, 5
    s_lshr_b32 s3, s2, 4
    s_or_b32 s20, s20, s3
    s_lshr_b32 s3, s2, 5
    s_xor_b32 s3, s3, s2
""")
    stamp(0, 16, 0); light0()
    dbg(0)
    e("""
    s_bitcmp1_b32 s3, 3
    s_cbranch_scc1 K1_GEMM
    ; ---------------- binning workgroup (waves 0..9) ----------------
    s_cmp_ge_u32 s21, 10
    s_cbranch_scc1 K1_SPARE
    s_mul_i32 s22, s20, 5000                ; byte offset of this workgroup's src/dst slice
    s_lshl_b32 s23, s22, 1                  ; e_attr slice
    v_lshlrev_b32 v3, 3, v0
    v_lshlrev_b32 v4, 4, v0
    v_cmp_gt_u32 s[44:45], 625, v0
""".replace("v_cmp_gt_u32 s[44:45], 625, v0", "v_cmp_gt_u32 vcc, 625, v0"))
    e("    s_mov_b32 s26, %#x\n    s_mov_b32 s27, 0x20000\n    s_mov_b64 s[44:45], vcc\n    s_mov_b64 exec, vcc\n    s_waitcnt lgkmcnt(0)\n    s_mov_b32 s24, s10\n    s_mov_b32 s25, s11" % (E * 4))
    e("    buffer_load_dwordx2 v[6:7], v3, s[24:27], s22 offen      ; dst")
    srd(8, E * 4)
    e("    s_mov_b32 s32, s6\n    s_mov_b32 s33, s7"); srd(32, E * 8)
    def se():
        e("""
    buffer_load_dwordx2 v[8:9], v3, s[8:11], s22 offen       ; src
    buffer_load_dwordx4 v[10:13], v4, s[32:35], s23 offen
""")
    if not OPT["dst1"]: se()
    e(f"""
    s_mov_b64 exec, -1
    v_mov_b64 v[20:21], 0
    v_mov_b64 v[22:23], 0
    s_cmp_lg_u32 s21, 0
    s_cbranch_scc1 K1_NOZ
    ds_write_b128 v4, v[20:23] offset:{K1_CNT}
K1_NOZ:
    s_waitcnt lgkmcnt(0)
    s_barrier
    s_mov_b64 exec, s[44:45]
""")
    if OPT["dst1"]: se()
    e("    s_mov_b64 exec, -1\n    v_mov_b32 v24, 1\n    v_lshlrev_b32 v5, 4, v1")
    srd(16, WSEND)
    e(f"""
    s_mul_i32 s38, s20, {RSTR}
    s_add_u32 s38, s38, {REC}
    s_add_u32 s39, s38, 10240
    s_mov_b64 exec, s[44:45]
    s_waitcnt vmcnt(2)
""")
    stamp(1, 16, 0)
    dbg(1)
    e(f"""
    v_lshlrev_b32 v14, 2, v6
    v_lshlrev_b32 v15, 2, v7
    v_and_b32 v14, 0x3fc, v14
    v_and_b32 v15, 0x3fc, v15
    ds_add_rtn_u32 v16, v14, v24 offset:{K1_CNT}
    ds_add_rtn_u32 v17, v15, v24 offset:{K1_CNT}
    v_lshrrev_b32 v6, 8, v6
    v_lshrrev_b32 v7, 8, v7
    v_lshlrev_b32 v6, 26, v6
    v_lshlrev_b32 v7, 26, v7
    s_mov_b64 exec, -1
    s_waitcnt lgkmcnt(0)
    s_barrier
""")
    stamp(2, 16, 0)
    e(f"""
    ds_read_b128 v[20:23], v5 offset:{K1_CNT}
    s_waitcnt lgkmcnt(0)
    v_add_u32 v25, v20, v21
    v_add_u32 v26, v25, v22
    v_add_u32 v27, v26, v23
    s_nop 1
    v_add_u32_dpp v28, v27, v27 row_shr:1 row_mask:0xf bank_mask:0xf bound_ctrl:1
""")
    for c in ("row_shr:2 row_mask:0xf", "row_shr:4 row_mask:0xf", "row_shr:8 row_mask:0xf", "row_bcast:15 row_mask:0xa", "row_bcast:31 row_mask:0xc"):
        e(f"    s_nop 1\n    v_add_u32_dpp v28, v28, v28 {c} bank_mask:0xf")
    e(f"""
    v_sub_u32 v28, v28, v27
    v_add_u32 v29, v28, v20
    v_add_u32 v30, v28, v25
    v_add_u32 v31, v28, v26
    ds_write_b128 v5, v[28:31] offset:{K1_ST}
    ds_read_b32 v18, v14 offset:{K1_ST}
    ds_read_b32 v19, v15 offset:{K1_ST}
    s_waitcnt vmcnt(1)
    v_lshl_or_b32 v8, v8, 3, v6
    v_lshl_or_b32 v9, v9, 3, v7
    s_mov_b64 exec, s[44:45]
    s_waitcnt lgkmcnt(0)
    v_add_u32 v18, v18, v16
    v_add_u32 v19, v19, v17
    v_mul_u32_u24 v18, 12, v18
    v_mul_u32_u24 v19, 12, v19
    ds_write_b32 v18, v8 offset:{K1_STG + 8}
    ds_write_b32 v19, v9 offset:{K1_STG + 8}
    v_add_u32 v18, {K1_STG}, v18
    v_add_u32 v19, {K1_STG}, v19
    s_waitcnt vmcnt(0)
    ds_write2_b32 v18, v10, v11 offset0:0 offset1:1
    ds_write2_b32 v19, v12, v13 offset0:0 offset1:1
    s_mov_b64 exec, -1
    s_cmp_lg_u32 s21, 9
    s_cbranch_scc1 K1_NOD
    v_lshl_or_b32 v32, v20, 16, v28
    v_lshl_or_b32 v33, v21, 16, v29
    v_lshl_or_b32 v34, v22, 16, v30
    v_lshl_or_b32 v35, v23, 16, v31
    s_lshl_b32 s36, s20, 4
    s_add_u32 s36, s36, {DESC}
    v_lshlrev_b32 v36, 12, v1
    buffer_store_dwordx4 v[32:35], v36, s[16:19], s36 offen
K1_NOD:
    s_waitcnt lgkmcnt(0)
    s_barrier
""")
    stamp(3, 16, 0)
    e(f"""
    ds_read_b128 v[20:23], v4 offset:{K1_STG}
    s_cmp_ge_u32 s21, 5
    s_cbranch_scc1 K1_C1
    ds_read_b128 v[24:27], v4 offset:{K1_STG + 10240}
    s_waitcnt lgkmcnt(0)
    buffer_store_dwordx4 v[24:27], v4, s[16:19], s39 offen
K1_C1:
    s_waitcnt lgkmcnt(0)
    buffer_store_dwordx4 v[20:23], v4, s[16:19], s38 offen
""")
    light1(16, 0)
    if OPT["stamps"]:
        stamp(4, 16, 0); e("    s_waitcnt vmcnt(0)"); stamp(5, 16, 0); stamp_out(16, 0)
    e(f"""
    s_endpgm
K1_GEMM:
    s_lshr_b32 s20, s2, 4
    s_lshl_b32 s20, s20, 3
    s_and_b32 s3, s2, 7
    s_or_b32 s20, s20, s3
    v_lshrrev_b32 v2, 4, v1                 ; g
    v_and_b32 v3, 15, v1                    ; n / i
    s_cmp_ge_u32 s20, 209
    s_cbranch_scc1 K1_JOBS
    ; x -> LDS: rows 4w + g, chunk (l%16) ^ (row & 15)
    v_lshrrev_b32 v5, 4, v0
    v_xor_b32 v6, v5, v0
    v_and_b32 v6, 15, v6
    s_mul_i32 s25, s20, 48
    v_add_u32 v5, s25, v5
    v_lshlrev_b32 v5, 8, v5
    v_lshl_or_b32 v5, v6, 4, v5
    s_lshl_b32 s27, s21, 10
    s_add_u32 s28, s27, {K1_XL}
    s_mov_b32 m0, s28
    ; W1 -> LDS: row (l/16), chunk (l%16) ^ ((l/16)<<1) ^ (8 if bit 3 of the row)
    v_lshlrev_b32 v4, 1, v2
    v_xor_b32 v4, v4, v3
    v_lshlrev_b32 v4, 4, v4
    v_lshl_or_b32 v4, v2, 8, v4
    s_lshl_b32 s28, s21, 6
    s_and_b32 s28, s28, 0x80
    v_xor_b32 v4, s28, v4
    s_waitcnt lgkmcnt(0)
""")
    srd(4, N * 256)
    srd(12, 128 * 256)
    e("    buffer_load_dwordx4 v5, s[4:7], 0 offen lds")
    for m in range(3):
        if m == 2:
            e("    s_cmp_ge_u32 s21, 8\n    s_cbranch_scc1 K1_DMAD")
        e(f"""
    s_mov_b32 m0, s27
    s_nop 0
    buffer_load_dwordx4 v4, s[12:15], s27 offen lds
""")
        if m < 2: e("    s_add_u32 s27, s27, 12288")
    e("K1_DMAD:")
    srd(16, N * 256)
    e(f"""
    s_lshr_b32 s23, s21, 2
    s_and_b32 s24, s21, 3
    v_lshrrev_b32 v24, 2, v3                ; r'
    v_and_b32 v25, 3, v3                    ; c'
    v_and_b32 v26, 1, v2
    v_lshl_or_b32 v26, v26, 2, v24          ; h(k)
    v_lshl_add_u32 v27, v2, 3, v24          ; 8g + r'
    v_lshlrev_b32 v27, 8, v27
    v_lshl_or_b32 v27, v25, 3, v27
    s_lshl_b32 s27, s24, 1
    v_xor_b32 v26, s27, v26
    v_lshl_add_u32 v28, v26, 5, v27
    v_xor_b32 v29, 32, v28
    ; x fragments
    v_xor_b32 v30, v2, v3
    v_lshlrev_b32 v30, 4, v30
    v_lshl_or_b32 v30, v3, 8, v30
    s_lshl_b32 s27, s23, 12
    s_add_u32 s27, s27, {K1_XL}
    v_add_u32 v30, s27, v30
    v_xor_b32 v31, 64, v30
    v_xor_b32 v32, 0x80, v30
    v_xor_b32 v33, 0xc0, v30
    s_lshl_b32 s26, s23, 4
    s_add_u32 s25, s25, s26
    v_add_u32 v5, s25, v3
    v_lshlrev_b32 v5, 8, v5
    v_lshl_or_b32 v5, v2, 4, v5
    s_lshl_b32 s27, s24, 6
    v_add_u32 v5, s27, v5
    s_mov_b32 s28, {NL2E:#x}
    s_waitcnt vmcnt(0)
    s_barrier
""")
    stamp(3, 16, 0)
    for s in range(4):
        e(f"    ds_read_b128 {vr(8 + 4 * s, 4)}, v{30 + s}")
        for f in range(2):
            for u2 in range(2):
                e(f"    ds_read_b64_tr_b16 {vr(36 + 16 * f + 4 * s + 2 * u2, 2)}, v{28 + f} offset:{s * 8192 + u2 * 1024}")
    for s in range(4):
        for f in range(2):
            left = 20 - (5 * s + 3 + 2 * f)
            e(f"    s_waitcnt lgkmcnt({min(left, 15)})")
            c = "0" if s == 0 else vr(68 + 4 * f, 4)
            e(f"    v_mfma_f32_16x16x32_bf16 {vr(68 + 4 * f, 4)}, {vr(36 + 16 * f + 4 * s, 4)}, {vr(8 + 4 * s, 4)}, {c}")
    e("    s_nop 5")
    for f in range(2):
        for h in range(2):
            r = 68 + 4 * f + 2 * h
            e(f"    v_pk_mul_f32 {vr(r, 2)}, {vr(r, 2)}, s[28:29] op_sel_hi:[1,0]")
        for h in range(2):
            r = 68 + 4 * f + 2 * h
            e(f"    v_cvt_pk_bf16_f32 v{76 + 2 * f + h}, v{r}, v{r + 1}")
    e(f"    buffer_store_dwordx4 v[76:79], v5, s[16:19], 0 offen")
    light1(16, 0)
    if OPT["stamps"]:
        srd(16, WSEND); stamp(4, 16, 0); e("    s_waitcnt vmcnt(0)"); stamp(5, 16, 0); stamp_out(16, 0)
    e(f"""
    s_endpgm
K1_JOBS:
    s_sub_u32 s23, s20, 209
    s_mul_i32 s23, s23, 12
    s_add_u32 s23, s23, s21
    s_waitcnt lgkmcnt(0)
""")
    srd(16, WSEND)
    e(f"""
    s_cmp_ge_u32 s23, 96
    s_cbranch_scc1 K1_JOB2
    s_lshr_b32 s24, s23, 5
    s_bfe_u32 s25, s23, 0x30002             ; f
    s_and_b32 s26, s23, 3                   ; s
    s_cmp_eq_u32 s24, 0
    s_cselect_b32 s28, s12, s14
    s_cselect_b32 s29, s13, s15
    s_mov_b32 s30, {256 * 256}
    s_mov_b32 s31, 0x20000
    ; column
    s_lshl_b32 s33, s25, 4                  ; 16 f
    v_add_u32 v4, s33, v3
    v_lshlrev_b32 v4, 1, v4
    ; row
    v_lshlrev_b32 v5, 11, v2                ; 8 g rows
    v_lshrrev_b32 v7, 1, v2
    v_lshlrev_b32 v7, 12, v7
    v_and_b32 v6, 1, v2
    v_lshl_or_b32 v7, v6, 9, v7             ; 16 (g>>1) + 2 (g&1) rows
    s_cmp_eq_u32 s24, 2
    s_cselect_b64 vcc, -1, 0
    s_cselect_b32 s32, 10, 13
    s_movk_i32 s33, 512
    s_cmovk_i32 s33, 8192
    s_cselect_b32 s34, {NSC:#x}, 1.0
    v_cndmask_b32 v5, v5, v7, vcc
    v_add_u32 v4, v4, v5
    s_lshl_b32 s40, s26, s32
    s_cmp_eq_u32 s24, 1
    s_cselect_b32 s36, 0, 0x8000
    s_add_u32 s40, s40, s36
    s_add_u32 s41, s40, s33
    s_add_u32 s42, s41, s33
    s_add_u32 s43, s42, s33
""")
    for m in range(8):
        e(f"    buffer_load_ushort v{8 + m}, v4, s[28:31], s{40 + m // 2} offen offset:{(m & 1) * 256}")
    e(f"""
    s_lshl_b32 s37, s23, 10
    s_add_u32 s37, s37, {W2F}
    v_lshlrev_b32 v6, 4, v1
    s_mov_b32 s38, 0x07060302
    s_waitcnt vmcnt(0)
""")
    for m in range(8):
        e(f"    v_lshlrev_b32 v{8 + m}, 16, v{8 + m}\n    v_mul_f32 v{8 + m}, s34, v{8 + m}")
    for m in range(4):
        e(f"    v_perm_b32 v{16 + m}, v{9 + 2 * m}, v{8 + 2 * m}, s38")
    e(f"""
    buffer_store_dwordx4 v[16:19], v6, s[16:19], s37 offen
    s_endpgm
K1_JOB2:
    s_cmp_ge_u32 s23, 98
    s_cbranch_scc1 K1_JOB3
    s_sub_u32 s24, s23, 96                  ; c
    s_mov_b32 s14, {260 * 256}
    s_mov_b32 s15, 0x20000
    v_and_b32 v2, 31, v1
    v_lshrrev_b32 v3, 5, v1
    v_lshl_or_b32 v2, v2, 1, v3             ; p & 63
    v_and_b32 v4, 0x23, v2
    v_bfe_u32 v5, v2, 2, 1
    v_lshl_or_b32 v4, v5, 4, v4
    v_bfe_u32 v5, v2, 3, 2
    v_lshl_or_b32 v4, v5, 2, v4             ; feature & 63
    v_lshlrev_b32 v4, 1, v4
    s_lshl_b32 s25, s24, 7
    s_add_u32 s25, s25, {256 * 256}
""")
    for d in range(4):
        e(f"    buffer_load_ushort v{8 + d}, v4, s[12:15], s25 offen offset:{d * 256}")
    e(f"""
    s_lshl_b32 s37, s24, 10
    s_add_u32 s37, s37, {W3F}
    v_lshlrev_b32 v6, 4, v1
    s_mov_b32 s34, {NL2E:#x}
    s_waitcnt vmcnt(0)
""")
    for d in range(4):
        e(f"    v_lshlrev_b32 v{8 + d}, 16, v{8 + d}\n    v_mul_f32 v{8 + d}, s34, v{8 + d}")
    e("""
    v_cvt_pk_bf16_f32 v16, v8, v9
    v_cvt_pk_bf16_f32 v17, v10, v11
    v_lshlrev_b32 v12, 16, v16
    v_and_b32 v13, 0xffff0000, v16
    v_lshlrev_b32 v14, 16, v17
    v_and_b32 v15, 0xffff0000, v17
    v_sub_f32 v8, v8, v12
    v_sub_f32 v9, v9, v13
    v_sub_f32 v10, v10, v14
    v_sub_f32 v11, v11, v15
    v_cvt_pk_bf16_f32 v18, v8, v9
    v_cvt_pk_bf16_f32 v19, v10, v11
    buffer_store_dwordx4 v[16:19], v6, s[16:19], s37 offen
    s_endpgm
K1_JOB3:
    s_cmp_lg_u32 s23, 98
    s_cbranch_scc1 K1_END
    v_mov_b32 v8, 0
    v_lshlrev_b32 v6, 2, v1
""")
    e(f"""
    s_mov_b32 s37, {PT + N * 256}
    buffer_store_dword v8, v6, s[16:19], s37 offen
K1_END:
    s_endpgm
K1_SPARE:
""")
    if OPT["cpf"]:
        e(f"""
    s_getpc_b64 s[24:25]
K1_PC:
    s_and_b32 s22, s20, 31
    s_lshl_b32 s22, s22, 1
    s_sub_u32 s23, s21, 10
    s_add_u32 s22, s22, s23
    s_mul_i32 s22, s22, {OPT["cpf"] * 64}
    v_lshl_add_u32 v2, v1, 6, s22
    v_min_u32 v2, K2_LAST - mpnn_edge_kernel, v2
    v_add_u32 v2, mpnn_edge_kernel - K1_PC, v2
    v_mov_b32 v3, s25
    v_add_co_u32 v2, vcc, s24, v2
    s_nop 1
    v_addc_co_u32 v3, vcc, 0, v3, vcc
    s_bfm_b64 exec, {OPT["cpf"]}, 0
    global_load_dword v4, v[2:3], off
""")
    e("    s_endpgm")

RS = 1040
RB = OPT["rb"]
CAP = 2048
MISC = 0
ZR, CNT, MORE, FL = 0, 768, 1024, 1088
SO = 2048
EA = SO + CAP * 4
W3L = EA + CAP * 8
QU = W3L + 2048
AG = QU + 41 * RS
XL = (AG + 2 * 16384 + 11 * 1024 + 255) // 256 * 256
AGB = XL
K2_LDS = AGB + 48 * RB
PADV = N * 8
S16MAX = (CAP // 4 - 8) * 16
NT = 16
NK = 6
vSO, vP, vD, vE, vAe, vBw, vQ, vNp, vAc, vI = 8, (16, 24), (32, 92), 48, 64, 68, 72, 126, (80, 82), 84
vaS, vaE, vaN = (86, 87), 88, (90, 91)
vU = 108
vC4, vQ16, vE16, vS16 = 120, 121, 122, 123
vCA, vCW, vCN, vFR, vFO = 120, 121, 122, 124, 125
sM = [40 + 2 * k for k in range(NK)]
sFM, sEV = (28, 30), (32, 33)
sFirst, sMoreV, sMM = 56, 57, 58
M9 = "0x01ff01ff"
KCOP = "s[26:27], s[26:27] op_sel_hi:[1,0,0] clamp"

def flush_adds(y):
    t = vE + 8 * y
    e(f"""
    v_cvt_f64_f32 {vr(t, 2)}, v{vAc[y]}
    v_cvt_f64_f32 {vr(t + 2, 2)}, v{vAc[y] + 1}
    ds_add_f64 v{vaN[y]}, {vr(t, 2)} offset:{AG - QU}
    ds_add_f64 v{vaN[y]}, {vr(t + 2, 2)} offset:{AG - QU + 8}
""")

def exec_bit(y, t):
    e(f"    s_bfe_i32 exec_lo, s{sFM[y]}, {0x10000 | t:#x}\n    s_bfe_i32 exec_hi, s{sFM[y] + 1}, {0x10000 | t:#x}")

def event_block(t, y):
    e(f"K2_EV{t}_{y}:")
    exec_bit(y, t)
    e(f"    s_cbranch_execz K2_EQ{t}_{y}")
    flush_adds(y)
    e(f"""
    v_add_u32 v{vaN[y]}, {RS}, v{vaN[y]}
    v_mov_b64 {vr(vAc[y], 2)}, 0
K2_EQ{t}_{y}:
""")
    if t + 2 < NT:
        exec_bit(y, t + 1)
        e(f"    ds_read_b64 {vr(vQ + 2 * y, 2)}, v{vaN[y]} offset:{RS}")
    e(f"    s_mov_b64 exec, -1\n    s_branch K2_EB{t}_{y}")

def gather_lines(dst, adr):
    out = []
    for q in range(4):
        for y in range(2):
            a = adr + 4 * y + q
            pre = f"    v_min_u32 v{a}, {PADV}, v{a}\n    v_and_b32 v{a}, -8, v{a}\n" if OPT["safe"] else ""
            out.append(pre + f"    buffer_load_dword v{dst + 2 * q + y}, v{a}, s[8:11], 0 offen")
    return out
def gathers(dst, adr):
    for l in gather_lines(dst, adr): e(l)

def mfma4(D, P, q): return f"    v_mfma_f32_4x4x4_16b_bf16 {vr(D + 4 * q, 4)}, {vr(vI, 2)}, {vr(P + 2 * q, 2)}, {vr(vQ, 4)}"
def mfma32(D): return f"    v_mfma_f32_32x32x16_bf16 {vr(D, 16)}, {vr(vAe, 4)}, {vr(vBw, 4)}, {vr(D, 16)}"

def core_lines(D):
    Ee = vE
    def p(r): return vr(r, 2)
    ex = [f"    v_exp_f32 v{Ee + k}, v{D + k}" for k in range(16)]
    sc = [f"    v_pk_fma_f32 {p(Ee + 2 * m)}, {p(Ee + 2 * m)}, {KCOP}" for m in range(8)]
    seq = [
        lambda o: f"v_pk_mul_f32 {p(D + o)}, {p(D + o)}, {p(Ee + o + 4)}",
        lambda o: f"v_pk_mul_f32 {p(D + o + 8)}, {p(D + o + 8)}, {p(Ee + o + 12)}",
        lambda o: f"v_pk_fma_f32 {p(D + o)}, {p(D + o + 4)}, {p(Ee + o)}, {p(D + o)}",
        lambda o: f"v_pk_fma_f32 {p(D + o + 8)}, {p(D + o + 12)}, {p(Ee + o + 8)}, {p(D + o + 8)}",
        lambda o: f"v_pk_mul_f32 {p(Ee + o)}, {p(Ee + o)}, {p(Ee + o + 4)}",
        lambda o: f"v_pk_mul_f32 {p(Ee + o + 8)}, {p(Ee + o + 8)}, {p(Ee + o + 12)}",
        lambda o: f"v_pk_mul_f32 {p(Ee + o + 4)}, {p(Ee + o)}, {p(Ee + o + 8)}",
        lambda o: f"v_pk_mul_f32 {p(D + o)}, {p(D + o)}, {p(Ee + o + 8)}",
        lambda o: f"v_rcp_f32 v{Ee + o + 4}, v{Ee + o + 4}",
        lambda o: f"v_rcp_f32 v{Ee + o + 5}, v{Ee + o + 5}",
        lambda o: f"v_pk_fma_f32 {p(D + o)}, {p(D + o + 8)}, {p(Ee + o)}, {p(D + o)}",
        lambda o: f"v_pk_fma_f32 {p(vAc[o // 2])}, {p(D + o)}, {p(Ee + o + 4)}, {p(vAc[o // 2])}",
    ]
    rest = ["    " + fn(o) for fn in seq for o in (0, 2)]
    if OPT["nocore"]: return ["    s_nop 0"] * 16, [], []
    return ex, sc, rest

PRIO_0, PRIO_AT = {0: (2, {NT - 7: 1, NT - 3: 0}), 1: (2, {NT - 2: 1, NT - 1: 0}), 2: (2, {NT - 4: 1, NT - 1: 0}), 3: (3, {NT - 3: 2, NT - 2: 1, NT - 1: 0}),
                   4: (3, {NT - 7: 2, NT - 3: 1, NT - 1: 0}), 5: (2, {NT - 5: 1, NT - 2: 0}), 6: (3, {NT - 9: 2, NT - 4: 1, NT - 1: 0})}[OPT["ps"]]
def tile(t):
    a, r = t % 2, NT - t
    ex, sc, rest = core_lines(vD[a])
    Dn, Pn = vD[1 - a], vP[1 - a]
    e(f"K2_T{t}:")
    if t in PRIO_AT: prio(PRIO_AT[t])
    wait = [f"    s_waitcnt vmcnt({8 if r >= 3 else 0}) lgkmcnt(0)"] if r >= 2 else []
    m4 = [mfma4(Dn, Pn, q) for q in range(4)] if r >= 2 and not OPT["nomfma"] else [""] * 4
    m32 = [mfma32(Dn)] if r >= 2 and not OPT["nomfma"] else []
    gl = gather_lines(Pn, vSO) if r >= 4 and not OPT["nogather"] else []
    so, ae = [], []
    if not OPT["nolds"]:
        if r >= 5: so = [f"    ds_read_b128 {vr(vSO, 4)}, v{vaS[0]} offset:{16 * (t + 4)}", f"    ds_read_b128 {vr(vSO + 4, 4)}, v{vaS[1]} offset:{16 * (t + 4)}"]
        if r >= 3: ae = [f"    ds_read2_b64 {vr(vAe, 4)}, v{vaE} offset0:{4 * (t + 2)} offset1:{4 * (t + 2)}"]
    def zip1(x, y):
        out = []
        for i in range(max(len(x), len(y))):
            out += x[i:i + 1] + y[i:i + 1]
        return out
    mp = OPT["mpos"]
    k0 = {0: 2, 1: 0, 2: 2, 3: 2, 4: 1, 5: 2, 6: 2, 7: 4}[mp]
    head = ex[:k0] + wait + zip1(m4, ex[k0:k0 + 4]) + ex[k0 + 4:k0 + 7] + m32
    k = k0 + 7
    if mp in (0, 1, 4):
        seq = head + ex[k:k + 5] + gl + so + ae + ex[k + 5:] + sc + rest
    elif mp == 2:
        pk = sc + rest
        seq = head + ex[k:] + zip1(pk[:len(gl) + 3], gl + so + ae) + pk[len(gl) + 3:]
    elif mp == 3:
        v = ex[k + 4:] + sc
        seq = head + ex[k:k + 4] + zip1(gl + so + ae, v) + rest
    elif mp == 5:
        seq = head + ex[k:] + sc + rest[:16] + gl + so + ae + rest[16:]
    elif mp == 6:
        seq = head + zip1(ex[k:], gl) + gl[len(ex[k:]):] + so + ae + sc + rest if False else head + zip1(ex[k:], gl[:7]) + gl[7:] + so + ae + sc + rest
    elif mp == 7:
        seq = head + ex[k:] + gl + so + ae + sc + rest
    for l in seq:
        if l: e(l)
    if r >= 2 and not OPT["noflush"]:
        for y in range(2):
            e(f"    s_bitcmp1_b32 s{sEV[y]}, {t}\n    s_cbranch_scc1 K2_EV{t}_{y}\nK2_EB{t}_{y}:")

def wut_loads(lab):
    e(f"    s_cmp_ge_u32 s21, 8\n    s_cbranch_scc1 {lab}\n    s_lshl_b32 s36, s21, 12\n    s_add_u32 s36, s36, {WUT}")
    for s in range(4):
        e(f"    buffer_load_dwordx4 {vr(108 + 4 * s, 4)}, v7, s[4:7], s36 offen offset:{1024 * s}")
    e(f"{lab}:")

def x_frags(xa, xb):
    e(f"""
    v_xor_b32 v{xa}, v5, v6
    v_lshlrev_b32 v{xa}, 4, v{xa}
    v_lshl_or_b32 v{xa}, v6, 8, v{xa}
    v_add_u32 v{xa}, {XL}, v{xa}
    v_xor_b32 v{xa + 1}, 64, v{xa}
    v_xor_b32 v{xa + 2}, 0x80, v{xa}
    v_xor_b32 v{xa + 3}, 0xc0, v{xa}
""")
    for s in range(4):
        for T in range(3):
            e(f"    ds_read_b128 {vr(xb(T, s), 4)}, v{xa + s} offset:{4096 * T}")

def prio(n):
    if OPT["prio"]: e(f"    s_setprio {n}")

def setup_scalars():
    e(f"""
    s_cmp_lt_u32 s20, 16
    s_cselect_b32 s22, 40, 39
    s_bfm_b64 s[78:79], s22, 0
    s_and_b32 s23, s21, 1                   ; c
    s_lshr_b32 s76, s21, 1                  ; group
    s_mov_b32 s26, {KC:#x}
    s_mov_b32 s72, {NL2E:#x}
    s_lshl_b32 s39, s23, 7
    s_add_u32 s8, s4, s39
    s_addc_u32 s9, s5, 0
    s_or_b32 s9, s9, 0x80000000
    s_mov_b32 s10, 0x10000
    s_mov_b32 s11, 0x00c00000
""")
    srd(16, N * 256)

def scan():
    e(f"""
    ds_read_b32 v{vC4}, v62 offset:{CNT}
    s_waitcnt lgkmcnt(0)
    v_add_u32 v{vQ16}, 12, v{vC4}
    v_and_b32 v{vQ16}, -16, v{vQ16}
    s_mov_b64 exec, s[78:79]
    v_max_u32 v{vQ16}, 16, v{vQ16}          ; 16*quads
    s_mov_b64 exec, -1
    s_nop 0
    v_add_u32_dpp v{vE16}, v{vQ16}, v{vQ16} row_shr:1 row_mask:0xf bank_mask:0xf bound_ctrl:1
""")
    for c in ("row_shr:2 row_mask:0xf", "row_shr:4 row_mask:0xf", "row_shr:8 row_mask:0xf", "row_bcast:15 row_mask:0xa", "row_bcast:31 row_mask:0xc"):
        e(f"    s_nop 1\n    v_add_u32_dpp v{vE16}, v{vE16}, v{vE16} {c} bank_mask:0xf")
    e(f"""
    v_sub_u32 v{vS16}, v{vE16}, v{vQ16}
    v_readlane_b32 s34, v{vE16}, 63
""")

def x_addr(xa):
    e(f"""
    v_xor_b32 v{xa}, v5, v6
    v_lshlrev_b32 v{xa}, 4, v{xa}
    v_lshl_or_b32 v{xa}, v6, 8, v{xa}
    v_add_u32 v{xa}, {XL}, v{xa}
    v_xor_b32 v{xa + 1}, 64, v{xa}
    v_xor_b32 v{xa + 2}, 0x80, v{xa}
    v_xor_b32 v{xa + 3}, 0xc0, v{xa}
""")
def x_reads(xa, xb):
    for s in range(4):
        for T in range(3):
            e(f"    ds_read_b128 {vr(xb(T, s), 4)}, v{xa + s} offset:{4096 * T}")

def kernel2():
    e(f"""
.text
.globl mpnn_edge_kernel
.p2align 8
.type mpnn_edge_kernel,@function
mpnn_edge_kernel:
    s_load_dwordx2 s[4:5], s[0:1], 64       ; ws
    s_load_dwordx2 s[12:13], s[0:1], 0      ; x
    s_load_dwordx2 s[16:17], s[0:1], 48     ; out
    s_cmp_ge_u32 s2, 256
    s_cbranch_scc1 K2_END
    v_lshrrev_b32 v2, 6, v0
    s_and_b32 s20, s2, 7
    v_readfirstlane_b32 s21, v2
    s_lshl_b32 s20, s20, 5
    s_lshr_b32 s3, s2, 3
    s_or_b32 s20, s20, s3                   ; bucket
    s_mov_b32 s6, {WSEND:#x}
    s_mov_b32 s7, 0x20000
    v_and_b32 v4, -4, v0
    v_lshlrev_b32 v4, 2, v4
    s_lshr_b32 s34, s20, 2
    s_lshl_b32 s34, s34, 10
    s_and_b32 s35, s20, 3
    s_or_b32 s34, s34, s35
    s_lshl_b32 s34, s34, 2
    s_add_u32 s34, s34, {DESC}
""")
    stamp(0, 4, 1); dbg(0); light0()
    e(f"""
    v_lshrrev_b32 v8, 4, v0
    v_xor_b32 v9, v8, v0
    s_lshl_b32 s35, s20, 8
    v_lshl_add_u32 v8, v8, 16, s35
    v_and_b32 v9, 15, v9
    s_lshl_b32 s36, s21, 10
    s_add_u32 s36, s36, {XL}
    s_mov_b32 m0, s36
""")
    srd(12, N * 256)
    e(f"""
    v_lshl_add_u32 v8, v9, 4, v8
    s_waitcnt lgkmcnt(0)
    buffer_load_dword v2, v4, s[4:7], s34 offen
    s_cmp_ge_u32 s21, 11
    s_cbranch_scc1 K2_NOX
    buffer_load_dwordx4 v8, s[12:15], 0 offen lds
K2_NOX:
    v_lshlrev_b32 v60, 4, v0
    v_mov_b64 v[48:49], 0
    v_mov_b64 v[50:51], 0
    s_cmp_ge_u32 s21, 2
    s_cbranch_scc1 K2_NOZ0
    ds_write_b128 v60, v[48:51] offset:{MISC}
K2_NOZ0:
    v_add_u32 v61, {AG}, v60
    ds_write_b128 v61, v[48:51]
    ds_write_b128 v61, v[48:51] offset:16384
    s_cmp_ge_u32 s21, 11
    s_cbranch_scc1 K2_NOZ3
    ds_write_b128 v61, v[48:51] offset:32768
K2_NOZ3:
    v_and_b32 v1, 63, v0
    v_lshrrev_b32 v3, 2, v0
    v_mul_u32_u24 v3, {RSTR}, v3
    v_and_b32 v4, 3, v0
    s_mov_b32 s24, 0
    s_mov_b32 s25, {4 * NK}
    s_mov_b32 s{sFirst}, 1
K2_ROUND:
    s_mov_b32 s34, {REC}
""")
    prio(2)
    if not OPT["bdl"]: e("    s_waitcnt lgkmcnt(3)\n    s_barrier")
    e(f"""
    s_cmp_lt_u32 s21, 11
    s_cbranch_scc1 K2_WD1
    s_waitcnt vmcnt(0)
K2_WD1:
    s_waitcnt vmcnt(1)
""")
    stamp(1, 4, 1)
    e(f"""
    v_lshrrev_b32 v56, 16, v2               ; count
    v_and_b32 v57, 0xffff, v2               ; start
    v_subrev_u32 v56, s24, v56
    v_add3_u32 v57, v57, s24, v4
    v_min_i32 v58, s25, v56
    v_mad_u32_u24 v57, v57, 12, v3
    v_sub_u32 v58, v58, v4
""")
    for k in range(3): e(f"    v_cmp_lt_i32 {sr(sM[k], 2)}, {4 * k}, v58")
    for k in range(NK):
        if k >= 3:
            e(f"    v_cmp_lt_i32 {sr(sM[k], 2)}, {4 * k}, v58")
        e(f"    s_mov_b64 exec, {sr(sM[k], 2)}")
        if k >= 2:
            e(f"    s_cbranch_execz K2_RLD")
        e(f"    buffer_load_dwordx3 {vr(8 + 4 * k, 3)}, v57, s[4:7], s34 offen offset:{48 * k}")
    e(f"""
K2_RLD:
    s_mov_b64 exec, -1
""")
    stamp(2, 4, 1)
    if OPT["bdl"]: e("    s_waitcnt lgkmcnt(3)\n    s_barrier")
    prio(0)
    e(f"""
    ds_write_b128 v60, v[48:51] offset:{EA}
    v_lshlrev_b32 v7, 4, v1                 ; lane*16
    v_lshrrev_b32 v5, 4, v1                 ; g
    v_and_b32 v6, 15, v1                    ; n
    v_cmp_lt_i32 {sr(sMM, 2)}, s25, v56
    v_mov_b32 v63, 4
    v_lshlrev_b32 v62, 2, v1
    s_cmp_ge_u32 s21, 8
    s_cbranch_scc1 K2_NOSO
    v_mov_b32 v52, {PADV}
    v_mov_b32 v53, v52
    v_mov_b32 v54, v52
    v_mov_b32 v55, v52
    ds_write_b128 v60, v[52:55] offset:{SO}
K2_NOSO:
    s_cmp_eq_u32 s{sFirst}, 0
    s_cbranch_scc1 K2_SETD
    v_mov_b32 v{vNp}, 0
    v_mov_b32 v{vFO}, 0
""")
    setup_scalars()
    e(f"""
    s_cmp_lt_u32 s21, 8
    s_cbranch_scc1 K2_SETD
    s_lshl_b32 s74, s21, 12
    s_add_u32 s74, s74, {W2F - 8 * 4096}
""")
    for s in range(4):
        e(f"    buffer_load_dwordx4 {vr(92 + 4 * s, 4)}, v7, s[4:7], s74 offen offset:{1024 * s}")
    if OPT["pf"]:
        e(f"""
    s_cmp_lt_u32 s21, {16 - OPT["pf"]}
    s_cbranch_scc1 K2_NOPF
    s_lshr_b32 s34, s2, 3
    s_mul_i32 s34, s34, 80000
    s_sub_u32 s35, 15, s21
    s_lshl_b32 s35, s35, 13
    s_add_u32 s34, s34, s35
    v_lshlrev_b32 v119, 3, v7
    buffer_load_dword v119, v119, s[4:7], s34 offen
    s_branch K2_PFD
K2_NOPF:
    buffer_load_dword v119, off, s[4:7], s74
K2_PFD:
""")
    x_addr(108)
    e(f"""
    s_bfe_u32 s36, s21, 0x20001
    s_lshl_b32 s36, s36, 8
    s_lshl_b32 s37, s23, 5
    s_add_u32 s36, s36, s37
    s_add_u32 s36, s36, {QU}
    v_mul_u32_u24 v112, {RS}, v6
    v_lshl_add_u32 v112, v5, 6, v112
    v_add_u32 v112, s36, v112
    v_add_u32 v113, {16 * RS}, v112
    v_add_u32 v114, {32 * RS}, v112
    s_mov_b64 exec, {sr(sMM, 2)}
    s_cbranch_execnz K2_MORE1
K2_MOREB1:
""")
    prio(2)
    e(f"""
    s_waitcnt vmcnt({5 if OPT["pf"] else 4})
    s_branch K2_RECS
K2_SETD:
    s_mov_b64 exec, {sr(sMM, 2)}
    s_cbranch_execnz K2_MORE2
K2_MOREB2:
""")
    prio(2)
    e("    s_waitcnt vmcnt(0)\nK2_RECS:")
    stamp(3, 4, 1)
    for k in range(NK):
        e(f"    s_mov_b64 exec, {sr(sM[k], 2)}")
        if k >= 2: e("    s_cbranch_execz K2_HISTD")
        e(f"""
    v_lshrrev_b32 v{40 + k}, 24, v{10 + 4 * k}
    ds_add_rtn_u32 v{11 + 4 * k}, v{40 + k}, v63 offset:{CNT}
    v_and_b32 v{10 + 4 * k}, 0x3ffffff, v{10 + 4 * k}
""")
    e(f"""
K2_HISTD:
    s_mov_b64 exec, -1
    s_cmp_ge_u32 s21, 2
    s_cbranch_scc1 K2_NOW3
    s_lshl_b32 s34, s21, 10
    s_add_u32 s35, s34, {W3L}
    s_add_u32 s34, s34, {W3F}
    s_mov_b32 m0, s35
    s_nop 0
    buffer_load_dwordx4 v7, s[4:7], s34 offen lds
K2_NOW3:
    s_waitcnt lgkmcnt(0)
    s_barrier
""")
    stamp(4, 4, 1); dbg(1)
    scan()
    for k in range(NK):
        if k == 3: e(f"    s_cmp_eq_u64 {sr(sM[2], 2)}, 0\n    s_cbranch_scc1 K2_BPD")
        if k >= 3: e(f"    s_cmp_eq_u64 {sr(sM[k], 2)}, 0\n    s_cbranch_scc1 K2_BPD")
        e(f"    ds_bpermute_b32 v{40 + k}, v{40 + k}, v{vS16}")
    e(f"""
K2_BPD:
    s_cmp_gt_u32 s34, {S16MAX}
    s_cbranch_scc1 K2_REDO
    s_add_u32 s34, s34, 48
    s_lshr_b32 s35, s34, 9
    s_bfe_u32 s34, s34, 0x30006
    s_mul_i32 s37, s76, s35
    s_waitcnt lgkmcnt(0)
""")
    for k in range(NK):
        e(f"    s_mov_b64 exec, {sr(sM[k], 2)}")
        if k >= 2: e("    s_cbranch_execz K2_GEO")
        e(f"""
    v_add_u32 v{40 + k}, v{40 + k}, v{11 + 4 * k}
    v_add_u32 v{11 + 4 * k}, v{40 + k}, v{40 + k}
    ds_write_b32 v{40 + k}, v{10 + 4 * k} offset:{SO}
    ds_write_b64 v{11 + 4 * k}, {vr(8 + 4 * k, 2)} offset:{EA}
""")
    e(f"""
K2_GEO:
    s_cmp_lg_u32 s21, 0
    s_cbranch_scc1 K2_NOFL
    s_mov_b64 exec, s[78:79]
    v_lshrrev_b32 v46, 4, v{vE16}
    ds_write_b8 v46, v63 offset:{FL - 1}
K2_NOFL:
    s_min_u32 s38, s76, s34
    s_add_u32 s37, s37, s38
    s_lshl_b32 s60, s37, 6                  ; stream (0,X)
    s_cmp_lt_u32 s76, s34
    s_addc_u32 s35, s35, 0
    s_lshl_b32 s77, s35, 4
    s_add_u32 s61, s60, s77
    s_add_u32 s62, s61, s77
    s_mov_b64 exec, -1
    v_mov_b32 v{vaS[0]}, s60
    s_mov_b32 exec_lo, 0
    v_mov_b32 v{vaS[0]}, s62
    s_mov_b32 exec_lo, -1
    v_add_u32 v{vaS[1]}, s77, v{vaS[0]}
    s_lshr_b32 s36, s21, 3
    s_and_b32 s36, s36, s{sFirst}
""")
    e(f"""
    s_waitcnt vmcnt({1 if OPT['pf'] else 0}) lgkmcnt(0)
    s_barrier
""")
    stamp(5, 4, 1); dbg(2)
    e("    s_cbranch_scc0 K2_FG")
    prio(3)
    e(f"""
""")
    xbq = lambda T, s: 16 + 16 * T + 4 * s
    x_reads(108, xbq)
    for s in range(4):
        for T in range(3):
            e(f"    s_waitcnt lgkmcnt({11 - 3 * s - T})")
            c = "0" if s == 0 else vr(64 + 4 * T, 4)
            e(f"    v_mfma_f32_16x16x32_bf16 {vr(64 + 4 * T, 4)}, {vr(92 + 4 * s, 4)}, {vr(xbq(T, s), 4)}, {c}")
    e("    s_nop 3")
    for T in range(3):
        if T == 2:
            e(f"    s_mov_b32 exec_lo, {M9}\n    s_mov_b32 exec_hi, {M9}")
        for h in range(2):
            r = 64 + 4 * T + 2 * h
            e(f"    v_pk_mul_f32 {vr(r, 2)}, {vr(r, 2)}, s[72:73] op_sel_hi:[1,0]")
        e(f"    ds_write2_b64 v{112 + T}, {vr(64 + 4 * T, 2)}, {vr(64 + 4 * T + 2, 2)} offset0:0 offset1:2")
    e("    s_mov_b64 exec, -1\n    s_waitcnt lgkmcnt(0)\n    s_barrier")
    for r in range(12):
        e(f"    v_exp_f32 v{92 + r}, v{64 + r}")
    for r in range(0, 12, 2):
        e(f"    v_pk_fma_f32 {vr(92 + r, 2)}, {vr(92 + r, 2)}, {KCOP}")
    for r in range(12):
        e(f"    v_rcp_f32 v{92 + r}, v{92 + r}")
    for T in range(3):
        if T == 2:
            e(f"    s_mov_b32 exec_lo, {M9}\n    s_mov_b32 exec_hi, {M9}")
        for r in (4 * T, 4 * T + 2):
            e(f"    v_pk_mul_f32 {vr(92 + r, 2)}, {vr(92 + r, 2)}, {vr(64 + r, 2)}")
        e(f"    ds_write2_b64 v{112 + T}, {vr(92 + 4 * T, 2)}, {vr(92 + 4 * T + 2, 2)} offset0:1 offset1:3")
    e(f"""
    s_mov_b64 exec, -1
K2_FG:
    ds_read_b128 {vr(vSO, 4)}, v{vaS[0]} offset:{SO}
    ds_read_b128 {vr(vSO + 4, 4)}, v{vaS[1]} offset:{SO}
    ds_read_b128 {vr(vE, 4)}, v{vaS[0]} offset:{SO + 16}
    ds_read_b128 {vr(vE + 4, 4)}, v{vaS[1]} offset:{SO + 16}
    s_bitcmp1_b32 s35, 0
    s_cbranch_scc1 K2_FG1
""")
    for a in range(2):
        if a: e("K2_FG1:")
        e("    s_waitcnt lgkmcnt(2)")
        gathers(vP[a], vSO)
        e("    s_waitcnt lgkmcnt(0)")
        if OPT["g1late"]: e(f"    s_mov_b32 s75, {a}")
        else: gathers(vP[1 - a], vE)
        if not a: e("    s_branch K2_FGD")
    e("K2_FGD:")
    stamp(11, 4, 1)
    e(f"""
    v_and_b32 v44, 31, v1
    v_lshrrev_b32 v46, 4, v{vaS[0]}
    v_add_u32 v46, v46, v44
    v_add_u32 v47, s35, v46
    ds_read_u8 v46, v46 offset:{FL}
    ds_read_u8 v47, v47 offset:{FL}
    s_lshl_b32 s36, s23, 10
    v_add_u32 v45, s36, v7
    ds_read_b128 {vr(vBw, 4)}, v45 offset:{W3L}
    ds_read_b128 {vr(vSO, 4)}, v{vaS[0]} offset:{SO + 32}
    ds_read_b128 {vr(vSO + 4, 4)}, v{vaS[1]} offset:{SO + 32}
    s_add_u32 s63, s62, s77
    s_lshl_b32 s36, s23, 9
    s_add_u32 s36, s36, {QU}
    v_lshl_add_u32 v44, v44, 4, s36
""")
    for k in range(4):
        e(f"    v_cmp_ge_u32 vcc, s{60 + k}, v{vE16}\n    s_bcnt1_i32_b64 s{64 + k}, vcc\n    s_min_u32 s{64 + k}, s{64 + k}, s22\n    s_mulk_i32 s{64 + k}, {RS}")
    e(f"""
    v_sub_u32 v{vQ16}, v{vQ16}, v{vC4}
    v_add_u32 v{vNp}, v{vNp}, v{vQ16}
    v_add_u32 v{vaN[0]}, s64, v44
    v_add_u32 v{vaN[1]}, s65, v44
    v_mov_b32 v{vaE}, {ZR}
    s_mov_b32 exec_lo, 0
    v_add_u32 v{vaN[0]}, s66, v44
    v_add_u32 v{vaN[1]}, s67, v44
    s_mov_b32 exec_lo, 0x55555555
    s_mov_b32 exec_hi, 0xaaaaaaaa
    v_bfe_u32 v45, v1, 1, 2
    v_mul_u32_u24 v45, s77, v45
    s_add_u32 s36, s60, {EA // 2}
    v_add_u32 v45, s36, v45
    v_and_b32 v{vaE}, 0x18, v1
    v_lshl_add_u32 v{vaE}, v45, 1, v{vaE}
    s_mov_b64 exec, -1
    ds_read2_b64 {vr(vAe, 4)}, v{vaE} offset0:0 offset1:0
    s_movk_i32 s36, 0x3f80
    s_mov_b32 s37, 0
    v_and_b32 v45, 0x30, v7
    v_lshlrev_b64 {vr(vI, 2)}, v45, s[36:37]
    v_mov_b64 {vr(vAc[0], 2)}, 0
    v_mov_b64 {vr(vAc[1], 2)}, 0
    s_sub_u32 s34, {NT}, s35
    s_lshl_b32 s38, s34, 4
    s_sub_u32 s38, {SO}, s38
    s_lshl_b32 s39, s34, 5
    s_waitcnt lgkmcnt(4)
    v_cmp_ne_u32 {sr(sFM[0], 2)}, 0, v46
    v_cmp_ne_u32 {sr(sFM[1], 2)}, 0, v47
    s_lshr_b32 s36, s21, 3
    s_and_b32 s36, s36, s{sFirst}
    s_cbranch_scc1 K2_NOB
    s_barrier
K2_NOB:
    ds_read_b64 {vr(vQ, 2)}, v{vaN[0]}
    ds_read_b64 {vr(vQ + 2, 2)}, v{vaN[1]}
    s_mov_b32 s{sFirst}, 0
""")
    for y in range(2):
        e(f"""
    s_lshl_b32 s{sFM[y]}, s{sFM[y]}, s34
    s_lshl_b32 s{sFM[y] + 1}, s{sFM[y] + 1}, s34
    s_or_b32 s36, s{sFM[y]}, s{sFM[y] + 1}
    s_lshr_b32 s37, s36, 1
    s_or_b32 s{sEV[y]}, s36, s37
""")
    stamp(12, 4, 1)
    e(f"""
    s_or_b32 s34, s34, 0x10000
    s_bitcmp1_b32 s35, 0
    s_waitcnt vmcnt(8) lgkmcnt(0)
""")
    stamp(6, 4, 1); dbg(3)
    e("    s_cbranch_scc1 K2_PA1")
    for a in range(2):
        if a: e("K2_PA1:")
        for q in range(4): e(mfma4(vD[a], vP[a], q))
        e(f"    s_cmp_lt_u32 s35, 3\n    s_cbranch_scc1 K2_NGP{a}")
        gathers(vP[a], vSO)
        e(f"K2_NGP{a}:\n    s_nop 1\n{mfma32(vD[a])}")
        if not a: e("    s_branch K2_PAD")
    e(f"""
K2_PAD:
    ds_read_b128 {vr(vSO, 4)}, v{vaS[0]} offset:{SO + 48}
    ds_read_b128 {vr(vSO + 4, 4)}, v{vaS[1]} offset:{SO + 48}
    ds_read2_b64 {vr(vAe, 4)}, v{vaE} offset0:4 offset1:4
""")
    for y in range(2):
        e(f"""
    s_bfe_i32 exec_lo, s{sFM[y]}, s34
    s_bfe_i32 exec_hi, s{sFM[y] + 1}, s34
    ds_read_b64 {vr(vQ + 2 * y, 2)}, v{vaN[y]} offset:{RS}
""")
    e(f"""
    s_mov_b32 exec_lo, 0x55555555
    s_mov_b32 exec_hi, 0xaaaaaaaa
    v_subrev_u32 v{vaE}, s39, v{vaE}
    s_mov_b64 exec, -1
    v_add_u32 v{vaS[0]}, s38, v{vaS[0]}
    v_add_u32 v{vaS[1]}, s38, v{vaS[1]}
""")
    prio(PRIO_0)
    order = [10, 11, 9, 12, 8, 13, 7, 14, 6, 15, 5, 4, 3, 2, 1]
    for Lv in order:
        e(f"    s_cmp_eq_u32 s35, {Lv}\n    s_cbranch_scc1 {'K2_S' if Lv < 4 and OPT['wpf'] else 'K2_T'}{NT - Lv}")
    e("K2_LOOP:")
    for t in range(NT):
        tile(t)
    e("K2_LDONE:")
    wpf = OPT["wpf"]
    xbu = (lambda T, s: 16 + 16 * T + 4 * s) if wpf else (lambda T, s: 32 + 16 * T + 4 * s)
    vUa, vWt = (64, 108) if wpf else (vU, 16)
    e(f"""
    s_cmp_ge_u32 s21, 8
    s_cbranch_scc1 K2_LD2
    s_lshl_b32 s36, s21, 12
    s_add_u32 s36, s36, {WUT}
    s_add_u32 s37, s36, {WUB - WUT}
""")
    if wpf: e("    s_waitcnt vmcnt(0)")
    for s in range(0 if wpf else 4):
        e(f"    buffer_load_dwordx4 {vr(16 + 4 * s, 4)}, v7, s[4:7], s36 offen offset:{1024 * s}")
    for s in range(4):
        e(f"    buffer_load_dwordx4 {vr(92 + 4 * s, 4)}, v7, s[4:7], s37 offen offset:{1024 * s}")
    e("K2_LD2:")
    for y in range(2):
        flush_adds(y)
    e(f"""
    v_mov_b32 v89, {MORE}
    ds_read_b32 v89, v89
""")
    stamp(7, 4, 1); dbg(4)
    e(f"""
    s_cmp_ge_u32 s21, 8
    s_cbranch_scc1 K2_NOU
""")
    x_frags(84, xbu)
    if not wpf: e("    s_waitcnt vmcnt(4)")
    for s in range(4):
        for T in range(3):
            e(f"    s_waitcnt lgkmcnt({11 - 3 * s - T})")
            c = "0" if s == 0 else vr(vUa + 4 * T, 4)
            e(f"    v_mfma_f32_16x16x32_bf16 {vr(vUa + 4 * T, 4)}, {vr(vWt + 4 * s, 4)}, {vr(xbu(T, s), 4)}, {c}")
    e(f"""
    v_mul_u32_u24 v{vFR}, {RB}, v6
    v_lshl_add_u32 v{vFR}, v5, 4, v{vFR}
    v_add_u32 v{vFR}, {AGB}, v{vFR}
    v_lshlrev_b32 v{vFO}, 16, v6
    v_lshl_or_b32 v{vFO}, v5, 3, v{vFO}
    s_lshl_b32 s36, s20, 8
    s_lshl_b32 s37, s21, 5
    s_add_u32 s36, s36, s37
    v_add_u32 v{vFO}, s36, v{vFO}
    s_cmp_lt_u32 s21, 6
    s_cbranch_scc1 K2_NOCA
K2_NOU:
    v_lshrrev_b32 v{vCA}, 4, v0
    v_subrev_u32 v{vCA}, 24, v{vCA}
    v_cvt_f32_u32 v84, v{vNp}
    v_lshlrev_b32 v85, 2, v{vCA}
    v_mul_f32 v84, 0xbe800000, v84
    v_mul_u32_u24 v{vCW}, {RB}, v{vCA}
    v_mul_u32_u24 v{vCA}, {RS}, v{vCA}
    ds_bpermute_b32 v{vCN}, v85, v84
    v_lshl_add_u32 v{vCW}, v6, 4, v{vCW}
    v_lshl_add_u32 v{vCA}, v6, 4, v{vCA}
    v_add_u32 v{vCW}, {AGB}, v{vCW}
    v_add_u32 v{vCA}, {QU}, v{vCA}
K2_NOCA:
    s_waitcnt lgkmcnt(0)
    v_readfirstlane_b32 s{sMoreV}, v89
    s_barrier
""")
    stamp(8, 4, 1)
    e(f"""
    s_cmp_lg_u32 s{sMoreV}, 0
    s_cbranch_scc1 K2_NEXT
    s_cmp_lt_u32 s21, 6
    s_cbranch_scc1 K2_NOCV
""")
    for k in range(4):
        e(f"    ds_read_b128 {vr(16 + 4 * k, 4)}, v{vCA} offset:{AG - QU + 256 * k}\n    ds_read_b64 {vr(8 + 2 * k, 2)}, v{vCA} offset:{256 * k + 8}")
    for k in range(4):
        e(f"    s_waitcnt lgkmcnt({6 - 2 * k})")
        e(f"    v_cvt_f32_f64 v{32 + 2 * k}, {vr(16 + 4 * k, 2)}\n    v_cvt_f32_f64 v{33 + 2 * k}, {vr(18 + 4 * k, 2)}")
        e(f"    v_pk_fma_f32 {vr(32 + 2 * k, 2)}, {vr(8 + 2 * k, 2)}, {vr(vCN, 2)}, {vr(32 + 2 * k, 2)} op_sel_hi:[1,0,1]")
        e(f"    v_cvt_pk_bf16_f32 v{40 + k}, v{32 + 2 * k}, v{33 + 2 * k}")
    e(f"""
    ds_write_b128 v{vCW}, v[40:43]
    s_waitcnt lgkmcnt(0)
K2_NOCV:
    s_barrier
""")
    stamp(13, 4, 1)
    e(f"""
    s_cmp_ge_u32 s21, 8
    s_cbranch_scc1 K2_FIN
""")
    xbf = lambda T, s: 16 + 16 * T + 4 * s
    tmp, outr = 76, 8
    def M(T, s, wait=True):
        if wait: e(f"    s_waitcnt lgkmcnt({11 - 4 * T - s})")
        e(f"    v_mfma_f32_16x16x32_bf16 {vr(vUa + 4 * T, 4)}, {vr(92 + 4 * s, 4)}, {vr(xbf(T, s), 4)}, {vr(vUa + 4 * T, 4)}")
    def sc_(T):
        for m in (2 * T, 2 * T + 1): e(f"    v_pk_mul_f32 {vr(tmp + 2 * m, 2)}, {vr(vUa + 2 * m, 2)}, s[72:73] op_sel_hi:[1,0]")
    def ex_(T, k): e(f"    v_exp_f32 v{tmp + 4 * T + k}, v{tmp + 4 * T + k}")
    def ad_(T):
        for m in (2 * T, 2 * T + 1): e(f"    v_pk_add_f32 {vr(tmp + 2 * m, 2)}, {vr(tmp + 2 * m, 2)}, 1.0 op_sel_hi:[1,0]")
    def rc_(T):
        for k in range(4): e(f"    v_rcp_f32 v{tmp + 4 * T + k}, v{tmp + 4 * T + k}")
    def out_(T):
        for m in (2 * T, 2 * T + 1): e(f"    v_pk_mul_f32 {vr(tmp + 2 * m, 2)}, {vr(tmp + 2 * m, 2)}, {vr(vUa + 2 * m, 2)}")
        for m in (2 * T, 2 * T + 1): e(f"    v_cvt_pk_bf16_f32 v{outr + m}, v{tmp + 2 * m}, v{tmp + 2 * m + 1}")
        e(f"    buffer_store_dwordx2 {vr(outr + 2 * T, 2)}, v{(vFO, 88, 89)[T]}, s[16:19], 0 offen")
    for T in range(3):
        for s in range(4):
            e(f"    ds_read_b128 {vr(xbf(T, s), 4)}, v{vFR} offset:{16 * RB * T + 64 * s}")
    e(f"    v_add_u32 v88, 0x100000, v{vFO}\n    v_add_u32 v89, 0x200000, v{vFO}\n    s_waitcnt vmcnt(0)")
    for s in range(4): M(0, s)
    for s in range(4): M(1, s)
    if OPT["fin"]:
        sc_(0)
        e("    s_waitcnt lgkmcnt(0)")
        for s in range(4): M(2, s, False); ex_(0, s)
        e("    s_nop 0")
        sc_(1)
        for k in range(4): ex_(1, k)
        ad_(0); rc_(0); sc_(2)
        for k in range(4): ex_(2, k)
        out_(0); ad_(1); rc_(1); ad_(2); out_(1); rc_(2); e("    s_nop 0"); out_(2)
    else:
        for s in range(4): M(2, s)
        sc_(0); sc_(1); e("    s_nop 3"); sc_(2)
        for T in range(3):
            for k in range(4): ex_(T, k)
        for T in range(3): ad_(T)
        for T in range(3): rc_(T); e("    s_nop 0"); out_(T)
    e("K2_FIN:")
    dbg_out(1, 7, 6, 6, 'DBGC'); light1(4, 1)
    if OPT["stamps"]:
        stamp(9, 4, 1); e("    s_waitcnt vmcnt(0)"); stamp(10, 4, 1); stamp_out(4, 1)
    e("K2_END:\n    s_endpgm")
    if not OPT["noflush"]:
        for t in range(NT - 1):
            for y in range(2):
                event_block(t, y)
    if OPT["wpf"]:
        for Lv in (1, 2, 3):
            e(f"K2_S{NT - Lv}:"); wut_loads(f"K2_WUT{Lv}"); e(f"    s_branch K2_T{NT - Lv}")
    e(f"""
K2_TAILBLOCKS:
K2_MORE1:
    v_mov_b32 v61, {MORE}
    ds_write_b32 v61, v63
    s_branch K2_MOREB1
K2_MORE2:
    v_mov_b32 v61, {MORE}
    ds_write_b32 v61, v63
    s_branch K2_MOREB2
K2_NEXT:
    s_waitcnt vmcnt(0)
    s_add_u32 s24, s24, s25
    s_branch K2_AGAIN
K2_REDO:
    s_mov_b32 s25, 4
    s_waitcnt vmcnt(0) lgkmcnt(0)
    s_barrier
K2_AGAIN:
    v_lshlrev_b32 v60, 4, v0
    v_mov_b64 v[48:49], 0
    v_mov_b64 v[50:51], 0
    s_cmp_ge_u32 s21, 2
    s_cbranch_scc1 K2_ROUND
    ds_write_b128 v60, v[48:51] offset:{MISC}
    s_waitcnt lgkmcnt(0)
K2_LAST:
    s_branch K2_ROUND
""")

def desc(name, vg, sg):
    e(f"""
.p2align 6
.amdhsa_kernel {name}
  .amdhsa_next_free_vgpr {vg}
  .amdhsa_next_free_sgpr {sg}
  .amdhsa_accum_offset {vg}
  .amdhsa_group_segment_fixed_size 0
  .amdhsa_kernarg_size 72
  .amdhsa_user_sgpr_count 2
  .amdhsa_user_sgpr_kernarg_segment_ptr 1
  .amdhsa_system_sgpr_workgroup_id_x 1
.end_amdhsa_kernel
""")

e(f"""
; @launch kernel=mpnn_bin_kernel grid=(512,1,1) block=(768,1,1) lds={K1_LDS}
; @launch kernel=mpnn_edge_kernel grid=(256,1,1) block=(1024,1,1) lds={K2_LDS}
.amdgcn_target "amdgcn-amd-amdhsa--gfx950"
""")
kernel1()
kernel2()
e('.section .rodata,"a"')
desc("mpnn_bin_kernel", 128 if OPT["stamps"] else 80, 96)
desc("mpnn_edge_kernel", 128, 102 if OPT["stamps"] else 96)
FL_ = {0: "", 1: " sc1", 2: " nt", 3: " sc0 sc1", 4: " sc1 nt", 5: " sc0"}
k2at = next(i for i, l in enumerate(L) if l.startswith("mpnn_edge_kernel:"))
for i, l in enumerate(L):
    c = l.split(";")
    fl = None
    if l.strip().startswith("buffer_store") and " off," not in l:
        fl = FL_[OPT["st1"] if i < k2at else OPT["st2"]]
    elif l.strip().startswith("buffer_load"):
        if i < k2at:
            if any(x in l for x in ("s[24:27]", "s[8:11], s22", "s[32:35]")): fl = " nt" * OPT["nte"]
            elif "s[4:7]" in l: fl = " nt" * OPT["ntx"]
            elif "s[12:15]" in l and "lds" in l: fl = " nt" * OPT["ntw"]
        else:
            if "s[12:15]" in l: fl = " nt" * OPT["ntx2"]
            elif "dwordx3" in l: fl = " nt" * OPT["ntr"]
    if fl:
        body = c[0].rstrip()
        body = body[:-4] + fl + " lds" if body.endswith(" lds") else body + fl
        L[i] = body + ("   ;" + c[1] if len(c) > 1 else "")
open(sys.argv[1], "w").write("\n".join(L) + "\n")
```

```python
import sys, struct, math

def f2u(x): return struct.unpack("<I", struct.pack("<f", x))[0]

OPT = dict(agl=0, t2m=1, olds=1, pf2=0, rab=0, gq=0, gq2=3, gp=1, stg1=0, stg3=0, qpre=0, eal=1, ash=0, dst1=0, fin=1, wpf=0, cpf=4, ps=2, bdl=1, rb=288, st1=0, st2=0, nte=0, ntx=0, ntw=0, ntx2=0, ntr=0, light=0, g1late=0, pf=0, gpos=0, nom4=0, nom32=0, mpos=0, nochk=0, prio1=0, dbg=0, safe=0, stamps=0, prio=1, nogather=0, nocore=0, nolds=0, nomfma=0, noflush=0)
for a in sys.argv[2:]:
    k, v = a.split("="); OPT[k] = int(v)

N, E = 10000, 320000
NB = 256
EPW = 1250
PT    = 0
DESC  = 0x280000
REC   = 0x2C0000
RSTR  = 15488
W2F   = 0x690000
WUT   = W2F + 0x8000
WUB   = WUT + 0x8000
W3F   = WUB + 0x8000
STAMP = W3F + 0x800
WSEND = STAMP + (0x100000 if OPT["stamps"] or OPT["light"] else 0)
NL2E = f2u(-1.4426950408889634)
KC   = f2u(1.0 / (2.0 ** 31 * math.log(2.0)))
NSC  = f2u(-2.0 ** -31)

L = []
def e(s=""):
    for ln in s.strip("\n").split("\n"):
        L.append(ln)
def vr(a, n): return f"v[{a}:{a + n - 1}]" if n > 1 else f"v{a}"
def sr(a, n): return f"s[{a}:{a + n - 1}]" if n > 1 else f"s{a}"

def srd(s, nrec, w3=0x20000):
    e(f"    s_mov_b32 s{s + 2}, {nrec:#x}\n    s_mov_b32 s{s + 3}, {w3:#x}")

def scan64(v):
    for c in ("row_shr:1 row_mask:0xf", "row_shr:2 row_mask:0xf", "row_shr:4 row_mask:0xf", "row_shr:8 row_mask:0xf",
              "row_bcast:15 row_mask:0xa", "row_bcast:31 row_mask:0xc"):
        e(f"    s_nop 1\n    v_add_u32_dpp v{v}, v{v}, v{v} {c} bank_mask:0xf")

NST = 16
def light0():
    if OPT["light"]: e("    s_memrealtime s[80:81]")
def light1(srd_s, kern):
    if not OPT["light"]: return
    e(f"""
    s_waitcnt vmcnt(0)
    s_memrealtime s[82:83]
    s_mov_b32 s{srd_s + 2}, {WSEND:#x}
    s_lshl_b32 s90, s2, 4
    s_add_u32 s90, s90, s21
    s_lshl_b32 s90, s90, 3
    s_add_u32 s90, s90, {STAMP + kern * 0x80000}
    s_mov_b64 exec, 1
    s_waitcnt lgkmcnt(0)
    v_mov_b32 v2, s80
    v_mov_b32 v3, s82
    buffer_store_dwordx2 v[2:3], off, s[{srd_s}:{srd_s + 3}], s90
""")
def dbg(slot):
    if not OPT["dbg"]: return
    e(f"    s_memrealtime s[{80 + 2 * slot}:{81 + 2 * slot}]")
def dbg_out(kern, wv, base, n, lab):
    if not OPT["dbg"]: return
    e(f"""
    s_waitcnt vmcnt(0)
    s_memrealtime s[{80 + 2 * (n - 1)}:{81 + 2 * (n - 1)}]
    s_cmp_lg_u32 s2, 200
    s_cbranch_scc1 {lab}
    s_cmp_lg_u32 s21, {wv}
    s_cbranch_scc1 {lab}
    s_load_dwordx2 s[92:93], s[0:1], 56
    s_waitcnt lgkmcnt(0)
    s_add_u32 s92, s92, {512 * (1 - kern)}
    s_addc_u32 s93, s93, 0
    s_mov_b32 s94, 256
    s_mov_b32 s95, 0x20000
    s_mov_b64 exec, 1
""")
    for i in range(n):
        e(f"    v_mov_b32 v127, s{80 + 2 * i}\n    buffer_store_dword v127, off, s[92:95], 0 offset:{4 * (base + i)}\n    s_waitcnt vmcnt(0)")
    e(f"{lab}:")
SMAP = {}
def stamp(i, srd_s, kern):
    if not OPT["stamps"]: return
    sel = [0, 1, 2, 3, 4, 5] if kern == 0 else {1: [0, 1, 3, 4, 5, 11, 6, 7, 8, 9, 10], 2: [0, 2, 4, 5, 12, 6, 7, 8, 13, 9, 10], 3: [0] + list(range(101, 111))}[OPT["stamps"]]
    if i not in sel: return
    r = 80 + 2 * sel.index(i)
    SMAP[(kern, i)] = r
    if i == 0: e("    s_memrealtime vcc\n    s_waitcnt lgkmcnt(0)\n    v_writelane_b32 v127, vcc_lo, 14")
    e(f"    s_memtime s[{r}:{r + 1}]")
def stamp_out(srd_s, kern):
    if not OPT["stamps"]: return
    e("    s_memrealtime vcc\n    s_waitcnt lgkmcnt(0)\n    v_writelane_b32 v127, vcc_lo, 15")
    for (k, i), r in SMAP.items():
        if k == kern: e(f"    v_writelane_b32 v127, s{r}, {i % 100}")
    e(f"""
    s_mov_b64 exec, 0xffff
    s_lshl_b32 s3, s2, 4
    s_add_u32 s3, s3, s21
    s_lshl_b32 s3, s3, 6
    s_add_u32 s3, s3, {STAMP + kern * 0x80000}
    v_mbcnt_lo_u32_b32 v125, -1, 0
    v_lshlrev_b32 v125, 2, v125
    buffer_store_dword v127, v125, s[{srd_s}:{srd_s + 3}], s3 offen
    s_mov_b64 exec, -1
""")

K1_CNT, K1_ST, K1_STG = 0, 1024, 2048
K1_WL, K1_XL = 0, 32768
K1_LDS = 66 * 1024
def kernel1():
    e("""
.text
.globl mpnn_bin_kernel
.p2align 8
.type mpnn_bin_kernel,@function
mpnn_bin_kernel:
    s_load_dwordx4 s[8:11], s[0:1], 16
    s_load_dwordx4 s[4:7], s[0:1], 0        ; x, e_attr
    s_load_dwordx4 s[12:15], s[0:1], 32
    s_load_dwordx2 s[16:17], s[0:1], 64     ; ws
    s_cmp_ge_u32 s2, 512
    s_cbranch_scc1 K1_END
    v_lshrrev_b32 v2, 6, v0
    v_and_b32 v1, 63, v0
    v_readfirstlane_b32 s21, v2
    s_and_b32 s20, s2, 7
    s_lshl_b32 s20, s20, 5
    s_lshr_b32 s3, s2, 4
    s_or_b32 s20, s20, s3
    s_lshr_b32 s3, s2, 5
    s_xor_b32 s3, s3, s2
""")
    stamp(0, 16, 0); light0()
    dbg(0)
    e("""
    s_bitcmp1_b32 s3, 3
    s_cbranch_scc1 K1_GEMM
    ; ---------------- binning workgroup (waves 0..9) ----------------
    s_cmp_ge_u32 s21, 10
    s_cbranch_scc1 K1_SPARE
    s_mul_i32 s22, s20, 5000                ; byte offset of this workgroup's src/dst slice
    s_lshl_b32 s23, s22, 1                  ; e_attr slice
    v_lshlrev_b32 v3, 3, v0
    v_lshlrev_b32 v4, 4, v0
    v_cmp_gt_u32 s[44:45], 625, v0
""".replace("v_cmp_gt_u32 s[44:45], 625, v0", "v_cmp_gt_u32 vcc, 625, v0"))
    e("    s_mov_b32 s26, %#x\n    s_mov_b32 s27, 0x20000\n    s_mov_b64 s[44:45], vcc\n    s_mov_b64 exec, vcc\n    s_waitcnt lgkmcnt(0)\n    s_mov_b32 s24, s10\n    s_mov_b32 s25, s11" % (E * 4))
    e("    buffer_load_dwordx2 v[6:7], v3, s[24:27], s22 offen      ; dst")
    srd(8, E * 4)
    e("    s_mov_b32 s32, s6\n    s_mov_b32 s33, s7"); srd(32, E * 8)
    def se():
        e("""
    buffer_load_dwordx2 v[8:9], v3, s[8:11], s22 offen       ; src
    buffer_load_dwordx4 v[10:13], v4, s[32:35], s23 offen
""")
    if not OPT["dst1"]: se()
    e(f"""
    s_mov_b64 exec, -1
    v_mov_b64 v[20:21], 0
    v_mov_b64 v[22:23], 0
    s_cmp_lg_u32 s21, 0
    s_cbranch_scc1 K1_NOZ
    ds_write_b128 v4, v[20:23] offset:{K1_CNT}
K1_NOZ:
    s_waitcnt lgkmcnt(0)
    s_barrier
    s_mov_b64 exec, s[44:45]
""")
    if OPT["dst1"]: se()
    e("    s_mov_b64 exec, -1\n    v_mov_b32 v24, 1\n    v_lshlrev_b32 v5, 4, v1")
    srd(16, WSEND)
    e(f"""
    s_mul_i32 s38, s20, {RSTR}
    s_add_u32 s38, s38, {REC}
    s_add_u32 s39, s38, 10240
    s_mov_b64 exec, s[44:45]
    s_waitcnt vmcnt(2)
""")
    stamp(1, 16, 0)
    dbg(1)
    e(f"""
    v_lshlrev_b32 v14, 2, v6
    v_lshlrev_b32 v15, 2, v7
    v_and_b32 v14, 0x3fc, v14
    v_and_b32 v15, 0x3fc, v15
    ds_add_rtn_u32 v16, v14, v24 offset:{K1_CNT}
    ds_add_rtn_u32 v17, v15, v24 offset:{K1_CNT}
    v_lshrrev_b32 v6, 8, v6
    v_lshrrev_b32 v7, 8, v7
    v_lshlrev_b32 v6, 26, v6
    v_lshlrev_b32 v7, 26, v7
    s_mov_b64 exec, -1
    s_waitcnt lgkmcnt(0)
    s_barrier
""")
    stamp(2, 16, 0)
    e(f"""
    ds_read_b128 v[20:23], v5 offset:{K1_CNT}
    s_waitcnt lgkmcnt(0)
    v_add_u32 v25, v20, v21
    v_add_u32 v26, v25, v22
    v_add_u32 v27, v26, v23
    s_nop 1
    v_add_u32_dpp v28, v27, v27 row_shr:1 row_mask:0xf bank_mask:0xf bound_ctrl:1
""")
    for c in ("row_shr:2 row_mask:0xf", "row_shr:4 row_mask:0xf", "row_shr:8 row_mask:0xf", "row_bcast:15 row_mask:0xa", "row_bcast:31 row_mask:0xc"):
        e(f"    s_nop 1\n    v_add_u32_dpp v28, v28, v28 {c} bank_mask:0xf")
    e(f"""
    v_sub_u32 v28, v28, v27
    v_add_u32 v29, v28, v20
    v_add_u32 v30, v28, v25
    v_add_u32 v31, v28, v26
    ds_write_b128 v5, v[28:31] offset:{K1_ST}
    ds_read_b32 v18, v14 offset:{K1_ST}
    ds_read_b32 v19, v15 offset:{K1_ST}
    s_waitcnt vmcnt(1)
    v_lshl_or_b32 v8, v8, 3, v6
    v_lshl_or_b32 v9, v9, 3, v7
    s_mov_b64 exec, s[44:45]
    s_waitcnt lgkmcnt(0)
    v_add_u32 v18, v18, v16
    v_add_u32 v19, v19, v17
    v_mul_u32_u24 v18, 12, v18
    v_mul_u32_u24 v19, 12, v19
    ds_write_b32 v18, v8 offset:{K1_STG + 8}
    ds_write_b32 v19, v9 offset:{K1_STG + 8}
    v_add_u32 v18, {K1_STG}, v18
    v_add_u32 v19, {K1_STG}, v19
    s_waitcnt vmcnt(0)
    ds_write2_b32 v18, v10, v11 offset0:0 offset1:1
    ds_write2_b32 v19, v12, v13 offset0:0 offset1:1
    s_mov_b64 exec, -1
    s_cmp_lg_u32 s21, 9
    s_cbranch_scc1 K1_NOD
    v_lshl_or_b32 v32, v20, 16, v28
    v_lshl_or_b32 v33, v21, 16, v29
    v_lshl_or_b32 v34, v22, 16, v30
    v_lshl_or_b32 v35, v23, 16, v31
    s_lshl_b32 s36, s20, 4
    s_add_u32 s36, s36, {DESC}
    v_lshlrev_b32 v36, 12, v1
    buffer_store_dwordx4 v[32:35], v36, s[16:19], s36 offen
K1_NOD:
    s_waitcnt lgkmcnt(0)
    s_barrier
""")
    stamp(3, 16, 0)
    e(f"""
    ds_read_b128 v[20:23], v4 offset:{K1_STG}
    s_cmp_ge_u32 s21, 5
    s_cbranch_scc1 K1_C1
    ds_read_b128 v[24:27], v4 offset:{K1_STG + 10240}
    s_waitcnt lgkmcnt(0)
    buffer_store_dwordx4 v[24:27], v4, s[16:19], s39 offen
K1_C1:
    s_waitcnt lgkmcnt(0)
    buffer_store_dwordx4 v[20:23], v4, s[16:19], s38 offen
""")
    light1(16, 0)
    if OPT["stamps"]:
        stamp(4, 16, 0); e("    s_waitcnt vmcnt(0)"); stamp(5, 16, 0); stamp_out(16, 0)
    e(f"""
    s_endpgm
K1_GEMM:
    s_lshr_b32 s20, s2, 4
    s_lshl_b32 s20, s20, 3
    s_and_b32 s3, s2, 7
    s_or_b32 s20, s20, s3
    v_lshrrev_b32 v2, 4, v1                 ; g
    v_and_b32 v3, 15, v1                    ; n / i
    s_cmp_ge_u32 s20, 209
    s_cbranch_scc1 K1_JOBS
    ; x -> LDS: rows 4w + g, chunk (l%16) ^ (row & 15)
    v_lshrrev_b32 v5, 4, v0
    v_xor_b32 v6, v5, v0
    v_and_b32 v6, 15, v6
    s_mul_i32 s25, s20, 48
    v_add_u32 v5, s25, v5
    v_lshlrev_b32 v5, 8, v5
    v_lshl_or_b32 v5, v6, 4, v5
    s_lshl_b32 s27, s21, 10
    s_add_u32 s28, s27, {K1_XL}
    s_mov_b32 m0, s28
    ; W1 -> LDS: row (l/16), chunk (l%16) ^ ((l/16)<<1) ^ (8 if bit 3 of the row)
    v_lshlrev_b32 v4, 1, v2
    v_xor_b32 v4, v4, v3
    v_lshlrev_b32 v4, 4, v4
    v_lshl_or_b32 v4, v2, 8, v4
    s_lshl_b32 s28, s21, 6
    s_and_b32 s28, s28, 0x80
    v_xor_b32 v4, s28, v4
    s_waitcnt lgkmcnt(0)
""")
    srd(4, N * 256)
    srd(12, 128 * 256)
    e("    buffer_load_dwordx4 v5, s[4:7], 0 offen lds")
    for m in range(3):
        if m == 2:
            e("    s_cmp_ge_u32 s21, 8\n    s_cbranch_scc1 K1_DMAD")
        e(f"""
    s_mov_b32 m0, s27
    s_nop 0
    buffer_load_dwordx4 v4, s[12:15], s27 offen lds
""")
        if m < 2: e("    s_add_u32 s27, s27, 12288")
    e("K1_DMAD:")
    srd(16, N * 256)
    e(f"""
    s_lshr_b32 s23, s21, 2
    s_and_b32 s24, s21, 3
    v_lshrrev_b32 v24, 2, v3                ; r'
    v_and_b32 v25, 3, v3                    ; c'
    v_and_b32 v26, 1, v2
    v_lshl_or_b32 v26, v26, 2, v24          ; h(k)
    v_lshl_add_u32 v27, v2, 3, v24          ; 8g + r'
    v_lshlrev_b32 v27, 8, v27
    v_lshl_or_b32 v27, v25, 3, v27
    s_lshl_b32 s27, s24, 1
    v_xor_b32 v26, s27, v26
    v_lshl_add_u32 v28, v26, 5, v27
    v_xor_b32 v29, 32, v28
    ; x fragments
    v_xor_b32 v30, v2, v3
    v_lshlrev_b32 v30, 4, v30
    v_lshl_or_b32 v30, v3, 8, v30
    s_lshl_b32 s27, s23, 12
    s_add_u32 s27, s27, {K1_XL}
    v_add_u32 v30, s27, v30
    v_xor_b32 v31, 64, v30
    v_xor_b32 v32, 0x80, v30
    v_xor_b32 v33, 0xc0, v30
    s_lshl_b32 s26, s23, 4
    s_add_u32 s25, s25, s26
    v_add_u32 v5, s25, v3
    v_lshlrev_b32 v5, 8, v5
    v_lshl_or_b32 v5, v2, 4, v5
    s_lshl_b32 s27, s24, 6
    v_add_u32 v5, s27, v5
    s_mov_b32 s28, {NL2E:#x}
    s_waitcnt vmcnt(0)
    s_barrier
""")
    stamp(3, 16, 0)
    for s in range(4):
        e(f"    ds_read_b128 {vr(8 + 4 * s, 4)}, v{30 + s}")
        for f in range(2):
            for u2 in range(2):
                e(f"    ds_read_b64_tr_b16 {vr(36 + 16 * f + 4 * s + 2 * u2, 2)}, v{28 + f} offset:{s * 8192 + u2 * 1024}")
    for s in range(4):
        for f in range(2):
            left = 20 - (5 * s + 3 + 2 * f)
            e(f"    s_waitcnt lgkmcnt({min(left, 15)})")
            c = "0" if s == 0 else vr(68 + 4 * f, 4)
            e(f"    v_mfma_f32_16x16x32_bf16 {vr(68 + 4 * f, 4)}, {vr(36 + 16 * f + 4 * s, 4)}, {vr(8 + 4 * s, 4)}, {c}")
    e("    s_nop 5")
    for f in range(2):
        for h in range(2):
            r = 68 + 4 * f + 2 * h
            e(f"    v_pk_mul_f32 {vr(r, 2)}, {vr(r, 2)}, s[28:29] op_sel_hi:[1,0]")
        for h in range(2):
            r = 68 + 4 * f + 2 * h
            e(f"    v_cvt_pk_bf16_f32 v{76 + 2 * f + h}, v{r}, v{r + 1}")
    e(f"    buffer_store_dwordx4 v[76:79], v5, s[16:19], 0 offen")
    light1(16, 0)
    if OPT["stamps"]:
        srd(16, WSEND); stamp(4, 16, 0); e("    s_waitcnt vmcnt(0)"); stamp(5, 16, 0); stamp_out(16, 0)
    e(f"""
    s_endpgm
K1_JOBS:
    s_sub_u32 s23, s20, 209
    s_mul_i32 s23, s23, 12
    s_add_u32 s23, s23, s21
    s_waitcnt lgkmcnt(0)
""")
    srd(16, WSEND)
    e(f"""
    s_cmp_ge_u32 s23, 96
    s_cbranch_scc1 K1_JOB2
    s_lshr_b32 s24, s23, 5
    s_bfe_u32 s25, s23, 0x30002             ; f
    s_and_b32 s26, s23, 3                   ; s
    s_cmp_eq_u32 s24, 0
    s_cselect_b32 s28, s12, s14
    s_cselect_b32 s29, s13, s15
    s_mov_b32 s30, {256 * 256}
    s_mov_b32 s31, 0x20000
    ; column
    s_lshl_b32 s33, s25, 4                  ; 16 f
    v_add_u32 v4, s33, v3
    v_lshlrev_b32 v4, 1, v4
    ; row
    v_lshlrev_b32 v5, 11, v2                ; 8 g rows
    v_lshrrev_b32 v7, 1, v2
    v_lshlrev_b32 v7, 12, v7
    v_and_b32 v6, 1, v2
    v_lshl_or_b32 v7, v6, 9, v7             ; 16 (g>>1) + 2 (g&1) rows
    s_cmp_eq_u32 s24, 2
    s_cselect_b64 vcc, -1, 0
    s_cselect_b32 s32, 10, 13
    s_movk_i32 s33, 512
    s_cmovk_i32 s33, 8192
    s_cselect_b32 s34, {NSC:#x}, 1.0
    v_cndmask_b32 v5, v5, v7, vcc
    v_add_u32 v4, v4, v5
    s_lshl_b32 s40, s26, s32
    s_cmp_eq_u32 s24, 1
    s_cselect_b32 s36, 0, 0x8000
    s_add_u32 s40, s40, s36
    s_add_u32 s41, s40, s33
    s_add_u32 s42, s41, s33
    s_add_u32 s43, s42, s33
""")
    for m in range(8):
        e(f"    buffer_load_ushort v{8 + m}, v4, s[28:31], s{40 + m // 2} offen offset:{(m & 1) * 256}")
    e(f"""
    s_lshl_b32 s37, s23, 10
    s_add_u32 s37, s37, {W2F}
    v_lshlrev_b32 v6, 4, v1
    s_mov_b32 s38, 0x07060302
    s_waitcnt vmcnt(0)
""")
    for m in range(8):
        e(f"    v_lshlrev_b32 v{8 + m}, 16, v{8 + m}\n    v_mul_f32 v{8 + m}, s34, v{8 + m}")
    for m in range(4):
        e(f"    v_perm_b32 v{16 + m}, v{9 + 2 * m}, v{8 + 2 * m}, s38")
    e(f"""
    buffer_store_dwordx4 v[16:19], v6, s[16:19], s37 offen
    s_endpgm
K1_JOB2:
    s_cmp_ge_u32 s23, 98
    s_cbranch_scc1 K1_JOB3
    s_sub_u32 s24, s23, 96                  ; c
    s_mov_b32 s14, {260 * 256}
    s_mov_b32 s15, 0x20000
    v_and_b32 v2, 31, v1
    v_lshrrev_b32 v3, 5, v1
    v_lshl_or_b32 v2, v2, 1, v3             ; p & 63
    v_and_b32 v4, 0x23, v2
    v_bfe_u32 v5, v2, 2, 1
    v_lshl_or_b32 v4, v5, 4, v4
    v_bfe_u32 v5, v2, 3, 2
    v_lshl_or_b32 v4, v5, 2, v4             ; feature & 63
    v_lshlrev_b32 v4, 1, v4
    s_lshl_b32 s25, s24, 7
    s_add_u32 s25, s25, {256 * 256}
""")
    for d in range(4):
        e(f"    buffer_load_ushort v{8 + d}, v4, s[12:15], s25 offen offset:{d * 256}")
    e(f"""
    s_lshl_b32 s37, s24, 10
    s_add_u32 s37, s37, {W3F}
    v_lshlrev_b32 v6, 4, v1
    s_mov_b32 s34, {NL2E:#x}
    s_waitcnt vmcnt(0)
""")
    for d in range(4):
        e(f"    v_lshlrev_b32 v{8 + d}, 16, v{8 + d}\n    v_mul_f32 v{8 + d}, s34, v{8 + d}")
    e("""
    v_cvt_pk_bf16_f32 v16, v8, v9
    v_cvt_pk_bf16_f32 v17, v10, v11
    v_lshlrev_b32 v12, 16, v16
    v_and_b32 v13, 0xffff0000, v16
    v_lshlrev_b32 v14, 16, v17
    v_and_b32 v15, 0xffff0000, v17
    v_sub_f32 v8, v8, v12
    v_sub_f32 v9, v9, v13
    v_sub_f32 v10, v10, v14
    v_sub_f32 v11, v11, v15
    v_cvt_pk_bf16_f32 v18, v8, v9
    v_cvt_pk_bf16_f32 v19, v10, v11
    buffer_store_dwordx4 v[16:19], v6, s[16:19], s37 offen
    s_endpgm
K1_JOB3:
    s_cmp_lg_u32 s23, 98
    s_cbranch_scc1 K1_END
    v_mov_b32 v8, 0
    v_lshlrev_b32 v6, 2, v1
""")
    e(f"""
    s_mov_b32 s37, {PT + N * 256}
    buffer_store_dword v8, v6, s[16:19], s37 offen
K1_END:
    s_endpgm
K1_SPARE:
""")
    if OPT["cpf"]:
        e(f"""
    s_getpc_b64 s[24:25]
K1_PC:
    s_and_b32 s22, s20, 31
    s_lshl_b32 s22, s22, 1
    s_sub_u32 s23, s21, 10
    s_add_u32 s22, s22, s23
    s_mul_i32 s22, s22, {OPT["cpf"] * 64}
    v_lshl_add_u32 v2, v1, 6, s22
    v_min_u32 v2, K2_LAST - mpnn_edge_kernel, v2
    v_add_u32 v2, mpnn_edge_kernel - K1_PC, v2
    v_mov_b32 v3, s25
    v_add_co_u32 v2, vcc, s24, v2
    s_nop 1
    v_addc_co_u32 v3, vcc, 0, v3, vcc
    s_bfm_b64 exec, {OPT["cpf"]}, 0
    global_load_dword v4, v[2:3], off
""")
    e("    s_endpgm")

RS = 1040
RB = OPT["rb"]
CAP = 2048
MISC = 0
ZR, CNT, MORE, FL = 0, 768, 1024, 1088
SO = 2048
EA = SO + CAP * 4
W3L = EA + CAP * 8
QU = W3L + 2048
AG = QU + 41 * RS
XL = (AG + 2 * 16384 + 11 * 1024 + 255) // 256 * 256
AGB = XL
K2_LDS = AGB + 48 * RB
PADV = N * 8
S16MAX = (CAP // 4 - 8) * 16
NT = 16
NK = 6
vSO, vP, vD, vE, vAe, vBw, vQ, vNp, vAc, vI = 8, (16, 24), (32, 92), 48, 64, 68, 72, 126, (80, 82), 84
vaS, vaE, vaN = (86, 87), 88, (90, 91)
vU = 108
vR, vN4 = 60, (84, 85, 88, 89, 90, 91)
vC4, vQ16, vE16, vS16 = 120, 121, 122, 123
vCA, vCW, vCN, vFR, vFO = 120, 121, 122, 124, 125
sM = [40 + 2 * k for k in range(NK)]
sFM, sEV = (28, 30), (32, 33)
sFirst, sMoreV, sMM = 56, 57, 58
M9 = "0x01ff01ff"
KCOP = "s[26:27], s[26:27] op_sel_hi:[1,0,0] clamp"

def flush_adds(y):
    t = vE + 8 * y
    e(f"""
    v_cvt_f64_f32 {vr(t, 2)}, v{vAc[y]}
    v_cvt_f64_f32 {vr(t + 2, 2)}, v{vAc[y] + 1}
    ds_add_f64 v{vaN[y]}, {vr(t, 2)} offset:{AG - QU}
    ds_add_f64 v{vaN[y]}, {vr(t + 2, 2)} offset:{AG - QU + 8}
""")

def exec_bit(y, t):
    e(f"    s_bfe_i32 exec_lo, s{sFM[y]}, {0x10000 | t:#x}\n    s_bfe_i32 exec_hi, s{sFM[y] + 1}, {0x10000 | t:#x}")

def event_block(t, y):
    e(f"K2_EV{t}_{y}:")
    exec_bit(y, t)
    e(f"    s_cbranch_execz K2_EQ{t}_{y}")
    flush_adds(y)
    e(f"""
    v_add_u32 v{vaN[y]}, {RS}, v{vaN[y]}
    v_mov_b64 {vr(vAc[y], 2)}, 0
K2_EQ{t}_{y}:
""")
    if t + 2 < NT:
        exec_bit(y, t + 1)
        e(f"    ds_read_b64 {vr(vQ + 2 * y, 2)}, v{vaN[y]} offset:{RS}")
    e(f"    s_mov_b64 exec, -1\n    s_branch K2_EB{t}_{y}")

def gather_lines(dst, adr):
    out = []
    for q in range(4):
        for y in range(2):
            a = adr + 4 * y + q
            pre = f"    v_min_u32 v{a}, {PADV}, v{a}\n    v_and_b32 v{a}, -8, v{a}\n" if OPT["safe"] else ""
            out.append(pre + f"    buffer_load_dword v{dst + 2 * q + y}, v{a}, s[8:11], 0 offen")
    return out
def gathers(dst, adr):
    for l in gather_lines(dst, adr): e(l)

def mfma4(D, P, q): return f"    v_mfma_f32_4x4x4_16b_bf16 {vr(D + 4 * q, 4)}, {vr(vI, 2)}, {vr(P + 2 * q, 2)}, {vr(vQ, 4)}"
def mfma32(D): return f"    v_mfma_f32_32x32x16_bf16 {vr(D, 16)}, {vr(vAe, 4)}, {vr(vBw, 4)}, {vr(D, 16)}"

def core_lines(D):
    Ee = vE
    def p(r): return vr(r, 2)
    ex = [f"    v_exp_f32 v{Ee + k}, v{D + k}" for k in range(16)]
    sc = [f"    v_pk_fma_f32 {p(Ee + 2 * m)}, {p(Ee + 2 * m)}, {KCOP}" for m in range(8)]
    seq = [
        lambda o: f"v_pk_mul_f32 {p(D + o)}, {p(D + o)}, {p(Ee + o + 4)}",
        lambda o: f"v_pk_mul_f32 {p(D + o + 8)}, {p(D + o + 8)}, {p(Ee + o + 12)}",
        lambda o: f"v_pk_fma_f32 {p(D + o)}, {p(D + o + 4)}, {p(Ee + o)}, {p(D + o)}",
        lambda o: f"v_pk_fma_f32 {p(D + o + 8)}, {p(D + o + 12)}, {p(Ee + o + 8)}, {p(D + o + 8)}",
        lambda o: f"v_pk_mul_f32 {p(Ee + o)}, {p(Ee + o)}, {p(Ee + o + 4)}",
        lambda o: f"v_pk_mul_f32 {p(Ee + o + 8)}, {p(Ee + o + 8)}, {p(Ee + o + 12)}",
        lambda o: f"v_pk_mul_f32 {p(Ee + o + 4)}, {p(Ee + o)}, {p(Ee + o + 8)}",
        lambda o: f"v_pk_mul_f32 {p(D + o)}, {p(D + o)}, {p(Ee + o + 8)}",
        lambda o: f"v_rcp_f32 v{Ee + o + 4}, v{Ee + o + 4}",
        lambda o: f"v_rcp_f32 v{Ee + o + 5}, v{Ee + o + 5}",
        lambda o: f"v_pk_fma_f32 {p(D + o)}, {p(D + o + 8)}, {p(Ee + o)}, {p(D + o)}",
        lambda o: f"v_pk_fma_f32 {p(vAc[o // 2])}, {p(D + o)}, {p(Ee + o + 4)}, {p(vAc[o // 2])}",
    ]
    rest = ["    " + fn(o) for fn in seq for o in (0, 2)]
    if OPT["nocore"]: return ["    s_nop 0"] * 16, [], []
    return ex, sc, rest

PRIO_0, PRIO_AT = {0: (2, {NT - 7: 1, NT - 3: 0}), 1: (2, {NT - 2: 1, NT - 1: 0}), 2: (2, {NT - 4: 1, NT - 1: 0}), 3: (3, {NT - 3: 2, NT - 2: 1, NT - 1: 0}),
                   4: (3, {NT - 7: 2, NT - 3: 1, NT - 1: 0}), 5: (2, {NT - 5: 1, NT - 2: 0}), 6: (3, {NT - 9: 2, NT - 4: 1, NT - 1: 0})}[OPT["ps"]]
def tile(t):
    a, r = t % 2, NT - t
    ex, sc, rest = core_lines(vD[a])
    Dn, Pn = vD[1 - a], vP[1 - a]
    e(f"K2_T{t}:")
    if t in PRIO_AT: prio(PRIO_AT[t])
    wait = [f"    s_waitcnt vmcnt({8 if r >= 3 else 0}) lgkmcnt(0)"] if r >= 2 else []
    m4 = [mfma4(Dn, Pn, q) for q in range(4)] if r >= 2 and not OPT["nomfma"] else [""] * 4
    m32 = [mfma32(Dn)] if r >= 2 and not OPT["nomfma"] else []
    gl = gather_lines(Pn, vSO) if r >= 4 and not OPT["nogather"] else []
    if r == 4 and OPT["wpf"]:
        gl = [f"    s_cmp_ge_u32 s21, 8\n    s_cbranch_scc1 K2_WUT\n    s_lshl_b32 s36, s21, 12\n    s_add_u32 s36, s36, {WUT}\n" +
              "\n".join(f"    buffer_load_dwordx4 {vr(108 + 4 * s, 4)}, v7, s[4:7], s36 offen offset:{1024 * s}" for s in range(4)) + "\nK2_WUT:"] + gl
    so, ae = [], []
    if not OPT["nolds"]:
        if r >= 5: so = [f"    ds_read_b128 {vr(vSO, 4)}, v{vaS[0]} offset:{16 * (t + 4)}", f"    ds_read_b128 {vr(vSO + 4, 4)}, v{vaS[1]} offset:{16 * (t + 4)}"]
        if r >= 3: ae = [f"    ds_read2_b64 {vr(vAe, 4)}, v{vaE} offset0:{4 * (t + 2)} offset1:{4 * (t + 2)}"]
    def zip1(x, y):
        out = []
        for i in range(max(len(x), len(y))):
            out += x[i:i + 1] + y[i:i + 1]
        return out
    mp = OPT["mpos"]
    k0 = {0: 2, 1: 0, 2: 2, 3: 2, 4: 1, 5: 2, 6: 2, 7: 4}[mp]
    head = ex[:k0] + wait + zip1(m4, ex[k0:k0 + 4]) + ex[k0 + 4:k0 + 7] + m32
    k = k0 + 7
    if mp in (0, 1, 4):
        seq = head + ex[k:k + 5] + gl + so + ae + ex[k + 5:] + sc + rest
    elif mp == 2:
        pk = sc + rest
        seq = head + ex[k:] + zip1(pk[:len(gl) + 3], gl + so + ae) + pk[len(gl) + 3:]
    elif mp == 3:
        v = ex[k + 4:] + sc
        seq = head + ex[k:k + 4] + zip1(gl + so + ae, v) + rest
    elif mp == 5:
        seq = head + ex[k:] + sc + rest[:16] + gl + so + ae + rest[16:]
    elif mp == 6:
        seq = head + zip1(ex[k:], gl) + gl[len(ex[k:]):] + so + ae + sc + rest if False else head + zip1(ex[k:], gl[:7]) + gl[7:] + so + ae + sc + rest
    elif mp == 7:
        seq = head + ex[k:] + gl + so + ae + sc + rest
    for l in seq:
        if l: e(l)
    stamp(100 + t - 5, 4, 1)
    if r >= 2 and not OPT["noflush"]:
        for y in range(2):
            e(f"    s_bitcmp1_b32 s{sEV[y]}, {t}\n    s_cbranch_scc1 K2_EV{t}_{y}\nK2_EB{t}_{y}:")

def wut_loads(lab):
    e(f"    s_cmp_ge_u32 s21, 8\n    s_cbranch_scc1 {lab}\n    s_lshl_b32 s36, s21, 12\n    s_add_u32 s36, s36, {WUT}")
    for s in range(4):
        e(f"    buffer_load_dwordx4 {vr(108 + 4 * s, 4)}, v7, s[4:7], s36 offen offset:{1024 * s}")
    e(f"{lab}:")

def x_frags(xa, xb):
    e(f"""
    v_xor_b32 v{xa}, v5, v6
    v_lshlrev_b32 v{xa}, 4, v{xa}
    v_lshl_or_b32 v{xa}, v6, 8, v{xa}
    v_add_u32 v{xa}, {XL}, v{xa}
    v_xor_b32 v{xa + 1}, 64, v{xa}
    v_xor_b32 v{xa + 2}, 0x80, v{xa}
    v_xor_b32 v{xa + 3}, 0xc0, v{xa}
""")
    for s in range(4):
        for T in range(3):
            e(f"    ds_read_b128 {vr(xb(T, s), 4)}, v{xa + s} offset:{4096 * T}")

def prio(n):
    if OPT["prio"]: e(f"    s_setprio {n}")

def setup_scalars():
    e(f"""
    s_cmp_lt_u32 s20, 16
    s_cselect_b32 s22, 40, 39
    s_bfm_b64 s[78:79], s22, 0
    s_and_b32 s23, s21, 1                   ; c
    s_lshr_b32 s76, s21, 1                  ; group
    s_mov_b32 s26, {KC:#x}
    s_mov_b32 s72, {NL2E:#x}
    s_lshl_b32 s39, s23, 7
    s_add_u32 s8, s4, s39
    s_addc_u32 s9, s5, 0
    s_or_b32 s9, s9, 0x80000000
    s_mov_b32 s10, 0x10000
    s_mov_b32 s11, 0x00c00000
""")
    srd(16, N * 256)

def scan():
    e(f"""
    v_add_u32 v{vQ16}, 12, v{vC4}
    v_and_b32 v{vQ16}, -16, v{vQ16}
    s_mov_b64 exec, s[78:79]
    v_max_u32 v{vQ16}, 16, v{vQ16}          ; 16*quads
    s_mov_b64 exec, -1
    s_nop 0
    v_add_u32_dpp v{vE16}, v{vQ16}, v{vQ16} row_shr:1 row_mask:0xf bank_mask:0xf bound_ctrl:1
""")
    for c in ("row_shr:2 row_mask:0xf", "row_shr:4 row_mask:0xf", "row_shr:8 row_mask:0xf", "row_bcast:15 row_mask:0xa", "row_bcast:31 row_mask:0xc"):
        e(f"    s_nop 1\n    v_add_u32_dpp v{vE16}, v{vE16}, v{vE16} {c} bank_mask:0xf")
    e(f"""
    v_sub_u32 v{vS16}, v{vE16}, v{vQ16}
    v_readlane_b32 s34, v{vE16}, 63
""")

def x_addr(xa):
    e(f"""
    v_xor_b32 v{xa}, v5, v6
    v_lshlrev_b32 v{xa}, 4, v{xa}
    v_lshl_or_b32 v{xa}, v6, 8, v{xa}
    v_add_u32 v{xa}, {XL}, v{xa}
    v_xor_b32 v{xa + 1}, 64, v{xa}
    v_xor_b32 v{xa + 2}, 0x80, v{xa}
    v_xor_b32 v{xa + 3}, 0xc0, v{xa}
""")
def x_reads(xa, xb):
    for s in range(4):
        for T in range(3):
            e(f"    ds_read_b128 {vr(xb(T, s), 4)}, v{xa + s} offset:{4096 * T}")

def kernel2():
    e(f"""
.text
.globl mpnn_edge_kernel
.p2align 8
.type mpnn_edge_kernel,@function
mpnn_edge_kernel:
    s_load_dwordx2 s[4:5], s[0:1], 64       ; ws
    s_load_dwordx2 s[12:13], s[0:1], 0      ; x
    s_load_dwordx2 s[16:17], s[0:1], 48     ; out
    s_cmp_ge_u32 s2, 256
    s_cbranch_scc1 K2_END
    v_lshrrev_b32 v2, 6, v0
    s_and_b32 s20, s2, 7
    v_readfirstlane_b32 s21, v2
    s_lshl_b32 s20, s20, 5
    s_lshr_b32 s3, s2, 3
    s_or_b32 s20, s20, s3                   ; bucket
    s_mov_b32 s6, {WSEND:#x}
    s_mov_b32 s7, 0x20000
    v_and_b32 v4, -4, v0
    v_lshlrev_b32 v4, 2, v4
    s_lshr_b32 s34, s20, 2
    s_lshl_b32 s34, s34, 10
    s_and_b32 s35, s20, 3
    s_or_b32 s34, s34, s35
    s_lshl_b32 s34, s34, 2
    s_add_u32 s34, s34, {DESC}
""")
    stamp(0, 4, 1); dbg(0); light0()
    e(f"""
    v_lshrrev_b32 v8, 4, v0
    v_xor_b32 v9, v8, v0
    s_lshl_b32 s35, s20, 8
    v_lshl_add_u32 v8, v8, 16, s35
    v_and_b32 v9, 15, v9
    s_lshl_b32 s36, s21, 10
    s_add_u32 s36, s36, {XL}
    s_mov_b32 m0, s36
""")
    srd(12, N * 256)
    e(f"""
    v_lshl_add_u32 v8, v9, 4, v8
    s_waitcnt lgkmcnt(0)
    buffer_load_dword v2, v4, s[4:7], s34 offen
    s_cmp_ge_u32 s21, 11
    s_cbranch_scc1 K2_NOX
    buffer_load_dwordx4 v8, s[12:15], 0 offen lds
K2_NOX:
    v_lshrrev_b32 v3, 2, v0
    v_mul_u32_u24 v3, {RSTR}, v3
    v_and_b32 v4, 3, v0
    s_mov_b32 s24, 0
    s_mov_b32 s25, {4 * NK}
    s_mov_b32 s{sFirst}, 1
    v_lshlrev_b32 v56, 4, v0
    v_mov_b64 v[8:9], 0
    v_mov_b64 v[10:11], 0
    s_cmp_ge_u32 s21, 2
    s_cbranch_scc1 K2_NOZ0
    ds_write_b128 v56, v[8:11] offset:{MISC}
K2_NOZ0:
""")
    def agzero(lab):
        e(f"""
    v_add_u32 v57, {AG}, v56
    ds_write_b128 v57, v[8:11]
    ds_write_b128 v57, v[8:11] offset:16384
    s_cmp_ge_u32 s21, 11
    s_cbranch_scc1 {lab}
    ds_write_b128 v57, v[8:11] offset:32768
{lab}:
""")
    if not OPT["agl"]: agzero("K2_NOZ3")
    e(f"""
    s_cmp_lt_u32 s21, 11
    s_cbranch_scc1 K2_WD1
    s_waitcnt vmcnt(0)
K2_WD1:
    s_waitcnt vmcnt(1)
K2_ROUND:
""")
    prio(2)
    stamp(1, 4, 1)
    e(f"""
    v_lshrrev_b32 v16, 16, v2               ; count
    v_and_b32 v17, 0xffff, v2               ; start
    v_subrev_u32 v16, s24, v16
    v_add3_u32 v17, v17, s24, v4
    v_min_i32 v18, s25, v16
    v_mad_u32_u24 v17, v17, 12, v3
    v_sub_u32 v18, v18, v4
    s_mov_b32 s34, {REC}
""")
    for k in range(3): e(f"    v_cmp_lt_i32 {sr(sM[k], 2)}, {4 * k}, v18")
    for k in range(NK):
        if k >= 3:
            e(f"    v_cmp_lt_i32 {sr(sM[k], 2)}, {4 * k}, v18")
        e(f"    s_mov_b64 exec, {sr(sM[k], 2)}")
        if k >= 2:
            e(f"    s_cbranch_execz K2_RLD")
        e(f"    buffer_load_dwordx3 {vr(vR + 4 * k, 3)}, v17, s[4:7], s34 offen offset:{48 * k}")
    e(f"""
K2_RLD:
    s_mov_b64 exec, -1
""")
    stamp(2, 4, 1)
    prio(0)
    e(f"""
    v_and_b32 v1, 63, v0
    v_cmp_lt_i32 {sr(sMM, 2)}, s25, v16
    v_mov_b32 v59, 4
    v_lshlrev_b32 v58, 2, v1
    s_waitcnt lgkmcnt({0 if OPT["agl"] else 3})
    s_barrier
    ds_write_b128 v56, v[8:11] offset:{EA}
    s_cmp_ge_u32 s21, 8
    s_cbranch_scc1 K2_NOSO
    v_mov_b32 v12, {PADV}
    v_mov_b32 v13, v12
    v_mov_b32 v14, v12
    v_mov_b32 v15, v12
    ds_write_b128 v56, v[12:15] offset:{SO}
K2_NOSO:
    s_cmp_eq_u32 s{sFirst}, 0
    s_cbranch_scc1 K2_SETD
""")
    if OPT["agl"]: agzero("K2_NOZ3")
    e(f"""
    v_lshlrev_b32 v7, 4, v1                 ; lane*16
    v_lshrrev_b32 v5, 4, v1                 ; g
    v_and_b32 v6, 15, v1                    ; n
    v_mov_b32 v{vNp}, 0
    v_mov_b32 v{vFO}, 0
    s_cmp_lt_u32 s21, 8
    s_cbranch_scc1 K2_SETL
    s_lshl_b32 s74, s21, 12
    s_add_u32 s74, s74, {W2F - 8 * 4096}
""")
    for s in range(4):
        e(f"    buffer_load_dwordx4 {vr(92 + 4 * s, 4)}, v7, s[4:7], s74 offen offset:{1024 * s}")
    setup_scalars()
    x_addr(108)
    e(f"""
    s_bfe_u32 s36, s21, 0x20001
    s_lshl_b32 s36, s36, 8
    s_lshl_b32 s37, s23, 5
    s_add_u32 s36, s36, s37
    s_add_u32 s36, s36, {QU}
    v_mul_u32_u24 v56, {RS}, v6
    v_lshl_add_u32 v56, v5, 6, v56
    v_add_u32 v56, s36, v56
    v_add_u32 v57, {16 * RS}, v56
    v_add_u32 v124, {32 * RS}, v56
    s_mov_b64 exec, {sr(sMM, 2)}
    s_cbranch_execnz K2_MORE1
K2_MOREB1:
""")
    prio(2)
    e(f"""
    s_waitcnt vmcnt(4)
    s_branch K2_RECS
K2_SETL:
""")
    setup_scalars()
    e(f"""
K2_SETD:
    s_mov_b64 exec, {sr(sMM, 2)}
    s_cbranch_execnz K2_MORE2
K2_MOREB2:
""")
    prio(2)
    e("    s_waitcnt vmcnt(0)\nK2_RECS:")
    stamp(3, 4, 1)
    for k in range(NK):
        e(f"    s_mov_b64 exec, {sr(sM[k], 2)}")
        if k >= 2: e("    s_cbranch_execz K2_HISTD")
        e(f"""
    v_lshrrev_b32 v{vN4[k]}, 24, v{vR + 2 + 4 * k}
    ds_add_rtn_u32 v{vR + 3 + 4 * k}, v{vN4[k]}, v59 offset:{CNT}
    v_and_b32 v{vR + 2 + 4 * k}, 0x3ffffff, v{vR + 2 + 4 * k}
""")
    e(f"""
K2_HISTD:
    s_mov_b64 exec, -1
    s_cmp_ge_u32 s21, 2
    s_cbranch_scc1 K2_NOW3
    s_lshl_b32 s34, s21, 10
    s_add_u32 s35, s34, {W3L}
    s_add_u32 s34, s34, {W3F}
    s_mov_b32 m0, s35
    s_nop 0
    buffer_load_dwordx4 v7, s[4:7], s34 offen lds
K2_NOW3:
""")
    if OPT["pf2"]:
        e(f"""
    s_sub_u32 s34, s21, 2
    s_cmp_ge_u32 s34, 6
    s_cbranch_scc1 K2_NOPF2
    s_lshr_b32 s35, s2, 3
    s_mul_i32 s35, s35, 80000
    s_mul_i32 s34, s34, {OPT["pf2"] * 128}
    s_add_u32 s34, s34, s35
    v_lshlrev_b32 v119, 3, v7
    s_bfm_b64 exec, {OPT["pf2"]}, 0
    buffer_load_dword v119, v119, s[4:7], s34 offen
    s_mov_b64 exec, -1
K2_NOPF2:
""")
    e(f"""
    s_waitcnt lgkmcnt(0)
    s_barrier
""")
    stamp(4, 4, 1); dbg(1)
    xbq = lambda T, s: 8 + 16 * T + 4 * s
    qpre = OPT["qpre"]
    e(f"    ds_read_b32 v{vC4}, v58 offset:{CNT}")
    if qpre == 1:
        e(f"    s_lshr_b32 s36, s21, 3\n    s_and_b32 s36, s36, s{sFirst}\n    s_cbranch_scc0 K2_NOXR")
        x_reads(108, xbq)
        e("    s_waitcnt lgkmcnt(12)\n    s_branch K2_SCAN\nK2_NOXR:")
    e("    s_waitcnt lgkmcnt(0)\nK2_SCAN:")
    scan()
    for k in range(NK):
        if k == 3: e(f"    s_cmp_eq_u64 {sr(sM[2], 2)}, 0\n    s_cbranch_scc1 K2_BPD")
        if k >= 3: e(f"    s_cmp_eq_u64 {sr(sM[k], 2)}, 0\n    s_cbranch_scc1 K2_BPD")
        e(f"    ds_bpermute_b32 v{vN4[k]}, v{vN4[k]}, v{vS16}")
    e(f"""
K2_BPD:
    s_cmp_gt_u32 s34, {S16MAX}
    s_cbranch_scc1 K2_REDO
    s_add_u32 s34, s34, 48
    s_lshr_b32 s35, s34, 9
    s_bfe_u32 s34, s34, 0x30006
    s_mul_i32 s37, s76, s35
    s_waitcnt lgkmcnt(0)
""")
    eal = OPT["eal"]
    for k in range(NK):
        e(f"    s_mov_b64 exec, {sr(sM[k], 2)}")
        if k >= 2: e("    s_cbranch_execz K2_GEO")
        e(f"""
    v_add_u32 v{vN4[k]}, v{vN4[k]}, v{vR + 3 + 4 * k}
    ds_write_b32 v{vN4[k]}, v{vR + 2 + 4 * k} offset:{SO}
    v_add_u32 v{vR + 3 + 4 * k}, v{vN4[k]}, v{vN4[k]}
""")
        if not eal: e(f"    ds_write_b64 v{vR + 3 + 4 * k}, {vr(vR + 4 * k, 2)} offset:{EA}")
    e(f"""
K2_GEO:
    s_cmp_lg_u32 s21, 0
    s_cbranch_scc1 K2_NOFL
    s_mov_b64 exec, s[78:79]
    v_lshrrev_b32 v46, 4, v{vE16}
    ds_write_b8 v46, v59 offset:{FL - 1}
K2_NOFL:
    s_min_u32 s38, s76, s34
    s_add_u32 s37, s37, s38
    s_lshl_b32 s60, s37, 6                  ; stream (0,X)
    s_cmp_lt_u32 s76, s34
    s_addc_u32 s35, s35, 0
    s_lshl_b32 s77, s35, 4
    s_add_u32 s61, s60, s77
    s_add_u32 s62, s61, s77
    s_mov_b64 exec, -1
    v_mov_b32 v{vaS[0]}, s60
    s_mov_b32 exec_lo, 0
    v_mov_b32 v{vaS[0]}, s62
    s_mov_b32 exec_lo, -1
    v_add_u32 v{vaS[1]}, s77, v{vaS[0]}
""")
    if OPT["pf2"]: e("    s_sub_u32 s36, s21, 2\n    s_cmp_lt_u32 s36, 6\n    s_cbranch_scc1 K2_NOVM")
    e(f"""
    s_waitcnt vmcnt(0)
K2_NOVM:
    s_lshr_b32 s36, s21, 3
    s_and_b32 s36, s36, s{sFirst}
""")
    def qm(waits):
        for s in range(4):
            for T in range(3):
                if waits: e(f"    s_waitcnt lgkmcnt({11 - 3 * s - T})")
                c = "0" if s == 0 else vr(vU + 4 * T, 4)
                e(f"    v_mfma_f32_16x16x32_bf16 {vr(vU + 4 * T, 4)}, {vr(92 + 4 * s, 4)}, {vr(xbq(T, s), 4)}, {c}")
    if qpre == 1:
        e("    s_cbranch_scc0 K2_NOQM"); qm(False); e("K2_NOQM:")
    if qpre == 2:
        e("    s_cbranch_scc0 K2_NOQM"); x_reads(108, xbq); e("    s_waitcnt lgkmcnt(12)\n    s_branch K2_QB2\nK2_NOQM:")
    e("    s_waitcnt lgkmcnt(0)\nK2_QB2:\n    s_barrier")
    stamp(5, 4, 1); dbg(2)
    def ea_writes(lab):
        if not eal: return
        for k in range(NK):
            e(f"    s_mov_b64 exec, {sr(sM[k], 2)}")
            if k >= 2: e(f"    s_cbranch_execz {lab}")
            e(f"    ds_write_b64 v{vR + 3 + 4 * k}, {vr(vR + 4 * k, 2)} offset:{EA}")
        e(f"{lab}:\n    s_mov_b64 exec, -1")
    def first_gathers(lab):
        e(f"""
    ds_read_b128 {vr(vSO, 4)}, v{vaS[0]} offset:{SO}
    ds_read_b128 {vr(vSO + 4, 4)}, v{vaS[1]} offset:{SO}
    ds_read_b128 {vr(vE, 4)}, v{vaS[0]} offset:{SO + 16}
    ds_read_b128 {vr(vE + 4, 4)}, v{vaS[1]} offset:{SO + 16}
    s_bitcmp1_b32 s35, 0
    s_cbranch_scc1 {lab}1
""")
        for a in range(2):
            if a: e(f"{lab}1:")
            e("    s_waitcnt lgkmcnt(2)")
            gathers(vP[a], vSO)
            e("    s_waitcnt lgkmcnt(0)")
            gathers(vP[1 - a], vE)
            if not a: e(f"    s_branch {lab}D")
        e(f"{lab}D:")
    def addresses():
        t0, t1, t2, t3 = 58, 59, 123, 125
        e(f"""
    v_and_b32 v{t0}, 31, v1
    v_lshrrev_b32 v{t2}, 4, v{vaS[0]}
    v_add_u32 v{t2}, v{t2}, v{t0}
    v_add_u32 v{t3}, s35, v{t2}
    ds_read_u8 v{t2}, v{t2} offset:{FL}
    ds_read_u8 v{t3}, v{t3} offset:{FL}
    s_lshl_b32 s36, s23, 10
    v_add_u32 v{t1}, s36, v7
    ds_read_b128 {vr(vBw, 4)}, v{t1} offset:{W3L}
    s_add_u32 s63, s62, s77
    s_lshl_b32 s36, s23, 9
    s_add_u32 s36, s36, {QU}
    v_lshl_add_u32 v{t0}, v{t0}, 4, s36
""")
        for k in range(4):
            e(f"    v_cmp_ge_u32 vcc, s{60 + k}, v{vE16}\n    s_bcnt1_i32_b64 s{64 + k}, vcc\n    s_min_u32 s{64 + k}, s{64 + k}, s22\n    s_mulk_i32 s{64 + k}, {RS}")
        e(f"""
    v_sub_u32 v{vQ16}, v{vQ16}, v{vC4}
    v_add_u32 v{vNp}, v{vNp}, v{vQ16}
    v_add_u32 v{vaN[0]}, s64, v{t0}
    v_add_u32 v{vaN[1]}, s65, v{t0}
    v_mov_b32 v{vaE}, {ZR}
    s_mov_b32 exec_lo, 0
    v_add_u32 v{vaN[0]}, s66, v{t0}
    v_add_u32 v{vaN[1]}, s67, v{t0}
    s_mov_b32 exec_lo, 0x55555555
    s_mov_b32 exec_hi, 0xaaaaaaaa
    v_bfe_u32 v{t1}, v1, 1, 2
    v_mul_u32_u24 v{t1}, s77, v{t1}
    s_add_u32 s36, s60, {EA // 2}
    v_add_u32 v{t1}, s36, v{t1}
    v_and_b32 v{vaE}, 0x18, v1
    v_lshl_add_u32 v{vaE}, v{t1}, 1, v{vaE}
    s_mov_b64 exec, -1
    s_movk_i32 s36, 0x3f80
    s_mov_b32 s37, 0
    v_and_b32 v{t1}, 0x30, v7
    v_lshlrev_b64 {vr(vI, 2)}, v{t1}, s[36:37]
    v_mov_b64 {vr(vAc[0], 2)}, 0
    v_mov_b64 {vr(vAc[1], 2)}, 0
    s_sub_u32 s34, {NT}, s35
    s_lshl_b32 s38, s34, 4
    s_sub_u32 s38, {SO}, s38
    s_lshl_b32 s39, s34, 5
    s_waitcnt lgkmcnt(0)
    v_cmp_ne_u32 {sr(sFM[0], 2)}, 0, v{t2}
    v_cmp_ne_u32 {sr(sFM[1], 2)}, 0, v{t3}
""")
    e("    s_cbranch_scc0 K2_FG")
    prio(3)
    ta = (56, 57, 124)
    if not qpre: x_reads(108, xbq)
    ash = OPT["ash"]
    if ash:
        ea_writes("K2_EAQ")
        addresses()
    if qpre != 1: qm(not ash)
    if not ash and qpre != 1: ea_writes("K2_EAQ")
    e("    s_nop 5")
    for T in range(3):
        if T == 2:
            e(f"    s_mov_b32 exec_lo, {M9}\n    s_mov_b32 exec_hi, {M9}")
        for h in range(2):
            r = vU + 4 * T + 2 * h
            e(f"    v_pk_mul_f32 {vr(r, 2)}, {vr(r, 2)}, s[72:73] op_sel_hi:[1,0]")
        e(f"    ds_write2_b64 v{ta[T]}, {vr(vU + 4 * T, 2)}, {vr(vU + 4 * T + 2, 2)} offset0:0 offset1:2")
    if not ash and qpre == 1: ea_writes("K2_EAQ")
    e("    s_mov_b64 exec, -1\n    s_waitcnt lgkmcnt(0)\n    s_barrier")
    if OPT["stg3"]: e(f"    s_cmp_lt_u32 s21, 12\n    s_cbranch_scc1 K2_G2\n    s_setprio {OPT['stg3'] - 1}\nK2_G2:")
    for r in range(12):
        e(f"    v_exp_f32 v{92 + r}, v{vU + r}")
    for r in range(0, 12, 2):
        e(f"    v_pk_fma_f32 {vr(92 + r, 2)}, {vr(92 + r, 2)}, {KCOP}")
    for r in range(12):
        e(f"    v_rcp_f32 v{92 + r}, v{92 + r}")
    for T in range(3):
        if T == 2:
            e(f"    s_mov_b32 exec_lo, {M9}\n    s_mov_b32 exec_hi, {M9}")
        for r in (4 * T, 4 * T + 2):
            e(f"    v_pk_mul_f32 {vr(92 + r, 2)}, {vr(92 + r, 2)}, {vr(vU + r, 2)}")
        e(f"    ds_write2_b64 v{ta[T]}, {vr(92 + 4 * T, 2)}, {vr(92 + 4 * T + 2, 2)} offset0:1 offset1:3")
    e("    s_mov_b64 exec, -1")
    prio(OPT["gq"])
    first_gathers("K2_GQ")
    prio(OPT["gq2"])
    stamp(11, 4, 1)
    if not ash: addresses()
    e("    s_branch K2_NOB\nK2_FG:")
    if OPT["stg1"]: e(f"    s_cmp_ge_u32 s21, {OPT['stg1']}\n    s_cbranch_scc1 K2_LATE")
    first_gathers("K2_GR")
    stamp(11, 4, 1)
    ea_writes("K2_EAR")
    if OPT["rab"]:
        e("    s_waitcnt lgkmcnt(0)\n    s_barrier")
        addresses()
    else:
        addresses()
        e("    s_barrier")
    if OPT["stg1"]:
        e("    s_branch K2_NOB\nK2_LATE:")
        ea_writes("K2_EAL")
        addresses()
        e("    s_barrier")
        prio(OPT["gq"])
        first_gathers("K2_GL")
        prio(OPT["gq2"])
        stamp(11, 4, 1)
    e(f"""
K2_NOB:
    ds_read_b64 {vr(vQ, 2)}, v{vaN[0]}
    ds_read_b64 {vr(vQ + 2, 2)}, v{vaN[1]}
    ds_read2_b64 {vr(vAe, 4)}, v{vaE} offset0:0 offset1:0
    ds_read_b128 {vr(vSO, 4)}, v{vaS[0]} offset:{SO + 32}
    ds_read_b128 {vr(vSO + 4, 4)}, v{vaS[1]} offset:{SO + 32}
    s_mov_b32 s{sFirst}, 0
""")
    for y in range(2):
        e(f"""
    s_lshl_b32 s{sFM[y]}, s{sFM[y]}, s34
    s_lshl_b32 s{sFM[y] + 1}, s{sFM[y] + 1}, s34
    s_or_b32 s36, s{sFM[y]}, s{sFM[y] + 1}
    s_lshr_b32 s37, s36, 1
    s_or_b32 s{sEV[y]}, s36, s37
""")
    stamp(12, 4, 1)
    e(f"""
    s_or_b32 s34, s34, 0x10000
    s_bitcmp1_b32 s35, 0
    s_waitcnt vmcnt(8) lgkmcnt(0)
""")
    stamp(6, 4, 1); dbg(3)
    e("    s_cbranch_scc1 K2_PA1")
    for a in range(2):
        if a: e("K2_PA1:")
        for q in range(4): e(mfma4(vD[a], vP[a], q))
        if OPT["gp"] != 3: prio(OPT["gp"])
        e(f"    s_cmp_lt_u32 s35, 3\n    s_cbranch_scc1 K2_NGP{a}")
        gathers(vP[a], vSO)
        e(f"K2_NGP{a}:\n    s_nop 1\n{mfma32(vD[a])}")
        if not a: e("    s_branch K2_PAD")
    e(f"""
K2_PAD:
    ds_read_b128 {vr(vSO, 4)}, v{vaS[0]} offset:{SO + 48}
    ds_read_b128 {vr(vSO + 4, 4)}, v{vaS[1]} offset:{SO + 48}
    ds_read2_b64 {vr(vAe, 4)}, v{vaE} offset0:4 offset1:4
""")
    for y in range(2):
        e(f"""
    s_bfe_i32 exec_lo, s{sFM[y]}, s34
    s_bfe_i32 exec_hi, s{sFM[y] + 1}, s34
    ds_read_b64 {vr(vQ + 2 * y, 2)}, v{vaN[y]} offset:{RS}
""")
    e(f"""
    s_mov_b32 exec_lo, 0x55555555
    s_mov_b32 exec_hi, 0xaaaaaaaa
    v_subrev_u32 v{vaE}, s39, v{vaE}
    s_mov_b64 exec, -1
    v_add_u32 v{vaS[0]}, s38, v{vaS[0]}
    v_add_u32 v{vaS[1]}, s38, v{vaS[1]}
""")
    prio(PRIO_0)
    order = [10, 11, 9, 12, 8, 13, 7, 14, 6, 15, 5, 4, 3, 2, 1]
    for Lv in order:
        e(f"    s_cmp_eq_u32 s35, {Lv}\n    s_cbranch_scc1 {'K2_S' if Lv < 4 and OPT['wpf'] else 'K2_T'}{NT - Lv}")
    e("K2_LOOP:")
    for t in range(NT):
        tile(t)
    e("K2_LDONE:")
    wpf = OPT["wpf"]
    xbu = (lambda T, s: 16 + 16 * T + 4 * s) if wpf else (lambda T, s: 32 + 16 * T + 4 * s)
    vUa, vWt = (64, 108) if wpf else (vU, 16)
    e(f"""
    s_cmp_ge_u32 s21, 8
    s_cbranch_scc1 K2_LD2
    s_lshl_b32 s36, s21, 12
    s_add_u32 s36, s36, {WUT}
    s_add_u32 s37, s36, {WUB - WUT}
""")
    if wpf: e("    s_waitcnt vmcnt(0)")
    for s in range(0 if wpf else 4):
        e(f"    buffer_load_dwordx4 {vr(16 + 4 * s, 4)}, v7, s[4:7], s36 offen offset:{1024 * s}")
    for s in range(4):
        e(f"    buffer_load_dwordx4 {vr(92 + 4 * s, 4)}, v7, s[4:7], s37 offen offset:{1024 * s}")
    e("K2_LD2:")
    for y in range(2):
        flush_adds(y)
    e(f"""
    v_mov_b32 v89, {MORE}
    ds_read_b32 v89, v89
""")
    stamp(7, 4, 1); dbg(4)
    e(f"""
    s_cmp_ge_u32 s21, 8
    s_cbranch_scc1 K2_NOU
""")
    x_frags(84, xbu)
    if not wpf: e("    s_waitcnt vmcnt(4)")
    for s in range(4):
        for T in range(3):
            e(f"    s_waitcnt lgkmcnt({11 - 3 * s - T})")
            c = "0" if s == 0 else vr(vUa + 4 * T, 4)
            e(f"    v_mfma_f32_16x16x32_bf16 {vr(vUa + 4 * T, 4)}, {vr(vWt + 4 * s, 4)}, {vr(xbu(T, s), 4)}, {c}")
    e(f"""
    v_mul_u32_u24 v{vFR}, {RB}, v6
    v_lshl_add_u32 v{vFR}, v5, 4, v{vFR}
    v_add_u32 v{vFR}, {AGB}, v{vFR}
    v_lshlrev_b32 v{vFO}, 16, v6
    v_lshl_or_b32 v{vFO}, v5, 3, v{vFO}
    s_lshl_b32 s36, s20, 8
    s_lshl_b32 s37, s21, 5
    s_add_u32 s36, s36, s37
    v_add_u32 v{vFO}, s36, v{vFO}
    s_cmp_lt_u32 s21, 6
    s_cbranch_scc1 K2_NOCA
K2_NOU:
    v_lshrrev_b32 v{vCA}, 4, v0
    v_subrev_u32 v{vCA}, 24, v{vCA}
    v_cvt_f32_u32 v84, v{vNp}
    v_lshlrev_b32 v85, 2, v{vCA}
    v_mul_f32 v84, 0xbe800000, v84
    v_mul_u32_u24 v{vCW}, {RB}, v{vCA}
    v_mul_u32_u24 v{vCA}, {RS}, v{vCA}
    ds_bpermute_b32 v{vCN}, v85, v84
    v_lshl_add_u32 v{vCW}, v6, 4, v{vCW}
    v_lshl_add_u32 v{vCA}, v6, 4, v{vCA}
    v_add_u32 v{vCW}, {AGB}, v{vCW}
    v_add_u32 v{vCA}, {QU}, v{vCA}
K2_NOCA:
    s_waitcnt lgkmcnt(0)
    v_readfirstlane_b32 s{sMoreV}, v89
    s_barrier
""")
    stamp(8, 4, 1)
    e(f"""
    s_cmp_lg_u32 s{sMoreV}, 0
    s_cbranch_scc1 K2_NEXT
    s_cmp_lt_u32 s21, 6
    s_cbranch_scc1 K2_NOCV
""")
    for k in range(4):
        e(f"    ds_read_b128 {vr(16 + 4 * k, 4)}, v{vCA} offset:{AG - QU + 256 * k}\n    ds_read_b64 {vr(8 + 2 * k, 2)}, v{vCA} offset:{256 * k + 8}")
    for k in range(4):
        e(f"    s_waitcnt lgkmcnt({6 - 2 * k})")
        e(f"    v_cvt_f32_f64 v{32 + 2 * k}, {vr(16 + 4 * k, 2)}\n    v_cvt_f32_f64 v{33 + 2 * k}, {vr(18 + 4 * k, 2)}")
        e(f"    v_pk_fma_f32 {vr(32 + 2 * k, 2)}, {vr(8 + 2 * k, 2)}, {vr(vCN, 2)}, {vr(32 + 2 * k, 2)} op_sel_hi:[1,0,1]")
        e(f"    v_cvt_pk_bf16_f32 v{40 + k}, v{32 + 2 * k}, v{33 + 2 * k}")
    e(f"""
    ds_write_b128 v{vCW}, v[40:43]
    s_waitcnt lgkmcnt(0)
K2_NOCV:
    s_barrier
""")
    stamp(13, 4, 1)
    e(f"""
    s_cmp_ge_u32 s21, 8
    s_cbranch_scc1 K2_FIN
""")
    xbf = lambda T, s: 16 + 16 * T + 4 * s
    tmp, outr = 76, 8
    def M(T, s, wait=True):
        if wait: e(f"    s_waitcnt lgkmcnt({11 - 4 * T - s})")
        e(f"    v_mfma_f32_16x16x32_bf16 {vr(vUa + 4 * T, 4)}, {vr(92 + 4 * s, 4)}, {vr(xbf(T, s), 4)}, {vr(vUa + 4 * T, 4)}")
    def sc_(T):
        for m in (2 * T, 2 * T + 1): e(f"    v_pk_mul_f32 {vr(tmp + 2 * m, 2)}, {vr(vUa + 2 * m, 2)}, s[72:73] op_sel_hi:[1,0]")
    def ex_(T, k): e(f"    v_exp_f32 v{tmp + 4 * T + k}, v{tmp + 4 * T + k}")
    def ad_(T):
        for m in (2 * T, 2 * T + 1): e(f"    v_pk_add_f32 {vr(tmp + 2 * m, 2)}, {vr(tmp + 2 * m, 2)}, 1.0 op_sel_hi:[1,0]")
    def rc_(T):
        for k in range(4): e(f"    v_rcp_f32 v{tmp + 4 * T + k}, v{tmp + 4 * T + k}")
    def out_(T):
        for m in (2 * T, 2 * T + 1): e(f"    v_pk_mul_f32 {vr(tmp + 2 * m, 2)}, {vr(tmp + 2 * m, 2)}, {vr(vUa + 2 * m, 2)}")
        for m in (2 * T, 2 * T + 1): e(f"    v_cvt_pk_bf16_f32 v{outr + m}, v{tmp + 2 * m}, v{tmp + 2 * m + 1}")
        if T == 2 and OPT["t2m"]: e("    s_mov_b32 exec_lo, 0x00ff00ff\n    s_mov_b32 exec_hi, 0x00ff00ff")
        if OPT["olds"]: e(f"    ds_write_b64 v90, {vr(outr + 2 * T, 2)} offset:{16 * 272 * T}")
        else: e(f"    buffer_store_dwordx2 {vr(outr + 2 * T, 2)}, v{(vFO, 88, 89)[T]}, s[16:19], 0 offen")
    for T in range(3):
        for s in range(4):
            e(f"    ds_read_b128 {vr(xbf(T, s), 4)}, v{vFR} offset:{16 * RB * T + 64 * s}")
    if OPT["olds"]:
        e(f"""
    v_mul_u32_u24 v90, 272, v6
    v_lshl_add_u32 v90, v5, 3, v90
    s_lshl_b32 s36, s21, 5
    s_add_u32 s36, s36, {EA}
    v_add_u32 v90, s36, v90
    v_lshrrev_b32 v88, 4, v0
    v_mul_u32_u24 v91, 272, v88
    v_lshl_add_u32 v91, v6, 4, v91
    v_lshlrev_b32 v88, 16, v88
    v_lshl_or_b32 v88, v6, 4, v88
    s_lshl_b32 s36, s20, 8
    v_add_u32 v88, s36, v88
    v_add_u32 v89, 0x200000, v88
    s_waitcnt vmcnt(0)
""")
    else:
        e(f"    v_add_u32 v88, 0x100000, v{vFO}\n    v_add_u32 v89, 0x200000, v{vFO}\n    s_waitcnt vmcnt(0)")
    for s in range(4): M(0, s)
    for s in range(4): M(1, s)
    if OPT["fin"]:
        sc_(0)
        e("    s_waitcnt lgkmcnt(0)")
        for s in range(4): M(2, s, False); ex_(0, s)
        e("    s_nop 0")
        sc_(1)
        for k in range(4): ex_(1, k)
        ad_(0); rc_(0); sc_(2)
        for k in range(4): ex_(2, k)
        out_(0); ad_(1); rc_(1); ad_(2); out_(1); rc_(2); e("    s_nop 0"); out_(2)
    else:
        for s in range(4): M(2, s)
        sc_(0); sc_(1); e("    s_nop 3"); sc_(2)
        for T in range(3):
            for k in range(4): ex_(T, k)
        for T in range(3): ad_(T)
        for T in range(3): rc_(T); e("    s_nop 0"); out_(T)
    if OPT["olds"]:
        e(f"""
    s_mov_b64 exec, -1
    s_waitcnt lgkmcnt(0)
    s_barrier
    ds_read_b128 v[16:19], v91 offset:{EA}
    s_cmp_ge_u32 s21, 2
    s_cbranch_scc1 K2_O1
    ds_read_b128 v[20:23], v91 offset:{EA + 32 * 272}
    s_waitcnt lgkmcnt(0)
    buffer_store_dwordx4 v[20:23], v89, s[16:19], 0 offen
K2_O1:
    s_waitcnt lgkmcnt(0)
    buffer_store_dwordx4 v[16:19], v88, s[16:19], 0 offen
""")
    e("K2_FIN:")
    dbg_out(1, 7, 6, 6, 'DBGC'); light1(4, 1)
    if OPT["stamps"]:
        stamp(9, 4, 1); e("    s_waitcnt vmcnt(0)"); stamp(10, 4, 1); stamp_out(4, 1)
    e("K2_END:\n    s_endpgm")
    if not OPT["noflush"]:
        for t in range(NT - 1):
            for y in range(2):
                event_block(t, y)
    if OPT["wpf"]:
        for Lv in (1, 2, 3):
            e(f"K2_S{NT - Lv}:"); wut_loads(f"K2_WUT{Lv}"); e(f"    s_branch K2_T{NT - Lv}")
    e(f"""
K2_TAILBLOCKS:
K2_MORE1:
    v_mov_b32 v16, {MORE}
    ds_write_b32 v16, v59
    s_branch K2_MOREB1
K2_MORE2:
    v_mov_b32 v16, {MORE}
    ds_write_b32 v16, v59
    s_branch K2_MOREB2
K2_NEXT:
    s_waitcnt vmcnt(0)
    s_add_u32 s24, s24, s25
    s_branch K2_AGAIN
K2_REDO:
    s_mov_b32 s25, 4
    s_waitcnt vmcnt(0) lgkmcnt(0)
    s_barrier
K2_AGAIN:
    v_lshlrev_b32 v56, 4, v0
    v_mov_b64 v[8:9], 0
    v_mov_b64 v[10:11], 0
    s_cmp_ge_u32 s21, 2
    s_cbranch_scc1 K2_ROUND
    ds_write_b128 v56, v[8:11] offset:{MISC}
    s_waitcnt lgkmcnt(0)
K2_LAST:
    s_branch K2_ROUND
""")

def desc(name, vg, sg):
    e(f"""
.p2align 6
.amdhsa_kernel {name}
  .amdhsa_next_free_vgpr {vg}
  .amdhsa_next_free_sgpr {sg}
  .amdhsa_accum_offset {vg}
  .amdhsa_group_segment_fixed_size 0
  .amdhsa_kernarg_size 72
  .amdhsa_user_sgpr_count 2
  .amdhsa_user_sgpr_kernarg_segment_ptr 1
  .amdhsa_system_sgpr_workgroup_id_x 1
.end_amdhsa_kernel
""")

e(f"""
; @launch kernel=mpnn_bin_kernel grid=(512,1,1) block=(768,1,1) lds={K1_LDS}
; @launch kernel=mpnn_edge_kernel grid=(256,1,1) block=(1024,1,1) lds={K2_LDS}
.amdgcn_target "amdgcn-amd-amdhsa--gfx950"
""")
kernel1()
kernel2()
e('.section .rodata,"a"')
desc("mpnn_bin_kernel", 128 if OPT["stamps"] else 80, 96)
desc("mpnn_edge_kernel", 128, 102 if OPT["stamps"] else 96)
FL_ = {0: "", 1: " sc1", 2: " nt", 3: " sc0 sc1", 4: " sc1 nt", 5: " sc0"}
k2at = next(i for i, l in enumerate(L) if l.startswith("mpnn_edge_kernel:"))
for i, l in enumerate(L):
    c = l.split(";")
    fl = None
    if l.strip().startswith("buffer_store") and " off," not in l:
        fl = FL_[OPT["st1"] if i < k2at else OPT["st2"]]
    elif l.strip().startswith("buffer_load"):
        if i < k2at:
            if any(x in l for x in ("s[24:27]", "s[8:11], s22", "s[32:35]")): fl = " nt" * OPT["nte"]
            elif "s[4:7]" in l: fl = " nt" * OPT["ntx"]
            elif "s[12:15]" in l and "lds" in l: fl = " nt" * OPT["ntw"]
        else:
            if "s[12:15]" in l: fl = " nt" * OPT["ntx2"]
            elif "dwordx3" in l: fl = " nt" * OPT["ntr"]
    if fl:
        body = c[0].rstrip()
        body = body[:-4] + fl + " lds" if body.endswith(" lds") else body + fl
        L[i] = body + ("   ;" + c[1] if len(c) > 1 else "")
open(sys.argv[1], "w").write("\n".join(L) + "\n")
```

```python
import sys, struct, math

def f2u(x): return struct.unpack("<I", struct.pack("<f", x))[0]

OPT = dict(cpf1=0, f16=0, uw3=0, hold=0, hold2=0, otl=0, stp=0, lay=0, k1p=0, k1o=1, cpf2=0, agl=0, t2m=1, olds=1, pf2=0, rab=0, gq=0, gq2=3, gp=1, stg1=0, stg3=0, qpre=0, eal=1, ash=0, dst1=0, fin=1, wpf=0, cpf=6, ps=2, bdl=1, rb=288, st1=0, st2=0, nte=0, ntx=0, ntw=0, ntx2=0, ntr=0, light=0, g1late=0, pf=0, gpos=0, nom4=0, nom32=0, mpos=0, nochk=0, prio1=0, dbg=0, safe=0, stamps=0, prio=1, nogather=0, nocore=0, nolds=0, nomfma=0, noflush=0)
for a in sys.argv[2:]:
    k, v = a.split("="); OPT[k] = int(v)

N, E = 10000, 320000
NB = 256
EPW = 1250
PT    = 0
DESC  = 0x280000
REC   = 0x2C0000
RSTR  = 15488
W2F   = 0x690000
WUT   = W2F + 0x8000
WUB   = WUT + 0x8000
W3F   = WUB + 0x8000
STAMP = W3F + 0x800
WSEND = STAMP + (0x100000 if OPT["stamps"] or OPT["light"] else 0)
NL2E = f2u(-1.4426950408889634)
KC   = f2u(1.0 / (2.0 ** 31 * math.log(2.0)))
NSC  = f2u(-2.0 ** -31)

L = []
def e(s=""):
    for ln in s.strip("\n").split("\n"):
        L.append(ln)
def vr(a, n): return f"v[{a}:{a + n - 1}]" if n > 1 else f"v{a}"
def sr(a, n): return f"s[{a}:{a + n - 1}]" if n > 1 else f"s{a}"

def srd(s, nrec, w3=0x20000):
    e(f"    s_mov_b32 s{s + 2}, {nrec:#x}\n    s_mov_b32 s{s + 3}, {w3:#x}")

def scan64(v):
    for c in ("row_shr:1 row_mask:0xf", "row_shr:2 row_mask:0xf", "row_shr:4 row_mask:0xf", "row_shr:8 row_mask:0xf",
              "row_bcast:15 row_mask:0xa", "row_bcast:31 row_mask:0xc"):
        e(f"    s_nop 1\n    v_add_u32_dpp v{v}, v{v}, v{v} {c} bank_mask:0xf")

NST = 16
def light0():
    if OPT["light"]: e("    s_memrealtime s[80:81]")
def light1(srd_s, kern):
    if not OPT["light"]: return
    e(f"""
    s_waitcnt vmcnt(0)
    s_memrealtime s[82:83]
    s_mov_b32 s{srd_s + 2}, {WSEND:#x}
    s_lshl_b32 s90, s2, 4
    s_add_u32 s90, s90, s21
    s_lshl_b32 s90, s90, 3
    s_add_u32 s90, s90, {STAMP + kern * 0x80000}
    s_mov_b64 exec, 1
    s_waitcnt lgkmcnt(0)
    v_mov_b32 v2, s80
    v_mov_b32 v3, s82
    buffer_store_dwordx2 v[2:3], off, s[{srd_s}:{srd_s + 3}], s90
""")
def dbg(slot):
    if not OPT["dbg"]: return
    e(f"    s_memrealtime s[{80 + 2 * slot}:{81 + 2 * slot}]")
def dbg_out(kern, wv, base, n, lab):
    if not OPT["dbg"]: return
    e(f"""
    s_waitcnt vmcnt(0)
    s_memrealtime s[{80 + 2 * (n - 1)}:{81 + 2 * (n - 1)}]
    s_cmp_lg_u32 s2, 200
    s_cbranch_scc1 {lab}
    s_cmp_lg_u32 s21, {wv}
    s_cbranch_scc1 {lab}
    s_load_dwordx2 s[92:93], s[0:1], 56
    s_waitcnt lgkmcnt(0)
    s_add_u32 s92, s92, {512 * (1 - kern)}
    s_addc_u32 s93, s93, 0
    s_mov_b32 s94, 256
    s_mov_b32 s95, 0x20000
    s_mov_b64 exec, 1
""")
    for i in range(n):
        e(f"    v_mov_b32 v127, s{80 + 2 * i}\n    buffer_store_dword v127, off, s[92:95], 0 offset:{4 * (base + i)}\n    s_waitcnt vmcnt(0)")
    e(f"{lab}:")
SMAP = {}
def stamp(i, srd_s, kern):
    if not OPT["stamps"]: return
    sel = [0, 1, 2, 3, 4, 5, 6] if kern == 0 else {1: [0, 1, 3, 4, 5, 11, 6, 7, 8, 9, 10], 2: [0, 2, 4, 5, 12, 6, 7, 8, 13, 9, 10], 3: [0] + list(range(101, 111)), 4: [0, 5, 11, 12, 6, 201, 202, 203, 204, 207, 208]}[OPT["stamps"]]
    if i not in sel: return
    r = 80 + 2 * sel.index(i)
    SMAP[(kern, i)] = r
    if i == 0: e("    s_memrealtime s[76:77]" if kern == 0 else "    s_memrealtime vcc\n    s_waitcnt lgkmcnt(0)\n    v_writelane_b32 v127, vcc_lo, 14")
    e(f"    s_memtime s[{r}:{r + 1}]")
def stamp_out(srd_s, kern):
    if not OPT["stamps"]: return
    vs, va = (2, 3) if kern == 0 else (127, 125)
    e(f"    s_memrealtime vcc\n    s_waitcnt lgkmcnt(0)\n    v_writelane_b32 v{vs}, vcc_lo, 15")
    if kern == 0: e("    v_writelane_b32 v2, s76, 14")
    for (k, i), r in SMAP.items():
        if k == kern: e(f"    v_writelane_b32 v{vs}, s{r}, {i % 100}")
    e(f"""
    s_mov_b64 exec, 0xffff
    s_lshl_b32 s3, s2, 4
    s_add_u32 s3, s3, s21
    s_lshl_b32 s3, s3, 6
    s_add_u32 s3, s3, {STAMP + kern * 0x80000}
    v_mbcnt_lo_u32_b32 v{va}, -1, 0
    v_lshlrev_b32 v{va}, 2, v{va}
    buffer_store_dword v{vs}, v{va}, s[{srd_s}:{srd_s + 3}], s3 offen
    s_mov_b64 exec, -1
""")

K1_CNT, K1_ST, K1_STG = 0, 1024, 2048
K1_WL, K1_XL = 0, 32768
K1_LDS = 66 * 1024
def gemm_issue():
    e(f"""
    s_lshr_b32 s20, s2, 4
    s_lshl_b32 s20, s20, 3
    s_and_b32 s3, s2, 7
    s_or_b32 s20, s20, s3
""")
    if OPT["cpf1"]:
        e(f"""
    s_cmp_lg_u32 s21, 0
    s_cbranch_scc1 K1_NOT
    s_cmp_ge_u32 s20, {OPT["cpf1"]}
    s_cbranch_scc1 K1_NOT
    s_getpc_b64 s[24:25]
K1_PC1:
    v_lshlrev_b32 v8, 6, v1
    v_min_u32 v8, K1_PC - K1_PC1 + 64, v8
    v_mov_b32 v9, s25
    v_add_co_u32 v8, vcc, s24, v8
    s_nop 1
    v_addc_co_u32 v9, vcc, 0, v9, vcc
    global_load_dword v34, v[8:9], off
K1_NOT:
""")
    e(f"""
    v_lshrrev_b32 v2, 4, v1                 ; g
    v_and_b32 v3, 15, v1                    ; n / i
    s_cmp_ge_u32 s20, 209
    s_cbranch_scc1 K1_JOBS
    ; x -> LDS: rows 4w + g, chunk (l%16) ^ (row & 15)
    v_lshrrev_b32 v5, 4, v0
    v_xor_b32 v6, v5, v0
    v_and_b32 v6, 15, v6
    s_mul_i32 s25, s20, 48
    v_add_u32 v5, s25, v5
    v_lshlrev_b32 v5, 8, v5
    v_lshl_or_b32 v5, v6, 4, v5
    s_lshl_b32 s27, s21, 10
    s_add_u32 s28, s27, {K1_XL}
    s_mov_b32 m0, s28
    ; W1 -> LDS: row (l/16), chunk (l%16) ^ ((l/16)<<1) ^ (8 if bit 3 of the row)
    v_lshlrev_b32 v4, 1, v2
    v_xor_b32 v4, v4, v3
    v_lshlrev_b32 v4, 4, v4
    v_lshl_or_b32 v4, v2, 8, v4
    s_lshl_b32 s28, s21, 6
    s_and_b32 s28, s28, 0x80
    v_xor_b32 v4, s28, v4
    s_waitcnt lgkmcnt(0)
""")
    srd(4, N * 256)
    srd(12, 128 * 256)
    stamp(6, 16, 0)
    e("    buffer_load_dwordx4 v5, s[4:7], 0 offen lds")
    for m in range(3):
        if m == 2:
            e("    s_cmp_ge_u32 s21, 8\n    s_cbranch_scc1 K1_DMAD")
        e(f"""
    s_mov_b32 m0, s27
    s_nop 0
    buffer_load_dwordx4 v4, s[12:15], s27 offen lds
""")
        if m < 2: e("    s_add_u32 s27, s27, 12288")

def kernel1():
    e("""
.text
.globl mpnn_bin_kernel
.p2align 8
.type mpnn_bin_kernel,@function
mpnn_bin_kernel:
    s_load_dwordx4 s[8:11], s[0:1], 16
    s_load_dwordx4 s[4:7], s[0:1], 0        ; x, e_attr
    s_load_dwordx4 s[12:15], s[0:1], 32
    s_load_dwordx2 s[16:17], s[0:1], 64     ; ws
    s_cmp_ge_u32 s2, 512
    s_cbranch_scc1 K1_END
    v_lshrrev_b32 v2, 6, v0
    v_and_b32 v1, 63, v0
    v_readfirstlane_b32 s21, v2
    s_and_b32 s20, s2, 7
    s_lshl_b32 s20, s20, 5
    s_lshr_b32 s3, s2, 4
    s_or_b32 s20, s20, s3
    s_lshr_b32 s3, s2, 5
    s_xor_b32 s3, s3, s2
""")
    stamp(0, 16, 0); light0()
    dbg(0)
    if OPT["k1o"]:
        e("    s_bitcmp0_b32 s3, 3\n    s_cbranch_scc1 K1_BIN")
        gemm_issue()
        e("    s_branch K1_DMAD\nK1_BIN:")
    else:
        e("    s_bitcmp1_b32 s3, 3\n    s_cbranch_scc1 K1_GEMM")
    e("""
    ; ---------------- binning workgroup (waves 0..9) ----------------
    s_cmp_ge_u32 s21, 10
    s_cbranch_scc1 K1_END
""" + ("    s_setprio 3\n" if OPT["k1p"] else "") + """    s_mul_i32 s22, s20, 5000                ; byte offset of this workgroup's src/dst slice
    s_lshl_b32 s23, s22, 1                  ; e_attr slice
    v_lshlrev_b32 v3, 3, v0
    v_lshlrev_b32 v4, 4, v0
    v_cmp_gt_u32 s[44:45], 625, v0
""".replace("v_cmp_gt_u32 s[44:45], 625, v0", "v_cmp_gt_u32 vcc, 625, v0"))
    e("    s_mov_b32 s26, %#x\n    s_mov_b32 s27, 0x20000\n    s_mov_b64 s[44:45], vcc\n    s_mov_b64 exec, vcc\n    s_waitcnt lgkmcnt(0)\n    s_mov_b32 s24, s10\n    s_mov_b32 s25, s11" % (E * 4))
    stamp(6, 16, 0)
    e("    buffer_load_dwordx2 v[6:7], v3, s[24:27], s22 offen      ; dst")
    srd(8, E * 4)
    e("    s_mov_b32 s32, s6\n    s_mov_b32 s33, s7"); srd(32, E * 8)
    def se():
        e("""
    buffer_load_dwordx2 v[8:9], v3, s[8:11], s22 offen       ; src
    buffer_load_dwordx4 v[10:13], v4, s[32:35], s23 offen
""")
    if not OPT["dst1"]: se()
    e(f"""
    s_mov_b64 exec, -1
    v_mov_b64 v[20:21], 0
    v_mov_b64 v[22:23], 0
    s_cmp_lg_u32 s21, 0
    s_cbranch_scc1 K1_NOZ
    ds_write_b128 v4, v[20:23] offset:{K1_CNT}
K1_NOZ:
    s_waitcnt lgkmcnt(0)
    s_barrier
    s_mov_b64 exec, s[44:45]
""")
    if OPT["dst1"]: se()
    e("    s_mov_b64 exec, -1\n    v_mov_b32 v24, 1\n    v_lshlrev_b32 v5, 4, v1")
    srd(16, WSEND)
    e(f"""
    s_mul_i32 s38, s20, {RSTR}
    s_add_u32 s38, s38, {REC}
    s_add_u32 s39, s38, 10240
    s_mov_b64 exec, s[44:45]
    s_waitcnt vmcnt(2)
""")
    stamp(1, 16, 0)
    dbg(1)
    e(f"""
    v_lshlrev_b32 v14, 2, v6
    v_lshlrev_b32 v15, 2, v7
    v_and_b32 v14, 0x3fc, v14
    v_and_b32 v15, 0x3fc, v15
    ds_add_rtn_u32 v16, v14, v24 offset:{K1_CNT}
    ds_add_rtn_u32 v17, v15, v24 offset:{K1_CNT}
    v_lshrrev_b32 v6, 8, v6
    v_lshrrev_b32 v7, 8, v7
    v_lshlrev_b32 v6, 26, v6
    v_lshlrev_b32 v7, 26, v7
    s_mov_b64 exec, -1
    s_waitcnt lgkmcnt(0)
    s_barrier
""")
    stamp(2, 16, 0)
    e(f"""
    ds_read_b128 v[20:23], v5 offset:{K1_CNT}
    s_waitcnt lgkmcnt(0)
    v_add_u32 v25, v20, v21
    v_add_u32 v26, v25, v22
    v_add_u32 v27, v26, v23
    s_nop 1
    v_add_u32_dpp v28, v27, v27 row_shr:1 row_mask:0xf bank_mask:0xf bound_ctrl:1
""")
    for c in ("row_shr:2 row_mask:0xf", "row_shr:4 row_mask:0xf", "row_shr:8 row_mask:0xf", "row_bcast:15 row_mask:0xa", "row_bcast:31 row_mask:0xc"):
        e(f"    s_nop 1\n    v_add_u32_dpp v28, v28, v28 {c} bank_mask:0xf")
    e(f"""
    v_sub_u32 v28, v28, v27
    v_add_u32 v29, v28, v20
    v_add_u32 v30, v28, v25
    v_add_u32 v31, v28, v26
    ds_write_b128 v5, v[28:31] offset:{K1_ST}
    ds_read_b32 v18, v14 offset:{K1_ST}
    ds_read_b32 v19, v15 offset:{K1_ST}
    s_waitcnt vmcnt(1)
    v_lshl_or_b32 v8, v8, 3, v6
    v_lshl_or_b32 v9, v9, 3, v7
    s_mov_b64 exec, s[44:45]
    s_waitcnt lgkmcnt(0)
    v_add_u32 v18, v18, v16
    v_add_u32 v19, v19, v17
    v_mul_u32_u24 v18, 12, v18
    v_mul_u32_u24 v19, 12, v19
    ds_write_b32 v18, v8 offset:{K1_STG + 8}
    ds_write_b32 v19, v9 offset:{K1_STG + 8}
    v_add_u32 v18, {K1_STG}, v18
    v_add_u32 v19, {K1_STG}, v19
    s_waitcnt vmcnt(0)
    ds_write2_b32 v18, v10, v11 offset0:0 offset1:1
    ds_write2_b32 v19, v12, v13 offset0:0 offset1:1
    s_mov_b64 exec, -1
    s_cmp_lg_u32 s21, 9
    s_cbranch_scc1 K1_NOD
    v_lshl_or_b32 v32, v20, 16, v28
    v_lshl_or_b32 v33, v21, 16, v29
    v_lshl_or_b32 v34, v22, 16, v30
    v_lshl_or_b32 v35, v23, 16, v31
    s_lshl_b32 s36, s20, 4
    s_add_u32 s36, s36, {DESC}
    v_and_b32 v36, 7, v1
    v_lshrrev_b32 v37, 3, v1
    v_lshl_or_b32 v36, v36, 3, v37
    v_lshlrev_b32 v36, 12, v36
    buffer_store_dwordx4 v[32:35], v36, s[16:19], s36 offen
K1_NOD:
    s_waitcnt lgkmcnt(0)
    s_barrier
""")
    stamp(3, 16, 0)
    e(f"""
    ds_read_b128 v[20:23], v4 offset:{K1_STG}
    s_cmp_ge_u32 s21, 5
    s_cbranch_scc1 K1_C1
    ds_read_b128 v[24:27], v4 offset:{K1_STG + 10240}
    s_waitcnt lgkmcnt(0)
    buffer_store_dwordx4 v[24:27], v4, s[16:19], s39 offen
K1_C1:
    s_waitcnt lgkmcnt(0)
    buffer_store_dwordx4 v[20:23], v4, s[16:19], s38 offen
""")
    light1(16, 0)
    if OPT["stamps"]:
        stamp(4, 16, 0); e("    s_waitcnt vmcnt(0)"); stamp(5, 16, 0); stamp_out(16, 0)
    e(f"""
    s_endpgm
""")
    if not OPT["k1o"]:
        e("K1_GEMM:")
        gemm_issue()
    e("K1_DMAD:")
    srd(16, N * 256)
    e(f"""
    s_lshr_b32 s23, s21, 2
    s_and_b32 s24, s21, 3
    v_lshrrev_b32 v24, 2, v3                ; r'
    v_and_b32 v25, 3, v3                    ; c'
    v_and_b32 v26, 1, v2
    v_lshl_or_b32 v26, v26, 2, v24          ; h(k)
    v_lshl_add_u32 v27, v2, 3, v24          ; 8g + r'
    v_lshlrev_b32 v27, 8, v27
    v_lshl_or_b32 v27, v25, 3, v27
    s_lshl_b32 s27, s24, 1
    v_xor_b32 v26, s27, v26
    v_lshl_add_u32 v28, v26, 5, v27
    v_xor_b32 v29, 32, v28
    ; x fragments
    v_xor_b32 v30, v2, v3
    v_lshlrev_b32 v30, 4, v30
    v_lshl_or_b32 v30, v3, 8, v30
    s_lshl_b32 s27, s23, 12
    s_add_u32 s27, s27, {K1_XL}
    v_add_u32 v30, s27, v30
    v_xor_b32 v31, 64, v30
    v_xor_b32 v32, 0x80, v30
    v_xor_b32 v33, 0xc0, v30
    s_lshl_b32 s26, s23, 4
    s_add_u32 s25, s25, s26
    v_add_u32 v5, s25, v3
    v_lshlrev_b32 v5, 8, v5
    v_lshl_or_b32 v5, v2, 4, v5
    s_lshl_b32 s27, s24, 6
    v_add_u32 v5, s27, v5
    s_mov_b32 s28, {NL2E:#x}
    s_waitcnt vmcnt(0)
    s_barrier
""")
    stamp(3, 16, 0)
    for s in range(4):
        e(f"    ds_read_b128 {vr(8 + 4 * s, 4)}, v{30 + s}")
        for f in range(2):
            for u2 in range(2):
                e(f"    ds_read_b64_tr_b16 {vr(36 + 16 * f + 4 * s + 2 * u2, 2)}, v{28 + f} offset:{s * 8192 + u2 * 1024}")
    for s in range(4):
        for f in range(2):
            left = 20 - (5 * s + 3 + 2 * f)
            e(f"    s_waitcnt lgkmcnt({min(left, 15)})")
            c = "0" if s == 0 else vr(68 + 4 * f, 4)
            e(f"    v_mfma_f32_16x16x32_bf16 {vr(68 + 4 * f, 4)}, {vr(36 + 16 * f + 4 * s, 4)}, {vr(8 + 4 * s, 4)}, {c}")
    e("    s_nop 5")
    for f in range(2):
        for h in range(2):
            r = 68 + 4 * f + 2 * h
            e(f"    v_pk_mul_f32 {vr(r, 2)}, {vr(r, 2)}, s[28:29] op_sel_hi:[1,0]")
        for h in range(2):
            r = 68 + 4 * f + 2 * h
            e(f"    v_cvt_pk_bf16_f32 v{76 + 2 * f + h}, v{r}, v{r + 1}")
    e(f"    buffer_store_dwordx4 v[76:79], v5, s[16:19], 0 offen")
    light1(16, 0)
    if OPT["stamps"]:
        srd(16, WSEND); stamp(4, 16, 0); e("    s_waitcnt vmcnt(0)"); stamp(5, 16, 0); stamp_out(16, 0)
    e(f"""
    s_endpgm
K1_JOBS:
    s_sub_u32 s23, s20, 209
    s_mul_i32 s23, s23, 12
    s_add_u32 s23, s23, s21
    s_waitcnt lgkmcnt(0)
""")
    srd(16, WSEND)
    e(f"""
    s_cmp_ge_u32 s23, 96
    s_cbranch_scc1 K1_JOB2
    s_lshr_b32 s24, s23, 5
    s_bfe_u32 s25, s23, 0x30002             ; f
    s_and_b32 s26, s23, 3                   ; s
    s_cmp_eq_u32 s24, 0
    s_cselect_b32 s28, s12, s14
    s_cselect_b32 s29, s13, s15
    s_mov_b32 s30, {256 * 256}
    s_mov_b32 s31, 0x20000
    ; column
    s_lshl_b32 s33, s25, 4                  ; 16 f
    v_add_u32 v4, s33, v3
    v_lshlrev_b32 v4, 1, v4
    ; row
    v_lshlrev_b32 v5, 11, v2                ; 8 g rows
    v_lshrrev_b32 v7, 1, v2
    v_lshlrev_b32 v7, 12, v7
    v_and_b32 v6, 1, v2
    v_lshl_or_b32 v7, v6, 9, v7             ; 16 (g>>1) + 2 (g&1) rows
    s_cmp_eq_u32 s24, 2
    s_cselect_b64 vcc, -1, 0
    s_cselect_b32 s32, 10, 13
    s_movk_i32 s33, 512
    s_cmovk_i32 s33, 8192
    s_cselect_b32 s34, {NSC:#x}, 1.0
    v_cndmask_b32 v5, v5, v7, vcc
    v_add_u32 v4, v4, v5
    s_lshl_b32 s40, s26, s32
    s_cmp_eq_u32 s24, 1
    s_cselect_b32 s36, 0, 0x8000
    s_add_u32 s40, s40, s36
    s_add_u32 s41, s40, s33
    s_add_u32 s42, s41, s33
    s_add_u32 s43, s42, s33
""")
    for m in range(8):
        e(f"    buffer_load_ushort v{8 + m}, v4, s[28:31], s{40 + m // 2} offen offset:{(m & 1) * 256}")
    e(f"""
    s_lshl_b32 s37, s23, 10
    s_add_u32 s37, s37, {W2F}
    v_lshlrev_b32 v6, 4, v1
    s_mov_b32 s38, 0x07060302
    s_waitcnt vmcnt(0)
""")
    for m in range(8):
        e(f"    v_lshlrev_b32 v{8 + m}, 16, v{8 + m}\n    v_mul_f32 v{8 + m}, s34, v{8 + m}")
    for m in range(4):
        e(f"    v_perm_b32 v{16 + m}, v{9 + 2 * m}, v{8 + 2 * m}, s38")
    e(f"""
    buffer_store_dwordx4 v[16:19], v6, s[16:19], s37 offen
    s_endpgm
K1_JOB2:
    s_cmp_ge_u32 s23, 98
    s_cbranch_scc1 K1_JOB3
    s_sub_u32 s24, s23, 96                  ; c
    s_mov_b32 s14, {260 * 256}
    s_mov_b32 s15, 0x20000
    v_and_b32 v2, 31, v1
    v_lshrrev_b32 v3, 5, v1
    v_lshl_or_b32 v2, v2, 1, v3             ; p & 63
    v_and_b32 v4, 0x23, v2
    v_bfe_u32 v5, v2, 2, 1
    v_lshl_or_b32 v4, v5, 4, v4
    v_bfe_u32 v5, v2, 3, 2
    v_lshl_or_b32 v4, v5, 2, v4             ; feature & 63
    v_lshlrev_b32 v4, 1, v4
    s_lshl_b32 s25, s24, 7
    s_add_u32 s25, s25, {256 * 256}
""")
    for d in range(4):
        e(f"    buffer_load_ushort v{8 + d}, v4, s[12:15], s25 offen offset:{d * 256}")
    e(f"""
    s_lshl_b32 s37, s24, 10
    s_add_u32 s37, s37, {W3F}
    v_lshlrev_b32 v6, 4, v1
    s_mov_b32 s34, {NL2E:#x}
    s_waitcnt vmcnt(0)
""")
    for d in range(4):
        e(f"    v_lshlrev_b32 v{8 + d}, 16, v{8 + d}\n    v_mul_f32 v{8 + d}, s34, v{8 + d}")
    e("""
    v_cvt_pk_bf16_f32 v16, v8, v9
    v_cvt_pk_bf16_f32 v17, v10, v11
    v_lshlrev_b32 v12, 16, v16
    v_and_b32 v13, 0xffff0000, v16
    v_lshlrev_b32 v14, 16, v17
    v_and_b32 v15, 0xffff0000, v17
    v_sub_f32 v8, v8, v12
    v_sub_f32 v9, v9, v13
    v_sub_f32 v10, v10, v14
    v_sub_f32 v11, v11, v15
    v_cvt_pk_bf16_f32 v18, v8, v9
    v_cvt_pk_bf16_f32 v19, v10, v11
    buffer_store_dwordx4 v[16:19], v6, s[16:19], s37 offen
    s_endpgm
K1_JOB3:
    s_cmp_ge_u32 s20, 224
    s_cbranch_scc1 K1_SPARE
    s_cmp_lg_u32 s23, 98
    s_cbranch_scc1 K1_END
    v_mov_b32 v8, 0
    v_lshlrev_b32 v6, 2, v1
""")
    e(f"""
    s_mov_b32 s37, {PT + N * 256}
    buffer_store_dword v8, v6, s[16:19], s37 offen
K1_END:
    s_endpgm
K1_SPARE:
""")
    if OPT["cpf"]:
        e(f"""
    s_getpc_b64 s[24:25]
K1_PC:
    s_bfe_u32 s22, s20, 0x20003
    s_mul_i32 s22, s22, 12
    s_add_u32 s22, s22, s21
    s_mul_i32 s22, s22, {OPT["cpf"] * 64}
    v_lshl_add_u32 v2, v1, 6, s22
    v_min_u32 v2, K2_LAST - mpnn_edge_kernel, v2
    v_add_u32 v2, mpnn_edge_kernel - K1_PC, v2
    v_mov_b32 v3, s25
    v_add_co_u32 v2, vcc, s24, v2
    s_nop 1
    v_addc_co_u32 v3, vcc, 0, v3, vcc
    s_bfm_b64 exec, {OPT["cpf"]}, 0
    global_load_dword v4, v[2:3], off
""")
    e("    s_endpgm")

RS = 1040
RB, RO = 288, 272
CAP = 2048
MISC = 0
ZR, CNT, MORE, FL = 0, 768, 1024, 1088
SO = 2048
EA = SO + CAP * 4
W3L = EA + CAP * 8
QU = W3L + 2048
AG = QU + 41 * RS
XL = (AG + 2 * 16384 + 11 * 1024 + 255) // 256 * 256
AGB = XL
K2_LDS = AGB + 48 * RB
PADV = N * 8
S16MAX = (CAP // 4 - 8) * 16
NT = 16
NK = 6
vSO, vP, vD, vE, vAe, vBw, vQ, vNp, vAc, vI = 8, (16, 24), (32, 92), 48, 64, 68, 72, 126, (80, 82), 84
vaS, vaE, vAct, vaN = (86, 87), 88, 89, (90, 91)
vU = 108
vR, vN4, vTa, vStr, vRS, vW3a = 60, tuple(range(19, 25)), 56, 57, 124, 125
vC4, vQ16, vE16, vS16 = 120, 121, 122, 123
vCA, vCW, vCN, vFR = 120, 121, 122, 124
sM = [40 + 2 * k for k in range(NK)]
sFM, sEV = (28, 30), (32, 33)
sFirst, sMoreV, sMM = 56, 57, 58
M9 = "0x01ff01ff"
KCOP = "s[26:27], s[26:27] op_sel_hi:[1,0,0] clamp"
PRIO_0, PRIO_AT = 2, {NT - 4: 1, NT - 1: 0}

def prio(n): e(f"    s_setprio {n}")

def flush_adds(y):
    t = vE + 8 * y
    e(f"""
    v_cvt_f64_f32 {vr(t, 2)}, v{vAc[y]}
    v_cvt_f64_f32 {vr(t + 2, 2)}, v{vAc[y] + 1}
    ds_add_f64 v{vaN[y]}, {vr(t, 2)} offset:{AG - QU}
    ds_add_f64 v{vaN[y]}, {vr(t + 2, 2)} offset:{AG - QU + 8}
""")

def exec_bit(y, t):
    e(f"    s_bfe_i32 exec_lo, s{sFM[y]}, {0x10000 | t:#x}\n    s_bfe_i32 exec_hi, s{sFM[y] + 1}, {0x10000 | t:#x}")

def event_block(t, y):
    e(f"K2_EV{t}_{y}:")
    exec_bit(y, t)
    e(f"    s_cbranch_execz K2_EQ{t}_{y}")
    flush_adds(y)
    e(f"""
    v_add_u32 v{vaN[y]}, {RS}, v{vaN[y]}
    v_mov_b64 {vr(vAc[y], 2)}, 0
K2_EQ{t}_{y}:
""")
    if t + 2 < NT:
        exec_bit(y, t + 1)
        e(f"    ds_read_b64 {vr(vQ + 2 * y, 2)}, v{vaN[y]} offset:{RS}")
    e(f"    s_mov_b64 exec, -1\n    s_branch K2_EB{t}_{y}")

def gather_lines(dst, adr):
    out = []
    for q in range(4):
        for y in range(2):
            a = adr + 4 * y + q
            pre = f"    v_min_u32 v{a}, {PADV}, v{a}\n    v_and_b32 v{a}, -8, v{a}\n" if OPT["safe"] else ""
            out.append(pre + f"    buffer_load_dword v{dst + 2 * q + y}, v{a}, s[8:11], 0 offen")
    return out
def gathers(dst, adr):
    for l in gather_lines(dst, adr): e(l)

def mfma4(D, P, q): return f"    v_mfma_f32_4x4x4_16b_bf16 {vr(D + 4 * q, 4)}, {vr(vI, 2)}, {vr(P + 2 * q, 2)}, {vr(vQ, 4)}"
def mfma32(D): return f"    v_mfma_f32_32x32x16_bf16 {vr(D, 16)}, {vr(vAe, 4)}, {vr(vBw, 4)}, {vr(D, 16)}"

def core_lines(D):
    Ee = vE
    def p(r): return vr(r, 2)
    ex = [f"    v_exp_f32 v{Ee + k}, v{D + k}" for k in range(16)]
    sc = [f"    v_pk_fma_f32 {p(Ee + 2 * m)}, {p(Ee + 2 * m)}, {KCOP}" for m in range(8)]
    seq = [
        lambda o: f"v_pk_mul_f32 {p(D + o)}, {p(D + o)}, {p(Ee + o + 4)}",
        lambda o: f"v_pk_mul_f32 {p(D + o + 8)}, {p(D + o + 8)}, {p(Ee + o + 12)}",
        lambda o: f"v_pk_fma_f32 {p(D + o)}, {p(D + o + 4)}, {p(Ee + o)}, {p(D + o)}",
        lambda o: f"v_pk_fma_f32 {p(D + o + 8)}, {p(D + o + 12)}, {p(Ee + o + 8)}, {p(D + o + 8)}",
        lambda o: f"v_pk_mul_f32 {p(Ee + o)}, {p(Ee + o)}, {p(Ee + o + 4)}",
        lambda o: f"v_pk_mul_f32 {p(Ee + o + 8)}, {p(Ee + o + 8)}, {p(Ee + o + 12)}",
        lambda o: f"v_pk_mul_f32 {p(Ee + o + 4)}, {p(Ee + o)}, {p(Ee + o + 8)}",
        lambda o: f"v_pk_mul_f32 {p(D + o)}, {p(D + o)}, {p(Ee + o + 8)}",
        lambda o: f"v_rcp_f32 v{Ee + o + 4}, v{Ee + o + 4}",
        lambda o: f"v_rcp_f32 v{Ee + o + 5}, v{Ee + o + 5}",
        lambda o: f"v_pk_fma_f32 {p(D + o)}, {p(D + o + 8)}, {p(Ee + o)}, {p(D + o)}",
        lambda o: f"v_pk_fma_f32 {p(vAc[o // 2])}, {p(D + o)}, {p(Ee + o + 4)}, {p(vAc[o // 2])}",
    ]
    return ex, sc, ["    " + fn(o) for fn in seq for o in (0, 2)]

def tile(t):
    a, r = t % 2, NT - t
    ex, sc, rest = core_lines(vD[a])
    Dn, Pn = vD[1 - a], vP[1 - a]
    e(f"K2_T{t}:")
    if t in PRIO_AT: prio(PRIO_AT[t])
    if r >= 2:
        seq = ex[:2] + [f"    s_waitcnt vmcnt({8 if r >= 3 else 0}) lgkmcnt(0)"]
        for q in range(4): seq += [mfma4(Dn, Pn, q), ex[2 + q]]
        seq += ex[6:9] + [mfma32(Dn)] + ex[9:14]
        if r >= 4: seq += gather_lines(Pn, vSO)
        if r >= 5: seq += [f"    ds_read_b128 {vr(vSO + 4 * y, 4)}, v{vaS[y]} offset:{16 * (t + 4)}" for y in range(2)]
        if r >= 3: seq += [f"    ds_read2_b64 {vr(vAe, 4)}, v{vaE} offset0:{4 * (t + 2)} offset1:{4 * (t + 2)}"]
        seq += ex[14:]
    else:
        seq = list(ex)
    for l in seq + sc + rest: e(l)
    stamp(100 + t - 5, 4, 1)
    if r >= 2:
        for y in range(2):
            e(f"    s_bitcmp1_b32 s{sEV[y]}, {t}\n    s_cbranch_scc1 K2_EV{t}_{y}\nK2_EB{t}_{y}:")

def x_addr(xa):
    e(f"""
    v_xor_b32 v{xa}, v5, v6
    v_lshlrev_b32 v{xa}, 4, v{xa}
    v_lshl_or_b32 v{xa}, v6, 8, v{xa}
    v_add_u32 v{xa}, {XL}, v{xa}
    v_xor_b32 v{xa + 1}, 64, v{xa}
    v_xor_b32 v{xa + 2}, 0x80, v{xa}
    v_xor_b32 v{xa + 3}, 0xc0, v{xa}
""")
def x_reads(xa, xb):
    for s in range(4):
        for T in range(3):
            e(f"    ds_read_b128 {vr(xb(T, s), 4)}, v{xa + s} offset:{4096 * T}")
def node_mfma(acc, W, xb):
    for s in range(4):
        for T in range(3):
            e(f"    s_waitcnt lgkmcnt({11 - 3 * s - T})")
            c = "0" if s == 0 else vr(acc + 4 * T, 4)
            e(f"    v_mfma_f32_16x16x32_bf16 {vr(acc + 4 * T, 4)}, {vr(W + 4 * s, 4)}, {vr(xb(T, s), 4)}, {c}")
def per_record(lab, fn):
    for k in range(NK):
        e(f"    s_mov_b64 exec, {sr(sM[k], 2)}")
        if k >= 2: e(f"    s_cbranch_execz {lab}")
        fn(k)
    e(f"{lab}:")

def kernel2():
    e(f"""
.text
.globl mpnn_edge_kernel
.p2align 8
.type mpnn_edge_kernel,@function
mpnn_edge_kernel:
    s_load_dwordx2 s[4:5], s[0:1], 64       ; ws
    s_load_dwordx2 s[12:13], s[0:1], 0      ; x
    s_load_dwordx2 s[16:17], s[0:1], 48     ; out
    s_cmp_ge_u32 s2, 256
    s_cbranch_scc1 K2_END
    v_lshrrev_b32 v2, 6, v0
    s_and_b32 s34, s2, 63
    v_readfirstlane_b32 s21, v2
    s_lshl_b32 s34, s34, 10
    s_lshr_b32 s3, s2, 6
    s_add_u32 s34, s34, s3
    s_lshl2_add_u32 s34, s34, {DESC}
    s_mov_b32 s6, {WSEND:#x}
    s_mov_b32 s7, 0x20000
    v_and_b32 v4, -4, v0
    v_lshlrev_b32 v4, 2, v4
""")
    stamp(0, 4, 1); light0()
    e(f"""
    v_lshrrev_b32 v8, 4, v0
    v_xor_b32 v9, v8, v0
    v_and_b32 v9, 15, v9
    s_waitcnt lgkmcnt(0)
    buffer_load_dword v2, v4, s[4:7], s34 offen
    s_and_b32 s20, s2, 7
    s_bfe_u32 s35, s2, 0x30003
    s_lshl3_add_u32 s20, s20, s35
    s_lshl2_add_u32 s20, s20, s3
    s_cmp_ge_u32 s21, 11
    s_cbranch_scc1 K2_NOX
    s_lshl_b32 s35, s20, 8
    v_lshl_add_u32 v8, v8, 16, s35
    s_lshl_b32 s36, s21, 10
    s_add_u32 s36, s36, {XL}
    s_mov_b32 m0, s36
""")
    srd(12, N * 256)
    e(f"""
    v_lshl_add_u32 v8, v9, 4, v8
    buffer_load_dwordx4 v8, s[12:15], 0 offen lds
K2_NOX:
    v_lshrrev_b32 v3, 2, v0
    v_mul_u32_u24 v3, {RSTR}, v3
    v_and_b32 v4, 3, v0
    s_mov_b32 s24, 0
    s_mov_b32 s25, {4 * NK}
    s_mov_b32 s{sFirst}, 1
    v_lshlrev_b32 v56, 4, v0
    v_mov_b64 v[8:9], 0
    v_mov_b64 v[10:11], 0
    s_cmp_ge_u32 s21, 2
    s_cbranch_scc1 K2_NOZ0
    ds_write_b128 v56, v[8:11] offset:{MISC}
K2_NOZ0:
    v_add_u32 v57, {AG}, v56
    ds_write_b128 v57, v[8:11]
    ds_write_b128 v57, v[8:11] offset:16384
    s_cmp_ge_u32 s21, 11
    s_cbranch_scc1 K2_NOZ3
    ds_write_b128 v57, v[8:11] offset:32768
    s_waitcnt vmcnt(1)
    s_branch K2_ROUND
K2_NOZ3:
    s_waitcnt vmcnt(0)
K2_ROUND:
""")
    prio(2)
    stamp(1, 4, 1)
    e(f"""
    v_lshrrev_b32 v16, 16, v2               ; count
    v_and_b32 v17, 0xffff, v2               ; start
    v_subrev_u32 v16, s24, v16
    v_add3_u32 v17, v17, s24, v4
    v_min_i32 v18, s25, v16
    v_mad_u32_u24 v17, v17, 12, v3
    v_sub_u32 v18, v18, v4
    s_mov_b32 s34, {REC}
""")
    for k in range(4): e(f"    v_cmp_lt_i32 {sr(sM[k], 2)}, {4 * k}, v18")
    def ld(k):
        e(f"    buffer_load_dwordx3 {vr(vR + 4 * k, 3)}, v17, s[4:7], s34 offen offset:{48 * k}")
        if 4 <= k + 1 < NK: e(f"    v_cmp_lt_i32 {sr(sM[k + 1], 2)}, {4 * (k + 1)}, v18")
    per_record("K2_RLD", ld)
    e("    s_mov_b64 exec, -1")
    stamp(2, 4, 1)
    prio(0)
    e(f"""
    v_and_b32 v1, 63, v0
    v_cmp_lt_i32 {sr(sMM, 2)}, s25, v16
    v_lshlrev_b32 v7, 4, v1                 ; lane*16
    s_mov_b32 s75, 0
    s_waitcnt lgkmcnt(3)
    s_barrier
    ds_write_b128 v56, v[8:11] offset:{EA}
    s_cmp_ge_u32 s21, 8
    s_cbranch_scc1 K2_NOSO
    v_mov_b32 v12, {PADV}
    v_mov_b32 v13, v12
    v_mov_b32 v14, v12
    v_mov_b32 v15, v12
    ds_write_b128 v56, v[12:15] offset:{SO}
    s_branch K2_NOW2
K2_NOSO:
    s_mov_b32 s75, s{sFirst}
    s_cmp_eq_u32 s75, 0
    s_cbranch_scc1 K2_NOW2
    s_lshl_b32 s74, s21, 12
    s_add_u32 s74, s74, {W2F - 8 * 4096}
""")
    for s in range(4):
        e(f"    buffer_load_dwordx4 {vr(92 + 4 * s, 4)}, v7, s[4:7], s74 offen offset:{1024 * s}")
    e(f"""
K2_NOW2:
    s_cmp_eq_u32 s{sFirst}, 0
    s_cbranch_scc1 K2_SETD
    v_lshrrev_b32 v5, 4, v1                 ; g
    v_and_b32 v6, 15, v1                    ; n
    v_mov_b32 v{vNp}, 0
    s_cmp_lt_u32 s20, 16
    s_cselect_b32 s22, 40, 39
    s_bfm_b64 s[78:79], s22, 0
    s_and_b32 s23, s21, 1
    s_lshr_b32 s76, s21, 1
    s_mov_b32 s26, {KC:#x}
    s_mov_b32 s72, {NL2E:#x}
    s_lshl_b32 s39, s23, 7
    s_add_u32 s8, s4, s39
    s_addc_u32 s9, s5, 0
    s_or_b32 s9, s9, 0x80000000
    s_mov_b32 s10, 0x10000
    s_mov_b32 s11, 0x00c00000
""")
    srd(16, N * 256)
    e(f"""
K2_SETD:
    v_mov_b32 v59, 4
    v_lshlrev_b32 v58, 2, v1
    v_mov_b32 v{vRS}, {RS}
    v_and_b32 v{vaN[1]}, 31, v1
    s_lshl_b32 s36, s23, 9
    s_add_u32 s37, s36, {QU}
    v_lshl_add_u32 v{vaN[0]}, v{vaN[1]}, 4, s37
    v_lshl_add_u32 v{vW3a}, s36, 1, v7
    s_movk_i32 s36, 0x3f80
    s_mov_b32 s37, 0
    v_and_b32 v16, 0x30, v7
    v_lshlrev_b64 {vr(vI, 2)}, v16, s[36:37]
    v_mov_b32 v{vS16}, 0
    v_mov_b64 {vr(vaE, 2)}, 0
    v_mov_b32 v{vStr}, 0
    s_mov_b64 exec, s[78:79]
    v_mov_b32 v{vS16}, 16
    s_mov_b32 exec_lo, 0x55555555
    s_mov_b32 exec_hi, 0xaaaaaaaa
    v_and_b32 v{vaE}, 0x18, v1
    v_mov_b32 v{vAct}, 1
    v_bfe_u32 v{vStr}, v1, 1, 2
    s_mov_b64 exec, {sr(sMM, 2)}
    s_cbranch_execnz K2_MORE
K2_MOREB:
    s_cmp_eq_u32 s75, 0
    s_cbranch_scc1 K2_W0
    s_mov_b64 exec, -1
""")
    x_addr(108)
    e(f"""
    s_bfe_u32 s36, s21, 0x20001
    s_lshl3_add_u32 s36, s36, s23
    s_lshl_b32 s36, s36, 5
    s_add_u32 s36, s36, {QU}
    v_mul_u32_u24 v{vTa}, {RS}, v6
    v_lshl_add_u32 v{vTa}, v5, 6, v{vTa}
    v_add_u32 v{vTa}, s36, v{vTa}
""")
    prio(2)
    e("    s_waitcnt vmcnt(4)\n    s_branch K2_RECS\nK2_W0:")
    prio(2)
    e("    s_waitcnt vmcnt(0)\nK2_RECS:")
    stamp(3, 4, 1)
    per_record("K2_HISTD", lambda k: e(f"""
    v_lshrrev_b32 v{vN4[k]}, 24, v{vR + 2 + 4 * k}
    ds_add_rtn_u32 v{vR + 3 + 4 * k}, v{vN4[k]}, v59 offset:{CNT}
    v_and_b32 v{vR + 2 + 4 * k}, 0x3ffffff, v{vR + 2 + 4 * k}
"""))
    e(f"""
    s_mov_b64 exec, -1
    s_cmp_ge_u32 s21, 2
    s_cbranch_scc1 K2_NOW3
    s_lshl_b32 s34, s21, 10
    s_add_u32 s35, s34, {W3L}
    s_add_u32 s34, s34, {W3F}
    s_mov_b32 m0, s35
    s_nop 0
    buffer_load_dwordx4 v7, s[4:7], s34 offen lds
K2_NOW3:
    s_waitcnt lgkmcnt(0)
    s_barrier
""")
    stamp(4, 4, 1)
    e(f"""
    ds_read_b32 v{vC4}, v58 offset:{CNT}
    s_waitcnt lgkmcnt(0)
    v_add_u32 v{vQ16}, 12, v{vC4}
    v_and_b32 v{vQ16}, -16, v{vQ16}
    v_max_u32 v{vQ16}, v{vS16}, v{vQ16}     ; 16*quads
    s_nop 1
    v_add_u32_dpp v{vE16}, v{vQ16}, v{vQ16} row_shr:1 row_mask:0xf bank_mask:0xf bound_ctrl:1
""")
    for c in ("row_shr:2 row_mask:0xf", "row_shr:4 row_mask:0xf", "row_shr:8 row_mask:0xf", "row_bcast:15 row_mask:0xa", "row_bcast:31 row_mask:0xc"):
        e(f"    s_nop 1\n    v_add_u32_dpp v{vE16}, v{vE16}, v{vE16} {c} bank_mask:0xf")
    e(f"""
    v_sub_u32 v{vS16}, v{vE16}, v{vQ16}
    v_readlane_b32 s34, v{vE16}, 63
""")
    for k in range(NK):
        if k >= 3: e(f"    s_cmp_eq_u64 {sr(sM[k], 2)}, 0\n    s_cbranch_scc1 K2_BPD")
        e(f"    ds_bpermute_b32 v{vN4[k]}, v{vN4[k]}, v{vS16}")
    e(f"""
K2_BPD:
    s_cmp_gt_u32 s34, {S16MAX}
    s_cbranch_scc1 K2_REDO
    s_add_u32 s34, s34, 48
    s_lshr_b32 s35, s34, 9
    s_bfe_u32 s34, s34, 0x30006
    s_mul_i32 s37, s76, s35
    s_waitcnt lgkmcnt(0)
""")
    per_record("K2_GEO", lambda k: e(f"""
    v_add_u32 v{vN4[k]}, v{vN4[k]}, v{vR + 3 + 4 * k}
    ds_write_b32 v{vN4[k]}, v{vR + 2 + 4 * k} offset:{SO}
    v_add_u32 v{vR + 3 + 4 * k}, v{vN4[k]}, v{vN4[k]}
"""))
    e(f"""
    s_cmp_lg_u32 s21, 0
    s_cbranch_scc1 K2_NOFL
    s_mov_b64 exec, s[78:79]
    v_lshrrev_b32 v16, 4, v{vE16}
    ds_write_b8 v16, v59 offset:{FL - 1}
K2_NOFL:
    s_min_u32 s38, s76, s34
    s_add_u32 s37, s37, s38
    s_lshl_b32 s60, s37, 6                  ; stream (0,X)
    s_cmp_lt_u32 s76, s34
    s_addc_u32 s35, s35, 0
    s_mov_b64 exec, -1
    v_and_b32 v{vaS[0]}, 32, v1
    v_mul_u32_u24 v{vaS[0]}, s35, v{vaS[0]}
    s_lshl_b32 s77, s35, 4
    v_add_u32 v{vaS[0]}, s60, v{vaS[0]}
    v_add_u32 v{vaS[1]}, s77, v{vaS[0]}
    s_cmp_lg_u32 s75, 0
    s_waitcnt vmcnt(0) lgkmcnt(0)
    s_barrier
""")
    stamp(5, 4, 1)
    def ea_writes(lab):
        per_record(lab, lambda k: e(f"    ds_write_b64 v{vR + 3 + 4 * k}, {vr(vR + 4 * k, 2)} offset:{EA}"))
    def first_gathers(lab):
        e(f"""
    ds_read_b128 {vr(vSO, 4)}, v{vaS[0]} offset:{SO}
    ds_read_b128 {vr(vSO + 4, 4)}, v{vaS[1]} offset:{SO}
    ds_read_b128 {vr(vE, 4)}, v{vaS[0]} offset:{SO + 16}
    ds_read_b128 {vr(vE + 4, 4)}, v{vaS[1]} offset:{SO + 16}
    s_bitcmp1_b32 s35, 0
    s_cbranch_scc1 {lab}1
""")
        for a in range(2):
            if a: e(f"{lab}1:")
            e("    s_waitcnt lgkmcnt(2)")
            gathers(vP[a], vSO)
            e("    s_waitcnt lgkmcnt(0)")
            gathers(vP[1 - a], vE)
            if not a: e(f"    s_branch {lab}D")
        e(f"{lab}D:")
    def addresses():
        e(f"""
    v_lshrrev_b32 v8, 4, v{vaS[0]}
    v_add_u32 v8, v8, v{vaN[1]}
    v_add_u32 v9, s35, v8
    ds_read_u8 v8, v8 offset:{FL}
    ds_read_u8 v9, v9 offset:{FL}
    ds_read_b128 {vr(vBw, 4)}, v{vW3a} offset:{W3L}
    s_add_u32 s61, s60, s77
    s_add_u32 s62, s61, s77
    s_add_u32 s63, s62, s77
    s_mov_b64 exec, s[78:79]
""")
        for k in range(4):
            e(f"    v_cmp_ge_u32 vcc, s{60 + k}, v{vE16}\n    s_bcnt1_i32_b64 s{64 + k}, vcc")
        e(f"""
    v_sub_u32 v{vQ16}, v{vQ16}, v{vC4}
    v_add_u32 v{vNp}, v{vNp}, v{vQ16}
    s_mov_b32 exec_hi, 0
    v_mad_u32_u24 v{vaN[1]}, s65, v{vRS}, v{vaN[0]}
    v_mad_u32_u24 v{vaN[0]}, s64, v{vRS}, v{vaN[0]}
    s_not_b64 exec, exec
    v_mad_u32_u24 v{vaN[1]}, s67, v{vRS}, v{vaN[0]}
    v_mad_u32_u24 v{vaN[0]}, s66, v{vRS}, v{vaN[0]}
    s_mov_b64 exec, -1
    s_lshl_b32 s36, s35, 5
    s_lshl1_add_u32 s37, s60, {EA}
    v_mad_u32_u24 v{vaE}, v{vStr}, s36, v{vaE}
    v_mad_u32_u24 v{vaE}, v{vAct}, s37, v{vaE}
    v_mov_b64 {vr(vAc[0], 2)}, 0
    v_mov_b64 {vr(vAc[1], 2)}, 0
    s_sub_u32 s34, {NT}, s35
    s_add_u32 s38, s77, {SO - 16 * NT}
    s_sub_u32 s39, s36, {32 * NT}
    s_waitcnt lgkmcnt(0)
    v_cmp_ne_u32 {sr(sFM[0], 2)}, 0, v8
    v_cmp_ne_u32 {sr(sFM[1], 2)}, 0, v9
""")
    def tile_write(src, o):
        for T in range(3):
            if T == 2: e(f"    s_mov_b32 exec_lo, {M9}\n    s_mov_b32 exec_hi, {M9}")
            for h in range(2):
                src(T, h)
            for h in range(2):
                e(f"    ds_write_b64 v{vTa}, {vr(o[0] + 4 * T + 2 * h, 2)} offset:{16 * RS * T + 16 * h + o[1]}")
        e("    s_mov_b64 exec, -1")
    e("    s_cbranch_scc0 K2_FG")
    prio(3)
    xbq = lambda T, s: 8 + 16 * T + 4 * s
    x_reads(108, xbq)
    node_mfma(vU, 92, xbq)
    ea_writes("K2_EAQ")
    e("    s_mov_b64 exec, -1\n    s_nop 0")
    tile_write(lambda T, h: e(f"    v_pk_mul_f32 {vr(vU + 4 * T + 2 * h, 2)}, {vr(vU + 4 * T + 2 * h, 2)}, s[72:73] op_sel_hi:[1,0]"), (vU, 0))
    e("    s_waitcnt lgkmcnt(0)\n    s_barrier")
    for r in range(12):
        e(f"    v_exp_f32 v{92 + r}, v{vU + r}")
    for r in range(0, 12, 2):
        e(f"    v_pk_fma_f32 {vr(92 + r, 2)}, {vr(92 + r, 2)}, {KCOP}")
    for r in range(12):
        e(f"    v_rcp_f32 v{92 + r}, v{92 + r}")
    tile_write(lambda T, h: e(f"    v_pk_mul_f32 {vr(92 + 4 * T + 2 * h, 2)}, {vr(92 + 4 * T + 2 * h, 2)}, {vr(vU + 4 * T + 2 * h, 2)}"), (92, 8))
    prio(0)
    first_gathers("K2_GQ")
    prio(3)
    stamp(11, 4, 1)
    addresses()
    e("    s_branch K2_NOB\nK2_FG:")
    first_gathers("K2_GR")
    stamp(11, 4, 1)
    ea_writes("K2_EAR")
    e("    s_mov_b64 exec, -1")
    addresses()
    e(f"""
    s_barrier
K2_NOB:
    ds_read_b64 {vr(vQ, 2)}, v{vaN[0]}
    ds_read_b64 {vr(vQ + 2, 2)}, v{vaN[1]}
    ds_read2_b64 {vr(vAe, 4)}, v{vaE} offset0:0 offset1:0
    ds_read_b128 {vr(vSO, 4)}, v{vaS[0]} offset:{SO + 32}
    ds_read_b128 {vr(vSO + 4, 4)}, v{vaS[1]} offset:{SO + 32}
    s_mov_b32 s{sFirst}, 0
""")
    for y in range(2):
        e(f"""
    s_lshl_b64 {sr(sFM[y], 2)}, {sr(sFM[y], 2)}, s34
    s_or_b32 s36, s{sFM[y]}, s{sFM[y] + 1}
    s_lshr_b32 s37, s36, 1
    s_or_b32 s{sEV[y]}, s36, s37
""")
    stamp(12, 4, 1)
    e(f"""
    s_or_b32 s34, s34, 0x10000
    s_bitcmp1_b32 s35, 0
    s_waitcnt vmcnt(8) lgkmcnt(0)
""")
    stamp(6, 4, 1)
    e("    s_cbranch_scc1 K2_PA1")
    for a in range(2):
        if a: e("K2_PA1:")
        for q in range(4): e(mfma4(vD[a], vP[a], q))
        prio(1)
        e(f"    s_cmp_lt_u32 s35, 3\n    s_cbranch_scc1 K2_NGP{a}")
        gathers(vP[a], vSO)
        e(f"K2_NGP{a}:\n    s_nop 0\n{mfma32(vD[a])}")
        if not a: e("    s_branch K2_PAD")
    e(f"""
K2_PAD:
    ds_read_b128 {vr(vSO, 4)}, v{vaS[0]} offset:{SO + 48}
    ds_read_b128 {vr(vSO + 4, 4)}, v{vaS[1]} offset:{SO + 48}
    ds_read2_b64 {vr(vAe, 4)}, v{vaE} offset0:4 offset1:4
""")
    for y in range(2):
        e(f"""
    s_bfe_i32 exec_lo, s{sFM[y]}, s34
    s_bfe_i32 exec_hi, s{sFM[y] + 1}, s34
    ds_read_b64 {vr(vQ + 2 * y, 2)}, v{vaN[y]} offset:{RS}
""")
    e(f"""
    s_mov_b64 exec, -1
    v_mad_i32_i24 v{vaE}, v{vAct}, s39, v{vaE}
    v_add_u32 v{vaS[0]}, s38, v{vaS[0]}
    v_add_u32 v{vaS[1]}, s38, v{vaS[1]}
""")
    prio(PRIO_0)
    for Lv in (10, 11, 9, 12, 8, 13, 7, 14, 6, 15, 5, 4, 3, 2, 1):
        e(f"    s_cmp_eq_u32 s35, {Lv}\n    s_cbranch_scc1 K2_T{NT - Lv}")
    e("K2_LOOP:")
    for t in range(NT):
        tile(t)
    xbu = lambda T, s: 32 + 16 * T + 4 * s
    e(f"""
K2_LDONE:
    s_cmp_ge_u32 s21, 8
    s_cbranch_scc1 K2_LD2
    s_lshl_b32 s36, s21, 12
    s_add_u32 s36, s36, {WUT}
    s_add_u32 s37, s36, {WUB - WUT}
""")
    for s in range(4):
        e(f"    buffer_load_dwordx4 {vr(16 + 4 * s, 4)}, v7, s[4:7], s36 offen offset:{1024 * s}")
    for s in range(4):
        e(f"    buffer_load_dwordx4 {vr(92 + 4 * s, 4)}, v7, s[4:7], s37 offen offset:{1024 * s}")
    e("K2_LD2:")
    for y in range(2):
        flush_adds(y)
    e(f"""
    v_mov_b32 v89, {MORE}
    ds_read_b32 v89, v89
""")
    stamp(7, 4, 1)
    e(f"""
    s_cmp_ge_u32 s21, 8
    s_cbranch_scc1 K2_NOU
""")
    x_addr(84); x_reads(84, xbu)
    e(f"""
    v_mul_u32_u24 v{vFR}, {RB}, v6
    v_lshl_add_u32 v{vFR}, v5, 4, v{vFR}
    v_add_u32 v{vFR}, {AGB}, v{vFR}
    v_mul_u32_u24 v90, {RO}, v6
    v_lshl_add_u32 v90, v5, 3, v90
    s_lshl_b32 s36, s21, 5
    s_add_u32 s36, s36, {EA}
    v_add_u32 v90, s36, v90
    v_lshrrev_b32 v88, 4, v0
    v_mul_u32_u24 v91, {RO}, v88
    v_lshl_add_u32 v91, v6, 4, v91
    v_lshlrev_b32 v88, 16, v88
    v_lshl_or_b32 v88, v6, 4, v88
    s_lshl_b32 s36, s20, 8
    v_add_u32 v88, s36, v88
    v_add_u32 v125, 0x200000, v88
    s_waitcnt vmcnt(4)
""")
    node_mfma(vU, 16, xbu)
    e(f"""
    s_cmp_lt_u32 s21, 6
    s_cbranch_scc1 K2_NOCA
K2_NOU:
    v_lshrrev_b32 v{vCA}, 4, v0
    v_subrev_u32 v{vCA}, 24, v{vCA}
    v_cvt_f32_u32 v84, v{vNp}
    v_lshlrev_b32 v85, 2, v{vCA}
    v_mul_f32 v84, 0xbe800000, v84
    v_mul_u32_u24 v{vCW}, {RB}, v{vCA}
    v_mul_u32_u24 v{vCA}, {RS}, v{vCA}
    ds_bpermute_b32 v{vCN}, v85, v84
    v_lshl_add_u32 v{vCW}, v6, 4, v{vCW}
    v_lshl_add_u32 v{vCA}, v6, 4, v{vCA}
    v_add_u32 v{vCW}, {AGB}, v{vCW}
    v_add_u32 v{vCA}, {QU}, v{vCA}
K2_NOCA:
    s_waitcnt lgkmcnt(0)
    v_readfirstlane_b32 s{sMoreV}, v89
    s_barrier
""")
    stamp(8, 4, 1)
    e(f"""
    s_cmp_lg_u32 s{sMoreV}, 0
    s_cbranch_scc1 K2_NEXT
    s_cmp_lt_u32 s21, 6
    s_cbranch_scc1 K2_NOCV
""")
    for k in range(4):
        e(f"    ds_read_b128 {vr(16 + 4 * k, 4)}, v{vCA} offset:{AG - QU + 256 * k}\n    ds_read_b64 {vr(8 + 2 * k, 2)}, v{vCA} offset:{256 * k + 8}")
    for k in range(4):
        e(f"    s_waitcnt lgkmcnt({6 - 2 * k})")
        e(f"    v_cvt_f32_f64 v{32 + 2 * k}, {vr(16 + 4 * k, 2)}\n    v_cvt_f32_f64 v{33 + 2 * k}, {vr(18 + 4 * k, 2)}")
        e(f"    v_pk_fma_f32 {vr(32 + 2 * k, 2)}, {vr(8 + 2 * k, 2)}, {vr(vCN, 2)}, {vr(32 + 2 * k, 2)} op_sel_hi:[1,0,1]")
        e(f"    v_cvt_pk_bf16_f32 v{40 + k}, v{32 + 2 * k}, v{33 + 2 * k}")
    e(f"""
    ds_write_b128 v{vCW}, v[40:43]
    s_waitcnt lgkmcnt(0)
K2_NOCV:
    s_cmp_ge_u32 s21, 8
    s_barrier
""")
    stamp(13, 4, 1)
    e("    s_cbranch_scc1 K2_FIN")
    xbf = lambda T, s: 16 + 16 * T + 4 * s
    tmp, outr = 76, 8
    def M(T, s, wait=True):
        if wait: e(f"    s_waitcnt lgkmcnt({11 - 4 * T - s})")
        e(f"    v_mfma_f32_16x16x32_bf16 {vr(vU + 4 * T, 4)}, {vr(92 + 4 * s, 4)}, {vr(xbf(T, s), 4)}, {vr(vU + 4 * T, 4)}")
    def sc_(T):
        for m in (2 * T, 2 * T + 1): e(f"    v_pk_mul_f32 {vr(tmp + 2 * m, 2)}, {vr(vU + 2 * m, 2)}, s[72:73] op_sel_hi:[1,0]")
    def ex_(T, k): e(f"    v_exp_f32 v{tmp + 4 * T + k}, v{tmp + 4 * T + k}")
    def ad_(T):
        for m in (2 * T, 2 * T + 1): e(f"    v_pk_add_f32 {vr(tmp + 2 * m, 2)}, {vr(tmp + 2 * m, 2)}, 1.0 op_sel_hi:[1,0]")
    def rc_(T):
        for k in range(4): e(f"    v_rcp_f32 v{tmp + 4 * T + k}, v{tmp + 4 * T + k}")
    def out_(T):
        for m in (2 * T, 2 * T + 1): e(f"    v_pk_mul_f32 {vr(tmp + 2 * m, 2)}, {vr(tmp + 2 * m, 2)}, {vr(vU + 2 * m, 2)}")
        for m in (2 * T, 2 * T + 1): e(f"    v_cvt_pk_bf16_f32 v{outr + m}, v{tmp + 2 * m}, v{tmp + 2 * m + 1}")
        e(f"    ds_write_b64 v90, {vr(outr + 2 * T, 2)} offset:{16 * RO * T}")
    for T in range(3):
        for s in range(4):
            e(f"    ds_read_b128 {vr(xbf(T, s), 4)}, v{vFR} offset:{16 * RB * T + 64 * s}")
    e("    s_waitcnt vmcnt(0)")
    for s in range(4): M(0, s)
    for s in range(4): M(1, s)
    sc_(0)
    e("    s_waitcnt lgkmcnt(0)")
    for s in range(4): M(2, s, False); ex_(0, s)
    e("    s_nop 0")
    sc_(1)
    for k in range(4): ex_(1, k)
    ad_(0); rc_(0); sc_(2)
    for k in range(4): ex_(2, k)
    out_(0); ad_(1); rc_(1); ad_(2); out_(1); rc_(2); e("    s_nop 0"); out_(2)
    e(f"""
    s_cmp_ge_u32 s21, 2
    s_waitcnt lgkmcnt(0)
    s_barrier
    ds_read_b128 v[16:19], v91 offset:{EA}
    s_cbranch_scc1 K2_O1
    ds_read_b128 v[20:23], v91 offset:{EA + 32 * RO}
    s_waitcnt lgkmcnt(0)
    buffer_store_dwordx4 v[20:23], v125, s[16:19], 0 offen
K2_O1:
    s_waitcnt lgkmcnt(0)
    buffer_store_dwordx4 v[16:19], v88, s[16:19], 0 offen
K2_FIN:
""")
    light1(4, 1)
    if OPT["stamps"]:
        stamp(9, 4, 1); e("    s_waitcnt vmcnt(0)"); stamp(10, 4, 1); stamp_out(4, 1)
    e("K2_END:\n    s_endpgm")
    for t in range(NT - 1):
        for y in range(2):
            event_block(t, y)
    e(f"""
K2_TAILBLOCKS:
K2_MORE:
    v_mov_b32 v16, {MORE}
    ds_write_b32 v16, v59
    s_branch K2_MOREB
K2_NEXT:
    s_waitcnt vmcnt(0)
    s_add_u32 s24, s24, s25
    s_branch K2_AGAIN
K2_REDO:
    s_mov_b32 s25, 4
    s_waitcnt vmcnt(0) lgkmcnt(0)
    s_barrier
K2_AGAIN:
    v_lshlrev_b32 v56, 4, v0
    v_mov_b64 v[8:9], 0
    v_mov_b64 v[10:11], 0
    s_cmp_ge_u32 s21, 2
    s_cbranch_scc1 K2_ROUND
    ds_write_b128 v56, v[8:11] offset:{MISC}
    s_waitcnt lgkmcnt(0)
K2_LAST:
    s_branch K2_ROUND
""")

def desc(name, vg, sg):
    e(f"""
.p2align 6
.amdhsa_kernel {name}
  .amdhsa_next_free_vgpr {vg}
  .amdhsa_next_free_sgpr {sg}
  .amdhsa_accum_offset {vg}
  .amdhsa_group_segment_fixed_size 0
  .amdhsa_kernarg_size 72
  .amdhsa_user_sgpr_count 2
  .amdhsa_user_sgpr_kernarg_segment_ptr 1
  .amdhsa_system_sgpr_workgroup_id_x 1
.end_amdhsa_kernel
""")

e(f"""
; @launch kernel=mpnn_bin_kernel grid=(512,1,1) block=(768,1,1) lds={K1_LDS}
; @launch kernel=mpnn_edge_kernel grid=(256,1,1) block=(1024,1,1) lds={K2_LDS}
.amdgcn_target "amdgcn-amd-amdhsa--gfx950"
""")
kernel1()
kernel2()
e('.section .rodata,"a"')
desc("mpnn_bin_kernel", 80, 96)
desc("mpnn_edge_kernel", 128, 102 if OPT["stamps"] else 96)
FL_ = {0: "", 1: " sc1", 2: " nt", 3: " sc0 sc1", 4: " sc1 nt", 5: " sc0"}
k2at = next(i for i, l in enumerate(L) if l.startswith("mpnn_edge_kernel:"))
for i, l in enumerate(L):
    c = l.split(";")
    fl = None
    if l.strip().startswith("buffer_store") and " off," not in l:
        fl = FL_[(OPT["stp"] if "v[76:79]" in l else OPT["st1"]) if i < k2at else OPT["st2"]]
    elif l.strip().startswith("buffer_load"):
        if i < k2at:
            if any(x in l for x in ("s[24:27]", "s[8:11], s22", "s[32:35]")): fl = " nt" * OPT["nte"]
            elif "s[4:7]" in l: fl = " nt" * OPT["ntx"]
            elif "s[12:15]" in l and "lds" in l: fl = " nt" * OPT["ntw"]
        else:
            if "s[12:15]" in l: fl = " nt" * OPT["ntx2"]
            elif "dwordx3" in l: fl = " nt" * OPT["ntr"]
    if fl:
        body = c[0].rstrip()
        body = body[:-4] + fl + " lds" if body.endswith(" lds") else body + fl
        L[i] = body + ("   ;" + c[1] if len(c) > 1 else "")
open(sys.argv[1], "w").write("\n".join(L) + "\n")
```

```python
import sys, struct, math

def f2u(x): return struct.unpack("<I", struct.pack("<f", x))[0]

OPT = dict(agz=0, qo=0, bdp=2, cae=0, cpf1=0, f16=0, uw3=0, hold=0, hold2=0, otl=0, stp=0, lay=0, k1p=0, k1o=1, cpf2=0, agl=0, t2m=1, olds=1, pf2=0, rab=0, gq=0, gq2=3, gp=1, stg1=0, stg3=0, qpre=0, eal=1, ash=0, dst1=1, fin=1, wpf=0, cpf=6, ps=2, bdl=1, rb=288, st1=0, st2=0, nte=1, ntx=0, ntw=0, ntx2=0, ntr=0, light=0, g1late=0, pf=0, gpos=0, nom4=0, nom32=0, mpos=0, nochk=0, prio1=0, dbg=0, safe=0, stamps=0, prio=1, nogather=0, nocore=0, nolds=0, nomfma=0, noflush=0)
for a in sys.argv[2:]:
    k, v = a.split("="); OPT[k] = int(v)

N, E = 10000, 320000
NB = 256
EPW = 1250
PT    = 0
DESC  = 0x280000
REC   = 0x2C0000
RSTR  = 15488
W2F   = 0x690000
WUT   = W2F + 0x8000
WUB   = WUT + 0x8000
W3F   = WUB + 0x8000
STAMP = W3F + 0x800
WSEND = STAMP + (0x100000 if OPT["stamps"] or OPT["light"] else 0)
NL2E = f2u(-1.4426950408889634)
KC   = f2u(1.0 / (2.0 ** 31 * math.log(2.0)))
NSC  = f2u(-2.0 ** -31)

L = []
def e(s=""):
    for ln in s.strip("\n").split("\n"):
        L.append(ln)
def vr(a, n): return f"v[{a}:{a + n - 1}]" if n > 1 else f"v{a}"
def sr(a, n): return f"s[{a}:{a + n - 1}]" if n > 1 else f"s{a}"

def srd(s, nrec, w3=0x20000):
    e(f"    s_mov_b32 s{s + 2}, {nrec:#x}\n    s_mov_b32 s{s + 3}, {w3:#x}")

def scan64(v):
    for c in ("row_shr:1 row_mask:0xf", "row_shr:2 row_mask:0xf", "row_shr:4 row_mask:0xf", "row_shr:8 row_mask:0xf",
              "row_bcast:15 row_mask:0xa", "row_bcast:31 row_mask:0xc"):
        e(f"    s_nop 1\n    v_add_u32_dpp v{v}, v{v}, v{v} {c} bank_mask:0xf")

NST = 16
def light0():
    if OPT["light"]: e("    s_memrealtime s[80:81]")
def light1(srd_s, kern):
    if not OPT["light"]: return
    e(f"""
    s_waitcnt vmcnt(0)
    s_memrealtime s[82:83]
    s_mov_b32 s{srd_s + 2}, {WSEND:#x}
    s_lshl_b32 s90, s2, 4
    s_add_u32 s90, s90, s21
    s_lshl_b32 s90, s90, 3
    s_add_u32 s90, s90, {STAMP + kern * 0x80000}
    s_mov_b64 exec, 1
    s_waitcnt lgkmcnt(0)
    v_mov_b32 v2, s80
    v_mov_b32 v3, s82
    buffer_store_dwordx2 v[2:3], off, s[{srd_s}:{srd_s + 3}], s90
""")
def dbg(slot):
    if not OPT["dbg"]: return
    e(f"    s_memrealtime s[{80 + 2 * slot}:{81 + 2 * slot}]")
def dbg_out(kern, wv, base, n, lab):
    if not OPT["dbg"]: return
    e(f"""
    s_waitcnt vmcnt(0)
    s_memrealtime s[{80 + 2 * (n - 1)}:{81 + 2 * (n - 1)}]
    s_cmp_lg_u32 s2, 200
    s_cbranch_scc1 {lab}
    s_cmp_lg_u32 s21, {wv}
    s_cbranch_scc1 {lab}
    s_load_dwordx2 s[92:93], s[0:1], 56
    s_waitcnt lgkmcnt(0)
    s_add_u32 s92, s92, {512 * (1 - kern)}
    s_addc_u32 s93, s93, 0
    s_mov_b32 s94, 256
    s_mov_b32 s95, 0x20000
    s_mov_b64 exec, 1
""")
    for i in range(n):
        e(f"    v_mov_b32 v127, s{80 + 2 * i}\n    buffer_store_dword v127, off, s[92:95], 0 offset:{4 * (base + i)}\n    s_waitcnt vmcnt(0)")
    e(f"{lab}:")
SMAP = {}
def stamp(i, srd_s, kern):
    if not OPT["stamps"]: return
    sel = [0, 1, 2, 3, 4, 5, 6] if kern == 0 else {1: [0, 1, 3, 4, 5, 11, 6, 7, 8, 9, 10], 2: [0, 2, 4, 5, 12, 6, 7, 8, 13, 9, 10], 3: [0] + list(range(101, 111)), 4: [0, 5, 11, 12, 6, 201, 202, 203, 204, 207, 208]}[OPT["stamps"]]
    if i not in sel: return
    r = 80 + 2 * sel.index(i)
    SMAP[(kern, i)] = r
    if i == 0: e("    s_memrealtime s[76:77]" if kern == 0 else "    s_memrealtime vcc\n    s_waitcnt lgkmcnt(0)\n    v_writelane_b32 v127, vcc_lo, 14")
    e(f"    s_memtime s[{r}:{r + 1}]")
def stamp_out(srd_s, kern):
    if not OPT["stamps"]: return
    vs, va = (2, 3) if kern == 0 else (127, 125)
    e(f"    s_memrealtime vcc\n    s_waitcnt lgkmcnt(0)\n    v_writelane_b32 v{vs}, vcc_lo, 15")
    if kern == 0: e("    v_writelane_b32 v2, s76, 14")
    for (k, i), r in SMAP.items():
        if k == kern: e(f"    v_writelane_b32 v{vs}, s{r}, {i % 100}")
    e(f"""
    s_mov_b64 exec, 0xffff
    s_lshl_b32 s3, s2, 4
    s_add_u32 s3, s3, s21
    s_lshl_b32 s3, s3, 6
    s_add_u32 s3, s3, {STAMP + kern * 0x80000}
    v_mbcnt_lo_u32_b32 v{va}, -1, 0
    v_lshlrev_b32 v{va}, 2, v{va}
    buffer_store_dword v{vs}, v{va}, s[{srd_s}:{srd_s + 3}], s3 offen
    s_mov_b64 exec, -1
""")

K1_CNT, K1_ST, K1_STG = 0, 1024, 2048
K1_WL, K1_XL = 0, 32768
K1_LDS = 66 * 1024
def gemm_issue():
    e(f"""
    s_lshr_b32 s20, s2, 4
    s_lshl_b32 s20, s20, 3
    s_and_b32 s3, s2, 7
    s_or_b32 s20, s20, s3
""")
    if OPT["cpf1"]:
        e(f"""
    s_cmp_lg_u32 s21, 0
    s_cbranch_scc1 K1_NOT
    s_cmp_ge_u32 s20, {OPT["cpf1"]}
    s_cbranch_scc1 K1_NOT
    s_getpc_b64 s[24:25]
K1_PC1:
    v_lshlrev_b32 v8, 6, v1
    v_min_u32 v8, K1_PC - K1_PC1 + 64, v8
    v_mov_b32 v9, s25
    v_add_co_u32 v8, vcc, s24, v8
    s_nop 1
    v_addc_co_u32 v9, vcc, 0, v9, vcc
    global_load_dword v34, v[8:9], off
K1_NOT:
""")
    e(f"""
    v_lshrrev_b32 v2, 4, v1                 ; g
    v_and_b32 v3, 15, v1                    ; n / i
    s_cmp_ge_u32 s20, 209
    s_cbranch_scc1 K1_JOBS
    ; x -> LDS: rows 4w + g, chunk (l%16) ^ (row & 15)
    v_lshrrev_b32 v5, 4, v0
    v_xor_b32 v6, v5, v0
    v_and_b32 v6, 15, v6
    s_mul_i32 s25, s20, 48
    v_add_u32 v5, s25, v5
    v_lshlrev_b32 v5, 8, v5
    v_lshl_or_b32 v5, v6, 4, v5
    s_lshl_b32 s27, s21, 10
    s_add_u32 s28, s27, {K1_XL}
    s_mov_b32 m0, s28
    ; W1 -> LDS: row (l/16), chunk (l%16) ^ ((l/16)<<1) ^ (8 if bit 3 of the row)
    v_lshlrev_b32 v4, 1, v2
    v_xor_b32 v4, v4, v3
    v_lshlrev_b32 v4, 4, v4
    v_lshl_or_b32 v4, v2, 8, v4
    s_lshl_b32 s28, s21, 6
    s_and_b32 s28, s28, 0x80
    v_xor_b32 v4, s28, v4
    s_waitcnt lgkmcnt(0)
""")
    srd(4, N * 256)
    srd(12, 128 * 256)
    stamp(6, 16, 0)
    e("    buffer_load_dwordx4 v5, s[4:7], 0 offen lds")
    for m in range(3):
        if m == 2:
            e("    s_cmp_ge_u32 s21, 8\n    s_cbranch_scc1 K1_DMAD")
        e(f"""
    s_mov_b32 m0, s27
    s_nop 0
    buffer_load_dwordx4 v4, s[12:15], s27 offen lds
""")
        if m < 2: e("    s_add_u32 s27, s27, 12288")

def kernel1():
    e("""
.text
.globl mpnn_bin_kernel
.p2align 8
.type mpnn_bin_kernel,@function
mpnn_bin_kernel:
    s_load_dwordx4 s[8:11], s[0:1], 16
    s_load_dwordx4 s[4:7], s[0:1], 0        ; x, e_attr
    s_load_dwordx4 s[12:15], s[0:1], 32
    s_load_dwordx2 s[16:17], s[0:1], 64     ; ws
    s_cmp_ge_u32 s2, 512
    s_cbranch_scc1 K1_END
    v_lshrrev_b32 v2, 6, v0
    v_and_b32 v1, 63, v0
    v_readfirstlane_b32 s21, v2
    s_and_b32 s20, s2, 7
    s_lshl_b32 s20, s20, 5
    s_lshr_b32 s3, s2, 4
    s_or_b32 s20, s20, s3
    s_lshr_b32 s3, s2, 5
    s_xor_b32 s3, s3, s2
""")
    stamp(0, 16, 0); light0()
    dbg(0)
    if OPT["k1o"]:
        e("    s_bitcmp0_b32 s3, 3\n    s_cbranch_scc1 K1_BIN")
        gemm_issue()
        e("    s_branch K1_DMAD\nK1_BIN:")
    else:
        e("    s_bitcmp1_b32 s3, 3\n    s_cbranch_scc1 K1_GEMM")
    e("""
    ; ---------------- binning workgroup (waves 0..9) ----------------
    s_cmp_ge_u32 s21, 10
    s_cbranch_scc1 K1_END
""" + ("    s_setprio 3\n" if OPT["k1p"] else "") + """    s_mul_i32 s22, s20, 5000                ; byte offset of this workgroup's src/dst slice
    s_lshl_b32 s23, s22, 1                  ; e_attr slice
    v_lshlrev_b32 v3, 3, v0
    v_lshlrev_b32 v4, 4, v0
    v_cmp_gt_u32 s[44:45], 625, v0
""".replace("v_cmp_gt_u32 s[44:45], 625, v0", "v_cmp_gt_u32 vcc, 625, v0"))
    e("    s_mov_b32 s26, %#x\n    s_mov_b32 s27, 0x20000\n    s_mov_b64 s[44:45], vcc\n    s_mov_b64 exec, vcc\n    s_waitcnt lgkmcnt(0)\n    s_mov_b32 s24, s10\n    s_mov_b32 s25, s11" % (E * 4))
    stamp(6, 16, 0)
    e("    buffer_load_dwordx2 v[6:7], v3, s[24:27], s22 offen      ; dst")
    srd(8, E * 4)
    e("    s_mov_b32 s32, s6\n    s_mov_b32 s33, s7"); srd(32, E * 8)
    def se():
        e("""
    buffer_load_dwordx2 v[8:9], v3, s[8:11], s22 offen       ; src
    buffer_load_dwordx4 v[10:13], v4, s[32:35], s23 offen
""")
    if not OPT["dst1"]: se()
    e(f"""
    s_mov_b64 exec, -1
    v_mov_b64 v[20:21], 0
    v_mov_b64 v[22:23], 0
    s_cmp_lg_u32 s21, 0
    s_cbranch_scc1 K1_NOZ
    ds_write_b128 v4, v[20:23] offset:{K1_CNT}
K1_NOZ:
    s_waitcnt lgkmcnt(0)
    s_barrier
    s_mov_b64 exec, s[44:45]
""")
    if OPT["dst1"]: se()
    e("    s_mov_b64 exec, -1\n    v_mov_b32 v24, 1\n    v_lshlrev_b32 v5, 4, v1")
    srd(16, WSEND)
    e(f"""
    s_mul_i32 s38, s20, {RSTR}
    s_add_u32 s38, s38, {REC}
    s_add_u32 s39, s38, 10240
    s_mov_b64 exec, s[44:45]
    s_waitcnt vmcnt(2)
""")
    stamp(1, 16, 0)
    dbg(1)
    e(f"""
    v_lshlrev_b32 v14, 2, v6
    v_lshlrev_b32 v15, 2, v7
    v_and_b32 v14, 0x3fc, v14
    v_and_b32 v15, 0x3fc, v15
    ds_add_rtn_u32 v16, v14, v24 offset:{K1_CNT}
    ds_add_rtn_u32 v17, v15, v24 offset:{K1_CNT}
    v_lshrrev_b32 v6, 8, v6
    v_lshrrev_b32 v7, 8, v7
    v_lshlrev_b32 v6, 26, v6
    v_lshlrev_b32 v7, 26, v7
    s_mov_b64 exec, -1
    s_waitcnt lgkmcnt(0)
    s_barrier
""")
    stamp(2, 16, 0)
    e(f"""
    ds_read_b128 v[20:23], v5 offset:{K1_CNT}
    s_waitcnt lgkmcnt(0)
    v_add_u32 v25, v20, v21
    v_add_u32 v26, v25, v22
    v_add_u32 v27, v26, v23
    s_nop 1
    v_add_u32_dpp v28, v27, v27 row_shr:1 row_mask:0xf bank_mask:0xf bound_ctrl:1
""")
    for c in ("row_shr:2 row_mask:0xf", "row_shr:4 row_mask:0xf", "row_shr:8 row_mask:0xf", "row_bcast:15 row_mask:0xa", "row_bcast:31 row_mask:0xc"):
        e(f"    s_nop 1\n    v_add_u32_dpp v28, v28, v28 {c} bank_mask:0xf")
    e(f"""
    v_sub_u32 v28, v28, v27
    v_add_u32 v29, v28, v20
    v_add_u32 v30, v28, v25
    v_add_u32 v31, v28, v26
    ds_write_b128 v5, v[28:31] offset:{K1_ST}
    ds_read_b32 v18, v14 offset:{K1_ST}
    ds_read_b32 v19, v15 offset:{K1_ST}
    s_waitcnt vmcnt(1)
    v_lshl_or_b32 v8, v8, 3, v6
    v_lshl_or_b32 v9, v9, 3, v7
    s_mov_b64 exec, s[44:45]
    s_waitcnt lgkmcnt(0)
    v_add_u32 v18, v18, v16
    v_add_u32 v19, v19, v17
    v_mul_u32_u24 v18, 12, v18
    v_mul_u32_u24 v19, 12, v19
    ds_write_b32 v18, v8 offset:{K1_STG + 8}
    ds_write_b32 v19, v9 offset:{K1_STG + 8}
    v_add_u32 v18, {K1_STG}, v18
    v_add_u32 v19, {K1_STG}, v19
    s_waitcnt vmcnt(0)
    ds_write2_b32 v18, v10, v11 offset0:0 offset1:1
    ds_write2_b32 v19, v12, v13 offset0:0 offset1:1
    s_mov_b64 exec, -1
    s_cmp_lg_u32 s21, 9
    s_cbranch_scc1 K1_NOD
    v_lshl_or_b32 v32, v20, 16, v28
    v_lshl_or_b32 v33, v21, 16, v29
    v_lshl_or_b32 v34, v22, 16, v30
    v_lshl_or_b32 v35, v23, 16, v31
    s_lshl_b32 s36, s20, 4
    s_add_u32 s36, s36, {DESC}
    v_and_b32 v36, 7, v1
    v_lshrrev_b32 v37, 3, v1
    v_lshl_or_b32 v36, v36, 3, v37
    v_lshlrev_b32 v36, 12, v36
    buffer_store_dwordx4 v[32:35], v36, s[16:19], s36 offen
K1_NOD:
    s_waitcnt lgkmcnt(0)
    s_barrier
""")
    stamp(3, 16, 0)
    e(f"""
    ds_read_b128 v[20:23], v4 offset:{K1_STG}
    s_cmp_ge_u32 s21, 5
    s_cbranch_scc1 K1_C1
    ds_read_b128 v[24:27], v4 offset:{K1_STG + 10240}
    s_waitcnt lgkmcnt(0)
    buffer_store_dwordx4 v[24:27], v4, s[16:19], s39 offen
K1_C1:
    s_waitcnt lgkmcnt(0)
    buffer_store_dwordx4 v[20:23], v4, s[16:19], s38 offen
""")
    light1(16, 0)
    if OPT["stamps"]:
        stamp(4, 16, 0); e("    s_waitcnt vmcnt(0)"); stamp(5, 16, 0); stamp_out(16, 0)
    e(f"""
    s_endpgm
""")
    if not OPT["k1o"]:
        e("K1_GEMM:")
        gemm_issue()
    e("K1_DMAD:")
    srd(16, N * 256)
    e(f"""
    s_lshr_b32 s23, s21, 2
    s_and_b32 s24, s21, 3
    v_lshrrev_b32 v24, 2, v3                ; r'
    v_and_b32 v25, 3, v3                    ; c'
    v_and_b32 v26, 1, v2
    v_lshl_or_b32 v26, v26, 2, v24          ; h(k)
    v_lshl_add_u32 v27, v2, 3, v24          ; 8g + r'
    v_lshlrev_b32 v27, 8, v27
    v_lshl_or_b32 v27, v25, 3, v27
    s_lshl_b32 s27, s24, 1
    v_xor_b32 v26, s27, v26
    v_lshl_add_u32 v28, v26, 5, v27
    v_xor_b32 v29, 32, v28
    ; x fragments
    v_xor_b32 v30, v2, v3
    v_lshlrev_b32 v30, 4, v30
    v_lshl_or_b32 v30, v3, 8, v30
    s_lshl_b32 s27, s23, 12
    s_add_u32 s27, s27, {K1_XL}
    v_add_u32 v30, s27, v30
    v_xor_b32 v31, 64, v30
    v_xor_b32 v32, 0x80, v30
    v_xor_b32 v33, 0xc0, v30
    s_lshl_b32 s26, s23, 4
    s_add_u32 s25, s25, s26
    v_add_u32 v5, s25, v3
    v_lshlrev_b32 v5, 8, v5
    v_lshl_or_b32 v5, v2, 4, v5
    s_lshl_b32 s27, s24, 6
    v_add_u32 v5, s27, v5
    s_mov_b32 s28, {NL2E:#x}
    s_waitcnt vmcnt(0)
    s_barrier
""")
    stamp(3, 16, 0)
    for s in range(4):
        e(f"    ds_read_b128 {vr(8 + 4 * s, 4)}, v{30 + s}")
        for f in range(2):
            for u2 in range(2):
                e(f"    ds_read_b64_tr_b16 {vr(36 + 16 * f + 4 * s + 2 * u2, 2)}, v{28 + f} offset:{s * 8192 + u2 * 1024}")
    for s in range(4):
        for f in range(2):
            left = 20 - (5 * s + 3 + 2 * f)
            e(f"    s_waitcnt lgkmcnt({min(left, 15)})")
            c = "0" if s == 0 else vr(68 + 4 * f, 4)
            e(f"    v_mfma_f32_16x16x32_bf16 {vr(68 + 4 * f, 4)}, {vr(36 + 16 * f + 4 * s, 4)}, {vr(8 + 4 * s, 4)}, {c}")
    e("    s_nop 5")
    for f in range(2):
        for h in range(2):
            r = 68 + 4 * f + 2 * h
            e(f"    v_pk_mul_f32 {vr(r, 2)}, {vr(r, 2)}, s[28:29] op_sel_hi:[1,0]")
        for h in range(2):
            r = 68 + 4 * f + 2 * h
            e(f"    v_cvt_pk_bf16_f32 v{76 + 2 * f + h}, v{r}, v{r + 1}")
    e(f"    buffer_store_dwordx4 v[76:79], v5, s[16:19], 0 offen")
    light1(16, 0)
    if OPT["stamps"]:
        srd(16, WSEND); stamp(4, 16, 0); e("    s_waitcnt vmcnt(0)"); stamp(5, 16, 0); stamp_out(16, 0)
    e(f"""
    s_endpgm
K1_JOBS:
    s_sub_u32 s23, s20, 209
    s_mul_i32 s23, s23, 12
    s_add_u32 s23, s23, s21
    s_waitcnt lgkmcnt(0)
""")
    srd(16, WSEND)
    e(f"""
    s_cmp_ge_u32 s23, 96
    s_cbranch_scc1 K1_JOB2
    s_lshr_b32 s24, s23, 5
    s_bfe_u32 s25, s23, 0x30002             ; f
    s_and_b32 s26, s23, 3                   ; s
    s_cmp_eq_u32 s24, 0
    s_cselect_b32 s28, s12, s14
    s_cselect_b32 s29, s13, s15
    s_mov_b32 s30, {256 * 256}
    s_mov_b32 s31, 0x20000
    ; column
    s_lshl_b32 s33, s25, 4                  ; 16 f
    v_add_u32 v4, s33, v3
    v_lshlrev_b32 v4, 1, v4
    ; row
    v_lshlrev_b32 v5, 11, v2                ; 8 g rows
    v_lshrrev_b32 v7, 1, v2
    v_lshlrev_b32 v7, 12, v7
    v_and_b32 v6, 1, v2
    v_lshl_or_b32 v7, v6, 9, v7             ; 16 (g>>1) + 2 (g&1) rows
    s_cmp_eq_u32 s24, 2
    s_cselect_b64 vcc, -1, 0
    s_cselect_b32 s32, 10, 13
    s_movk_i32 s33, 512
    s_cmovk_i32 s33, 8192
    s_cselect_b32 s34, {NSC:#x}, 1.0
    v_cndmask_b32 v5, v5, v7, vcc
    v_add_u32 v4, v4, v5
    s_lshl_b32 s40, s26, s32
    s_cmp_eq_u32 s24, 1
    s_cselect_b32 s36, 0, 0x8000
    s_add_u32 s40, s40, s36
    s_add_u32 s41, s40, s33
    s_add_u32 s42, s41, s33
    s_add_u32 s43, s42, s33
""")
    for m in range(8):
        e(f"    buffer_load_ushort v{8 + m}, v4, s[28:31], s{40 + m // 2} offen offset:{(m & 1) * 256}")
    e(f"""
    s_lshl_b32 s37, s23, 10
    s_add_u32 s37, s37, {W2F}
    v_lshlrev_b32 v6, 4, v1
    s_mov_b32 s38, 0x07060302
    s_waitcnt vmcnt(0)
""")
    for m in range(8):
        e(f"    v_lshlrev_b32 v{8 + m}, 16, v{8 + m}\n    v_mul_f32 v{8 + m}, s34, v{8 + m}")
    for m in range(4):
        e(f"    v_perm_b32 v{16 + m}, v{9 + 2 * m}, v{8 + 2 * m}, s38")
    e(f"""
    buffer_store_dwordx4 v[16:19], v6, s[16:19], s37 offen
    s_endpgm
K1_JOB2:
    s_cmp_ge_u32 s23, 98
    s_cbranch_scc1 K1_JOB3
    s_sub_u32 s24, s23, 96                  ; c
    s_mov_b32 s14, {260 * 256}
    s_mov_b32 s15, 0x20000
    v_and_b32 v2, 31, v1
    v_lshrrev_b32 v3, 5, v1
    v_lshl_or_b32 v2, v2, 1, v3             ; p & 63
    v_and_b32 v4, 0x23, v2
    v_bfe_u32 v5, v2, 2, 1
    v_lshl_or_b32 v4, v5, 4, v4
    v_bfe_u32 v5, v2, 3, 2
    v_lshl_or_b32 v4, v5, 2, v4             ; feature & 63
    v_lshlrev_b32 v4, 1, v4
    s_lshl_b32 s25, s24, 7
    s_add_u32 s25, s25, {256 * 256}
""")
    for d in range(4):
        e(f"    buffer_load_ushort v{8 + d}, v4, s[12:15], s25 offen offset:{d * 256}")
    e(f"""
    s_lshl_b32 s37, s24, 10
    s_add_u32 s37, s37, {W3F}
    v_lshlrev_b32 v6, 4, v1
    s_mov_b32 s34, {NL2E:#x}
    s_waitcnt vmcnt(0)
""")
    for d in range(4):
        e(f"    v_lshlrev_b32 v{8 + d}, 16, v{8 + d}\n    v_mul_f32 v{8 + d}, s34, v{8 + d}")
    e("""
    v_cvt_pk_bf16_f32 v16, v8, v9
    v_cvt_pk_bf16_f32 v17, v10, v11
    v_lshlrev_b32 v12, 16, v16
    v_and_b32 v13, 0xffff0000, v16
    v_lshlrev_b32 v14, 16, v17
    v_and_b32 v15, 0xffff0000, v17
    v_sub_f32 v8, v8, v12
    v_sub_f32 v9, v9, v13
    v_sub_f32 v10, v10, v14
    v_sub_f32 v11, v11, v15
    v_cvt_pk_bf16_f32 v18, v8, v9
    v_cvt_pk_bf16_f32 v19, v10, v11
    buffer_store_dwordx4 v[16:19], v6, s[16:19], s37 offen
    s_endpgm
K1_JOB3:
    s_cmp_ge_u32 s20, 224
    s_cbranch_scc1 K1_SPARE
    s_cmp_lg_u32 s23, 98
    s_cbranch_scc1 K1_END
    v_mov_b32 v8, 0
    v_lshlrev_b32 v6, 2, v1
""")
    e(f"""
    s_mov_b32 s37, {PT + N * 256}
    buffer_store_dword v8, v6, s[16:19], s37 offen
K1_END:
    s_endpgm
K1_SPARE:
""")
    if OPT["cpf"]:
        e(f"""
    s_getpc_b64 s[24:25]
K1_PC:
    s_bfe_u32 s22, s20, 0x20003
    s_mul_i32 s22, s22, 12
    s_add_u32 s22, s22, s21
    s_mul_i32 s22, s22, {OPT["cpf"] * 64}
    v_lshl_add_u32 v2, v1, 6, s22
    v_min_u32 v2, K2_LAST - mpnn_edge_kernel, v2
    v_add_u32 v2, mpnn_edge_kernel - K1_PC, v2
    v_mov_b32 v3, s25
    v_add_co_u32 v2, vcc, s24, v2
    s_nop 1
    v_addc_co_u32 v3, vcc, 0, v3, vcc
    s_bfm_b64 exec, {OPT["cpf"]}, 0
    global_load_dword v4, v[2:3], off
""")
    e("    s_endpgm")

RS = 1040
RB, RO = 288, 272
CAP = 2048
MISC = 0
ZR, CNT, MORE, FL = 0, 768, 1024, 1088
SO = 2048
EA = SO + CAP * 4
W3L = EA + CAP * 8
QU = W3L + 2048
AG = QU + 41 * RS
XL = (AG + 2 * 16384 + 11 * 1024 + 255) // 256 * 256
AGB = XL
K2_LDS = AGB + 48 * RB
PADV = N * 8
S16MAX = (CAP // 4 - 8) * 16
NT = 16
NK = 6
vSO, vP, vD, vE, vAe, vBw, vQ, vNp, vAc, vI = 8, (16, 24), (32, 92), 48, 64, 68, 72, 126, (80, 82), 84
vaS, vaE, vAct, vaN = (86, 87), 88, 89, (90, 91)
vU = 108
vR, vN4, vTa, vStr, vRS, vW3a = 60, tuple(range(19, 25)), 56, 57, 124, 125
vC4, vQ16, vE16, vS16 = 120, 121, 122, 123
vCA, vCW, vCN, vFR = 120, 121, 122, 124
sM = [40 + 2 * k for k in range(NK)]
sFM, sEV = (28, 30), (32, 33)
sFirst, sMoreV, sMM = 56, 57, 58
M9 = "0x01ff01ff"
KCOP = "s[26:27], s[26:27] op_sel_hi:[1,0,0] clamp"
PRIO_0, PRIO_AT = 2, {NT - 4: 1, NT - 1: 0}

def prio(n): e(f"    s_setprio {n}")

def flush_adds(y):
    t = vE + 8 * y
    e(f"""
    v_cvt_f64_f32 {vr(t, 2)}, v{vAc[y]}
    v_cvt_f64_f32 {vr(t + 2, 2)}, v{vAc[y] + 1}
    ds_add_f64 v{vaN[y]}, {vr(t, 2)} offset:{AG - QU}
    ds_add_f64 v{vaN[y]}, {vr(t + 2, 2)} offset:{AG - QU + 8}
""")

def exec_bit(y, t):
    e(f"    s_bfe_i32 exec_lo, s{sFM[y]}, {0x10000 | t:#x}\n    s_bfe_i32 exec_hi, s{sFM[y] + 1}, {0x10000 | t:#x}")

def event_block(t, y):
    e(f"K2_EV{t}_{y}:")
    exec_bit(y, t)
    e(f"    s_cbranch_execz K2_EQ{t}_{y}")
    flush_adds(y)
    e(f"""
    v_add_u32 v{vaN[y]}, {RS}, v{vaN[y]}
    v_mov_b64 {vr(vAc[y], 2)}, 0
K2_EQ{t}_{y}:
""")
    if t + 2 < NT:
        exec_bit(y, t + 1)
        e(f"    ds_read_b64 {vr(vQ + 2 * y, 2)}, v{vaN[y]} offset:{RS}")
    e(f"    s_mov_b64 exec, -1\n    s_branch K2_EB{t}_{y}")

def gather_lines(dst, adr):
    out = []
    for q in range(4):
        for y in range(2):
            a = adr + 4 * y + q
            pre = f"    v_min_u32 v{a}, {PADV}, v{a}\n    v_and_b32 v{a}, -8, v{a}\n" if OPT["safe"] else ""
            out.append(pre + f"    buffer_load_dword v{dst + 2 * q + y}, v{a}, s[8:11], 0 offen")
    return out
def gathers(dst, adr):
    for l in gather_lines(dst, adr): e(l)

def mfma4(D, P, q): return f"    v_mfma_f32_4x4x4_16b_bf16 {vr(D + 4 * q, 4)}, {vr(vI, 2)}, {vr(P + 2 * q, 2)}, {vr(vQ, 4)}"
def mfma32(D): return f"    v_mfma_f32_32x32x16_bf16 {vr(D, 16)}, {vr(vAe, 4)}, {vr(vBw, 4)}, {vr(D, 16)}"

def core_lines(D):
    Ee = vE
    def p(r): return vr(r, 2)
    ex = [f"    v_exp_f32 v{Ee + k}, v{D + k}" for k in range(16)]
    sc = [f"    v_pk_fma_f32 {p(Ee + 2 * m)}, {p(Ee + 2 * m)}, {KCOP}" for m in range(8)]
    seq = [
        lambda o: f"v_pk_mul_f32 {p(D + o)}, {p(D + o)}, {p(Ee + o + 4)}",
        lambda o: f"v_pk_mul_f32 {p(D + o + 8)}, {p(D + o + 8)}, {p(Ee + o + 12)}",
        lambda o: f"v_pk_fma_f32 {p(D + o)}, {p(D + o + 4)}, {p(Ee + o)}, {p(D + o)}",
        lambda o: f"v_pk_fma_f32 {p(D + o + 8)}, {p(D + o + 12)}, {p(Ee + o + 8)}, {p(D + o + 8)}",
        lambda o: f"v_pk_mul_f32 {p(Ee + o)}, {p(Ee + o)}, {p(Ee + o + 4)}",
        lambda o: f"v_pk_mul_f32 {p(Ee + o + 8)}, {p(Ee + o + 8)}, {p(Ee + o + 12)}",
        lambda o: f"v_pk_mul_f32 {p(Ee + o + 4)}, {p(Ee + o)}, {p(Ee + o + 8)}",
        lambda o: f"v_pk_mul_f32 {p(D + o)}, {p(D + o)}, {p(Ee + o + 8)}",
        lambda o: f"v_rcp_f32 v{Ee + o + 4}, v{Ee + o + 4}",
        lambda o: f"v_rcp_f32 v{Ee + o + 5}, v{Ee + o + 5}",
        lambda o: f"v_pk_fma_f32 {p(D + o)}, {p(D + o + 8)}, {p(Ee + o)}, {p(D + o)}",
        lambda o: f"v_pk_fma_f32 {p(vAc[o // 2])}, {p(D + o)}, {p(Ee + o + 4)}, {p(vAc[o // 2])}",
    ]
    return ex, sc, ["    " + fn(o) for fn in seq for o in (0, 2)]

def tile(t):
    a, r = t % 2, NT - t
    ex, sc, rest = core_lines(vD[a])
    Dn, Pn = vD[1 - a], vP[1 - a]
    e(f"K2_T{t}:")
    if t in PRIO_AT: prio(PRIO_AT[t])
    if r >= 2:
        seq = ex[:2] + [f"    s_waitcnt vmcnt({8 if r >= 3 else 0}) lgkmcnt(0)"]
        for q in range(4): seq += [mfma4(Dn, Pn, q), ex[2 + q]]
        seq += ex[6:9] + [mfma32(Dn)] + ex[9:14]
        if r >= 4: seq += gather_lines(Pn, vSO)
        if r >= 5: seq += [f"    ds_read_b128 {vr(vSO + 4 * y, 4)}, v{vaS[y]} offset:{16 * (t + 4)}" for y in range(2)]
        if r >= 3: seq += [f"    ds_read2_b64 {vr(vAe, 4)}, v{vaE} offset0:{4 * (t + 2)} offset1:{4 * (t + 2)}"]
        seq += ex[14:]
    else:
        seq = list(ex)
    for l in seq + sc + rest: e(l)
    stamp(100 + t - 5, 4, 1)
    if r >= 2:
        for y in range(2):
            e(f"    s_bitcmp1_b32 s{sEV[y]}, {t}\n    s_cbranch_scc1 K2_EV{t}_{y}\nK2_EB{t}_{y}:")

def x_addr(xa):
    e(f"""
    v_xor_b32 v{xa}, v5, v6
    v_lshlrev_b32 v{xa}, 4, v{xa}
    v_lshl_or_b32 v{xa}, v6, 8, v{xa}
    v_add_u32 v{xa}, {XL}, v{xa}
    v_xor_b32 v{xa + 1}, 64, v{xa}
    v_xor_b32 v{xa + 2}, 0x80, v{xa}
    v_xor_b32 v{xa + 3}, 0xc0, v{xa}
""")
def x_reads(xa, xb):
    for s in range(4):
        for T in range(3):
            e(f"    ds_read_b128 {vr(xb(T, s), 4)}, v{xa + s} offset:{4096 * T}")
def node_mfma(acc, W, xb):
    for s in range(4):
        for T in range(3):
            e(f"    s_waitcnt lgkmcnt({11 - 3 * s - T})")
            c = "0" if s == 0 else vr(acc + 4 * T, 4)
            e(f"    v_mfma_f32_16x16x32_bf16 {vr(acc + 4 * T, 4)}, {vr(W + 4 * s, 4)}, {vr(xb(T, s), 4)}, {c}")
def per_record(lab, fn):
    for k in range(NK):
        e(f"    s_mov_b64 exec, {sr(sM[k], 2)}")
        if k >= 2: e(f"    s_cbranch_execz {lab}")
        fn(k)
    e(f"{lab}:")

def conv_addr(t):
    e(f"""
    v_lshrrev_b32 v{vCA}, 4, v0
    v_subrev_u32 v{vCA}, 24, v{vCA}
    v_cvt_f32_u32 v{t}, v{vNp}
    v_lshlrev_b32 v{t + 1}, 2, v{vCA}
    v_mul_f32 v{t}, 0xbe800000, v{t}
    v_mul_u32_u24 v{vCW}, {RB}, v{vCA}
    v_mul_u32_u24 v{vCA}, {RS}, v{vCA}
    ds_bpermute_b32 v{vCN}, v{t + 1}, v{t}
    v_lshl_add_u32 v{vCW}, v6, 4, v{vCW}
    v_lshl_add_u32 v{vCA}, v6, 4, v{vCA}
    v_add_u32 v{vCW}, {AGB}, v{vCW}
    v_add_u32 v{vCA}, {QU}, v{vCA}
""")

def kernel2():
    e(f"""
.text
.globl mpnn_edge_kernel
.p2align 8
.type mpnn_edge_kernel,@function
mpnn_edge_kernel:
    s_load_dwordx2 s[4:5], s[0:1], 64       ; ws
    s_load_dwordx2 s[12:13], s[0:1], 0      ; x
    s_load_dwordx2 s[16:17], s[0:1], 48     ; out
    s_cmp_ge_u32 s2, 256
    s_cbranch_scc1 K2_END
    v_lshrrev_b32 v2, 6, v0
    s_and_b32 s34, s2, 63
    v_readfirstlane_b32 s21, v2
    s_lshl_b32 s34, s34, 10
    s_lshr_b32 s3, s2, 6
    s_add_u32 s34, s34, s3
    s_lshl2_add_u32 s34, s34, {DESC}
    s_mov_b32 s6, {WSEND:#x}
    s_mov_b32 s7, 0x20000
    v_and_b32 v4, -4, v0
    v_lshlrev_b32 v4, 2, v4
""")
    stamp(0, 4, 1); light0()
    e(f"""
    v_lshrrev_b32 v8, 4, v0
    v_xor_b32 v9, v8, v0
    v_and_b32 v9, 15, v9
    s_waitcnt lgkmcnt(0)
    buffer_load_dword v2, v4, s[4:7], s34 offen
    s_and_b32 s20, s2, 7
    s_bfe_u32 s35, s2, 0x30003
    s_lshl3_add_u32 s20, s20, s35
    s_lshl2_add_u32 s20, s20, s3
    s_cmp_ge_u32 s21, 11
    s_cbranch_scc1 K2_NOX
    s_lshl_b32 s35, s20, 8
    v_lshl_add_u32 v8, v8, 16, s35
    s_lshl_b32 s36, s21, 10
    s_add_u32 s36, s36, {XL}
    s_mov_b32 m0, s36
""")
    srd(12, N * 256)
    e(f"""
    v_lshl_add_u32 v8, v9, 4, v8
    buffer_load_dwordx4 v8, s[12:15], 0 offen lds
K2_NOX:
    v_lshrrev_b32 v3, 2, v0
    v_mul_u32_u24 v3, {RSTR}, v3
    v_and_b32 v4, 3, v0
    s_mov_b32 s24, 0
    s_mov_b32 s25, {4 * NK}
    s_mov_b32 s{sFirst}, 1
    v_lshlrev_b32 v56, 4, v0
    v_mov_b64 v[8:9], 0
    v_mov_b64 v[10:11], 0
    s_cmp_ge_u32 s21, 2
    s_cbranch_scc1 K2_NOZ0
    ds_write_b128 v56, v[8:11] offset:{MISC}
K2_NOZ0:
""")
    def ag16(lab):
        e(f"""
    v_add_u32 v57, {AG}, v56
    ds_write_b128 v57, v[8:11]
    ds_write_b128 v57, v[8:11] offset:16384
    s_cmp_ge_u32 s21, 11
    s_cbranch_scc1 {lab}
    ds_write_b128 v57, v[8:11] offset:32768
""")
    if OPT["agz"] == 0:
        ag16("K2_NOZ3")
        e("    s_waitcnt vmcnt(1)\n    s_branch K2_ROUND\nK2_NOZ3:\n    s_waitcnt vmcnt(0)")
    else:
        if OPT["agz"] == 1:
            e(f"    s_cmp_ge_u32 s21, 8\n    s_cbranch_scc1 K2_NOZ3\n    v_add_u32 v57, {AG}, v56")
            for i in range(5): e(f"    ds_write_b128 v57, v[8:11] offset:{8192 * i}")
            e(f"    s_cmp_ge_u32 s21, 3\n    s_cbranch_scc1 K2_NOZ3\n    ds_write_b128 v57, v[8:11] offset:{8192 * 5}\nK2_NOZ3:")
        e("    s_cmp_lt_u32 s21, 11\n    s_cbranch_scc1 K2_WD1\n    s_waitcnt vmcnt(0)\nK2_WD1:\n    s_waitcnt vmcnt(1)")
    e(f"""
K2_ROUND:
""")
    prio(2)
    stamp(1, 4, 1)
    e(f"""
    v_lshrrev_b32 v16, 16, v2               ; count
    v_and_b32 v17, 0xffff, v2               ; start
    v_subrev_u32 v16, s24, v16
    v_add3_u32 v17, v17, s24, v4
    v_min_i32 v18, s25, v16
    v_mad_u32_u24 v17, v17, 12, v3
    v_sub_u32 v18, v18, v4
    s_mov_b32 s34, {REC}
""")
    for k in range(4): e(f"    v_cmp_lt_i32 {sr(sM[k], 2)}, {4 * k}, v18")
    def ld(k):
        e(f"    buffer_load_dwordx3 {vr(vR + 4 * k, 3)}, v17, s[4:7], s34 offen offset:{48 * k}")
        if 4 <= k + 1 < NK: e(f"    v_cmp_lt_i32 {sr(sM[k + 1], 2)}, {4 * (k + 1)}, v18")
    per_record("K2_RLD", ld)
    e("    s_mov_b64 exec, -1")
    stamp(2, 4, 1)
    prio(0)
    e(f"""
    v_and_b32 v1, 63, v0
    v_cmp_lt_i32 {sr(sMM, 2)}, s25, v16
    v_lshlrev_b32 v7, 4, v1                 ; lane*16
    s_mov_b32 s75, 0
""")
    if not OPT["bdp"]: e("    s_waitcnt lgkmcnt(3)\n    s_barrier")
    e(f"""
    ds_write_b128 v56, v[8:11] offset:{EA}
    s_cmp_ge_u32 s21, 8
    s_cbranch_scc1 K2_NOSO
    v_mov_b32 v12, {PADV}
    v_mov_b32 v13, v12
    v_mov_b32 v14, v12
    v_mov_b32 v15, v12
    ds_write_b128 v56, v[12:15] offset:{SO}
    {"s_mov_b32 s75, s%d" % sFirst if OPT["qo"] else "s_branch K2_NOW2"}
K2_NOSO:
    {"" if OPT["qo"] else "s_mov_b32 s75, s%d                ; 1: this wave computes q in this round" % sFirst}
""")
    def w2_loads():
        e(f"    s_lshl_b32 s74, s21, 12\n    s_add_u32 s74, s74, {W2F - (0 if OPT['qo'] else 8 * 4096)}")
        for s in range(4):
            e(f"    buffer_load_dwordx4 {vr(92 + 4 * s, 4)}, v7, s[4:7], s74 offen offset:{1024 * s}")
    if OPT["bdp"] != 2:
        e("    s_cmp_eq_u32 s75, 0\n    s_cbranch_scc1 K2_NOW2")
        w2_loads()
    e(f"""
K2_NOW2:
    s_cmp_eq_u32 s{sFirst}, 0
    s_cbranch_scc1 K2_SETD
""")
    if OPT["agz"] == 2:
        ag16("K2_NOZ3"); e("K2_NOZ3:")
    e(f"""
    v_lshrrev_b32 v5, 4, v1                 ; g
    v_and_b32 v6, 15, v1                    ; n
    v_mov_b32 v{vNp}, 0
    s_cmp_lt_u32 s20, 16
    s_cselect_b32 s22, 40, 39
    s_bfm_b64 s[78:79], s22, 0
    s_and_b32 s23, s21, 1
    s_xor_b32 s76, s21, {8 * OPT['qo']}
    s_lshr_b32 s76, s76, 1
    s_mov_b32 s26, {KC:#x}
    s_mov_b32 s72, {NL2E:#x}
    s_lshl_b32 s39, s23, 7
    s_add_u32 s8, s4, s39
    s_addc_u32 s9, s5, 0
    s_or_b32 s9, s9, 0x80000000
    s_mov_b32 s10, 0x10000
    s_mov_b32 s11, 0x00c00000
""")
    srd(16, N * 256)
    e(f"""
K2_SETD:
    v_mov_b32 v59, 4
    v_lshlrev_b32 v58, 2, v1
    v_mov_b32 v{vRS}, {RS}
    v_and_b32 v{vaN[1]}, 31, v1
    s_lshl_b32 s36, s23, 9
    s_add_u32 s37, s36, {QU}
    v_lshl_add_u32 v{vaN[0]}, v{vaN[1]}, 4, s37
    v_lshl_add_u32 v{vW3a}, s36, 1, v7
    s_movk_i32 s36, 0x3f80
    s_mov_b32 s37, 0
    v_and_b32 v16, 0x30, v7
    v_lshlrev_b64 {vr(vI, 2)}, v16, s[36:37]
    v_mov_b32 v{vS16}, 0
    v_mov_b64 {vr(vaE, 2)}, 0
    v_mov_b32 v{vStr}, 0
    s_mov_b64 exec, s[78:79]
    v_mov_b32 v{vS16}, 16
    s_mov_b32 exec_lo, 0x55555555
    s_mov_b32 exec_hi, 0xaaaaaaaa
    v_and_b32 v{vaE}, 0x18, v1
    v_mov_b32 v{vAct}, 1
    v_bfe_u32 v{vStr}, v1, 1, 2
""")
    if not OPT["bdp"]: e(f"    s_mov_b64 exec, {sr(sMM, 2)}\n    s_cbranch_execnz K2_MORE\nK2_MOREB:")
    e(f"""
    s_cmp_eq_u32 s75, 0
    s_cbranch_scc1 K2_W0
    s_mov_b64 exec, -1
""")
    x_addr(108)
    e(f"""
    s_bfe_u32 s36, s21, 0x20001
    s_lshl3_add_u32 s36, s36, s23
    s_lshl_b32 s36, s36, 5
    s_add_u32 s36, s36, {QU}
    v_mul_u32_u24 v{vTa}, {RS}, v6
    v_lshl_add_u32 v{vTa}, v5, 6, v{vTa}
    v_add_u32 v{vTa}, s36, v{vTa}
    s_cmp_eq_u32 s75, 0
""")
    if OPT["bdp"]:
        e("K2_W0:")
        prio(2)
        e(f"""
    s_waitcnt lgkmcnt({(5, 8, 5)[OPT['agz']]})
    s_barrier
    s_mov_b64 exec, {sr(sMM, 2)}
    s_cbranch_execnz K2_MORE
K2_MOREB:
    s_cbranch_scc1 K2_W1
""")
        if OPT["bdp"] == 2:
            e("    s_mov_b64 exec, -1")
            w2_loads()
        e(f"""
    s_waitcnt vmcnt(4)
    s_branch K2_RECS
K2_W1:
    s_waitcnt vmcnt(0)
K2_RECS:
""")
    else:
        prio(2)
        e("    s_waitcnt vmcnt(4)\n    s_branch K2_RECS\nK2_W0:")
        prio(2)
        e("    s_waitcnt vmcnt(0)\nK2_RECS:")
    stamp(3, 4, 1)
    per_record("K2_HISTD", lambda k: e(f"""
    v_lshrrev_b32 v{vN4[k]}, 24, v{vR + 2 + 4 * k}
    ds_add_rtn_u32 v{vR + 3 + 4 * k}, v{vN4[k]}, v59 offset:{CNT}
    v_and_b32 v{vR + 2 + 4 * k}, 0x3ffffff, v{vR + 2 + 4 * k}
"""))
    e(f"""
    s_mov_b64 exec, -1
    s_cmp_lg_u32 s76, 0
    s_cbranch_scc1 K2_NOW3
    s_lshl_b32 s34, s23, 10
    s_add_u32 s35, s34, {W3L}
    s_add_u32 s34, s34, {W3F}
    s_mov_b32 m0, s35
    s_nop 0
    buffer_load_dwordx4 v7, s[4:7], s34 offen lds
K2_NOW3:
    s_waitcnt lgkmcnt(0)
    s_barrier
""")
    stamp(4, 4, 1)
    e(f"""
    ds_read_b32 v{vC4}, v58 offset:{CNT}
    s_waitcnt lgkmcnt(0)
    v_add_u32 v{vQ16}, 12, v{vC4}
    v_and_b32 v{vQ16}, -16, v{vQ16}
    v_max_u32 v{vQ16}, v{vS16}, v{vQ16}     ; 16*quads
    s_nop 1
    v_add_u32_dpp v{vE16}, v{vQ16}, v{vQ16} row_shr:1 row_mask:0xf bank_mask:0xf bound_ctrl:1
""")
    for c in ("row_shr:2 row_mask:0xf", "row_shr:4 row_mask:0xf", "row_shr:8 row_mask:0xf", "row_bcast:15 row_mask:0xa", "row_bcast:31 row_mask:0xc"):
        e(f"    s_nop 1\n    v_add_u32_dpp v{vE16}, v{vE16}, v{vE16} {c} bank_mask:0xf")
    e(f"""
    v_sub_u32 v{vS16}, v{vE16}, v{vQ16}
    v_readlane_b32 s34, v{vE16}, 63
""")
    for k in range(NK):
        if k >= 3: e(f"    s_cmp_eq_u64 {sr(sM[k], 2)}, 0\n    s_cbranch_scc1 K2_BPD")
        e(f"    ds_bpermute_b32 v{vN4[k]}, v{vN4[k]}, v{vS16}")
    e(f"""
K2_BPD:
    s_cmp_gt_u32 s34, {S16MAX}
    s_cbranch_scc1 K2_REDO
    s_add_u32 s34, s34, 48
    s_lshr_b32 s35, s34, 9
    s_bfe_u32 s34, s34, 0x30006
    s_mul_i32 s37, s76, s35
    s_waitcnt lgkmcnt(0)
""")
    per_record("K2_GEO", lambda k: e(f"""
    v_add_u32 v{vN4[k]}, v{vN4[k]}, v{vR + 3 + 4 * k}
    ds_write_b32 v{vN4[k]}, v{vR + 2 + 4 * k} offset:{SO}
    v_add_u32 v{vR + 3 + 4 * k}, v{vN4[k]}, v{vN4[k]}
"""))
    e(f"""
    s_cmp_lg_u32 s21, {8 * OPT['qo']}
    s_cbranch_scc1 K2_NOFL
    s_mov_b64 exec, s[78:79]
    v_lshrrev_b32 v16, 4, v{vE16}
    ds_write_b8 v16, v59 offset:{FL - 1}
K2_NOFL:
    s_min_u32 s38, s76, s34
    s_add_u32 s37, s37, s38
    s_lshl_b32 s60, s37, 6                  ; stream (0,X)
    s_cmp_lt_u32 s76, s34
    s_addc_u32 s35, s35, 0
    s_mov_b64 exec, -1
    v_and_b32 v{vaS[0]}, 32, v1
    v_mul_u32_u24 v{vaS[0]}, s35, v{vaS[0]}
    s_lshl_b32 s77, s35, 4
    v_add_u32 v{vaS[0]}, s60, v{vaS[0]}
    v_add_u32 v{vaS[1]}, s77, v{vaS[0]}
    s_cmp_lg_u32 s75, 0
    s_waitcnt vmcnt(0) lgkmcnt(0)
    s_barrier
""")
    stamp(5, 4, 1)
    def ea_writes(lab):
        per_record(lab, lambda k: e(f"    ds_write_b64 v{vR + 3 + 4 * k}, {vr(vR + 4 * k, 2)} offset:{EA}"))
    def first_gathers(lab):
        e(f"""
    ds_read_b128 {vr(vSO, 4)}, v{vaS[0]} offset:{SO}
    ds_read_b128 {vr(vSO + 4, 4)}, v{vaS[1]} offset:{SO}
    ds_read_b128 {vr(vE, 4)}, v{vaS[0]} offset:{SO + 16}
    ds_read_b128 {vr(vE + 4, 4)}, v{vaS[1]} offset:{SO + 16}
    s_bitcmp1_b32 s35, 0
    s_cbranch_scc1 {lab}1
""")
        for a in range(2):
            if a: e(f"{lab}1:")
            e("    s_waitcnt lgkmcnt(2)")
            gathers(vP[a], vSO)
            e("    s_waitcnt lgkmcnt(0)")
            gathers(vP[1 - a], vE)
            if not a: e(f"    s_branch {lab}D")
        e(f"{lab}D:")
    def addresses():
        e(f"""
    v_lshrrev_b32 v8, 4, v{vaS[0]}
    v_add_u32 v8, v8, v{vaN[1]}
    v_add_u32 v9, s35, v8
    ds_read_u8 v8, v8 offset:{FL}
    ds_read_u8 v9, v9 offset:{FL}
    ds_read_b128 {vr(vBw, 4)}, v{vW3a} offset:{W3L}
    s_add_u32 s61, s60, s77
    s_add_u32 s62, s61, s77
    s_add_u32 s63, s62, s77
    s_mov_b64 exec, s[78:79]
""")
        for k in range(4):
            e(f"    v_cmp_ge_u32 vcc, s{60 + k}, v{vE16}\n    s_bcnt1_i32_b64 s{64 + k}, vcc")
        e(f"""
    v_sub_u32 v{vQ16}, v{vQ16}, v{vC4}
    v_add_u32 v{vNp}, v{vNp}, v{vQ16}
    s_mov_b32 exec_hi, 0
    v_mad_u32_u24 v{vaN[1]}, s65, v{vRS}, v{vaN[0]}
    v_mad_u32_u24 v{vaN[0]}, s64, v{vRS}, v{vaN[0]}
    s_not_b64 exec, exec
    v_mad_u32_u24 v{vaN[1]}, s67, v{vRS}, v{vaN[0]}
    v_mad_u32_u24 v{vaN[0]}, s66, v{vRS}, v{vaN[0]}
    s_mov_b64 exec, -1
    s_lshl_b32 s36, s35, 5
    s_lshl1_add_u32 s37, s60, {EA}
    v_mad_u32_u24 v{vaE}, v{vStr}, s36, v{vaE}
    v_mad_u32_u24 v{vaE}, v{vAct}, s37, v{vaE}
    v_mov_b64 {vr(vAc[0], 2)}, 0
    v_mov_b64 {vr(vAc[1], 2)}, 0
    s_sub_u32 s34, {NT}, s35
    s_add_u32 s38, s77, {SO - 16 * NT}
    s_sub_u32 s39, s36, {32 * NT}
    s_waitcnt lgkmcnt(0)
    v_cmp_ne_u32 {sr(sFM[0], 2)}, 0, v8
    v_cmp_ne_u32 {sr(sFM[1], 2)}, 0, v9
""")
    def tile_write(src, o):
        for T in range(3):
            if T == 2: e(f"    s_mov_b32 exec_lo, {M9}\n    s_mov_b32 exec_hi, {M9}")
            for h in range(2):
                src(T, h)
            for h in range(2):
                e(f"    ds_write_b64 v{vTa}, {vr(o[0] + 4 * T + 2 * h, 2)} offset:{16 * RS * T + 16 * h + o[1]}")
        e("    s_mov_b64 exec, -1")
    e("    s_cbranch_scc0 K2_FG")
    prio(3)
    xbq = lambda T, s: 8 + 16 * T + 4 * s
    x_reads(108, xbq)
    node_mfma(vU, 92, xbq)
    ea_writes("K2_EAQ")
    e("    s_mov_b64 exec, -1\n    s_nop 0")
    tile_write(lambda T, h: e(f"    v_pk_mul_f32 {vr(vU + 4 * T + 2 * h, 2)}, {vr(vU + 4 * T + 2 * h, 2)}, s[72:73] op_sel_hi:[1,0]"), (vU, 0))
    e("    s_waitcnt lgkmcnt(0)\n    s_barrier")
    for r in range(12):
        e(f"    v_exp_f32 v{92 + r}, v{vU + r}")
    for r in range(0, 12, 2):
        e(f"    v_pk_fma_f32 {vr(92 + r, 2)}, {vr(92 + r, 2)}, {KCOP}")
    for r in range(12):
        e(f"    v_rcp_f32 v{92 + r}, v{92 + r}")
    tile_write(lambda T, h: e(f"    v_pk_mul_f32 {vr(92 + 4 * T + 2 * h, 2)}, {vr(92 + 4 * T + 2 * h, 2)}, {vr(vU + 4 * T + 2 * h, 2)}"), (92, 8))
    prio(0)
    first_gathers("K2_GQ")
    prio(3)
    stamp(11, 4, 1)
    addresses()
    e("    s_branch K2_NOB\nK2_FG:")
    first_gathers("K2_GR")
    stamp(11, 4, 1)
    ea_writes("K2_EAR")
    e("    s_mov_b64 exec, -1")
    addresses()
    e(f"""
    s_barrier
K2_NOB:
    ds_read_b64 {vr(vQ, 2)}, v{vaN[0]}
    ds_read_b64 {vr(vQ + 2, 2)}, v{vaN[1]}
    ds_read2_b64 {vr(vAe, 4)}, v{vaE} offset0:0 offset1:0
    ds_read_b128 {vr(vSO, 4)}, v{vaS[0]} offset:{SO + 32}
    ds_read_b128 {vr(vSO + 4, 4)}, v{vaS[1]} offset:{SO + 32}
    s_mov_b32 s{sFirst}, 0
""")
    for y in range(2):
        e(f"""
    s_lshl_b64 {sr(sFM[y], 2)}, {sr(sFM[y], 2)}, s34
    s_or_b32 s36, s{sFM[y]}, s{sFM[y] + 1}
    s_lshr_b32 s37, s36, 1
    s_or_b32 s{sEV[y]}, s36, s37
""")
    if OPT["cae"]:
        e("    s_cmp_lt_u32 s21, 8\n    s_cbranch_scc1 K2_NOCE")
        conv_addr(76)
        e("K2_NOCE:")
    stamp(12, 4, 1)
    e(f"""
    s_or_b32 s34, s34, 0x10000
    s_bitcmp1_b32 s35, 0
    s_waitcnt vmcnt(8) lgkmcnt(0)
""")
    stamp(6, 4, 1)
    e("    s_cbranch_scc1 K2_PA1")
    for a in range(2):
        if a: e("K2_PA1:")
        for q in range(4): e(mfma4(vD[a], vP[a], q))
        prio(1)
        e(f"    s_cmp_lt_u32 s35, 3\n    s_cbranch_scc1 K2_NGP{a}")
        gathers(vP[a], vSO)
        e(f"K2_NGP{a}:\n    s_nop 0\n{mfma32(vD[a])}")
        if not a: e("    s_branch K2_PAD")
    e(f"""
K2_PAD:
    ds_read_b128 {vr(vSO, 4)}, v{vaS[0]} offset:{SO + 48}
    ds_read_b128 {vr(vSO + 4, 4)}, v{vaS[1]} offset:{SO + 48}
    ds_read2_b64 {vr(vAe, 4)}, v{vaE} offset0:4 offset1:4
""")
    for y in range(2):
        e(f"""
    s_bfe_i32 exec_lo, s{sFM[y]}, s34
    s_bfe_i32 exec_hi, s{sFM[y] + 1}, s34
    ds_read_b64 {vr(vQ + 2 * y, 2)}, v{vaN[y]} offset:{RS}
""")
    e(f"""
    s_mov_b64 exec, -1
    v_mad_i32_i24 v{vaE}, v{vAct}, s39, v{vaE}
    v_add_u32 v{vaS[0]}, s38, v{vaS[0]}
    v_add_u32 v{vaS[1]}, s38, v{vaS[1]}
""")
    prio(PRIO_0)
    for Lv in (10, 11, 9, 12, 8, 13, 7, 14, 6, 15, 5, 4, 3, 2, 1):
        e(f"    s_cmp_eq_u32 s35, {Lv}\n    s_cbranch_scc1 K2_T{NT - Lv}")
    e("K2_LOOP:")
    for t in range(NT):
        tile(t)
    xbu = lambda T, s: 32 + 16 * T + 4 * s
    e(f"""
K2_LDONE:
    s_cmp_ge_u32 s21, 8
    s_cbranch_scc1 K2_LD2
    s_lshl_b32 s36, s21, 12
    s_add_u32 s36, s36, {WUT}
    s_add_u32 s37, s36, {WUB - WUT}
""")
    for s in range(4):
        e(f"    buffer_load_dwordx4 {vr(16 + 4 * s, 4)}, v7, s[4:7], s36 offen offset:{1024 * s}")
    for s in range(4):
        e(f"    buffer_load_dwordx4 {vr(92 + 4 * s, 4)}, v7, s[4:7], s37 offen offset:{1024 * s}")
    e("K2_LD2:")
    for y in range(2):
        flush_adds(y)
    e(f"""
    v_mov_b32 v89, {MORE}
    ds_read_b32 v89, v89
""")
    stamp(7, 4, 1)
    e(f"""
    s_cmp_ge_u32 s21, 8
    s_cbranch_scc1 K2_NOU
""")
    x_addr(84); x_reads(84, xbu)
    e(f"""
    v_mul_u32_u24 v{vFR}, {RB}, v6
    v_lshl_add_u32 v{vFR}, v5, 4, v{vFR}
    v_add_u32 v{vFR}, {AGB}, v{vFR}
    v_mul_u32_u24 v90, {RO}, v6
    v_lshl_add_u32 v90, v5, 3, v90
    s_lshl_b32 s36, s21, 5
    s_add_u32 s36, s36, {EA}
    v_add_u32 v90, s36, v90
    v_lshrrev_b32 v88, 4, v0
    v_mul_u32_u24 v91, {RO}, v88
    v_lshl_add_u32 v91, v6, 4, v91
    v_lshlrev_b32 v88, 16, v88
    v_lshl_or_b32 v88, v6, 4, v88
    s_lshl_b32 s36, s20, 8
    v_add_u32 v88, s36, v88
    v_add_u32 v125, 0x200000, v88
    s_waitcnt vmcnt(4)
""")
    node_mfma(vU, 16, xbu)
    e(f"""
    s_cmp_lt_u32 s21, 6
    s_cbranch_scc1 K2_NOCA
""")
    if not OPT['cae']: e('K2_NOU:')
    conv_addr(84)
    if OPT['cae']: e('K2_NOU:')
    e(f"""
K2_NOCA:
    s_waitcnt lgkmcnt(0)
    v_readfirstlane_b32 s{sMoreV}, v89
    s_barrier
""")
    stamp(8, 4, 1)
    e(f"""
    s_cmp_lg_u32 s{sMoreV}, 0
    s_cbranch_scc1 K2_NEXT
    s_cmp_lt_u32 s21, 6
    s_cbranch_scc1 K2_NOCV
""")
    for k in range(4):
        e(f"    ds_read_b128 {vr(16 + 4 * k, 4)}, v{vCA} offset:{AG - QU + 256 * k}\n    ds_read_b64 {vr(8 + 2 * k, 2)}, v{vCA} offset:{256 * k + 8}")
    for k in range(4):
        e(f"    s_waitcnt lgkmcnt({6 - 2 * k})")
        e(f"    v_cvt_f32_f64 v{32 + 2 * k}, {vr(16 + 4 * k, 2)}\n    v_cvt_f32_f64 v{33 + 2 * k}, {vr(18 + 4 * k, 2)}")
        e(f"    v_pk_fma_f32 {vr(32 + 2 * k, 2)}, {vr(8 + 2 * k, 2)}, {vr(vCN, 2)}, {vr(32 + 2 * k, 2)} op_sel_hi:[1,0,1]")
        e(f"    v_cvt_pk_bf16_f32 v{40 + k}, v{32 + 2 * k}, v{33 + 2 * k}")
    e(f"""
    ds_write_b128 v{vCW}, v[40:43]
    s_waitcnt lgkmcnt(0)
K2_NOCV:
    s_cmp_ge_u32 s21, 8
    s_barrier
""")
    stamp(13, 4, 1)
    e("    s_cbranch_scc1 K2_FIN")
    xbf = lambda T, s: 16 + 16 * T + 4 * s
    tmp, outr = 76, 8
    def M(T, s, wait=True):
        if wait: e(f"    s_waitcnt lgkmcnt({11 - 4 * T - s})")
        e(f"    v_mfma_f32_16x16x32_bf16 {vr(vU + 4 * T, 4)}, {vr(92 + 4 * s, 4)}, {vr(xbf(T, s), 4)}, {vr(vU + 4 * T, 4)}")
    def sc_(T):
        for m in (2 * T, 2 * T + 1): e(f"    v_pk_mul_f32 {vr(tmp + 2 * m, 2)}, {vr(vU + 2 * m, 2)}, s[72:73] op_sel_hi:[1,0]")
    def ex_(T, k): e(f"    v_exp_f32 v{tmp + 4 * T + k}, v{tmp + 4 * T + k}")
    def ad_(T):
        for m in (2 * T, 2 * T + 1): e(f"    v_pk_add_f32 {vr(tmp + 2 * m, 2)}, {vr(tmp + 2 * m, 2)}, 1.0 op_sel_hi:[1,0]")
    def rc_(T):
        for k in range(4): e(f"    v_rcp_f32 v{tmp + 4 * T + k}, v{tmp + 4 * T + k}")
    def out_(T):
        for m in (2 * T, 2 * T + 1): e(f"    v_pk_mul_f32 {vr(tmp + 2 * m, 2)}, {vr(tmp + 2 * m, 2)}, {vr(vU + 2 * m, 2)}")
        for m in (2 * T, 2 * T + 1): e(f"    v_cvt_pk_bf16_f32 v{outr + m}, v{tmp + 2 * m}, v{tmp + 2 * m + 1}")
        e(f"    ds_write_b64 v90, {vr(outr + 2 * T, 2)} offset:{16 * RO * T}")
    for T in range(3):
        for s in range(4):
            e(f"    ds_read_b128 {vr(xbf(T, s), 4)}, v{vFR} offset:{16 * RB * T + 64 * s}")
    e("    s_waitcnt vmcnt(0)")
    for s in range(4): M(0, s)
    for s in range(4): M(1, s)
    sc_(0)
    e("    s_waitcnt lgkmcnt(0)")
    for s in range(4): M(2, s, False); ex_(0, s)
    e("    s_nop 0")
    sc_(1)
    for k in range(4): ex_(1, k)
    ad_(0); rc_(0); sc_(2)
    for k in range(4): ex_(2, k)
    out_(0); ad_(1); rc_(1); ad_(2); out_(1); rc_(2); e("    s_nop 0"); out_(2)
    e(f"""
    s_cmp_ge_u32 s21, 2
    s_waitcnt lgkmcnt(0)
    s_barrier
    ds_read_b128 v[16:19], v91 offset:{EA}
    s_cbranch_scc1 K2_O1
    ds_read_b128 v[20:23], v91 offset:{EA + 32 * RO}
    s_waitcnt lgkmcnt(0)
    buffer_store_dwordx4 v[20:23], v125, s[16:19], 0 offen
K2_O1:
    s_waitcnt lgkmcnt(0)
    buffer_store_dwordx4 v[16:19], v88, s[16:19], 0 offen
K2_FIN:
""")
    light1(4, 1)
    if OPT["stamps"]:
        stamp(9, 4, 1); e("    s_waitcnt vmcnt(0)"); stamp(10, 4, 1); stamp_out(4, 1)
    e("K2_END:\n    s_endpgm")
    for t in range(NT - 1):
        for y in range(2):
            event_block(t, y)
    e(f"""
K2_TAILBLOCKS:
K2_MORE:
    v_mov_b32 v16, {MORE}
    ds_write_b32 v16, v59
    s_branch K2_MOREB
K2_NEXT:
    s_waitcnt vmcnt(0)
    s_add_u32 s24, s24, s25
    s_branch K2_AGAIN
K2_REDO:
    s_mov_b32 s25, 4
    s_waitcnt vmcnt(0) lgkmcnt(0)
    s_barrier
K2_AGAIN:
    v_lshlrev_b32 v56, 4, v0
    v_mov_b64 v[8:9], 0
    v_mov_b64 v[10:11], 0
    s_cmp_ge_u32 s21, 2
    s_cbranch_scc1 K2_ROUND
    ds_write_b128 v56, v[8:11] offset:{MISC}
    s_waitcnt lgkmcnt(0)
K2_LAST:
    s_branch K2_ROUND
""")

def desc(name, vg, sg):
    e(f"""
.p2align 6
.amdhsa_kernel {name}
  .amdhsa_next_free_vgpr {vg}
  .amdhsa_next_free_sgpr {sg}
  .amdhsa_accum_offset {vg}
  .amdhsa_group_segment_fixed_size 0
  .amdhsa_kernarg_size 72
  .amdhsa_user_sgpr_count 2
  .amdhsa_user_sgpr_kernarg_segment_ptr 1
  .amdhsa_system_sgpr_workgroup_id_x 1
.end_amdhsa_kernel
""")

e(f"""
; @launch kernel=mpnn_bin_kernel grid=(512,1,1) block=(768,1,1) lds={K1_LDS}
; @launch kernel=mpnn_edge_kernel grid=(256,1,1) block=(1024,1,1) lds={K2_LDS}
.amdgcn_target "amdgcn-amd-amdhsa--gfx950"
""")
kernel1()
kernel2()
e('.section .rodata,"a"')
desc("mpnn_bin_kernel", 80, 96)
desc("mpnn_edge_kernel", 128, 102 if OPT["stamps"] else 96)
FL_ = {0: "", 1: " sc1", 2: " nt", 3: " sc0 sc1", 4: " sc1 nt", 5: " sc0"}
k2at = next(i for i, l in enumerate(L) if l.startswith("mpnn_edge_kernel:"))
for i, l in enumerate(L):
    c = l.split(";")
    fl = None
    if l.strip().startswith("buffer_store") and " off," not in l:
        fl = FL_[(OPT["stp"] if "v[76:79]" in l else OPT["st1"]) if i < k2at else OPT["st2"]]
    elif l.strip().startswith("buffer_load"):
        if i < k2at:
            if any(x in l for x in ("s[24:27]", "s[8:11], s22", "s[32:35]")): fl = " nt" * OPT["nte"]
            elif "s[4:7]" in l: fl = " nt" * OPT["ntx"]
            elif "s[12:15]" in l and "lds" in l: fl = " nt" * OPT["ntw"]
        else:
            if "s[12:15]" in l: fl = " nt" * OPT["ntx2"]
            elif "dwordx3" in l: fl = " nt" * OPT["ntr"]
    if fl:
        body = c[0].rstrip()
        body = body[:-4] + fl + " lds" if body.endswith(" lds") else body + fl
        L[i] = body + ("   ;" + c[1] if len(c) > 1 else "")
open(sys.argv[1], "w").write("\n".join(L) + "\n")
```

```python
import sys, struct, math

def f2u(x): return struct.unpack("<I", struct.pack("<f", x))[0]

OPT = dict(unc=1, agz=0, qo=0, bdp=2, cae=0, cpf1=0, f16=0, uw3=0, hold=0, hold2=0, otl=0, stp=0, lay=0, k1p=0, k1o=1, cpf2=0, agl=0, t2m=1, olds=1, pf2=0, rab=0, gq=0, gq2=3, gp=1, stg1=0, stg3=0, qpre=0, eal=1, ash=0, dst1=1, fin=1, wpf=0, cpf=6, ps=2, bdl=1, rb=288, st1=0, st2=0, nte=1, ntx=0, ntw=0, ntx2=0, ntr=0, light=0, g1late=0, pf=0, gpos=0, nom4=0, nom32=0, mpos=0, nochk=0, prio1=0, dbg=0, safe=0, stamps=0, prio=1, nogather=0, nocore=0, nolds=0, nomfma=0, noflush=0)
for a in sys.argv[2:]:
    k, v = a.split("="); OPT[k] = int(v)

N, E = 10000, 320000
NB = 256
EPW = 1250
PT    = 0
DESC  = 0x280000
REC   = 0x2C0000
RSTR  = 15488
W2F   = 0x690000
WUT   = W2F + 0x8000
WUB   = WUT + 0x8000
W3F   = WUB + 0x8000
STAMP = W3F + 0x800
WSEND = STAMP + (0x100000 if OPT["stamps"] or OPT["light"] else 0)
NL2E = f2u(-1.4426950408889634)
KC   = f2u(1.0 / (2.0 ** 31 * math.log(2.0)))
NSC  = f2u(-2.0 ** -31)

L = []
def e(s=""):
    for ln in s.strip("\n").split("\n"):
        L.append(ln)
def vr(a, n): return f"v[{a}:{a + n - 1}]" if n > 1 else f"v{a}"
def sr(a, n): return f"s[{a}:{a + n - 1}]" if n > 1 else f"s{a}"

def srd(s, nrec, w3=0x20000):
    e(f"    s_mov_b32 s{s + 2}, {nrec:#x}\n    s_mov_b32 s{s + 3}, {w3:#x}")

def scan64(v):
    for c in ("row_shr:1 row_mask:0xf", "row_shr:2 row_mask:0xf", "row_shr:4 row_mask:0xf", "row_shr:8 row_mask:0xf",
              "row_bcast:15 row_mask:0xa", "row_bcast:31 row_mask:0xc"):
        e(f"    s_nop 1\n    v_add_u32_dpp v{v}, v{v}, v{v} {c} bank_mask:0xf")

NST = 16
def light0():
    if OPT["light"]: e("    s_memrealtime s[80:81]")
def light1(srd_s, kern):
    if not OPT["light"]: return
    e(f"""
    s_waitcnt vmcnt(0)
    s_memrealtime s[82:83]
    s_mov_b32 s{srd_s + 2}, {WSEND:#x}
    s_lshl_b32 s90, s2, 4
    s_add_u32 s90, s90, s21
    s_lshl_b32 s90, s90, 3
    s_add_u32 s90, s90, {STAMP + kern * 0x80000}
    s_mov_b64 exec, 1
    s_waitcnt lgkmcnt(0)
    v_mov_b32 v2, s80
    v_mov_b32 v3, s82
    buffer_store_dwordx2 v[2:3], off, s[{srd_s}:{srd_s + 3}], s90
""")
def dbg(slot):
    if not OPT["dbg"]: return
    e(f"    s_memrealtime s[{80 + 2 * slot}:{81 + 2 * slot}]")
def dbg_out(kern, wv, base, n, lab):
    if not OPT["dbg"]: return
    e(f"""
    s_waitcnt vmcnt(0)
    s_memrealtime s[{80 + 2 * (n - 1)}:{81 + 2 * (n - 1)}]
    s_cmp_lg_u32 s2, 200
    s_cbranch_scc1 {lab}
    s_cmp_lg_u32 s21, {wv}
    s_cbranch_scc1 {lab}
    s_load_dwordx2 s[92:93], s[0:1], 56
    s_waitcnt lgkmcnt(0)
    s_add_u32 s92, s92, {512 * (1 - kern)}
    s_addc_u32 s93, s93, 0
    s_mov_b32 s94, 256
    s_mov_b32 s95, 0x20000
    s_mov_b64 exec, 1
""")
    for i in range(n):
        e(f"    v_mov_b32 v127, s{80 + 2 * i}\n    buffer_store_dword v127, off, s[92:95], 0 offset:{4 * (base + i)}\n    s_waitcnt vmcnt(0)")
    e(f"{lab}:")
SMAP = {}
def stamp(i, srd_s, kern):
    if not OPT["stamps"]: return
    sel = [0, 1, 2, 3, 4, 5, 6] if kern == 0 else {1: [0, 1, 3, 4, 5, 11, 6, 7, 8, 9, 10], 2: [0, 2, 4, 5, 12, 6, 7, 8, 13, 9, 10], 3: [0] + list(range(101, 111)), 4: [0, 5, 11, 12, 6, 201, 202, 203, 204, 207, 208]}[OPT["stamps"]]
    if i not in sel: return
    r = 80 + 2 * sel.index(i)
    SMAP[(kern, i)] = r
    if i == 0: e("    s_memrealtime s[76:77]" if kern == 0 else "    s_memrealtime vcc\n    s_waitcnt lgkmcnt(0)\n    v_writelane_b32 v127, vcc_lo, 14")
    e(f"    s_memtime s[{r}:{r + 1}]")
def stamp_out(srd_s, kern):
    if not OPT["stamps"]: return
    vs, va = (2, 3) if kern == 0 else (127, 125)
    e(f"    s_memrealtime vcc\n    s_waitcnt lgkmcnt(0)\n    v_writelane_b32 v{vs}, vcc_lo, 15")
    if kern == 0: e("    v_writelane_b32 v2, s76, 14")
    for (k, i), r in SMAP.items():
        if k == kern: e(f"    v_writelane_b32 v{vs}, s{r}, {i % 100}")
    e(f"""
    s_mov_b64 exec, 0xffff
    s_lshl_b32 s3, s2, 4
    s_add_u32 s3, s3, s21
    s_lshl_b32 s3, s3, 6
    s_add_u32 s3, s3, {STAMP + kern * 0x80000}
    v_mbcnt_lo_u32_b32 v{va}, -1, 0
    v_lshlrev_b32 v{va}, 2, v{va}
    buffer_store_dword v{vs}, v{va}, s[{srd_s}:{srd_s + 3}], s3 offen
    s_mov_b64 exec, -1
""")

K1_CNT, K1_ST, K1_STG = 0, 1024, 2048
K1_WL, K1_XL = 0, 32768
K1_LDS = 66 * 1024
def gemm_issue():
    e(f"""
    s_lshr_b32 s20, s2, 4
    s_lshl_b32 s20, s20, 3
    s_and_b32 s3, s2, 7
    s_or_b32 s20, s20, s3
""")
    if OPT["cpf1"]:
        e(f"""
    s_cmp_lg_u32 s21, 0
    s_cbranch_scc1 K1_NOT
    s_cmp_ge_u32 s20, {OPT["cpf1"]}
    s_cbranch_scc1 K1_NOT
    s_getpc_b64 s[24:25]
K1_PC1:
    v_lshlrev_b32 v8, 6, v1
    v_min_u32 v8, K1_PC - K1_PC1 + 64, v8
    v_mov_b32 v9, s25
    v_add_co_u32 v8, vcc, s24, v8
    s_nop 1
    v_addc_co_u32 v9, vcc, 0, v9, vcc
    global_load_dword v34, v[8:9], off
K1_NOT:
""")
    e(f"""
    v_lshrrev_b32 v2, 4, v1                 ; g
    v_and_b32 v3, 15, v1                    ; n / i
    s_cmp_ge_u32 s20, 209
    s_cbranch_scc1 K1_JOBS
    ; x -> LDS: rows 4w + g, chunk (l%16) ^ (row & 15)
    v_lshrrev_b32 v5, 4, v0
    v_xor_b32 v6, v5, v0
    v_and_b32 v6, 15, v6
    s_mul_i32 s25, s20, 48
    v_add_u32 v5, s25, v5
    v_lshlrev_b32 v5, 8, v5
    v_lshl_or_b32 v5, v6, 4, v5
    s_lshl_b32 s27, s21, 10
    s_add_u32 s28, s27, {K1_XL}
    s_mov_b32 m0, s28
    ; W1 -> LDS: row (l/16), chunk (l%16) ^ ((l/16)<<1) ^ (8 if bit 3 of the row)
    v_lshlrev_b32 v4, 1, v2
    v_xor_b32 v4, v4, v3
    v_lshlrev_b32 v4, 4, v4
    v_lshl_or_b32 v4, v2, 8, v4
    s_lshl_b32 s28, s21, 6
    s_and_b32 s28, s28, 0x80
    v_xor_b32 v4, s28, v4
    s_waitcnt lgkmcnt(0)
""")
    srd(4, N * 256)
    srd(12, 128 * 256)
    stamp(6, 16, 0)
    e("    buffer_load_dwordx4 v5, s[4:7], 0 offen lds")
    for m in range(3):
        if m == 2:
            e("    s_cmp_ge_u32 s21, 8\n    s_cbranch_scc1 K1_DMAD")
        e(f"""
    s_mov_b32 m0, s27
    s_nop 0
    buffer_load_dwordx4 v4, s[12:15], s27 offen lds
""")
        if m < 2: e("    s_add_u32 s27, s27, 12288")

def kernel1():
    e("""
.text
.globl mpnn_bin_kernel
.p2align 8
.type mpnn_bin_kernel,@function
mpnn_bin_kernel:
    s_load_dwordx4 s[8:11], s[0:1], 16
    s_load_dwordx4 s[4:7], s[0:1], 0        ; x, e_attr
    s_load_dwordx4 s[12:15], s[0:1], 32
    s_load_dwordx2 s[16:17], s[0:1], 64     ; ws
    s_cmp_ge_u32 s2, 512
    s_cbranch_scc1 K1_END
    v_lshrrev_b32 v2, 6, v0
    v_and_b32 v1, 63, v0
    v_readfirstlane_b32 s21, v2
    s_and_b32 s20, s2, 7
    s_lshl_b32 s20, s20, 5
    s_lshr_b32 s3, s2, 4
    s_or_b32 s20, s20, s3
    s_lshr_b32 s3, s2, 5
    s_xor_b32 s3, s3, s2
""")
    stamp(0, 16, 0); light0()
    dbg(0)
    if OPT["k1o"]:
        e("    s_bitcmp0_b32 s3, 3\n    s_cbranch_scc1 K1_BIN")
        gemm_issue()
        e("    s_branch K1_DMAD\nK1_BIN:")
    else:
        e("    s_bitcmp1_b32 s3, 3\n    s_cbranch_scc1 K1_GEMM")
    e("""
    ; ---------------- binning workgroup (waves 0..9) ----------------
    s_cmp_ge_u32 s21, 10
    s_cbranch_scc1 K1_END
""" + ("    s_setprio 3\n" if OPT["k1p"] else "") + """    s_mul_i32 s22, s20, 5000                ; byte offset of this workgroup's src/dst slice
    s_lshl_b32 s23, s22, 1                  ; e_attr slice
    v_lshlrev_b32 v3, 3, v0
    v_lshlrev_b32 v4, 4, v0
    v_cmp_gt_u32 s[44:45], 625, v0
""".replace("v_cmp_gt_u32 s[44:45], 625, v0", "v_cmp_gt_u32 vcc, 625, v0"))
    e("    s_mov_b32 s26, %#x\n    s_mov_b32 s27, 0x20000\n    s_mov_b64 s[44:45], vcc\n    s_mov_b64 exec, vcc\n    s_waitcnt lgkmcnt(0)\n    s_mov_b32 s24, s10\n    s_mov_b32 s25, s11" % (E * 4))
    stamp(6, 16, 0)
    e("    buffer_load_dwordx2 v[6:7], v3, s[24:27], s22 offen      ; dst")
    srd(8, E * 4)
    e("    s_mov_b32 s32, s6\n    s_mov_b32 s33, s7"); srd(32, E * 8)
    def se():
        e("""
    buffer_load_dwordx2 v[8:9], v3, s[8:11], s22 offen       ; src
    buffer_load_dwordx4 v[10:13], v4, s[32:35], s23 offen
""")
    if not OPT["dst1"]: se()
    e(f"""
    s_mov_b64 exec, -1
    v_mov_b64 v[20:21], 0
    v_mov_b64 v[22:23], 0
    s_cmp_lg_u32 s21, 0
    s_cbranch_scc1 K1_NOZ
    ds_write_b128 v4, v[20:23] offset:{K1_CNT}
K1_NOZ:
    s_waitcnt lgkmcnt(0)
    s_barrier
    s_mov_b64 exec, s[44:45]
""")
    if OPT["dst1"]: se()
    e("    s_mov_b64 exec, -1\n    v_mov_b32 v24, 1\n    v_lshlrev_b32 v5, 4, v1")
    srd(16, WSEND)
    e(f"""
    s_mul_i32 s38, s20, {RSTR}
    s_add_u32 s38, s38, {REC}
    s_add_u32 s39, s38, 10240
    s_mov_b64 exec, s[44:45]
    s_waitcnt vmcnt(2)
""")
    stamp(1, 16, 0)
    dbg(1)
    e(f"""
    v_lshlrev_b32 v14, 2, v6
    v_lshlrev_b32 v15, 2, v7
    v_and_b32 v14, 0x3fc, v14
    v_and_b32 v15, 0x3fc, v15
    ds_add_rtn_u32 v16, v14, v24 offset:{K1_CNT}
    ds_add_rtn_u32 v17, v15, v24 offset:{K1_CNT}
    v_lshrrev_b32 v6, 8, v6
    v_lshrrev_b32 v7, 8, v7
    v_lshlrev_b32 v6, 26, v6
    v_lshlrev_b32 v7, 26, v7
    s_mov_b64 exec, -1
    s_waitcnt lgkmcnt(0)
    s_barrier
""")
    stamp(2, 16, 0)
    e(f"""
    ds_read_b128 v[20:23], v5 offset:{K1_CNT}
    s_waitcnt lgkmcnt(0)
    v_add_u32 v25, v20, v21
    v_add_u32 v26, v25, v22
    v_add_u32 v27, v26, v23
    s_nop 1
    v_add_u32_dpp v28, v27, v27 row_shr:1 row_mask:0xf bank_mask:0xf bound_ctrl:1
""")
    for c in ("row_shr:2 row_mask:0xf", "row_shr:4 row_mask:0xf", "row_shr:8 row_mask:0xf", "row_bcast:15 row_mask:0xa", "row_bcast:31 row_mask:0xc"):
        e(f"    s_nop 1\n    v_add_u32_dpp v28, v28, v28 {c} bank_mask:0xf")
    e(f"""
    v_sub_u32 v28, v28, v27
    v_add_u32 v29, v28, v20
    v_add_u32 v30, v28, v25
    v_add_u32 v31, v28, v26
    ds_write_b128 v5, v[28:31] offset:{K1_ST}
    ds_read_b32 v18, v14 offset:{K1_ST}
    ds_read_b32 v19, v15 offset:{K1_ST}
    s_waitcnt vmcnt(1)
    v_lshl_or_b32 v8, v8, 3, v6
    v_lshl_or_b32 v9, v9, 3, v7
    s_mov_b64 exec, s[44:45]
    s_waitcnt lgkmcnt(0)
    v_add_u32 v18, v18, v16
    v_add_u32 v19, v19, v17
    v_mul_u32_u24 v18, 12, v18
    v_mul_u32_u24 v19, 12, v19
    ds_write_b32 v18, v8 offset:{K1_STG + 8}
    ds_write_b32 v19, v9 offset:{K1_STG + 8}
    v_add_u32 v18, {K1_STG}, v18
    v_add_u32 v19, {K1_STG}, v19
    s_waitcnt vmcnt(0)
    ds_write2_b32 v18, v10, v11 offset0:0 offset1:1
    ds_write2_b32 v19, v12, v13 offset0:0 offset1:1
    s_mov_b64 exec, -1
    s_cmp_lg_u32 s21, 9
    s_cbranch_scc1 K1_NOD
    v_lshl_or_b32 v32, v20, 16, v28
    v_lshl_or_b32 v33, v21, 16, v29
    v_lshl_or_b32 v34, v22, 16, v30
    v_lshl_or_b32 v35, v23, 16, v31
    s_lshl_b32 s36, s20, 4
    s_add_u32 s36, s36, {DESC}
    v_and_b32 v36, 7, v1
    v_lshrrev_b32 v37, 3, v1
    v_lshl_or_b32 v36, v36, 3, v37
    v_lshlrev_b32 v36, 12, v36
    buffer_store_dwordx4 v[32:35], v36, s[16:19], s36 offen
K1_NOD:
    s_waitcnt lgkmcnt(0)
    s_barrier
""")
    stamp(3, 16, 0)
    e(f"""
    ds_read_b128 v[20:23], v4 offset:{K1_STG}
    s_cmp_ge_u32 s21, 5
    s_cbranch_scc1 K1_C1
    ds_read_b128 v[24:27], v4 offset:{K1_STG + 10240}
    s_waitcnt lgkmcnt(0)
    buffer_store_dwordx4 v[24:27], v4, s[16:19], s39 offen
K1_C1:
    s_waitcnt lgkmcnt(0)
    buffer_store_dwordx4 v[20:23], v4, s[16:19], s38 offen
""")
    light1(16, 0)
    if OPT["stamps"]:
        stamp(4, 16, 0); e("    s_waitcnt vmcnt(0)"); stamp(5, 16, 0); stamp_out(16, 0)
    e(f"""
    s_endpgm
""")
    if not OPT["k1o"]:
        e("K1_GEMM:")
        gemm_issue()
    e("K1_DMAD:")
    srd(16, N * 256)
    e(f"""
    s_lshr_b32 s23, s21, 2
    s_and_b32 s24, s21, 3
    v_lshrrev_b32 v24, 2, v3                ; r'
    v_and_b32 v25, 3, v3                    ; c'
    v_and_b32 v26, 1, v2
    v_lshl_or_b32 v26, v26, 2, v24          ; h(k)
    v_lshl_add_u32 v27, v2, 3, v24          ; 8g + r'
    v_lshlrev_b32 v27, 8, v27
    v_lshl_or_b32 v27, v25, 3, v27
    s_lshl_b32 s27, s24, 1
    v_xor_b32 v26, s27, v26
    v_lshl_add_u32 v28, v26, 5, v27
    v_xor_b32 v29, 32, v28
    ; x fragments
    v_xor_b32 v30, v2, v3
    v_lshlrev_b32 v30, 4, v30
    v_lshl_or_b32 v30, v3, 8, v30
    s_lshl_b32 s27, s23, 12
    s_add_u32 s27, s27, {K1_XL}
    v_add_u32 v30, s27, v30
    v_xor_b32 v31, 64, v30
    v_xor_b32 v32, 0x80, v30
    v_xor_b32 v33, 0xc0, v30
    s_lshl_b32 s26, s23, 4
    s_add_u32 s25, s25, s26
    v_add_u32 v5, s25, v3
    v_lshlrev_b32 v5, 8, v5
    v_lshl_or_b32 v5, v2, 4, v5
    s_lshl_b32 s27, s24, 6
    v_add_u32 v5, s27, v5
    s_mov_b32 s28, {NL2E:#x}
    s_waitcnt vmcnt(0)
    s_barrier
""")
    stamp(3, 16, 0)
    for s in range(4):
        e(f"    ds_read_b128 {vr(8 + 4 * s, 4)}, v{30 + s}")
        for f in range(2):
            for u2 in range(2):
                e(f"    ds_read_b64_tr_b16 {vr(36 + 16 * f + 4 * s + 2 * u2, 2)}, v{28 + f} offset:{s * 8192 + u2 * 1024}")
    for s in range(4):
        for f in range(2):
            left = 20 - (5 * s + 3 + 2 * f)
            e(f"    s_waitcnt lgkmcnt({min(left, 15)})")
            c = "0" if s == 0 else vr(68 + 4 * f, 4)
            e(f"    v_mfma_f32_16x16x32_bf16 {vr(68 + 4 * f, 4)}, {vr(36 + 16 * f + 4 * s, 4)}, {vr(8 + 4 * s, 4)}, {c}")
    e("    s_nop 5")
    for f in range(2):
        for h in range(2):
            r = 68 + 4 * f + 2 * h
            e(f"    v_pk_mul_f32 {vr(r, 2)}, {vr(r, 2)}, s[28:29] op_sel_hi:[1,0]")
        for h in range(2):
            r = 68 + 4 * f + 2 * h
            e(f"    v_cvt_pk_bf16_f32 v{76 + 2 * f + h}, v{r}, v{r + 1}")
    e(f"    buffer_store_dwordx4 v[76:79], v5, s[16:19], 0 offen")
    light1(16, 0)
    if OPT["stamps"]:
        srd(16, WSEND); stamp(4, 16, 0); e("    s_waitcnt vmcnt(0)"); stamp(5, 16, 0); stamp_out(16, 0)
    e(f"""
    s_endpgm
K1_JOBS:
    s_sub_u32 s23, s20, 209
    s_mul_i32 s23, s23, 12
    s_add_u32 s23, s23, s21
    s_waitcnt lgkmcnt(0)
""")
    srd(16, WSEND)
    e(f"""
    s_cmp_ge_u32 s23, 96
    s_cbranch_scc1 K1_JOB2
    s_lshr_b32 s24, s23, 5
    s_bfe_u32 s25, s23, 0x30002             ; f
    s_and_b32 s26, s23, 3                   ; s
    s_cmp_eq_u32 s24, 0
    s_cselect_b32 s28, s12, s14
    s_cselect_b32 s29, s13, s15
    s_mov_b32 s30, {256 * 256}
    s_mov_b32 s31, 0x20000
    ; column
    s_lshl_b32 s33, s25, 4                  ; 16 f
    v_add_u32 v4, s33, v3
    v_lshlrev_b32 v4, 1, v4
    ; row
    v_lshlrev_b32 v5, 11, v2                ; 8 g rows
    v_lshrrev_b32 v7, 1, v2
    v_lshlrev_b32 v7, 12, v7
    v_and_b32 v6, 1, v2
    v_lshl_or_b32 v7, v6, 9, v7             ; 16 (g>>1) + 2 (g&1) rows
    s_cmp_eq_u32 s24, 2
    s_cselect_b64 vcc, -1, 0
    s_cselect_b32 s32, 10, 13
    s_movk_i32 s33, 512
    s_cmovk_i32 s33, 8192
    s_cselect_b32 s34, {NSC:#x}, 1.0
    v_cndmask_b32 v5, v5, v7, vcc
    v_add_u32 v4, v4, v5
    s_lshl_b32 s40, s26, s32
    s_cmp_eq_u32 s24, 1
    s_cselect_b32 s36, 0, 0x8000
    s_add_u32 s40, s40, s36
    s_add_u32 s41, s40, s33
    s_add_u32 s42, s41, s33
    s_add_u32 s43, s42, s33
""")
    for m in range(8):
        e(f"    buffer_load_ushort v{8 + m}, v4, s[28:31], s{40 + m // 2} offen offset:{(m & 1) * 256}")
    e(f"""
    s_lshl_b32 s37, s23, 10
    s_add_u32 s37, s37, {W2F}
    v_lshlrev_b32 v6, 4, v1
    s_mov_b32 s38, 0x07060302
    s_waitcnt vmcnt(0)
""")
    for m in range(8):
        e(f"    v_lshlrev_b32 v{8 + m}, 16, v{8 + m}\n    v_mul_f32 v{8 + m}, s34, v{8 + m}")
    for m in range(4):
        e(f"    v_perm_b32 v{16 + m}, v{9 + 2 * m}, v{8 + 2 * m}, s38")
    e(f"""
    buffer_store_dwordx4 v[16:19], v6, s[16:19], s37 offen
    s_endpgm
K1_JOB2:
    s_cmp_ge_u32 s23, 98
    s_cbranch_scc1 K1_JOB3
    s_sub_u32 s24, s23, 96                  ; c
    s_mov_b32 s14, {260 * 256}
    s_mov_b32 s15, 0x20000
    v_and_b32 v2, 31, v1
    v_lshrrev_b32 v3, 5, v1
    v_lshl_or_b32 v2, v2, 1, v3             ; p & 63
    v_and_b32 v4, 0x23, v2
    v_bfe_u32 v5, v2, 2, 1
    v_lshl_or_b32 v4, v5, 4, v4
    v_bfe_u32 v5, v2, 3, 2
    v_lshl_or_b32 v4, v5, 2, v4             ; feature & 63
    v_lshlrev_b32 v4, 1, v4
    s_lshl_b32 s25, s24, 7
    s_add_u32 s25, s25, {256 * 256}
""")
    for d in range(4):
        e(f"    buffer_load_ushort v{8 + d}, v4, s[12:15], s25 offen offset:{d * 256}")
    e(f"""
    s_lshl_b32 s37, s24, 10
    s_add_u32 s37, s37, {W3F}
    v_lshlrev_b32 v6, 4, v1
    s_mov_b32 s34, {NL2E:#x}
    s_waitcnt vmcnt(0)
""")
    for d in range(4):
        e(f"    v_lshlrev_b32 v{8 + d}, 16, v{8 + d}\n    v_mul_f32 v{8 + d}, s34, v{8 + d}")
    e("""
    v_cvt_pk_bf16_f32 v16, v8, v9
    v_cvt_pk_bf16_f32 v17, v10, v11
    v_lshlrev_b32 v12, 16, v16
    v_and_b32 v13, 0xffff0000, v16
    v_lshlrev_b32 v14, 16, v17
    v_and_b32 v15, 0xffff0000, v17
    v_sub_f32 v8, v8, v12
    v_sub_f32 v9, v9, v13
    v_sub_f32 v10, v10, v14
    v_sub_f32 v11, v11, v15
    v_cvt_pk_bf16_f32 v18, v8, v9
    v_cvt_pk_bf16_f32 v19, v10, v11
    buffer_store_dwordx4 v[16:19], v6, s[16:19], s37 offen
    s_endpgm
K1_JOB3:
    s_cmp_ge_u32 s20, 224
    s_cbranch_scc1 K1_SPARE
    s_cmp_lg_u32 s23, 98
    s_cbranch_scc1 K1_END
    v_mov_b32 v8, 0
    v_lshlrev_b32 v6, 2, v1
""")
    e(f"""
    s_mov_b32 s37, {PT + N * 256}
    buffer_store_dword v8, v6, s[16:19], s37 offen
K1_END:
    s_endpgm
K1_SPARE:
""")
    if OPT["cpf"]:
        e(f"""
    s_getpc_b64 s[24:25]
K1_PC:
    s_bfe_u32 s22, s20, 0x20003
    s_mul_i32 s22, s22, 12
    s_add_u32 s22, s22, s21
    s_mul_i32 s22, s22, {OPT["cpf"] * 64}
    v_lshl_add_u32 v2, v1, 6, s22
    v_min_u32 v2, K2_LAST - mpnn_edge_kernel, v2
    v_add_u32 v2, mpnn_edge_kernel - K1_PC, v2
    v_mov_b32 v3, s25
    v_add_co_u32 v2, vcc, s24, v2
    s_nop 1
    v_addc_co_u32 v3, vcc, 0, v3, vcc
    s_bfm_b64 exec, {OPT["cpf"]}, 0
    global_load_dword v4, v[2:3], off
""")
    e("    s_endpgm")

RS = 1040
RB, RO = 288, 272
CAP = 2048
MISC = 0
ZR, CNT, MORE, BAD, FL = 0, 768, 1024, 1028, 1088
SO = 2048
EA = SO + CAP * 4
W3L = EA + CAP * 8
QU = W3L + 2048
AG = QU + 41 * RS
XL = (AG + 2 * 16384 + 11 * 1024 + 255) // 256 * 256
AGB = XL + 12288
K2_LDS = AGB + 48 * RB
PADV = N * 8
S16MAX = (CAP // 4 - 8) * 16
NT = 16
NK = 6
vSO, vP, vD, vE, vAe, vBw, vQ, vNp, vAc, vI = 8, (16, 24), (32, 92), 48, 64, 68, 72, 126, (80, 82), 84
vaS, vaE, vAct, vaN = (86, 87), 88, 89, (90, 91)
vU, vM = 108, 76
vR, vN4, vTa, vStr, vRS, vW3a = 60, tuple(range(19, 25)), 56, 57, 124, 125
vC4, vQ16, vE16, vS16 = 120, 121, 122, 123
vCA, vCW, vCN, vFR = 120, 121, 122, 124
sM = [40 + 2 * k for k in range(NK)]
sFM, sEV = (28, 30), (32, 33)
sFirst, sMoreV, sMM, sGuard, sScale = 56, 57, 58, 68, 70
M9 = "0x01ff01ff"
KCOP = "s[26:27], s[26:27] op_sel_hi:[1,0,0] clamp"
PRIO_0, PRIO_AT = 2, {NT - 4: 1, NT - 1: 0}

def prio(n): e(f"    s_setprio {n}")

def flush_adds(y):
    t = vE + 8 * y
    e(f"""
    v_cvt_f64_f32 {vr(t, 2)}, v{vAc[y]}
    v_cvt_f64_f32 {vr(t + 2, 2)}, v{vAc[y] + 1}
    ds_add_f64 v{vaN[y]}, {vr(t, 2)} offset:{AG - QU}
    ds_add_f64 v{vaN[y]}, {vr(t + 2, 2)} offset:{AG - QU + 8}
""")

def exec_bit(y, t):
    e(f"    s_bfe_i32 exec_lo, s{sFM[y]}, {0x10000 | t:#x}\n    s_bfe_i32 exec_hi, s{sFM[y] + 1}, {0x10000 | t:#x}")

def event_block(t, y, v):
    e(f"K2_{v}EV{t}_{y}:")
    exec_bit(y, t)
    e(f"    s_cbranch_execz K2_{v}EQ{t}_{y}")
    flush_adds(y)
    e(f"""
    v_add_u32 v{vaN[y]}, {RS}, v{vaN[y]}
    v_mov_b64 {vr(vAc[y], 2)}, 0
K2_{v}EQ{t}_{y}:
""")
    if t + 2 < NT:
        exec_bit(y, t + 1)
        e(f"    ds_read_b64 {vr(vQ + 2 * y, 2)}, v{vaN[y]} offset:{RS}")
    e(f"    s_mov_b64 exec, -1\n    s_branch K2_{v}EB{t}_{y}")

def gather_lines(dst, adr):
    out = []
    for q in range(4):
        for y in range(2):
            a = adr + 4 * y + q
            pre = f"    v_min_u32 v{a}, {PADV}, v{a}\n    v_and_b32 v{a}, -8, v{a}\n" if OPT["safe"] else ""
            out.append(pre + f"    buffer_load_dword v{dst + 2 * q + y}, v{a}, s[8:11], 0 offen")
    return out
def gathers(dst, adr):
    for l in gather_lines(dst, adr): e(l)

def mfma4(D, P, q): return f"    v_mfma_f32_4x4x4_16b_bf16 {vr(D + 4 * q, 4)}, {vr(vI, 2)}, {vr(P + 2 * q, 2)}, {vr(vQ, 4)}"
def mfma32(D): return f"    v_mfma_f32_32x32x16_bf16 {vr(D, 16)}, {vr(vAe, 4)}, {vr(vBw, 4)}, {vr(D, 16)}"

def core_lines(D, guarded):
    Ee = vE
    def p(r): return vr(r, 2)
    ex = [f"    v_exp_f32 v{Ee + k}, v{D + k}" for k in range(16)]
    if guarded:
        sc = [f"    v_pk_fma_f32 {p(Ee + 2 * m)}, {p(Ee + 2 * m)}, {KCOP}" for m in range(8)]
        seq = [
            lambda o: f"v_pk_mul_f32 {p(D + o)}, {p(D + o)}, {p(Ee + o + 4)}",
            lambda o: f"v_pk_mul_f32 {p(D + o + 8)}, {p(D + o + 8)}, {p(Ee + o + 12)}",
            lambda o: f"v_pk_fma_f32 {p(D + o)}, {p(D + o + 4)}, {p(Ee + o)}, {p(D + o)}",
            lambda o: f"v_pk_fma_f32 {p(D + o + 8)}, {p(D + o + 12)}, {p(Ee + o + 8)}, {p(D + o + 8)}",
            lambda o: f"v_pk_mul_f32 {p(Ee + o)}, {p(Ee + o)}, {p(Ee + o + 4)}",
            lambda o: f"v_pk_mul_f32 {p(Ee + o + 8)}, {p(Ee + o + 8)}, {p(Ee + o + 12)}",
        ]
    else:
        sc = [f"    v_pk_add_f32 {p(Ee + o + j)}, {p(Ee + o + j)}, 1.0 op_sel_hi:[1,0]" for j in (4, 12) for o in (0, 2)]
        seq = [
            lambda o: f"v_pk_fma_f32 {p(D + o + 4)}, {p(D + o + 4)}, {p(Ee + o)}, {p(D + o + 4)}",
            lambda o: f"v_pk_fma_f32 {p(D + o + 12)}, {p(D + o + 12)}, {p(Ee + o + 8)}, {p(D + o + 12)}",
            lambda o: f"v_pk_fma_f32 {p(Ee + o)}, {p(Ee + o)}, {p(Ee + o + 4)}, {p(Ee + o + 4)}",
            lambda o: f"v_pk_fma_f32 {p(Ee + o + 8)}, {p(Ee + o + 8)}, {p(Ee + o + 12)}, {p(Ee + o + 12)}",
            lambda o: f"v_pk_fma_f32 {p(D + o)}, {p(D + o)}, {p(Ee + o + 4)}, {p(D + o + 4)}",
            lambda o: f"v_pk_fma_f32 {p(D + o + 8)}, {p(D + o + 8)}, {p(Ee + o + 12)}, {p(D + o + 12)}",
        ]
    seq += [
        lambda o: f"v_pk_mul_f32 {p(Ee + o + 4)}, {p(Ee + o)}, {p(Ee + o + 8)}",
        lambda o: f"v_pk_mul_f32 {p(D + o)}, {p(D + o)}, {p(Ee + o + 8)}",
        lambda o: f"v_rcp_f32 v{Ee + o + 4}, v{Ee + o + 4}",
        lambda o: f"v_rcp_f32 v{Ee + o + 5}, v{Ee + o + 5}",
        lambda o: f"v_pk_fma_f32 {p(D + o)}, {p(D + o + 8)}, {p(Ee + o)}, {p(D + o)}",
        lambda o: f"v_pk_fma_f32 {p(vAc[o // 2])}, {p(D + o)}, {p(Ee + o + 4)}, {p(vAc[o // 2])}",
    ]
    rest = ["    " + fn(o) for fn in seq for o in (0, 2)]
    if not guarded:
        rest.insert(16, f"    v_pk_fma_f32 {p(vM)}, {p(Ee + 4)}, {p(Ee + 6)}, {p(vM)}")
    return ex, sc, rest

def tile(t, v):
    a, r = t % 2, NT - t
    ex, sc, rest = core_lines(vD[a], v == 'G' or not OPT['unc'])
    Dn, Pn = vD[1 - a], vP[1 - a]
    e(f"K2_{v}T{t}:")
    if t in PRIO_AT: prio(PRIO_AT[t])
    if r >= 2:
        seq = ex[:2] + [f"    s_waitcnt vmcnt({8 if r >= 3 else 0}) lgkmcnt(0)"]
        for q in range(4): seq += [mfma4(Dn, Pn, q), ex[2 + q]]
        seq += ex[6:9] + [mfma32(Dn)] + ex[9:14]
        if r >= 4: seq += gather_lines(Pn, vSO)
        if r >= 5: seq += [f"    ds_read_b128 {vr(vSO + 4 * y, 4)}, v{vaS[y]} offset:{16 * (t + 4)}" for y in range(2)]
        if r >= 3: seq += [f"    ds_read2_b64 {vr(vAe, 4)}, v{vaE} offset0:{4 * (t + 2)} offset1:{4 * (t + 2)}"]
        seq += ex[14:]
    else:
        seq = list(ex)
    for l in seq + sc + rest: e(l)
    if not v: stamp(100 + t - 5, 4, 1)
    if r >= 2:
        for y in range(2):
            e(f"    s_bitcmp1_b32 s{sEV[y]}, {t}\n    s_cbranch_scc1 K2_{v}EV{t}_{y}\nK2_{v}EB{t}_{y}:")

def x_addr(xa):
    e(f"""
    v_xor_b32 v{xa}, v5, v6
    v_lshlrev_b32 v{xa}, 4, v{xa}
    v_lshl_or_b32 v{xa}, v6, 8, v{xa}
    v_add_u32 v{xa}, {XL}, v{xa}
    v_xor_b32 v{xa + 1}, 64, v{xa}
    v_xor_b32 v{xa + 2}, 0x80, v{xa}
    v_xor_b32 v{xa + 3}, 0xc0, v{xa}
""")
def x_reads(xa, xb):
    for s in range(4):
        for T in range(3):
            e(f"    ds_read_b128 {vr(xb(T, s), 4)}, v{xa + s} offset:{4096 * T}")
def node_mfma(acc, W, xb):
    for s in range(4):
        for T in range(3):
            e(f"    s_waitcnt lgkmcnt({11 - 3 * s - T})")
            c = "0" if s == 0 else vr(acc + 4 * T, 4)
            e(f"    v_mfma_f32_16x16x32_bf16 {vr(acc + 4 * T, 4)}, {vr(W + 4 * s, 4)}, {vr(xb(T, s), 4)}, {c}")
def per_record(lab, fn):
    for k in range(NK):
        e(f"    s_mov_b64 exec, {sr(sM[k], 2)}")
        if k >= 2: e(f"    s_cbranch_execz {lab}")
        fn(k)
    e(f"{lab}:")

def conv_addr(t):
    e(f"""
    v_lshrrev_b32 v{vCA}, 4, v0
    v_subrev_u32 v{vCA}, 24, v{vCA}
    v_cvt_f32_u32 v{t}, v{vNp}
    v_lshlrev_b32 v{t + 1}, 2, v{vCA}
    v_mul_f32 v{t}, 0xbe800000, v{t}
    v_mul_u32_u24 v{vCW}, {RB}, v{vCA}
    v_mul_u32_u24 v{vCA}, {RS}, v{vCA}
    ds_bpermute_b32 v{vCN}, v{t + 1}, v{t}
    v_lshl_add_u32 v{vCW}, v6, 4, v{vCW}
    v_lshl_add_u32 v{vCA}, v6, 4, v{vCA}
    v_add_u32 v{vCW}, {AGB}, v{vCW}
    v_add_u32 v{vCA}, {QU}, v{vCA}
""")

def kernel2():
    e(f"""
.text
.globl mpnn_edge_kernel
.p2align 8
.type mpnn_edge_kernel,@function
mpnn_edge_kernel:
    s_load_dwordx2 s[4:5], s[0:1], 64       ; ws
    s_load_dwordx2 s[12:13], s[0:1], 0      ; x
    s_load_dwordx2 s[16:17], s[0:1], 48     ; out
    s_cmp_ge_u32 s2, 256
    s_cbranch_scc1 K2_END
    v_lshrrev_b32 v2, 6, v0
    s_and_b32 s34, s2, 63
    v_readfirstlane_b32 s21, v2
    s_lshl_b32 s34, s34, 10
    s_lshr_b32 s3, s2, 6
    s_add_u32 s34, s34, s3
    s_lshl2_add_u32 s34, s34, {DESC}
    s_mov_b32 s6, {WSEND:#x}
    s_mov_b32 s7, 0x20000
    v_and_b32 v4, -4, v0
    v_lshlrev_b32 v4, 2, v4
""")
    stamp(0, 4, 1); light0()
    e(f"""
    v_lshrrev_b32 v8, 4, v0
    v_xor_b32 v9, v8, v0
    v_and_b32 v9, 15, v9
    s_waitcnt lgkmcnt(0)
    buffer_load_dword v2, v4, s[4:7], s34 offen
    s_and_b32 s20, s2, 7
    s_bfe_u32 s35, s2, 0x30003
    s_lshl3_add_u32 s20, s20, s35
    s_lshl2_add_u32 s20, s20, s3
    s_cmp_ge_u32 s21, 11
    s_cbranch_scc1 K2_NOX
    s_lshl_b32 s35, s20, 8
    v_lshl_add_u32 v8, v8, 16, s35
    s_lshl_b32 s36, s21, 10
    s_add_u32 s36, s36, {XL}
    s_mov_b32 m0, s36
""")
    srd(12, N * 256)
    e(f"""
    v_lshl_add_u32 v8, v9, 4, v8
    buffer_load_dwordx4 v8, s[12:15], 0 offen lds
K2_NOX:
    v_lshrrev_b32 v3, 2, v0
    v_mul_u32_u24 v3, {RSTR}, v3
    v_and_b32 v4, 3, v0
    s_mov_b32 s24, 0
    s_mov_b32 s25, {4 * NK}
    s_mov_b32 s{sFirst}, 1
    v_lshlrev_b32 v56, 4, v0
    v_mov_b64 v[8:9], 0
    v_mov_b64 v[10:11], 0
    s_cmp_ge_u32 s21, 2
    s_cbranch_scc1 K2_NOZ0
    ds_write_b128 v56, v[8:11] offset:{MISC}
K2_NOZ0:
""")
    def ag16(lab):
        e(f"""
    v_add_u32 v57, {AG}, v56
    ds_write_b128 v57, v[8:11]
    ds_write_b128 v57, v[8:11] offset:16384
    s_cmp_ge_u32 s21, 11
    s_cbranch_scc1 {lab}
    ds_write_b128 v57, v[8:11] offset:32768
""")
    if OPT["agz"] == 0:
        ag16("K2_NOZ3")
        e("    s_waitcnt vmcnt(1)\n    s_branch K2_ROUND\nK2_NOZ3:\n    s_waitcnt vmcnt(0)")
    else:
        if OPT["agz"] == 1:
            e(f"    s_cmp_ge_u32 s21, 8\n    s_cbranch_scc1 K2_NOZ3\n    v_add_u32 v57, {AG}, v56")
            for i in range(5): e(f"    ds_write_b128 v57, v[8:11] offset:{8192 * i}")
            e(f"    s_cmp_ge_u32 s21, 3\n    s_cbranch_scc1 K2_NOZ3\n    ds_write_b128 v57, v[8:11] offset:{8192 * 5}\nK2_NOZ3:")
        e("    s_cmp_lt_u32 s21, 11\n    s_cbranch_scc1 K2_WD1\n    s_waitcnt vmcnt(0)\nK2_WD1:\n    s_waitcnt vmcnt(1)")
    e(f"""
K2_ROUND:
""")
    prio(2)
    stamp(1, 4, 1)
    e(f"""
    v_lshrrev_b32 v16, 16, v2               ; count
    v_and_b32 v17, 0xffff, v2               ; start
    v_subrev_u32 v16, s24, v16
    v_add3_u32 v17, v17, s24, v4
    v_min_i32 v18, s25, v16
    v_mad_u32_u24 v17, v17, 12, v3
    v_sub_u32 v18, v18, v4
    s_mov_b32 s34, {REC}
""")
    for k in range(4): e(f"    v_cmp_lt_i32 {sr(sM[k], 2)}, {4 * k}, v18")
    def ld(k):
        e(f"    buffer_load_dwordx3 {vr(vR + 4 * k, 3)}, v17, s[4:7], s34 offen offset:{48 * k}")
        if 4 <= k + 1 < NK: e(f"    v_cmp_lt_i32 {sr(sM[k + 1], 2)}, {4 * (k + 1)}, v18")
    per_record("K2_RLD", ld)
    e("    s_mov_b64 exec, -1")
    stamp(2, 4, 1)
    prio(0)
    e(f"""
    v_and_b32 v1, 63, v0
    v_cmp_lt_i32 {sr(sMM, 2)}, s25, v16
    v_lshlrev_b32 v7, 4, v1                 ; lane*16
    s_mov_b32 s75, 0
""")
    if not OPT["bdp"]: e("    s_waitcnt lgkmcnt(3)\n    s_barrier")
    e(f"""
    ds_write_b128 v56, v[8:11] offset:{EA}
    s_cmp_ge_u32 s21, 8
    s_cbranch_scc1 K2_NOSO
    v_mov_b32 v12, {PADV}
    v_mov_b32 v13, v12
    v_mov_b32 v14, v12
    v_mov_b32 v15, v12
    ds_write_b128 v56, v[12:15] offset:{SO}
    {"s_mov_b32 s75, s%d" % sFirst if OPT["qo"] else "s_branch K2_NOW2"}
K2_NOSO:
    {"" if OPT["qo"] else "s_mov_b32 s75, s%d                ; 1: this wave computes q in this round" % sFirst}
""")
    def w2_loads():
        e(f"    s_lshl_b32 s74, s21, 12\n    s_add_u32 s74, s74, {W2F - (0 if OPT['qo'] else 8 * 4096)}")
        for s in range(4):
            e(f"    buffer_load_dwordx4 {vr(92 + 4 * s, 4)}, v7, s[4:7], s74 offen offset:{1024 * s}")
    if OPT["bdp"] != 2:
        e("    s_cmp_eq_u32 s75, 0\n    s_cbranch_scc1 K2_NOW2")
        w2_loads()
    e(f"""
K2_NOW2:
    s_cmp_eq_u32 s{sFirst}, 0
    s_cbranch_scc1 K2_SETD
""")
    if OPT["agz"] == 2:
        ag16("K2_NOZ3"); e("K2_NOZ3:")
    e(f"""
    v_lshrrev_b32 v5, 4, v1                 ; g
    v_and_b32 v6, 15, v1                    ; n
    v_mov_b32 v{vNp}, 0
    s_cmp_lt_u32 s20, 16
    s_cselect_b32 s22, 40, 39
    s_bfm_b64 s[78:79], s22, 0
    s_and_b32 s23, s21, 1
    s_lshr_b32 s76, s21, 1
    s_mov_b32 s26, {KC:#x}
    s_mov_b32 s{sGuard}, 0
    s_mov_b32 s{sScale}, {f2u(2.0 ** 31 * math.log(2.0)) if OPT['unc'] else f2u(1.0):#x}
    s_mov_b32 s72, {NL2E:#x}
    s_lshl_b32 s39, s23, 7
    s_add_u32 s8, s4, s39
    s_addc_u32 s9, s5, 0
    s_or_b32 s9, s9, 0x80000000
    s_mov_b32 s10, 0x10000
    s_mov_b32 s11, 0x00c00000
""")
    srd(16, N * 256)
    e(f"""
K2_SETD:
    v_mov_b32 v59, 4
    v_lshlrev_b32 v58, 2, v1
    v_mov_b32 v{vRS}, {RS}
    v_and_b32 v{vaN[1]}, 31, v1
    s_lshl_b32 s36, s23, 9
    s_add_u32 s37, s36, {QU}
    v_lshl_add_u32 v{vaN[0]}, v{vaN[1]}, 4, s37
    v_lshl_add_u32 v{vW3a}, s36, 1, v7
    s_movk_i32 s36, 0x3f80
    s_mov_b32 s37, 0
    v_and_b32 v16, 0x30, v7
    v_lshlrev_b64 {vr(vI, 2)}, v16, s[36:37]
    v_mov_b32 v{vS16}, 0
    v_mov_b64 {vr(vaE, 2)}, 0
    v_mov_b32 v{vStr}, 0
    s_mov_b64 exec, s[78:79]
    v_mov_b32 v{vS16}, 16
    s_mov_b32 exec_lo, 0x55555555
    s_mov_b32 exec_hi, 0xaaaaaaaa
    v_and_b32 v{vaE}, 0x18, v1
    v_mov_b32 v{vAct}, 1
    v_bfe_u32 v{vStr}, v1, 1, 2
""")
    if not OPT["bdp"]: e(f"    s_mov_b64 exec, {sr(sMM, 2)}\n    s_cbranch_execnz K2_MORE\nK2_MOREB:")
    e(f"""
    s_cmp_eq_u32 s75, 0
    s_cbranch_scc1 K2_W0
    s_mov_b64 exec, -1
""")
    x_addr(108)
    e(f"""
    s_bfe_u32 s36, s21, 0x20001
    s_lshl3_add_u32 s36, s36, s23
    s_lshl_b32 s36, s36, 5
    s_add_u32 s36, s36, {QU}
    v_mul_u32_u24 v{vTa}, {RS}, v6
    v_lshl_add_u32 v{vTa}, v5, 6, v{vTa}
    v_add_u32 v{vTa}, s36, v{vTa}
    s_cmp_eq_u32 s75, 0
""")
    if OPT["bdp"]:
        e("K2_W0:")
        prio(2)
        e(f"""
    s_waitcnt lgkmcnt({(5, 8, 5)[OPT['agz']]})
    s_barrier
    s_mov_b64 exec, {sr(sMM, 2)}
    s_cbranch_execnz K2_MORE
K2_MOREB:
    s_cbranch_scc1 K2_W1
""")
        if OPT["bdp"] == 2:
            e("    s_mov_b64 exec, -1")
            w2_loads()
        e(f"""
    s_waitcnt vmcnt(4)
    s_branch K2_RECS
K2_W1:
    s_waitcnt vmcnt(0)
K2_RECS:
""")
    else:
        prio(2)
        e("    s_waitcnt vmcnt(4)\n    s_branch K2_RECS\nK2_W0:")
        prio(2)
        e("    s_waitcnt vmcnt(0)\nK2_RECS:")
    stamp(3, 4, 1)
    per_record("K2_HISTD", lambda k: e(f"""
    v_lshrrev_b32 v{vN4[k]}, 24, v{vR + 2 + 4 * k}
    ds_add_rtn_u32 v{vR + 3 + 4 * k}, v{vN4[k]}, v59 offset:{CNT}
    v_and_b32 v{vR + 2 + 4 * k}, 0x3ffffff, v{vR + 2 + 4 * k}
"""))
    e(f"""
    s_mov_b64 exec, -1
    s_cmp_lg_u32 s76, 0
    s_cbranch_scc1 K2_NOW3
    s_lshl_b32 s34, s23, 10
    s_add_u32 s35, s34, {W3L}
    s_add_u32 s34, s34, {W3F}
    s_mov_b32 m0, s35
    s_nop 0
    buffer_load_dwordx4 v7, s[4:7], s34 offen lds
K2_NOW3:
    s_waitcnt lgkmcnt(0)
    s_barrier
""")
    stamp(4, 4, 1)
    e(f"""
    ds_read_b32 v{vC4}, v58 offset:{CNT}
    s_waitcnt lgkmcnt(0)
    v_add_u32 v{vQ16}, 12, v{vC4}
    v_and_b32 v{vQ16}, -16, v{vQ16}
    v_max_u32 v{vQ16}, v{vS16}, v{vQ16}     ; 16*quads
    s_nop 1
    v_add_u32_dpp v{vE16}, v{vQ16}, v{vQ16} row_shr:1 row_mask:0xf bank_mask:0xf bound_ctrl:1
""")
    for c in ("row_shr:2 row_mask:0xf", "row_shr:4 row_mask:0xf", "row_shr:8 row_mask:0xf", "row_bcast:15 row_mask:0xa", "row_bcast:31 row_mask:0xc"):
        e(f"    s_nop 1\n    v_add_u32_dpp v{vE16}, v{vE16}, v{vE16} {c} bank_mask:0xf")
    e(f"""
    v_sub_u32 v{vS16}, v{vE16}, v{vQ16}
    v_readlane_b32 s34, v{vE16}, 63
""")
    for k in range(NK):
        if k >= 3: e(f"    s_cmp_eq_u64 {sr(sM[k], 2)}, 0\n    s_cbranch_scc1 K2_BPD")
        e(f"    ds_bpermute_b32 v{vN4[k]}, v{vN4[k]}, v{vS16}")
    e(f"""
K2_BPD:
    s_cmp_gt_u32 s34, {S16MAX}
    s_cbranch_scc1 K2_REDO
    s_add_u32 s34, s34, 48
    s_lshr_b32 s35, s34, 9
    s_bfe_u32 s34, s34, 0x30006
    s_mul_i32 s37, s76, s35
    s_waitcnt lgkmcnt(0)
""")
    per_record("K2_GEO", lambda k: e(f"""
    v_add_u32 v{vN4[k]}, v{vN4[k]}, v{vR + 3 + 4 * k}
    ds_write_b32 v{vN4[k]}, v{vR + 2 + 4 * k} offset:{SO}
    v_add_u32 v{vR + 3 + 4 * k}, v{vN4[k]}, v{vN4[k]}
"""))
    e(f"""
    s_cmp_lg_u32 s21, {8 * OPT['qo']}
    s_cbranch_scc1 K2_NOFL
    s_mov_b64 exec, s[78:79]
    v_lshrrev_b32 v16, 4, v{vE16}
    ds_write_b8 v16, v59 offset:{FL - 1}
K2_NOFL:
    s_min_u32 s38, s76, s34
    s_add_u32 s37, s37, s38
    s_lshl_b32 s60, s37, 6                  ; stream (0,X)
    s_cmp_lt_u32 s76, s34
    s_addc_u32 s35, s35, 0
    s_mov_b64 exec, -1
    v_and_b32 v{vaS[0]}, 32, v1
    v_mul_u32_u24 v{vaS[0]}, s35, v{vaS[0]}
    s_lshl_b32 s77, s35, 4
    v_add_u32 v{vaS[0]}, s60, v{vaS[0]}
    v_add_u32 v{vaS[1]}, s77, v{vaS[0]}
    s_cmp_lg_u32 s75, 0
    s_waitcnt vmcnt(0) lgkmcnt(0)
    s_barrier
""")
    stamp(5, 4, 1)
    def ea_writes(lab):
        per_record(lab, lambda k: e(f"    ds_write_b64 v{vR + 3 + 4 * k}, {vr(vR + 4 * k, 2)} offset:{EA}"))
    def first_gathers(lab):
        e(f"""
    ds_read_b128 {vr(vSO, 4)}, v{vaS[0]} offset:{SO}
    ds_read_b128 {vr(vSO + 4, 4)}, v{vaS[1]} offset:{SO}
    ds_read_b128 {vr(vE, 4)}, v{vaS[0]} offset:{SO + 16}
    ds_read_b128 {vr(vE + 4, 4)}, v{vaS[1]} offset:{SO + 16}
    s_bitcmp1_b32 s35, 0
    s_cbranch_scc1 {lab}1
""")
        for a in range(2):
            if a: e(f"{lab}1:")
            e("    s_waitcnt lgkmcnt(2)")
            gathers(vP[a], vSO)
            e("    s_waitcnt lgkmcnt(0)")
            gathers(vP[1 - a], vE)
            if not a: e(f"    s_branch {lab}D")
        e(f"{lab}D:")
    def addresses():
        e(f"""
    v_lshrrev_b32 v8, 4, v{vaS[0]}
    v_add_u32 v8, v8, v{vaN[1]}
    v_add_u32 v9, s35, v8
    ds_read_u8 v8, v8 offset:{FL}
    ds_read_u8 v9, v9 offset:{FL}
    ds_read_b128 {vr(vBw, 4)}, v{vW3a} offset:{W3L}
    s_add_u32 s61, s60, s77
    s_add_u32 s62, s61, s77
    s_add_u32 s63, s62, s77
    s_mov_b64 exec, s[78:79]
""")
        for k in range(4):
            e(f"    v_cmp_ge_u32 vcc, s{60 + k}, v{vE16}\n    s_bcnt1_i32_b64 s{64 + k}, vcc")
        e(f"""
    v_sub_u32 v{vQ16}, v{vQ16}, v{vC4}
    v_add_u32 v{vNp}, v{vNp}, v{vQ16}
    s_mov_b32 exec_hi, 0
    v_mad_u32_u24 v{vaN[1]}, s65, v{vRS}, v{vaN[0]}
    v_mad_u32_u24 v{vaN[0]}, s64, v{vRS}, v{vaN[0]}
    s_not_b64 exec, exec
    v_mad_u32_u24 v{vaN[1]}, s67, v{vRS}, v{vaN[0]}
    v_mad_u32_u24 v{vaN[0]}, s66, v{vRS}, v{vaN[0]}
    s_mov_b64 exec, -1
    s_lshl_b32 s36, s35, 5
    s_lshl1_add_u32 s37, s60, {EA}
    v_mad_u32_u24 v{vaE}, v{vStr}, s36, v{vaE}
    v_mad_u32_u24 v{vaE}, v{vAct}, s37, v{vaE}
    v_mov_b64 {vr(vAc[0], 2)}, 0
    v_mov_b64 {vr(vAc[1], 2)}, 0
    v_mov_b64 {vr(vM, 2)}, 0
    s_sub_u32 s34, {NT}, s35
    s_add_u32 s38, s77, {SO - 16 * NT}
    s_sub_u32 s39, s36, {32 * NT}
    s_waitcnt lgkmcnt(0)
    v_cmp_ne_u32 {sr(sFM[0], 2)}, 0, v8
    v_cmp_ne_u32 {sr(sFM[1], 2)}, 0, v9
""")
    def tile_write(src, o):
        for T in range(3):
            if T == 2: e(f"    s_mov_b32 exec_lo, {M9}\n    s_mov_b32 exec_hi, {M9}")
            for h in range(2):
                src(T, h)
            for h in range(2):
                e(f"    ds_write_b64 v{vTa}, {vr(o[0] + 4 * T + 2 * h, 2)} offset:{16 * RS * T + 16 * h + o[1]}")
        e("    s_mov_b64 exec, -1")
    e("    s_cbranch_scc0 K2_FG")
    prio(3)
    xbq = lambda T, s: 8 + 16 * T + 4 * s
    x_reads(108, xbq)
    node_mfma(vU, 92, xbq)
    ea_writes("K2_EAQ")
    e("    s_mov_b64 exec, -1\n    s_nop 0")
    tile_write(lambda T, h: e(f"    v_pk_mul_f32 {vr(vU + 4 * T + 2 * h, 2)}, {vr(vU + 4 * T + 2 * h, 2)}, s[72:73] op_sel_hi:[1,0]"), (vU, 0))
    e("    s_waitcnt lgkmcnt(0)\n    s_barrier")
    def silu_q():
        for r in range(12):
            e(f"    v_exp_f32 v{92 + r}, v{vU + r}")
        for r in range(0, 12, 2):
            e(f"    v_pk_fma_f32 {vr(92 + r, 2)}, {vr(92 + r, 2)}, {KCOP}")
        for r in range(12):
            e(f"    v_rcp_f32 v{92 + r}, v{92 + r}")
        tile_write(lambda T, h: e(f"    v_pk_mul_f32 {vr(92 + 4 * T + 2 * h, 2)}, {vr(92 + 4 * T + 2 * h, 2)}, {vr(vU + 4 * T + 2 * h, 2)}"), (92, 8))
    if OPT["gpos"] == 0: silu_q()
    prio(0)
    first_gathers("K2_GQ")
    prio(OPT["gq2"])
    stamp(11, 4, 1)
    if OPT["gpos"] == 1: silu_q()
    addresses()
    if OPT["gpos"] == 2: silu_q()
    e("    s_branch K2_NOB\nK2_FG:")
    first_gathers("K2_GR")
    stamp(11, 4, 1)
    ea_writes("K2_EAR")
    e("    s_mov_b64 exec, -1")
    addresses()
    e(f"""
    s_barrier
K2_NOB:
    ds_read_b64 {vr(vQ, 2)}, v{vaN[0]}
    ds_read_b64 {vr(vQ + 2, 2)}, v{vaN[1]}
    ds_read2_b64 {vr(vAe, 4)}, v{vaE} offset0:0 offset1:0
    ds_read_b128 {vr(vSO, 4)}, v{vaS[0]} offset:{SO + 32}
    ds_read_b128 {vr(vSO + 4, 4)}, v{vaS[1]} offset:{SO + 32}
    s_mov_b32 s{sFirst}, 0
""")
    for y in range(2):
        e(f"""
    s_lshl_b64 {sr(sFM[y], 2)}, {sr(sFM[y], 2)}, s34
    s_or_b32 s36, s{sFM[y]}, s{sFM[y] + 1}
    s_lshr_b32 s37, s36, 1
    s_or_b32 s{sEV[y]}, s36, s37
""")
    if OPT["cae"]:
        e("    s_cmp_lt_u32 s21, 8\n    s_cbranch_scc1 K2_NOCE")
        conv_addr(76)
        e("K2_NOCE:")
    stamp(12, 4, 1)
    e(f"""
    s_or_b32 s34, s34, 0x10000
    s_bitcmp1_b32 s35, 0
    s_waitcnt vmcnt(8) lgkmcnt(0)
""")
    stamp(6, 4, 1)
    e("    s_cbranch_scc1 K2_PA1")
    for a in range(2):
        if a: e("K2_PA1:")
        for q in range(4): e(mfma4(vD[a], vP[a], q))
        prio(1)
        e(f"    s_cmp_lt_u32 s35, 3\n    s_cbranch_scc1 K2_NGP{a}")
        gathers(vP[a], vSO)
        e(f"K2_NGP{a}:\n    s_nop 0\n{mfma32(vD[a])}")
        if not a: e("    s_branch K2_PAD")
    e(f"""
K2_PAD:
    ds_read_b128 {vr(vSO, 4)}, v{vaS[0]} offset:{SO + 48}
    ds_read_b128 {vr(vSO + 4, 4)}, v{vaS[1]} offset:{SO + 48}
    ds_read2_b64 {vr(vAe, 4)}, v{vaE} offset0:4 offset1:4
""")
    for y in range(2):
        e(f"""
    s_bfe_i32 exec_lo, s{sFM[y]}, s34
    s_bfe_i32 exec_hi, s{sFM[y] + 1}, s34
    ds_read_b64 {vr(vQ + 2 * y, 2)}, v{vaN[y]} offset:{RS}
""")
    e(f"""
    s_mov_b64 exec, -1
    v_mad_i32_i24 v{vaE}, v{vAct}, s39, v{vaE}
    v_add_u32 v{vaS[0]}, s38, v{vaS[0]}
    v_add_u32 v{vaS[1]}, s38, v{vaS[1]}
""")
    prio(PRIO_0)
    def edge_loop(v):
        for Lv in (10, 11, 9, 12, 8, 13, 7, 14, 6, 15, 5, 4, 3, 2, 1):
            e(f"    s_cmp_eq_u32 s35, {Lv}\n    s_cbranch_scc1 K2_{v}T{NT - Lv}")
        e(f"K2_{v}LOOP:")
        for t in range(NT):
            tile(t, v)
    if OPT["unc"]: e(f"    s_cmp_lg_u32 s{sGuard}, 0\n    s_cbranch_scc1 K2_GUARDED")
    edge_loop("")
    xbu = lambda T, s: 32 + 16 * T + 4 * s
    e(f"""
K2_LDONE:
    s_cmp_ge_u32 s21, 8
    s_cbranch_scc1 K2_LD2
    s_lshl_b32 s36, s21, 12
    s_add_u32 s36, s36, {WUT}
    s_add_u32 s37, s36, {WUB - WUT}
""")
    for s in range(4):
        e(f"    buffer_load_dwordx4 {vr(16 + 4 * s, 4)}, v7, s[4:7], s36 offen offset:{1024 * s}")
    for s in range(4):
        e(f"    buffer_load_dwordx4 {vr(92 + 4 * s, 4)}, v7, s[4:7], s37 offen offset:{1024 * s}")
    e("K2_LD2:")
    for y in range(2):
        flush_adds(y)
    e(f"""
    v_mov_b32 v89, {MORE}
    v_add_f32 v{vM}, v{vM}, v{vM + 1}
    v_cmp_nge_f32 vcc, {f2u(2.0 ** 64):#x}, v{vM}
    ds_read_b32 v89, v89
    s_cbranch_vccnz K2_BIG
K2_BIGB:
""")
    stamp(7, 4, 1)
    e(f"""
    s_cmp_ge_u32 s21, 8
    s_cbranch_scc1 K2_NOU
""")
    x_addr(84); x_reads(84, xbu)
    e(f"""
    v_mul_u32_u24 v{vFR}, {RB}, v6
    v_lshl_add_u32 v{vFR}, v5, 4, v{vFR}
    v_add_u32 v{vFR}, {AGB}, v{vFR}
    v_mul_u32_u24 v90, {RO}, v6
    v_lshl_add_u32 v90, v5, 3, v90
    s_lshl_b32 s36, s21, 5
    s_add_u32 s36, s36, {EA}
    v_add_u32 v90, s36, v90
    v_lshrrev_b32 v88, 4, v0
    v_mul_u32_u24 v91, {RO}, v88
    v_lshl_add_u32 v91, v6, 4, v91
    v_lshlrev_b32 v88, 16, v88
    v_lshl_or_b32 v88, v6, 4, v88
    s_lshl_b32 s36, s20, 8
    v_add_u32 v88, s36, v88
    v_add_u32 v125, 0x200000, v88
    s_waitcnt vmcnt(4)
""")
    node_mfma(vU, 16, xbu)
    e(f"""
    s_cmp_lt_u32 s21, 6
    s_cbranch_scc1 K2_NOCA
""")
    if not OPT['cae']: e('K2_NOU:')
    conv_addr(84)
    if OPT['cae']: e('K2_NOU:')
    e(f"""
K2_NOCA:
    s_waitcnt lgkmcnt(0)
    v_readfirstlane_b32 s{sMoreV}, v89
    s_barrier
""")
    stamp(8, 4, 1)
    e(f"""
    s_cmp_lg_u32 s{sMoreV}, 0
    s_cbranch_scc1 K2_NEXT
    v_mov_b32 v123, {BAD}
    ds_read_b32 v123, v123
    s_cmp_lt_u32 s21, 6
    s_cbranch_scc1 K2_NOCV
""")
    for k in range(4):
        e(f"    ds_read_b128 {vr(16 + 4 * k, 4)}, v{vCA} offset:{AG - QU + 256 * k}\n    ds_read_b64 {vr(8 + 2 * k, 2)}, v{vCA} offset:{256 * k + 8}")
    for k in range(4):
        e(f"    s_waitcnt lgkmcnt({6 - 2 * k})")
        e(f"    v_cvt_f32_f64 v{32 + 2 * k}, {vr(16 + 4 * k, 2)}\n    v_cvt_f32_f64 v{33 + 2 * k}, {vr(18 + 4 * k, 2)}")
        e(f"    v_pk_mul_f32 {vr(8 + 2 * k, 2)}, {vr(8 + 2 * k, 2)}, {vr(vCN, 2)} op_sel_hi:[1,0]")
        e(f"    v_pk_fma_f32 {vr(32 + 2 * k, 2)}, {vr(32 + 2 * k, 2)}, {sr(sScale, 2)}, {vr(8 + 2 * k, 2)} op_sel_hi:[1,0,1]")
        e(f"    v_cvt_pk_bf16_f32 v{40 + k}, v{32 + 2 * k}, v{33 + 2 * k}")
    e(f"""
    ds_write_b128 v{vCW}, v[40:43]
K2_NOCV:
    s_waitcnt lgkmcnt(0)
    v_readfirstlane_b32 s36, v123
    s_barrier
""")
    stamp(13, 4, 1)
    e("    s_cmp_lg_u32 s36, 0\n    s_cbranch_scc1 K2_RESTART\n    s_cmp_ge_u32 s21, 8\n    s_cbranch_scc1 K2_FIN")
    xbf = lambda T, s: 16 + 16 * T + 4 * s
    tmp, outr = 76, 8
    def M(T, s, wait=True):
        if wait: e(f"    s_waitcnt lgkmcnt({11 - 4 * T - s})")
        e(f"    v_mfma_f32_16x16x32_bf16 {vr(vU + 4 * T, 4)}, {vr(92 + 4 * s, 4)}, {vr(xbf(T, s), 4)}, {vr(vU + 4 * T, 4)}")
    def sc_(T):
        for m in (2 * T, 2 * T + 1): e(f"    v_pk_mul_f32 {vr(tmp + 2 * m, 2)}, {vr(vU + 2 * m, 2)}, s[72:73] op_sel_hi:[1,0]")
    def ex_(T, k): e(f"    v_exp_f32 v{tmp + 4 * T + k}, v{tmp + 4 * T + k}")
    def ad_(T):
        for m in (2 * T, 2 * T + 1): e(f"    v_pk_add_f32 {vr(tmp + 2 * m, 2)}, {vr(tmp + 2 * m, 2)}, 1.0 op_sel_hi:[1,0]")
    def rc_(T):
        for k in range(4): e(f"    v_rcp_f32 v{tmp + 4 * T + k}, v{tmp + 4 * T + k}")
    def out_(T):
        for m in (2 * T, 2 * T + 1): e(f"    v_pk_mul_f32 {vr(tmp + 2 * m, 2)}, {vr(tmp + 2 * m, 2)}, {vr(vU + 2 * m, 2)}")
        for m in (2 * T, 2 * T + 1): e(f"    v_cvt_pk_bf16_f32 v{outr + m}, v{tmp + 2 * m}, v{tmp + 2 * m + 1}")
        e(f"    ds_write_b64 v90, {vr(outr + 2 * T, 2)} offset:{16 * RO * T}")
    for T in range(3):
        for s in range(4):
            e(f"    ds_read_b128 {vr(xbf(T, s), 4)}, v{vFR} offset:{16 * RB * T + 64 * s}")
    e("    s_waitcnt vmcnt(0)")
    for s in range(4): M(0, s)
    for s in range(4): M(1, s)
    sc_(0)
    e("    s_waitcnt lgkmcnt(0)")
    for s in range(4): M(2, s, False); ex_(0, s)
    e("    s_nop 0")
    sc_(1)
    for k in range(4): ex_(1, k)
    ad_(0); rc_(0); sc_(2)
    for k in range(4): ex_(2, k)
    out_(0); ad_(1); rc_(1); ad_(2); out_(1); rc_(2); e("    s_nop 0"); out_(2)
    e(f"""
    s_cmp_ge_u32 s21, 2
    s_waitcnt lgkmcnt(0)
    s_barrier
    ds_read_b128 v[16:19], v91 offset:{EA}
    s_cbranch_scc1 K2_O1
    ds_read_b128 v[20:23], v91 offset:{EA + 32 * RO}
    s_waitcnt lgkmcnt(0)
    buffer_store_dwordx4 v[20:23], v125, s[16:19], 0 offen
K2_O1:
    s_waitcnt lgkmcnt(0)
    buffer_store_dwordx4 v[16:19], v88, s[16:19], 0 offen
K2_FIN:
""")
    light1(4, 1)
    if OPT["stamps"]:
        stamp(9, 4, 1); e("    s_waitcnt vmcnt(0)"); stamp(10, 4, 1); stamp_out(4, 1)
    e("K2_END:\n    s_endpgm")
    for t in range(NT - 1):
        for y in range(2):
            event_block(t, y, '')
    e(f"""
K2_TAILBLOCKS:
K2_MORE:
    v_mov_b32 v16, {MORE}
    ds_write_b32 v16, v59
    s_branch K2_MOREB
K2_BIG:
    v_mov_b32 v{vM}, {BAD}
    ds_write_b32 v{vM}, v{vM}
    s_branch K2_BIGB
K2_NEXT:
    v_mov_b32 v123, {BAD}
    ds_read_b32 v123, v123
    s_add_u32 s24, s24, s25
    s_waitcnt vmcnt(0) lgkmcnt(0)
    v_readfirstlane_b32 s36, v123
    s_barrier
    s_cmp_eq_u32 s36, 0
    s_cbranch_scc1 K2_AGAIN
K2_RESTART:
    s_mov_b32 s{sGuard}, 1
    s_mov_b32 s{sScale}, 1.0
    s_mov_b32 s24, 0
    v_mov_b32 v{vNp}, 0
    v_lshlrev_b32 v56, 4, v0
    v_mov_b64 v[8:9], 0
    v_mov_b64 v[10:11], 0
    v_add_u32 v57, {AG}, v56
    ds_write_b128 v57, v[8:11]
    ds_write_b128 v57, v[8:11] offset:16384
    s_cmp_ge_u32 s21, 11
    s_cbranch_scc1 K2_RS1
    ds_write_b128 v57, v[8:11] offset:32768
K2_RS1:
    s_waitcnt vmcnt(0) lgkmcnt(0)
    s_branch K2_AGAIN
K2_REDO:
    s_mov_b32 s25, 4
    s_waitcnt vmcnt(0) lgkmcnt(0)
    s_barrier
K2_AGAIN:
    v_lshlrev_b32 v56, 4, v0
    v_mov_b64 v[8:9], 0
    v_mov_b64 v[10:11], 0
    s_cmp_ge_u32 s21, 2
    s_cbranch_scc1 K2_ROUND
    ds_write_b128 v56, v[8:11] offset:{MISC}
    s_waitcnt lgkmcnt(0)
K2_LAST:
    s_branch K2_ROUND
""")
    if OPT["unc"]:
        e("K2_GUARDED:")
        edge_loop("G")
        e("    s_branch K2_LDONE")
        for t in range(NT - 1):
            for y in range(2):
                event_block(t, y, "G")

def desc(name, vg, sg):
    e(f"""
.p2align 6
.amdhsa_kernel {name}
  .amdhsa_next_free_vgpr {vg}
  .amdhsa_next_free_sgpr {sg}
  .amdhsa_accum_offset {vg}
  .amdhsa_group_segment_fixed_size 0
  .amdhsa_kernarg_size 72
  .amdhsa_user_sgpr_count 2
  .amdhsa_user_sgpr_kernarg_segment_ptr 1
  .amdhsa_system_sgpr_workgroup_id_x 1
.end_amdhsa_kernel
""")

e(f"""
; @launch kernel=mpnn_bin_kernel grid=(512,1,1) block=(768,1,1) lds={K1_LDS}
; @launch kernel=mpnn_edge_kernel grid=(256,1,1) block=(1024,1,1) lds={K2_LDS}
.amdgcn_target "amdgcn-amd-amdhsa--gfx950"
""")
kernel1()
kernel2()
e('.section .rodata,"a"')
desc("mpnn_bin_kernel", 80, 96)
desc("mpnn_edge_kernel", 128, 102 if OPT["stamps"] else 96)
FL_ = {0: "", 1: " sc1", 2: " nt", 3: " sc0 sc1", 4: " sc1 nt", 5: " sc0"}
k2at = next(i for i, l in enumerate(L) if l.startswith("mpnn_edge_kernel:"))
for i, l in enumerate(L):
    c = l.split(";")
    fl = None
    if l.strip().startswith("buffer_store") and " off," not in l:
        fl = FL_[(OPT["stp"] if "v[76:79]" in l else OPT["st1"]) if i < k2at else OPT["st2"]]
    elif l.strip().startswith("buffer_load"):
        if i < k2at:
            if any(x in l for x in ("s[24:27]", "s[8:11], s22", "s[32:35]")): fl = " nt" * OPT["nte"]
            elif "s[4:7]" in l: fl = " nt" * OPT["ntx"]
            elif "s[12:15]" in l and "lds" in l: fl = " nt" * OPT["ntw"]
        else:
            if "s[12:15]" in l: fl = " nt" * OPT["ntx2"]
            elif "dwordx3" in l: fl = " nt" * OPT["ntr"]
    if fl:
        body = c[0].rstrip()
        body = body[:-4] + fl + " lds" if body.endswith(" lds") else body + fl
        L[i] = body + ("   ;" + c[1] if len(c) > 1 else "")
open(sys.argv[1], "w").write("\n".join(L) + "\n")
```

```python
import sys, struct, math

def f2u(x): return struct.unpack("<I", struct.pack("<f", x))[0]

OPT = dict(nrs=1, unc=2, pp=0, agz=0, qo=0, bdp=2, cae=0, cpf1=0, f16=0, uw3=0, hold=0, hold2=0, otl=0, stp=0, lay=0, k1p=0, k1o=1, cpf2=0, agl=0, t2m=1, olds=1, pf2=0, rab=0, gq=0, gq2=3, gp=1, stg1=0, stg3=0, qpre=0, eal=1, ash=0, dst1=1, fin=1, wpf=0, cpf=6, ps=2, bdl=1, rb=288, st1=0, st2=0, nte=1, ntx=0, ntw=0, ntx2=0, ntr=0, light=0, g1late=0, pf=0, gpos=0, nom4=0, nom32=0, mpos=0, nochk=0, prio1=0, dbg=0, safe=0, stamps=0, prio=1, nogather=0, nocore=0, nolds=0, nomfma=0, noflush=0)
for a in sys.argv[2:]:
    k, v = a.split("="); OPT[k] = int(v)

N, E = 10000, 320000
NB = 256
EPW = 1250
PT    = 0
DESC  = 0x280000
REC   = 0x2C0000
RSTR  = 15488
W2F   = 0x690000
WUT   = W2F + 0x8000
WUB   = WUT + 0x8000
W3F   = WUB + 0x8000
STAMP = W3F + 0x800
WSEND = STAMP + (0x100000 if OPT["stamps"] or OPT["light"] else 0)
NL2E = f2u(-1.4426950408889634)
KC   = f2u(1.0 / (2.0 ** 31 * math.log(2.0)))
NSC  = f2u(-2.0 ** -31)

L = []
def e(s=""):
    for ln in s.strip("\n").split("\n"):
        L.append(ln)
def vr(a, n): return f"v[{a}:{a + n - 1}]" if n > 1 else f"v{a}"
def sr(a, n): return f"s[{a}:{a + n - 1}]" if n > 1 else f"s{a}"

def srd(s, nrec, w3=0x20000):
    e(f"    s_mov_b32 s{s + 2}, {nrec:#x}\n    s_mov_b32 s{s + 3}, {w3:#x}")

def scan64(v):
    for c in ("row_shr:1 row_mask:0xf", "row_shr:2 row_mask:0xf", "row_shr:4 row_mask:0xf", "row_shr:8 row_mask:0xf",
              "row_bcast:15 row_mask:0xa", "row_bcast:31 row_mask:0xc"):
        e(f"    s_nop 1\n    v_add_u32_dpp v{v}, v{v}, v{v} {c} bank_mask:0xf")

NST = 16
def light0():
    if OPT["light"]: e("    s_memrealtime s[80:81]")
def light1(srd_s, kern):
    if not OPT["light"]: return
    e(f"""
    s_waitcnt vmcnt(0)
    s_memrealtime s[82:83]
    s_mov_b32 s{srd_s + 2}, {WSEND:#x}
    s_lshl_b32 s90, s2, 4
    s_add_u32 s90, s90, s21
    s_lshl_b32 s90, s90, 3
    s_add_u32 s90, s90, {STAMP + kern * 0x80000}
    s_mov_b64 exec, 1
    s_waitcnt lgkmcnt(0)
    v_mov_b32 v2, s80
    v_mov_b32 v3, s82
    buffer_store_dwordx2 v[2:3], off, s[{srd_s}:{srd_s + 3}], s90
""")
def dbg(slot):
    if not OPT["dbg"]: return
    e(f"    s_memrealtime s[{80 + 2 * slot}:{81 + 2 * slot}]")
def dbg_out(kern, wv, base, n, lab):
    if not OPT["dbg"]: return
    e(f"""
    s_waitcnt vmcnt(0)
    s_memrealtime s[{80 + 2 * (n - 1)}:{81 + 2 * (n - 1)}]
    s_cmp_lg_u32 s2, 200
    s_cbranch_scc1 {lab}
    s_cmp_lg_u32 s21, {wv}
    s_cbranch_scc1 {lab}
    s_load_dwordx2 s[92:93], s[0:1], 56
    s_waitcnt lgkmcnt(0)
    s_add_u32 s92, s92, {512 * (1 - kern)}
    s_addc_u32 s93, s93, 0
    s_mov_b32 s94, 256
    s_mov_b32 s95, 0x20000
    s_mov_b64 exec, 1
""")
    for i in range(n):
        e(f"    v_mov_b32 v127, s{80 + 2 * i}\n    buffer_store_dword v127, off, s[92:95], 0 offset:{4 * (base + i)}\n    s_waitcnt vmcnt(0)")
    e(f"{lab}:")
SMAP = {}
def stamp(i, srd_s, kern):
    if not OPT["stamps"]: return
    sel = [0, 1, 2, 3, 4, 5, 6] if kern == 0 else {1: [0, 1, 3, 4, 5, 11, 6, 7, 8, 9, 10], 2: [0, 2, 4, 5, 12, 6, 7, 8, 13, 9, 10], 3: [0] + list(range(101, 111)), 4: [0, 5, 11, 12, 6, 201, 202, 203, 204, 207, 208]}[OPT["stamps"]]
    if i not in sel: return
    r = 80 + 2 * sel.index(i)
    SMAP[(kern, i)] = r
    if i == 0: e("    s_memrealtime s[76:77]" if kern == 0 else "    s_memrealtime vcc\n    s_waitcnt lgkmcnt(0)\n    v_writelane_b32 v127, vcc_lo, 14")
    e(f"    s_memtime s[{r}:{r + 1}]")
def stamp_out(srd_s, kern):
    if not OPT["stamps"]: return
    vs, va = (2, 3) if kern == 0 else (127, 125)
    e(f"    s_memrealtime vcc\n    s_waitcnt lgkmcnt(0)\n    v_writelane_b32 v{vs}, vcc_lo, 15")
    if kern == 0: e("    v_writelane_b32 v2, s76, 14")
    for (k, i), r in SMAP.items():
        if k == kern: e(f"    v_writelane_b32 v{vs}, s{r}, {i % 100}")
    e(f"""
    s_mov_b64 exec, 0xffff
    s_lshl_b32 s3, s2, 4
    s_add_u32 s3, s3, s21
    s_lshl_b32 s3, s3, 6
    s_add_u32 s3, s3, {STAMP + kern * 0x80000}
    v_mbcnt_lo_u32_b32 v{va}, -1, 0
    v_lshlrev_b32 v{va}, 2, v{va}
    buffer_store_dword v{vs}, v{va}, s[{srd_s}:{srd_s + 3}], s3 offen
    s_mov_b64 exec, -1
""")

K1_CNT, K1_ST, K1_STG = 0, 1024, 2048
K1_WL, K1_XL = 0, 32768
K1_LDS = 66 * 1024
def gemm_issue():
    e(f"""
    s_lshr_b32 s20, s2, 4
    s_lshl_b32 s20, s20, 3
    s_and_b32 s3, s2, 7
    s_or_b32 s20, s20, s3
""")
    if OPT["cpf1"]:
        e(f"""
    s_cmp_lg_u32 s21, 0
    s_cbranch_scc1 K1_NOT
    s_cmp_ge_u32 s20, {OPT["cpf1"]}
    s_cbranch_scc1 K1_NOT
    s_getpc_b64 s[24:25]
K1_PC1:
    v_lshlrev_b32 v8, 6, v1
    v_min_u32 v8, K1_PC - K1_PC1 + 64, v8
    v_mov_b32 v9, s25
    v_add_co_u32 v8, vcc, s24, v8
    s_nop 1
    v_addc_co_u32 v9, vcc, 0, v9, vcc
    global_load_dword v34, v[8:9], off
K1_NOT:
""")
    e(f"""
    v_lshrrev_b32 v2, 4, v1                 ; g
    v_and_b32 v3, 15, v1                    ; n / i
    s_cmp_ge_u32 s20, 209
    s_cbranch_scc1 K1_JOBS
    ; x -> LDS: rows 4w + g, chunk (l%16) ^ (row & 15)
    v_lshrrev_b32 v5, 4, v0
    v_xor_b32 v6, v5, v0
    v_and_b32 v6, 15, v6
    s_mul_i32 s25, s20, 48
    v_add_u32 v5, s25, v5
    v_lshlrev_b32 v5, 8, v5
    v_lshl_or_b32 v5, v6, 4, v5
    s_lshl_b32 s27, s21, 10
    s_add_u32 s28, s27, {K1_XL}
    s_mov_b32 m0, s28
    ; W1 -> LDS: row (l/16), chunk (l%16) ^ ((l/16)<<1) ^ (8 if bit 3 of the row)
    v_lshlrev_b32 v4, 1, v2
    v_xor_b32 v4, v4, v3
    v_lshlrev_b32 v4, 4, v4
    v_lshl_or_b32 v4, v2, 8, v4
    s_lshl_b32 s28, s21, 6
    s_and_b32 s28, s28, 0x80
    v_xor_b32 v4, s28, v4
    s_waitcnt lgkmcnt(0)
""")
    srd(4, N * 256)
    srd(12, 128 * 256)
    stamp(6, 16, 0)
    e("    buffer_load_dwordx4 v5, s[4:7], 0 offen lds")
    for m in range(3):
        if m == 2:
            e("    s_cmp_ge_u32 s21, 8\n    s_cbranch_scc1 K1_DMAD")
        e(f"""
    s_mov_b32 m0, s27
    s_nop 0
    buffer_load_dwordx4 v4, s[12:15], s27 offen lds
""")
        if m < 2: e("    s_add_u32 s27, s27, 12288")

def kernel1():
    e("""
.text
.globl mpnn_bin_kernel
.p2align 8
.type mpnn_bin_kernel,@function
mpnn_bin_kernel:
    s_load_dwordx4 s[8:11], s[0:1], 16
    s_load_dwordx4 s[4:7], s[0:1], 0        ; x, e_attr
    s_load_dwordx4 s[12:15], s[0:1], 32
    s_load_dwordx2 s[16:17], s[0:1], 64     ; ws
    s_cmp_ge_u32 s2, 512
    s_cbranch_scc1 K1_END
    v_lshrrev_b32 v2, 6, v0
    v_and_b32 v1, 63, v0
    v_readfirstlane_b32 s21, v2
    s_and_b32 s20, s2, 7
    s_lshl_b32 s20, s20, 5
    s_lshr_b32 s3, s2, 4
    s_or_b32 s20, s20, s3
    s_lshr_b32 s3, s2, 5
    s_xor_b32 s3, s3, s2
""")
    stamp(0, 16, 0); light0()
    dbg(0)
    if OPT["k1o"]:
        e("    s_bitcmp0_b32 s3, 3\n    s_cbranch_scc1 K1_BIN")
        gemm_issue()
        e("    s_branch K1_DMAD\nK1_BIN:")
    else:
        e("    s_bitcmp1_b32 s3, 3\n    s_cbranch_scc1 K1_GEMM")
    e("""
    ; ---------------- binning workgroup (waves 0..9) ----------------
    s_cmp_ge_u32 s21, 10
    s_cbranch_scc1 K1_END
""" + ("    s_setprio 3\n" if OPT["k1p"] else "") + """    s_mul_i32 s22, s20, 5000                ; byte offset of this workgroup's src/dst slice
    s_lshl_b32 s23, s22, 1                  ; e_attr slice
    v_lshlrev_b32 v3, 3, v0
    v_lshlrev_b32 v4, 4, v0
    v_cmp_gt_u32 s[44:45], 625, v0
""".replace("v_cmp_gt_u32 s[44:45], 625, v0", "v_cmp_gt_u32 vcc, 625, v0"))
    e("    s_mov_b32 s26, %#x\n    s_mov_b32 s27, 0x20000\n    s_mov_b64 s[44:45], vcc\n    s_mov_b64 exec, vcc\n    s_waitcnt lgkmcnt(0)\n    s_mov_b32 s24, s10\n    s_mov_b32 s25, s11" % (E * 4))
    stamp(6, 16, 0)
    e("    buffer_load_dwordx2 v[6:7], v3, s[24:27], s22 offen      ; dst")
    srd(8, E * 4)
    e("    s_mov_b32 s32, s6\n    s_mov_b32 s33, s7"); srd(32, E * 8)
    def se():
        e("""
    buffer_load_dwordx2 v[8:9], v3, s[8:11], s22 offen       ; src
    buffer_load_dwordx4 v[10:13], v4, s[32:35], s23 offen
""")
    if not OPT["dst1"]: se()
    e(f"""
    s_mov_b64 exec, -1
    v_mov_b64 v[20:21], 0
    v_mov_b64 v[22:23], 0
    s_cmp_lg_u32 s21, 0
    s_cbranch_scc1 K1_NOZ
    ds_write_b128 v4, v[20:23] offset:{K1_CNT}
K1_NOZ:
    s_waitcnt lgkmcnt(0)
    s_barrier
    s_mov_b64 exec, s[44:45]
""")
    if OPT["dst1"]: se()
    e("    s_mov_b64 exec, -1\n    v_mov_b32 v24, 1\n    v_lshlrev_b32 v5, 4, v1")
    srd(16, WSEND)
    e(f"""
    s_mul_i32 s38, s20, {RSTR}
    s_add_u32 s38, s38, {REC}
    s_add_u32 s39, s38, 10240
    s_mov_b64 exec, s[44:45]
    s_waitcnt vmcnt(2)
""")
    stamp(1, 16, 0)
    dbg(1)
    e(f"""
    v_lshlrev_b32 v14, 2, v6
    v_lshlrev_b32 v15, 2, v7
    v_and_b32 v14, 0x3fc, v14
    v_and_b32 v15, 0x3fc, v15
    ds_add_rtn_u32 v16, v14, v24 offset:{K1_CNT}
    ds_add_rtn_u32 v17, v15, v24 offset:{K1_CNT}
    v_lshrrev_b32 v6, 8, v6
    v_lshrrev_b32 v7, 8, v7
    v_lshlrev_b32 v6, 26, v6
    v_lshlrev_b32 v7, 26, v7
    s_mov_b64 exec, -1
    s_waitcnt lgkmcnt(0)
    s_barrier
""")
    stamp(2, 16, 0)
    e(f"""
    ds_read_b128 v[20:23], v5 offset:{K1_CNT}
    s_waitcnt lgkmcnt(0)
    v_add_u32 v25, v20, v21
    v_add_u32 v26, v25, v22
    v_add_u32 v27, v26, v23
    s_nop 1
    v_add_u32_dpp v28, v27, v27 row_shr:1 row_mask:0xf bank_mask:0xf bound_ctrl:1
""")
    for c in ("row_shr:2 row_mask:0xf", "row_shr:4 row_mask:0xf", "row_shr:8 row_mask:0xf", "row_bcast:15 row_mask:0xa", "row_bcast:31 row_mask:0xc"):
        e(f"    s_nop 1\n    v_add_u32_dpp v28, v28, v28 {c} bank_mask:0xf")
    e(f"""
    v_sub_u32 v28, v28, v27
    v_add_u32 v29, v28, v20
    v_add_u32 v30, v28, v25
    v_add_u32 v31, v28, v26
    ds_write_b128 v5, v[28:31] offset:{K1_ST}
    ds_read_b32 v18, v14 offset:{K1_ST}
    ds_read_b32 v19, v15 offset:{K1_ST}
    s_waitcnt vmcnt(1)
    v_lshl_or_b32 v8, v8, 3, v6
    v_lshl_or_b32 v9, v9, 3, v7
    s_mov_b64 exec, s[44:45]
    s_waitcnt lgkmcnt(0)
    v_add_u32 v18, v18, v16
    v_add_u32 v19, v19, v17
    v_mul_u32_u24 v18, 12, v18
    v_mul_u32_u24 v19, 12, v19
    ds_write_b32 v18, v8 offset:{K1_STG + 8}
    ds_write_b32 v19, v9 offset:{K1_STG + 8}
    v_add_u32 v18, {K1_STG}, v18
    v_add_u32 v19, {K1_STG}, v19
    s_waitcnt vmcnt(0)
    ds_write2_b32 v18, v10, v11 offset0:0 offset1:1
    ds_write2_b32 v19, v12, v13 offset0:0 offset1:1
    s_mov_b64 exec, -1
    s_cmp_lg_u32 s21, 9
    s_cbranch_scc1 K1_NOD
    v_lshl_or_b32 v32, v20, 16, v28
    v_lshl_or_b32 v33, v21, 16, v29
    v_lshl_or_b32 v34, v22, 16, v30
    v_lshl_or_b32 v35, v23, 16, v31
    s_lshl_b32 s36, s20, 4
    s_add_u32 s36, s36, {DESC}
    v_and_b32 v36, 7, v1
    v_lshrrev_b32 v37, 3, v1
    v_lshl_or_b32 v36, v36, 3, v37
    v_lshlrev_b32 v36, 12, v36
    buffer_store_dwordx4 v[32:35], v36, s[16:19], s36 offen
K1_NOD:
    s_waitcnt lgkmcnt(0)
    s_barrier
""")
    stamp(3, 16, 0)
    e(f"""
    ds_read_b128 v[20:23], v4 offset:{K1_STG}
    s_cmp_ge_u32 s21, 5
    s_cbranch_scc1 K1_C1
    ds_read_b128 v[24:27], v4 offset:{K1_STG + 10240}
    s_waitcnt lgkmcnt(0)
    buffer_store_dwordx4 v[24:27], v4, s[16:19], s39 offen
K1_C1:
    s_waitcnt lgkmcnt(0)
    buffer_store_dwordx4 v[20:23], v4, s[16:19], s38 offen
""")
    light1(16, 0)
    if OPT["stamps"]:
        stamp(4, 16, 0); e("    s_waitcnt vmcnt(0)"); stamp(5, 16, 0); stamp_out(16, 0)
    e(f"""
    s_endpgm
""")
    if not OPT["k1o"]:
        e("K1_GEMM:")
        gemm_issue()
    e("K1_DMAD:")
    srd(16, N * 256)
    e(f"""
    s_lshr_b32 s23, s21, 2
    s_and_b32 s24, s21, 3
    v_lshrrev_b32 v24, 2, v3                ; r'
    v_and_b32 v25, 3, v3                    ; c'
    v_and_b32 v26, 1, v2
    v_lshl_or_b32 v26, v26, 2, v24          ; h(k)
    v_lshl_add_u32 v27, v2, 3, v24          ; 8g + r'
    v_lshlrev_b32 v27, 8, v27
    v_lshl_or_b32 v27, v25, 3, v27
    s_lshl_b32 s27, s24, 1
    v_xor_b32 v26, s27, v26
    v_lshl_add_u32 v28, v26, 5, v27
    v_xor_b32 v29, 32, v28
    ; x fragments
    v_xor_b32 v30, v2, v3
    v_lshlrev_b32 v30, 4, v30
    v_lshl_or_b32 v30, v3, 8, v30
    s_lshl_b32 s27, s23, 12
    s_add_u32 s27, s27, {K1_XL}
    v_add_u32 v30, s27, v30
    v_xor_b32 v31, 64, v30
    v_xor_b32 v32, 0x80, v30
    v_xor_b32 v33, 0xc0, v30
    s_lshl_b32 s26, s23, 4
    s_add_u32 s25, s25, s26
    v_add_u32 v5, s25, v3
    v_lshlrev_b32 v5, 8, v5
    v_lshl_or_b32 v5, v2, 4, v5
    s_lshl_b32 s27, s24, 6
    v_add_u32 v5, s27, v5
    s_mov_b32 s28, {NL2E:#x}
    s_waitcnt vmcnt(0)
    s_barrier
""")
    stamp(3, 16, 0)
    for s in range(4):
        e(f"    ds_read_b128 {vr(8 + 4 * s, 4)}, v{30 + s}")
        for f in range(2):
            for u2 in range(2):
                e(f"    ds_read_b64_tr_b16 {vr(36 + 16 * f + 4 * s + 2 * u2, 2)}, v{28 + f} offset:{s * 8192 + u2 * 1024}")
    for s in range(4):
        for f in range(2):
            left = 20 - (5 * s + 3 + 2 * f)
            e(f"    s_waitcnt lgkmcnt({min(left, 15)})")
            c = "0" if s == 0 else vr(68 + 4 * f, 4)
            e(f"    v_mfma_f32_16x16x32_bf16 {vr(68 + 4 * f, 4)}, {vr(36 + 16 * f + 4 * s, 4)}, {vr(8 + 4 * s, 4)}, {c}")
    e("    s_nop 5")
    for f in range(2):
        for h in range(2):
            r = 68 + 4 * f + 2 * h
            e(f"    v_pk_mul_f32 {vr(r, 2)}, {vr(r, 2)}, s[28:29] op_sel_hi:[1,0]")
        for h in range(2):
            r = 68 + 4 * f + 2 * h
            e(f"    v_cvt_pk_bf16_f32 v{76 + 2 * f + h}, v{r}, v{r + 1}")
    e(f"    buffer_store_dwordx4 v[76:79], v5, s[16:19], 0 offen")
    light1(16, 0)
    if OPT["stamps"]:
        srd(16, WSEND); stamp(4, 16, 0); e("    s_waitcnt vmcnt(0)"); stamp(5, 16, 0); stamp_out(16, 0)
    e(f"""
    s_endpgm
K1_JOBS:
    s_sub_u32 s23, s20, 209
    s_mul_i32 s23, s23, 12
    s_add_u32 s23, s23, s21
    s_waitcnt lgkmcnt(0)
""")
    srd(16, WSEND)
    e(f"""
    s_cmp_ge_u32 s23, 96
    s_cbranch_scc1 K1_JOB2
    s_lshr_b32 s24, s23, 5
    s_bfe_u32 s25, s23, 0x30002             ; f
    s_and_b32 s26, s23, 3                   ; s
    s_cmp_eq_u32 s24, 0
    s_cselect_b32 s28, s12, s14
    s_cselect_b32 s29, s13, s15
    s_mov_b32 s30, {256 * 256}
    s_mov_b32 s31, 0x20000
    ; column
    s_lshl_b32 s33, s25, 4                  ; 16 f
    v_add_u32 v4, s33, v3
    v_lshlrev_b32 v4, 1, v4
    ; row
    v_lshlrev_b32 v5, 11, v2                ; 8 g rows
    v_lshrrev_b32 v7, 1, v2
    v_lshlrev_b32 v7, 12, v7
    v_and_b32 v6, 1, v2
    v_lshl_or_b32 v7, v6, 9, v7             ; 16 (g>>1) + 2 (g&1) rows
    s_cmp_eq_u32 s24, 2
    s_cselect_b64 vcc, -1, 0
    s_cselect_b32 s32, 10, 13
    s_movk_i32 s33, 512
    s_cmovk_i32 s33, 8192
    s_cselect_b32 s34, {NSC:#x}, 1.0
    v_cndmask_b32 v5, v5, v7, vcc
    v_add_u32 v4, v4, v5
    s_lshl_b32 s40, s26, s32
    s_cmp_eq_u32 s24, 1
    s_cselect_b32 s36, 0, 0x8000
    s_add_u32 s40, s40, s36
    s_add_u32 s41, s40, s33
    s_add_u32 s42, s41, s33
    s_add_u32 s43, s42, s33
""")
    for m in range(8):
        e(f"    buffer_load_ushort v{8 + m}, v4, s[28:31], s{40 + m // 2} offen offset:{(m & 1) * 256}")
    e(f"""
    s_lshl_b32 s37, s23, 10
    s_add_u32 s37, s37, {W2F}
    v_lshlrev_b32 v6, 4, v1
    s_mov_b32 s38, 0x07060302
    s_waitcnt vmcnt(0)
""")
    for m in range(8):
        e(f"    v_lshlrev_b32 v{8 + m}, 16, v{8 + m}\n    v_mul_f32 v{8 + m}, s34, v{8 + m}")
    for m in range(4):
        e(f"    v_perm_b32 v{16 + m}, v{9 + 2 * m}, v{8 + 2 * m}, s38")
    e(f"""
    buffer_store_dwordx4 v[16:19], v6, s[16:19], s37 offen
    s_endpgm
K1_JOB2:
    s_cmp_ge_u32 s23, 98
    s_cbranch_scc1 K1_JOB3
    s_sub_u32 s24, s23, 96                  ; c
    s_mov_b32 s14, {260 * 256}
    s_mov_b32 s15, 0x20000
    v_and_b32 v2, 31, v1
    v_lshrrev_b32 v3, 5, v1
    v_lshl_or_b32 v2, v2, 1, v3             ; p & 63
    v_and_b32 v4, 0x23, v2
    v_bfe_u32 v5, v2, 2, 1
    v_lshl_or_b32 v4, v5, 4, v4
    v_bfe_u32 v5, v2, 3, 2
    v_lshl_or_b32 v4, v5, 2, v4             ; feature & 63
    v_lshlrev_b32 v4, 1, v4
    s_lshl_b32 s25, s24, 7
    s_add_u32 s25, s25, {256 * 256}
""")
    for d in range(4):
        e(f"    buffer_load_ushort v{8 + d}, v4, s[12:15], s25 offen offset:{d * 256}")
    e(f"""
    s_lshl_b32 s37, s24, 10
    s_add_u32 s37, s37, {W3F}
    v_lshlrev_b32 v6, 4, v1
    s_mov_b32 s34, {NL2E:#x}
    s_waitcnt vmcnt(0)
""")
    for d in range(4):
        e(f"    v_lshlrev_b32 v{8 + d}, 16, v{8 + d}\n    v_mul_f32 v{8 + d}, s34, v{8 + d}")
    e("""
    v_cvt_pk_bf16_f32 v16, v8, v9
    v_cvt_pk_bf16_f32 v17, v10, v11
    v_lshlrev_b32 v12, 16, v16
    v_and_b32 v13, 0xffff0000, v16
    v_lshlrev_b32 v14, 16, v17
    v_and_b32 v15, 0xffff0000, v17
    v_sub_f32 v8, v8, v12
    v_sub_f32 v9, v9, v13
    v_sub_f32 v10, v10, v14
    v_sub_f32 v11, v11, v15
    v_cvt_pk_bf16_f32 v18, v8, v9
    v_cvt_pk_bf16_f32 v19, v10, v11
    buffer_store_dwordx4 v[16:19], v6, s[16:19], s37 offen
    s_endpgm
K1_JOB3:
    s_cmp_ge_u32 s20, 224
    s_cbranch_scc1 K1_SPARE
    s_cmp_lg_u32 s23, 98
    s_cbranch_scc1 K1_END
    v_mov_b32 v8, 0
    v_lshlrev_b32 v6, 2, v1
""")
    e(f"""
    s_mov_b32 s37, {PT + N * 256}
    buffer_store_dword v8, v6, s[16:19], s37 offen
K1_END:
    s_endpgm
K1_SPARE:
""")
    if OPT["cpf"]:
        e(f"""
    s_getpc_b64 s[24:25]
K1_PC:
    s_bfe_u32 s22, s20, 0x20003
    s_mul_i32 s22, s22, 12
    s_add_u32 s22, s22, s21
    s_mul_i32 s22, s22, {OPT["cpf"] * 64}
    v_lshl_add_u32 v2, v1, 6, s22
    v_min_u32 v2, K2_LAST - mpnn_edge_kernel, v2
    v_add_u32 v2, mpnn_edge_kernel - K1_PC, v2
    v_mov_b32 v3, s25
    v_add_co_u32 v2, vcc, s24, v2
    s_nop 1
    v_addc_co_u32 v3, vcc, 0, v3, vcc
    s_bfm_b64 exec, {OPT["cpf"]}, 0
    global_load_dword v4, v[2:3], off
""")
    e("    s_endpgm")

RS = 1040
RB, RO = 288, 272
CAP = 2048
MISC = 0
ZR, CNT, MORE, BAD, FL = 0, 768, 1024, 1028, 1088
SO = 2048
EA = SO + CAP * 4
W3L = EA + CAP * 8
QU = W3L + 2048
AG = QU + 41 * RS
XL = (AG + 2 * 16384 + 11 * 1024 + 255) // 256 * 256
AGB = XL + 12288
K2_LDS = AGB + 48 * RB
PADV = N * 8
S16MAX = (CAP // 4 - 8) * 16
NT = 16
NK = 6
vSO, vP, vD, vE, vAe, vBw, vQ, vNp, vAc, vI = 8, (16, 24), (32, 92), 48, 64, 68, 72, 126, (80, 82), 84
vaS, vaE, vAct, vaN = (86, 87), 88, 89, (90, 91)
vU, vM, vDn = 108, (120 if OPT['unc'] == 2 else 76), (76, 78)
vR, vN4, vTa, vStr, vRS, vW3a = 60, tuple(range(19, 25)), 56, 57, 124, 125
vC4, vQ16, vE16, vS16 = 120, 121, 122, 123
vCA, vCW, vCN, vFR = 120, 121, 122, 124
sM = [40 + 2 * k for k in range(NK)]
sFM, sEV = (28, 30), (32, 33)
sFirst, sMoreV, sMM, sGuard, sScale, sOne = 56, 57, 58, 68, 70, 52
M9 = "0x01ff01ff"
KCOP = "s[26:27], s[26:27] op_sel_hi:[1,0,0] clamp"
PRIO_0, PRIO_AT = 2, {NT - 4: 1, NT - 1: 0}

def prio(n): e(f"    s_setprio {n}")

def divide(y, last=False):
    t = vE + 8 * y + 4
    e(f"""
    v_rcp_f32 v{t}, v{vDn[y]}
    v_rcp_f32 v{t + 1}, v{vDn[y] + 1}
    {f"v_pk_add_f32 {vr(vM, 2)}, {vr(vM, 2)}, {vr(vDn[y], 2)}" if last or not OPT["nrs"] else "s_nop 0"}
    v_pk_mul_f32 {vr(vAc[y], 2)}, {vr(vAc[y], 2)}, {vr(t, 2)}
    v_pk_fma_f32 {vr(vM, 2)}, {vr(vAc[y], 2)}, {vr(vAc[y], 2)}, {vr(vM, 2)}
""")

def flush_adds(y):
    t = vE + 8 * y
    e(f"""
    v_cvt_f64_f32 {vr(t, 2)}, v{vAc[y]}
    v_cvt_f64_f32 {vr(t + 2, 2)}, v{vAc[y] + 1}
    ds_add_f64 v{vaN[y]}, {vr(t, 2)} offset:{AG - QU}
    ds_add_f64 v{vaN[y]}, {vr(t + 2, 2)} offset:{AG - QU + 8}
""")

def exec_bit(y, t):
    e(f"    s_bfe_i32 exec_lo, s{sFM[y]}, {0x10000 | t:#x}\n    s_bfe_i32 exec_hi, s{sFM[y] + 1}, {0x10000 | t:#x}")

def event_block(t, y, v):
    e(f"K2_{v}EV{t}_{y}:")
    exec_bit(y, t)
    e(f"    s_cbranch_execz K2_{v}EQ{t}_{y}")
    if OPT["unc"] == 2 and not v:
        divide(y)
        if not OPT["nrs"]: e(f"    v_mov_b64 {vr(vDn[y], 2)}, {sr(sOne, 2)}")
    flush_adds(y)
    e(f"""
    v_add_u32 v{vaN[y]}, {RS}, v{vaN[y]}
    v_mov_b64 {vr(vAc[y], 2)}, 0
K2_{v}EQ{t}_{y}:
""")
    if t + 2 < NT:
        exec_bit(y, t + 1)
        e(f"    ds_read_b64 {vr(vQ + 2 * y, 2)}, v{vaN[y]} offset:{RS}")
    e(f"    s_mov_b64 exec, -1\n    s_branch K2_{v}EB{t}_{y}")

def gather_lines(dst, adr):
    out = []
    for q in range(4):
        for y in range(2):
            a = adr + 4 * y + q
            pre = f"    v_min_u32 v{a}, {PADV}, v{a}\n    v_and_b32 v{a}, -8, v{a}\n" if OPT["safe"] else ""
            out.append(pre + f"    buffer_load_dword v{dst + 2 * q + y}, v{a}, s[8:11], 0 offen")
    return out
def gathers(dst, adr):
    for l in gather_lines(dst, adr): e(l)

def mfma4(D, P, q): return f"    v_mfma_f32_4x4x4_16b_bf16 {vr(D + 4 * q, 4)}, {vr(vI, 2)}, {vr(P + 2 * q, 2)}, {vr(vQ, 4)}"
def mfma32(D): return f"    v_mfma_f32_32x32x16_bf16 {vr(D, 16)}, {vr(vAe, 4)}, {vr(vBw, 4)}, {vr(D, 16)}"

def core_lines(D, guarded):
    Ee = vE
    def p(r): return vr(r, 2)
    ex = [f"    v_exp_f32 v{Ee + k}, v{D + k}" for k in range(16)]
    if not guarded and OPT["unc"] == 2:
        rest = []
        for q in range(4):
            Do = vDn if (q % 2 == 0 or not OPT["pp"]) else (122, 124)
            Dw = vDn if (q % 2 == 1 or not OPT["pp"]) else (122, 124)
            n1 = [f"    v_pk_fma_f32 {p(vAc[y])}, {p(vAc[y])}, {p(Ee + 4 * q + 2 * y)}, {p(vAc[y])}" for y in range(2)]
            n2 = [f"    v_pk_fma_f32 {p(vAc[y])}, {p(D + 4 * q + 2 * y)}, {p(Do[y])}, {p(vAc[y])}" for y in range(2)]
            dd = [f"    v_pk_fma_f32 {p(Dw[y])}, {p(Do[y])}, {p(Ee + 4 * q + 2 * y)}, {p(Do[y])}" for y in range(2)]
            rest += (n1 + dd + n2) if OPT["pp"] else (n1 + n2 + dd)
        return ex, [], rest
    if guarded:
        sc = [f"    v_pk_fma_f32 {p(Ee + 2 * m)}, {p(Ee + 2 * m)}, {KCOP}" for m in range(8)]
        seq = [
            lambda o: f"v_pk_mul_f32 {p(D + o)}, {p(D + o)}, {p(Ee + o + 4)}",
            lambda o: f"v_pk_mul_f32 {p(D + o + 8)}, {p(D + o + 8)}, {p(Ee + o + 12)}",
            lambda o: f"v_pk_fma_f32 {p(D + o)}, {p(D + o + 4)}, {p(Ee + o)}, {p(D + o)}",
            lambda o: f"v_pk_fma_f32 {p(D + o + 8)}, {p(D + o + 12)}, {p(Ee + o + 8)}, {p(D + o + 8)}",
            lambda o: f"v_pk_mul_f32 {p(Ee + o)}, {p(Ee + o)}, {p(Ee + o + 4)}",
            lambda o: f"v_pk_mul_f32 {p(Ee + o + 8)}, {p(Ee + o + 8)}, {p(Ee + o + 12)}",
        ]
    else:
        sc = [f"    v_pk_add_f32 {p(Ee + o + j)}, {p(Ee + o + j)}, 1.0 op_sel_hi:[1,0]" for j in (4, 12) for o in (0, 2)]
        seq = [
            lambda o: f"v_pk_fma_f32 {p(D + o + 4)}, {p(D + o + 4)}, {p(Ee + o)}, {p(D + o + 4)}",
            lambda o: f"v_pk_fma_f32 {p(D + o + 12)}, {p(D + o + 12)}, {p(Ee + o + 8)}, {p(D + o + 12)}",
            lambda o: f"v_pk_fma_f32 {p(Ee + o)}, {p(Ee + o)}, {p(Ee + o + 4)}, {p(Ee + o + 4)}",
            lambda o: f"v_pk_fma_f32 {p(Ee + o + 8)}, {p(Ee + o + 8)}, {p(Ee + o + 12)}, {p(Ee + o + 12)}",
            lambda o: f"v_pk_fma_f32 {p(D + o)}, {p(D + o)}, {p(Ee + o + 4)}, {p(D + o + 4)}",
            lambda o: f"v_pk_fma_f32 {p(D + o + 8)}, {p(D + o + 8)}, {p(Ee + o + 12)}, {p(D + o + 12)}",
        ]
    seq += [
        lambda o: f"v_pk_mul_f32 {p(Ee + o + 4)}, {p(Ee + o)}, {p(Ee + o + 8)}",
        lambda o: f"v_pk_mul_f32 {p(D + o)}, {p(D + o)}, {p(Ee + o + 8)}",
        lambda o: f"v_rcp_f32 v{Ee + o + 4}, v{Ee + o + 4}",
        lambda o: f"v_rcp_f32 v{Ee + o + 5}, v{Ee + o + 5}",
        lambda o: f"v_pk_fma_f32 {p(D + o)}, {p(D + o + 8)}, {p(Ee + o)}, {p(D + o)}",
        lambda o: f"v_pk_fma_f32 {p(vAc[o // 2])}, {p(D + o)}, {p(Ee + o + 4)}, {p(vAc[o // 2])}",
    ]
    rest = ["    " + fn(o) for fn in seq for o in (0, 2)]
    if not guarded:
        rest.insert(16, f"    v_pk_fma_f32 {p(vM)}, {p(Ee + 4)}, {p(Ee + 6)}, {p(vM)}")
    return ex, sc, rest

def tile(t, v):
    a, r = t % 2, NT - t
    ex, sc, rest = core_lines(vD[a], v == 'G' or not OPT['unc'])
    Dn, Pn = vD[1 - a], vP[1 - a]
    e(f"K2_{v}T{t}:")
    if t in PRIO_AT: prio(PRIO_AT[t])
    pk = sc + rest
    if r >= 2:
        mp = OPT["mpos"]
        k0 = {5: 0, 6: 4}.get(mp, 2)
        seq = ex[:k0] + [f"    s_waitcnt vmcnt({8 if r >= 3 else 0}) lgkmcnt(0)"]
        for q in range(4): seq += [mfma4(Dn, Pn, q), ex[k0 + q]]
        seq += ex[k0 + 4:k0 + 7] + [mfma32(Dn)]
        k = k0 + 7
        mem = []
        if r >= 4: mem += gather_lines(Pn, vSO)
        if r >= 5: mem += [f"    ds_read_b128 {vr(vSO + 4 * y, 4)}, v{vaS[y]} offset:{16 * (t + 4)}" for y in range(2)]
        if r >= 3: mem += [f"    ds_read2_b64 {vr(vAe, 4)}, v{vaE} offset0:{4 * (t + 2)} offset1:{4 * (t + 2)}"]
        if mp in (0, 5): seq += ex[k:k + 5] + mem + ex[k + 5:] + pk
        elif mp in (1, 6): seq += ex[k:] + mem + pk
        elif mp == 2: seq += ex[k:] + pk[:12] + mem + pk[12:]
        elif mp == 3: seq += ex[k:] + pk + mem
        elif mp == 4: seq += ex[k:k + 5] + mem[:4] + ex[k + 5:] + pk[:6] + mem[4:8] + pk[6:12] + mem[8:] + pk[12:]
    else:
        seq = ex + pk
    for l in seq: e(l)
    if not v: stamp(100 + t - 5, 4, 1)
    if r >= 2:
        for y in range(2):
            e(f"    s_bitcmp1_b32 s{sEV[y]}, {t}\n    s_cbranch_scc1 K2_{v}EV{t}_{y}\nK2_{v}EB{t}_{y}:")

def x_addr(xa):
    e(f"""
    v_xor_b32 v{xa}, v5, v6
    v_lshlrev_b32 v{xa}, 4, v{xa}
    v_lshl_or_b32 v{xa}, v6, 8, v{xa}
    v_add_u32 v{xa}, {XL}, v{xa}
    v_xor_b32 v{xa + 1}, 64, v{xa}
    v_xor_b32 v{xa + 2}, 0x80, v{xa}
    v_xor_b32 v{xa + 3}, 0xc0, v{xa}
""")
def x_reads(xa, xb):
    for s in range(4):
        for T in range(3):
            e(f"    ds_read_b128 {vr(xb(T, s), 4)}, v{xa + s} offset:{4096 * T}")
def node_mfma(acc, W, xb):
    for s in range(4):
        for T in range(3):
            e(f"    s_waitcnt lgkmcnt({11 - 3 * s - T})")
            c = "0" if s == 0 else vr(acc + 4 * T, 4)
            e(f"    v_mfma_f32_16x16x32_bf16 {vr(acc + 4 * T, 4)}, {vr(W + 4 * s, 4)}, {vr(xb(T, s), 4)}, {c}")
def per_record(lab, fn):
    for k in range(NK):
        e(f"    s_mov_b64 exec, {sr(sM[k], 2)}")
        if k >= 2: e(f"    s_cbranch_execz {lab}")
        fn(k)
    e(f"{lab}:")

def conv_addr(t):
    e(f"""
    v_lshrrev_b32 v{vCA}, 4, v0
    v_subrev_u32 v{vCA}, 24, v{vCA}
    v_cvt_f32_u32 v{t}, v{vNp}
    v_lshlrev_b32 v{t + 1}, 2, v{vCA}
    v_mul_f32 v{t}, 0xbe800000, v{t}
    v_mul_u32_u24 v{vCW}, {RB}, v{vCA}
    v_mul_u32_u24 v{vCA}, {RS}, v{vCA}
    ds_bpermute_b32 v{vCN}, v{t + 1}, v{t}
    v_lshl_add_u32 v{vCW}, v6, 4, v{vCW}
    v_lshl_add_u32 v{vCA}, v6, 4, v{vCA}
    v_add_u32 v{vCW}, {AGB}, v{vCW}
    v_add_u32 v{vCA}, {QU}, v{vCA}
""")

def kernel2():
    e(f"""
.text
.globl mpnn_edge_kernel
.p2align 8
.type mpnn_edge_kernel,@function
mpnn_edge_kernel:
    s_load_dwordx2 s[4:5], s[0:1], 64       ; ws
    s_load_dwordx2 s[12:13], s[0:1], 0      ; x
    s_load_dwordx2 s[16:17], s[0:1], 48     ; out
    s_cmp_ge_u32 s2, 256
    s_cbranch_scc1 K2_END
    v_lshrrev_b32 v2, 6, v0
    s_and_b32 s34, s2, 63
    v_readfirstlane_b32 s21, v2
    s_lshl_b32 s34, s34, 10
    s_lshr_b32 s3, s2, 6
    s_add_u32 s34, s34, s3
    s_lshl2_add_u32 s34, s34, {DESC}
    s_mov_b32 s6, {WSEND:#x}
    s_mov_b32 s7, 0x20000
    v_and_b32 v4, -4, v0
    v_lshlrev_b32 v4, 2, v4
""")
    stamp(0, 4, 1); light0()
    e(f"""
    v_lshrrev_b32 v8, 4, v0
    v_xor_b32 v9, v8, v0
    v_and_b32 v9, 15, v9
    s_waitcnt lgkmcnt(0)
    buffer_load_dword v2, v4, s[4:7], s34 offen
    s_and_b32 s20, s2, 7
    s_bfe_u32 s35, s2, 0x30003
    s_lshl3_add_u32 s20, s20, s35
    s_lshl2_add_u32 s20, s20, s3
    s_cmp_ge_u32 s21, 11
    s_cbranch_scc1 K2_NOX
    s_lshl_b32 s35, s20, 8
    v_lshl_add_u32 v8, v8, 16, s35
    s_lshl_b32 s36, s21, 10
    s_add_u32 s36, s36, {XL}
    s_mov_b32 m0, s36
""")
    srd(12, N * 256)
    e(f"""
    v_lshl_add_u32 v8, v9, 4, v8
    buffer_load_dwordx4 v8, s[12:15], 0 offen lds
K2_NOX:
    v_lshrrev_b32 v3, 2, v0
    v_mul_u32_u24 v3, {RSTR}, v3
    v_and_b32 v4, 3, v0
    s_mov_b32 s24, 0
    s_mov_b32 s25, {4 * NK}
    s_mov_b32 s{sFirst}, 1
    v_lshlrev_b32 v56, 4, v0
    v_mov_b64 v[8:9], 0
    v_mov_b64 v[10:11], 0
    s_cmp_ge_u32 s21, 2
    s_cbranch_scc1 K2_NOZ0
    ds_write_b128 v56, v[8:11] offset:{MISC}
K2_NOZ0:
""")
    def ag16(lab):
        e(f"""
    v_add_u32 v57, {AG}, v56
    ds_write_b128 v57, v[8:11]
    ds_write_b128 v57, v[8:11] offset:16384
    s_cmp_ge_u32 s21, 11
    s_cbranch_scc1 {lab}
    ds_write_b128 v57, v[8:11] offset:32768
""")
    if OPT["agz"] == 0:
        ag16("K2_NOZ3")
        e("    s_waitcnt vmcnt(1)\n    s_branch K2_ROUND\nK2_NOZ3:\n    s_waitcnt vmcnt(0)")
    else:
        if OPT["agz"] == 1:
            e(f"    s_cmp_ge_u32 s21, 8\n    s_cbranch_scc1 K2_NOZ3\n    v_add_u32 v57, {AG}, v56")
            for i in range(5): e(f"    ds_write_b128 v57, v[8:11] offset:{8192 * i}")
            e(f"    s_cmp_ge_u32 s21, 3\n    s_cbranch_scc1 K2_NOZ3\n    ds_write_b128 v57, v[8:11] offset:{8192 * 5}\nK2_NOZ3:")
        e("    s_cmp_lt_u32 s21, 11\n    s_cbranch_scc1 K2_WD1\n    s_waitcnt vmcnt(0)\nK2_WD1:\n    s_waitcnt vmcnt(1)")
    e(f"""
K2_ROUND:
""")
    prio(2)
    stamp(1, 4, 1)
    e(f"""
    v_lshrrev_b32 v16, 16, v2               ; count
    v_and_b32 v17, 0xffff, v2               ; start
    v_subrev_u32 v16, s24, v16
    v_add3_u32 v17, v17, s24, v4
    v_min_i32 v18, s25, v16
    v_mad_u32_u24 v17, v17, 12, v3
    v_sub_u32 v18, v18, v4
    s_mov_b32 s34, {REC}
""")
    for k in range(4): e(f"    v_cmp_lt_i32 {sr(sM[k], 2)}, {4 * k}, v18")
    def ld(k):
        e(f"    buffer_load_dwordx3 {vr(vR + 4 * k, 3)}, v17, s[4:7], s34 offen offset:{48 * k}")
        if 4 <= k + 1 < NK: e(f"    v_cmp_lt_i32 {sr(sM[k + 1], 2)}, {4 * (k + 1)}, v18")
    per_record("K2_RLD", ld)
    e("    s_mov_b64 exec, -1")
    stamp(2, 4, 1)
    prio(0)
    e(f"""
    v_and_b32 v1, 63, v0
    v_cmp_lt_i32 {sr(sMM, 2)}, s25, v16
    v_lshlrev_b32 v7, 4, v1                 ; lane*16
    s_mov_b32 s75, 0
""")
    if not OPT["bdp"]: e("    s_waitcnt lgkmcnt(3)\n    s_barrier")
    e(f"""
    ds_write_b128 v56, v[8:11] offset:{EA}
    s_cmp_ge_u32 s21, 8
    s_cbranch_scc1 K2_NOSO
    v_mov_b32 v12, {PADV}
    v_mov_b32 v13, v12
    v_mov_b32 v14, v12
    v_mov_b32 v15, v12
    ds_write_b128 v56, v[12:15] offset:{SO}
    {"s_mov_b32 s75, s%d" % sFirst if OPT["qo"] else "s_branch K2_NOW2"}
K2_NOSO:
    {"" if OPT["qo"] else "s_mov_b32 s75, s%d                ; 1: this wave computes q in this round" % sFirst}
""")
    def w2_loads():
        e(f"    s_lshl_b32 s74, s21, 12\n    s_add_u32 s74, s74, {W2F - (0 if OPT['qo'] else 8 * 4096)}")
        for s in range(4):
            e(f"    buffer_load_dwordx4 {vr(92 + 4 * s, 4)}, v7, s[4:7], s74 offen offset:{1024 * s}")
    if OPT["bdp"] != 2:
        e("    s_cmp_eq_u32 s75, 0\n    s_cbranch_scc1 K2_NOW2")
        w2_loads()
    e(f"""
K2_NOW2:
    s_cmp_eq_u32 s{sFirst}, 0
    s_cbranch_scc1 K2_SETD
""")
    if OPT["agz"] == 2:
        ag16("K2_NOZ3"); e("K2_NOZ3:")
    e(f"""
    v_lshrrev_b32 v5, 4, v1                 ; g
    v_and_b32 v6, 15, v1                    ; n
    v_mov_b32 v{vNp}, 0
    s_cmp_lt_u32 s20, 16
    s_cselect_b32 s22, 40, 39
    s_bfm_b64 s[78:79], s22, 0
    s_and_b32 s23, s21, 1
    s_lshr_b32 s76, s21, 1
    s_mov_b32 s26, {KC:#x}
    s_mov_b32 s{sGuard}, 0
    s_mov_b32 s{sOne}, {f2u(2.0 ** -64):#x}
    s_mov_b32 s{sOne + 1}, s{sOne}
    s_mov_b32 s{sScale}, {f2u(2.0 ** 31 * math.log(2.0)) if OPT['unc'] else f2u(1.0):#x}
    s_mov_b32 s72, {NL2E:#x}
    s_lshl_b32 s39, s23, 7
    s_add_u32 s8, s4, s39
    s_addc_u32 s9, s5, 0
    s_or_b32 s9, s9, 0x80000000
    s_mov_b32 s10, 0x10000
    s_mov_b32 s11, 0x00c00000
""")
    srd(16, N * 256)
    e(f"""
K2_SETD:
    v_mov_b32 v59, 4
    v_lshlrev_b32 v58, 2, v1
    v_mov_b32 v{vRS}, {RS}
    v_and_b32 v{vaN[1]}, 31, v1
    s_lshl_b32 s36, s23, 9
    s_add_u32 s37, s36, {QU}
    v_lshl_add_u32 v{vaN[0]}, v{vaN[1]}, 4, s37
    v_lshl_add_u32 v{vW3a}, s36, 1, v7
    s_movk_i32 s36, 0x3f80
    s_mov_b32 s37, 0
    v_and_b32 v16, 0x30, v7
    v_lshlrev_b64 {vr(vI, 2)}, v16, s[36:37]
    v_mov_b32 v{vS16}, 0
    v_mov_b64 {vr(vaE, 2)}, 0
    v_mov_b32 v{vStr}, 0
    s_mov_b64 exec, s[78:79]
    v_mov_b32 v{vS16}, 16
    s_mov_b32 exec_lo, 0x55555555
    s_mov_b32 exec_hi, 0xaaaaaaaa
    v_and_b32 v{vaE}, 0x18, v1
    v_mov_b32 v{vAct}, 1
    v_bfe_u32 v{vStr}, v1, 1, 2
""")
    if not OPT["bdp"]: e(f"    s_mov_b64 exec, {sr(sMM, 2)}\n    s_cbranch_execnz K2_MORE\nK2_MOREB:")
    e(f"""
    s_cmp_eq_u32 s75, 0
    s_cbranch_scc1 K2_W0
    s_mov_b64 exec, -1
""")
    x_addr(108)
    e(f"""
    s_bfe_u32 s36, s21, 0x20001
    s_lshl3_add_u32 s36, s36, s23
    s_lshl_b32 s36, s36, 5
    s_add_u32 s36, s36, {QU}
    v_mul_u32_u24 v{vTa}, {RS}, v6
    v_lshl_add_u32 v{vTa}, v5, 6, v{vTa}
    v_add_u32 v{vTa}, s36, v{vTa}
    s_cmp_eq_u32 s75, 0
""")
    if OPT["bdp"]:
        e("K2_W0:")
        prio(2)
        e(f"""
    s_waitcnt lgkmcnt({(5, 8, 5)[OPT['agz']]})
    s_barrier
    s_mov_b64 exec, {sr(sMM, 2)}
    s_cbranch_execnz K2_MORE
K2_MOREB:
    s_cbranch_scc1 K2_W1
""")
        if OPT["bdp"] == 2:
            e("    s_mov_b64 exec, -1")
            w2_loads()
        e(f"""
    s_waitcnt vmcnt(4)
    s_branch K2_RECS
K2_W1:
    s_waitcnt vmcnt(0)
K2_RECS:
""")
    else:
        prio(2)
        e("    s_waitcnt vmcnt(4)\n    s_branch K2_RECS\nK2_W0:")
        prio(2)
        e("    s_waitcnt vmcnt(0)\nK2_RECS:")
    stamp(3, 4, 1)
    per_record("K2_HISTD", lambda k: e(f"""
    v_lshrrev_b32 v{vN4[k]}, 24, v{vR + 2 + 4 * k}
    ds_add_rtn_u32 v{vR + 3 + 4 * k}, v{vN4[k]}, v59 offset:{CNT}
    v_and_b32 v{vR + 2 + 4 * k}, 0x3ffffff, v{vR + 2 + 4 * k}
"""))
    e(f"""
    s_mov_b64 exec, -1
    s_cmp_lg_u32 s76, 0
    s_cbranch_scc1 K2_NOW3
    s_lshl_b32 s34, s23, 10
    s_add_u32 s35, s34, {W3L}
    s_add_u32 s34, s34, {W3F}
    s_mov_b32 m0, s35
    s_nop 0
    buffer_load_dwordx4 v7, s[4:7], s34 offen lds
K2_NOW3:
    s_waitcnt lgkmcnt(0)
    s_barrier
""")
    stamp(4, 4, 1)
    e(f"""
    ds_read_b32 v{vC4}, v58 offset:{CNT}
    s_waitcnt lgkmcnt(0)
    v_add_u32 v{vQ16}, 12, v{vC4}
    v_and_b32 v{vQ16}, -16, v{vQ16}
    v_max_u32 v{vQ16}, v{vS16}, v{vQ16}     ; 16*quads
    s_nop 1
    v_add_u32_dpp v{vE16}, v{vQ16}, v{vQ16} row_shr:1 row_mask:0xf bank_mask:0xf bound_ctrl:1
""")
    for c in ("row_shr:2 row_mask:0xf", "row_shr:4 row_mask:0xf", "row_shr:8 row_mask:0xf", "row_bcast:15 row_mask:0xa", "row_bcast:31 row_mask:0xc"):
        e(f"    s_nop 1\n    v_add_u32_dpp v{vE16}, v{vE16}, v{vE16} {c} bank_mask:0xf")
    e(f"""
    v_sub_u32 v{vS16}, v{vE16}, v{vQ16}
    v_readlane_b32 s34, v{vE16}, 63
""")
    for k in range(NK):
        if k >= 3: e(f"    s_cmp_eq_u64 {sr(sM[k], 2)}, 0\n    s_cbranch_scc1 K2_BPD")
        e(f"    ds_bpermute_b32 v{vN4[k]}, v{vN4[k]}, v{vS16}")
    e(f"""
K2_BPD:
    s_cmp_gt_u32 s34, {S16MAX}
    s_cbranch_scc1 K2_REDO
    s_add_u32 s34, s34, 48
    s_lshr_b32 s35, s34, 9
    s_bfe_u32 s34, s34, 0x30006
    s_mul_i32 s37, s76, s35
    s_waitcnt lgkmcnt(0)
""")
    per_record("K2_GEO", lambda k: e(f"""
    v_add_u32 v{vN4[k]}, v{vN4[k]}, v{vR + 3 + 4 * k}
    ds_write_b32 v{vN4[k]}, v{vR + 2 + 4 * k} offset:{SO}
    v_add_u32 v{vR + 3 + 4 * k}, v{vN4[k]}, v{vN4[k]}
"""))
    e(f"""
    s_cmp_lg_u32 s21, {8 * OPT['qo']}
    s_cbranch_scc1 K2_NOFL
    s_mov_b64 exec, s[78:79]
    v_lshrrev_b32 v16, 4, v{vE16}
    ds_write_b8 v16, v59 offset:{FL - 1}
K2_NOFL:
    s_min_u32 s38, s76, s34
    s_add_u32 s37, s37, s38
    s_lshl_b32 s60, s37, 6                  ; stream (0,X)
    s_cmp_lt_u32 s76, s34
    s_addc_u32 s35, s35, 0
    s_mov_b64 exec, -1
    v_and_b32 v{vaS[0]}, 32, v1
    v_mul_u32_u24 v{vaS[0]}, s35, v{vaS[0]}
    s_lshl_b32 s77, s35, 4
    v_add_u32 v{vaS[0]}, s60, v{vaS[0]}
    v_add_u32 v{vaS[1]}, s77, v{vaS[0]}
    s_cmp_lg_u32 s75, 0
    s_waitcnt vmcnt(0) lgkmcnt(0)
    s_barrier
""")
    stamp(5, 4, 1)
    def ea_writes(lab):
        per_record(lab, lambda k: e(f"    ds_write_b64 v{vR + 3 + 4 * k}, {vr(vR + 4 * k, 2)} offset:{EA}"))
    def first_gathers(lab):
        e(f"""
    ds_read_b128 {vr(vSO, 4)}, v{vaS[0]} offset:{SO}
    ds_read_b128 {vr(vSO + 4, 4)}, v{vaS[1]} offset:{SO}
    ds_read_b128 {vr(vE, 4)}, v{vaS[0]} offset:{SO + 16}
    ds_read_b128 {vr(vE + 4, 4)}, v{vaS[1]} offset:{SO + 16}
    s_bitcmp1_b32 s35, 0
    s_cbranch_scc1 {lab}1
""")
        for a in range(2):
            if a: e(f"{lab}1:")
            e("    s_waitcnt lgkmcnt(2)")
            gathers(vP[a], vSO)
            e("    s_waitcnt lgkmcnt(0)")
            gathers(vP[1 - a], vE)
            if not a: e(f"    s_branch {lab}D")
        e(f"{lab}D:")
    def addresses():
        e(f"""
    v_lshrrev_b32 v8, 4, v{vaS[0]}
    v_add_u32 v8, v8, v{vaN[1]}
    v_add_u32 v9, s35, v8
    ds_read_u8 v8, v8 offset:{FL}
    ds_read_u8 v9, v9 offset:{FL}
    ds_read_b128 {vr(vBw, 4)}, v{vW3a} offset:{W3L}
    s_add_u32 s61, s60, s77
    s_add_u32 s62, s61, s77
    s_add_u32 s63, s62, s77
    s_mov_b64 exec, s[78:79]
""")
        for k in range(4):
            e(f"    v_cmp_ge_u32 vcc, s{60 + k}, v{vE16}\n    s_bcnt1_i32_b64 s{64 + k}, vcc")
        e(f"""
    v_sub_u32 v{vQ16}, v{vQ16}, v{vC4}
    v_add_u32 v{vNp}, v{vNp}, v{vQ16}
    s_mov_b32 exec_hi, 0
    v_mad_u32_u24 v{vaN[1]}, s65, v{vRS}, v{vaN[0]}
    v_mad_u32_u24 v{vaN[0]}, s64, v{vRS}, v{vaN[0]}
    s_not_b64 exec, exec
    v_mad_u32_u24 v{vaN[1]}, s67, v{vRS}, v{vaN[0]}
    v_mad_u32_u24 v{vaN[0]}, s66, v{vRS}, v{vaN[0]}
    s_mov_b64 exec, -1
    s_lshl_b32 s36, s35, 5
    s_lshl1_add_u32 s37, s60, {EA}
    v_mad_u32_u24 v{vaE}, v{vStr}, s36, v{vaE}
    v_mad_u32_u24 v{vaE}, v{vAct}, s37, v{vaE}
    v_mov_b64 {vr(vAc[0], 2)}, 0
    v_mov_b64 {vr(vAc[1], 2)}, 0
    v_mov_b64 {vr(vM, 2)}, 0
    v_mov_b64 {vr(vDn[0], 2)}, {sr(sOne, 2)}
    v_mov_b64 {vr(vDn[1], 2)}, {sr(sOne, 2)}
    s_sub_u32 s34, {NT}, s35
    s_add_u32 s38, s77, {SO - 16 * NT}
    s_sub_u32 s39, s36, {32 * NT}
    s_waitcnt lgkmcnt(0)
    v_cmp_ne_u32 {sr(sFM[0], 2)}, 0, v8
    v_cmp_ne_u32 {sr(sFM[1], 2)}, 0, v9
""")
    def tile_write(src, o):
        for T in range(3):
            if T == 2: e(f"    s_mov_b32 exec_lo, {M9}\n    s_mov_b32 exec_hi, {M9}")
            for h in range(2):
                src(T, h)
            for h in range(2):
                e(f"    ds_write_b64 v{vTa}, {vr(o[0] + 4 * T + 2 * h, 2)} offset:{16 * RS * T + 16 * h + o[1]}")
        e("    s_mov_b64 exec, -1")
    e("    s_cbranch_scc0 K2_FG")
    prio(3)
    xbq = lambda T, s: 8 + 16 * T + 4 * s
    x_reads(108, xbq)
    node_mfma(vU, 92, xbq)
    ea_writes("K2_EAQ")
    e("    s_mov_b64 exec, -1\n    s_nop 0")
    tile_write(lambda T, h: e(f"    v_pk_mul_f32 {vr(vU + 4 * T + 2 * h, 2)}, {vr(vU + 4 * T + 2 * h, 2)}, s[72:73] op_sel_hi:[1,0]"), (vU, 0))
    e("    s_waitcnt lgkmcnt(0)\n    s_barrier")
    def silu_q():
        for r in range(12):
            e(f"    v_exp_f32 v{92 + r}, v{vU + r}")
        for r in range(0, 12, 2):
            e(f"    v_pk_fma_f32 {vr(92 + r, 2)}, {vr(92 + r, 2)}, {KCOP}")
        for r in range(12):
            e(f"    v_rcp_f32 v{92 + r}, v{92 + r}")
        tile_write(lambda T, h: e(f"    v_pk_mul_f32 {vr(92 + 4 * T + 2 * h, 2)}, {vr(92 + 4 * T + 2 * h, 2)}, {vr(vU + 4 * T + 2 * h, 2)}"), (92, 8))
    if OPT["gpos"] == 0: silu_q()
    prio(0)
    first_gathers("K2_GQ")
    prio(OPT["gq2"])
    stamp(11, 4, 1)
    if OPT["gpos"] == 1: silu_q()
    addresses()
    if OPT["gpos"] == 2: silu_q()
    e("    s_branch K2_NOB\nK2_FG:")
    first_gathers("K2_GR")
    stamp(11, 4, 1)
    ea_writes("K2_EAR")
    e("    s_mov_b64 exec, -1")
    addresses()
    e(f"""
    s_barrier
K2_NOB:
    ds_read_b64 {vr(vQ, 2)}, v{vaN[0]}
    ds_read_b64 {vr(vQ + 2, 2)}, v{vaN[1]}
    ds_read2_b64 {vr(vAe, 4)}, v{vaE} offset0:0 offset1:0
    ds_read_b128 {vr(vSO, 4)}, v{vaS[0]} offset:{SO + 32}
    ds_read_b128 {vr(vSO + 4, 4)}, v{vaS[1]} offset:{SO + 32}
    s_mov_b32 s{sFirst}, 0
""")
    for y in range(2):
        e(f"""
    s_lshl_b64 {sr(sFM[y], 2)}, {sr(sFM[y], 2)}, s34
    s_or_b32 s36, s{sFM[y]}, s{sFM[y] + 1}
    s_lshr_b32 s37, s36, 1
    s_or_b32 s{sEV[y]}, s36, s37
""")
    if OPT["cae"]:
        e("    s_cmp_lt_u32 s21, 8\n    s_cbranch_scc1 K2_NOCE")
        conv_addr(76)
        e("K2_NOCE:")
    stamp(12, 4, 1)
    e(f"""
    s_or_b32 s34, s34, 0x10000
    s_bitcmp1_b32 s35, 0
    s_waitcnt vmcnt(8) lgkmcnt(0)
""")
    stamp(6, 4, 1)
    e("    s_cbranch_scc1 K2_PA1")
    for a in range(2):
        if a: e("K2_PA1:")
        for q in range(4): e(mfma4(vD[a], vP[a], q))
        prio(1)
        e(f"    s_cmp_lt_u32 s35, 3\n    s_cbranch_scc1 K2_NGP{a}")
        gathers(vP[a], vSO)
        e(f"K2_NGP{a}:\n    s_nop 0\n{mfma32(vD[a])}")
        if not a: e("    s_branch K2_PAD")
    e(f"""
K2_PAD:
    ds_read_b128 {vr(vSO, 4)}, v{vaS[0]} offset:{SO + 48}
    ds_read_b128 {vr(vSO + 4, 4)}, v{vaS[1]} offset:{SO + 48}
    ds_read2_b64 {vr(vAe, 4)}, v{vaE} offset0:4 offset1:4
""")
    for y in range(2):
        e(f"""
    s_bfe_i32 exec_lo, s{sFM[y]}, s34
    s_bfe_i32 exec_hi, s{sFM[y] + 1}, s34
    ds_read_b64 {vr(vQ + 2 * y, 2)}, v{vaN[y]} offset:{RS}
""")
    e(f"""
    s_mov_b64 exec, -1
    v_mad_i32_i24 v{vaE}, v{vAct}, s39, v{vaE}
    v_add_u32 v{vaS[0]}, s38, v{vaS[0]}
    v_add_u32 v{vaS[1]}, s38, v{vaS[1]}
""")
    prio(PRIO_0)
    def edge_loop(v):
        for Lv in (10, 11, 9, 12, 8, 13, 7, 14, 6, 15, 5, 4, 3, 2, 1):
            e(f"    s_cmp_eq_u32 s35, {Lv}\n    s_cbranch_scc1 K2_{v}T{NT - Lv}")
        e(f"K2_{v}LOOP:")
        for t in range(NT):
            tile(t, v)
    if OPT["unc"]: e(f"    s_cmp_lg_u32 s{sGuard}, 0\n    s_cbranch_scc1 K2_GUARDED")
    edge_loop("")
    xbu = lambda T, s: 32 + 16 * T + 4 * s
    if OPT["unc"] == 2:
        e("K2_LDIV:"); divide(0, True); divide(1, True)
    e(f"""
K2_LDONE:
    s_cmp_ge_u32 s21, 8
    s_cbranch_scc1 K2_LD2
    s_lshl_b32 s36, s21, 12
    s_add_u32 s36, s36, {WUT}
    s_add_u32 s37, s36, {WUB - WUT}
""")
    for s in range(4):
        e(f"    buffer_load_dwordx4 {vr(16 + 4 * s, 4)}, v7, s[4:7], s36 offen offset:{1024 * s}")
    for s in range(4):
        e(f"    buffer_load_dwordx4 {vr(92 + 4 * s, 4)}, v7, s[4:7], s37 offen offset:{1024 * s}")
    e("K2_LD2:")
    for y in range(2):
        flush_adds(y)
    e(f"""
    v_mov_b32 v89, {MORE}
    v_add_f32 v{vM}, v{vM}, v{vM + 1}
    v_cmp_nge_f32 vcc, {f2u(2.0 ** (124 if OPT['unc'] == 2 else 64)):#x}, v{vM}
    ds_read_b32 v89, v89
    s_cbranch_vccnz K2_BIG
K2_BIGB:
""")
    stamp(7, 4, 1)
    e(f"""
    s_cmp_ge_u32 s21, 8
    s_cbranch_scc1 K2_NOU
""")
    x_addr(84); x_reads(84, xbu)
    e(f"""
    v_mul_u32_u24 v{vFR}, {RB}, v6
    v_lshl_add_u32 v{vFR}, v5, 4, v{vFR}
    v_add_u32 v{vFR}, {AGB}, v{vFR}
    v_mul_u32_u24 v90, {RO}, v6
    v_lshl_add_u32 v90, v5, 3, v90
    s_lshl_b32 s36, s21, 5
    s_add_u32 s36, s36, {EA}
    v_add_u32 v90, s36, v90
    v_lshrrev_b32 v88, 4, v0
    v_mul_u32_u24 v91, {RO}, v88
    v_lshl_add_u32 v91, v6, 4, v91
    v_lshlrev_b32 v88, 16, v88
    v_lshl_or_b32 v88, v6, 4, v88
    s_lshl_b32 s36, s20, 8
    v_add_u32 v88, s36, v88
    v_add_u32 v125, 0x200000, v88
    s_waitcnt vmcnt(4)
""")
    node_mfma(vU, 16, xbu)
    e(f"""
    s_cmp_lt_u32 s21, 6
    s_cbranch_scc1 K2_NOCA
""")
    if not OPT['cae']: e('K2_NOU:')
    conv_addr(84)
    if OPT['cae']: e('K2_NOU:')
    e(f"""
K2_NOCA:
    s_waitcnt lgkmcnt(0)
    v_readfirstlane_b32 s{sMoreV}, v89
    s_barrier
""")
    stamp(8, 4, 1)
    e(f"""
    s_cmp_lg_u32 s{sMoreV}, 0
    s_cbranch_scc1 K2_NEXT
    v_mov_b32 v123, {BAD}
    ds_read_b32 v123, v123
    s_cmp_lt_u32 s21, 6
    s_cbranch_scc1 K2_NOCV
""")
    for k in range(4):
        e(f"    ds_read_b128 {vr(16 + 4 * k, 4)}, v{vCA} offset:{AG - QU + 256 * k}\n    ds_read_b64 {vr(8 + 2 * k, 2)}, v{vCA} offset:{256 * k + 8}")
    for k in range(4):
        e(f"    s_waitcnt lgkmcnt({6 - 2 * k})")
        e(f"    v_cvt_f32_f64 v{32 + 2 * k}, {vr(16 + 4 * k, 2)}\n    v_cvt_f32_f64 v{33 + 2 * k}, {vr(18 + 4 * k, 2)}")
        e(f"    v_pk_mul_f32 {vr(8 + 2 * k, 2)}, {vr(8 + 2 * k, 2)}, {vr(vCN, 2)} op_sel_hi:[1,0]")
        e(f"    v_pk_fma_f32 {vr(32 + 2 * k, 2)}, {vr(32 + 2 * k, 2)}, {sr(sScale, 2)}, {vr(8 + 2 * k, 2)} op_sel_hi:[1,0,1]")
        e(f"    v_cvt_pk_bf16_f32 v{40 + k}, v{32 + 2 * k}, v{33 + 2 * k}")
    e(f"""
    ds_write_b128 v{vCW}, v[40:43]
K2_NOCV:
    s_waitcnt lgkmcnt(0)
    v_readfirstlane_b32 s36, v123
    s_barrier
""")
    stamp(13, 4, 1)
    e("    s_cmp_lg_u32 s36, 0\n    s_cbranch_scc1 K2_RESTART\n    s_cmp_ge_u32 s21, 8\n    s_cbranch_scc1 K2_FIN")
    xbf = lambda T, s: 16 + 16 * T + 4 * s
    tmp, outr = 76, 8
    def M(T, s, wait=True):
        if wait: e(f"    s_waitcnt lgkmcnt({11 - 4 * T - s})")
        e(f"    v_mfma_f32_16x16x32_bf16 {vr(vU + 4 * T, 4)}, {vr(92 + 4 * s, 4)}, {vr(xbf(T, s), 4)}, {vr(vU + 4 * T, 4)}")
    def sc_(T):
        for m in (2 * T, 2 * T + 1): e(f"    v_pk_mul_f32 {vr(tmp + 2 * m, 2)}, {vr(vU + 2 * m, 2)}, s[72:73] op_sel_hi:[1,0]")
    def ex_(T, k): e(f"    v_exp_f32 v{tmp + 4 * T + k}, v{tmp + 4 * T + k}")
    def ad_(T):
        for m in (2 * T, 2 * T + 1): e(f"    v_pk_add_f32 {vr(tmp + 2 * m, 2)}, {vr(tmp + 2 * m, 2)}, 1.0 op_sel_hi:[1,0]")
    def rc_(T):
        for k in range(4): e(f"    v_rcp_f32 v{tmp + 4 * T + k}, v{tmp + 4 * T + k}")
    def out_(T):
        for m in (2 * T, 2 * T + 1): e(f"    v_pk_mul_f32 {vr(tmp + 2 * m, 2)}, {vr(tmp + 2 * m, 2)}, {vr(vU + 2 * m, 2)}")
        for m in (2 * T, 2 * T + 1): e(f"    v_cvt_pk_bf16_f32 v{outr + m}, v{tmp + 2 * m}, v{tmp + 2 * m + 1}")
        e(f"    ds_write_b64 v90, {vr(outr + 2 * T, 2)} offset:{16 * RO * T}")
    for T in range(3):
        for s in range(4):
            e(f"    ds_read_b128 {vr(xbf(T, s), 4)}, v{vFR} offset:{16 * RB * T + 64 * s}")
    e("    s_waitcnt vmcnt(0)")
    for s in range(4): M(0, s)
    for s in range(4): M(1, s)
    sc_(0)
    e("    s_waitcnt lgkmcnt(0)")
    for s in range(4): M(2, s, False); ex_(0, s)
    e("    s_nop 0")
    sc_(1)
    for k in range(4): ex_(1, k)
    ad_(0); rc_(0); sc_(2)
    for k in range(4): ex_(2, k)
    out_(0); ad_(1); rc_(1); ad_(2); out_(1); rc_(2); e("    s_nop 0"); out_(2)
    e(f"""
    s_cmp_ge_u32 s21, 2
    s_waitcnt lgkmcnt(0)
    s_barrier
    ds_read_b128 v[16:19], v91 offset:{EA}
    s_cbranch_scc1 K2_O1
    ds_read_b128 v[20:23], v91 offset:{EA + 32 * RO}
    s_waitcnt lgkmcnt(0)
    buffer_store_dwordx4 v[20:23], v125, s[16:19], 0 offen
K2_O1:
    s_waitcnt lgkmcnt(0)
    buffer_store_dwordx4 v[16:19], v88, s[16:19], 0 offen
K2_FIN:
""")
    light1(4, 1)
    if OPT["stamps"]:
        stamp(9, 4, 1); e("    s_waitcnt vmcnt(0)"); stamp(10, 4, 1); stamp_out(4, 1)
    e("K2_END:\n    s_endpgm")
    for t in range(NT - 1):
        for y in range(2):
            event_block(t, y, '')
    e(f"""
K2_TAILBLOCKS:
K2_MORE:
    v_mov_b32 v16, {MORE}
    ds_write_b32 v16, v59
    s_branch K2_MOREB
K2_BIG:
    v_mov_b32 v{vM}, {BAD}
    ds_write_b32 v{vM}, v{vM}
    s_branch K2_BIGB
K2_NEXT:
    v_mov_b32 v123, {BAD}
    ds_read_b32 v123, v123
    s_add_u32 s24, s24, s25
    s_waitcnt vmcnt(0) lgkmcnt(0)
    v_readfirstlane_b32 s36, v123
    s_barrier
    s_cmp_eq_u32 s36, 0
    s_cbranch_scc1 K2_AGAIN
K2_RESTART:
    s_mov_b32 s{sGuard}, 1
    s_mov_b32 s{sScale}, 1.0
    s_mov_b32 s24, 0
    v_mov_b32 v{vNp}, 0
    v_lshlrev_b32 v56, 4, v0
    v_mov_b64 v[8:9], 0
    v_mov_b64 v[10:11], 0
    v_add_u32 v57, {AG}, v56
    ds_write_b128 v57, v[8:11]
    ds_write_b128 v57, v[8:11] offset:16384
    s_cmp_ge_u32 s21, 11
    s_cbranch_scc1 K2_RS1
    ds_write_b128 v57, v[8:11] offset:32768
K2_RS1:
    s_waitcnt vmcnt(0) lgkmcnt(0)
    s_branch K2_AGAIN
K2_REDO:
    s_mov_b32 s25, 4
    s_waitcnt vmcnt(0) lgkmcnt(0)
    s_barrier
K2_AGAIN:
    v_lshlrev_b32 v56, 4, v0
    v_mov_b64 v[8:9], 0
    v_mov_b64 v[10:11], 0
    s_cmp_ge_u32 s21, 2
    s_cbranch_scc1 K2_ROUND
    ds_write_b128 v56, v[8:11] offset:{MISC}
    s_waitcnt lgkmcnt(0)
K2_LAST:
    s_branch K2_ROUND
""")
    if OPT["unc"]:
        e("K2_GUARDED:")
        edge_loop("G")
        e("    s_branch K2_LDONE")
        for t in range(NT - 1):
            for y in range(2):
                event_block(t, y, "G")

def desc(name, vg, sg):
    e(f"""
.p2align 6
.amdhsa_kernel {name}
  .amdhsa_next_free_vgpr {vg}
  .amdhsa_next_free_sgpr {sg}
  .amdhsa_accum_offset {vg}
  .amdhsa_group_segment_fixed_size 0
  .amdhsa_kernarg_size 72
  .amdhsa_user_sgpr_count 2
  .amdhsa_user_sgpr_kernarg_segment_ptr 1
  .amdhsa_system_sgpr_workgroup_id_x 1
.end_amdhsa_kernel
""")

e(f"""
; MPNN edge MLP, N=10000 nodes, E=320000 edges, D=128, De=4 (bf16 in, bf16 out), in two launches.
; launch 1: bins the edges by bucket (dst & 255) into (e_attr, src, node) records, P' = -log2e * x@W1 (bf16),
; launch 2: one workgroup per bucket: counting sort by node in LDS, q = -log2e * x@W2, then per 16 edges x 64 features
; @launch kernel=mpnn_bin_kernel grid=(512,1,1) block=(768,1,1) lds={K1_LDS}
; @launch kernel=mpnn_edge_kernel grid=(256,1,1) block=(1024,1,1) lds={K2_LDS}
.amdgcn_target "amdgcn-amd-amdhsa--gfx950"
""")
kernel1()
kernel2()
e('.section .rodata,"a"')
desc("mpnn_bin_kernel", 80, 96)
desc("mpnn_edge_kernel", 128, 102 if OPT["stamps"] else 96)
FL_ = {0: "", 1: " sc1", 2: " nt", 3: " sc0 sc1", 4: " sc1 nt", 5: " sc0"}
k2at = next(i for i, l in enumerate(L) if l.startswith("mpnn_edge_kernel:"))
for i, l in enumerate(L):
    c = l.split(";")
    fl = None
    if l.strip().startswith("buffer_store") and " off," not in l:
        fl = FL_[(OPT["stp"] if "v[76:79]" in l else OPT["st1"]) if i < k2at else OPT["st2"]]
    elif l.strip().startswith("buffer_load"):
        if i < k2at:
            if any(x in l for x in ("s[24:27]", "s[8:11], s22", "s[32:35]")): fl = " nt" * OPT["nte"]
            elif "s[4:7]" in l: fl = " nt" * OPT["ntx"]
            elif "s[12:15]" in l and "lds" in l: fl = " nt" * OPT["ntw"]
        else:
            if "s[12:15]" in l: fl = " nt" * OPT["ntx2"]
            elif "dwordx3" in l: fl = " nt" * OPT["ntr"]
    if fl:
        body = c[0].rstrip()
        body = body[:-4] + fl + " lds" if body.endswith(" lds") else body + fl
        L[i] = body + ("   ;" + c[1] if len(c) > 1 else "")
open(sys.argv[1], "w").write("\n".join(L) + "\n")
```

```python
import sys, struct, math

def f2u(x): return struct.unpack("<I", struct.pack("<f", x))[0]

OPT = dict(stg=0, gl=0, nrs=1, unc=2, pp=0, agz=0, qo=0, bdp=2, cae=0, cpf1=0, f16=0, uw3=0, hold=0, hold2=0, otl=0, stp=0, lay=0, k1p=0, k1o=1, cpf2=0, agl=0, t2m=1, olds=1, pf2=0, rab=0, gq=0, gq2=3, gp=1, stg1=0, stg3=0, qpre=0, eal=1, ash=0, dst1=1, fin=1, wpf=0, cpf=6, ps=2, bdl=1, rb=288, st1=0, st2=0, nte=1, ntx=0, ntw=0, ntx2=0, ntr=0, light=0, g1late=0, pf=0, gpos=0, nom4=0, nom32=0, mpos=0, nochk=0, prio1=0, dbg=0, safe=0, stamps=0, prio=1, nogather=0, nocore=0, nolds=0, nomfma=0, noflush=0)
for a in sys.argv[2:]:
    k, v = a.split("="); OPT[k] = int(v)

N, E = 10000, 320000
NB = 256
EPW = 1250
PT    = 0
DESC  = 0x280000
REC   = 0x2C0000
RSTR  = 15488
W2F   = 0x690000
WUT   = W2F + 0x8000
WUB   = WUT + 0x8000
W3F   = WUB + 0x8000
STAMP = W3F + 0x800
WSEND = STAMP + (0x100000 if OPT["stamps"] or OPT["light"] else 0)
NL2E = f2u(-1.4426950408889634)
KC   = f2u(1.0 / (2.0 ** 31 * math.log(2.0)))
NSC  = f2u(-2.0 ** -31)

L = []
def e(s=""):
    for ln in s.strip("\n").split("\n"):
        L.append(ln)
def vr(a, n): return f"v[{a}:{a + n - 1}]" if n > 1 else f"v{a}"
def sr(a, n): return f"s[{a}:{a + n - 1}]" if n > 1 else f"s{a}"

def srd(s, nrec, w3=0x20000):
    e(f"    s_mov_b32 s{s + 2}, {nrec:#x}\n    s_mov_b32 s{s + 3}, {w3:#x}")

def scan64(v):
    for c in ("row_shr:1 row_mask:0xf", "row_shr:2 row_mask:0xf", "row_shr:4 row_mask:0xf", "row_shr:8 row_mask:0xf",
              "row_bcast:15 row_mask:0xa", "row_bcast:31 row_mask:0xc"):
        e(f"    s_nop 1\n    v_add_u32_dpp v{v}, v{v}, v{v} {c} bank_mask:0xf")

NST = 16
def light0():
    if OPT["light"]: e("    s_memrealtime s[80:81]")
def light1(srd_s, kern):
    if not OPT["light"]: return
    e(f"""
    s_waitcnt vmcnt(0)
    s_memrealtime s[82:83]
    s_mov_b32 s{srd_s + 2}, {WSEND:#x}
    s_lshl_b32 s90, s2, 4
    s_add_u32 s90, s90, s21
    s_lshl_b32 s90, s90, 3
    s_add_u32 s90, s90, {STAMP + kern * 0x80000}
    s_mov_b64 exec, 1
    s_waitcnt lgkmcnt(0)
    v_mov_b32 v2, s80
    v_mov_b32 v3, s82
    buffer_store_dwordx2 v[2:3], off, s[{srd_s}:{srd_s + 3}], s90
""")
def dbg(slot):
    if not OPT["dbg"]: return
    e(f"    s_memrealtime s[{80 + 2 * slot}:{81 + 2 * slot}]")
def dbg_out(kern, wv, base, n, lab):
    if not OPT["dbg"]: return
    e(f"""
    s_waitcnt vmcnt(0)
    s_memrealtime s[{80 + 2 * (n - 1)}:{81 + 2 * (n - 1)}]
    s_cmp_lg_u32 s2, 200
    s_cbranch_scc1 {lab}
    s_cmp_lg_u32 s21, {wv}
    s_cbranch_scc1 {lab}
    s_load_dwordx2 s[92:93], s[0:1], 56
    s_waitcnt lgkmcnt(0)
    s_add_u32 s92, s92, {512 * (1 - kern)}
    s_addc_u32 s93, s93, 0
    s_mov_b32 s94, 256
    s_mov_b32 s95, 0x20000
    s_mov_b64 exec, 1
""")
    for i in range(n):
        e(f"    v_mov_b32 v127, s{80 + 2 * i}\n    buffer_store_dword v127, off, s[92:95], 0 offset:{4 * (base + i)}\n    s_waitcnt vmcnt(0)")
    e(f"{lab}:")
SMAP = {}
def stamp(i, srd_s, kern):
    if not OPT["stamps"]: return
    sel = [0, 1, 2, 3, 4, 5, 6] if kern == 0 else {1: [0, 1, 3, 4, 5, 11, 6, 7, 8, 9, 10], 2: [0, 2, 4, 5, 12, 6, 7, 8, 13, 9, 10], 3: [0] + list(range(101, 111)), 4: [0, 5, 11, 12, 6, 201, 202, 203, 204, 207, 208], 5: [0, 8, 13, 301, 302, 303, 304, 305, 306, 9, 10], 6: [0, 5, 401, 402, 403, 11, 404, 407, 6, 408]}[OPT["stamps"]]
    if i not in sel: return
    r = 80 + 2 * sel.index(i)
    SMAP[(kern, i)] = r
    if i == 0: e("    s_memrealtime s[76:77]" if kern == 0 else "    s_memrealtime vcc\n    s_waitcnt lgkmcnt(0)\n    v_writelane_b32 v127, vcc_lo, 14")
    e(f"    s_memtime s[{r}:{r + 1}]")
def stamp_out(srd_s, kern):
    if not OPT["stamps"]: return
    vs, va = (2, 3) if kern == 0 else (127, 125)
    e(f"    s_memrealtime vcc\n    s_waitcnt lgkmcnt(0)\n    v_writelane_b32 v{vs}, vcc_lo, 15")
    if kern == 0: e("    v_writelane_b32 v2, s76, 14")
    for (k, i), r in SMAP.items():
        if k == kern: e(f"    v_writelane_b32 v{vs}, s{r}, {i % 100}")
    e(f"""
    s_mov_b64 exec, 0xffff
    s_lshl_b32 s3, s2, 4
    s_add_u32 s3, s3, s21
    s_lshl_b32 s3, s3, 6
    s_add_u32 s3, s3, {STAMP + kern * 0x80000}
    v_mbcnt_lo_u32_b32 v{va}, -1, 0
    v_lshlrev_b32 v{va}, 2, v{va}
    buffer_store_dword v{vs}, v{va}, s[{srd_s}:{srd_s + 3}], s3 offen
    s_mov_b64 exec, -1
""")

K1_CNT, K1_ST, K1_STG = 0, 1024, 2048
K1_WL, K1_XL = 0, 32768
K1_LDS = 66 * 1024
def gemm_issue():
    e(f"""
    s_lshr_b32 s20, s2, 4
    s_lshl_b32 s20, s20, 3
    s_and_b32 s3, s2, 7
    s_or_b32 s20, s20, s3
""")
    if OPT["cpf1"]:
        e(f"""
    s_cmp_lg_u32 s21, 0
    s_cbranch_scc1 K1_NOT
    s_cmp_ge_u32 s20, {OPT["cpf1"]}
    s_cbranch_scc1 K1_NOT
    s_getpc_b64 s[24:25]
K1_PC1:
    v_lshlrev_b32 v8, 6, v1
    v_min_u32 v8, K1_PC - K1_PC1 + 64, v8
    v_mov_b32 v9, s25
    v_add_co_u32 v8, vcc, s24, v8
    s_nop 1
    v_addc_co_u32 v9, vcc, 0, v9, vcc
    global_load_dword v34, v[8:9], off
K1_NOT:
""")
    e(f"""
    v_lshrrev_b32 v2, 4, v1                 ; g
    v_and_b32 v3, 15, v1                    ; n / i
    s_cmp_ge_u32 s20, 209
    s_cbranch_scc1 K1_JOBS
    ; x -> LDS: rows 4w + g, chunk (l%16) ^ (row & 15)
    v_lshrrev_b32 v5, 4, v0
    v_xor_b32 v6, v5, v0
    v_and_b32 v6, 15, v6
    s_mul_i32 s25, s20, 48
    v_add_u32 v5, s25, v5
    v_lshlrev_b32 v5, 8, v5
    v_lshl_or_b32 v5, v6, 4, v5
    s_lshl_b32 s27, s21, 10
    s_add_u32 s28, s27, {K1_XL}
    s_mov_b32 m0, s28
    ; W1 -> LDS: row (l/16), chunk (l%16) ^ ((l/16)<<1) ^ (8 if bit 3 of the row)
    v_lshlrev_b32 v4, 1, v2
    v_xor_b32 v4, v4, v3
    v_lshlrev_b32 v4, 4, v4
    v_lshl_or_b32 v4, v2, 8, v4
    s_lshl_b32 s28, s21, 6
    s_and_b32 s28, s28, 0x80
    v_xor_b32 v4, s28, v4
    s_waitcnt lgkmcnt(0)
""")
    srd(4, N * 256)
    srd(12, 128 * 256)
    stamp(6, 16, 0)
    e("    buffer_load_dwordx4 v5, s[4:7], 0 offen lds")
    for m in range(3):
        if m == 2:
            e("    s_cmp_ge_u32 s21, 8\n    s_cbranch_scc1 K1_DMAD")
        e(f"""
    s_mov_b32 m0, s27
    s_nop 0
    buffer_load_dwordx4 v4, s[12:15], s27 offen lds
""")
        if m < 2: e("    s_add_u32 s27, s27, 12288")

def kernel1():
    e("""
.text
.globl mpnn_bin_kernel
.p2align 8
.type mpnn_bin_kernel,@function
mpnn_bin_kernel:
    s_load_dwordx4 s[8:11], s[0:1], 16
    s_load_dwordx4 s[4:7], s[0:1], 0        ; x, e_attr
    s_load_dwordx4 s[12:15], s[0:1], 32
    s_load_dwordx2 s[16:17], s[0:1], 64     ; ws
    s_cmp_ge_u32 s2, 512
    s_cbranch_scc1 K1_END
    v_lshrrev_b32 v2, 6, v0
    v_and_b32 v1, 63, v0
    v_readfirstlane_b32 s21, v2
    s_and_b32 s20, s2, 7
    s_lshl_b32 s20, s20, 5
    s_lshr_b32 s3, s2, 4
    s_or_b32 s20, s20, s3
    s_lshr_b32 s3, s2, 5
    s_xor_b32 s3, s3, s2
""")
    stamp(0, 16, 0); light0()
    dbg(0)
    if OPT["k1o"]:
        e("    s_bitcmp0_b32 s3, 3\n    s_cbranch_scc1 K1_BIN")
        gemm_issue()
        e("    s_branch K1_DMAD\nK1_BIN:")
    else:
        e("    s_bitcmp1_b32 s3, 3\n    s_cbranch_scc1 K1_GEMM")
    e("""
    ; ---------------- binning workgroup (waves 0..9) ----------------
    s_cmp_ge_u32 s21, 10
    s_cbranch_scc1 K1_END
""" + ("    s_setprio 3\n" if OPT["k1p"] else "") + """    s_mul_i32 s22, s20, 5000                ; byte offset of this workgroup's src/dst slice
    s_lshl_b32 s23, s22, 1                  ; e_attr slice
    v_lshlrev_b32 v3, 3, v0
    v_lshlrev_b32 v4, 4, v0
    v_cmp_gt_u32 s[44:45], 625, v0
""".replace("v_cmp_gt_u32 s[44:45], 625, v0", "v_cmp_gt_u32 vcc, 625, v0"))
    e("    s_mov_b32 s26, %#x\n    s_mov_b32 s27, 0x20000\n    s_mov_b64 s[44:45], vcc\n    s_mov_b64 exec, vcc\n    s_waitcnt lgkmcnt(0)\n    s_mov_b32 s24, s10\n    s_mov_b32 s25, s11" % (E * 4))
    stamp(6, 16, 0)
    e("    buffer_load_dwordx2 v[6:7], v3, s[24:27], s22 offen      ; dst")
    srd(8, E * 4)
    e("    s_mov_b32 s32, s6\n    s_mov_b32 s33, s7"); srd(32, E * 8)
    def se():
        e("""
    buffer_load_dwordx2 v[8:9], v3, s[8:11], s22 offen       ; src
    buffer_load_dwordx4 v[10:13], v4, s[32:35], s23 offen
""")
    if not OPT["dst1"]: se()
    e(f"""
    s_mov_b64 exec, -1
    v_mov_b64 v[20:21], 0
    v_mov_b64 v[22:23], 0
    s_cmp_lg_u32 s21, 0
    s_cbranch_scc1 K1_NOZ
    ds_write_b128 v4, v[20:23] offset:{K1_CNT}
K1_NOZ:
    s_waitcnt lgkmcnt(0)
    s_barrier
    s_mov_b64 exec, s[44:45]
""")
    if OPT["dst1"]: se()
    e("    s_mov_b64 exec, -1\n    v_mov_b32 v24, 1\n    v_lshlrev_b32 v5, 4, v1")
    srd(16, WSEND)
    e(f"""
    s_mul_i32 s38, s20, {RSTR}
    s_add_u32 s38, s38, {REC}
    s_add_u32 s39, s38, 10240
    s_mov_b64 exec, s[44:45]
    s_waitcnt vmcnt(2)
""")
    stamp(1, 16, 0)
    dbg(1)
    e(f"""
    v_lshlrev_b32 v14, 2, v6
    v_lshlrev_b32 v15, 2, v7
    v_and_b32 v14, 0x3fc, v14
    v_and_b32 v15, 0x3fc, v15
    ds_add_rtn_u32 v16, v14, v24 offset:{K1_CNT}
    ds_add_rtn_u32 v17, v15, v24 offset:{K1_CNT}
    v_lshrrev_b32 v6, 8, v6
    v_lshrrev_b32 v7, 8, v7
    v_lshlrev_b32 v6, 26, v6
    v_lshlrev_b32 v7, 26, v7
    s_mov_b64 exec, -1
    s_waitcnt lgkmcnt(0)
    s_barrier
""")
    stamp(2, 16, 0)
    e(f"""
    ds_read_b128 v[20:23], v5 offset:{K1_CNT}
    s_waitcnt lgkmcnt(0)
    v_add_u32 v25, v20, v21
    v_add_u32 v26, v25, v22
    v_add_u32 v27, v26, v23
    s_nop 1
    v_add_u32_dpp v28, v27, v27 row_shr:1 row_mask:0xf bank_mask:0xf bound_ctrl:1
""")
    for c in ("row_shr:2 row_mask:0xf", "row_shr:4 row_mask:0xf", "row_shr:8 row_mask:0xf", "row_bcast:15 row_mask:0xa", "row_bcast:31 row_mask:0xc"):
        e(f"    s_nop 1\n    v_add_u32_dpp v28, v28, v28 {c} bank_mask:0xf")
    e(f"""
    v_sub_u32 v28, v28, v27
    v_add_u32 v29, v28, v20
    v_add_u32 v30, v28, v25
    v_add_u32 v31, v28, v26
    ds_write_b128 v5, v[28:31] offset:{K1_ST}
    ds_read_b32 v18, v14 offset:{K1_ST}
    ds_read_b32 v19, v15 offset:{K1_ST}
    s_waitcnt vmcnt(1)
    v_lshl_or_b32 v8, v8, 3, v6
    v_lshl_or_b32 v9, v9, 3, v7
    s_mov_b64 exec, s[44:45]
    s_waitcnt lgkmcnt(0)
    v_add_u32 v18, v18, v16
    v_add_u32 v19, v19, v17
    v_mul_u32_u24 v18, 12, v18
    v_mul_u32_u24 v19, 12, v19
    ds_write_b32 v18, v8 offset:{K1_STG + 8}
    ds_write_b32 v19, v9 offset:{K1_STG + 8}
    v_add_u32 v18, {K1_STG}, v18
    v_add_u32 v19, {K1_STG}, v19
    s_waitcnt vmcnt(0)
    ds_write2_b32 v18, v10, v11 offset0:0 offset1:1
    ds_write2_b32 v19, v12, v13 offset0:0 offset1:1
    s_mov_b64 exec, -1
    s_cmp_lg_u32 s21, 9
    s_cbranch_scc1 K1_NOD
    v_lshl_or_b32 v32, v20, 16, v28
    v_lshl_or_b32 v33, v21, 16, v29
    v_lshl_or_b32 v34, v22, 16, v30
    v_lshl_or_b32 v35, v23, 16, v31
    s_lshl_b32 s36, s20, 4
    s_add_u32 s36, s36, {DESC}
    v_and_b32 v36, 7, v1
    v_lshrrev_b32 v37, 3, v1
    v_lshl_or_b32 v36, v36, 3, v37
    v_lshlrev_b32 v36, 12, v36
    buffer_store_dwordx4 v[32:35], v36, s[16:19], s36 offen
K1_NOD:
    s_waitcnt lgkmcnt(0)
    s_barrier
""")
    stamp(3, 16, 0)
    e(f"""
    ds_read_b128 v[20:23], v4 offset:{K1_STG}
    s_cmp_ge_u32 s21, 5
    s_cbranch_scc1 K1_C1
    ds_read_b128 v[24:27], v4 offset:{K1_STG + 10240}
    s_waitcnt lgkmcnt(0)
    buffer_store_dwordx4 v[24:27], v4, s[16:19], s39 offen
K1_C1:
    s_waitcnt lgkmcnt(0)
    buffer_store_dwordx4 v[20:23], v4, s[16:19], s38 offen
""")
    light1(16, 0)
    if OPT["stamps"]:
        stamp(4, 16, 0); e("    s_waitcnt vmcnt(0)"); stamp(5, 16, 0); stamp_out(16, 0)
    e(f"""
    s_endpgm
""")
    if not OPT["k1o"]:
        e("K1_GEMM:")
        gemm_issue()
    e("K1_DMAD:")
    srd(16, N * 256)
    e(f"""
    s_lshr_b32 s23, s21, 2
    s_and_b32 s24, s21, 3
    v_lshrrev_b32 v24, 2, v3                ; r'
    v_and_b32 v25, 3, v3                    ; c'
    v_and_b32 v26, 1, v2
    v_lshl_or_b32 v26, v26, 2, v24          ; h(k)
    v_lshl_add_u32 v27, v2, 3, v24          ; 8g + r'
    v_lshlrev_b32 v27, 8, v27
    v_lshl_or_b32 v27, v25, 3, v27
    s_lshl_b32 s27, s24, 1
    v_xor_b32 v26, s27, v26
    v_lshl_add_u32 v28, v26, 5, v27
    v_xor_b32 v29, 32, v28
    ; x fragments
    v_xor_b32 v30, v2, v3
    v_lshlrev_b32 v30, 4, v30
    v_lshl_or_b32 v30, v3, 8, v30
    s_lshl_b32 s27, s23, 12
    s_add_u32 s27, s27, {K1_XL}
    v_add_u32 v30, s27, v30
    v_xor_b32 v31, 64, v30
    v_xor_b32 v32, 0x80, v30
    v_xor_b32 v33, 0xc0, v30
    s_lshl_b32 s26, s23, 4
    s_add_u32 s25, s25, s26
    v_add_u32 v5, s25, v3
    v_lshlrev_b32 v5, 8, v5
    v_lshl_or_b32 v5, v2, 4, v5
    s_lshl_b32 s27, s24, 6
    v_add_u32 v5, s27, v5
    s_mov_b32 s28, {NL2E:#x}
    s_waitcnt vmcnt(0)
    s_barrier
""")
    stamp(3, 16, 0)
    for s in range(4):
        e(f"    ds_read_b128 {vr(8 + 4 * s, 4)}, v{30 + s}")
        for f in range(2):
            for u2 in range(2):
                e(f"    ds_read_b64_tr_b16 {vr(36 + 16 * f + 4 * s + 2 * u2, 2)}, v{28 + f} offset:{s * 8192 + u2 * 1024}")
    for s in range(4):
        for f in range(2):
            left = 20 - (5 * s + 3 + 2 * f)
            e(f"    s_waitcnt lgkmcnt({min(left, 15)})")
            c = "0" if s == 0 else vr(68 + 4 * f, 4)
            e(f"    v_mfma_f32_16x16x32_bf16 {vr(68 + 4 * f, 4)}, {vr(36 + 16 * f + 4 * s, 4)}, {vr(8 + 4 * s, 4)}, {c}")
    e("    s_nop 5")
    for f in range(2):
        for h in range(2):
            r = 68 + 4 * f + 2 * h
            e(f"    v_pk_mul_f32 {vr(r, 2)}, {vr(r, 2)}, s[28:29] op_sel_hi:[1,0]")
        for h in range(2):
            r = 68 + 4 * f + 2 * h
            e(f"    v_cvt_pk_bf16_f32 v{76 + 2 * f + h}, v{r}, v{r + 1}")
    e(f"    buffer_store_dwordx4 v[76:79], v5, s[16:19], 0 offen")
    light1(16, 0)
    if OPT["stamps"]:
        srd(16, WSEND); stamp(4, 16, 0); e("    s_waitcnt vmcnt(0)"); stamp(5, 16, 0); stamp_out(16, 0)
    e(f"""
    s_endpgm
K1_JOBS:
    s_sub_u32 s23, s20, 209
    s_mul_i32 s23, s23, 12
    s_add_u32 s23, s23, s21
    s_waitcnt lgkmcnt(0)
""")
    srd(16, WSEND)
    e(f"""
    s_cmp_ge_u32 s23, 96
    s_cbranch_scc1 K1_JOB2
    s_lshr_b32 s24, s23, 5
    s_bfe_u32 s25, s23, 0x30002             ; f
    s_and_b32 s26, s23, 3                   ; s
    s_cmp_eq_u32 s24, 0
    s_cselect_b32 s28, s12, s14
    s_cselect_b32 s29, s13, s15
    s_mov_b32 s30, {256 * 256}
    s_mov_b32 s31, 0x20000
    ; column
    s_lshl_b32 s33, s25, 4                  ; 16 f
    v_add_u32 v4, s33, v3
    v_lshlrev_b32 v4, 1, v4
    s_cmp_eq_u32 s24, 2
    s_cselect_b32 s32, 10, 11
    s_movk_i32 s33, 1024
    s_cmovk_i32 s33, 4096
    s_cselect_b32 s34, {NSC:#x}, 1.0
    v_lshlrev_b32 v5, s32, v2
    v_add_u32 v4, v4, v5
    s_lshl_b32 s40, s26, 13
    s_cmp_eq_u32 s24, 1
    s_cselect_b32 s36, 0, 0x8000
    s_add_u32 s40, s40, s36
    s_add_u32 s41, s40, 512
    s_add_u32 s42, s40, s33
    s_add_u32 s43, s42, 512
""")
    for m in range(8):
        e(f"    buffer_load_ushort v{8 + m}, v4, s[28:31], s{40 + m // 2} offen offset:{(m & 1) * 256}")
    e(f"""
    s_lshl_b32 s37, s23, 10
    s_add_u32 s37, s37, {W2F}
    v_lshlrev_b32 v6, 4, v1
    s_mov_b32 s38, 0x07060302
    s_waitcnt vmcnt(0)
""")
    for m in range(8):
        e(f"    v_lshlrev_b32 v{8 + m}, 16, v{8 + m}\n    v_mul_f32 v{8 + m}, s34, v{8 + m}")
    for m in range(4):
        e(f"    v_perm_b32 v{16 + m}, v{9 + 2 * m}, v{8 + 2 * m}, s38")
    e(f"""
    buffer_store_dwordx4 v[16:19], v6, s[16:19], s37 offen
    s_endpgm
K1_JOB2:
    s_cmp_ge_u32 s23, 98
    s_cbranch_scc1 K1_JOB3
    s_sub_u32 s24, s23, 96                  ; c
    s_mov_b32 s14, {260 * 256}
    s_mov_b32 s15, 0x20000
    v_and_b32 v2, 31, v1
    v_lshrrev_b32 v3, 5, v1
    v_lshl_or_b32 v2, v2, 1, v3             ; p & 63
    v_and_b32 v4, 0x23, v2
    v_bfe_u32 v5, v2, 2, 1
    v_lshl_or_b32 v4, v5, 4, v4
    v_bfe_u32 v5, v2, 3, 2
    v_lshl_or_b32 v4, v5, 2, v4             ; feature & 63
    v_lshlrev_b32 v4, 1, v4
    s_lshl_b32 s25, s24, 7
    s_add_u32 s25, s25, {256 * 256}
""")
    for d in range(4):
        e(f"    buffer_load_ushort v{8 + d}, v4, s[12:15], s25 offen offset:{d * 256}")
    e(f"""
    s_lshl_b32 s37, s24, 10
    s_add_u32 s37, s37, {W3F}
    v_lshlrev_b32 v6, 4, v1
    s_mov_b32 s34, {NL2E:#x}
    s_waitcnt vmcnt(0)
""")
    for d in range(4):
        e(f"    v_lshlrev_b32 v{8 + d}, 16, v{8 + d}\n    v_mul_f32 v{8 + d}, s34, v{8 + d}")
    e("""
    v_cvt_pk_bf16_f32 v16, v8, v9
    v_cvt_pk_bf16_f32 v17, v10, v11
    v_lshlrev_b32 v12, 16, v16
    v_and_b32 v13, 0xffff0000, v16
    v_lshlrev_b32 v14, 16, v17
    v_and_b32 v15, 0xffff0000, v17
    v_sub_f32 v8, v8, v12
    v_sub_f32 v9, v9, v13
    v_sub_f32 v10, v10, v14
    v_sub_f32 v11, v11, v15
    v_cvt_pk_bf16_f32 v18, v8, v9
    v_cvt_pk_bf16_f32 v19, v10, v11
    buffer_store_dwordx4 v[16:19], v6, s[16:19], s37 offen
    s_endpgm
K1_JOB3:
    s_cmp_ge_u32 s20, 224
    s_cbranch_scc1 K1_SPARE
    s_cmp_lg_u32 s23, 98
    s_cbranch_scc1 K1_END
    v_mov_b32 v8, 0
    v_lshlrev_b32 v6, 2, v1
""")
    e(f"""
    s_mov_b32 s37, {PT + N * 256}
    buffer_store_dword v8, v6, s[16:19], s37 offen
K1_END:
    s_endpgm
K1_SPARE:
""")
    if OPT["cpf"]:
        e(f"""
    s_getpc_b64 s[24:25]
K1_PC:
    s_bfe_u32 s22, s20, 0x20003
    s_mul_i32 s22, s22, 12
    s_add_u32 s22, s22, s21
    s_mul_i32 s22, s22, {OPT["cpf"] * 64}
    v_lshl_add_u32 v2, v1, 6, s22
    v_min_u32 v2, K2_LAST - mpnn_edge_kernel, v2
    v_add_u32 v2, mpnn_edge_kernel - K1_PC, v2
    v_mov_b32 v3, s25
    v_add_co_u32 v2, vcc, s24, v2
    s_nop 1
    v_addc_co_u32 v3, vcc, 0, v3, vcc
    s_bfm_b64 exec, {OPT["cpf"]}, 0
    global_load_dword v4, v[2:3], off
""")
    e("    s_endpgm")

RS = 1040
RB, RO = 288, 272
CAP = 2048
MISC = 0
ZR, CNT, MORE, BAD, FL = 0, 768, 1024, 1028, 1088
SO = 2048
EA = SO + CAP * 4
W3L = EA + CAP * 8
QU = W3L + 2048
AG = QU + 41 * RS
XL = (AG + 2 * 16384 + 11 * 1024 + 255) // 256 * 256
AGB = XL + 12288
K2_LDS = AGB + 48 * RB
PADV = N * 8
S16MAX = (CAP // 4 - 8) * 16
NT = 16
NK = 6
vSO, vP, vD, vE, vAe, vBw, vQ, vNp, vAc, vI = 8, (16, 24), (32, 92), 48, 64, 68, 72, 126, (80, 82), 84
vaS, vaE, vAct, vaN = (86, 87), 88, 89, (90, 91)
vU, vM, vDn = 108, (120 if OPT['unc'] == 2 else 76), (76, 78)
vR, vN4, vTa, vStr, vRS, vW3a = 60, tuple(range(19, 25)), 56, 57, 124, 125
vC4, vQ16, vE16, vS16 = 120, 121, 122, 123
vCA, vCW, vCN, vFR = 120, 121, 122, 124
sM = [40 + 2 * k for k in range(NK)]
sFM, sEV = (28, 30), (32, 33)
sFirst, sMoreV, sMM, sGuard, sScale, sOne = 56, 57, 58, 68, 70, 52
M9 = "0x01ff01ff"
KCOP = "s[26:27], s[26:27] op_sel_hi:[1,0,0] clamp"
PRIO_0, PRIO_AT = 2, {NT - 4: 1, NT - 1: 0}

def prio(n): e(f"    s_setprio {n}")

def divide(y, last=False):
    t = vE + 8 * y + 4
    e(f"""
    v_rcp_f32 v{t}, v{vDn[y]}
    v_rcp_f32 v{t + 1}, v{vDn[y] + 1}
    {f"v_pk_add_f32 {vr(vM, 2)}, {vr(vM, 2)}, {vr(vDn[y], 2)}" if last or not OPT["nrs"] else "s_nop 0"}
    v_pk_mul_f32 {vr(vAc[y], 2)}, {vr(vAc[y], 2)}, {vr(t, 2)}
    v_pk_fma_f32 {vr(vM, 2)}, {vr(vAc[y], 2)}, {vr(vAc[y], 2)}, {vr(vM, 2)}
""")

def flush_adds(y):
    t = vE + 8 * y
    e(f"""
    v_cvt_f64_f32 {vr(t, 2)}, v{vAc[y]}
    v_cvt_f64_f32 {vr(t + 2, 2)}, v{vAc[y] + 1}
    ds_add_f64 v{vaN[y]}, {vr(t, 2)} offset:{AG - QU}
    ds_add_f64 v{vaN[y]}, {vr(t + 2, 2)} offset:{AG - QU + 8}
""")

def exec_bit(y, t):
    e(f"    s_bfe_i32 exec_lo, s{sFM[y]}, {0x10000 | t:#x}\n    s_bfe_i32 exec_hi, s{sFM[y] + 1}, {0x10000 | t:#x}")

def event_block(t, y, v):
    e(f"K2_{v}EV{t}_{y}:")
    exec_bit(y, t)
    e(f"    s_cbranch_execz K2_{v}EQ{t}_{y}")
    if OPT["unc"] == 2 and not v:
        divide(y)
        if not OPT["nrs"]: e(f"    v_mov_b64 {vr(vDn[y], 2)}, {sr(sOne, 2)}")
    flush_adds(y)
    e(f"""
    v_add_u32 v{vaN[y]}, {RS}, v{vaN[y]}
    v_mov_b64 {vr(vAc[y], 2)}, 0
K2_{v}EQ{t}_{y}:
""")
    if t + 2 < NT:
        exec_bit(y, t + 1)
        e(f"    ds_read_b64 {vr(vQ + 2 * y, 2)}, v{vaN[y]} offset:{RS}")
    e(f"    s_mov_b64 exec, -1\n    s_branch K2_{v}EB{t}_{y}")

def gather_lines(dst, adr):
    out = []
    for q in range(4):
        for y in range(2):
            a = adr + 4 * y + q
            pre = f"    v_min_u32 v{a}, {PADV}, v{a}\n    v_and_b32 v{a}, -8, v{a}\n" if OPT["safe"] else ""
            out.append(pre + f"    buffer_load_dword v{dst + 2 * q + y}, v{a}, s[8:11], 0 offen")
    return out
def gathers(dst, adr):
    for l in gather_lines(dst, adr): e(l)

def mfma4(D, P, q): return f"    v_mfma_f32_4x4x4_16b_bf16 {vr(D + 4 * q, 4)}, {vr(vI, 2)}, {vr(P + 2 * q, 2)}, {vr(vQ, 4)}"
def mfma32(D): return f"    v_mfma_f32_32x32x16_bf16 {vr(D, 16)}, {vr(vAe, 4)}, {vr(vBw, 4)}, {vr(D, 16)}"

def core_lines(D, guarded):
    Ee = vE
    def p(r): return vr(r, 2)
    ex = [f"    v_exp_f32 v{Ee + k}, v{D + k}" for k in range(16)]
    if not guarded and OPT["unc"] == 2:
        rest = []
        for q in range(4):
            Do = vDn if (q % 2 == 0 or not OPT["pp"]) else (122, 124)
            Dw = vDn if (q % 2 == 1 or not OPT["pp"]) else (122, 124)
            n1 = [f"    v_pk_fma_f32 {p(vAc[y])}, {p(vAc[y])}, {p(Ee + 4 * q + 2 * y)}, {p(vAc[y])}" for y in range(2)]
            n2 = [f"    v_pk_fma_f32 {p(vAc[y])}, {p(D + 4 * q + 2 * y)}, {p(Do[y])}, {p(vAc[y])}" for y in range(2)]
            dd = [f"    v_pk_fma_f32 {p(Dw[y])}, {p(Do[y])}, {p(Ee + 4 * q + 2 * y)}, {p(Do[y])}" for y in range(2)]
            rest += (n1 + dd + n2) if OPT["pp"] else (n1 + n2 + dd)
        return ex, [], rest
    if guarded:
        sc = [f"    v_pk_fma_f32 {p(Ee + 2 * m)}, {p(Ee + 2 * m)}, {KCOP}" for m in range(8)]
        seq = [
            lambda o: f"v_pk_mul_f32 {p(D + o)}, {p(D + o)}, {p(Ee + o + 4)}",
            lambda o: f"v_pk_mul_f32 {p(D + o + 8)}, {p(D + o + 8)}, {p(Ee + o + 12)}",
            lambda o: f"v_pk_fma_f32 {p(D + o)}, {p(D + o + 4)}, {p(Ee + o)}, {p(D + o)}",
            lambda o: f"v_pk_fma_f32 {p(D + o + 8)}, {p(D + o + 12)}, {p(Ee + o + 8)}, {p(D + o + 8)}",
            lambda o: f"v_pk_mul_f32 {p(Ee + o)}, {p(Ee + o)}, {p(Ee + o + 4)}",
            lambda o: f"v_pk_mul_f32 {p(Ee + o + 8)}, {p(Ee + o + 8)}, {p(Ee + o + 12)}",
        ]
    else:
        sc = [f"    v_pk_add_f32 {p(Ee + o + j)}, {p(Ee + o + j)}, 1.0 op_sel_hi:[1,0]" for j in (4, 12) for o in (0, 2)]
        seq = [
            lambda o: f"v_pk_fma_f32 {p(D + o + 4)}, {p(D + o + 4)}, {p(Ee + o)}, {p(D + o + 4)}",
            lambda o: f"v_pk_fma_f32 {p(D + o + 12)}, {p(D + o + 12)}, {p(Ee + o + 8)}, {p(D + o + 12)}",
            lambda o: f"v_pk_fma_f32 {p(Ee + o)}, {p(Ee + o)}, {p(Ee + o + 4)}, {p(Ee + o + 4)}",
            lambda o: f"v_pk_fma_f32 {p(Ee + o + 8)}, {p(Ee + o + 8)}, {p(Ee + o + 12)}, {p(Ee + o + 12)}",
            lambda o: f"v_pk_fma_f32 {p(D + o)}, {p(D + o)}, {p(Ee + o + 4)}, {p(D + o + 4)}",
            lambda o: f"v_pk_fma_f32 {p(D + o + 8)}, {p(D + o + 8)}, {p(Ee + o + 12)}, {p(D + o + 12)}",
        ]
    seq += [
        lambda o: f"v_pk_mul_f32 {p(Ee + o + 4)}, {p(Ee + o)}, {p(Ee + o + 8)}",
        lambda o: f"v_pk_mul_f32 {p(D + o)}, {p(D + o)}, {p(Ee + o + 8)}",
        lambda o: f"v_rcp_f32 v{Ee + o + 4}, v{Ee + o + 4}",
        lambda o: f"v_rcp_f32 v{Ee + o + 5}, v{Ee + o + 5}",
        lambda o: f"v_pk_fma_f32 {p(D + o)}, {p(D + o + 8)}, {p(Ee + o)}, {p(D + o)}",
        lambda o: f"v_pk_fma_f32 {p(vAc[o // 2])}, {p(D + o)}, {p(Ee + o + 4)}, {p(vAc[o // 2])}",
    ]
    rest = ["    " + fn(o) for fn in seq for o in (0, 2)]
    if not guarded:
        rest.insert(16, f"    v_pk_fma_f32 {p(vM)}, {p(Ee + 4)}, {p(Ee + 6)}, {p(vM)}")
    return ex, sc, rest

def tile(t, v):
    a, r = t % 2, NT - t
    ex, sc, rest = core_lines(vD[a], v == 'G' or not OPT['unc'])
    Dn, Pn = vD[1 - a], vP[1 - a]
    e(f"K2_{v}T{t}:")
    if t in PRIO_AT: prio(PRIO_AT[t])
    pk = sc + rest
    if r >= 2:
        mp = OPT["mpos"]
        k0 = {5: 0, 6: 4}.get(mp, 2)
        seq = ex[:k0] + [f"    s_waitcnt vmcnt({8 if r >= 3 else 0}) lgkmcnt(0)"]
        for q in range(4): seq += [mfma4(Dn, Pn, q), ex[k0 + q]]
        seq += ex[k0 + 4:k0 + 7] + [mfma32(Dn)]
        k = k0 + 7
        mem = []
        if r >= 4: mem += gather_lines(Pn, vSO)
        if r >= 5: mem += [f"    ds_read_b128 {vr(vSO + 4 * y, 4)}, v{vaS[y]} offset:{16 * (t + 4)}" for y in range(2)]
        if r >= 3: mem += [f"    ds_read2_b64 {vr(vAe, 4)}, v{vaE} offset0:{4 * (t + 2)} offset1:{4 * (t + 2)}"]
        if mp in (0, 5): seq += ex[k:k + 5] + mem + ex[k + 5:] + pk
        elif mp in (1, 6): seq += ex[k:] + mem + pk
        elif mp == 2: seq += ex[k:] + pk[:12] + mem + pk[12:]
        elif mp == 3: seq += ex[k:] + pk + mem
        elif mp == 4: seq += ex[k:k + 5] + mem[:4] + ex[k + 5:] + pk[:6] + mem[4:8] + pk[6:12] + mem[8:] + pk[12:]
    else:
        seq = ex + pk
    for l in seq: e(l)
    if not v: stamp(100 + t - 5, 4, 1)
    if r >= 2:
        for y in range(2):
            e(f"    s_bitcmp1_b32 s{sEV[y]}, {t}\n    s_cbranch_scc1 K2_{v}EV{t}_{y}\nK2_{v}EB{t}_{y}:")

def x_addr(xa):
    e(f"""
    v_xor_b32 v{xa}, v5, v6
    v_lshlrev_b32 v{xa}, 4, v{xa}
    v_lshl_or_b32 v{xa}, v6, 8, v{xa}
    v_add_u32 v{xa}, {XL}, v{xa}
    v_xor_b32 v{xa + 1}, 64, v{xa}
    v_xor_b32 v{xa + 2}, 0x80, v{xa}
    v_xor_b32 v{xa + 3}, 0xc0, v{xa}
""")
def x_reads(xa, xb):
    for s in range(4):
        for T in range(3):
            e(f"    ds_read_b128 {vr(xb(T, s), 4)}, v{xa + s} offset:{4096 * T}")
def node_mfma(acc, W, xb):
    for s in range(4):
        for T in range(3):
            e(f"    s_waitcnt lgkmcnt({11 - 3 * s - T})")
            c = "0" if s == 0 else vr(acc + 4 * T, 4)
            e(f"    v_mfma_f32_16x16x32_bf16 {vr(acc + 4 * T, 4)}, {vr(W + 4 * s, 4)}, {vr(xb(T, s), 4)}, {c}")
def per_record(lab, fn):
    for k in range(NK):
        e(f"    s_mov_b64 exec, {sr(sM[k], 2)}")
        if k >= 2: e(f"    s_cbranch_execz {lab}")
        fn(k)
    e(f"{lab}:")

def conv_addr(t):
    e(f"""
    v_cvt_f32_u32 v{t}, v{vNp}
    s_lshl_b32 s36, s21, 2
    s_sub_u32 s36, s36, 24
    v_mul_f32 v{t}, 0xbe800000, v{t}
    s_mul_i32 s37, s36, {RS}
    s_add_u32 s37, s37, {QU}
    v_add_u32 v{vCA}, s37, v7
    s_mul_i32 s37, s36, {RB}
    s_add_u32 s37, s37, {AGB}
    v_lshl_add_u32 v{vCW}, v1, 2, s37
""")
    for k in range(4):
        e(f"    v_readlane_b32 s{60 + 2 * k}, v{t}, s36")
        if k < 3: e("    s_add_u32 s36, s36, 1")

def kernel2():
    e(f"""
.text
.globl mpnn_edge_kernel
.p2align 8
.type mpnn_edge_kernel,@function
mpnn_edge_kernel:
    s_load_dwordx2 s[4:5], s[0:1], 64       ; ws
    s_load_dwordx2 s[12:13], s[0:1], 0      ; x
    s_load_dwordx2 s[16:17], s[0:1], 48     ; out
    s_cmp_ge_u32 s2, 256
    s_cbranch_scc1 K2_END
    v_lshrrev_b32 v2, 6, v0
    s_and_b32 s34, s2, 63
    v_readfirstlane_b32 s21, v2
    s_lshl_b32 s34, s34, 10
    s_lshr_b32 s3, s2, 6
    s_add_u32 s34, s34, s3
    s_lshl2_add_u32 s34, s34, {DESC}
    s_mov_b32 s6, {WSEND:#x}
    s_mov_b32 s7, 0x20000
    v_and_b32 v4, -4, v0
    v_lshlrev_b32 v4, 2, v4
""")
    stamp(0, 4, 1); light0()
    e(f"""
    v_lshrrev_b32 v8, 4, v0
    v_xor_b32 v9, v8, v0
    v_and_b32 v9, 15, v9
    s_waitcnt lgkmcnt(0)
    buffer_load_dword v2, v4, s[4:7], s34 offen
    s_and_b32 s20, s2, 7
    s_bfe_u32 s35, s2, 0x30003
    s_lshl3_add_u32 s20, s20, s35
    s_lshl2_add_u32 s20, s20, s3
    s_cmp_ge_u32 s21, 11
    s_cbranch_scc1 K2_NOX
    s_lshl_b32 s35, s20, 8
    v_lshl_add_u32 v8, v8, 16, s35
    s_lshl_b32 s36, s21, 10
    s_add_u32 s36, s36, {XL}
    s_mov_b32 m0, s36
""")
    srd(12, N * 256)
    e(f"""
    v_lshl_add_u32 v8, v9, 4, v8
    buffer_load_dwordx4 v8, s[12:15], 0 offen lds
K2_NOX:
    v_lshrrev_b32 v3, 2, v0
    v_mul_u32_u24 v3, {RSTR}, v3
    v_and_b32 v4, 3, v0
    s_mov_b32 s24, 0
    s_mov_b32 s25, {4 * NK}
    s_mov_b32 s{sFirst}, 1
    v_lshlrev_b32 v56, 4, v0
    v_mov_b64 v[8:9], 0
    v_mov_b64 v[10:11], 0
    s_cmp_ge_u32 s21, 2
    s_cbranch_scc1 K2_NOZ0
    ds_write_b128 v56, v[8:11] offset:{MISC}
K2_NOZ0:
""")
    def ag16(lab):
        e(f"""
    v_add_u32 v57, {AG}, v56
    ds_write_b128 v57, v[8:11]
    ds_write_b128 v57, v[8:11] offset:16384
    s_cmp_ge_u32 s21, 11
    s_cbranch_scc1 {lab}
    ds_write_b128 v57, v[8:11] offset:32768
""")
    if OPT["agz"] == 0:
        ag16("K2_NOZ3")
        e("    s_waitcnt vmcnt(1)\n    s_branch K2_ROUND\nK2_NOZ3:\n    s_waitcnt vmcnt(0)")
    else:
        if OPT["agz"] == 1:
            e(f"    s_cmp_ge_u32 s21, 8\n    s_cbranch_scc1 K2_NOZ3\n    v_add_u32 v57, {AG}, v56")
            for i in range(5): e(f"    ds_write_b128 v57, v[8:11] offset:{8192 * i}")
            e(f"    s_cmp_ge_u32 s21, 3\n    s_cbranch_scc1 K2_NOZ3\n    ds_write_b128 v57, v[8:11] offset:{8192 * 5}\nK2_NOZ3:")
        e("    s_cmp_lt_u32 s21, 11\n    s_cbranch_scc1 K2_WD1\n    s_waitcnt vmcnt(0)\nK2_WD1:\n    s_waitcnt vmcnt(1)")
    e(f"""
K2_ROUND:
""")
    prio(2)
    stamp(1, 4, 1)
    e(f"""
    v_lshrrev_b32 v16, 16, v2               ; count
    v_and_b32 v17, 0xffff, v2               ; start
    v_subrev_u32 v16, s24, v16
    v_add3_u32 v17, v17, s24, v4
    v_min_i32 v18, s25, v16
    v_mad_u32_u24 v17, v17, 12, v3
    v_sub_u32 v18, v18, v4
    s_mov_b32 s34, {REC}
""")
    for k in range(4): e(f"    v_cmp_lt_i32 {sr(sM[k], 2)}, {4 * k}, v18")
    def ld(k):
        e(f"    buffer_load_dwordx3 {vr(vR + 4 * k, 3)}, v17, s[4:7], s34 offen offset:{48 * k}")
        if 4 <= k + 1 < NK: e(f"    v_cmp_lt_i32 {sr(sM[k + 1], 2)}, {4 * (k + 1)}, v18")
    per_record("K2_RLD", ld)
    e("    s_mov_b64 exec, -1")
    stamp(2, 4, 1)
    prio(0)
    e(f"""
    v_and_b32 v1, 63, v0
    v_cmp_lt_i32 {sr(sMM, 2)}, s25, v16
    v_lshlrev_b32 v7, 4, v1                 ; lane*16
    s_mov_b32 s75, 0
""")
    if not OPT["bdp"]: e("    s_waitcnt lgkmcnt(3)\n    s_barrier")
    e(f"""
    ds_write_b128 v56, v[8:11] offset:{EA}
    s_cmp_ge_u32 s21, 8
    s_cbranch_scc1 K2_NOSO
    v_mov_b32 v12, {PADV}
    v_mov_b32 v13, v12
    v_mov_b32 v14, v12
    v_mov_b32 v15, v12
    ds_write_b128 v56, v[12:15] offset:{SO}
    {"s_mov_b32 s75, s%d" % sFirst if OPT["qo"] else "s_branch K2_NOW2"}
K2_NOSO:
    {"" if OPT["qo"] else "s_mov_b32 s75, s%d                ; 1: this wave computes q in this round" % sFirst}
""")
    def w2_loads():
        e(f"    s_lshl_b32 s74, s21, 12\n    s_add_u32 s74, s74, {W2F - (0 if OPT['qo'] else 8 * 4096)}")
        for s in range(4):
            e(f"    buffer_load_dwordx4 {vr(92 + 4 * s, 4)}, v7, s[4:7], s74 offen offset:{1024 * s}")
    if OPT["bdp"] != 2:
        e("    s_cmp_eq_u32 s75, 0\n    s_cbranch_scc1 K2_NOW2")
        w2_loads()
    e(f"""
K2_NOW2:
    s_cmp_eq_u32 s{sFirst}, 0
    s_cbranch_scc1 K2_SETD
""")
    if OPT["agz"] == 2:
        ag16("K2_NOZ3"); e("K2_NOZ3:")
    e(f"""
    v_lshrrev_b32 v5, 4, v1                 ; g
    v_and_b32 v6, 15, v1                    ; n
    v_mov_b32 v{vNp}, 0
    s_cmp_lt_u32 s20, 16
    s_cselect_b32 s22, 40, 39
    s_bfm_b64 s[78:79], s22, 0
    s_and_b32 s23, s21, 1
    s_lshr_b32 s76, s21, 1
    s_mov_b32 s26, {KC:#x}
    s_mov_b32 s{sGuard}, 0
    s_mov_b32 s{sOne}, {f2u(2.0 ** -64):#x}
    s_mov_b32 s{sOne + 1}, s{sOne}
    s_mov_b32 s{sScale}, {f2u(2.0 ** 31 * math.log(2.0)) if OPT['unc'] else f2u(1.0):#x}
    s_mov_b32 s72, {NL2E:#x}
    s_lshl_b32 s39, s23, 7
    s_add_u32 s8, s4, s39
    s_addc_u32 s9, s5, 0
    s_or_b32 s9, s9, 0x80000000
    s_mov_b32 s10, 0x10000
    s_mov_b32 s11, 0x00c00000
""")
    srd(16, N * 256)
    e(f"""
K2_SETD:
    v_mov_b32 v59, 4
    v_lshlrev_b32 v58, 2, v1
    v_mov_b32 v{vRS}, {RS}
    v_and_b32 v{vaN[1]}, 31, v1
    s_lshl_b32 s36, s23, 9
    s_add_u32 s37, s36, {QU}
    v_lshl_add_u32 v{vaN[0]}, v{vaN[1]}, 4, s37
    v_lshl_add_u32 v{vW3a}, s36, 1, v7
    s_movk_i32 s36, 0x3f80
    s_mov_b32 s37, 0
    v_and_b32 v16, 0x30, v7
    v_lshlrev_b64 {vr(vI, 2)}, v16, s[36:37]
    v_mov_b32 v{vS16}, 0
    v_mov_b64 {vr(vaE, 2)}, 0
    v_mov_b32 v{vStr}, 0
    s_mov_b64 exec, s[78:79]
    v_mov_b32 v{vS16}, 16
    s_mov_b32 exec_lo, 0x55555555
    s_mov_b32 exec_hi, 0xaaaaaaaa
    v_and_b32 v{vaE}, 0x18, v1
    v_mov_b32 v{vAct}, 1
    v_bfe_u32 v{vStr}, v1, 1, 2
""")
    if not OPT["bdp"]: e(f"    s_mov_b64 exec, {sr(sMM, 2)}\n    s_cbranch_execnz K2_MORE\nK2_MOREB:")
    e(f"""
    s_cmp_eq_u32 s75, 0
    s_cbranch_scc1 K2_W0
    s_mov_b64 exec, -1
""")
    x_addr(108)
    e(f"""
    s_bfe_u32 s36, s21, 0x20001
    s_lshl3_add_u32 s36, s36, s23
    s_lshl_b32 s36, s36, 5
    s_add_u32 s36, s36, {QU}
    v_mul_u32_u24 v{vTa}, {RS}, v6
    v_lshl_add_u32 v{vTa}, v5, 6, v{vTa}
    v_add_u32 v{vTa}, s36, v{vTa}
    s_cmp_eq_u32 s75, 0
""")
    if OPT["bdp"]:
        e("K2_W0:")
        prio(2)
        e(f"""
    s_waitcnt lgkmcnt({(5, 8, 5)[OPT['agz']]})
    s_barrier
    s_mov_b64 exec, {sr(sMM, 2)}
    s_cbranch_execnz K2_MORE
K2_MOREB:
    s_cbranch_scc1 K2_W1
""")
        if OPT["bdp"] == 2:
            e("    s_mov_b64 exec, -1")
            w2_loads()
        e(f"""
    s_waitcnt vmcnt(4)
    s_branch K2_RECS
K2_W1:
    s_waitcnt vmcnt(0)
K2_RECS:
""")
    else:
        prio(2)
        e("    s_waitcnt vmcnt(4)\n    s_branch K2_RECS\nK2_W0:")
        prio(2)
        e("    s_waitcnt vmcnt(0)\nK2_RECS:")
    stamp(3, 4, 1)
    per_record("K2_HISTD", lambda k: e(f"""
    v_lshrrev_b32 v{vN4[k]}, 24, v{vR + 2 + 4 * k}
    ds_add_rtn_u32 v{vR + 3 + 4 * k}, v{vN4[k]}, v59 offset:{CNT}
    v_and_b32 v{vR + 2 + 4 * k}, 0x3ffffff, v{vR + 2 + 4 * k}
"""))
    e(f"""
    s_mov_b64 exec, -1
    s_cmp_lg_u32 s76, 0
    s_cbranch_scc1 K2_NOW3
    s_lshl_b32 s34, s23, 10
    s_add_u32 s35, s34, {W3L}
    s_add_u32 s34, s34, {W3F}
    s_mov_b32 m0, s35
    s_nop 0
    buffer_load_dwordx4 v7, s[4:7], s34 offen lds
K2_NOW3:
""")
    if OPT["pf2"]:
        e(f"""
    s_sub_u32 s34, s21, 2
    s_cmp_ge_u32 s34, 6
    s_cbranch_scc1 K2_NOPF2
    s_lshr_b32 s35, s2, 3
    s_mul_i32 s35, s35, 80000
    s_mul_i32 s34, s34, {OPT["pf2"] * 1024}
    s_add_u32 s34, s34, s35
""" + "".join(f"    buffer_load_dwordx4 v[116:119], v7, s[4:7], s34 offen offset:{1024 * i}\n" for i in range(OPT["pf2"])) + "K2_NOPF2:")
    e(f"""
    s_waitcnt lgkmcnt(0)
    s_barrier
""")
    stamp(4, 4, 1)
    e(f"""
    ds_read_b32 v{vC4}, v58 offset:{CNT}
    s_waitcnt lgkmcnt(0)
    v_add_u32 v{vQ16}, 12, v{vC4}
    v_and_b32 v{vQ16}, -16, v{vQ16}
    v_max_u32 v{vQ16}, v{vS16}, v{vQ16}     ; 16*quads
    s_nop 1
    v_add_u32_dpp v{vE16}, v{vQ16}, v{vQ16} row_shr:1 row_mask:0xf bank_mask:0xf bound_ctrl:1
""")
    for c in ("row_shr:2 row_mask:0xf", "row_shr:4 row_mask:0xf", "row_shr:8 row_mask:0xf", "row_bcast:15 row_mask:0xa", "row_bcast:31 row_mask:0xc"):
        e(f"    s_nop 1\n    v_add_u32_dpp v{vE16}, v{vE16}, v{vE16} {c} bank_mask:0xf")
    e(f"""
    v_sub_u32 v{vS16}, v{vE16}, v{vQ16}
    v_readlane_b32 s34, v{vE16}, 63
""")
    for k in range(NK):
        if k >= 3: e(f"    s_cmp_eq_u64 {sr(sM[k], 2)}, 0\n    s_cbranch_scc1 K2_BPD")
        e(f"    ds_bpermute_b32 v{vN4[k]}, v{vN4[k]}, v{vS16}")
    e(f"""
K2_BPD:
    s_cmp_gt_u32 s34, {S16MAX}
    s_cbranch_scc1 K2_REDO
    s_add_u32 s34, s34, 48
    s_lshr_b32 s35, s34, 9
    s_bfe_u32 s34, s34, 0x30006
    s_mul_i32 s37, s76, s35
    s_waitcnt lgkmcnt(0)
""")
    per_record("K2_GEO", lambda k: e(f"""
    v_add_u32 v{vN4[k]}, v{vN4[k]}, v{vR + 3 + 4 * k}
    ds_write_b32 v{vN4[k]}, v{vR + 2 + 4 * k} offset:{SO}
    v_add_u32 v{vR + 3 + 4 * k}, v{vN4[k]}, v{vN4[k]}
"""))
    e(f"""
    s_cmp_lg_u32 s21, {8 * OPT['qo']}
    s_cbranch_scc1 K2_NOFL
    s_mov_b64 exec, s[78:79]
    v_lshrrev_b32 v16, 4, v{vE16}
    ds_write_b8 v16, v59 offset:{FL - 1}
K2_NOFL:
    s_min_u32 s38, s76, s34
    s_add_u32 s37, s37, s38
    s_lshl_b32 s60, s37, 6                  ; stream (0,X)
    s_cmp_lt_u32 s76, s34
    s_addc_u32 s35, s35, 0
    s_mov_b64 exec, -1
    v_and_b32 v{vaS[0]}, 32, v1
    v_mul_u32_u24 v{vaS[0]}, s35, v{vaS[0]}
    s_lshl_b32 s77, s35, 4
    v_add_u32 v{vaS[0]}, s60, v{vaS[0]}
    v_add_u32 v{vaS[1]}, s77, v{vaS[0]}
""")
    if OPT["pf2"]: e("    s_sub_u32 s36, s21, 2\n    s_cmp_lt_u32 s36, 6\n    s_cbranch_scc1 K2_NOVM")
    e("    s_waitcnt vmcnt(0)\nK2_NOVM:")
    if OPT["uw3"]:
        e(f"""
    s_cmp_eq_u32 s75, s{sFirst}
    s_cbranch_scc1 K2_NOUT
    s_lshl_b32 s36, s21, 12
    s_add_u32 s36, s36, {WUT}
""")
        for s in range(4):
            e(f"    buffer_load_dwordx4 {vr(92 + 4 * s, 4)}, v7, s[4:7], s36 offen offset:{1024 * s}")
        e("K2_NOUT:")
    e(f"""
    s_cmp_lg_u32 s75, 0
    s_waitcnt lgkmcnt(0)
    s_barrier
""")
    stamp(5, 4, 1)
    def ea_writes(lab):
        per_record(lab, lambda k: e(f"    ds_write_b64 v{vR + 3 + 4 * k}, {vr(vR + 4 * k, 2)} offset:{EA}"))
    def first_gathers(lab, mid=None):
        e(f"""
    ds_read_b128 {vr(vSO, 4)}, v{vaS[0]} offset:{SO}
    ds_read_b128 {vr(vSO + 4, 4)}, v{vaS[1]} offset:{SO}
    ds_read_b128 {vr(vE, 4)}, v{vaS[0]} offset:{SO + 16}
    ds_read_b128 {vr(vE + 4, 4)}, v{vaS[1]} offset:{SO + 16}
    s_bitcmp1_b32 s35, 0
    s_cbranch_scc1 {lab}1
""")
        for a in range(2):
            if a: e(f"{lab}1:")
            e("    s_waitcnt lgkmcnt(2)")
            gathers(vP[a], vSO)
            e("    s_waitcnt lgkmcnt(0)")
            if mid: mid(a)
            gathers(vP[1 - a], vE)
            if not a: e(f"    s_branch {lab}D")
        e(f"{lab}D:")
    def addresses():
        e(f"""
    v_lshrrev_b32 v8, 4, v{vaS[0]}
    v_add_u32 v8, v8, v{vaN[1]}
    v_add_u32 v9, s35, v8
    ds_read_u8 v8, v8 offset:{FL}
    ds_read_u8 v9, v9 offset:{FL}
    ds_read_b128 {vr(vBw, 4)}, v{vW3a} offset:{W3L}
    s_add_u32 s61, s60, s77
    s_add_u32 s62, s61, s77
    s_add_u32 s63, s62, s77
    s_mov_b64 exec, s[78:79]
""")
        for k in range(4):
            e(f"    v_cmp_ge_u32 vcc, s{60 + k}, v{vE16}\n    s_bcnt1_i32_b64 s{64 + k}, vcc")
        e(f"""
    v_sub_u32 v{vQ16}, v{vQ16}, v{vC4}
    v_add_u32 v{vNp}, v{vNp}, v{vQ16}
    s_mov_b32 exec_hi, 0
    v_mad_u32_u24 v{vaN[1]}, s65, v{vRS}, v{vaN[0]}
    v_mad_u32_u24 v{vaN[0]}, s64, v{vRS}, v{vaN[0]}
    s_not_b64 exec, exec
    v_mad_u32_u24 v{vaN[1]}, s67, v{vRS}, v{vaN[0]}
    v_mad_u32_u24 v{vaN[0]}, s66, v{vRS}, v{vaN[0]}
    s_mov_b64 exec, -1
    s_lshl_b32 s36, s35, 5
    s_lshl1_add_u32 s37, s60, {EA}
    v_mad_u32_u24 v{vaE}, v{vStr}, s36, v{vaE}
    v_mad_u32_u24 v{vaE}, v{vAct}, s37, v{vaE}
    v_mov_b64 {vr(vAc[0], 2)}, 0
    v_mov_b64 {vr(vAc[1], 2)}, 0
    v_mov_b64 {vr(vM, 2)}, 0
    v_mov_b64 {vr(vDn[0], 2)}, {sr(sOne, 2)}
    v_mov_b64 {vr(vDn[1], 2)}, {sr(sOne, 2)}
    s_sub_u32 s34, {NT}, s35
    s_add_u32 s38, s77, {SO - 16 * NT}
    s_sub_u32 s39, s36, {32 * NT}
    s_waitcnt lgkmcnt(0)
    v_cmp_ne_u32 {sr(sFM[0], 2)}, 0, v8
    v_cmp_ne_u32 {sr(sFM[1], 2)}, 0, v9
""")
    def tile_write(src, o):
        for T in range(3):
            if T == 2: e(f"    s_mov_b32 exec_lo, {M9}\n    s_mov_b32 exec_hi, {M9}")
            for h in range(2):
                src(T, h)
            for h in range(2):
                e(f"    ds_write_b64 v{vTa}, {vr(o[0] + 4 * T + 2 * h, 2)} offset:{16 * RS * T + 16 * h + o[1]}")
        e("    s_mov_b64 exec, -1")
    e("    s_cbranch_scc0 K2_FG")
    prio(3)
    xbq = lambda T, s: 8 + 16 * T + 4 * s
    x_reads(108, xbq)
    node_mfma(vU, 92, xbq)
    stamp(401, 4, 1)
    ea_writes("K2_EAQ")
    e("    s_mov_b64 exec, -1\n    s_nop 0")
    tile_write(lambda T, h: e(f"    v_pk_mul_f32 {vr(vU + 4 * T + 2 * h, 2)}, {vr(vU + 4 * T + 2 * h, 2)}, s[72:73] op_sel_hi:[1,0]"), (vU, 0))
    stamp(402, 4, 1)
    e("    s_waitcnt lgkmcnt(0)")
    stamp(407, 4, 1)
    e("    s_barrier")
    stamp(403, 4, 1)
    def silu_q():
        for r in range(12):
            e(f"    v_exp_f32 v{92 + r}, v{vU + r}")
        for r in range(0, 12, 2):
            e(f"    v_pk_fma_f32 {vr(92 + r, 2)}, {vr(92 + r, 2)}, {KCOP}")
        for r in range(12):
            e(f"    v_rcp_f32 v{92 + r}, v{92 + r}")
        tile_write(lambda T, h: e(f"    v_pk_mul_f32 {vr(92 + 4 * T + 2 * h, 2)}, {vr(92 + 4 * T + 2 * h, 2)}, {vr(vU + 4 * T + 2 * h, 2)}"), (92, 8))
    if OPT["gpos"] == 0: silu_q()
    stamp(408, 4, 1)
    prio(0)
    first_gathers("K2_GQ")
    prio(OPT["gq2"])
    stamp(11, 4, 1)
    if OPT["gpos"] == 1: silu_q()
    addresses()
    if OPT["gpos"] == 2: silu_q()
    e("    s_branch K2_NOB\nK2_FG:")
    if OPT["stg"]:
        e(f"    s_cmp_lt_u32 s21, {OPT['stg']}\n    s_cbranch_scc1 K2_EARLY")
        ea_writes("K2_EAL")
        e("    s_mov_b64 exec, -1")
        addresses()
        stamp(407, 4, 1)
        e("    s_barrier")
        prio(OPT["gl"])
        first_gathers("K2_GL")
        prio(2)
        stamp(11, 4, 1)
        e("    s_branch K2_NOB\nK2_EARLY:")
        def mid(a):
            ea_writes(f"K2_EAR{a}")
            e("    s_mov_b64 exec, -1")
        first_gathers("K2_GR", mid)
        stamp(11, 4, 1)
    else:
        first_gathers("K2_GR")
        stamp(11, 4, 1)
        ea_writes("K2_EAR")
        e("    s_mov_b64 exec, -1")
    stamp(404, 4, 1)
    addresses()
    stamp(407, 4, 1)
    if OPT["uw3"]:
        e(f"    s_cmp_lt_u32 s21, {OPT['uw3']}\n    s_cbranch_scc1 K2_U1\n    s_barrier\nK2_U1:\n    s_cmp_eq_u32 s{sFirst}, 0\n    s_cbranch_scc1 K2_U2")
        xbw = lambda T, s: ((8, 12, 32, 36), (40, 44, 48, 52), (56, 60, 64, 72))[T][s]
        x_addr(122); x_reads(122, xbw)
        e("    s_waitcnt vmcnt(16)")
        node_mfma(vU, 92, xbw)
        e(f"K2_U2:\n    s_cmp_ge_u32 s21, {OPT['uw3']}\n    s_cbranch_scc1 K2_NOB")
    e(f"""
    s_barrier
K2_NOB:
    ds_read_b64 {vr(vQ, 2)}, v{vaN[0]}
    ds_read_b64 {vr(vQ + 2, 2)}, v{vaN[1]}
    ds_read2_b64 {vr(vAe, 4)}, v{vaE} offset0:0 offset1:0
    ds_read_b128 {vr(vSO, 4)}, v{vaS[0]} offset:{SO + 32}
    ds_read_b128 {vr(vSO + 4, 4)}, v{vaS[1]} offset:{SO + 32}
    s_mov_b32 s{sFirst}, 0
""")
    for y in range(2):
        e(f"""
    s_lshl_b64 {sr(sFM[y], 2)}, {sr(sFM[y], 2)}, s34
    s_or_b32 s36, s{sFM[y]}, s{sFM[y] + 1}
    s_lshr_b32 s37, s36, 1
    s_or_b32 s{sEV[y]}, s36, s37
""")
    if OPT["cae"]:
        e("    s_cmp_lt_u32 s21, 8\n    s_cbranch_scc1 K2_NOCE")
        conv_addr(76)
        e("K2_NOCE:")
    stamp(12, 4, 1)
    e(f"""
    s_or_b32 s34, s34, 0x10000
    s_bitcmp1_b32 s35, 0
    s_waitcnt vmcnt(8) lgkmcnt(0)
""")
    stamp(6, 4, 1)
    e("    s_cbranch_scc1 K2_PA1")
    for a in range(2):
        if a: e("K2_PA1:")
        for q in range(4): e(mfma4(vD[a], vP[a], q))
        prio(1)
        e(f"    s_cmp_lt_u32 s35, 3\n    s_cbranch_scc1 K2_NGP{a}")
        gathers(vP[a], vSO)
        e(f"K2_NGP{a}:\n    s_nop 0\n{mfma32(vD[a])}")
        if not a: e("    s_branch K2_PAD")
    e(f"""
K2_PAD:
    ds_read_b128 {vr(vSO, 4)}, v{vaS[0]} offset:{SO + 48}
    ds_read_b128 {vr(vSO + 4, 4)}, v{vaS[1]} offset:{SO + 48}
    ds_read2_b64 {vr(vAe, 4)}, v{vaE} offset0:4 offset1:4
""")
    for y in range(2):
        e(f"""
    s_bfe_i32 exec_lo, s{sFM[y]}, s34
    s_bfe_i32 exec_hi, s{sFM[y] + 1}, s34
    ds_read_b64 {vr(vQ + 2 * y, 2)}, v{vaN[y]} offset:{RS}
""")
    e(f"""
    s_mov_b64 exec, -1
    v_mad_i32_i24 v{vaE}, v{vAct}, s39, v{vaE}
    v_add_u32 v{vaS[0]}, s38, v{vaS[0]}
    v_add_u32 v{vaS[1]}, s38, v{vaS[1]}
""")
    prio(PRIO_0)
    def edge_loop(v):
        for Lv in (10, 11, 9, 12, 8, 13, 7, 14, 6, 15, 5, 4, 3, 2, 1):
            e(f"    s_cmp_eq_u32 s35, {Lv}\n    s_cbranch_scc1 K2_{v}T{NT - Lv}")
        e(f"K2_{v}LOOP:")
        for t in range(NT):
            tile(t, v)
    if OPT["unc"]: e(f"    s_cmp_lg_u32 s{sGuard}, 0\n    s_cbranch_scc1 K2_GUARDED")
    edge_loop("")
    xbu = lambda T, s: 32 + 16 * T + 4 * s
    if OPT["unc"] == 2:
        e("K2_LDIV:"); divide(0, True); divide(1, True)
    e(f"""
K2_LDONE:
    s_cmp_ge_u32 s21, 8
    s_cbranch_scc1 K2_LD2
    s_lshl_b32 s36, s21, 12
    s_add_u32 s36, s36, {WUT}
    s_add_u32 s37, s36, {WUB - WUT}
""")
    for s in range(0 if OPT["uw3"] else 4):
        e(f"    buffer_load_dwordx4 {vr(16 + 4 * s, 4)}, v7, s[4:7], s36 offen offset:{1024 * s}")
    for s in range(4):
        e(f"    buffer_load_dwordx4 {vr(92 + 4 * s, 4)}, v7, s[4:7], s37 offen offset:{1024 * s}")
    e("K2_LD2:")
    for y in range(2):
        flush_adds(y)
    e(f"""
    v_mov_b32 v89, {MORE}
    v_add_f32 v{vM}, v{vM}, v{vM + 1}
    v_cmp_nge_f32 vcc, {f2u(2.0 ** (124 if OPT['unc'] == 2 else 64)):#x}, v{vM}
    ds_read_b32 v89, v89
    s_cbranch_vccnz K2_BIG
K2_BIGB:
""")
    stamp(7, 4, 1)
    e(f"""
    s_cmp_ge_u32 s21, 8
    s_cbranch_scc1 K2_NOU
""")
    if not OPT['uw3']: x_addr(84); x_reads(84, xbu)
    e(f"""
    v_mul_u32_u24 v{vFR}, {RB}, v6
    v_lshl_add_u32 v{vFR}, v5, 4, v{vFR}
    v_add_u32 v{vFR}, {AGB}, v{vFR}
    v_mul_u32_u24 v90, {RO}, v6
    v_lshl_add_u32 v90, v5, 3, v90
    s_lshl_b32 s36, s21, 5
    s_add_u32 s36, s36, {EA}
    v_add_u32 v90, s36, v90
    v_lshrrev_b32 v88, 4, v0
    v_mul_u32_u24 v91, {RO}, v88
    v_lshl_add_u32 v91, v6, 4, v91
    v_lshlrev_b32 v88, 16, v88
    v_lshl_or_b32 v88, v6, 4, v88
    s_lshl_b32 s36, s20, 8
    v_add_u32 v88, s36, v88
    v_add_u32 v125, 0x200000, v88
""")
    if not OPT["uw3"]:
        e("    s_waitcnt vmcnt(4)")
        node_mfma(vU, 16, xbu)
    e(f"""
    s_cmp_lt_u32 s21, 6
    s_cbranch_scc1 K2_NOCA
""")
    if not OPT['cae']: e('K2_NOU:')
    conv_addr(84)
    if OPT['cae']: e('K2_NOU:')
    e(f"""
K2_NOCA:
    s_waitcnt lgkmcnt(0)
    v_readfirstlane_b32 s{sMoreV}, v89
    s_barrier
""")
    stamp(8, 4, 1)
    e(f"""
    s_cmp_lg_u32 s{sMoreV}, 0
    s_cbranch_scc1 K2_NEXT
    v_mov_b32 v123, {BAD}
    ds_read_b32 v123, v123
    s_cmp_lt_u32 s21, 6
    s_cbranch_scc1 K2_NOCV
""")
    for k in range(4):
        e(f"    ds_read_b128 {vr(16 + 4 * k, 4)}, v{vCA} offset:{AG - QU + RS * k}\n    ds_read_b64 {vr(8 + 2 * k, 2)}, v{vCA} offset:{RS * k + 8}")
    for k in range(4):
        e(f"    s_waitcnt lgkmcnt({6 - k})")
        e(f"    v_cvt_f32_f64 v{32 + 2 * k}, {vr(16 + 4 * k, 2)}\n    v_cvt_f32_f64 v{33 + 2 * k}, {vr(18 + 4 * k, 2)}")
        e(f"    v_pk_mul_f32 {vr(8 + 2 * k, 2)}, {vr(8 + 2 * k, 2)}, {sr(60 + 2 * k, 2)} op_sel_hi:[1,0]")
        e(f"    v_pk_fma_f32 {vr(32 + 2 * k, 2)}, {vr(32 + 2 * k, 2)}, {sr(sScale, 2)}, {vr(8 + 2 * k, 2)} op_sel_hi:[1,0,1]")
        e(f"    v_cvt_pk_bf16_f32 v{40 + k}, v{32 + 2 * k}, v{33 + 2 * k}")
        e(f"    ds_write_b32 v{vCW}, v{40 + k} offset:{RB * k}")
    stamp(301, 4, 1)
    e(f"""
K2_NOCV:
    s_waitcnt lgkmcnt(0)
    v_readfirstlane_b32 s36, v123
    s_barrier
""")
    stamp(13, 4, 1)
    e("    s_cmp_lg_u32 s36, 0\n    s_cbranch_scc1 K2_RESTART\n    s_cmp_ge_u32 s21, 8\n    s_cbranch_scc1 K2_FIN")
    xbf = lambda T, s: 16 + 16 * T + 4 * s
    tmp, outr = 76, 8
    def M(T, s, wait=True):
        if wait: e(f"    s_waitcnt lgkmcnt({11 - 4 * T - s})")
        e(f"    v_mfma_f32_16x16x32_bf16 {vr(vU + 4 * T, 4)}, {vr(92 + 4 * s, 4)}, {vr(xbf(T, s), 4)}, {vr(vU + 4 * T, 4)}")
    def sc_(T):
        for m in (2 * T, 2 * T + 1): e(f"    v_pk_mul_f32 {vr(tmp + 2 * m, 2)}, {vr(vU + 2 * m, 2)}, s[72:73] op_sel_hi:[1,0]")
    def ex_(T, k): e(f"    v_exp_f32 v{tmp + 4 * T + k}, v{tmp + 4 * T + k}")
    def ad_(T):
        for m in (2 * T, 2 * T + 1): e(f"    v_pk_add_f32 {vr(tmp + 2 * m, 2)}, {vr(tmp + 2 * m, 2)}, 1.0 op_sel_hi:[1,0]")
    def rc_(T):
        for k in range(4): e(f"    v_rcp_f32 v{tmp + 4 * T + k}, v{tmp + 4 * T + k}")
    def out_(T):
        for m in (2 * T, 2 * T + 1): e(f"    v_pk_mul_f32 {vr(tmp + 2 * m, 2)}, {vr(tmp + 2 * m, 2)}, {vr(vU + 2 * m, 2)}")
        for m in (2 * T, 2 * T + 1): e(f"    v_cvt_pk_bf16_f32 v{outr + m}, v{tmp + 2 * m}, v{tmp + 2 * m + 1}")
        e(f"    ds_write_b64 v90, {vr(outr + 2 * T, 2)} offset:{16 * RO * T}")
    for T in range(3):
        for s in range(4):
            e(f"    ds_read_b128 {vr(xbf(T, s), 4)}, v{vFR} offset:{16 * RB * T + 64 * s}")
    e("    s_waitcnt vmcnt(0)")
    for s in range(4): M(0, s)
    for s in range(4): M(1, s)
    stamp(302, 4, 1)
    sc_(0)
    e("    s_waitcnt lgkmcnt(0)")
    for s in range(4): M(2, s, False); ex_(0, s)
    e("    s_nop 0")
    sc_(1)
    for k in range(4): ex_(1, k)
    ad_(0); rc_(0); sc_(2)
    for k in range(4): ex_(2, k)
    out_(0); stamp(303, 4, 1); ad_(1); rc_(1); ad_(2); out_(1); rc_(2); e("    s_nop 0"); out_(2); stamp(304, 4, 1)
    e(f"""
    s_cmp_ge_u32 s21, 2
    s_waitcnt lgkmcnt(0)
    s_barrier
""")
    stamp(305, 4, 1)
    e(f"""
    ds_read_b128 v[16:19], v91 offset:{EA}
    s_cbranch_scc1 K2_O1
    ds_read_b128 v[20:23], v91 offset:{EA + 32 * RO}
    s_waitcnt lgkmcnt(0)
    buffer_store_dwordx4 v[20:23], v125, s[16:19], 0 offen
K2_O1:
    s_waitcnt lgkmcnt(0)
    buffer_store_dwordx4 v[16:19], v88, s[16:19], 0 offen
K2_FIN:
""")
    light1(4, 1)
    if OPT["stamps"]:
        stamp(9, 4, 1); e("    s_waitcnt vmcnt(0)"); stamp(10, 4, 1); stamp_out(4, 1)
    e("K2_END:\n    s_endpgm")
    for t in range(NT - 1):
        for y in range(2):
            event_block(t, y, '')
    e(f"""
K2_TAILBLOCKS:
K2_MORE:
    v_mov_b32 v16, {MORE}
    ds_write_b32 v16, v59
    s_branch K2_MOREB
K2_BIG:
    v_mov_b32 v{vM}, {BAD}
    ds_write_b32 v{vM}, v{vM}
    s_branch K2_BIGB
K2_NEXT:
    v_mov_b32 v123, {BAD}
    ds_read_b32 v123, v123
    s_add_u32 s24, s24, s25
    s_waitcnt vmcnt(0) lgkmcnt(0)
    v_readfirstlane_b32 s36, v123
    s_barrier
    s_cmp_eq_u32 s36, 0
    s_cbranch_scc1 K2_AGAIN
K2_RESTART:
    s_mov_b32 s{sGuard}, 1
    s_mov_b32 s{sScale}, 1.0
    s_mov_b32 s24, 0
    v_mov_b32 v{vNp}, 0
    v_lshlrev_b32 v56, 4, v0
    v_mov_b64 v[8:9], 0
    v_mov_b64 v[10:11], 0
    v_add_u32 v57, {AG}, v56
    ds_write_b128 v57, v[8:11]
    ds_write_b128 v57, v[8:11] offset:16384
    s_cmp_ge_u32 s21, 11
    s_cbranch_scc1 K2_RS1
    ds_write_b128 v57, v[8:11] offset:32768
K2_RS1:
    s_waitcnt vmcnt(0) lgkmcnt(0)
    s_branch K2_AGAIN
K2_REDO:
    s_mov_b32 s25, 4
    s_waitcnt vmcnt(0) lgkmcnt(0)
    s_barrier
K2_AGAIN:
    v_lshlrev_b32 v56, 4, v0
    v_mov_b64 v[8:9], 0
    v_mov_b64 v[10:11], 0
    s_cmp_ge_u32 s21, 2
    s_cbranch_scc1 K2_ROUND
    ds_write_b128 v56, v[8:11] offset:{MISC}
    s_waitcnt lgkmcnt(0)
K2_LAST:
    s_branch K2_ROUND
""")
    if OPT["unc"]:
        e("K2_GUARDED:")
        edge_loop("G")
        e("    s_branch K2_LDONE")
        for t in range(NT - 1):
            for y in range(2):
                event_block(t, y, "G")

def desc(name, vg, sg):
    e(f"""
.p2align 6
.amdhsa_kernel {name}
  .amdhsa_next_free_vgpr {vg}
  .amdhsa_next_free_sgpr {sg}
  .amdhsa_accum_offset {vg}
  .amdhsa_group_segment_fixed_size 0
  .amdhsa_kernarg_size 72
  .amdhsa_user_sgpr_count 2
  .amdhsa_user_sgpr_kernarg_segment_ptr 1
  .amdhsa_system_sgpr_workgroup_id_x 1
.end_amdhsa_kernel
""")

e(f"""
; MPNN edge MLP, N=10000 nodes, E=320000 edges, D=128, De=4 (bf16 in, bf16 out), in two launches.
; launch 1: bins the edges by bucket (dst & 255) into (e_attr, src, node) records, P' = -log2e * x@W1 (bf16),
; launch 2: one workgroup per bucket: counting sort by node in LDS, q = -log2e * x@W2, then per 16 edges x 64 features
; @launch kernel=mpnn_bin_kernel grid=(512,1,1) block=(768,1,1) lds={K1_LDS}
; @launch kernel=mpnn_edge_kernel grid=(256,1,1) block=(1024,1,1) lds={K2_LDS}
.amdgcn_target "amdgcn-amd-amdhsa--gfx950"
""")
kernel1()
kernel2()
e('.section .rodata,"a"')
desc("mpnn_bin_kernel", 80, 96)
desc("mpnn_edge_kernel", 128, 102 if OPT["stamps"] else 96)
FL_ = {0: "", 1: " sc1", 2: " nt", 3: " sc0 sc1", 4: " sc1 nt", 5: " sc0"}
k2at = next(i for i, l in enumerate(L) if l.startswith("mpnn_edge_kernel:"))
for i, l in enumerate(L):
    c = l.split(";")
    fl = None
    if l.strip().startswith("buffer_store") and " off," not in l:
        fl = FL_[(OPT["stp"] if "v[76:79]" in l else OPT["st1"]) if i < k2at else OPT["st2"]]
    elif l.strip().startswith("buffer_load"):
        if i < k2at:
            if any(x in l for x in ("s[24:27]", "s[8:11], s22", "s[32:35]")): fl = " nt" * OPT["nte"]
            elif "s[4:7]" in l: fl = " nt" * OPT["ntx"]
            elif "s[12:15]" in l and "lds" in l: fl = " nt" * OPT["ntw"]
        else:
            if "s[12:15]" in l: fl = " nt" * OPT["ntx2"]
            elif "dwordx3" in l: fl = " nt" * OPT["ntr"]
    if fl:
        body = c[0].rstrip()
        body = body[:-4] + fl + " lds" if body.endswith(" lds") else body + fl
        L[i] = body + ("   ;" + c[1] if len(c) > 1 else "")
open(sys.argv[1], "w").write("\n".join(L) + "\n")
```

```python
import sys, struct, math

def f2u(x): return struct.unpack("<I", struct.pack("<f", x))[0]

OPT = dict(stg=0, gl=0, nrs=1, unc=2, pp=0, agz=0, qo=0, bdp=2, cae=0, cpf1=0, f16=0, uw3=0, hold=0, hold2=0, otl=0, stp=0, lay=0, k1p=0, k1o=1, cpf2=0, agl=0, t2m=1, olds=1, pf2=0, rab=0, gq=0, gq2=3, gp=1, stg1=0, stg3=0, qpre=0, eal=1, ash=0, dst1=1, fin=1, wpf=0, cpf=6, ps=2, bdl=1, rb=288, st1=0, st2=0, nte=1, ntx=0, ntw=0, ntx2=0, ntr=0, light=0, g1late=0, pf=0, gpos=0, nom4=0, nom32=0, mpos=0, nochk=0, prio1=0, dbg=0, safe=0, stamps=0, prio=1, nogather=0, nocore=0, nolds=0, nomfma=0, noflush=0)
for a in sys.argv[2:]:
    k, v = a.split("="); OPT[k] = int(v)

N, E = 10000, 320000
NB = 256
EPW = 1250
PT    = 0
DESC  = 0x280000
REC   = 0x2C0000
RSTR  = 15488
W2F   = 0x690000
WUT   = W2F + 0x8000
WUB   = WUT + 0x8000
W3F   = WUB + 0x8000
STAMP = W3F + 0x800
WSEND = STAMP + (0x100000 if OPT["stamps"] or OPT["light"] else 0)
NL2E = f2u(-1.4426950408889634)
KC   = f2u(1.0 / (2.0 ** 31 * math.log(2.0)))
NSC  = f2u(-2.0 ** -31)

L = []
def e(s=""):
    for ln in s.strip("\n").split("\n"):
        L.append(ln)
def vr(a, n): return f"v[{a}:{a + n - 1}]" if n > 1 else f"v{a}"
def sr(a, n): return f"s[{a}:{a + n - 1}]" if n > 1 else f"s{a}"

def srd(s, nrec, w3=0x20000):
    e(f"    s_mov_b32 s{s + 2}, {nrec:#x}\n    s_mov_b32 s{s + 3}, {w3:#x}")

def scan64(v):
    for c in ("row_shr:1 row_mask:0xf", "row_shr:2 row_mask:0xf", "row_shr:4 row_mask:0xf", "row_shr:8 row_mask:0xf",
              "row_bcast:15 row_mask:0xa", "row_bcast:31 row_mask:0xc"):
        e(f"    s_nop 1\n    v_add_u32_dpp v{v}, v{v}, v{v} {c} bank_mask:0xf")

NST = 16
def light0():
    if OPT["light"]: e("    s_memrealtime s[80:81]")
def light1(srd_s, kern):
    if not OPT["light"]: return
    e(f"""
    s_waitcnt vmcnt(0)
    s_memrealtime s[82:83]
    s_mov_b32 s{srd_s + 2}, {WSEND:#x}
    s_lshl_b32 s90, s2, 4
    s_add_u32 s90, s90, s21
    s_lshl_b32 s90, s90, 3
    s_add_u32 s90, s90, {STAMP + kern * 0x80000}
    s_mov_b64 exec, 1
    s_waitcnt lgkmcnt(0)
    v_mov_b32 v2, s80
    v_mov_b32 v3, s82
    buffer_store_dwordx2 v[2:3], off, s[{srd_s}:{srd_s + 3}], s90
""")
def dbg(slot):
    if not OPT["dbg"]: return
    e(f"    s_memrealtime s[{80 + 2 * slot}:{81 + 2 * slot}]")
def dbg_out(kern, wv, base, n, lab):
    if not OPT["dbg"]: return
    e(f"""
    s_waitcnt vmcnt(0)
    s_memrealtime s[{80 + 2 * (n - 1)}:{81 + 2 * (n - 1)}]
    s_cmp_lg_u32 s2, 200
    s_cbranch_scc1 {lab}
    s_cmp_lg_u32 s21, {wv}
    s_cbranch_scc1 {lab}
    s_load_dwordx2 s[92:93], s[0:1], 56
    s_waitcnt lgkmcnt(0)
    s_add_u32 s92, s92, {512 * (1 - kern)}
    s_addc_u32 s93, s93, 0
    s_mov_b32 s94, 256
    s_mov_b32 s95, 0x20000
    s_mov_b64 exec, 1
""")
    for i in range(n):
        e(f"    v_mov_b32 v127, s{80 + 2 * i}\n    buffer_store_dword v127, off, s[92:95], 0 offset:{4 * (base + i)}\n    s_waitcnt vmcnt(0)")
    e(f"{lab}:")
SMAP = {}
def stamp(i, srd_s, kern):
    if not OPT["stamps"]: return
    sel = [0, 1, 2, 3, 4, 5, 6] if kern == 0 else {1: [0, 1, 3, 4, 5, 11, 6, 7, 8, 9, 10], 2: [0, 2, 4, 5, 12, 6, 7, 8, 13, 9, 10], 3: [0] + list(range(101, 111)), 4: [0, 5, 11, 12, 6, 201, 202, 203, 204, 207, 208], 5: [0, 8, 13, 301, 302, 303, 304, 305, 306, 9, 10], 6: [0, 5, 401, 402, 403, 11, 404, 407, 6, 408]}[OPT["stamps"]]
    if i not in sel: return
    r = 80 + 2 * sel.index(i)
    SMAP[(kern, i)] = r
    if i == 0: e("    s_memrealtime s[76:77]" if kern == 0 else "    s_memrealtime vcc\n    s_waitcnt lgkmcnt(0)\n    v_writelane_b32 v127, vcc_lo, 14")
    e(f"    s_memtime s[{r}:{r + 1}]")
def stamp_out(srd_s, kern):
    if not OPT["stamps"]: return
    vs, va = (2, 3) if kern == 0 else (127, 125)
    e(f"    s_memrealtime vcc\n    s_waitcnt lgkmcnt(0)\n    v_writelane_b32 v{vs}, vcc_lo, 15")
    if kern == 0: e("    v_writelane_b32 v2, s76, 14")
    for (k, i), r in SMAP.items():
        if k == kern: e(f"    v_writelane_b32 v{vs}, s{r}, {i % 100}")
    e(f"""
    s_mov_b64 exec, 0xffff
    s_lshl_b32 s3, s2, 4
    s_add_u32 s3, s3, s21
    s_lshl_b32 s3, s3, 6
    s_add_u32 s3, s3, {STAMP + kern * 0x80000}
    v_mbcnt_lo_u32_b32 v{va}, -1, 0
    v_lshlrev_b32 v{va}, 2, v{va}
    buffer_store_dword v{vs}, v{va}, s[{srd_s}:{srd_s + 3}], s3 offen
    s_mov_b64 exec, -1
""")

K1_CNT, K1_ST, K1_STG = 0, 1024, 2048
K1_WL, K1_XL = 0, 32768
K1_LDS = 66 * 1024
def gemm_issue():
    e(f"""
    s_lshr_b32 s20, s2, 4
    s_lshl_b32 s20, s20, 3
    s_and_b32 s3, s2, 7
    s_or_b32 s20, s20, s3
""")
    if OPT["cpf1"]:
        e(f"""
    s_cmp_lg_u32 s21, 0
    s_cbranch_scc1 K1_NOT
    s_cmp_ge_u32 s20, {OPT["cpf1"]}
    s_cbranch_scc1 K1_NOT
    s_getpc_b64 s[24:25]
K1_PC1:
    v_lshlrev_b32 v8, 6, v1
    v_min_u32 v8, K1_PC - K1_PC1 + 64, v8
    v_mov_b32 v9, s25
    v_add_co_u32 v8, vcc, s24, v8
    s_nop 1
    v_addc_co_u32 v9, vcc, 0, v9, vcc
    global_load_dword v34, v[8:9], off
K1_NOT:
""")
    e(f"""
    v_lshrrev_b32 v2, 4, v1                 ; g
    v_and_b32 v3, 15, v1                    ; n / i
    s_cmp_ge_u32 s20, 209
    s_cbranch_scc1 K1_JOBS
    ; x -> LDS: rows 4w + g, chunk (l%16) ^ (row & 15)
    v_lshrrev_b32 v5, 4, v0
    v_xor_b32 v6, v5, v0
    v_and_b32 v6, 15, v6
    s_mul_i32 s25, s20, 48
    v_add_u32 v5, s25, v5
    v_lshlrev_b32 v5, 8, v5
    v_lshl_or_b32 v5, v6, 4, v5
    s_lshl_b32 s27, s21, 10
    s_add_u32 s28, s27, {K1_XL}
    s_mov_b32 m0, s28
    ; W1 -> LDS: row (l/16), chunk (l%16) ^ ((l/16)<<1) ^ (8 if bit 3 of the row)
    v_lshlrev_b32 v4, 1, v2
    v_xor_b32 v4, v4, v3
    v_lshlrev_b32 v4, 4, v4
    v_lshl_or_b32 v4, v2, 8, v4
    s_lshl_b32 s28, s21, 6
    s_and_b32 s28, s28, 0x80
    v_xor_b32 v4, s28, v4
    s_waitcnt lgkmcnt(0)
""")
    srd(4, N * 256)
    srd(12, 128 * 256)
    stamp(6, 16, 0)
    e("    buffer_load_dwordx4 v5, s[4:7], 0 offen lds")
    for m in range(3):
        if m == 2:
            e("    s_cmp_ge_u32 s21, 8\n    s_cbranch_scc1 K1_DMAD")
        e(f"""
    s_mov_b32 m0, s27
    s_nop 0
    buffer_load_dwordx4 v4, s[12:15], s27 offen lds
""")
        if m < 2: e("    s_add_u32 s27, s27, 12288")

def kernel1():
    e("""
.text
.globl mpnn_bin_kernel
.p2align 8
.type mpnn_bin_kernel,@function
mpnn_bin_kernel:
    s_load_dwordx4 s[8:11], s[0:1], 16
    s_load_dwordx4 s[4:7], s[0:1], 0        ; x, e_attr
    s_load_dwordx4 s[12:15], s[0:1], 32
    s_load_dwordx2 s[16:17], s[0:1], 64     ; ws
    s_cmp_ge_u32 s2, 512
    s_cbranch_scc1 K1_END
    v_lshrrev_b32 v2, 6, v0
    v_and_b32 v1, 63, v0
    v_readfirstlane_b32 s21, v2
    s_and_b32 s20, s2, 7
    s_lshl_b32 s20, s20, 5
    s_lshr_b32 s3, s2, 4
    s_or_b32 s20, s20, s3
    s_lshr_b32 s3, s2, 5
    s_xor_b32 s3, s3, s2
""")
    stamp(0, 16, 0); light0()
    dbg(0)
    if OPT["k1o"]:
        e("    s_bitcmp0_b32 s3, 3\n    s_cbranch_scc1 K1_BIN")
        gemm_issue()
        e("    s_branch K1_DMAD\nK1_BIN:")
    else:
        e("    s_bitcmp1_b32 s3, 3\n    s_cbranch_scc1 K1_GEMM")
    e("""
    ; ---------------- binning workgroup (waves 0..9) ----------------
    s_cmp_ge_u32 s21, 10
    s_cbranch_scc1 K1_END
""" + ("    s_setprio 3\n" if OPT["k1p"] else "") + """    s_mul_i32 s22, s20, 5000                ; byte offset of this workgroup's src/dst slice
    s_lshl_b32 s23, s22, 1                  ; e_attr slice
    v_lshlrev_b32 v3, 3, v0
    v_lshlrev_b32 v4, 4, v0
    v_cmp_gt_u32 s[44:45], 625, v0
""".replace("v_cmp_gt_u32 s[44:45], 625, v0", "v_cmp_gt_u32 vcc, 625, v0"))
    e("    s_mov_b32 s26, %#x\n    s_mov_b32 s27, 0x20000\n    s_mov_b64 s[44:45], vcc\n    s_mov_b64 exec, vcc\n    s_waitcnt lgkmcnt(0)\n    s_mov_b32 s24, s10\n    s_mov_b32 s25, s11" % (E * 4))
    stamp(6, 16, 0)
    e("    buffer_load_dwordx2 v[6:7], v3, s[24:27], s22 offen      ; dst")
    srd(8, E * 4)
    e("    s_mov_b32 s32, s6\n    s_mov_b32 s33, s7"); srd(32, E * 8)
    def se():
        e("""
    buffer_load_dwordx2 v[8:9], v3, s[8:11], s22 offen       ; src
    buffer_load_dwordx4 v[10:13], v4, s[32:35], s23 offen
""")
    if not OPT["dst1"]: se()
    e(f"""
    s_mov_b64 exec, -1
    v_mov_b64 v[20:21], 0
    v_mov_b64 v[22:23], 0
    s_cmp_lg_u32 s21, 0
    s_cbranch_scc1 K1_NOZ
    ds_write_b128 v4, v[20:23] offset:{K1_CNT}
K1_NOZ:
    s_waitcnt lgkmcnt(0)
    s_barrier
    s_mov_b64 exec, s[44:45]
""")
    if OPT["dst1"]: se()
    e("    s_mov_b64 exec, -1\n    v_mov_b32 v24, 1\n    v_lshlrev_b32 v5, 4, v1")
    srd(16, WSEND)
    e(f"""
    s_mul_i32 s38, s20, {RSTR}
    s_add_u32 s38, s38, {REC}
    s_add_u32 s39, s38, 10240
    s_mov_b64 exec, s[44:45]
    s_waitcnt vmcnt(2)
""")
    stamp(1, 16, 0)
    dbg(1)
    e(f"""
    v_lshlrev_b32 v14, 2, v6
    v_lshlrev_b32 v15, 2, v7
    v_and_b32 v14, 0x3fc, v14
    v_and_b32 v15, 0x3fc, v15
    ds_add_rtn_u32 v16, v14, v24 offset:{K1_CNT}
    ds_add_rtn_u32 v17, v15, v24 offset:{K1_CNT}
    v_lshrrev_b32 v6, 8, v6
    v_lshrrev_b32 v7, 8, v7
    v_lshlrev_b32 v6, 26, v6
    v_lshlrev_b32 v7, 26, v7
    s_mov_b64 exec, -1
    s_waitcnt lgkmcnt(0)
    s_barrier
""")
    stamp(2, 16, 0)
    e(f"""
    ds_read_b128 v[20:23], v5 offset:{K1_CNT}
    s_waitcnt lgkmcnt(0)
    v_add_u32 v25, v20, v21
    v_add_u32 v26, v25, v22
    v_add_u32 v27, v26, v23
    s_nop 1
    v_add_u32_dpp v28, v27, v27 row_shr:1 row_mask:0xf bank_mask:0xf bound_ctrl:1
""")
    for c in ("row_shr:2 row_mask:0xf", "row_shr:4 row_mask:0xf", "row_shr:8 row_mask:0xf", "row_bcast:15 row_mask:0xa", "row_bcast:31 row_mask:0xc"):
        e(f"    s_nop 1\n    v_add_u32_dpp v28, v28, v28 {c} bank_mask:0xf")
    e(f"""
    v_sub_u32 v28, v28, v27
    v_add_u32 v29, v28, v20
    v_add_u32 v30, v28, v25
    v_add_u32 v31, v28, v26
    ds_write_b128 v5, v[28:31] offset:{K1_ST}
    ds_read_b32 v18, v14 offset:{K1_ST}
    ds_read_b32 v19, v15 offset:{K1_ST}
    s_waitcnt vmcnt(1)
    v_lshl_or_b32 v8, v8, 3, v6
    v_lshl_or_b32 v9, v9, 3, v7
    s_mov_b64 exec, s[44:45]
    s_waitcnt lgkmcnt(0)
    v_add_u32 v18, v18, v16
    v_add_u32 v19, v19, v17
    v_mul_u32_u24 v18, 12, v18
    v_mul_u32_u24 v19, 12, v19
    ds_write_b32 v18, v8 offset:{K1_STG + 8}
    ds_write_b32 v19, v9 offset:{K1_STG + 8}
    v_add_u32 v18, {K1_STG}, v18
    v_add_u32 v19, {K1_STG}, v19
    s_waitcnt vmcnt(0)
    ds_write2_b32 v18, v10, v11 offset0:0 offset1:1
    ds_write2_b32 v19, v12, v13 offset0:0 offset1:1
    s_mov_b64 exec, -1
    s_cmp_lg_u32 s21, 9
    s_cbranch_scc1 K1_NOD
    v_lshl_or_b32 v32, v20, 16, v28
    v_lshl_or_b32 v33, v21, 16, v29
    v_lshl_or_b32 v34, v22, 16, v30
    v_lshl_or_b32 v35, v23, 16, v31
    s_lshl_b32 s36, s20, 4
    s_add_u32 s36, s36, {DESC}
    v_and_b32 v36, 7, v1
    v_lshrrev_b32 v37, 3, v1
    v_lshl_or_b32 v36, v36, 3, v37
    v_lshlrev_b32 v36, 12, v36
    buffer_store_dwordx4 v[32:35], v36, s[16:19], s36 offen
K1_NOD:
    s_waitcnt lgkmcnt(0)
    s_barrier
""")
    stamp(3, 16, 0)
    e(f"""
    ds_read_b128 v[20:23], v4 offset:{K1_STG}
    s_cmp_ge_u32 s21, 5
    s_cbranch_scc1 K1_C1
    ds_read_b128 v[24:27], v4 offset:{K1_STG + 10240}
    s_waitcnt lgkmcnt(0)
    buffer_store_dwordx4 v[24:27], v4, s[16:19], s39 offen
K1_C1:
    s_waitcnt lgkmcnt(0)
    buffer_store_dwordx4 v[20:23], v4, s[16:19], s38 offen
""")
    light1(16, 0)
    if OPT["stamps"]:
        stamp(4, 16, 0); e("    s_waitcnt vmcnt(0)"); stamp(5, 16, 0); stamp_out(16, 0)
    e(f"""
    s_endpgm
""")
    if not OPT["k1o"]:
        e("K1_GEMM:")
        gemm_issue()
    e("K1_DMAD:")
    srd(16, N * 256)
    e(f"""
    s_lshr_b32 s23, s21, 2
    s_and_b32 s24, s21, 3
    v_lshrrev_b32 v24, 2, v3                ; r'
    v_and_b32 v25, 3, v3                    ; c'
    v_and_b32 v26, 1, v2
    v_lshl_or_b32 v26, v26, 2, v24          ; h(k)
    v_lshl_add_u32 v27, v2, 3, v24          ; 8g + r'
    v_lshlrev_b32 v27, 8, v27
    v_lshl_or_b32 v27, v25, 3, v27
    s_lshl_b32 s27, s24, 1
    v_xor_b32 v26, s27, v26
    v_lshl_add_u32 v28, v26, 5, v27
    v_xor_b32 v29, 32, v28
    ; x fragments
    v_xor_b32 v30, v2, v3
    v_lshlrev_b32 v30, 4, v30
    v_lshl_or_b32 v30, v3, 8, v30
    s_lshl_b32 s27, s23, 12
    s_add_u32 s27, s27, {K1_XL}
    v_add_u32 v30, s27, v30
    v_xor_b32 v31, 64, v30
    v_xor_b32 v32, 0x80, v30
    v_xor_b32 v33, 0xc0, v30
    s_lshl_b32 s26, s23, 4
    s_add_u32 s25, s25, s26
    v_add_u32 v5, s25, v3
    v_lshlrev_b32 v5, 8, v5
    v_lshl_or_b32 v5, v2, 4, v5
    s_lshl_b32 s27, s24, 6
    v_add_u32 v5, s27, v5
    s_mov_b32 s28, {NL2E:#x}
    s_waitcnt vmcnt(0)
    s_barrier
""")
    stamp(3, 16, 0)
    for s in range(4):
        e(f"    ds_read_b128 {vr(8 + 4 * s, 4)}, v{30 + s}")
        for f in range(2):
            for u2 in range(2):
                e(f"    ds_read_b64_tr_b16 {vr(36 + 16 * f + 4 * s + 2 * u2, 2)}, v{28 + f} offset:{s * 8192 + u2 * 1024}")
    for s in range(4):
        for f in range(2):
            left = 20 - (5 * s + 3 + 2 * f)
            e(f"    s_waitcnt lgkmcnt({min(left, 15)})")
            c = "0" if s == 0 else vr(68 + 4 * f, 4)
            e(f"    v_mfma_f32_16x16x32_bf16 {vr(68 + 4 * f, 4)}, {vr(36 + 16 * f + 4 * s, 4)}, {vr(8 + 4 * s, 4)}, {c}")
    e("    s_nop 5")
    for f in range(2):
        for h in range(2):
            r = 68 + 4 * f + 2 * h
            e(f"    v_pk_mul_f32 {vr(r, 2)}, {vr(r, 2)}, s[28:29] op_sel_hi:[1,0]")
        for h in range(2):
            r = 68 + 4 * f + 2 * h
            e(f"    v_cvt_pk_bf16_f32 v{76 + 2 * f + h}, v{r}, v{r + 1}")
    e(f"    buffer_store_dwordx4 v[76:79], v5, s[16:19], 0 offen")
    light1(16, 0)
    if OPT["stamps"]:
        srd(16, WSEND); stamp(4, 16, 0); e("    s_waitcnt vmcnt(0)"); stamp(5, 16, 0); stamp_out(16, 0)
    e(f"""
    s_endpgm
K1_JOBS:
    s_sub_u32 s23, s20, 209
    s_mul_i32 s23, s23, 12
    s_add_u32 s23, s23, s21
    s_waitcnt lgkmcnt(0)
""")
    srd(16, WSEND)
    e(f"""
    s_cmp_ge_u32 s23, 96
    s_cbranch_scc1 K1_JOB2
    s_lshr_b32 s24, s23, 5
    s_bfe_u32 s25, s23, 0x30002             ; f
    s_and_b32 s26, s23, 3                   ; s
    s_cmp_eq_u32 s24, 0
    s_cselect_b32 s28, s12, s14
    s_cselect_b32 s29, s13, s15
    s_mov_b32 s30, {256 * 256}
    s_mov_b32 s31, 0x20000
    ; column
    s_lshl_b32 s33, s25, 4                  ; 16 f
    v_add_u32 v4, s33, v3
    v_lshlrev_b32 v4, 1, v4
    s_cmp_eq_u32 s24, 2
    s_cselect_b32 s32, 10, 11
    s_movk_i32 s33, 1024
    s_cmovk_i32 s33, 4096
    s_cselect_b32 s34, {NSC:#x}, 1.0
    v_lshlrev_b32 v5, s32, v2
    v_add_u32 v4, v4, v5
    s_lshl_b32 s40, s26, 13
    s_cmp_eq_u32 s24, 1
    s_cselect_b32 s36, 0, 0x8000
    s_add_u32 s40, s40, s36
    s_add_u32 s41, s40, 512
    s_add_u32 s42, s40, s33
    s_add_u32 s43, s42, 512
""")
    for m in range(8):
        e(f"    buffer_load_ushort v{8 + m}, v4, s[28:31], s{40 + m // 2} offen offset:{(m & 1) * 256}")
    e(f"""
    s_lshl_b32 s37, s23, 10
    s_add_u32 s37, s37, {W2F}
    v_lshlrev_b32 v6, 4, v1
    s_mov_b32 s38, 0x07060302
    s_waitcnt vmcnt(0)
""")
    for m in range(8):
        e(f"    v_lshlrev_b32 v{8 + m}, 16, v{8 + m}\n    v_mul_f32 v{8 + m}, s34, v{8 + m}")
    for m in range(4):
        e(f"    v_perm_b32 v{16 + m}, v{9 + 2 * m}, v{8 + 2 * m}, s38")
    e(f"""
    buffer_store_dwordx4 v[16:19], v6, s[16:19], s37 offen
    s_endpgm
K1_JOB2:
    s_cmp_ge_u32 s23, 98
    s_cbranch_scc1 K1_JOB3
    s_sub_u32 s24, s23, 96                  ; c
    s_mov_b32 s14, {260 * 256}
    s_mov_b32 s15, 0x20000
    v_and_b32 v2, 31, v1
    v_lshrrev_b32 v3, 5, v1
    v_lshl_or_b32 v2, v2, 1, v3             ; p & 63
    v_and_b32 v4, 0x23, v2
    v_bfe_u32 v5, v2, 2, 1
    v_lshl_or_b32 v4, v5, 4, v4
    v_bfe_u32 v5, v2, 3, 2
    v_lshl_or_b32 v4, v5, 2, v4             ; feature & 63
    v_lshlrev_b32 v4, 1, v4
    s_lshl_b32 s25, s24, 7
    s_add_u32 s25, s25, {256 * 256}
""")
    for d in range(4):
        e(f"    buffer_load_ushort v{8 + d}, v4, s[12:15], s25 offen offset:{d * 256}")
    e(f"""
    s_lshl_b32 s37, s24, 10
    s_add_u32 s37, s37, {W3F}
    v_lshlrev_b32 v6, 4, v1
    s_mov_b32 s34, {NL2E:#x}
    s_waitcnt vmcnt(0)
""")
    for d in range(4):
        e(f"    v_lshlrev_b32 v{8 + d}, 16, v{8 + d}\n    v_mul_f32 v{8 + d}, s34, v{8 + d}")
    e("""
    v_cvt_pk_bf16_f32 v16, v8, v9
    v_cvt_pk_bf16_f32 v17, v10, v11
    v_lshlrev_b32 v12, 16, v16
    v_and_b32 v13, 0xffff0000, v16
    v_lshlrev_b32 v14, 16, v17
    v_and_b32 v15, 0xffff0000, v17
    v_sub_f32 v8, v8, v12
    v_sub_f32 v9, v9, v13
    v_sub_f32 v10, v10, v14
    v_sub_f32 v11, v11, v15
    v_cvt_pk_bf16_f32 v18, v8, v9
    v_cvt_pk_bf16_f32 v19, v10, v11
    buffer_store_dwordx4 v[16:19], v6, s[16:19], s37 offen
    s_endpgm
K1_JOB3:
    s_cmp_ge_u32 s20, 224
    s_cbranch_scc1 K1_SPARE
    s_cmp_lg_u32 s23, 98
    s_cbranch_scc1 K1_END
    v_mov_b32 v8, 0
    v_lshlrev_b32 v6, 2, v1
""")
    e(f"""
    s_mov_b32 s37, {PT + N * 256}
    buffer_store_dword v8, v6, s[16:19], s37 offen
K1_END:
    s_endpgm
K1_SPARE:
""")
    if OPT["cpf"]:
        e(f"""
    s_getpc_b64 s[24:25]
K1_PC:
    s_bfe_u32 s22, s20, 0x20003
    s_mul_i32 s22, s22, 12
    s_add_u32 s22, s22, s21
    s_mul_i32 s22, s22, {OPT["cpf"] * 64}
    v_lshl_add_u32 v2, v1, 6, s22
    v_min_u32 v2, K2_LAST - mpnn_edge_kernel, v2
    v_add_u32 v2, mpnn_edge_kernel - K1_PC, v2
    v_mov_b32 v3, s25
    v_add_co_u32 v2, vcc, s24, v2
    s_nop 1
    v_addc_co_u32 v3, vcc, 0, v3, vcc
    s_bfm_b64 exec, {OPT["cpf"]}, 0
    global_load_dword v4, v[2:3], off
""")
    e("    s_endpgm")

RS = 1040
RB, RO = 288, 272
CAP = 2048
MISC = 0
ZR, CNT, MORE, BAD, FL = 0, 768, 1024, 1028, 1088
SO = 2048
EA = SO + CAP * 4
W3L = EA + CAP * 8
QU = W3L + 2048
AG = QU + 41 * RS
XL = (AG + 2 * 16384 + 11 * 1024 + 255) // 256 * 256
AGB = XL + 12288
K2_LDS = AGB + 48 * RB
PADV = N * 8
S16MAX = (CAP // 4 - 8) * 16
NT = 16
NK = 6
vSO, vP, vD, vE, vAe, vBw, vQ, vNp, vAc, vI = 8, (16, 24), (32, 92), 48, 64, 68, 72, 126, (80, 82), 84
vaS, vaE, vAct, vaN = (86, 87), 88, 89, (90, 91)
vU, vM, vDn = 108, (120 if OPT['unc'] == 2 else 76), (76, 78)
vR, vN4, vTa, vStr, vRS, vW3a = 60, tuple(range(19, 25)), 56, 57, 124, 125
vC4, vQ16, vE16, vS16 = 120, 121, 122, 123
vCA, vCW, vCN, vFR = 120, 121, 122, 124
sM = [40 + 2 * k for k in range(NK)]
sFM, sEV = (28, 30), (32, 33)
sFirst, sMoreV, sMM, sGuard, sScale, sOne = 56, 57, 58, 68, 70, 52
M9 = "0x01ff01ff"
KCOP = "s[26:27], s[26:27] op_sel_hi:[1,0,0] clamp"
PRIO_0, PRIO_AT = {2: (2, {NT - 4: 1, NT - 1: 0}), 1: (2, {NT - 2: 1, NT - 1: 0}), 3: (3, {NT - 3: 2, NT - 2: 1, NT - 1: 0}), 4: (2, {NT - 6: 1, NT - 2: 0}),
                   5: (3, {NT - 7: 2, NT - 3: 1, NT - 1: 0}), 6: (2, {NT - 3: 1, NT - 1: 0}), 7: (2, {NT - 6: 1, NT - 1: 0})}[OPT["ps"]]

def prio(n): e(f"    s_setprio {n}")

def divide(y, last=False):
    t = vE + 8 * y + 4
    e(f"""
    v_rcp_f32 v{t}, v{vDn[y]}
    v_rcp_f32 v{t + 1}, v{vDn[y] + 1}
    {f"v_pk_add_f32 {vr(vM, 2)}, {vr(vM, 2)}, {vr(vDn[y], 2)}" if last or not OPT["nrs"] else f"v_add_u32 v{vaN[y]}, {RS}, v{vaN[y]}"}
    v_pk_mul_f32 {vr(vAc[y], 2)}, {vr(vAc[y], 2)}, {vr(t, 2)}
    v_pk_fma_f32 {vr(vM, 2)}, {vr(vAc[y], 2)}, {vr(vAc[y], 2)}, {vr(vM, 2)}
""")

def flush_adds(y, back=0):
    t = vE + 8 * y
    e(f"""
    v_cvt_f64_f32 {vr(t, 2)}, v{vAc[y]}
    v_cvt_f64_f32 {vr(t + 2, 2)}, v{vAc[y] + 1}
    ds_add_f64 v{vaN[y]}, {vr(t, 2)} offset:{AG - QU - back}
    ds_add_f64 v{vaN[y]}, {vr(t + 2, 2)} offset:{AG - QU + 8 - back}
""")

def exec_bit(y, t):
    e(f"    s_bfe_i32 exec_lo, s{sFM[y]}, {0x10000 | t:#x}\n    s_bfe_i32 exec_hi, s{sFM[y] + 1}, {0x10000 | t:#x}")

def event_block(t, y, v):
    e(f"K2_{v}EV{t}_{y}:")
    exec_bit(y, t)
    e(f"    s_cbranch_execz K2_{v}EQ{t}_{y}")
    if OPT["unc"] == 2 and not v:
        divide(y)
        if not OPT["nrs"]: e(f"    v_mov_b64 {vr(vDn[y], 2)}, {sr(sOne, 2)}")
    early = OPT["unc"] == 2 and OPT["nrs"] and not v
    flush_adds(y, RS if early else 0)
    if not early: e(f"    v_add_u32 v{vaN[y]}, {RS}, v{vaN[y]}")
    e(f"""
    v_mov_b64 {vr(vAc[y], 2)}, 0
K2_{v}EQ{t}_{y}:
""")
    if t + 2 < NT:
        exec_bit(y, t + 1)
        e(f"    ds_read_b64 {vr(vQ + 2 * y, 2)}, v{vaN[y]} offset:{RS}")
    e(f"    s_mov_b64 exec, -1\n    s_branch K2_{v}EB{t}_{y}")

def gather_lines(dst, adr):
    out = []
    for q in range(4):
        for y in range(2):
            a = adr + 4 * y + q
            pre = f"    v_min_u32 v{a}, {PADV}, v{a}\n    v_and_b32 v{a}, -8, v{a}\n" if OPT["safe"] else ""
            out.append(pre + f"    buffer_load_dword v{dst + 2 * q + y}, v{a}, s[8:11], 0 offen")
    return out
def gathers(dst, adr):
    for l in gather_lines(dst, adr): e(l)

def mfma4(D, P, q): return f"    v_mfma_f32_4x4x4_16b_bf16 {vr(D + 4 * q, 4)}, {vr(vI, 2)}, {vr(P + 2 * q, 2)}, {vr(vQ, 4)}"
def mfma32(D): return f"    v_mfma_f32_32x32x16_bf16 {vr(D, 16)}, {vr(vAe, 4)}, {vr(vBw, 4)}, {vr(D, 16)}"

def core_lines(D, guarded):
    Ee = vE
    def p(r): return vr(r, 2)
    ex = [f"    v_exp_f32 v{Ee + k}, v{D + k}" for k in range(16)]
    if not guarded and OPT["unc"] == 2:
        rest = []
        for q in range(4):
            Do = vDn if (q % 2 == 0 or not OPT["pp"]) else (122, 124)
            Dw = vDn if (q % 2 == 1 or not OPT["pp"]) else (122, 124)
            n1 = [f"    v_pk_fma_f32 {p(vAc[y])}, {p(vAc[y])}, {p(Ee + 4 * q + 2 * y)}, {p(vAc[y])}" for y in range(2)]
            n2 = [f"    v_pk_fma_f32 {p(vAc[y])}, {p(D + 4 * q + 2 * y)}, {p(Do[y])}, {p(vAc[y])}" for y in range(2)]
            dd = [f"    v_pk_fma_f32 {p(Dw[y])}, {p(Do[y])}, {p(Ee + 4 * q + 2 * y)}, {p(Do[y])}" for y in range(2)]
            rest += (n1 + dd + n2) if OPT["pp"] else (n1 + n2 + dd)
        return ex, [], rest
    if guarded:
        sc = [f"    v_pk_fma_f32 {p(Ee + 2 * m)}, {p(Ee + 2 * m)}, {KCOP}" for m in range(8)]
        seq = [
            lambda o: f"v_pk_mul_f32 {p(D + o)}, {p(D + o)}, {p(Ee + o + 4)}",
            lambda o: f"v_pk_mul_f32 {p(D + o + 8)}, {p(D + o + 8)}, {p(Ee + o + 12)}",
            lambda o: f"v_pk_fma_f32 {p(D + o)}, {p(D + o + 4)}, {p(Ee + o)}, {p(D + o)}",
            lambda o: f"v_pk_fma_f32 {p(D + o + 8)}, {p(D + o + 12)}, {p(Ee + o + 8)}, {p(D + o + 8)}",
            lambda o: f"v_pk_mul_f32 {p(Ee + o)}, {p(Ee + o)}, {p(Ee + o + 4)}",
            lambda o: f"v_pk_mul_f32 {p(Ee + o + 8)}, {p(Ee + o + 8)}, {p(Ee + o + 12)}",
        ]
    else:
        sc = [f"    v_pk_add_f32 {p(Ee + o + j)}, {p(Ee + o + j)}, 1.0 op_sel_hi:[1,0]" for j in (4, 12) for o in (0, 2)]
        seq = [
            lambda o: f"v_pk_fma_f32 {p(D + o + 4)}, {p(D + o + 4)}, {p(Ee + o)}, {p(D + o + 4)}",
            lambda o: f"v_pk_fma_f32 {p(D + o + 12)}, {p(D + o + 12)}, {p(Ee + o + 8)}, {p(D + o + 12)}",
            lambda o: f"v_pk_fma_f32 {p(Ee + o)}, {p(Ee + o)}, {p(Ee + o + 4)}, {p(Ee + o + 4)}",
            lambda o: f"v_pk_fma_f32 {p(Ee + o + 8)}, {p(Ee + o + 8)}, {p(Ee + o + 12)}, {p(Ee + o + 12)}",
            lambda o: f"v_pk_fma_f32 {p(D + o)}, {p(D + o)}, {p(Ee + o + 4)}, {p(D + o + 4)}",
            lambda o: f"v_pk_fma_f32 {p(D + o + 8)}, {p(D + o + 8)}, {p(Ee + o + 12)}, {p(D + o + 12)}",
        ]
    seq += [
        lambda o: f"v_pk_mul_f32 {p(Ee + o + 4)}, {p(Ee + o)}, {p(Ee + o + 8)}",
        lambda o: f"v_pk_mul_f32 {p(D + o)}, {p(D + o)}, {p(Ee + o + 8)}",
        lambda o: f"v_rcp_f32 v{Ee + o + 4}, v{Ee + o + 4}",
        lambda o: f"v_rcp_f32 v{Ee + o + 5}, v{Ee + o + 5}",
        lambda o: f"v_pk_fma_f32 {p(D + o)}, {p(D + o + 8)}, {p(Ee + o)}, {p(D + o)}",
        lambda o: f"v_pk_fma_f32 {p(vAc[o // 2])}, {p(D + o)}, {p(Ee + o + 4)}, {p(vAc[o // 2])}",
    ]
    rest = ["    " + fn(o) for fn in seq for o in (0, 2)]
    if not guarded:
        rest.insert(16, f"    v_pk_fma_f32 {p(vM)}, {p(Ee + 4)}, {p(Ee + 6)}, {p(vM)}")
    return ex, sc, rest

def tile(t, v):
    a, r = t % 2, NT - t
    ex, sc, rest = core_lines(vD[a], v == 'G' or not OPT['unc'])
    Dn, Pn = vD[1 - a], vP[1 - a]
    e(f"K2_{v}T{t}:")
    if t in PRIO_AT: prio(PRIO_AT[t])
    pk = sc + rest
    if r >= 2:
        mp = OPT["mpos"]
        k0 = {5: 0, 6: 4}.get(mp, 2)
        seq = ex[:k0] + [f"    s_waitcnt vmcnt({8 if r >= 3 else 0}) lgkmcnt(0)"]
        for q in range(4): seq += [mfma4(Dn, Pn, q), ex[k0 + q]]
        seq += ex[k0 + 4:k0 + 7] + [mfma32(Dn)]
        k = k0 + 7
        mem = []
        if r >= 4: mem += gather_lines(Pn, vSO)
        if r >= 5: mem += [f"    ds_read_b128 {vr(vSO + 4 * y, 4)}, v{vaS[y]} offset:{16 * (t + 4)}" for y in range(2)]
        if r >= 3: mem += [f"    ds_read2_b64 {vr(vAe, 4)}, v{vaE} offset0:{4 * (t + 2)} offset1:{4 * (t + 2)}"]
        if mp in (0, 5): seq += ex[k:k + 5] + mem + ex[k + 5:] + pk
        elif mp in (1, 6): seq += ex[k:] + mem + pk
        elif mp == 2: seq += ex[k:] + pk[:12] + mem + pk[12:]
        elif mp == 3: seq += ex[k:] + pk + mem
        elif mp == 4: seq += ex[k:k + 5] + mem[:4] + ex[k + 5:] + pk[:6] + mem[4:8] + pk[6:12] + mem[8:] + pk[12:]
    else:
        seq = ex + pk
    for l in seq: e(l)
    if not v: stamp(100 + t - 5, 4, 1)
    if r >= 2:
        for y in range(2):
            e(f"    s_bitcmp1_b32 s{sEV[y]}, {t}\n    s_cbranch_scc1 K2_{v}EV{t}_{y}\nK2_{v}EB{t}_{y}:")

def x_addr(xa):
    e(f"""
    v_xor_b32 v{xa}, v5, v6
    v_lshlrev_b32 v{xa}, 4, v{xa}
    v_lshl_or_b32 v{xa}, v6, 8, v{xa}
    v_add_u32 v{xa}, {XL}, v{xa}
    v_xor_b32 v{xa + 1}, 64, v{xa}
    v_xor_b32 v{xa + 2}, 0x80, v{xa}
    v_xor_b32 v{xa + 3}, 0xc0, v{xa}
""")
def x_reads(xa, xb):
    for s in range(4):
        for T in range(3):
            e(f"    ds_read_b128 {vr(xb(T, s), 4)}, v{xa + s} offset:{4096 * T}")
def node_mfma(acc, W, xb):
    for s in range(4):
        for T in range(3):
            e(f"    s_waitcnt lgkmcnt({11 - 3 * s - T})")
            c = "0" if s == 0 else vr(acc + 4 * T, 4)
            e(f"    v_mfma_f32_16x16x32_bf16 {vr(acc + 4 * T, 4)}, {vr(W + 4 * s, 4)}, {vr(xb(T, s), 4)}, {c}")
def per_record(lab, fn):
    for k in range(NK):
        e(f"    s_mov_b64 exec, {sr(sM[k], 2)}")
        if k >= 2: e(f"    s_cbranch_execz {lab}")
        fn(k)
    e(f"{lab}:")

def conv_addr(t):
    e(f"""
    v_cvt_f32_u32 v{t}, v{vNp}
    s_lshl_b32 s36, s21, 2
    s_sub_u32 s36, s36, 24
    v_mul_f32 v{t}, 0xbe800000, v{t}
    s_mul_i32 s37, s36, {RS}
    s_add_u32 s37, s37, {QU}
    v_add_u32 v{vCA}, s37, v7
    s_mul_i32 s37, s36, {RB}
    s_add_u32 s37, s37, {AGB}
    v_lshl_add_u32 v{vCW}, v1, 2, s37
""")
    for k in range(4):
        e(f"    v_readlane_b32 s{60 + 2 * k}, v{t}, s36")
        if k < 3: e("    s_add_u32 s36, s36, 1")

def kernel2():
    e(f"""
.text
.globl mpnn_edge_kernel
.p2align 8
.type mpnn_edge_kernel,@function
mpnn_edge_kernel:
    s_load_dwordx2 s[4:5], s[0:1], 64       ; ws
    s_load_dwordx2 s[12:13], s[0:1], 0      ; x
    s_load_dwordx2 s[16:17], s[0:1], 48     ; out
    s_cmp_ge_u32 s2, 256
    s_cbranch_scc1 K2_END
    v_lshrrev_b32 v2, 6, v0
    s_and_b32 s34, s2, 63
    v_readfirstlane_b32 s21, v2
    s_lshl_b32 s34, s34, 10
    s_lshr_b32 s3, s2, 6
    s_add_u32 s34, s34, s3
    s_lshl2_add_u32 s34, s34, {DESC}
    s_mov_b32 s6, {WSEND:#x}
    s_mov_b32 s7, 0x20000
    v_and_b32 v4, -4, v0
    v_lshlrev_b32 v4, 2, v4
""")
    stamp(0, 4, 1); light0()
    e(f"""
    v_lshrrev_b32 v8, 4, v0
    v_xor_b32 v9, v8, v0
    v_and_b32 v9, 15, v9
    s_waitcnt lgkmcnt(0)
    buffer_load_dword v2, v4, s[4:7], s34 offen
    s_and_b32 s20, s2, 7
    s_bfe_u32 s35, s2, 0x30003
    s_lshl3_add_u32 s20, s20, s35
    s_lshl2_add_u32 s20, s20, s3
    s_cmp_ge_u32 s21, 11
    s_cbranch_scc1 K2_NOX
    s_lshl_b32 s35, s20, 8
    v_lshl_add_u32 v8, v8, 16, s35
    s_lshl_b32 s36, s21, 10
    s_add_u32 s36, s36, {XL}
    s_mov_b32 m0, s36
""")
    srd(12, N * 256)
    e(f"""
    v_lshl_add_u32 v8, v9, 4, v8
    buffer_load_dwordx4 v8, s[12:15], 0 offen lds
K2_NOX:
    v_lshrrev_b32 v3, 2, v0
    v_mul_u32_u24 v3, {RSTR}, v3
    v_and_b32 v4, 3, v0
    s_mov_b32 s24, 0
    s_mov_b32 s25, {4 * NK}
    s_mov_b32 s{sFirst}, 1
    v_lshlrev_b32 v56, 4, v0
    v_mov_b64 v[8:9], 0
    v_mov_b64 v[10:11], 0
    s_cmp_ge_u32 s21, 2
    s_cbranch_scc1 K2_NOZ0
    ds_write_b128 v56, v[8:11] offset:{MISC}
K2_NOZ0:
""")
    def ag16(lab):
        e(f"""
    v_add_u32 v57, {AG}, v56
    ds_write_b128 v57, v[8:11]
    ds_write_b128 v57, v[8:11] offset:16384
    s_cmp_ge_u32 s21, 11
    s_cbranch_scc1 {lab}
    ds_write_b128 v57, v[8:11] offset:32768
""")
    if OPT["agz"] == 0:
        ag16("K2_NOZ3")
        e("    s_waitcnt vmcnt(1)\n    s_branch K2_ROUND\nK2_NOZ3:\n    s_waitcnt vmcnt(0)")
    else:
        if OPT["agz"] == 1:
            e(f"    s_cmp_ge_u32 s21, 8\n    s_cbranch_scc1 K2_NOZ3\n    v_add_u32 v57, {AG}, v56")
            for i in range(5): e(f"    ds_write_b128 v57, v[8:11] offset:{8192 * i}")
            e(f"    s_cmp_ge_u32 s21, 3\n    s_cbranch_scc1 K2_NOZ3\n    ds_write_b128 v57, v[8:11] offset:{8192 * 5}\nK2_NOZ3:")
        e("    s_cmp_lt_u32 s21, 11\n    s_cbranch_scc1 K2_WD1\n    s_waitcnt vmcnt(0)\nK2_WD1:\n    s_waitcnt vmcnt(1)")
    e(f"""
K2_ROUND:
""")
    prio(2)
    stamp(1, 4, 1)
    e(f"""
    v_lshrrev_b32 v16, 16, v2               ; count
    v_and_b32 v17, 0xffff, v2               ; start
    v_subrev_u32 v16, s24, v16
    v_add3_u32 v17, v17, s24, v4
    v_min_i32 v18, s25, v16
    v_mad_u32_u24 v17, v17, 12, v3
    v_sub_u32 v18, v18, v4
    s_mov_b32 s34, {REC}
""")
    for k in range(4): e(f"    v_cmp_lt_i32 {sr(sM[k], 2)}, {4 * k}, v18")
    def ld(k):
        e(f"    buffer_load_dwordx3 {vr(vR + 4 * k, 3)}, v17, s[4:7], s34 offen offset:{48 * k}")
        if 4 <= k + 1 < NK: e(f"    v_cmp_lt_i32 {sr(sM[k + 1], 2)}, {4 * (k + 1)}, v18")
    per_record("K2_RLD", ld)
    e("    s_mov_b64 exec, -1")
    stamp(2, 4, 1)
    prio(0)
    e(f"""
    v_and_b32 v1, 63, v0
    v_cmp_lt_i32 {sr(sMM, 2)}, s25, v16
    v_lshlrev_b32 v7, 4, v1                 ; lane*16
    s_mov_b32 s75, 0
""")
    if not OPT["bdp"]: e("    s_waitcnt lgkmcnt(3)\n    s_barrier")
    e(f"""
    ds_write_b128 v56, v[8:11] offset:{EA}
    s_cmp_ge_u32 s21, 8
    s_cbranch_scc1 K2_NOSO
    v_mov_b32 v12, {PADV}
    v_mov_b32 v13, v12
    v_mov_b32 v14, v12
    v_mov_b32 v15, v12
    ds_write_b128 v56, v[12:15] offset:{SO}
    {"s_mov_b32 s75, s%d" % sFirst if OPT["qo"] else "s_branch K2_NOW2"}
K2_NOSO:
    {"" if OPT["qo"] else "s_mov_b32 s75, s%d                ; 1: this wave computes q in this round" % sFirst}
""")
    def w2_loads():
        e(f"    s_lshl_b32 s74, s21, 12\n    s_add_u32 s74, s74, {W2F - (0 if OPT['qo'] else 8 * 4096)}")
        for s in range(4):
            e(f"    buffer_load_dwordx4 {vr(92 + 4 * s, 4)}, v7, s[4:7], s74 offen offset:{1024 * s}")
    if OPT["bdp"] != 2:
        e("    s_cmp_eq_u32 s75, 0\n    s_cbranch_scc1 K2_NOW2")
        w2_loads()
    e(f"""
K2_NOW2:
    s_cmp_eq_u32 s{sFirst}, 0
    s_cbranch_scc1 K2_SETD
""")
    if OPT["agz"] == 2:
        ag16("K2_NOZ3"); e("K2_NOZ3:")
    e(f"""
    v_lshrrev_b32 v5, 4, v1                 ; g
    v_and_b32 v6, 15, v1                    ; n
    v_mov_b32 v{vNp}, 0
    s_cmp_lt_u32 s20, 16
    s_cselect_b32 s22, 40, 39
    s_bfm_b64 s[78:79], s22, 0
    s_and_b32 s23, s21, 1
    s_lshr_b32 s76, s21, 1
    s_mov_b32 s26, {KC:#x}
    s_mov_b32 s{sGuard}, 0
    s_mov_b32 s{sOne}, {f2u(2.0 ** -64):#x}
    s_mov_b32 s{sOne + 1}, s{sOne}
    s_mov_b32 s{sScale}, {f2u(2.0 ** 31 * math.log(2.0)) if OPT['unc'] else f2u(1.0):#x}
    s_mov_b32 s72, {NL2E:#x}
    s_lshl_b32 s39, s23, 7
    s_add_u32 s8, s4, s39
    s_addc_u32 s9, s5, 0
    s_or_b32 s9, s9, 0x80000000
    s_mov_b32 s10, 0x10000
    s_mov_b32 s11, 0x00c00000
""")
    srd(16, N * 256)
    e(f"""
K2_SETD:
    v_mov_b32 v59, 4
    v_lshlrev_b32 v58, 2, v1
    v_mov_b32 v{vRS}, {RS}
    v_and_b32 v{vaN[1]}, 31, v1
    s_lshl_b32 s36, s23, 9
    s_add_u32 s37, s36, {QU}
    v_lshl_add_u32 v{vaN[0]}, v{vaN[1]}, 4, s37
    v_lshl_add_u32 v{vW3a}, s36, 1, v7
    s_movk_i32 s36, 0x3f80
    s_mov_b32 s37, 0
    v_and_b32 v16, 0x30, v7
    v_lshlrev_b64 {vr(vI, 2)}, v16, s[36:37]
    v_mov_b32 v{vS16}, 0
    v_mov_b64 {vr(vaE, 2)}, 0
    v_mov_b32 v{vStr}, 0
    s_mov_b64 exec, s[78:79]
    v_mov_b32 v{vS16}, 16
    s_mov_b32 exec_lo, 0x55555555
    s_mov_b32 exec_hi, 0xaaaaaaaa
    v_and_b32 v{vaE}, 0x18, v1
    v_mov_b32 v{vAct}, 1
    v_bfe_u32 v{vStr}, v1, 1, 2
""")
    if not OPT["bdp"]: e(f"    s_mov_b64 exec, {sr(sMM, 2)}\n    s_cbranch_execnz K2_MORE\nK2_MOREB:")
    e(f"""
    s_cmp_eq_u32 s75, 0
    s_cbranch_scc1 K2_W0
    s_mov_b64 exec, -1
""")
    x_addr(108)
    e(f"""
    s_bfe_u32 s36, s21, 0x20001
    s_lshl3_add_u32 s36, s36, s23
    s_lshl_b32 s36, s36, 5
    s_add_u32 s36, s36, {QU}
    v_mul_u32_u24 v{vTa}, {RS}, v6
    v_lshl_add_u32 v{vTa}, v5, 6, v{vTa}
    v_add_u32 v{vTa}, s36, v{vTa}
    s_cmp_eq_u32 s75, 0
""")
    if OPT["bdp"]:
        e("K2_W0:")
        prio(2)
        e(f"""
    s_waitcnt lgkmcnt({(5, 8, 5)[OPT['agz']]})
    s_barrier
    s_mov_b64 exec, {sr(sMM, 2)}
    s_cbranch_execnz K2_MORE
K2_MOREB:
    s_cbranch_scc1 K2_W1
""")
        if OPT["bdp"] == 2:
            e("    s_mov_b64 exec, -1")
            w2_loads()
        e(f"""
    s_waitcnt vmcnt(4)
    s_branch K2_RECS
K2_W1:
    s_waitcnt vmcnt(0)
K2_RECS:
""")
    else:
        prio(2)
        e("    s_waitcnt vmcnt(4)\n    s_branch K2_RECS\nK2_W0:")
        prio(2)
        e("    s_waitcnt vmcnt(0)\nK2_RECS:")
    stamp(3, 4, 1)
    per_record("K2_HISTD", lambda k: e(f"""
    v_lshrrev_b32 v{vN4[k]}, 24, v{vR + 2 + 4 * k}
    ds_add_rtn_u32 v{vR + 3 + 4 * k}, v{vN4[k]}, v59 offset:{CNT}
    v_and_b32 v{vR + 2 + 4 * k}, 0x3ffffff, v{vR + 2 + 4 * k}
"""))
    e(f"""
    s_mov_b64 exec, -1
    s_cmp_lg_u32 s76, 0
    s_cbranch_scc1 K2_NOW3
    s_lshl_b32 s34, s23, 10
    s_add_u32 s35, s34, {W3L}
    s_add_u32 s34, s34, {W3F}
    s_mov_b32 m0, s35
    s_nop 0
    buffer_load_dwordx4 v7, s[4:7], s34 offen lds
K2_NOW3:
""")
    if OPT["pf2"]:
        e(f"""
    s_sub_u32 s34, s21, 2
    s_cmp_ge_u32 s34, 6
    s_cbranch_scc1 K2_NOPF2
    s_lshr_b32 s35, s2, 3
    s_mul_i32 s35, s35, 80000
    s_mul_i32 s34, s34, {OPT["pf2"] * 1024}
    s_add_u32 s34, s34, s35
""" + "".join(f"    buffer_load_dwordx4 v[116:119], v7, s[4:7], s34 offen offset:{1024 * i}\n" for i in range(OPT["pf2"])) + "K2_NOPF2:")
    e(f"""
    s_waitcnt lgkmcnt(0)
    s_barrier
""")
    stamp(4, 4, 1)
    e(f"""
    ds_read_b32 v{vC4}, v58 offset:{CNT}
    s_waitcnt lgkmcnt(0)
    v_add_u32 v{vQ16}, 12, v{vC4}
    v_and_b32 v{vQ16}, -16, v{vQ16}
    v_max_u32 v{vQ16}, v{vS16}, v{vQ16}     ; 16*quads
    s_nop 1
    v_add_u32_dpp v{vE16}, v{vQ16}, v{vQ16} row_shr:1 row_mask:0xf bank_mask:0xf bound_ctrl:1
""")
    for c in ("row_shr:2 row_mask:0xf", "row_shr:4 row_mask:0xf", "row_shr:8 row_mask:0xf", "row_bcast:15 row_mask:0xa", "row_bcast:31 row_mask:0xc"):
        e(f"    s_nop 1\n    v_add_u32_dpp v{vE16}, v{vE16}, v{vE16} {c} bank_mask:0xf")
    e(f"""
    v_sub_u32 v{vS16}, v{vE16}, v{vQ16}
    v_readlane_b32 s34, v{vE16}, 63
""")
    for k in range(NK):
        if k >= 3: e(f"    s_cmp_eq_u64 {sr(sM[k], 2)}, 0\n    s_cbranch_scc1 K2_BPD")
        e(f"    ds_bpermute_b32 v{vN4[k]}, v{vN4[k]}, v{vS16}")
    e(f"""
K2_BPD:
    s_cmp_gt_u32 s34, {S16MAX}
    s_cbranch_scc1 K2_REDO
    s_add_u32 s34, s34, 48
    s_lshr_b32 s35, s34, 9
    s_bfe_u32 s34, s34, 0x30006
    s_mul_i32 s37, s76, s35
    s_waitcnt lgkmcnt(0)
""")
    per_record("K2_GEO", lambda k: e(f"""
    v_add_u32 v{vN4[k]}, v{vN4[k]}, v{vR + 3 + 4 * k}
    ds_write_b32 v{vN4[k]}, v{vR + 2 + 4 * k} offset:{SO}
    v_add_u32 v{vR + 3 + 4 * k}, v{vN4[k]}, v{vN4[k]}
"""))
    e(f"""
    s_cmp_lg_u32 s21, {8 * OPT['qo']}
    s_cbranch_scc1 K2_NOFL
    s_mov_b64 exec, s[78:79]
    v_lshrrev_b32 v16, 4, v{vE16}
    ds_write_b8 v16, v59 offset:{FL - 1}
K2_NOFL:
    s_min_u32 s38, s76, s34
    s_add_u32 s37, s37, s38
    s_lshl_b32 s60, s37, 6                  ; stream (0,X)
    s_cmp_lt_u32 s76, s34
    s_addc_u32 s35, s35, 0
    s_mov_b64 exec, -1
    v_and_b32 v{vaS[0]}, 32, v1
    v_mul_u32_u24 v{vaS[0]}, s35, v{vaS[0]}
    s_lshl_b32 s77, s35, 4
    v_add_u32 v{vaS[0]}, s60, v{vaS[0]}
    v_add_u32 v{vaS[1]}, s77, v{vaS[0]}
""")
    if OPT["pf2"]: e("    s_sub_u32 s36, s21, 2\n    s_cmp_lt_u32 s36, 6\n    s_cbranch_scc1 K2_NOVM")
    e("    s_waitcnt vmcnt(0)\nK2_NOVM:")
    if OPT["uw3"]:
        e(f"""
    s_cmp_eq_u32 s75, s{sFirst}
    s_cbranch_scc1 K2_NOUT
    s_lshl_b32 s36, s21, 12
    s_add_u32 s36, s36, {WUT}
""")
        for s in range(4):
            e(f"    buffer_load_dwordx4 {vr(92 + 4 * s, 4)}, v7, s[4:7], s36 offen offset:{1024 * s}")
        e("K2_NOUT:")
    e(f"""
    s_cmp_lg_u32 s75, 0
    s_waitcnt lgkmcnt(0)
    s_barrier
""")
    stamp(5, 4, 1)
    def ea_writes(lab):
        per_record(lab, lambda k: e(f"    ds_write_b64 v{vR + 3 + 4 * k}, {vr(vR + 4 * k, 2)} offset:{EA}"))
    def first_gathers(lab, mid=None):
        e(f"""
    ds_read_b128 {vr(vSO, 4)}, v{vaS[0]} offset:{SO}
    ds_read_b128 {vr(vSO + 4, 4)}, v{vaS[1]} offset:{SO}
    ds_read_b128 {vr(vE, 4)}, v{vaS[0]} offset:{SO + 16}
    ds_read_b128 {vr(vE + 4, 4)}, v{vaS[1]} offset:{SO + 16}
    s_bitcmp1_b32 s35, 0
    s_cbranch_scc1 {lab}1
""")
        for a in range(2):
            if a: e(f"{lab}1:")
            e("    s_waitcnt lgkmcnt(2)")
            gathers(vP[a], vSO)
            e("    s_waitcnt lgkmcnt(0)")
            if mid: mid(a)
            gathers(vP[1 - a], vE)
            if not a: e(f"    s_branch {lab}D")
        e(f"{lab}D:")
    def addresses():
        e(f"""
    v_lshrrev_b32 v8, 4, v{vaS[0]}
    v_add_u32 v8, v8, v{vaN[1]}
    v_add_u32 v9, s35, v8
    ds_read_u8 v8, v8 offset:{FL}
    ds_read_u8 v9, v9 offset:{FL}
    ds_read_b128 {vr(vBw, 4)}, v{vW3a} offset:{W3L}
    s_add_u32 s61, s60, s77
    s_add_u32 s62, s61, s77
    s_add_u32 s63, s62, s77
    s_mov_b64 exec, s[78:79]
""")
        for k in range(4):
            e(f"    v_cmp_ge_u32 vcc, s{60 + k}, v{vE16}\n    s_bcnt1_i32_b64 s{64 + k}, vcc")
        e(f"""
    v_sub_u32 v{vQ16}, v{vQ16}, v{vC4}
    v_add_u32 v{vNp}, v{vNp}, v{vQ16}
    s_mov_b32 exec_hi, 0
    v_mad_u32_u24 v{vaN[1]}, s65, v{vRS}, v{vaN[0]}
    v_mad_u32_u24 v{vaN[0]}, s64, v{vRS}, v{vaN[0]}
    s_not_b64 exec, exec
    v_mad_u32_u24 v{vaN[1]}, s67, v{vRS}, v{vaN[0]}
    v_mad_u32_u24 v{vaN[0]}, s66, v{vRS}, v{vaN[0]}
    s_mov_b64 exec, -1
    s_lshl_b32 s36, s35, 5
    s_lshl1_add_u32 s37, s60, {EA}
    v_mad_u32_u24 v{vaE}, v{vStr}, s36, v{vaE}
    v_mad_u32_u24 v{vaE}, v{vAct}, s37, v{vaE}
    v_mov_b64 {vr(vAc[0], 2)}, 0
    v_mov_b64 {vr(vAc[1], 2)}, 0
    v_mov_b64 {vr(vM, 2)}, 0
    v_mov_b64 {vr(vDn[0], 2)}, {sr(sOne, 2)}
    v_mov_b64 {vr(vDn[1], 2)}, {sr(sOne, 2)}
    s_sub_u32 s34, {NT}, s35
    s_add_u32 s38, s77, {SO - 16 * NT}
    s_sub_u32 s39, s36, {32 * NT}
    s_waitcnt lgkmcnt(0)
    v_cmp_ne_u32 {sr(sFM[0], 2)}, 0, v8
    v_cmp_ne_u32 {sr(sFM[1], 2)}, 0, v9
""")
    def tile_write(src, o):
        for T in range(3):
            if T == 2: e(f"    s_mov_b32 exec_lo, {M9}\n    s_mov_b32 exec_hi, {M9}")
            for h in range(2):
                src(T, h)
            for h in range(2):
                e(f"    ds_write_b64 v{vTa}, {vr(o[0] + 4 * T + 2 * h, 2)} offset:{16 * RS * T + 16 * h + o[1]}")
        e("    s_mov_b64 exec, -1")
    e("    s_cbranch_scc0 K2_FG")
    prio(3)
    xbq = lambda T, s: 8 + 16 * T + 4 * s
    x_reads(108, xbq)
    node_mfma(vU, 92, xbq)
    stamp(401, 4, 1)
    ea_writes("K2_EAQ")
    e("    s_mov_b64 exec, -1\n    s_nop 0")
    tile_write(lambda T, h: e(f"    v_pk_mul_f32 {vr(vU + 4 * T + 2 * h, 2)}, {vr(vU + 4 * T + 2 * h, 2)}, s[72:73] op_sel_hi:[1,0]"), (vU, 0))
    stamp(402, 4, 1)
    e("    s_waitcnt lgkmcnt(0)")
    stamp(407, 4, 1)
    e("    s_barrier")
    stamp(403, 4, 1)
    def silu_q():
        for r in range(12):
            e(f"    v_exp_f32 v{92 + r}, v{vU + r}")
        for r in range(0, 12, 2):
            e(f"    v_pk_fma_f32 {vr(92 + r, 2)}, {vr(92 + r, 2)}, {KCOP}")
        for r in range(12):
            e(f"    v_rcp_f32 v{92 + r}, v{92 + r}")
        tile_write(lambda T, h: e(f"    v_pk_mul_f32 {vr(92 + 4 * T + 2 * h, 2)}, {vr(92 + 4 * T + 2 * h, 2)}, {vr(vU + 4 * T + 2 * h, 2)}"), (92, 8))
    if OPT["gpos"] == 0: silu_q()
    stamp(408, 4, 1)
    prio(0)
    first_gathers("K2_GQ")
    prio(OPT["gq2"])
    stamp(11, 4, 1)
    if OPT["gpos"] == 1: silu_q()
    addresses()
    if OPT["gpos"] == 2: silu_q()
    e("    s_branch K2_NOB\nK2_FG:")
    if OPT["stg"]:
        e(f"    s_cmp_lt_u32 s21, {OPT['stg']}\n    s_cbranch_scc1 K2_EARLY")
        ea_writes("K2_EAL")
        e("    s_mov_b64 exec, -1")
        addresses()
        stamp(407, 4, 1)
        e("    s_barrier")
        prio(OPT["gl"])
        first_gathers("K2_GL")
        prio(2)
        stamp(11, 4, 1)
        e("    s_branch K2_NOB\nK2_EARLY:")
        def mid(a):
            ea_writes(f"K2_EAR{a}")
            e("    s_mov_b64 exec, -1")
        first_gathers("K2_GR", mid)
        stamp(11, 4, 1)
    else:
        first_gathers("K2_GR")
        stamp(11, 4, 1)
        ea_writes("K2_EAR")
        e("    s_mov_b64 exec, -1")
    stamp(404, 4, 1)
    addresses()
    stamp(407, 4, 1)
    if OPT["uw3"]:
        e(f"    s_cmp_lt_u32 s21, {OPT['uw3']}\n    s_cbranch_scc1 K2_U1\n    s_barrier\nK2_U1:\n    s_cmp_eq_u32 s{sFirst}, 0\n    s_cbranch_scc1 K2_U2")
        xbw = lambda T, s: ((8, 12, 32, 36), (40, 44, 48, 52), (56, 60, 64, 72))[T][s]
        x_addr(122); x_reads(122, xbw)
        e("    s_waitcnt vmcnt(16)")
        node_mfma(vU, 92, xbw)
        e(f"K2_U2:\n    s_cmp_ge_u32 s21, {OPT['uw3']}\n    s_cbranch_scc1 K2_NOB")
    e(f"""
    s_barrier
K2_NOB:
    ds_read_b64 {vr(vQ, 2)}, v{vaN[0]}
    ds_read_b64 {vr(vQ + 2, 2)}, v{vaN[1]}
    ds_read2_b64 {vr(vAe, 4)}, v{vaE} offset0:0 offset1:0
    ds_read_b128 {vr(vSO, 4)}, v{vaS[0]} offset:{SO + 32}
    ds_read_b128 {vr(vSO + 4, 4)}, v{vaS[1]} offset:{SO + 32}
    s_mov_b32 s{sFirst}, 0
""")
    for y in range(2):
        e(f"""
    s_lshl_b64 {sr(sFM[y], 2)}, {sr(sFM[y], 2)}, s34
    s_or_b32 s36, s{sFM[y]}, s{sFM[y] + 1}
    s_lshr_b32 s37, s36, 1
    s_or_b32 s{sEV[y]}, s36, s37
""")
    if OPT["cae"]:
        e("    s_cmp_lt_u32 s21, 8\n    s_cbranch_scc1 K2_NOCE")
        conv_addr(76)
        e("K2_NOCE:")
    stamp(12, 4, 1)
    e(f"""
    s_or_b32 s34, s34, 0x10000
    s_bitcmp1_b32 s35, 0
    s_waitcnt vmcnt(8) lgkmcnt(0)
""")
    stamp(6, 4, 1)
    e("    s_cbranch_scc1 K2_PA1")
    for a in range(2):
        if a: e("K2_PA1:")
        for q in range(4): e(mfma4(vD[a], vP[a], q))
        prio(1)
        e(f"    s_cmp_lt_u32 s35, 3\n    s_cbranch_scc1 K2_NGP{a}")
        gathers(vP[a], vSO)
        e(f"K2_NGP{a}:\n    s_nop 0\n{mfma32(vD[a])}")
        if not a: e("    s_branch K2_PAD")
    e(f"""
K2_PAD:
    ds_read_b128 {vr(vSO, 4)}, v{vaS[0]} offset:{SO + 48}
    ds_read_b128 {vr(vSO + 4, 4)}, v{vaS[1]} offset:{SO + 48}
    ds_read2_b64 {vr(vAe, 4)}, v{vaE} offset0:4 offset1:4
""")
    for y in range(2):
        e(f"""
    s_bfe_i32 exec_lo, s{sFM[y]}, s34
    s_bfe_i32 exec_hi, s{sFM[y] + 1}, s34
    ds_read_b64 {vr(vQ + 2 * y, 2)}, v{vaN[y]} offset:{RS}
""")
    e(f"""
    s_mov_b64 exec, -1
    v_mad_i32_i24 v{vaE}, v{vAct}, s39, v{vaE}
    v_add_u32 v{vaS[0]}, s38, v{vaS[0]}
    v_add_u32 v{vaS[1]}, s38, v{vaS[1]}
""")
    prio(PRIO_0)
    def edge_loop(v):
        for Lv in (10, 11, 9, 12, 8, 13, 7, 14, 6, 15, 5, 4, 3, 2, 1):
            e(f"    s_cmp_eq_u32 s35, {Lv}\n    s_cbranch_scc1 K2_{v}T{NT - Lv}")
        e(f"K2_{v}LOOP:")
        for t in range(NT):
            tile(t, v)
    if OPT["unc"]: e(f"    s_cmp_lg_u32 s{sGuard}, 0\n    s_cbranch_scc1 K2_GUARDED")
    edge_loop("")
    xbu = lambda T, s: 32 + 16 * T + 4 * s
    if OPT["unc"] == 2:
        e("K2_LDIV:"); divide(0, True); divide(1, True)
    e(f"""
K2_LDONE:
    s_cmp_ge_u32 s21, 8
    s_cbranch_scc1 K2_LD2
    s_lshl_b32 s36, s21, 12
    s_add_u32 s36, s36, {WUT}
    s_add_u32 s37, s36, {WUB - WUT}
""")
    for s in range(0 if OPT["uw3"] else 4):
        e(f"    buffer_load_dwordx4 {vr(16 + 4 * s, 4)}, v7, s[4:7], s36 offen offset:{1024 * s}")
    for s in range(4):
        e(f"    buffer_load_dwordx4 {vr(92 + 4 * s, 4)}, v7, s[4:7], s37 offen offset:{1024 * s}")
    e("K2_LD2:")
    for y in range(2):
        flush_adds(y)
    e(f"""
    v_mov_b32 v89, {MORE}
    v_add_f32 v{vM}, v{vM}, v{vM + 1}
    v_cmp_nge_f32 vcc, {f2u(2.0 ** (124 if OPT['unc'] == 2 else 64)):#x}, v{vM}
    ds_read_b32 v89, v89
    s_cbranch_vccnz K2_BIG
K2_BIGB:
""")
    stamp(7, 4, 1)
    e(f"""
    s_cmp_ge_u32 s21, 8
    s_cbranch_scc1 K2_NOU
""")
    if not OPT['uw3']: x_addr(84); x_reads(84, xbu)
    e(f"""
    v_mul_u32_u24 v{vFR}, {RB}, v6
    v_lshl_add_u32 v{vFR}, v5, 4, v{vFR}
    v_add_u32 v{vFR}, {AGB}, v{vFR}
    v_mul_u32_u24 v90, {RO}, v6
    v_lshl_add_u32 v90, v5, 3, v90
    s_lshl_b32 s36, s21, 5
    s_add_u32 s36, s36, {EA}
    v_add_u32 v90, s36, v90
    v_lshrrev_b32 v88, 4, v0
    v_mul_u32_u24 v91, {RO}, v88
    v_lshl_add_u32 v91, v6, 4, v91
    v_lshlrev_b32 v88, 16, v88
    v_lshl_or_b32 v88, v6, 4, v88
    s_lshl_b32 s36, s20, 8
    v_add_u32 v88, s36, v88
    v_add_u32 v125, 0x200000, v88
""")
    if not OPT["uw3"]:
        e("    s_waitcnt vmcnt(4)")
        node_mfma(vU, 16, xbu)
    e(f"""
    s_cmp_lt_u32 s21, 6
    s_cbranch_scc1 K2_NOCA
""")
    if not OPT['cae']: e('K2_NOU:')
    conv_addr(84)
    if OPT['cae']: e('K2_NOU:')
    e(f"""
K2_NOCA:
    s_waitcnt lgkmcnt(0)
    v_readfirstlane_b32 s{sMoreV}, v89
    s_barrier
""")
    stamp(8, 4, 1)
    e(f"""
    s_cmp_lg_u32 s{sMoreV}, 0
    s_cbranch_scc1 K2_NEXT
    v_mov_b32 v123, {BAD}
    ds_read_b32 v123, v123
    s_cmp_lt_u32 s21, 6
    s_cbranch_scc1 K2_NOCV
""")
    for k in range(4):
        e(f"    ds_read_b128 {vr(16 + 4 * k, 4)}, v{vCA} offset:{AG - QU + RS * k}\n    ds_read_b64 {vr(8 + 2 * k, 2)}, v{vCA} offset:{RS * k + 8}")
    for k in range(4):
        e(f"    s_waitcnt lgkmcnt({6 - k})")
        e(f"    v_cvt_f32_f64 v{32 + 2 * k}, {vr(16 + 4 * k, 2)}\n    v_cvt_f32_f64 v{33 + 2 * k}, {vr(18 + 4 * k, 2)}")
        e(f"    v_pk_mul_f32 {vr(8 + 2 * k, 2)}, {vr(8 + 2 * k, 2)}, {sr(60 + 2 * k, 2)} op_sel_hi:[1,0]")
        e(f"    v_pk_fma_f32 {vr(32 + 2 * k, 2)}, {vr(32 + 2 * k, 2)}, {sr(sScale, 2)}, {vr(8 + 2 * k, 2)} op_sel_hi:[1,0,1]")
        e(f"    v_cvt_pk_bf16_f32 v{40 + k}, v{32 + 2 * k}, v{33 + 2 * k}")
        e(f"    ds_write_b32 v{vCW}, v{40 + k} offset:{RB * k}")
    stamp(301, 4, 1)
    e(f"""
K2_NOCV:
    s_waitcnt lgkmcnt(0)
    v_readfirstlane_b32 s36, v123
    s_barrier
""")
    stamp(13, 4, 1)
    e("    s_cmp_lg_u32 s36, 0\n    s_cbranch_scc1 K2_RESTART\n    s_cmp_ge_u32 s21, 8\n    s_cbranch_scc1 K2_FIN")
    xbf = lambda T, s: 16 + 16 * T + 4 * s
    tmp, outr = 76, 8
    def M(T, s, wait=True):
        if wait: e(f"    s_waitcnt lgkmcnt({11 - 4 * T - s})")
        e(f"    v_mfma_f32_16x16x32_bf16 {vr(vU + 4 * T, 4)}, {vr(92 + 4 * s, 4)}, {vr(xbf(T, s), 4)}, {vr(vU + 4 * T, 4)}")
    def sc_(T):
        for m in (2 * T, 2 * T + 1): e(f"    v_pk_mul_f32 {vr(tmp + 2 * m, 2)}, {vr(vU + 2 * m, 2)}, s[72:73] op_sel_hi:[1,0]")
    def ex_(T, k): e(f"    v_exp_f32 v{tmp + 4 * T + k}, v{tmp + 4 * T + k}")
    def ad_(T):
        for m in (2 * T, 2 * T + 1): e(f"    v_pk_add_f32 {vr(tmp + 2 * m, 2)}, {vr(tmp + 2 * m, 2)}, 1.0 op_sel_hi:[1,0]")
    def rc_(T):
        for k in range(4): e(f"    v_rcp_f32 v{tmp + 4 * T + k}, v{tmp + 4 * T + k}")
    def out_(T):
        for m in (2 * T, 2 * T + 1): e(f"    v_pk_mul_f32 {vr(tmp + 2 * m, 2)}, {vr(tmp + 2 * m, 2)}, {vr(vU + 2 * m, 2)}")
        for m in (2 * T, 2 * T + 1): e(f"    v_cvt_pk_bf16_f32 v{outr + m}, v{tmp + 2 * m}, v{tmp + 2 * m + 1}")
        e(f"    ds_write_b64 v90, {vr(outr + 2 * T, 2)} offset:{16 * RO * T}")
    for T in range(3):
        for s in range(4):
            e(f"    ds_read_b128 {vr(xbf(T, s), 4)}, v{vFR} offset:{16 * RB * T + 64 * s}")
    e("    s_waitcnt vmcnt(0)")
    for s in range(4): M(0, s)
    for s in range(4): M(1, s)
    stamp(302, 4, 1)
    sc_(0)
    e("    s_waitcnt lgkmcnt(0)")
    for s in range(4): M(2, s, False); ex_(0, s)
    e("    s_nop 0")
    sc_(1)
    for k in range(4): ex_(1, k)
    ad_(0); rc_(0); sc_(2)
    for k in range(4): ex_(2, k)
    out_(0); stamp(303, 4, 1); ad_(1); rc_(1); ad_(2); out_(1); rc_(2); e("    s_nop 0"); out_(2); stamp(304, 4, 1)
    e(f"""
    s_cmp_ge_u32 s21, 2
    s_waitcnt lgkmcnt(0)
    s_barrier
""")
    stamp(305, 4, 1)
    e(f"""
    ds_read_b128 v[16:19], v91 offset:{EA}
    s_cbranch_scc1 K2_O1
    ds_read_b128 v[20:23], v91 offset:{EA + 32 * RO}
    s_waitcnt lgkmcnt(0)
    buffer_store_dwordx4 v[20:23], v125, s[16:19], 0 offen
K2_O1:
    s_waitcnt lgkmcnt(0)
    buffer_store_dwordx4 v[16:19], v88, s[16:19], 0 offen
K2_FIN:
""")
    light1(4, 1)
    if OPT["stamps"]:
        stamp(9, 4, 1); e("    s_waitcnt vmcnt(0)"); stamp(10, 4, 1); stamp_out(4, 1)
    e("K2_END:\n    s_endpgm")
    for t in range(NT - 1):
        for y in range(2):
            event_block(t, y, '')
    e(f"""
K2_TAILBLOCKS:
K2_MORE:
    v_mov_b32 v16, {MORE}
    ds_write_b32 v16, v59
    s_branch K2_MOREB
K2_BIG:
    v_mov_b32 v{vM}, {BAD}
    ds_write_b32 v{vM}, v{vM}
    s_branch K2_BIGB
K2_NEXT:
    v_mov_b32 v123, {BAD}
    ds_read_b32 v123, v123
    s_add_u32 s24, s24, s25
    s_waitcnt vmcnt(0) lgkmcnt(0)
    v_readfirstlane_b32 s36, v123
    s_barrier
    s_cmp_eq_u32 s36, 0
    s_cbranch_scc1 K2_AGAIN
K2_RESTART:
    s_mov_b32 s{sGuard}, 1
    s_mov_b32 s{sScale}, 1.0
    s_mov_b32 s24, 0
    v_mov_b32 v{vNp}, 0
    v_lshlrev_b32 v56, 4, v0
    v_mov_b64 v[8:9], 0
    v_mov_b64 v[10:11], 0
    v_add_u32 v57, {AG}, v56
    ds_write_b128 v57, v[8:11]
    ds_write_b128 v57, v[8:11] offset:16384
    s_cmp_ge_u32 s21, 11
    s_cbranch_scc1 K2_RS1
    ds_write_b128 v57, v[8:11] offset:32768
K2_RS1:
    s_waitcnt vmcnt(0) lgkmcnt(0)
    s_branch K2_AGAIN
K2_REDO:
    s_mov_b32 s25, 4
    s_waitcnt vmcnt(0) lgkmcnt(0)
    s_barrier
K2_AGAIN:
    v_lshlrev_b32 v56, 4, v0
    v_mov_b64 v[8:9], 0
    v_mov_b64 v[10:11], 0
    s_cmp_ge_u32 s21, 2
    s_cbranch_scc1 K2_ROUND
    ds_write_b128 v56, v[8:11] offset:{MISC}
    s_waitcnt lgkmcnt(0)
K2_LAST:
    s_branch K2_ROUND
""")
    if OPT["unc"]:
        e("K2_GUARDED:")
        edge_loop("G")
        e("    s_branch K2_LDONE")
        for t in range(NT - 1):
            for y in range(2):
                event_block(t, y, "G")

def desc(name, vg, sg):
    e(f"""
.p2align 6
.amdhsa_kernel {name}
  .amdhsa_next_free_vgpr {vg}
  .amdhsa_next_free_sgpr {sg}
  .amdhsa_accum_offset {vg}
  .amdhsa_group_segment_fixed_size 0
  .amdhsa_kernarg_size 72
  .amdhsa_user_sgpr_count 2
  .amdhsa_user_sgpr_kernarg_segment_ptr 1
  .amdhsa_system_sgpr_workgroup_id_x 1
.end_amdhsa_kernel
""")

e(f"""
; MPNN edge MLP, N=10000 nodes, E=320000 edges, D=128, De=4 (bf16 in, bf16 out), in two launches.
; launch 1: bins the edges by bucket (dst & 255) into (e_attr, src, node) records, P' = -log2e * x@W1 (bf16),
; launch 2: one workgroup per bucket: counting sort by node in LDS, q = -log2e * x@W2, then per 16 edges x 64 features
; @launch kernel=mpnn_bin_kernel grid=(512,1,1) block=(768,1,1) lds={K1_LDS}
; @launch kernel=mpnn_edge_kernel grid=(256,1,1) block=(1024,1,1) lds={K2_LDS}
.amdgcn_target "amdgcn-amd-amdhsa--gfx950"
""")
kernel1()
kernel2()
e('.section .rodata,"a"')
desc("mpnn_bin_kernel", 80, 96)
desc("mpnn_edge_kernel", 128, 102 if OPT["stamps"] else 96)
FL_ = {0: "", 1: " sc1", 2: " nt", 3: " sc0 sc1", 4: " sc1 nt", 5: " sc0"}
k2at = next(i for i, l in enumerate(L) if l.startswith("mpnn_edge_kernel:"))
for i, l in enumerate(L):
    c = l.split(";")
    fl = None
    if l.strip().startswith("buffer_store") and " off," not in l:
        fl = FL_[(OPT["stp"] if "v[76:79]" in l else OPT["st1"]) if i < k2at else OPT["st2"]]
    elif l.strip().startswith("buffer_load"):
        if i < k2at:
            if any(x in l for x in ("s[24:27]", "s[8:11], s22", "s[32:35]")): fl = " nt" * OPT["nte"]
            elif "s[4:7]" in l: fl = " nt" * OPT["ntx"]
            elif "s[12:15]" in l and "lds" in l: fl = " nt" * OPT["ntw"]
        else:
            if "s[12:15]" in l: fl = " nt" * OPT["ntx2"]
            elif "dwordx3" in l: fl = " nt" * OPT["ntr"]
    if fl:
        body = c[0].rstrip()
        body = body[:-4] + fl + " lds" if body.endswith(" lds") else body + fl
        L[i] = body + ("   ;" + c[1] if len(c) > 1 else "")
open(sys.argv[1], "w").write("\n".join(L) + "\n")
```

```python
import sys, struct, math

def f2u(x): return struct.unpack("<I", struct.pack("<f", x))[0]

OPT = dict(qp=1, gp2=1, smf=0, dep=1, stg=0, gl=0, nrs=1, unc=2, pp=0, agz=0, qo=0, bdp=2, cae=0, cpf1=0, f16=0, uw3=0, hold=0, hold2=0, otl=0, stp=0, lay=0, k1p=0, k1o=1, cpf2=0, agl=0, t2m=1, olds=1, pf2=0, rab=0, gq=0, gq2=3, gp=1, stg1=0, stg3=0, qpre=0, eal=1, ash=0, dst1=1, fin=1, wpf=0, cpf=6, ps=2, bdl=1, rb=288, st1=0, st2=0, nte=1, ntx=0, ntw=0, ntx2=0, ntr=0, light=0, g1late=0, pf=0, gpos=0, nom4=0, nom32=0, mpos=0, nochk=0, prio1=0, dbg=0, safe=0, stamps=0, prio=1, nogather=0, nocore=0, nolds=0, nomfma=0, noflush=0)
for a in sys.argv[2:]:
    k, v = a.split("="); OPT[k] = int(v)

N, E = 10000, 320000
NB = 256
EPW = 1250
PT    = 0
DESC  = 0x280000
REC   = 0x2C0000
RSTR  = 15488
W2F   = 0x690000
WUT   = W2F + 0x8000
WUB   = WUT + 0x8000
W3F   = WUB + 0x8000
STAMP = W3F + 0x800
WSEND = STAMP + (0x100000 if OPT["stamps"] or OPT["light"] else 0)
NL2E = f2u(-1.4426950408889634)
KC   = f2u(1.0 / (2.0 ** 31 * math.log(2.0)))
NSC  = f2u(-2.0 ** -31)

L = []
def e(s=""):
    for ln in s.strip("\n").split("\n"):
        L.append(ln)
def vr(a, n): return f"v[{a}:{a + n - 1}]" if n > 1 else f"v{a}"
def sr(a, n): return f"s[{a}:{a + n - 1}]" if n > 1 else f"s{a}"

def srd(s, nrec, w3=0x20000):
    e(f"    s_mov_b32 s{s + 2}, {nrec:#x}\n    s_mov_b32 s{s + 3}, {w3:#x}")

def scan64(v):
    for c in ("row_shr:1 row_mask:0xf", "row_shr:2 row_mask:0xf", "row_shr:4 row_mask:0xf", "row_shr:8 row_mask:0xf",
              "row_bcast:15 row_mask:0xa", "row_bcast:31 row_mask:0xc"):
        e(f"    s_nop 1\n    v_add_u32_dpp v{v}, v{v}, v{v} {c} bank_mask:0xf")

NST = 16
def light0():
    if OPT["light"]: e("    s_memrealtime s[80:81]")
def light1(srd_s, kern):
    if not OPT["light"]: return
    e(f"""
    s_waitcnt vmcnt(0)
    s_memrealtime s[82:83]
    s_mov_b32 s{srd_s + 2}, {WSEND:#x}
    s_lshl_b32 s90, s2, 4
    s_add_u32 s90, s90, s21
    s_lshl_b32 s90, s90, 3
    s_add_u32 s90, s90, {STAMP + kern * 0x80000}
    s_mov_b64 exec, 1
    s_waitcnt lgkmcnt(0)
    v_mov_b32 v2, s80
    v_mov_b32 v3, s82
    buffer_store_dwordx2 v[2:3], off, s[{srd_s}:{srd_s + 3}], s90
""")
def dbg(slot):
    if not OPT["dbg"]: return
    e(f"    s_memrealtime s[{80 + 2 * slot}:{81 + 2 * slot}]")
def dbg_out(kern, wv, base, n, lab):
    if not OPT["dbg"]: return
    e(f"""
    s_waitcnt vmcnt(0)
    s_memrealtime s[{80 + 2 * (n - 1)}:{81 + 2 * (n - 1)}]
    s_cmp_lg_u32 s2, 200
    s_cbranch_scc1 {lab}
    s_cmp_lg_u32 s21, {wv}
    s_cbranch_scc1 {lab}
    s_load_dwordx2 s[92:93], s[0:1], 56
    s_waitcnt lgkmcnt(0)
    s_add_u32 s92, s92, {512 * (1 - kern)}
    s_addc_u32 s93, s93, 0
    s_mov_b32 s94, 256
    s_mov_b32 s95, 0x20000
    s_mov_b64 exec, 1
""")
    for i in range(n):
        e(f"    v_mov_b32 v127, s{80 + 2 * i}\n    buffer_store_dword v127, off, s[92:95], 0 offset:{4 * (base + i)}\n    s_waitcnt vmcnt(0)")
    e(f"{lab}:")
SMAP = {}
def stamp(i, srd_s, kern):
    if not OPT["stamps"]: return
    sel = [0, 1, 2, 3, 4, 5, 6] if kern == 0 else {1: [0, 1, 3, 4, 5, 11, 6, 7, 8, 9, 10], 2: [0, 2, 4, 5, 12, 6, 7, 8, 13, 9, 10], 3: [0] + list(range(101, 111)), 4: [0, 5, 11, 12, 6, 201, 202, 203, 204, 207, 208], 5: [0, 8, 13, 301, 302, 303, 304, 305, 306, 9, 10], 6: [0, 5, 401, 402, 403, 11, 404, 407, 6, 408]}[OPT["stamps"]]
    if i not in sel: return
    r = 80 + 2 * sel.index(i)
    SMAP[(kern, i)] = r
    if i == 0: e("    s_memrealtime s[76:77]" if kern == 0 else "    s_memrealtime vcc\n    s_waitcnt lgkmcnt(0)\n    v_writelane_b32 v127, vcc_lo, 14")
    e(f"    s_memtime s[{r}:{r + 1}]")
def stamp_out(srd_s, kern):
    if not OPT["stamps"]: return
    vs, va = (2, 3) if kern == 0 else (127, 125)
    e(f"    s_memrealtime vcc\n    s_waitcnt lgkmcnt(0)\n    v_writelane_b32 v{vs}, vcc_lo, 15")
    if kern == 0: e("    v_writelane_b32 v2, s76, 14")
    for (k, i), r in SMAP.items():
        if k == kern: e(f"    v_writelane_b32 v{vs}, s{r}, {i % 100}")
    e(f"""
    s_mov_b64 exec, 0xffff
    s_lshl_b32 s3, s2, 4
    s_add_u32 s3, s3, s21
    s_lshl_b32 s3, s3, 6
    s_add_u32 s3, s3, {STAMP + kern * 0x80000}
    v_mbcnt_lo_u32_b32 v{va}, -1, 0
    v_lshlrev_b32 v{va}, 2, v{va}
    buffer_store_dword v{vs}, v{va}, s[{srd_s}:{srd_s + 3}], s3 offen
    s_mov_b64 exec, -1
""")

K1_CNT, K1_ST, K1_STG = 0, 1024, 2048
K1_WL, K1_XL = 0, 32768
K1_LDS = 66 * 1024
def gemm_issue():
    e(f"""
    s_lshr_b32 s20, s2, 4
    s_lshl_b32 s20, s20, 3
    s_and_b32 s3, s2, 7
    s_or_b32 s20, s20, s3
""")
    if OPT["cpf1"]:
        e(f"""
    s_cmp_lg_u32 s21, 0
    s_cbranch_scc1 K1_NOT
    s_cmp_ge_u32 s20, {OPT["cpf1"]}
    s_cbranch_scc1 K1_NOT
    s_getpc_b64 s[24:25]
K1_PC1:
    v_lshlrev_b32 v8, 6, v1
    v_min_u32 v8, K1_PC - K1_PC1 + 64, v8
    v_mov_b32 v9, s25
    v_add_co_u32 v8, vcc, s24, v8
    s_nop 1
    v_addc_co_u32 v9, vcc, 0, v9, vcc
    global_load_dword v34, v[8:9], off
K1_NOT:
""")
    e(f"""
    v_lshrrev_b32 v2, 4, v1                 ; g
    v_and_b32 v3, 15, v1                    ; n / i
    s_cmp_ge_u32 s20, 209
    s_cbranch_scc1 K1_JOBS
    ; x -> LDS: rows 4w + g, chunk (l%16) ^ (row & 15)
    v_lshrrev_b32 v5, 4, v0
    v_xor_b32 v6, v5, v0
    v_and_b32 v6, 15, v6
    s_mul_i32 s25, s20, 48
    v_add_u32 v5, s25, v5
    v_lshlrev_b32 v5, 8, v5
    v_lshl_or_b32 v5, v6, 4, v5
    s_lshl_b32 s27, s21, 10
    s_add_u32 s28, s27, {K1_XL}
    s_mov_b32 m0, s28
    ; W1 -> LDS: row (l/16), chunk (l%16) ^ ((l/16)<<1) ^ (8 if bit 3 of the row)
    v_lshlrev_b32 v4, 1, v2
    v_xor_b32 v4, v4, v3
    v_lshlrev_b32 v4, 4, v4
    v_lshl_or_b32 v4, v2, 8, v4
    s_lshl_b32 s28, s21, 6
    s_and_b32 s28, s28, 0x80
    v_xor_b32 v4, s28, v4
    s_waitcnt lgkmcnt(0)
""")
    srd(4, N * 256)
    srd(12, 128 * 256)
    stamp(6, 16, 0)
    e("    buffer_load_dwordx4 v5, s[4:7], 0 offen lds")
    for m in range(3):
        if m == 2:
            e("    s_cmp_ge_u32 s21, 8\n    s_cbranch_scc1 K1_DMAD")
        e(f"""
    s_mov_b32 m0, s27
    s_nop 0
    buffer_load_dwordx4 v4, s[12:15], s27 offen lds
""")
        if m < 2: e("    s_add_u32 s27, s27, 12288")

def kernel1():
    e("""
.text
.globl mpnn_bin_kernel
.p2align 8
.type mpnn_bin_kernel,@function
mpnn_bin_kernel:
    s_load_dwordx4 s[8:11], s[0:1], 16
    s_load_dwordx4 s[4:7], s[0:1], 0        ; x, e_attr
    s_load_dwordx4 s[12:15], s[0:1], 32
    s_load_dwordx2 s[16:17], s[0:1], 64     ; ws
    s_cmp_ge_u32 s2, 512
    s_cbranch_scc1 K1_END
    v_lshrrev_b32 v2, 6, v0
    v_and_b32 v1, 63, v0
    v_readfirstlane_b32 s21, v2
    s_and_b32 s20, s2, 7
    s_lshl_b32 s20, s20, 5
    s_lshr_b32 s3, s2, 4
    s_or_b32 s20, s20, s3
    s_lshr_b32 s3, s2, 5
    s_xor_b32 s3, s3, s2
""")
    stamp(0, 16, 0); light0()
    dbg(0)
    if OPT["k1o"]:
        e("    s_bitcmp0_b32 s3, 3\n    s_cbranch_scc1 K1_BIN")
        gemm_issue()
        e("    s_branch K1_DMAD\nK1_BIN:")
    else:
        e("    s_bitcmp1_b32 s3, 3\n    s_cbranch_scc1 K1_GEMM")
    e("""
    ; ---------------- binning workgroup (waves 0..9) ----------------
    s_cmp_ge_u32 s21, 10
    s_cbranch_scc1 K1_END
""" + ("    s_setprio 3\n" if OPT["k1p"] else "") + """    s_mul_i32 s22, s20, 5000                ; byte offset of this workgroup's src/dst slice
    s_lshl_b32 s23, s22, 1                  ; e_attr slice
    v_lshlrev_b32 v3, 3, v0
    v_lshlrev_b32 v4, 4, v0
    v_cmp_gt_u32 s[44:45], 625, v0
""".replace("v_cmp_gt_u32 s[44:45], 625, v0", "v_cmp_gt_u32 vcc, 625, v0"))
    e("    s_mov_b32 s26, %#x\n    s_mov_b32 s27, 0x20000\n    s_mov_b64 s[44:45], vcc\n    s_mov_b64 exec, vcc\n    s_waitcnt lgkmcnt(0)\n    s_mov_b32 s24, s10\n    s_mov_b32 s25, s11" % (E * 4))
    stamp(6, 16, 0)
    e("    buffer_load_dwordx2 v[6:7], v3, s[24:27], s22 offen      ; dst")
    srd(8, E * 4)
    e("    s_mov_b32 s32, s6\n    s_mov_b32 s33, s7"); srd(32, E * 8)
    def se():
        e("""
    buffer_load_dwordx2 v[8:9], v3, s[8:11], s22 offen       ; src
    buffer_load_dwordx4 v[10:13], v4, s[32:35], s23 offen
""")
    if not OPT["dst1"]: se()
    e(f"""
    s_mov_b64 exec, -1
    v_mov_b64 v[20:21], 0
    v_mov_b64 v[22:23], 0
    s_cmp_lg_u32 s21, 0
    s_cbranch_scc1 K1_NOZ
    ds_write_b128 v4, v[20:23] offset:{K1_CNT}
K1_NOZ:
    s_waitcnt lgkmcnt(0)
    s_barrier
    s_mov_b64 exec, s[44:45]
""")
    if OPT["dst1"]: se()
    e("    s_mov_b64 exec, -1\n    v_mov_b32 v24, 1\n    v_lshlrev_b32 v5, 4, v1")
    srd(16, WSEND)
    e(f"""
    s_mul_i32 s38, s20, {RSTR}
    s_add_u32 s38, s38, {REC}
    s_add_u32 s39, s38, 10240
    s_mov_b64 exec, s[44:45]
    s_waitcnt vmcnt(2)
""")
    stamp(1, 16, 0)
    dbg(1)
    e(f"""
    v_lshlrev_b32 v14, 2, v6
    v_lshlrev_b32 v15, 2, v7
    v_and_b32 v14, 0x3fc, v14
    v_and_b32 v15, 0x3fc, v15
    ds_add_rtn_u32 v16, v14, v24 offset:{K1_CNT}
    ds_add_rtn_u32 v17, v15, v24 offset:{K1_CNT}
    v_lshrrev_b32 v6, 8, v6
    v_lshrrev_b32 v7, 8, v7
    v_lshlrev_b32 v6, 26, v6
    v_lshlrev_b32 v7, 26, v7
    s_mov_b64 exec, -1
    s_waitcnt lgkmcnt(0)
    s_barrier
""")
    stamp(2, 16, 0)
    e(f"""
    ds_read_b128 v[20:23], v5 offset:{K1_CNT}
    s_waitcnt lgkmcnt(0)
    v_add_u32 v25, v20, v21
    v_add_u32 v26, v25, v22
    v_add_u32 v27, v26, v23
    s_nop 1
    v_add_u32_dpp v28, v27, v27 row_shr:1 row_mask:0xf bank_mask:0xf bound_ctrl:1
""")
    for c in ("row_shr:2 row_mask:0xf", "row_shr:4 row_mask:0xf", "row_shr:8 row_mask:0xf", "row_bcast:15 row_mask:0xa", "row_bcast:31 row_mask:0xc"):
        e(f"    s_nop 1\n    v_add_u32_dpp v28, v28, v28 {c} bank_mask:0xf")
    e(f"""
    v_sub_u32 v28, v28, v27
    v_add_u32 v29, v28, v20
    v_add_u32 v30, v28, v25
    v_add_u32 v31, v28, v26
    ds_write_b128 v5, v[28:31] offset:{K1_ST}
    ds_read_b32 v18, v14 offset:{K1_ST}
    ds_read_b32 v19, v15 offset:{K1_ST}
    s_waitcnt vmcnt(1)
    v_lshl_or_b32 v8, v8, 3, v6
    v_lshl_or_b32 v9, v9, 3, v7
    s_mov_b64 exec, s[44:45]
    s_waitcnt lgkmcnt(0)
    v_add_u32 v18, v18, v16
    v_add_u32 v19, v19, v17
    v_mul_u32_u24 v18, 12, v18
    v_mul_u32_u24 v19, 12, v19
    ds_write_b32 v18, v8 offset:{K1_STG + 8}
    ds_write_b32 v19, v9 offset:{K1_STG + 8}
    v_add_u32 v18, {K1_STG}, v18
    v_add_u32 v19, {K1_STG}, v19
    s_waitcnt vmcnt(0)
    ds_write2_b32 v18, v10, v11 offset0:0 offset1:1
    ds_write2_b32 v19, v12, v13 offset0:0 offset1:1
    s_mov_b64 exec, -1
    s_cmp_lg_u32 s21, 9
    s_cbranch_scc1 K1_NOD
    v_lshl_or_b32 v32, v20, 16, v28
    v_lshl_or_b32 v33, v21, 16, v29
    v_lshl_or_b32 v34, v22, 16, v30
    v_lshl_or_b32 v35, v23, 16, v31
    s_lshl_b32 s36, s20, 4
    s_add_u32 s36, s36, {DESC}
    v_and_b32 v36, 7, v1
    v_lshrrev_b32 v37, 3, v1
    v_lshl_or_b32 v36, v36, 3, v37
    v_lshlrev_b32 v36, 12, v36
    buffer_store_dwordx4 v[32:35], v36, s[16:19], s36 offen
K1_NOD:
    s_waitcnt lgkmcnt(0)
    s_barrier
""")
    stamp(3, 16, 0)
    e(f"""
    ds_read_b128 v[20:23], v4 offset:{K1_STG}
    s_cmp_ge_u32 s21, 5
    s_cbranch_scc1 K1_C1
    ds_read_b128 v[24:27], v4 offset:{K1_STG + 10240}
    s_waitcnt lgkmcnt(0)
    buffer_store_dwordx4 v[24:27], v4, s[16:19], s39 offen
K1_C1:
    s_waitcnt lgkmcnt(0)
    buffer_store_dwordx4 v[20:23], v4, s[16:19], s38 offen
""")
    light1(16, 0)
    if OPT["stamps"]:
        stamp(4, 16, 0); e("    s_waitcnt vmcnt(0)"); stamp(5, 16, 0); stamp_out(16, 0)
    e(f"""
    s_endpgm
""")
    if not OPT["k1o"]:
        e("K1_GEMM:")
        gemm_issue()
    e("K1_DMAD:")
    srd(16, N * 256)
    e(f"""
    s_lshr_b32 s23, s21, 2
    s_and_b32 s24, s21, 3
    v_lshrrev_b32 v24, 2, v3                ; r'
    v_and_b32 v25, 3, v3                    ; c'
    v_and_b32 v26, 1, v2
    v_lshl_or_b32 v26, v26, 2, v24          ; h(k)
    v_lshl_add_u32 v27, v2, 3, v24          ; 8g + r'
    v_lshlrev_b32 v27, 8, v27
    v_lshl_or_b32 v27, v25, 3, v27
    s_lshl_b32 s27, s24, 1
    v_xor_b32 v26, s27, v26
    v_lshl_add_u32 v28, v26, 5, v27
    v_xor_b32 v29, 32, v28
    ; x fragments
    v_xor_b32 v30, v2, v3
    v_lshlrev_b32 v30, 4, v30
    v_lshl_or_b32 v30, v3, 8, v30
    s_lshl_b32 s27, s23, 12
    s_add_u32 s27, s27, {K1_XL}
    v_add_u32 v30, s27, v30
    v_xor_b32 v31, 64, v30
    v_xor_b32 v32, 0x80, v30
    v_xor_b32 v33, 0xc0, v30
    s_lshl_b32 s26, s23, 4
    s_add_u32 s25, s25, s26
    v_add_u32 v5, s25, v3
    v_lshlrev_b32 v5, 8, v5
    v_lshl_or_b32 v5, v2, 4, v5
    s_lshl_b32 s27, s24, 6
    v_add_u32 v5, s27, v5
    s_mov_b32 s28, {NL2E:#x}
    s_waitcnt vmcnt(0)
    s_barrier
""")
    stamp(3, 16, 0)
    for s in range(4):
        e(f"    ds_read_b128 {vr(8 + 4 * s, 4)}, v{30 + s}")
        for f in range(2):
            for u2 in range(2):
                e(f"    ds_read_b64_tr_b16 {vr(36 + 16 * f + 4 * s + 2 * u2, 2)}, v{28 + f} offset:{s * 8192 + u2 * 1024}")
    for s in range(4):
        for f in range(2):
            left = 20 - (5 * s + 3 + 2 * f)
            e(f"    s_waitcnt lgkmcnt({min(left, 15)})")
            c = "0" if s == 0 else vr(68 + 4 * f, 4)
            e(f"    v_mfma_f32_16x16x32_bf16 {vr(68 + 4 * f, 4)}, {vr(36 + 16 * f + 4 * s, 4)}, {vr(8 + 4 * s, 4)}, {c}")
    e("    s_nop 5")
    for f in range(2):
        for h in range(2):
            r = 68 + 4 * f + 2 * h
            e(f"    v_pk_mul_f32 {vr(r, 2)}, {vr(r, 2)}, s[28:29] op_sel_hi:[1,0]")
        for h in range(2):
            r = 68 + 4 * f + 2 * h
            e(f"    v_cvt_pk_bf16_f32 v{76 + 2 * f + h}, v{r}, v{r + 1}")
    e(f"    buffer_store_dwordx4 v[76:79], v5, s[16:19], 0 offen")
    light1(16, 0)
    if OPT["stamps"]:
        srd(16, WSEND); stamp(4, 16, 0); e("    s_waitcnt vmcnt(0)"); stamp(5, 16, 0); stamp_out(16, 0)
    e(f"""
    s_endpgm
K1_JOBS:
    s_sub_u32 s23, s20, 209
    s_mul_i32 s23, s23, 12
    s_add_u32 s23, s23, s21
    s_waitcnt lgkmcnt(0)
""")
    srd(16, WSEND)
    e(f"""
    s_cmp_ge_u32 s23, 96
    s_cbranch_scc1 K1_JOB2
    s_lshr_b32 s24, s23, 5
    s_bfe_u32 s25, s23, 0x30002             ; f
    s_and_b32 s26, s23, 3                   ; s
    s_cmp_eq_u32 s24, 0
    s_cselect_b32 s28, s12, s14
    s_cselect_b32 s29, s13, s15
    s_mov_b32 s30, {256 * 256}
    s_mov_b32 s31, 0x20000
    ; column
    s_lshl_b32 s33, s25, 4                  ; 16 f
    v_add_u32 v4, s33, v3
    v_lshlrev_b32 v4, 1, v4
    s_cmp_eq_u32 s24, 2
    s_cselect_b32 s32, 10, 11
    s_movk_i32 s33, 1024
    s_cmovk_i32 s33, 4096
    s_cselect_b32 s34, {NSC:#x}, 1.0
    v_lshlrev_b32 v5, s32, v2
    v_add_u32 v4, v4, v5
    s_lshl_b32 s40, s26, 13
    s_cmp_eq_u32 s24, 1
    s_cselect_b32 s36, 0, 0x8000
    s_add_u32 s40, s40, s36
    s_add_u32 s41, s40, 512
    s_add_u32 s42, s40, s33
    s_add_u32 s43, s42, 512
""")
    for m in range(8):
        e(f"    buffer_load_ushort v{8 + m}, v4, s[28:31], s{40 + m // 2} offen offset:{(m & 1) * 256}")
    e(f"""
    s_lshl_b32 s37, s23, 10
    s_add_u32 s37, s37, {W2F}
    v_lshlrev_b32 v6, 4, v1
    s_mov_b32 s38, 0x07060302
    s_waitcnt vmcnt(0)
""")
    for m in range(8):
        e(f"    v_lshlrev_b32 v{8 + m}, 16, v{8 + m}\n    v_mul_f32 v{8 + m}, s34, v{8 + m}")
    for m in range(4):
        e(f"    v_perm_b32 v{16 + m}, v{9 + 2 * m}, v{8 + 2 * m}, s38")
    e(f"""
    buffer_store_dwordx4 v[16:19], v6, s[16:19], s37 offen
    s_endpgm
K1_JOB2:
    s_cmp_ge_u32 s23, 98
    s_cbranch_scc1 K1_JOB3
    s_sub_u32 s24, s23, 96                  ; c
    s_mov_b32 s14, {260 * 256}
    s_mov_b32 s15, 0x20000
    v_and_b32 v2, 31, v1
    v_lshrrev_b32 v3, 5, v1
    v_lshl_or_b32 v2, v2, 1, v3             ; p & 63
    v_and_b32 v4, 0x23, v2
    v_bfe_u32 v5, v2, 2, 1
    v_lshl_or_b32 v4, v5, 4, v4
    v_bfe_u32 v5, v2, 3, 2
    v_lshl_or_b32 v4, v5, 2, v4             ; feature & 63
    v_lshlrev_b32 v4, 1, v4
    s_lshl_b32 s25, s24, 7
    s_add_u32 s25, s25, {256 * 256}
""")
    for d in range(4):
        e(f"    buffer_load_ushort v{8 + d}, v4, s[12:15], s25 offen offset:{d * 256}")
    e(f"""
    s_lshl_b32 s37, s24, 10
    s_add_u32 s37, s37, {W3F}
    v_lshlrev_b32 v6, 4, v1
    s_mov_b32 s34, {NL2E:#x}
    s_waitcnt vmcnt(0)
""")
    for d in range(4):
        e(f"    v_lshlrev_b32 v{8 + d}, 16, v{8 + d}\n    v_mul_f32 v{8 + d}, s34, v{8 + d}")
    e("""
    v_cvt_pk_bf16_f32 v16, v8, v9
    v_cvt_pk_bf16_f32 v17, v10, v11
    v_lshlrev_b32 v12, 16, v16
    v_and_b32 v13, 0xffff0000, v16
    v_lshlrev_b32 v14, 16, v17
    v_and_b32 v15, 0xffff0000, v17
    v_sub_f32 v8, v8, v12
    v_sub_f32 v9, v9, v13
    v_sub_f32 v10, v10, v14
    v_sub_f32 v11, v11, v15
    v_cvt_pk_bf16_f32 v18, v8, v9
    v_cvt_pk_bf16_f32 v19, v10, v11
    buffer_store_dwordx4 v[16:19], v6, s[16:19], s37 offen
    s_endpgm
K1_JOB3:
    s_cmp_ge_u32 s20, 224
    s_cbranch_scc1 K1_SPARE
    s_cmp_lg_u32 s23, 98
    s_cbranch_scc1 K1_END
    v_mov_b32 v8, 0
    v_lshlrev_b32 v6, 2, v1
""")
    e(f"""
    s_mov_b32 s37, {PT + N * 256}
    buffer_store_dword v8, v6, s[16:19], s37 offen
K1_END:
    s_endpgm
K1_SPARE:
""")
    if OPT["cpf"]:
        e(f"""
    s_getpc_b64 s[24:25]
K1_PC:
    s_bfe_u32 s22, s20, 0x20003
    s_mul_i32 s22, s22, 12
    s_add_u32 s22, s22, s21
    s_mul_i32 s22, s22, {OPT["cpf"] * 64}
    v_lshl_add_u32 v2, v1, 6, s22
    v_min_u32 v2, K2_LAST - mpnn_edge_kernel, v2
    v_add_u32 v2, mpnn_edge_kernel - K1_PC, v2
    v_mov_b32 v3, s25
    v_add_co_u32 v2, vcc, s24, v2
    s_nop 1
    v_addc_co_u32 v3, vcc, 0, v3, vcc
    s_bfm_b64 exec, {OPT["cpf"]}, 0
    global_load_dword v4, v[2:3], off
""")
    e("    s_endpgm")

RS = 1040
RB, RO = 288, 272
CAP = 2048
MISC = 0
ZR, CNT, MORE, BAD, FL = 0, 768, 1024, 1028, 1088
SO = 2048
EA = SO + CAP * 4
W3L = EA + CAP * 8
QU = W3L + 2048
AG = QU + 41 * RS
XL = (AG + 2 * 16384 + 11 * 1024 + 255) // 256 * 256
AGB = XL + 12288
K2_LDS = AGB + 48 * RB
PADV = N * 8
S16MAX = (CAP // 4 - 8) * 16
NT = 16
NK = 6
vSO, vP, vD, vE, vAe, vBw, vQ, vNp, vAc, vI = 8, (16, 24), (32, 92), 48, 64, 68, 72, 126, (80, 82), 84
vaS, vaE, vAct, vaN = (86, 87), 88, 89, (90, 91)
vU, vM, vDn = 108, (120 if OPT['unc'] == 2 else 76), (76, 78)
if OPT['smf']: vQ, vM, vAs, vIx = 108, 124, 72, 84
vR, vN4, vTa, vStr, vRS, vW3a = 60, tuple(range(19, 25)), 56, 57, 124, 125
vC4, vQ16, vE16, vS16 = 120, 121, 122, 123
vCA, vCW, vCN, vFR = 120, 121, 122, 124
sM = [40 + 2 * k for k in range(NK)]
sFM, sEV = (28, 30), (32, 33)
sFirst, sMoreV, sMM, sGuard, sScale, sOne = 56, 57, 58, 68, 70, 52
M9 = "0x01ff01ff"
KCOP = "s[26:27], s[26:27] op_sel_hi:[1,0,0] clamp"
PRIO_0, PRIO_AT = {2: (2, {NT - 4: 1, NT - 1: 0}), 1: (2, {NT - 2: 1, NT - 1: 0}), 3: (3, {NT - 3: 2, NT - 2: 1, NT - 1: 0}), 4: (2, {NT - 6: 1, NT - 2: 0}),
                   5: (3, {NT - 7: 2, NT - 3: 1, NT - 1: 0}), 6: (2, {NT - 3: 1, NT - 1: 0}), 7: (2, {NT - 6: 1, NT - 1: 0})}[OPT["ps"]]

def prio(n): e(f"    s_setprio {n}")

def divide(y, last=False):
    t = vE + 8 * y + 4
    e(f"""
    v_rcp_f32 v{t}, v{vDn[y]}
    v_rcp_f32 v{t + 1}, v{vDn[y] + 1}
    {f"v_pk_add_f32 {vr(vM, 2)}, {vr(vM, 2)}, {vr(vDn[y], 2)}" if last or not OPT["nrs"] else f"v_add_u32 v{vaN[y]}, {RS}, v{vaN[y]}"}
    v_pk_mul_f32 {vr(vAc[y], 2)}, {vr(vAc[y], 2)}, {vr(t, 2)}
    v_pk_fma_f32 {vr(vM, 2)}, {vr(vAc[y], 2)}, {vr(vAc[y], 2)}, {vr(vM, 2)}
""")

def flush_adds(y, back=0):
    t = vE + 8 * y
    e(f"""
    v_cvt_f64_f32 {vr(t, 2)}, v{vAc[y]}
    v_cvt_f64_f32 {vr(t + 2, 2)}, v{vAc[y] + 1}
    ds_add_f64 v{vaN[y]}, {vr(t, 2)} offset:{AG - QU - back}
    ds_add_f64 v{vaN[y]}, {vr(t + 2, 2)} offset:{AG - QU + 8 - back}
""")

def exec_bit(y, t):
    e(f"    s_bfe_i32 exec_lo, s{sFM[y]}, {0x10000 | t:#x}\n    s_bfe_i32 exec_hi, s{sFM[y] + 1}, {0x10000 | t:#x}")

def event_block(t, y, v):
    e(f"K2_{v}EV{t}_{y}:")
    exec_bit(y, t)
    e(f"    s_cbranch_execz K2_{v}EQ{t}_{y}")
    if OPT["unc"] == 2 and not v:
        divide(y)
        if not OPT["nrs"]: e(f"    v_mov_b64 {vr(vDn[y], 2)}, {sr(sOne, 2)}")
    early = OPT["unc"] == 2 and OPT["nrs"] and not v
    flush_adds(y, RS if early else 0)
    if not early: e(f"    v_add_u32 v{vaN[y]}, {RS}, v{vaN[y]}")
    e(f"""
    v_mov_b64 {vr(vAc[y], 2)}, 0
K2_{v}EQ{t}_{y}:
""")
    if t + 2 < NT:
        exec_bit(y, t + 1)
        q_reads(y, RS)
    e(f"    s_mov_b64 exec, -1\n    s_branch K2_{v}EB{t}_{y}")

def gather_lines(dst, adr):
    out = []
    for q in range(4):
        for y in range(2):
            a = adr + 4 * y + q
            pre = f"    v_min_u32 v{a}, {PADV}, v{a}\n    v_and_b32 v{a}, -8, v{a}\n" if OPT["safe"] else ""
            out.append(pre + f"    buffer_load_dword v{dst + 2 * q + y}, v{a}, s[8:11], 0 offen")
    return out
def gathers(dst, adr):
    for l in gather_lines(dst, adr): e(l)

def mfma4(D, P, q): return f"    v_mfma_f32_4x4x4_16b_bf16 {vr(D + 4 * q, 4)}, {vr(vI, 2)}, {vr(P + 2 * q, 2)}, {vr(vQ, 4)}"
def mfmaq(D): return f"    v_mfma_f32_32x32x16_bf16 {vr(D, 16)}, {vr(vAe, 4)}, {vr(vBw, 4)}, {vr(vQ, 16)}"
def smfmac(D, P): return f"    v_smfmac_f32_32x32x32_bf16 {vr(D, 16)}, {vr(vAs, 4)}, {vr(P, 8)}, v{vIx}"
def q_reads(y, off):
    for c in range(4 if OPT['smf'] else 1): e(f"    ds_read_b64 {vr(vQ + 4 * c + 2 * y, 2)}, v{vaN[y]} offset:{off}")
def mfma32(D): return f"    v_mfma_f32_32x32x16_bf16 {vr(D, 16)}, {vr(vAe, 4)}, {vr(vBw, 4)}, {vr(D, 16)}"

def core_lines(D, guarded):
    Ee = vE
    def p(r): return vr(r, 2)
    ex = [f"    v_exp_f32 v{Ee + k}, v{D + k}" for k in range(16)]
    if not guarded and OPT["unc"] == 2:
        rest = []
        for q in range(4):
            Do = vDn if (q % 2 == 0 or not OPT["pp"]) else (122, 124)
            Dw = vDn if (q % 2 == 1 or not OPT["pp"]) else (122, 124)
            n1 = [f"    v_pk_fma_f32 {p(vAc[y])}, {p(vAc[y])}, {p(Ee + 4 * q + 2 * y)}, {p(vAc[y])}" for y in range(2)]
            n2 = [f"    v_pk_fma_f32 {p(vAc[y])}, {p(D + 4 * q + 2 * y)}, {p(Do[y])}, {p(vAc[y])}" for y in range(2)]
            dd = [f"    v_pk_fma_f32 {p(Dw[y])}, {p(Do[y])}, {p(Ee + 4 * q + 2 * y)}, {p(Do[y])}" for y in range(2)]
            rest += (n1 + dd + n2) if OPT["pp"] else (n1 + n2 + dd)
        return ex, [], rest
    if guarded:
        sc = [f"    v_pk_fma_f32 {p(Ee + 2 * m)}, {p(Ee + 2 * m)}, {KCOP}" for m in range(8)]
        seq = [
            lambda o: f"v_pk_mul_f32 {p(D + o)}, {p(D + o)}, {p(Ee + o + 4)}",
            lambda o: f"v_pk_mul_f32 {p(D + o + 8)}, {p(D + o + 8)}, {p(Ee + o + 12)}",
            lambda o: f"v_pk_fma_f32 {p(D + o)}, {p(D + o + 4)}, {p(Ee + o)}, {p(D + o)}",
            lambda o: f"v_pk_fma_f32 {p(D + o + 8)}, {p(D + o + 12)}, {p(Ee + o + 8)}, {p(D + o + 8)}",
            lambda o: f"v_pk_mul_f32 {p(Ee + o)}, {p(Ee + o)}, {p(Ee + o + 4)}",
            lambda o: f"v_pk_mul_f32 {p(Ee + o + 8)}, {p(Ee + o + 8)}, {p(Ee + o + 12)}",
        ]
    else:
        sc = [f"    v_pk_add_f32 {p(Ee + o + j)}, {p(Ee + o + j)}, 1.0 op_sel_hi:[1,0]" for j in (4, 12) for o in (0, 2)]
        seq = [
            lambda o: f"v_pk_fma_f32 {p(D + o + 4)}, {p(D + o + 4)}, {p(Ee + o)}, {p(D + o + 4)}",
            lambda o: f"v_pk_fma_f32 {p(D + o + 12)}, {p(D + o + 12)}, {p(Ee + o + 8)}, {p(D + o + 12)}",
            lambda o: f"v_pk_fma_f32 {p(Ee + o)}, {p(Ee + o)}, {p(Ee + o + 4)}, {p(Ee + o + 4)}",
            lambda o: f"v_pk_fma_f32 {p(Ee + o + 8)}, {p(Ee + o + 8)}, {p(Ee + o + 12)}, {p(Ee + o + 12)}",
            lambda o: f"v_pk_fma_f32 {p(D + o)}, {p(D + o)}, {p(Ee + o + 4)}, {p(D + o + 4)}",
            lambda o: f"v_pk_fma_f32 {p(D + o + 8)}, {p(D + o + 8)}, {p(Ee + o + 12)}, {p(D + o + 12)}",
        ]
    seq += [
        lambda o: f"v_pk_mul_f32 {p(Ee + o + 4)}, {p(Ee + o)}, {p(Ee + o + 8)}",
        lambda o: f"v_pk_mul_f32 {p(D + o)}, {p(D + o)}, {p(Ee + o + 8)}",
        lambda o: f"v_rcp_f32 v{Ee + o + 4}, v{Ee + o + 4}",
        lambda o: f"v_rcp_f32 v{Ee + o + 5}, v{Ee + o + 5}",
        lambda o: f"v_pk_fma_f32 {p(D + o)}, {p(D + o + 8)}, {p(Ee + o)}, {p(D + o)}",
        lambda o: f"v_pk_fma_f32 {p(vAc[o // 2])}, {p(D + o)}, {p(Ee + o + 4)}, {p(vAc[o // 2])}",
    ]
    rest = ["    " + fn(o) for fn in seq for o in (0, 2)]
    if not guarded:
        rest.insert(16, f"    v_pk_fma_f32 {p(vM)}, {p(Ee + 4)}, {p(Ee + 6)}, {p(vM)}")
    return ex, sc, rest

def tile(t, v):
    a, r = t % 2, NT - t
    ex, sc, rest = core_lines(vD[a], v == 'G' or not OPT['unc'])
    dep = OPT['dep']
    Dn, Pn = vD[1 - a], (vP[1 - a] if dep == 2 else vP[0])
    e(f"K2_{v}T{t}:")
    if t in PRIO_AT: prio(PRIO_AT[t])
    pk = sc + rest
    if r >= 2:
        mp = OPT["mpos"]
        k0 = {5: 0, 6: 4}.get(mp, 2)
        seq = ex[:k0] + [f"    s_waitcnt vmcnt({8 if r >= 3 and dep == 2 else 0}) lgkmcnt(0)"]
        if OPT["smf"]:
            k1 = k0 + OPT["smf"] + 2
            seq += [mfmaq(Dn)] + ex[k0:k1] + [smfmac(Dn, Pn)]
            k = k1
        else:
            for q in range(4): seq += [mfma4(Dn, Pn, q), ex[k0 + q]]
            seq += ex[k0 + 4:k0 + 7] + [mfma32(Dn)]
            k = k0 + 7
        mem = []
        if r >= dep + 2: mem += gather_lines(Pn, vSO)
        if r >= dep + 3: mem += [f"    ds_read_b128 {vr(vSO + 4 * y, 4)}, v{vaS[y]} offset:{16 * (t + dep + 2)}" for y in range(2)]
        if r >= 3: mem += [f"    ds_read2_b64 {vr(vAe, 4)}, v{vaE} offset0:{4 * (t + 2)} offset1:{4 * (t + 2)}"]
        if mp in (0, 5): seq += ex[k:k + 5] + mem + ex[k + 5:] + pk
        elif mp in (1, 6): seq += ex[k:] + mem + pk
        elif mp == 2: seq += ex[k:] + pk[:12] + mem + pk[12:]
        elif mp == 3: seq += ex[k:] + pk + mem
        elif mp == 4: seq += ex[k:k + 5] + mem[:4] + ex[k + 5:] + pk[:6] + mem[4:8] + pk[6:12] + mem[8:] + pk[12:]
    else:
        seq = ex + pk
    for l in seq: e(l)
    if not v: stamp(100 + t - 5, 4, 1)
    if r >= 2:
        for y in range(2):
            e(f"    s_bitcmp1_b32 s{sEV[y]}, {t}\n    s_cbranch_scc1 K2_{v}EV{t}_{y}\nK2_{v}EB{t}_{y}:")

def x_addr(xa):
    e(f"""
    v_xor_b32 v{xa}, v5, v6
    v_lshlrev_b32 v{xa}, 4, v{xa}
    v_lshl_or_b32 v{xa}, v6, 8, v{xa}
    v_add_u32 v{xa}, {XL}, v{xa}
    v_xor_b32 v{xa + 1}, 64, v{xa}
    v_xor_b32 v{xa + 2}, 0x80, v{xa}
    v_xor_b32 v{xa + 3}, 0xc0, v{xa}
""")
def x_reads(xa, xb):
    for s in range(4):
        for T in range(3):
            e(f"    ds_read_b128 {vr(xb(T, s), 4)}, v{xa + s} offset:{4096 * T}")
def node_mfma(acc, W, xb):
    for s in range(4):
        for T in range(3):
            e(f"    s_waitcnt lgkmcnt({11 - 3 * s - T})")
            c = "0" if s == 0 else vr(acc + 4 * T, 4)
            e(f"    v_mfma_f32_16x16x32_bf16 {vr(acc + 4 * T, 4)}, {vr(W + 4 * s, 4)}, {vr(xb(T, s), 4)}, {c}")
def per_record(lab, fn):
    for k in range(NK):
        e(f"    s_mov_b64 exec, {sr(sM[k], 2)}")
        if k >= 2: e(f"    s_cbranch_execz {lab}")
        fn(k)
    e(f"{lab}:")

def conv_addr(t):
    e(f"""
    v_cvt_f32_u32 v{t}, v{vNp}
    s_lshl_b32 s36, s21, 2
    s_sub_u32 s36, s36, 24
    v_mul_f32 v{t}, 0xbe800000, v{t}
    s_mul_i32 s37, s36, {RS}
    s_add_u32 s37, s37, {QU}
    v_add_u32 v{vCA}, s37, v7
    s_mul_i32 s37, s36, {RB}
    s_add_u32 s37, s37, {AGB}
    v_lshl_add_u32 v{vCW}, v1, 2, s37
""")
    for k in range(4):
        e(f"    v_readlane_b32 s{60 + 2 * k}, v{t}, s36")
        if k < 3: e("    s_add_u32 s36, s36, 1")

def kernel2():
    e(f"""
.text
.globl mpnn_edge_kernel
.p2align 8
.type mpnn_edge_kernel,@function
mpnn_edge_kernel:
    s_load_dwordx2 s[4:5], s[0:1], 64       ; ws
    s_load_dwordx2 s[12:13], s[0:1], 0      ; x
    s_load_dwordx2 s[16:17], s[0:1], 48     ; out
    s_cmp_ge_u32 s2, 256
    s_cbranch_scc1 K2_END
    v_lshrrev_b32 v2, 6, v0
    s_and_b32 s34, s2, 63
    v_readfirstlane_b32 s21, v2
    s_lshl_b32 s34, s34, 10
    s_lshr_b32 s3, s2, 6
    s_add_u32 s34, s34, s3
    s_lshl2_add_u32 s34, s34, {DESC}
    s_mov_b32 s6, {WSEND:#x}
    s_mov_b32 s7, 0x20000
    v_and_b32 v4, -4, v0
    v_lshlrev_b32 v4, 2, v4
""")
    stamp(0, 4, 1); light0()
    e(f"""
    v_lshrrev_b32 v8, 4, v0
    v_xor_b32 v9, v8, v0
    v_and_b32 v9, 15, v9
    s_waitcnt lgkmcnt(0)
    buffer_load_dword v2, v4, s[4:7], s34 offen
    s_and_b32 s20, s2, 7
    s_bfe_u32 s35, s2, 0x30003
    s_lshl3_add_u32 s20, s20, s35
    s_lshl2_add_u32 s20, s20, s3
    s_cmp_ge_u32 s21, 11
    s_cbranch_scc1 K2_NOX
    s_lshl_b32 s35, s20, 8
    v_lshl_add_u32 v8, v8, 16, s35
    s_lshl_b32 s36, s21, 10
    s_add_u32 s36, s36, {XL}
    s_mov_b32 m0, s36
""")
    srd(12, N * 256)
    e(f"""
    v_lshl_add_u32 v8, v9, 4, v8
    buffer_load_dwordx4 v8, s[12:15], 0 offen lds
K2_NOX:
    v_lshrrev_b32 v3, 2, v0
    v_mul_u32_u24 v3, {RSTR}, v3
    v_and_b32 v4, 3, v0
    s_mov_b32 s24, 0
    s_mov_b32 s25, {4 * NK}
    s_mov_b32 s{sFirst}, 1
    v_lshlrev_b32 v56, 4, v0
    v_mov_b64 v[8:9], 0
    v_mov_b64 v[10:11], 0
    s_cmp_ge_u32 s21, 2
    s_cbranch_scc1 K2_NOZ0
    ds_write_b128 v56, v[8:11] offset:{MISC}
K2_NOZ0:
""")
    def ag16(lab):
        e(f"""
    v_add_u32 v57, {AG}, v56
    ds_write_b128 v57, v[8:11]
    ds_write_b128 v57, v[8:11] offset:16384
    s_cmp_ge_u32 s21, 11
    s_cbranch_scc1 {lab}
    ds_write_b128 v57, v[8:11] offset:32768
""")
    if OPT["agz"] == 0:
        ag16("K2_NOZ3")
        e("    s_waitcnt vmcnt(1)\n    s_branch K2_ROUND\nK2_NOZ3:\n    s_waitcnt vmcnt(0)")
    else:
        if OPT["agz"] == 1:
            e(f"    s_cmp_ge_u32 s21, 8\n    s_cbranch_scc1 K2_NOZ3\n    v_add_u32 v57, {AG}, v56")
            for i in range(5): e(f"    ds_write_b128 v57, v[8:11] offset:{8192 * i}")
            e(f"    s_cmp_ge_u32 s21, 3\n    s_cbranch_scc1 K2_NOZ3\n    ds_write_b128 v57, v[8:11] offset:{8192 * 5}\nK2_NOZ3:")
        e("    s_cmp_lt_u32 s21, 11\n    s_cbranch_scc1 K2_WD1\n    s_waitcnt vmcnt(0)\nK2_WD1:\n    s_waitcnt vmcnt(1)")
    e(f"""
K2_ROUND:
""")
    prio(2)
    stamp(1, 4, 1)
    e(f"""
    v_lshrrev_b32 v16, 16, v2               ; count
    v_and_b32 v17, 0xffff, v2               ; start
    v_subrev_u32 v16, s24, v16
    v_add3_u32 v17, v17, s24, v4
    v_min_i32 v18, s25, v16
    v_mad_u32_u24 v17, v17, 12, v3
    v_sub_u32 v18, v18, v4
    s_mov_b32 s34, {REC}
""")
    for k in range(4): e(f"    v_cmp_lt_i32 {sr(sM[k], 2)}, {4 * k}, v18")
    def ld(k):
        e(f"    buffer_load_dwordx3 {vr(vR + 4 * k, 3)}, v17, s[4:7], s34 offen offset:{48 * k}")
        if 4 <= k + 1 < NK: e(f"    v_cmp_lt_i32 {sr(sM[k + 1], 2)}, {4 * (k + 1)}, v18")
    per_record("K2_RLD", ld)
    e("    s_mov_b64 exec, -1")
    stamp(2, 4, 1)
    prio(0)
    e(f"""
    v_and_b32 v1, 63, v0
    v_cmp_lt_i32 {sr(sMM, 2)}, s25, v16
    v_lshlrev_b32 v7, 4, v1                 ; lane*16
    s_mov_b32 s75, 0
""")
    if not OPT["bdp"]: e("    s_waitcnt lgkmcnt(3)\n    s_barrier")
    e(f"""
    ds_write_b128 v56, v[8:11] offset:{EA}
    s_cmp_ge_u32 s21, 8
    s_cbranch_scc1 K2_NOSO
    v_mov_b32 v12, {PADV}
    v_mov_b32 v13, v12
    v_mov_b32 v14, v12
    v_mov_b32 v15, v12
    ds_write_b128 v56, v[12:15] offset:{SO}
    {"s_mov_b32 s75, s%d" % sFirst if OPT["qo"] else "s_branch K2_NOW2"}
K2_NOSO:
    {"" if OPT["qo"] else "s_mov_b32 s75, s%d                ; 1: this wave computes q in this round" % sFirst}
""")
    def w2_loads():
        e(f"    s_lshl_b32 s74, s21, 12\n    s_add_u32 s74, s74, {W2F - (0 if OPT['qo'] else 8 * 4096)}")
        for s in range(4):
            e(f"    buffer_load_dwordx4 {vr(92 + 4 * s, 4)}, v7, s[4:7], s74 offen offset:{1024 * s}")
    if OPT["bdp"] != 2:
        e("    s_cmp_eq_u32 s75, 0\n    s_cbranch_scc1 K2_NOW2")
        w2_loads()
    e(f"""
K2_NOW2:
    s_cmp_eq_u32 s{sFirst}, 0
    s_cbranch_scc1 K2_SETD
""")
    if OPT["agz"] == 2:
        ag16("K2_NOZ3"); e("K2_NOZ3:")
    e(f"""
    v_lshrrev_b32 v5, 4, v1                 ; g
    v_and_b32 v6, 15, v1                    ; n
    v_mov_b32 v{vNp}, 0
    s_cmp_lt_u32 s20, 16
    s_cselect_b32 s22, 40, 39
    s_bfm_b64 s[78:79], s22, 0
    s_and_b32 s23, s21, 1
    s_lshr_b32 s76, s21, 1
    s_mov_b32 s26, {KC:#x}
    s_mov_b32 s{sGuard}, 0
    s_mov_b32 s{sOne}, {f2u(2.0 ** -64):#x}
    s_mov_b32 s{sOne + 1}, s{sOne}
    s_mov_b32 s{sScale}, {f2u(2.0 ** 31 * math.log(2.0)) if OPT['unc'] else f2u(1.0):#x}
    s_mov_b32 s72, {NL2E:#x}
    s_lshl_b32 s39, s23, 7
    s_add_u32 s8, s4, s39
    s_addc_u32 s9, s5, 0
    s_or_b32 s9, s9, 0x80000000
    s_mov_b32 s10, 0x10000
    s_mov_b32 s11, 0x00c00000
""")
    srd(16, N * 256)
    e(f"""
K2_SETD:
    v_mov_b32 v59, 4
    v_lshlrev_b32 v58, 2, v1
    v_mov_b32 v{vRS}, {RS}
    v_and_b32 v{vaN[1]}, 31, v1
    s_lshl_b32 s36, s23, 9
    s_add_u32 s37, s36, {QU}
    v_lshl_add_u32 v{vaN[0]}, v{vaN[1]}, 4, s37
    v_lshl_add_u32 v{vW3a}, s36, 1, v7
    s_movk_i32 s36, 0x3f80
    s_mov_b32 s37, 0
    v_and_b32 v16, 0x30, v7
    v_lshlrev_b64 {vr(vI, 2)}, v16, s[36:37]
    v_mov_b32 v{vS16}, 0
    v_mov_b64 {vr(vaE, 2)}, 0
    v_mov_b32 v{vStr}, 0
    s_mov_b64 exec, s[78:79]
    v_mov_b32 v{vS16}, 16
    s_mov_b32 exec_lo, 0x55555555
    s_mov_b32 exec_hi, 0xaaaaaaaa
    v_and_b32 v{vaE}, 0x18, v1
    v_mov_b32 v{vAct}, 1
    v_bfe_u32 v{vStr}, v1, 1, 2
""")
    if not OPT["bdp"]: e(f"    s_mov_b64 exec, {sr(sMM, 2)}\n    s_cbranch_execnz K2_MORE\nK2_MOREB:")
    e(f"""
    s_cmp_eq_u32 s75, 0
    s_cbranch_scc1 K2_W0
    s_mov_b64 exec, -1
""")
    x_addr(108)
    e(f"""
    s_bfe_u32 s36, s21, 0x20001
    s_lshl3_add_u32 s36, s36, s23
    s_lshl_b32 s36, s36, 5
    s_add_u32 s36, s36, {QU}
    v_mul_u32_u24 v{vTa}, {RS}, v6
    v_lshl_add_u32 v{vTa}, v5, 6, v{vTa}
    v_add_u32 v{vTa}, s36, v{vTa}
    s_cmp_eq_u32 s75, 0
""")
    if OPT["bdp"]:
        e("K2_W0:")
        prio(2)
        e(f"""
    s_waitcnt lgkmcnt({(5, 8, 5)[OPT['agz']]})
    s_barrier
    s_mov_b64 exec, {sr(sMM, 2)}
    s_cbranch_execnz K2_MORE
K2_MOREB:
    s_cbranch_scc1 K2_W1
""")
        if OPT["bdp"] == 2:
            e("    s_mov_b64 exec, -1")
            w2_loads()
        e(f"""
    s_waitcnt vmcnt(4)
    s_branch K2_RECS
K2_W1:
    s_waitcnt vmcnt(0)
K2_RECS:
""")
    else:
        prio(2)
        e("    s_waitcnt vmcnt(4)\n    s_branch K2_RECS\nK2_W0:")
        prio(2)
        e("    s_waitcnt vmcnt(0)\nK2_RECS:")
    stamp(3, 4, 1)
    per_record("K2_HISTD", lambda k: e(f"""
    v_lshrrev_b32 v{vN4[k]}, 24, v{vR + 2 + 4 * k}
    ds_add_rtn_u32 v{vR + 3 + 4 * k}, v{vN4[k]}, v59 offset:{CNT}
    v_and_b32 v{vR + 2 + 4 * k}, 0x3ffffff, v{vR + 2 + 4 * k}
"""))
    e(f"""
    s_mov_b64 exec, -1
    s_cmp_lg_u32 s76, 0
    s_cbranch_scc1 K2_NOW3
    s_lshl_b32 s34, s23, 10
    s_add_u32 s35, s34, {W3L}
    s_add_u32 s34, s34, {W3F}
    s_mov_b32 m0, s35
    s_nop 0
    buffer_load_dwordx4 v7, s[4:7], s34 offen lds
K2_NOW3:
""")
    if OPT["pf2"]:
        e(f"""
    s_sub_u32 s34, s21, 2
    s_cmp_ge_u32 s34, 6
    s_cbranch_scc1 K2_NOPF2
    s_lshr_b32 s35, s2, 3
    s_mul_i32 s35, s35, 80000
    s_mul_i32 s34, s34, {OPT["pf2"] * 1024}
    s_add_u32 s34, s34, s35
""" + "".join(f"    buffer_load_dwordx4 v[116:119], v7, s[4:7], s34 offen offset:{1024 * i}\n" for i in range(OPT["pf2"])) + "K2_NOPF2:")
    e(f"""
    s_waitcnt lgkmcnt(0)
    s_barrier
""")
    stamp(4, 4, 1)
    e(f"""
    ds_read_b32 v{vC4}, v58 offset:{CNT}
    s_waitcnt lgkmcnt(0)
    v_add_u32 v{vQ16}, 12, v{vC4}
    v_and_b32 v{vQ16}, -16, v{vQ16}
    v_max_u32 v{vQ16}, v{vS16}, v{vQ16}     ; 16*quads
    s_nop 1
    v_add_u32_dpp v{vE16}, v{vQ16}, v{vQ16} row_shr:1 row_mask:0xf bank_mask:0xf bound_ctrl:1
""")
    for c in ("row_shr:2 row_mask:0xf", "row_shr:4 row_mask:0xf", "row_shr:8 row_mask:0xf", "row_bcast:15 row_mask:0xa", "row_bcast:31 row_mask:0xc"):
        e(f"    s_nop 1\n    v_add_u32_dpp v{vE16}, v{vE16}, v{vE16} {c} bank_mask:0xf")
    e(f"""
    v_sub_u32 v{vS16}, v{vE16}, v{vQ16}
    v_readlane_b32 s34, v{vE16}, 63
""")
    for k in range(NK):
        if k >= 3: e(f"    s_cmp_eq_u64 {sr(sM[k], 2)}, 0\n    s_cbranch_scc1 K2_BPD")
        e(f"    ds_bpermute_b32 v{vN4[k]}, v{vN4[k]}, v{vS16}")
    e(f"""
K2_BPD:
    s_cmp_gt_u32 s34, {S16MAX}
    s_cbranch_scc1 K2_REDO
    s_add_u32 s34, s34, 48
    s_lshr_b32 s35, s34, 9
    s_bfe_u32 s34, s34, 0x30006
    s_mul_i32 s37, s76, s35
    s_waitcnt lgkmcnt(0)
""")
    per_record("K2_GEO", lambda k: e(f"""
    v_add_u32 v{vN4[k]}, v{vN4[k]}, v{vR + 3 + 4 * k}
    ds_write_b32 v{vN4[k]}, v{vR + 2 + 4 * k} offset:{SO}
    v_add_u32 v{vR + 3 + 4 * k}, v{vN4[k]}, v{vN4[k]}
"""))
    e(f"""
    s_cmp_lg_u32 s21, {8 * OPT['qo']}
    s_cbranch_scc1 K2_NOFL
    s_mov_b64 exec, s[78:79]
    v_lshrrev_b32 v16, 4, v{vE16}
    ds_write_b8 v16, v59 offset:{FL - 1}
K2_NOFL:
    s_min_u32 s38, s76, s34
    s_add_u32 s37, s37, s38
    s_lshl_b32 s60, s37, 6                  ; stream (0,X)
    s_cmp_lt_u32 s76, s34
    s_addc_u32 s35, s35, 0
    s_mov_b64 exec, -1
    v_and_b32 v{vaS[0]}, 32, v1
    v_mul_u32_u24 v{vaS[0]}, s35, v{vaS[0]}
    s_lshl_b32 s77, s35, 4
    v_add_u32 v{vaS[0]}, s60, v{vaS[0]}
    v_add_u32 v{vaS[1]}, s77, v{vaS[0]}
""")
    if OPT["pf2"]: e("    s_sub_u32 s36, s21, 2\n    s_cmp_lt_u32 s36, 6\n    s_cbranch_scc1 K2_NOVM")
    e("    s_waitcnt vmcnt(0)\nK2_NOVM:")
    if OPT["uw3"]:
        e(f"""
    s_cmp_eq_u32 s75, s{sFirst}
    s_cbranch_scc1 K2_NOUT
    s_lshl_b32 s36, s21, 12
    s_add_u32 s36, s36, {WUT}
""")
        for s in range(4):
            e(f"    buffer_load_dwordx4 {vr(92 + 4 * s, 4)}, v7, s[4:7], s36 offen offset:{1024 * s}")
        e("K2_NOUT:")
    xbq = lambda T, s: 8 + 16 * T + 4 * s
    e("    s_cmp_lg_u32 s75, 0")
    if OPT["qpre"]:
        e("    s_cbranch_scc0 K2_NOXQ")
        x_reads(108, xbq)
        e("    s_waitcnt lgkmcnt(12)\n    s_branch K2_B2\nK2_NOXQ:")
    e("    s_waitcnt lgkmcnt(0)\nK2_B2:\n    s_barrier")
    stamp(5, 4, 1)
    def ea_writes(lab):
        per_record(lab, lambda k: e(f"    ds_write_b64 v{vR + 3 + 4 * k}, {vr(vR + 4 * k, 2)} offset:{EA}"))
    def first_gathers(lab, mid=None):
        e(f"""
    ds_read_b128 {vr(vSO, 4)}, v{vaS[0]} offset:{SO}
    ds_read_b128 {vr(vSO + 4, 4)}, v{vaS[1]} offset:{SO}
    ds_read_b128 {vr(vE, 4)}, v{vaS[0]} offset:{SO + 16}
    ds_read_b128 {vr(vE + 4, 4)}, v{vaS[1]} offset:{SO + 16}
""")
        if OPT["dep"] == 1:
            e("    s_waitcnt lgkmcnt(2)")
            gathers(vP[1], vSO)
            e("    s_waitcnt lgkmcnt(0)")
            gathers(vP[0], vE)
            return
        e(f"    s_bitcmp1_b32 s35, 0\n    s_cbranch_scc1 {lab}1")
        for a in range(2):
            if a: e(f"{lab}1:")
            e("    s_waitcnt lgkmcnt(2)")
            gathers(vP[a], vSO)
            e("    s_waitcnt lgkmcnt(0)")
            if mid: mid(a)
            gathers(vP[1 - a], vE)
            if not a: e(f"    s_branch {lab}D")
        e(f"{lab}D:")
    def addresses():
        e(f"""
    v_lshrrev_b32 v8, 4, v{vaS[0]}
    v_add_u32 v8, v8, v{vaN[1]}
    v_add_u32 v9, s35, v8
    ds_read_u8 v8, v8 offset:{FL}
    ds_read_u8 v9, v9 offset:{FL}
    ds_read_b128 {vr(vBw, 4)}, v{vW3a} offset:{W3L}
    s_add_u32 s61, s60, s77
    s_add_u32 s62, s61, s77
    s_add_u32 s63, s62, s77
    s_mov_b64 exec, s[78:79]
""")
        for k in range(4):
            e(f"    v_cmp_ge_u32 vcc, s{60 + k}, v{vE16}\n    s_bcnt1_i32_b64 s{64 + k}, vcc")
        e(f"""
    v_sub_u32 v{vQ16}, v{vQ16}, v{vC4}
    v_add_u32 v{vNp}, v{vNp}, v{vQ16}
    s_mov_b32 exec_hi, 0
    v_mad_u32_u24 v{vaN[1]}, s65, v{vRS}, v{vaN[0]}
    v_mad_u32_u24 v{vaN[0]}, s64, v{vRS}, v{vaN[0]}
    s_not_b64 exec, exec
    v_mad_u32_u24 v{vaN[1]}, s67, v{vRS}, v{vaN[0]}
    v_mad_u32_u24 v{vaN[0]}, s66, v{vRS}, v{vaN[0]}
    s_mov_b64 exec, -1
    s_lshl_b32 s36, s35, 5
    s_lshl1_add_u32 s37, s60, {EA}
    v_mad_u32_u24 v{vaE}, v{vStr}, s36, v{vaE}
    v_mad_u32_u24 v{vaE}, v{vAct}, s37, v{vaE}
    v_mov_b64 {vr(vAc[0], 2)}, 0
    v_mov_b64 {vr(vAc[1], 2)}, 0
    v_mov_b64 {vr(vM, 2)}, 0
    v_mov_b64 {vr(vDn[0], 2)}, {sr(sOne, 2)}
    v_mov_b64 {vr(vDn[1], 2)}, {sr(sOne, 2)}
    s_sub_u32 s34, {NT}, s35
    s_add_u32 s38, s77, {SO - 16 * NT}
    s_sub_u32 s39, s36, {32 * NT}
    s_waitcnt lgkmcnt(0)
    v_cmp_ne_u32 {sr(sFM[0], 2)}, 0, v8
    v_cmp_ne_u32 {sr(sFM[1], 2)}, 0, v9
""")
    def tile_write(src, o):
        for T in range(3):
            if T == 2: e(f"    s_mov_b32 exec_lo, {M9}\n    s_mov_b32 exec_hi, {M9}")
            for h in range(2):
                src(T, h)
            for h in range(2):
                e(f"    ds_write_b64 v{vTa}, {vr(o[0] + 4 * T + 2 * h, 2)} offset:{16 * RS * T + 16 * h + o[1]}")
        e("    s_mov_b64 exec, -1")
    e("    s_cbranch_scc0 K2_FG")
    prio(OPT["qp"])
    if not OPT["qpre"]: x_reads(108, xbq)
    node_mfma(vU, 92, xbq)
    stamp(401, 4, 1)
    ea_writes("K2_EAQ")
    e("    s_mov_b64 exec, -1\n    s_nop 0")
    tile_write(lambda T, h: e(f"    v_pk_mul_f32 {vr(vU + 4 * T + 2 * h, 2)}, {vr(vU + 4 * T + 2 * h, 2)}, s[72:73] op_sel_hi:[1,0]"), (vU, 0))
    stamp(402, 4, 1)
    e("    s_waitcnt lgkmcnt(0)")
    stamp(407, 4, 1)
    e("    s_barrier")
    stamp(403, 4, 1)
    if OPT["qp"] != OPT["gp2"]: prio(OPT["gp2"])
    def silu_q():
        for r in range(12):
            e(f"    v_exp_f32 v{92 + r}, v{vU + r}")
        for r in range(0, 12, 2):
            e(f"    v_pk_fma_f32 {vr(92 + r, 2)}, {vr(92 + r, 2)}, {KCOP}")
        for r in range(12):
            e(f"    v_rcp_f32 v{92 + r}, v{92 + r}")
        tile_write(lambda T, h: e(f"    v_pk_mul_f32 {vr(92 + 4 * T + 2 * h, 2)}, {vr(92 + 4 * T + 2 * h, 2)}, {vr(vU + 4 * T + 2 * h, 2)}"), (92, 8))
    if OPT["gpos"] == 0: silu_q()
    stamp(408, 4, 1)
    prio(0)
    first_gathers("K2_GQ")
    prio(OPT["gq2"])
    stamp(11, 4, 1)
    if OPT["gpos"] == 1: silu_q()
    addresses()
    if OPT["gpos"] == 2: silu_q()
    e("    s_branch K2_NOB\nK2_FG:")
    if OPT["stg"]:
        e(f"    s_cmp_lt_u32 s21, {OPT['stg']}\n    s_cbranch_scc1 K2_EARLY")
        ea_writes("K2_EAL")
        e("    s_mov_b64 exec, -1")
        addresses()
        stamp(407, 4, 1)
        e("    s_barrier")
        prio(OPT["gl"])
        first_gathers("K2_GL")
        prio(2)
        stamp(11, 4, 1)
        e("    s_branch K2_NOB\nK2_EARLY:")
        def mid(a):
            ea_writes(f"K2_EAR{a}")
            e("    s_mov_b64 exec, -1")
        first_gathers("K2_GR", mid)
        stamp(11, 4, 1)
    else:
        first_gathers("K2_GR")
        stamp(11, 4, 1)
        ea_writes("K2_EAR")
        e("    s_mov_b64 exec, -1")
    stamp(404, 4, 1)
    if OPT["rab"]:
        e(f"    s_cmp_lt_u32 s21, {OPT['rab']}\n    s_cbranch_scc1 K2_RA\n    s_waitcnt lgkmcnt(0)\n    s_barrier\nK2_RA:")
    addresses()
    stamp(407, 4, 1)
    if OPT["rab"]: e(f"    s_cmp_ge_u32 s21, {OPT['rab']}\n    s_cbranch_scc1 K2_NOB")
    if OPT["uw3"]:
        e(f"    s_cmp_lt_u32 s21, {OPT['uw3']}\n    s_cbranch_scc1 K2_U1\n    s_barrier\nK2_U1:\n    s_cmp_eq_u32 s{sFirst}, 0\n    s_cbranch_scc1 K2_U2")
        xbw = lambda T, s: ((8, 12, 32, 36), (40, 44, 48, 52), (56, 60, 64, 72))[T][s]
        x_addr(122); x_reads(122, xbw)
        e("    s_waitcnt vmcnt(16)")
        node_mfma(vU, 92, xbw)
        e(f"K2_U2:\n    s_cmp_ge_u32 s21, {OPT['uw3']}\n    s_cbranch_scc1 K2_NOB")
    e(f"""
    s_barrier
K2_NOB:
    ds_read_b64 {vr(vQ, 2)}, v{vaN[0]}
    ds_read_b64 {vr(vQ + 2, 2)}, v{vaN[1]}
    ds_read2_b64 {vr(vAe, 4)}, v{vaE} offset0:0 offset1:0
    ds_read_b128 {vr(vSO, 4)}, v{vaS[0]} offset:{SO + 32}
    ds_read_b128 {vr(vSO + 4, 4)}, v{vaS[1]} offset:{SO + 32}
    s_mov_b32 s{sFirst}, 0
""")
    for y in range(2):
        e(f"""
    s_lshl_b64 {sr(sFM[y], 2)}, {sr(sFM[y], 2)}, s34
    s_or_b32 s36, s{sFM[y]}, s{sFM[y] + 1}
    s_lshr_b32 s37, s36, 1
    s_or_b32 s{sEV[y]}, s36, s37
""")
    if OPT["cae"]:
        e("    s_cmp_lt_u32 s21, 8\n    s_cbranch_scc1 K2_NOCE")
        conv_addr(76)
        e("K2_NOCE:")
    stamp(12, 4, 1)
    e(f"""
    s_or_b32 s34, s34, 0x10000
    s_bitcmp1_b32 s35, 0
    s_waitcnt vmcnt(8) lgkmcnt(0)
""")
    stamp(6, 4, 1)
    e("    s_cbranch_scc1 K2_PA1")
    for a in range(2):
        if a: e("K2_PA1:")
        for q in range(4): e(mfma4(vD[a], vP[a] if OPT["dep"] == 2 else vP[1], q))
        if OPT["dep"] == 2:
            prio(1)
            e(f"    s_cmp_lt_u32 s35, 3\n    s_cbranch_scc1 K2_NGP{a}")
            gathers(vP[a], vSO)
            e(f"K2_NGP{a}:\n    s_nop 0\n{mfma32(vD[a])}")
        else:
            e(f"    s_nop 3\n{mfma32(vD[a])}")
        if not a: e("    s_branch K2_PAD")
    e(f"""
K2_PAD:
""")
    if OPT["dep"] == 2: e(f"    ds_read_b128 {vr(vSO, 4)}, v{vaS[0]} offset:{SO + 48}\n    ds_read_b128 {vr(vSO + 4, 4)}, v{vaS[1]} offset:{SO + 48}")
    e(f"""
    ds_read2_b64 {vr(vAe, 4)}, v{vaE} offset0:4 offset1:4
""")
    for y in range(2):
        e(f"""
    s_bfe_i32 exec_lo, s{sFM[y]}, s34
    s_bfe_i32 exec_hi, s{sFM[y] + 1}, s34
    ds_read_b64 {vr(vQ + 2 * y, 2)}, v{vaN[y]} offset:{RS}
""")
    e(f"""
    s_mov_b64 exec, -1
    v_mad_i32_i24 v{vaE}, v{vAct}, s39, v{vaE}
    v_add_u32 v{vaS[0]}, s38, v{vaS[0]}
    v_add_u32 v{vaS[1]}, s38, v{vaS[1]}
""")
    prio(PRIO_0)
    def edge_loop(v):
        for Lv in (10, 11, 9, 12, 8, 13, 7, 14, 6, 15, 5, 4, 3, 2, 1):
            e(f"    s_cmp_eq_u32 s35, {Lv}\n    s_cbranch_scc1 K2_{v}T{NT - Lv}")
        e(f"K2_{v}LOOP:")
        for t in range(NT):
            tile(t, v)
    if OPT["unc"]: e(f"    s_cmp_lg_u32 s{sGuard}, 0\n    s_cbranch_scc1 K2_GUARDED")
    edge_loop("")
    xbu = lambda T, s: 32 + 16 * T + 4 * s
    if OPT["unc"] == 2:
        e("K2_LDIV:"); divide(0, True); divide(1, True)
    e(f"""
K2_LDONE:
    s_cmp_ge_u32 s21, 8
    s_cbranch_scc1 K2_LD2
    s_lshl_b32 s36, s21, 12
    s_add_u32 s36, s36, {WUT}
    s_add_u32 s37, s36, {WUB - WUT}
""")
    for s in range(0 if OPT["uw3"] else 4):
        e(f"    buffer_load_dwordx4 {vr(16 + 4 * s, 4)}, v7, s[4:7], s36 offen offset:{1024 * s}")
    for s in range(4):
        e(f"    buffer_load_dwordx4 {vr(92 + 4 * s, 4)}, v7, s[4:7], s37 offen offset:{1024 * s}")
    e("K2_LD2:")
    for y in range(2):
        flush_adds(y)
    e(f"""
    v_mov_b32 v89, {MORE}
    v_add_f32 v{vM}, v{vM}, v{vM + 1}
    v_cmp_nge_f32 vcc, {f2u(2.0 ** (124 if OPT['unc'] == 2 else 64)):#x}, v{vM}
    ds_read_b32 v89, v89
    s_cbranch_vccnz K2_BIG
K2_BIGB:
""")
    stamp(7, 4, 1)
    e(f"""
    s_cmp_ge_u32 s21, 8
    s_cbranch_scc1 K2_NOU
""")
    if not OPT['uw3']: x_addr(84); x_reads(84, xbu)
    e(f"""
    v_mul_u32_u24 v{vFR}, {RB}, v6
    v_lshl_add_u32 v{vFR}, v5, 4, v{vFR}
    v_add_u32 v{vFR}, {AGB}, v{vFR}
    v_mul_u32_u24 v90, {RO}, v6
    v_lshl_add_u32 v90, v5, 3, v90
    s_lshl_b32 s36, s21, 5
    s_add_u32 s36, s36, {EA}
    v_add_u32 v90, s36, v90
    v_lshrrev_b32 v88, 4, v0
    v_mul_u32_u24 v91, {RO}, v88
    v_lshl_add_u32 v91, v6, 4, v91
    v_lshlrev_b32 v88, 16, v88
    v_lshl_or_b32 v88, v6, 4, v88
    s_lshl_b32 s36, s20, 8
    v_add_u32 v88, s36, v88
    v_add_u32 v125, 0x200000, v88
""")
    if not OPT["uw3"]:
        e("    s_waitcnt vmcnt(4)")
        node_mfma(vU, 16, xbu)
    e(f"""
    s_cmp_lt_u32 s21, 6
    s_cbranch_scc1 K2_NOCA
""")
    if not OPT['cae']: e('K2_NOU:')
    conv_addr(84)
    if OPT['cae']: e('K2_NOU:')
    e(f"""
K2_NOCA:
    s_waitcnt lgkmcnt(0)
    v_readfirstlane_b32 s{sMoreV}, v89
    s_barrier
""")
    stamp(8, 4, 1)
    e(f"""
    s_cmp_lg_u32 s{sMoreV}, 0
    s_cbranch_scc1 K2_NEXT
    v_mov_b32 v123, {BAD}
    ds_read_b32 v123, v123
    s_cmp_lt_u32 s21, 6
    s_cbranch_scc1 K2_NOCV
""")
    for k in range(4):
        e(f"    ds_read_b128 {vr(16 + 4 * k, 4)}, v{vCA} offset:{AG - QU + RS * k}\n    ds_read_b64 {vr(8 + 2 * k, 2)}, v{vCA} offset:{RS * k + 8}")
    for k in range(4):
        e(f"    s_waitcnt lgkmcnt({6 - k})")
        e(f"    v_cvt_f32_f64 v{32 + 2 * k}, {vr(16 + 4 * k, 2)}\n    v_cvt_f32_f64 v{33 + 2 * k}, {vr(18 + 4 * k, 2)}")
        e(f"    v_pk_mul_f32 {vr(8 + 2 * k, 2)}, {vr(8 + 2 * k, 2)}, {sr(60 + 2 * k, 2)} op_sel_hi:[1,0]")
        e(f"    v_pk_fma_f32 {vr(32 + 2 * k, 2)}, {vr(32 + 2 * k, 2)}, {sr(sScale, 2)}, {vr(8 + 2 * k, 2)} op_sel_hi:[1,0,1]")
        e(f"    v_cvt_pk_bf16_f32 v{40 + k}, v{32 + 2 * k}, v{33 + 2 * k}")
        e(f"    ds_write_b32 v{vCW}, v{40 + k} offset:{RB * k}")
    stamp(301, 4, 1)
    e(f"""
K2_NOCV:
    s_waitcnt lgkmcnt(0)
    v_readfirstlane_b32 s36, v123
    s_barrier
""")
    stamp(13, 4, 1)
    e("    s_cmp_lg_u32 s36, 0\n    s_cbranch_scc1 K2_RESTART\n    s_cmp_ge_u32 s21, 8\n    s_cbranch_scc1 K2_FIN")
    xbf = lambda T, s: 16 + 16 * T + 4 * s
    tmp, outr = 76, 8
    def M(T, s, wait=True):
        if wait: e(f"    s_waitcnt lgkmcnt({11 - 4 * T - s})")
        e(f"    v_mfma_f32_16x16x32_bf16 {vr(vU + 4 * T, 4)}, {vr(92 + 4 * s, 4)}, {vr(xbf(T, s), 4)}, {vr(vU + 4 * T, 4)}")
    def sc_(T):
        for m in (2 * T, 2 * T + 1): e(f"    v_pk_mul_f32 {vr(tmp + 2 * m, 2)}, {vr(vU + 2 * m, 2)}, s[72:73] op_sel_hi:[1,0]")
    def ex_(T, k): e(f"    v_exp_f32 v{tmp + 4 * T + k}, v{tmp + 4 * T + k}")
    def ad_(T):
        for m in (2 * T, 2 * T + 1): e(f"    v_pk_add_f32 {vr(tmp + 2 * m, 2)}, {vr(tmp + 2 * m, 2)}, 1.0 op_sel_hi:[1,0]")
    def rc_(T):
        for k in range(4): e(f"    v_rcp_f32 v{tmp + 4 * T + k}, v{tmp + 4 * T + k}")
    def out_(T):
        for m in (2 * T, 2 * T + 1): e(f"    v_pk_mul_f32 {vr(tmp + 2 * m, 2)}, {vr(tmp + 2 * m, 2)}, {vr(vU + 2 * m, 2)}")
        for m in (2 * T, 2 * T + 1): e(f"    v_cvt_pk_bf16_f32 v{outr + m}, v{tmp + 2 * m}, v{tmp + 2 * m + 1}")
        e(f"    ds_write_b64 v90, {vr(outr + 2 * T, 2)} offset:{16 * RO * T}")
    for T in range(3):
        for s in range(4):
            e(f"    ds_read_b128 {vr(xbf(T, s), 4)}, v{vFR} offset:{16 * RB * T + 64 * s}")
    e("    s_waitcnt vmcnt(0)")
    for s in range(4): M(0, s)
    for s in range(4): M(1, s)
    stamp(302, 4, 1)
    sc_(0)
    e("    s_waitcnt lgkmcnt(0)")
    for s in range(4): M(2, s, False); ex_(0, s)
    e("    s_nop 0")
    sc_(1)
    for k in range(4): ex_(1, k)
    ad_(0); rc_(0); sc_(2)
    for k in range(4): ex_(2, k)
    out_(0); stamp(303, 4, 1); ad_(1); rc_(1); ad_(2); out_(1); rc_(2); e("    s_nop 0"); out_(2); stamp(304, 4, 1)
    e(f"""
    s_cmp_ge_u32 s21, 2
    s_waitcnt lgkmcnt(0)
    s_barrier
""")
    stamp(305, 4, 1)
    e(f"""
    ds_read_b128 v[16:19], v91 offset:{EA}
    s_cbranch_scc1 K2_O1
    ds_read_b128 v[20:23], v91 offset:{EA + 32 * RO}
    s_waitcnt lgkmcnt(0)
    buffer_store_dwordx4 v[20:23], v125, s[16:19], 0 offen
K2_O1:
    s_waitcnt lgkmcnt(0)
    buffer_store_dwordx4 v[16:19], v88, s[16:19], 0 offen
K2_FIN:
""")
    light1(4, 1)
    if OPT["stamps"]:
        stamp(9, 4, 1); e("    s_waitcnt vmcnt(0)"); stamp(10, 4, 1); stamp_out(4, 1)
    e("K2_END:\n    s_endpgm")
    for t in range(NT - 1):
        for y in range(2):
            event_block(t, y, '')
    e(f"""
K2_TAILBLOCKS:
K2_MORE:
    v_mov_b32 v16, {MORE}
    ds_write_b32 v16, v59
    s_branch K2_MOREB
K2_BIG:
    v_mov_b32 v{vM}, {BAD}
    ds_write_b32 v{vM}, v{vM}
    s_branch K2_BIGB
K2_NEXT:
    v_mov_b32 v123, {BAD}
    ds_read_b32 v123, v123
    s_add_u32 s24, s24, s25
    s_waitcnt vmcnt(0) lgkmcnt(0)
    v_readfirstlane_b32 s36, v123
    s_barrier
    s_cmp_eq_u32 s36, 0
    s_cbranch_scc1 K2_AGAIN
K2_RESTART:
    s_mov_b32 s{sGuard}, 1
    s_mov_b32 s{sScale}, 1.0
    s_mov_b32 s24, 0
    v_mov_b32 v{vNp}, 0
    v_lshlrev_b32 v56, 4, v0
    v_mov_b64 v[8:9], 0
    v_mov_b64 v[10:11], 0
    v_add_u32 v57, {AG}, v56
    ds_write_b128 v57, v[8:11]
    ds_write_b128 v57, v[8:11] offset:16384
    s_cmp_ge_u32 s21, 11
    s_cbranch_scc1 K2_RS1
    ds_write_b128 v57, v[8:11] offset:32768
K2_RS1:
    s_waitcnt vmcnt(0) lgkmcnt(0)
    s_branch K2_AGAIN
K2_REDO:
    s_mov_b32 s25, 4
    s_waitcnt vmcnt(0) lgkmcnt(0)
    s_barrier
K2_AGAIN:
    v_lshlrev_b32 v56, 4, v0
    v_mov_b64 v[8:9], 0
    v_mov_b64 v[10:11], 0
    s_cmp_ge_u32 s21, 2
    s_cbranch_scc1 K2_ROUND
    ds_write_b128 v56, v[8:11] offset:{MISC}
    s_waitcnt lgkmcnt(0)
K2_LAST:
    s_branch K2_ROUND
""")
    if OPT["unc"]:
        e("K2_GUARDED:")
        edge_loop("G")
        e("    s_branch K2_LDONE")
        for t in range(NT - 1):
            for y in range(2):
                event_block(t, y, "G")

def desc(name, vg, sg):
    e(f"""
.p2align 6
.amdhsa_kernel {name}
  .amdhsa_next_free_vgpr {vg}
  .amdhsa_next_free_sgpr {sg}
  .amdhsa_accum_offset {vg}
  .amdhsa_group_segment_fixed_size 0
  .amdhsa_kernarg_size 72
  .amdhsa_user_sgpr_count 2
  .amdhsa_user_sgpr_kernarg_segment_ptr 1
  .amdhsa_system_sgpr_workgroup_id_x 1
.end_amdhsa_kernel
""")

e(f"""
; MPNN edge MLP, N=10000 nodes, E=320000 edges, D=128, De=4 (bf16 in, bf16 out), in two launches.
; launch 1: bins the edges by bucket (dst & 255) into (e_attr, src, node) records, P' = -log2e * x@W1 (bf16),
; launch 2: one workgroup per bucket: counting sort by node in LDS, q = -log2e * x@W2, then per 16 edges x 64 features
; @launch kernel=mpnn_bin_kernel grid=(512,1,1) block=(768,1,1) lds={K1_LDS}
; @launch kernel=mpnn_edge_kernel grid=(256,1,1) block=(1024,1,1) lds={K2_LDS}
.amdgcn_target "amdgcn-amd-amdhsa--gfx950"
""")
kernel1()
kernel2()
e('.section .rodata,"a"')
desc("mpnn_bin_kernel", 80, 96)
desc("mpnn_edge_kernel", 128, 102 if OPT["stamps"] else 96)
FL_ = {0: "", 1: " sc1", 2: " nt", 3: " sc0 sc1", 4: " sc1 nt", 5: " sc0"}
k2at = next(i for i, l in enumerate(L) if l.startswith("mpnn_edge_kernel:"))
for i, l in enumerate(L):
    c = l.split(";")
    fl = None
    if l.strip().startswith("buffer_store") and " off," not in l:
        fl = FL_[(OPT["stp"] if "v[76:79]" in l else OPT["st1"]) if i < k2at else OPT["st2"]]
    elif l.strip().startswith("buffer_load"):
        if i < k2at:
            if any(x in l for x in ("s[24:27]", "s[8:11], s22", "s[32:35]")): fl = " nt" * OPT["nte"]
            elif "s[4:7]" in l: fl = " nt" * OPT["ntx"]
            elif "s[12:15]" in l and "lds" in l: fl = " nt" * OPT["ntw"]
        else:
            if "s[12:15]" in l: fl = " nt" * OPT["ntx2"]
            elif "dwordx3" in l: fl = " nt" * OPT["ntr"]
    if fl:
        body = c[0].rstrip()
        body = body[:-4] + fl + " lds" if body.endswith(" lds") else body + fl
        L[i] = body + ("   ;" + c[1] if len(c) > 1 else "")
open(sys.argv[1], "w").write("\n".join(L) + "\n")
```

```python
import sys, struct, math

def f2u(x): return struct.unpack("<I", struct.pack("<f", x))[0]

OPT = dict(xl=1, rpf=0, pfx=0, wp=0, qp=1, gp2=1, smf=0, dep=1, stg=0, gl=0, nrs=1, unc=2, pp=0, agz=0, qo=0, bdp=2, cae=0, cpf1=0, f16=0, uw3=0, hold=0, hold2=0, otl=0, stp=0, lay=0, k1p=0, k1o=1, cpf2=0, agl=0, t2m=1, olds=1, pf2=0, rab=0, gq=0, gq2=3, gp=1, stg1=0, stg3=0, qpre=0, eal=1, ash=0, dst1=1, fin=1, wpf=0, cpf=6, ps=2, bdl=1, rb=288, st1=0, st2=0, nte=1, ntx=0, ntw=0, ntx2=0, ntr=0, light=0, g1late=0, pf=0, gpos=0, nom4=0, nom32=0, mpos=0, nochk=0, prio1=0, dbg=0, safe=0, stamps=0, prio=1, nogather=0, nocore=0, nolds=0, nomfma=0, noflush=0)
for a in sys.argv[2:]:
    k, v = a.split("="); OPT[k] = int(v)

N, E = 10000, 320000
NB = 256
EPW = 1250
PT    = 0
DESC  = 0x280000
REC   = 0x2C0000
RSTR  = 15488
W2F   = 0x690000
WUT   = W2F + 0x8000
WUB   = WUT + 0x8000
W3F   = WUB + 0x8000
STAMP = W3F + 0x800
WSEND = STAMP + (0x100000 if OPT["stamps"] or OPT["light"] else 0)
NL2E = f2u(-1.4426950408889634)
KC   = f2u(1.0 / (2.0 ** 31 * math.log(2.0)))
NSC  = f2u(-2.0 ** -31)

L = []
def e(s=""):
    for ln in s.strip("\n").split("\n"):
        L.append(ln)
def vr(a, n): return f"v[{a}:{a + n - 1}]" if n > 1 else f"v{a}"
def sr(a, n): return f"s[{a}:{a + n - 1}]" if n > 1 else f"s{a}"

def srd(s, nrec, w3=0x20000):
    e(f"    s_mov_b32 s{s + 2}, {nrec:#x}\n    s_mov_b32 s{s + 3}, {w3:#x}")

def scan64(v):
    for c in ("row_shr:1 row_mask:0xf", "row_shr:2 row_mask:0xf", "row_shr:4 row_mask:0xf", "row_shr:8 row_mask:0xf",
              "row_bcast:15 row_mask:0xa", "row_bcast:31 row_mask:0xc"):
        e(f"    s_nop 1\n    v_add_u32_dpp v{v}, v{v}, v{v} {c} bank_mask:0xf")

NST = 16
def light0():
    if OPT["light"]: e("    s_memrealtime s[80:81]")
def light1(srd_s, kern):
    if not OPT["light"]: return
    e(f"""
    s_waitcnt vmcnt(0)
    s_memrealtime s[82:83]
    s_mov_b32 s{srd_s + 2}, {WSEND:#x}
    s_lshl_b32 s90, s2, 4
    s_add_u32 s90, s90, s21
    s_lshl_b32 s90, s90, 3
    s_add_u32 s90, s90, {STAMP + kern * 0x80000}
    s_mov_b64 exec, 1
    s_waitcnt lgkmcnt(0)
    v_mov_b32 v2, s80
    v_mov_b32 v3, s82
    buffer_store_dwordx2 v[2:3], off, s[{srd_s}:{srd_s + 3}], s90
""")
def dbg(slot):
    if not OPT["dbg"]: return
    e(f"    s_memrealtime s[{80 + 2 * slot}:{81 + 2 * slot}]")
def dbg_out(kern, wv, base, n, lab):
    if not OPT["dbg"]: return
    e(f"""
    s_waitcnt vmcnt(0)
    s_memrealtime s[{80 + 2 * (n - 1)}:{81 + 2 * (n - 1)}]
    s_cmp_lg_u32 s2, 200
    s_cbranch_scc1 {lab}
    s_cmp_lg_u32 s21, {wv}
    s_cbranch_scc1 {lab}
    s_load_dwordx2 s[92:93], s[0:1], 56
    s_waitcnt lgkmcnt(0)
    s_add_u32 s92, s92, {512 * (1 - kern)}
    s_addc_u32 s93, s93, 0
    s_mov_b32 s94, 256
    s_mov_b32 s95, 0x20000
    s_mov_b64 exec, 1
""")
    for i in range(n):
        e(f"    v_mov_b32 v127, s{80 + 2 * i}\n    buffer_store_dword v127, off, s[92:95], 0 offset:{4 * (base + i)}\n    s_waitcnt vmcnt(0)")
    e(f"{lab}:")
SMAP = {}
def stamp(i, srd_s, kern):
    if not OPT["stamps"]: return
    sel = [0, 1, 2, 3, 4, 5, 6] if kern == 0 else {1: [0, 1, 3, 4, 5, 11, 6, 7, 8, 9, 10], 2: [0, 2, 4, 5, 12, 6, 7, 8, 13, 9, 10], 3: [0] + list(range(101, 111)), 4: [0, 5, 11, 12, 6, 201, 202, 203, 204, 207, 208], 5: [0, 8, 13, 301, 302, 303, 304, 305, 306, 9, 10], 6: [0, 5, 401, 402, 403, 11, 404, 407, 6, 408], 7: [0, 1, 2, 506, 507, 3, 4, 508, 509, 510, 5]}[OPT["stamps"]]
    if i not in sel: return
    r = 80 + 2 * sel.index(i)
    SMAP[(kern, i)] = r
    if i == 0: e("    s_memrealtime s[76:77]" if kern == 0 else "    s_memrealtime vcc\n    s_waitcnt lgkmcnt(0)\n    v_writelane_b32 v127, vcc_lo, 14")
    e(f"    s_memtime s[{r}:{r + 1}]")
def stamp_out(srd_s, kern):
    if not OPT["stamps"]: return
    vs, va = (2, 3) if kern == 0 else (127, 125)
    e(f"    s_memrealtime vcc\n    s_waitcnt lgkmcnt(0)\n    v_writelane_b32 v{vs}, vcc_lo, 15")
    if kern == 0: e("    v_writelane_b32 v2, s76, 14")
    for (k, i), r in SMAP.items():
        if k == kern: e(f"    v_writelane_b32 v{vs}, s{r}, {i % 100}")
    e(f"""
    s_mov_b64 exec, 0xffff
    s_lshl_b32 s3, s2, 4
    s_add_u32 s3, s3, s21
    s_lshl_b32 s3, s3, 6
    s_add_u32 s3, s3, {STAMP + kern * 0x80000}
    v_mbcnt_lo_u32_b32 v{va}, -1, 0
    v_lshlrev_b32 v{va}, 2, v{va}
    buffer_store_dword v{vs}, v{va}, s[{srd_s}:{srd_s + 3}], s3 offen
    s_mov_b64 exec, -1
""")

K1_CNT, K1_ST, K1_STG = 0, 1024, 2048
K1_WL, K1_XL = 0, 32768
K1_LDS = 66 * 1024
def gemm_issue():
    e(f"""
    s_lshr_b32 s20, s2, 4
    s_lshl_b32 s20, s20, 3
    s_and_b32 s3, s2, 7
    s_or_b32 s20, s20, s3
""")
    if OPT["cpf1"]:
        e(f"""
    s_cmp_lg_u32 s21, 0
    s_cbranch_scc1 K1_NOT
    s_cmp_ge_u32 s20, {OPT["cpf1"]}
    s_cbranch_scc1 K1_NOT
    s_getpc_b64 s[24:25]
K1_PC1:
    v_lshlrev_b32 v8, 6, v1
    v_min_u32 v8, K1_PC - K1_PC1 + 64, v8
    v_mov_b32 v9, s25
    v_add_co_u32 v8, vcc, s24, v8
    s_nop 1
    v_addc_co_u32 v9, vcc, 0, v9, vcc
    global_load_dword v34, v[8:9], off
K1_NOT:
""")
    e(f"""
    v_lshrrev_b32 v2, 4, v1                 ; g
    v_and_b32 v3, 15, v1                    ; n / i
    s_cmp_ge_u32 s20, 209
    s_cbranch_scc1 K1_JOBS
    ; x -> LDS: rows 4w + g, chunk (l%16) ^ (row & 15)
    v_lshrrev_b32 v5, 4, v0
    v_xor_b32 v6, v5, v0
    v_and_b32 v6, 15, v6
    s_mul_i32 s25, s20, 48
    v_add_u32 v5, s25, v5
    v_lshlrev_b32 v5, 8, v5
    v_lshl_or_b32 v5, v6, 4, v5
    s_lshl_b32 s27, s21, 10
    s_add_u32 s28, s27, {K1_XL}
    s_mov_b32 m0, s28
    ; W1 -> LDS: row (l/16), chunk (l%16) ^ ((l/16)<<1) ^ (8 if bit 3 of the row)
    v_lshlrev_b32 v4, 1, v2
    v_xor_b32 v4, v4, v3
    v_lshlrev_b32 v4, 4, v4
    v_lshl_or_b32 v4, v2, 8, v4
    s_lshl_b32 s28, s21, 6
    s_and_b32 s28, s28, 0x80
    v_xor_b32 v4, s28, v4
    s_waitcnt lgkmcnt(0)
""")
    srd(4, N * 256)
    srd(12, 128 * 256)
    stamp(6, 16, 0)
    e("    buffer_load_dwordx4 v5, s[4:7], 0 offen lds")
    for m in range(3):
        if m == 2:
            e("    s_cmp_ge_u32 s21, 8\n    s_cbranch_scc1 K1_DMAD")
        e(f"""
    s_mov_b32 m0, s27
    s_nop 0
    buffer_load_dwordx4 v4, s[12:15], s27 offen lds
""")
        if m < 2: e("    s_add_u32 s27, s27, 12288")

def kernel1():
    e("""
.text
.globl mpnn_bin_kernel
.p2align 8
.type mpnn_bin_kernel,@function
mpnn_bin_kernel:
    s_load_dwordx4 s[8:11], s[0:1], 16
    s_load_dwordx4 s[4:7], s[0:1], 0        ; x, e_attr
    s_load_dwordx4 s[12:15], s[0:1], 32
    s_load_dwordx2 s[16:17], s[0:1], 64     ; ws
    s_cmp_ge_u32 s2, 512
    s_cbranch_scc1 K1_END
    v_lshrrev_b32 v2, 6, v0
    v_and_b32 v1, 63, v0
    v_readfirstlane_b32 s21, v2
    s_and_b32 s20, s2, 7
    s_lshl_b32 s20, s20, 5
    s_lshr_b32 s3, s2, 4
    s_or_b32 s20, s20, s3
    s_lshr_b32 s3, s2, 5
    s_xor_b32 s3, s3, s2
""")
    stamp(0, 16, 0); light0()
    dbg(0)
    if OPT["k1o"]:
        e("    s_bitcmp0_b32 s3, 3\n    s_cbranch_scc1 K1_BIN")
        gemm_issue()
        e("    s_branch K1_DMAD\nK1_BIN:")
    else:
        e("    s_bitcmp1_b32 s3, 3\n    s_cbranch_scc1 K1_GEMM")
    e("""
    ; ---------------- binning workgroup (waves 0..9) ----------------
    s_cmp_ge_u32 s21, 10
    s_cbranch_scc1 K1_END
""" + ("    s_setprio 3\n" if OPT["k1p"] else "") + """    s_mul_i32 s22, s20, 5000                ; byte offset of this workgroup's src/dst slice
    s_lshl_b32 s23, s22, 1                  ; e_attr slice
    v_lshlrev_b32 v3, 3, v0
    v_lshlrev_b32 v4, 4, v0
    v_cmp_gt_u32 s[44:45], 625, v0
""".replace("v_cmp_gt_u32 s[44:45], 625, v0", "v_cmp_gt_u32 vcc, 625, v0"))
    e("    s_mov_b32 s26, %#x\n    s_mov_b32 s27, 0x20000\n    s_mov_b64 s[44:45], vcc\n    s_mov_b64 exec, vcc\n    s_waitcnt lgkmcnt(0)\n    s_mov_b32 s24, s10\n    s_mov_b32 s25, s11" % (E * 4))
    stamp(6, 16, 0)
    e("    buffer_load_dwordx2 v[6:7], v3, s[24:27], s22 offen      ; dst")
    srd(8, E * 4)
    e("    s_mov_b32 s32, s6\n    s_mov_b32 s33, s7"); srd(32, E * 8)
    def se():
        e("""
    buffer_load_dwordx2 v[8:9], v3, s[8:11], s22 offen       ; src
    buffer_load_dwordx4 v[10:13], v4, s[32:35], s23 offen
""")
    if not OPT["dst1"]: se()
    e(f"""
    s_mov_b64 exec, -1
    v_mov_b64 v[20:21], 0
    v_mov_b64 v[22:23], 0
    s_cmp_lg_u32 s21, 0
    s_cbranch_scc1 K1_NOZ
    ds_write_b128 v4, v[20:23] offset:{K1_CNT}
K1_NOZ:
    s_waitcnt lgkmcnt(0)
    s_barrier
    s_mov_b64 exec, s[44:45]
""")
    if OPT["dst1"]: se()
    e("    s_mov_b64 exec, -1\n    v_mov_b32 v24, 1\n    v_lshlrev_b32 v5, 4, v1")
    srd(16, WSEND)
    e(f"""
    s_mul_i32 s38, s20, {RSTR}
    s_add_u32 s38, s38, {REC}
    s_add_u32 s39, s38, 10240
    s_mov_b64 exec, s[44:45]
    s_waitcnt vmcnt(2)
""")
    stamp(1, 16, 0)
    dbg(1)
    e(f"""
    v_lshlrev_b32 v14, 2, v6
    v_lshlrev_b32 v15, 2, v7
    v_and_b32 v14, 0x3fc, v14
    v_and_b32 v15, 0x3fc, v15
    ds_add_rtn_u32 v16, v14, v24 offset:{K1_CNT}
    ds_add_rtn_u32 v17, v15, v24 offset:{K1_CNT}
    v_lshrrev_b32 v6, 8, v6
    v_lshrrev_b32 v7, 8, v7
    v_lshlrev_b32 v6, 26, v6
    v_lshlrev_b32 v7, 26, v7
    s_mov_b64 exec, -1
    s_waitcnt lgkmcnt(0)
    s_barrier
""")
    stamp(2, 16, 0)
    e(f"""
    ds_read_b128 v[20:23], v5 offset:{K1_CNT}
    s_waitcnt lgkmcnt(0)
    v_add_u32 v25, v20, v21
    v_add_u32 v26, v25, v22
    v_add_u32 v27, v26, v23
    s_nop 1
    v_add_u32_dpp v28, v27, v27 row_shr:1 row_mask:0xf bank_mask:0xf bound_ctrl:1
""")
    for c in ("row_shr:2 row_mask:0xf", "row_shr:4 row_mask:0xf", "row_shr:8 row_mask:0xf", "row_bcast:15 row_mask:0xa", "row_bcast:31 row_mask:0xc"):
        e(f"    s_nop 1\n    v_add_u32_dpp v28, v28, v28 {c} bank_mask:0xf")
    e(f"""
    v_sub_u32 v28, v28, v27
    v_add_u32 v29, v28, v20
    v_add_u32 v30, v28, v25
    v_add_u32 v31, v28, v26
    ds_write_b128 v5, v[28:31] offset:{K1_ST}
    ds_read_b32 v18, v14 offset:{K1_ST}
    ds_read_b32 v19, v15 offset:{K1_ST}
    s_waitcnt vmcnt(1)
    v_lshl_or_b32 v8, v8, 3, v6
    v_lshl_or_b32 v9, v9, 3, v7
    s_mov_b64 exec, s[44:45]
    s_waitcnt lgkmcnt(0)
    v_add_u32 v18, v18, v16
    v_add_u32 v19, v19, v17
    v_mul_u32_u24 v18, 12, v18
    v_mul_u32_u24 v19, 12, v19
    ds_write_b32 v18, v8 offset:{K1_STG + 8}
    ds_write_b32 v19, v9 offset:{K1_STG + 8}
    v_add_u32 v18, {K1_STG}, v18
    v_add_u32 v19, {K1_STG}, v19
    s_waitcnt vmcnt(0)
    ds_write2_b32 v18, v10, v11 offset0:0 offset1:1
    ds_write2_b32 v19, v12, v13 offset0:0 offset1:1
    s_mov_b64 exec, -1
    s_cmp_lg_u32 s21, 9
    s_cbranch_scc1 K1_NOD
    v_lshl_or_b32 v32, v20, 16, v28
    v_lshl_or_b32 v33, v21, 16, v29
    v_lshl_or_b32 v34, v22, 16, v30
    v_lshl_or_b32 v35, v23, 16, v31
    s_lshl_b32 s36, s20, 4
    s_add_u32 s36, s36, {DESC}
    v_and_b32 v36, 7, v1
    v_lshrrev_b32 v37, 3, v1
    v_lshl_or_b32 v36, v36, 3, v37
    v_lshlrev_b32 v36, 12, v36
    buffer_store_dwordx4 v[32:35], v36, s[16:19], s36 offen
K1_NOD:
    s_waitcnt lgkmcnt(0)
    s_barrier
""")
    stamp(3, 16, 0)
    e(f"""
    ds_read_b128 v[20:23], v4 offset:{K1_STG}
    s_cmp_ge_u32 s21, 5
    s_cbranch_scc1 K1_C1
    ds_read_b128 v[24:27], v4 offset:{K1_STG + 10240}
    s_waitcnt lgkmcnt(0)
    buffer_store_dwordx4 v[24:27], v4, s[16:19], s39 offen
K1_C1:
    s_waitcnt lgkmcnt(0)
    buffer_store_dwordx4 v[20:23], v4, s[16:19], s38 offen
""")
    light1(16, 0)
    if OPT["stamps"]:
        stamp(4, 16, 0); e("    s_waitcnt vmcnt(0)"); stamp(5, 16, 0); stamp_out(16, 0)
    e(f"""
    s_endpgm
""")
    if not OPT["k1o"]:
        e("K1_GEMM:")
        gemm_issue()
    e("K1_DMAD:")
    srd(16, N * 256)
    e(f"""
    s_lshr_b32 s23, s21, 2
    s_and_b32 s24, s21, 3
    v_lshrrev_b32 v24, 2, v3                ; r'
    v_and_b32 v25, 3, v3                    ; c'
    v_and_b32 v26, 1, v2
    v_lshl_or_b32 v26, v26, 2, v24          ; h(k)
    v_lshl_add_u32 v27, v2, 3, v24          ; 8g + r'
    v_lshlrev_b32 v27, 8, v27
    v_lshl_or_b32 v27, v25, 3, v27
    s_lshl_b32 s27, s24, 1
    v_xor_b32 v26, s27, v26
    v_lshl_add_u32 v28, v26, 5, v27
    v_xor_b32 v29, 32, v28
    ; x fragments
    v_xor_b32 v30, v2, v3
    v_lshlrev_b32 v30, 4, v30
    v_lshl_or_b32 v30, v3, 8, v30
    s_lshl_b32 s27, s23, 12
    s_add_u32 s27, s27, {K1_XL}
    v_add_u32 v30, s27, v30
    v_xor_b32 v31, 64, v30
    v_xor_b32 v32, 0x80, v30
    v_xor_b32 v33, 0xc0, v30
    s_lshl_b32 s26, s23, 4
    s_add_u32 s25, s25, s26
    v_add_u32 v5, s25, v3
    v_lshlrev_b32 v5, 8, v5
    v_lshl_or_b32 v5, v2, 4, v5
    s_lshl_b32 s27, s24, 6
    v_add_u32 v5, s27, v5
    s_mov_b32 s28, {NL2E:#x}
    s_waitcnt vmcnt(0)
    s_barrier
""")
    stamp(3, 16, 0)
    for s in range(4):
        e(f"    ds_read_b128 {vr(8 + 4 * s, 4)}, v{30 + s}")
        for f in range(2):
            for u2 in range(2):
                e(f"    ds_read_b64_tr_b16 {vr(36 + 16 * f + 4 * s + 2 * u2, 2)}, v{28 + f} offset:{s * 8192 + u2 * 1024}")
    for s in range(4):
        for f in range(2):
            left = 20 - (5 * s + 3 + 2 * f)
            e(f"    s_waitcnt lgkmcnt({min(left, 15)})")
            c = "0" if s == 0 else vr(68 + 4 * f, 4)
            e(f"    v_mfma_f32_16x16x32_bf16 {vr(68 + 4 * f, 4)}, {vr(36 + 16 * f + 4 * s, 4)}, {vr(8 + 4 * s, 4)}, {c}")
    e("    s_nop 5")
    for f in range(2):
        for h in range(2):
            r = 68 + 4 * f + 2 * h
            e(f"    v_pk_mul_f32 {vr(r, 2)}, {vr(r, 2)}, s[28:29] op_sel_hi:[1,0]")
        for h in range(2):
            r = 68 + 4 * f + 2 * h
            e(f"    v_cvt_pk_bf16_f32 v{76 + 2 * f + h}, v{r}, v{r + 1}")
    e(f"    buffer_store_dwordx4 v[76:79], v5, s[16:19], 0 offen")
    light1(16, 0)
    if OPT["stamps"]:
        srd(16, WSEND); stamp(4, 16, 0); e("    s_waitcnt vmcnt(0)"); stamp(5, 16, 0); stamp_out(16, 0)
    e(f"""
    s_endpgm
K1_JOBS:
    s_sub_u32 s23, s20, 209
    s_mul_i32 s23, s23, 12
    s_add_u32 s23, s23, s21
    s_waitcnt lgkmcnt(0)
""")
    srd(16, WSEND)
    e(f"""
    s_cmp_ge_u32 s23, 96
    s_cbranch_scc1 K1_JOB2
    s_lshr_b32 s24, s23, 5
    s_bfe_u32 s25, s23, 0x30002             ; f
    s_and_b32 s26, s23, 3                   ; s
    s_cmp_eq_u32 s24, 0
    s_cselect_b32 s28, s12, s14
    s_cselect_b32 s29, s13, s15
    s_mov_b32 s30, {256 * 256}
    s_mov_b32 s31, 0x20000
    ; column
    s_lshl_b32 s33, s25, 4                  ; 16 f
    v_add_u32 v4, s33, v3
    v_lshlrev_b32 v4, 1, v4
    s_cmp_eq_u32 s24, 2
    s_cselect_b32 s32, 10, 11
    s_movk_i32 s33, 1024
    s_cmovk_i32 s33, 4096
    s_cselect_b32 s34, {NSC:#x}, 1.0
    v_lshlrev_b32 v5, s32, v2
    v_add_u32 v4, v4, v5
    s_lshl_b32 s40, s26, 13
    s_cmp_eq_u32 s24, 1
    s_cselect_b32 s36, 0, 0x8000
    s_add_u32 s40, s40, s36
    s_add_u32 s41, s40, 512
    s_add_u32 s42, s40, s33
    s_add_u32 s43, s42, 512
""")
    for m in range(8):
        e(f"    buffer_load_ushort v{8 + m}, v4, s[28:31], s{40 + m // 2} offen offset:{(m & 1) * 256}")
    e(f"""
    s_lshl_b32 s37, s23, 10
    s_add_u32 s37, s37, {W2F}
    v_lshlrev_b32 v6, 4, v1
    s_mov_b32 s38, 0x07060302
    s_waitcnt vmcnt(0)
""")
    for m in range(8):
        e(f"    v_lshlrev_b32 v{8 + m}, 16, v{8 + m}\n    v_mul_f32 v{8 + m}, s34, v{8 + m}")
    for m in range(4):
        e(f"    v_perm_b32 v{16 + m}, v{9 + 2 * m}, v{8 + 2 * m}, s38")
    e(f"""
    buffer_store_dwordx4 v[16:19], v6, s[16:19], s37 offen
    s_endpgm
K1_JOB2:
    s_cmp_ge_u32 s23, 98
    s_cbranch_scc1 K1_JOB3
    s_sub_u32 s24, s23, 96                  ; c
    s_mov_b32 s14, {260 * 256}
    s_mov_b32 s15, 0x20000
    v_and_b32 v2, 31, v1
    v_lshrrev_b32 v3, 5, v1
    v_lshl_or_b32 v2, v2, 1, v3             ; p & 63
    v_and_b32 v4, 0x23, v2
    v_bfe_u32 v5, v2, 2, 1
    v_lshl_or_b32 v4, v5, 4, v4
    v_bfe_u32 v5, v2, 3, 2
    v_lshl_or_b32 v4, v5, 2, v4             ; feature & 63
    v_lshlrev_b32 v4, 1, v4
    s_lshl_b32 s25, s24, 7
    s_add_u32 s25, s25, {256 * 256}
""")
    for d in range(4):
        e(f"    buffer_load_ushort v{8 + d}, v4, s[12:15], s25 offen offset:{d * 256}")
    e(f"""
    s_lshl_b32 s37, s24, 10
    s_add_u32 s37, s37, {W3F}
    v_lshlrev_b32 v6, 4, v1
    s_mov_b32 s34, {NL2E:#x}
    s_waitcnt vmcnt(0)
""")
    for d in range(4):
        e(f"    v_lshlrev_b32 v{8 + d}, 16, v{8 + d}\n    v_mul_f32 v{8 + d}, s34, v{8 + d}")
    e("""
    v_cvt_pk_bf16_f32 v16, v8, v9
    v_cvt_pk_bf16_f32 v17, v10, v11
    v_lshlrev_b32 v12, 16, v16
    v_and_b32 v13, 0xffff0000, v16
    v_lshlrev_b32 v14, 16, v17
    v_and_b32 v15, 0xffff0000, v17
    v_sub_f32 v8, v8, v12
    v_sub_f32 v9, v9, v13
    v_sub_f32 v10, v10, v14
    v_sub_f32 v11, v11, v15
    v_cvt_pk_bf16_f32 v18, v8, v9
    v_cvt_pk_bf16_f32 v19, v10, v11
    buffer_store_dwordx4 v[16:19], v6, s[16:19], s37 offen
    s_endpgm
K1_JOB3:
    s_cmp_ge_u32 s20, 224
    s_cbranch_scc1 K1_SPARE
    s_cmp_lg_u32 s23, 98
    s_cbranch_scc1 K1_END
    v_mov_b32 v8, 0
    v_lshlrev_b32 v6, 2, v1
""")
    e(f"""
    s_mov_b32 s37, {PT + N * 256}
    buffer_store_dword v8, v6, s[16:19], s37 offen
K1_END:
    s_endpgm
K1_SPARE:
""")
    if OPT["cpf"]:
        e(f"""
    s_getpc_b64 s[24:25]
K1_PC:
    s_bfe_u32 s22, s20, 0x20003
    s_mul_i32 s22, s22, 12
    s_add_u32 s22, s22, s21
    s_mul_i32 s22, s22, {OPT["cpf"] * 64}
    v_lshl_add_u32 v2, v1, 6, s22
    v_min_u32 v2, K2_LAST - mpnn_edge_kernel, v2
    v_add_u32 v2, mpnn_edge_kernel - K1_PC, v2
    v_mov_b32 v3, s25
    v_add_co_u32 v2, vcc, s24, v2
    s_nop 1
    v_addc_co_u32 v3, vcc, 0, v3, vcc
    s_bfm_b64 exec, {OPT["cpf"]}, 0
    global_load_dword v4, v[2:3], off
""")
    e("    s_endpgm")

RS = 1040
RB, RO = 288, 272
CAP = 2048
MISC = 0
ZR, CNT, MORE, BAD, FL = 0, 768, 1024, 1028, 1088
SO = 2048
EA = SO + CAP * 4
W3L = EA + CAP * 8
QU = W3L + 2048
AG = QU + 41 * RS
XL = (AG + 2 * 16384 + 11 * 1024 + 255) // 256 * 256
AGB = XL + 12288
K2_LDS = AGB + 48 * RB
PADV = N * 8
S16MAX = (CAP // 4 - 8) * 16
NT = 16
NK = 6
vSO, vP, vD, vE, vAe, vBw, vQ, vNp, vAc, vI = 8, (16, 24), (32, 92), 48, 64, 68, 72, 126, (80, 82), 84
vaS, vaE, vAct, vaN = (86, 87), 88, 89, (90, 91)
vU, vM, vDn = 108, (120 if OPT['unc'] == 2 else 76), (76, 78)
if OPT['smf']: vQ, vM, vAs, vIx = 108, 124, 72, 84
vR, vN4, vTa, vStr, vRS, vW3a = 60, tuple(range(19, 25)), 56, 57, 124, 125
vC4, vQ16, vE16, vS16 = 120, 121, 122, 123
vCA, vCW, vCN, vFR = 120, 121, 122, 124
sM = [40 + 2 * k for k in range(NK)]
sFM, sEV = (28, 30), (32, 33)
sFirst, sMoreV, sMM, sGuard, sScale, sOne = 56, 57, 58, 68, 70, 52
M9 = "0x01ff01ff"
KCOP = "s[26:27], s[26:27] op_sel_hi:[1,0,0] clamp"
PRIO_0, PRIO_AT = {2: (2, {NT - 4: 1, NT - 1: 0}), 1: (2, {NT - 2: 1, NT - 1: 0}), 3: (3, {NT - 3: 2, NT - 2: 1, NT - 1: 0}), 4: (2, {NT - 6: 1, NT - 2: 0}),
                   5: (3, {NT - 7: 2, NT - 3: 1, NT - 1: 0}), 6: (2, {NT - 3: 1, NT - 1: 0}), 7: (2, {NT - 6: 1, NT - 1: 0}), 8: (3, {NT - 8: 2, NT - 4: 1, NT - 1: 0}), 9: (3, {NT - 9: 2, NT - 3: 1, NT - 1: 0}), 10: (3, {NT - 6: 2, NT - 3: 1, NT - 1: 0})}[OPT["ps"]]

def prio(n): e(f"    s_setprio {n}")

def divide(y, last=False):
    t = vE + 8 * y + 4
    e(f"""
    v_rcp_f32 v{t}, v{vDn[y]}
    v_rcp_f32 v{t + 1}, v{vDn[y] + 1}
    {f"v_pk_add_f32 {vr(vM, 2)}, {vr(vM, 2)}, {vr(vDn[y], 2)}" if last or not OPT["nrs"] else f"v_add_u32 v{vaN[y]}, {RS}, v{vaN[y]}"}
    v_pk_mul_f32 {vr(vAc[y], 2)}, {vr(vAc[y], 2)}, {vr(t, 2)}
    v_pk_fma_f32 {vr(vM, 2)}, {vr(vAc[y], 2)}, {vr(vAc[y], 2)}, {vr(vM, 2)}
""")

def flush_adds(y, back=0):
    t = vE + 8 * y
    e(f"""
    v_cvt_f64_f32 {vr(t, 2)}, v{vAc[y]}
    v_cvt_f64_f32 {vr(t + 2, 2)}, v{vAc[y] + 1}
    ds_add_f64 v{vaN[y]}, {vr(t, 2)} offset:{AG - QU - back}
    ds_add_f64 v{vaN[y]}, {vr(t + 2, 2)} offset:{AG - QU + 8 - back}
""")

def exec_bit(y, t):
    e(f"    s_bfe_i32 exec_lo, s{sFM[y]}, {0x10000 | t:#x}\n    s_bfe_i32 exec_hi, s{sFM[y] + 1}, {0x10000 | t:#x}")

def event_block(t, y, v):
    e(f"K2_{v}EV{t}_{y}:")
    exec_bit(y, t)
    e(f"    s_cbranch_execz K2_{v}EQ{t}_{y}")
    if OPT["unc"] == 2 and not v:
        divide(y)
        if not OPT["nrs"]: e(f"    v_mov_b64 {vr(vDn[y], 2)}, {sr(sOne, 2)}")
    early = OPT["unc"] == 2 and OPT["nrs"] and not v
    flush_adds(y, RS if early else 0)
    if not early: e(f"    v_add_u32 v{vaN[y]}, {RS}, v{vaN[y]}")
    e(f"""
    v_mov_b64 {vr(vAc[y], 2)}, 0
K2_{v}EQ{t}_{y}:
""")
    if t + 2 < NT:
        exec_bit(y, t + 1)
        q_reads(y, RS)
    e(f"    s_mov_b64 exec, -1\n    s_branch K2_{v}EB{t}_{y}")

def gather_lines(dst, adr):
    out = []
    for q in range(4):
        for y in range(2):
            a = adr + 4 * y + q
            pre = f"    v_min_u32 v{a}, {PADV}, v{a}\n    v_and_b32 v{a}, -8, v{a}\n" if OPT["safe"] else ""
            out.append(pre + f"    buffer_load_dword v{dst + 2 * q + y}, v{a}, s[8:11], 0 offen")
    return out
def gathers(dst, adr):
    for l in gather_lines(dst, adr): e(l)

def mfma4(D, P, q): return f"    v_mfma_f32_4x4x4_16b_bf16 {vr(D + 4 * q, 4)}, {vr(vI, 2)}, {vr(P + 2 * q, 2)}, {vr(vQ, 4)}"
def mfmaq(D): return f"    v_mfma_f32_32x32x16_bf16 {vr(D, 16)}, {vr(vAe, 4)}, {vr(vBw, 4)}, {vr(vQ, 16)}"
def smfmac(D, P): return f"    v_smfmac_f32_32x32x32_bf16 {vr(D, 16)}, {vr(vAs, 4)}, {vr(P, 8)}, v{vIx}"
def q_reads(y, off):
    for c in range(4 if OPT['smf'] else 1): e(f"    ds_read_b64 {vr(vQ + 4 * c + 2 * y, 2)}, v{vaN[y]} offset:{off}")
def mfma32(D): return f"    v_mfma_f32_32x32x16_bf16 {vr(D, 16)}, {vr(vAe, 4)}, {vr(vBw, 4)}, {vr(D, 16)}"

def core_lines(D, guarded):
    Ee = vE
    def p(r): return vr(r, 2)
    ex = [f"    v_exp_f32 v{Ee + k}, v{D + k}" for k in range(16)]
    if not guarded and OPT["unc"] == 2:
        rest = []
        for q in range(4):
            Do = vDn if (q % 2 == 0 or not OPT["pp"]) else (122, 124)
            Dw = vDn if (q % 2 == 1 or not OPT["pp"]) else (122, 124)
            n1 = [f"    v_pk_fma_f32 {p(vAc[y])}, {p(vAc[y])}, {p(Ee + 4 * q + 2 * y)}, {p(vAc[y])}" for y in range(2)]
            n2 = [f"    v_pk_fma_f32 {p(vAc[y])}, {p(D + 4 * q + 2 * y)}, {p(Do[y])}, {p(vAc[y])}" for y in range(2)]
            dd = [f"    v_pk_fma_f32 {p(Dw[y])}, {p(Do[y])}, {p(Ee + 4 * q + 2 * y)}, {p(Do[y])}" for y in range(2)]
            rest += (n1 + dd + n2) if OPT["pp"] else (n1 + n2 + dd)
        return ex, [], rest
    if guarded:
        sc = [f"    v_pk_fma_f32 {p(Ee + 2 * m)}, {p(Ee + 2 * m)}, {KCOP}" for m in range(8)]
        seq = [
            lambda o: f"v_pk_mul_f32 {p(D + o)}, {p(D + o)}, {p(Ee + o + 4)}",
            lambda o: f"v_pk_mul_f32 {p(D + o + 8)}, {p(D + o + 8)}, {p(Ee + o + 12)}",
            lambda o: f"v_pk_fma_f32 {p(D + o)}, {p(D + o + 4)}, {p(Ee + o)}, {p(D + o)}",
            lambda o: f"v_pk_fma_f32 {p(D + o + 8)}, {p(D + o + 12)}, {p(Ee + o + 8)}, {p(D + o + 8)}",
            lambda o: f"v_pk_mul_f32 {p(Ee + o)}, {p(Ee + o)}, {p(Ee + o + 4)}",
            lambda o: f"v_pk_mul_f32 {p(Ee + o + 8)}, {p(Ee + o + 8)}, {p(Ee + o + 12)}",
        ]
    else:
        sc = [f"    v_pk_add_f32 {p(Ee + o + j)}, {p(Ee + o + j)}, 1.0 op_sel_hi:[1,0]" for j in (4, 12) for o in (0, 2)]
        seq = [
            lambda o: f"v_pk_fma_f32 {p(D + o + 4)}, {p(D + o + 4)}, {p(Ee + o)}, {p(D + o + 4)}",
            lambda o: f"v_pk_fma_f32 {p(D + o + 12)}, {p(D + o + 12)}, {p(Ee + o + 8)}, {p(D + o + 12)}",
            lambda o: f"v_pk_fma_f32 {p(Ee + o)}, {p(Ee + o)}, {p(Ee + o + 4)}, {p(Ee + o + 4)}",
            lambda o: f"v_pk_fma_f32 {p(Ee + o + 8)}, {p(Ee + o + 8)}, {p(Ee + o + 12)}, {p(Ee + o + 12)}",
            lambda o: f"v_pk_fma_f32 {p(D + o)}, {p(D + o)}, {p(Ee + o + 4)}, {p(D + o + 4)}",
            lambda o: f"v_pk_fma_f32 {p(D + o + 8)}, {p(D + o + 8)}, {p(Ee + o + 12)}, {p(D + o + 12)}",
        ]
    seq += [
        lambda o: f"v_pk_mul_f32 {p(Ee + o + 4)}, {p(Ee + o)}, {p(Ee + o + 8)}",
        lambda o: f"v_pk_mul_f32 {p(D + o)}, {p(D + o)}, {p(Ee + o + 8)}",
        lambda o: f"v_rcp_f32 v{Ee + o + 4}, v{Ee + o + 4}",
        lambda o: f"v_rcp_f32 v{Ee + o + 5}, v{Ee + o + 5}",
        lambda o: f"v_pk_fma_f32 {p(D + o)}, {p(D + o + 8)}, {p(Ee + o)}, {p(D + o)}",
        lambda o: f"v_pk_fma_f32 {p(vAc[o // 2])}, {p(D + o)}, {p(Ee + o + 4)}, {p(vAc[o // 2])}",
    ]
    rest = ["    " + fn(o) for fn in seq for o in (0, 2)]
    if not guarded:
        rest.insert(16, f"    v_pk_fma_f32 {p(vM)}, {p(Ee + 4)}, {p(Ee + 6)}, {p(vM)}")
    return ex, sc, rest

def tile(t, v):
    a, r = t % 2, NT - t
    ex, sc, rest = core_lines(vD[a], v == 'G' or not OPT['unc'])
    dep = OPT['dep']
    Dn, Pn = vD[1 - a], (vP[1 - a] if dep == 2 else vP[0])
    e(f"K2_{v}T{t}:")
    if t in PRIO_AT: prio(PRIO_AT[t])
    pk = sc + rest
    if r >= 2:
        mp = OPT["mpos"]
        k0 = {5: 0, 6: 4}.get(mp, 2)
        seq = ex[:k0] + [f"    s_waitcnt vmcnt({8 if r >= 3 and dep == 2 else 0}) lgkmcnt(0)"]
        if OPT["smf"]:
            k1 = k0 + OPT["smf"] + 2
            seq += [mfmaq(Dn)] + ex[k0:k1] + [smfmac(Dn, Pn)]
            k = k1
        else:
            for q in range(4): seq += [mfma4(Dn, Pn, q), ex[k0 + q]]
            seq += ex[k0 + 4:k0 + 7] + [mfma32(Dn)]
            k = k0 + 7
        mem = []
        if r >= dep + 2: mem += gather_lines(Pn, vSO)
        if r >= dep + 3: mem += [f"    ds_read_b128 {vr(vSO + 4 * y, 4)}, v{vaS[y]} offset:{16 * (t + dep + 2)}" for y in range(2)]
        if r >= 3: mem += [f"    ds_read2_b64 {vr(vAe, 4)}, v{vaE} offset0:{4 * (t + 2)} offset1:{4 * (t + 2)}"]
        if mp == 7:
            g = [l for l in mem if "buffer_load" in l]; o = [l for l in mem if "buffer_load" not in l]
            i = seq.index(mfma32(Dn)) - 2
            seq = seq[:i] + g + seq[i:] + ex[k:k + 5] + o + ex[k + 5:] + pk
        elif mp == 8: seq += ex[k:k + 2] + mem + ex[k + 2:] + pk
        elif mp in (0, 5): seq += ex[k:k + 5] + mem + ex[k + 5:] + pk
        elif mp in (1, 6): seq += ex[k:] + mem + pk
        elif mp == 2: seq += ex[k:] + pk[:12] + mem + pk[12:]
        elif mp == 3: seq += ex[k:] + pk + mem
        elif mp == 4: seq += ex[k:k + 5] + mem[:4] + ex[k + 5:] + pk[:6] + mem[4:8] + pk[6:12] + mem[8:] + pk[12:]
    else:
        seq = ex + pk
    for l in seq: e(l)
    if not v: stamp(100 + t - 5, 4, 1)
    if r >= 2:
        for y in range(2):
            e(f"    s_bitcmp1_b32 s{sEV[y]}, {t}\n    s_cbranch_scc1 K2_{v}EV{t}_{y}\nK2_{v}EB{t}_{y}:")

def x_addr(xa):
    e(f"""
    v_xor_b32 v{xa}, v5, v6
    v_lshlrev_b32 v{xa}, 4, v{xa}
    v_lshl_or_b32 v{xa}, v6, 8, v{xa}
    v_add_u32 v{xa}, {XL}, v{xa}
    v_xor_b32 v{xa + 1}, 64, v{xa}
    v_xor_b32 v{xa + 2}, 0x80, v{xa}
    v_xor_b32 v{xa + 3}, 0xc0, v{xa}
""")
def x_reads(xa, xb):
    for s in range(4):
        for T in range(3):
            e(f"    ds_read_b128 {vr(xb(T, s), 4)}, v{xa + s} offset:{4096 * T}")
def node_mfma(acc, W, xb):
    for s in range(4):
        for T in range(3):
            e(f"    s_waitcnt lgkmcnt({11 - 3 * s - T})")
            c = "0" if s == 0 else vr(acc + 4 * T, 4)
            e(f"    v_mfma_f32_16x16x32_bf16 {vr(acc + 4 * T, 4)}, {vr(W + 4 * s, 4)}, {vr(xb(T, s), 4)}, {c}")
def per_record(lab, fn):
    for k in range(NK):
        e(f"    s_mov_b64 exec, {sr(sM[k], 2)}")
        if k >= 2: e(f"    s_cbranch_execz {lab}")
        fn(k)
    e(f"{lab}:")

def conv_addr(t):
    e(f"""
    v_cvt_f32_u32 v{t}, v{vNp}
    s_lshl_b32 s36, s21, 2
    s_sub_u32 s36, s36, 24
    v_mul_f32 v{t}, 0xbe800000, v{t}
    s_mul_i32 s37, s36, {RS}
    s_add_u32 s37, s37, {QU}
    v_add_u32 v{vCA}, s37, v7
    s_mul_i32 s37, s36, {RB}
    s_add_u32 s37, s37, {AGB}
    v_lshl_add_u32 v{vCW}, v1, 2, s37
""")
    for k in range(4):
        e(f"    v_readlane_b32 s{60 + 2 * k}, v{t}, s36")
        if k < 3: e("    s_add_u32 s36, s36, 1")

def kernel2():
    e(f"""
.text
.globl mpnn_edge_kernel
.p2align 8
.type mpnn_edge_kernel,@function
mpnn_edge_kernel:
    s_load_dwordx2 s[4:5], s[0:1], 64       ; ws
    s_load_dwordx2 s[12:13], s[0:1], 0      ; x
    s_load_dwordx2 s[16:17], s[0:1], 48     ; out
    s_cmp_ge_u32 s2, 256
    s_cbranch_scc1 K2_END
    v_lshrrev_b32 v2, 6, v0
    s_and_b32 s34, s2, 63
    v_readfirstlane_b32 s21, v2
    s_lshl_b32 s34, s34, 10
    s_lshr_b32 s3, s2, 6
    s_add_u32 s34, s34, s3
    s_lshl2_add_u32 s34, s34, {DESC}
    s_mov_b32 s6, {WSEND:#x}
    s_mov_b32 s7, 0x20000
    v_and_b32 v4, -4, v0
    v_lshlrev_b32 v4, 2, v4
""")
    stamp(0, 4, 1); light0()
    if not OPT["xl"]: e("    v_lshrrev_b32 v8, 4, v0\n    v_xor_b32 v9, v8, v0\n    v_and_b32 v9, 15, v9")
    e(f"""
    s_waitcnt lgkmcnt(0)
    buffer_load_dword v2, v4, s[4:7], s34 offen
    s_and_b32 s20, s2, 7
    s_bfe_u32 s35, s2, 0x30003
    s_lshl3_add_u32 s20, s20, s35
    s_lshl2_add_u32 s20, s20, s3
""")
    if not OPT["xl"]:
        e(f"""
    s_cmp_ge_u32 s21, 11
    s_cbranch_scc1 K2_NOX
    s_lshl_b32 s35, s20, 8
    v_lshl_add_u32 v8, v8, 16, s35
    s_lshl_b32 s36, s21, 10
    s_add_u32 s36, s36, {XL}
    s_mov_b32 m0, s36
    s_mov_b32 s14, {N * 256:#x}
    s_mov_b32 s15, 0x20000
    v_lshl_add_u32 v8, v9, 4, v8
    buffer_load_dwordx4 v8, s[12:15], 0 offen lds
""")
    if OPT["rpf"]:
        sh = 7 if OPT["rpf"] == 1 else 6
        lp = 11 - sh
        e(f"""
    s_branch K2_NOX2
K2_NOX:
    v_subrev_u32 v8, {11 * 64}, v0
    v_lshrrev_b32 v9, {lp}, v8
    v_and_b32 v8, {(1 << lp) - 1}, v8
    s_lshr_b32 s35, s2, 3
    v_lshl_add_u32 v9, s35, 3, v9
    v_mul_u32_u24 v9, {RSTR}, v9
    v_lshl_add_u32 v8, v8, {sh}, v9
    s_and_b32 s35, s2, 7
    s_mul_i32 s35, s35, 1875
    s_and_b32 s35, s35, -128
    s_add_u32 s35, s35, {REC}
    s_cmp_lt_u32 s21, {11 + (2 if OPT["rpf"] == 1 else 4)}
    s_cselect_b64 exec, -1, 1
    buffer_load_dword v119, v8, s[4:7], s35 offen
    s_mov_b64 exec, -1
K2_NOX2:
""")
    else: e("K2_NOX:")
    e(f"""
    v_lshrrev_b32 v3, 2, v0
    v_mul_u32_u24 v3, {RSTR}, v3
    v_and_b32 v4, 3, v0
    s_mov_b32 s24, 0
    s_mov_b32 s25, {4 * NK}
    s_mov_b32 s{sFirst}, 1
    v_lshlrev_b32 v56, 4, v0
    v_mov_b64 v[8:9], 0
    v_mov_b64 v[10:11], 0
    s_cmp_ge_u32 s21, 2
    s_cbranch_scc1 K2_NOZ0
    ds_write_b128 v56, v[8:11] offset:{MISC}
K2_NOZ0:
""")
    def ag16(lab):
        e(f"""
    v_add_u32 v57, {AG}, v56
    ds_write_b128 v57, v[8:11]
    ds_write_b128 v57, v[8:11] offset:16384
    s_cmp_ge_u32 s21, 11
    s_cbranch_scc1 {lab}
    ds_write_b128 v57, v[8:11] offset:32768
""")
    if OPT["agz"] == 0:
        ag16("K2_NOZ3")
        e("K2_NOZ3:\n    s_waitcnt vmcnt(0)" if OPT["xl"] else "K2_NOZ3:\n    s_waitcnt vmcnt(1)" if OPT["rpf"] else "    s_waitcnt vmcnt(1)\n    s_branch K2_ROUND\nK2_NOZ3:\n    s_waitcnt vmcnt(0)")
    else:
        if OPT["agz"] == 1:
            e(f"    s_cmp_ge_u32 s21, 8\n    s_cbranch_scc1 K2_NOZ3\n    v_add_u32 v57, {AG}, v56")
            for i in range(5): e(f"    ds_write_b128 v57, v[8:11] offset:{8192 * i}")
            e(f"    s_cmp_ge_u32 s21, 3\n    s_cbranch_scc1 K2_NOZ3\n    ds_write_b128 v57, v[8:11] offset:{8192 * 5}\nK2_NOZ3:")
        e("    s_waitcnt vmcnt(0)" if OPT["xl"] else "    s_cmp_lt_u32 s21, 11\n    s_cbranch_scc1 K2_WD1\n    s_waitcnt vmcnt(0)\nK2_WD1:\n    s_waitcnt vmcnt(1)")
    e(f"""
K2_ROUND:
""")
    prio(2)
    stamp(1, 4, 1)
    e(f"""
    v_lshrrev_b32 v16, 16, v2               ; count
    v_and_b32 v17, 0xffff, v2               ; start
    v_subrev_u32 v16, s24, v16
    v_add3_u32 v17, v17, s24, v4
    v_min_i32 v18, s25, v16
    v_mad_u32_u24 v17, v17, 12, v3
    v_sub_u32 v18, v18, v4
    s_mov_b32 s34, {REC}
""")
    for k in range(4): e(f"    v_cmp_lt_i32 {sr(sM[k], 2)}, {4 * k}, v18")
    def ld(k):
        e(f"    buffer_load_dwordx3 {vr(vR + 4 * k, 3)}, v17, s[4:7], s34 offen offset:{48 * k}")
        if 4 <= k + 1 < NK: e(f"    v_cmp_lt_i32 {sr(sM[k + 1], 2)}, {4 * (k + 1)}, v18")
    per_record("K2_RLD", ld)
    e("    s_mov_b64 exec, -1")
    stamp(2, 4, 1)
    prio(0)
    e(f"""
    v_and_b32 v1, 63, v0
    v_cmp_lt_i32 {sr(sMM, 2)}, s25, v16
    v_lshlrev_b32 v7, 4, v1                 ; lane*16
    s_mov_b32 s75, 0
""")
    if not OPT["bdp"]: e("    s_waitcnt lgkmcnt(3)\n    s_barrier")
    if OPT["bdp"] == 4: e("    s_cmp_lt_u32 s21, 8\n    s_cbranch_scc1 K2_NOBA\n    s_barrier\nK2_NOBA:")
    if OPT["pfx"]:
        e("    s_cmp_lt_u32 s21, 8\n    s_cbranch_scc1 K2_NOW2")
    else:
        e(f"""
    ds_write_b128 v56, v[8:11] offset:{EA}
    s_cmp_ge_u32 s21, 8
    s_cbranch_scc1 K2_NOSO
    v_mov_b32 v12, {PADV}
    v_mov_b32 v13, v12
    v_mov_b32 v14, v12
    v_mov_b32 v15, v12
    ds_write_b128 v56, v[12:15] offset:{SO}
    {"s_mov_b32 s75, s%d" % sFirst if OPT["qo"] else "s_branch K2_NOW2"}
""")
    e(f"""
K2_NOSO:
    {"" if OPT["qo"] else "s_mov_b32 s75, s%d                ; 1: this wave computes q in this round" % sFirst}
""")
    def w2_loads():
        e(f"    s_lshl_b32 s74, s21, 12\n    s_add_u32 s74, s74, {W2F - (0 if OPT['qo'] else 8 * 4096)}")
        for s in range(4):
            e(f"    buffer_load_dwordx4 {vr(92 + 4 * s, 4)}, v7, s[4:7], s74 offen offset:{1024 * s}")
    if OPT["bdp"] not in (2, 4):
        e("    s_cmp_eq_u32 s75, 0\n    s_cbranch_scc1 K2_NOW2")
        if OPT["bdp"] == 3:
            e("    s_barrier")
            if OPT["wp"]: prio(OPT["wp"])
        w2_loads()
    e(f"""
K2_NOW2:
    s_cmp_eq_u32 s{sFirst}, 0
    s_cbranch_scc1 K2_SETD
""")
    if OPT["agz"] == 2:
        ag16("K2_NOZ3"); e("K2_NOZ3:")
    e(f"""
    v_lshrrev_b32 v5, 4, v1                 ; g
    v_and_b32 v6, 15, v1                    ; n
    v_mov_b32 v{vNp}, 0
    s_cmp_lt_u32 s20, 16
    s_cselect_b32 s22, 40, 39
    s_bfm_b64 s[78:79], s22, 0
    s_and_b32 s23, s21, 1
""")
    if OPT['qo']: e('    s_xor_b32 s76, s21, 8\n    s_lshr_b32 s76, s76, 1')
    else: e('    s_lshr_b32 s76, s21, 1')
    e(f"""
    s_mov_b32 s26, {KC:#x}
    s_mov_b32 s{sGuard}, 0
    s_mov_b32 s{sOne}, {f2u(2.0 ** -64):#x}
    s_mov_b32 s{sOne + 1}, s{sOne}
    s_mov_b32 s{sScale}, {f2u(2.0 ** 31 * math.log(2.0)) if OPT['unc'] else f2u(1.0):#x}
    s_mov_b32 s72, {NL2E:#x}
    s_lshl_b32 s39, s23, 7
    s_add_u32 s8, s4, s39
    s_addc_u32 s9, s5, 0
    s_or_b32 s9, s9, 0x80000000
    s_mov_b32 s10, 0x10000
    s_mov_b32 s11, 0x00c00000
""")
    srd(16, N * 256)
    e(f"""
K2_SETD:
    v_mov_b32 v59, 4
    v_lshlrev_b32 v58, 2, v1
    v_mov_b32 v{vRS}, {RS}
    v_and_b32 v{vaN[1]}, 31, v1
    s_lshl_b32 s36, s23, 9
    s_add_u32 s37, s36, {QU}
    v_lshl_add_u32 v{vaN[0]}, v{vaN[1]}, 4, s37
    v_lshl_add_u32 v{vW3a}, s36, 1, v7
    s_movk_i32 s36, 0x3f80
    s_mov_b32 s37, 0
    v_and_b32 v16, 0x30, v7
    v_lshlrev_b64 {vr(vI, 2)}, v16, s[36:37]
    v_mov_b32 v{vS16}, 0
    v_mov_b64 {vr(vaE, 2)}, 0
    v_mov_b32 v{vStr}, 0
    s_mov_b64 exec, s[78:79]
    v_mov_b32 v{vS16}, 16
    s_mov_b32 exec_lo, 0x55555555
    s_mov_b32 exec_hi, 0xaaaaaaaa
    v_and_b32 v{vaE}, 0x18, v1
    v_mov_b32 v{vAct}, 1
    v_bfe_u32 v{vStr}, v1, 1, 2
""")
    if not OPT["bdp"]: e(f"    s_mov_b64 exec, {sr(sMM, 2)}\n    s_cbranch_execnz K2_MORE\nK2_MOREB:")
    e(f"""
    s_cmp_eq_u32 s75, 0
    s_cbranch_scc1 K2_W0
    s_mov_b64 exec, -1
""")
    x_addr(108)
    e(f"""
    s_bfe_u32 s36, s21, 0x20001
    s_lshl3_add_u32 s36, s36, s23
    s_lshl_b32 s36, s36, 5
    s_add_u32 s36, s36, {QU}
    v_mul_u32_u24 v{vTa}, {RS}, v6
    v_lshl_add_u32 v{vTa}, v5, 6, v{vTa}
    v_add_u32 v{vTa}, s36, v{vTa}
    s_cmp_eq_u32 s75, 0
""")
    if OPT["bdp"]:
        e("K2_W0:")
        prio(2)
        stamp(506, 4, 1)
        if OPT["bdp"] == 3: e("    s_cbranch_scc0 K2_NOBD")
        if OPT["bdp"] == 4: e("    s_cmp_ge_u32 s21, 8\n    s_cbranch_scc1 K2_NOBD")
        e(f"    s_waitcnt lgkmcnt({(5, 8, 5)[OPT['agz']] - 2 * OPT['pfx']})\n    s_barrier\nK2_NOBD:")
        stamp(507, 4, 1)
        e(f"""
    s_mov_b64 exec, {sr(sMM, 2)}
    s_cbranch_execnz K2_MORE
K2_MOREB:
    {"s_cmp_eq_u32 s75, 0" if OPT["bdp"] == 4 else ""}
    s_cbranch_scc1 K2_W1
""")
        if OPT["bdp"] in (2, 4):
            e("    s_mov_b64 exec, -1")
            w2_loads()
        e(f"""
    s_waitcnt vmcnt(4)
    s_branch K2_RECS
K2_W1:
""")
        if OPT["xl"]:
            e(f"""
    s_cmp_eq_u32 s{sFirst}, 0
    s_cbranch_scc1 K2_W2
    s_mov_b64 exec, -1
    v_bfe_u32 v12, v0, 4, 5
    v_xor_b32 v13, v12, v0
    v_and_b32 v13, 15, v13
    s_lshl_b32 s35, s20, 8
    v_lshl_add_u32 v12, v12, 16, s35
    s_and_b32 s37, s21, 7
    s_lshl_b32 s36, s37, 10
    s_add_u32 s36, s36, {XL}
    s_mov_b32 m0, s36
    s_mov_b32 s14, {N * 256:#x}
    s_mov_b32 s15, 0x20000
    v_lshl_add_u32 v12, v13, 4, v12
    buffer_load_dwordx4 v12, s[12:15], 0 offen lds
    s_add_u32 s36, s36, 8192
    s_mov_b32 m0, s36
    v_add_u32 v12, 0x200000, v12
    s_cmp_lt_u32 s37, 3
    s_cbranch_scc1 K2_X2
    s_waitcnt vmcnt(1)
    s_branch K2_RECS
K2_X2:
    buffer_load_dwordx4 v12, s[12:15], 0 offen lds
    s_waitcnt vmcnt(2)
    s_branch K2_RECS
K2_W2:
""")
        e(f"""
    s_waitcnt vmcnt(0)
K2_RECS:
""")
    else:
        prio(2)
        e("    s_waitcnt vmcnt(4)\n    s_branch K2_RECS\nK2_W0:")
        prio(2)
        e("    s_waitcnt vmcnt(0)\nK2_RECS:")
    stamp(3, 4, 1)
    per_record("K2_HISTD", lambda k: e(f"""
    v_lshrrev_b32 v{vN4[k]}, 24, v{vR + 2 + 4 * k}
    ds_add_rtn_u32 v{vR + 3 + 4 * k}, v{vN4[k]}, v59 offset:{CNT}
    v_and_b32 v{vR + 2 + 4 * k}, 0x3ffffff, v{vR + 2 + 4 * k}
"""))
    e(f"""
    s_mov_b64 exec, -1
    s_cmp_lg_u32 s76, 0
    s_cbranch_scc1 K2_NOW3
    s_lshl_b32 s34, s23, 10
    s_add_u32 s35, s34, {W3L}
    s_add_u32 s34, s34, {W3F}
    s_mov_b32 m0, s35
    s_nop 0
    buffer_load_dwordx4 v7, s[4:7], s34 offen lds
K2_NOW3:
""")
    if OPT["pf2"]:
        e(f"""
    s_sub_u32 s34, s21, 2
    s_cmp_ge_u32 s34, 6
    s_cbranch_scc1 K2_NOPF2
    s_lshr_b32 s35, s2, 3
    s_mul_i32 s35, s35, 80000
    s_mul_i32 s34, s34, {OPT["pf2"] * 1024}
    s_add_u32 s34, s34, s35
""" + "".join(f"    buffer_load_dwordx4 v[116:119], v7, s[4:7], s34 offen offset:{1024 * i}\n" for i in range(OPT["pf2"])) + "K2_NOPF2:")
    e(f"""
    s_waitcnt lgkmcnt(0)
    s_barrier
""")
    stamp(4, 4, 1)
    e(f"""
    ds_read_b32 v{vC4}, v58 offset:{CNT}
    s_waitcnt lgkmcnt(0)
    v_add_u32 v{vQ16}, 12, v{vC4}
    v_and_b32 v{vQ16}, -16, v{vQ16}
    v_max_u32 v{vQ16}, v{vS16}, v{vQ16}     ; 16*quads
    s_nop 1
    v_add_u32_dpp v{vE16}, v{vQ16}, v{vQ16} row_shr:1 row_mask:0xf bank_mask:0xf bound_ctrl:1
""")
    for c in ("row_shr:2 row_mask:0xf", "row_shr:4 row_mask:0xf", "row_shr:8 row_mask:0xf", "row_bcast:15 row_mask:0xa", "row_bcast:31 row_mask:0xc"):
        e(f"    s_nop 1\n    v_add_u32_dpp v{vE16}, v{vE16}, v{vE16} {c} bank_mask:0xf")
    e(f"""
    v_sub_u32 v{vS16}, v{vE16}, v{vQ16}
    v_readlane_b32 s34, v{vE16}, 63
""")
    stamp(508, 4, 1)
    for k in range(NK):
        if k >= 3: e(f"    s_cmp_eq_u64 {sr(sM[k], 2)}, 0\n    s_cbranch_scc1 K2_BPD")
        e(f"    ds_bpermute_b32 v{vN4[k]}, v{vN4[k]}, v{vS16}")
    e(f"""
K2_BPD:
    s_cmp_gt_u32 s34, {S16MAX}
    s_cbranch_scc1 K2_REDO
    s_add_u32 s34, s34, 48
    s_lshr_b32 s35, s34, 9
    s_bfe_u32 s34, s34, 0x30006
    s_mul_i32 s37, s76, s35
    s_waitcnt lgkmcnt(0)
""")
    stamp(509, 4, 1)
    per_record("K2_GEO", lambda k: e(f"""
    v_add_u32 v{vN4[k]}, v{vN4[k]}, v{vR + 3 + 4 * k}
    ds_write_b32 v{vN4[k]}, v{vR + 2 + 4 * k} offset:{SO}
    v_add_u32 v{vR + 3 + 4 * k}, v{vN4[k]}, v{vN4[k]}
"""))
    e(f"""
    s_cmp_lg_u32 s21, {8 * OPT['qo']}
    s_cbranch_scc1 K2_NOFL
    s_mov_b64 exec, s[78:79]
    v_lshrrev_b32 v16, 4, v{vE16}
    ds_write_b8 v16, v59 offset:{FL - 1}
""")
    if OPT["pfx"]:
        e(f"""
    v_add_u32 v16, v{vS16}, v{vC4}
    v_mov_b32 v12, {PADV}
    v_add_u32 v17, v16, v16
""")
        for j in range(4):
            if j: e(f"    v_add_u32 v18, {4 * j}, v16")
            e(f"    v_cmp_lt_u32 vcc, v{18 if j else 16}, v{vE16}\n    s_and_b64 exec, exec, vcc")
            e(f"    ds_write_b32 v16, v12 offset:{SO + 4 * j}\n    ds_write_b64 v17, v[8:9] offset:{EA + 8 * j}")
        e(f"""
    s_mov_b32 exec_lo, -1
    s_mov_b32 exec_hi, 0
    v_readlane_b32 s36, v{vE16}, 63
    v_mov_b32 v12, {PADV}
    s_nop 0
    v_add_u32 v16, s36, v58
    v_add_u32 v17, v16, v16
    ds_write_b32 v16, v12 offset:{SO}
    ds_write_b64 v17, v[8:9] offset:{EA}
""")
    e(f"""
K2_NOFL:
    s_min_u32 s38, s76, s34
    s_add_u32 s37, s37, s38
    s_lshl_b32 s60, s37, 6                  ; stream (0,X)
    s_cmp_lt_u32 s76, s34
    s_addc_u32 s35, s35, 0
    s_mov_b64 exec, -1
    v_and_b32 v{vaS[0]}, 32, v1
    v_mul_u32_u24 v{vaS[0]}, s35, v{vaS[0]}
    s_lshl_b32 s77, s35, 4
    v_add_u32 v{vaS[0]}, s60, v{vaS[0]}
    v_add_u32 v{vaS[1]}, s77, v{vaS[0]}
""")
    if OPT["pf2"]: e("    s_sub_u32 s36, s21, 2\n    s_cmp_lt_u32 s36, 6\n    s_cbranch_scc1 K2_NOVM")
    e("    s_waitcnt vmcnt(0)\nK2_NOVM:")
    if OPT["uw3"]:
        e(f"""
    s_cmp_eq_u32 s75, s{sFirst}
    s_cbranch_scc1 K2_NOUT
    s_lshl_b32 s36, s21, 12
    s_add_u32 s36, s36, {WUT}
""")
        for s in range(4):
            e(f"    buffer_load_dwordx4 {vr(92 + 4 * s, 4)}, v7, s[4:7], s36 offen offset:{1024 * s}")
        e("K2_NOUT:")
    xbq = lambda T, s: 8 + 16 * T + 4 * s
    stamp(510, 4, 1)
    e("    s_cmp_lg_u32 s75, 0")
    if OPT["qpre"]:
        e("    s_cbranch_scc0 K2_NOXQ")
        x_reads(108, xbq)
        e("    s_waitcnt lgkmcnt(12)\n    s_branch K2_B2\nK2_NOXQ:")
    e("    s_waitcnt lgkmcnt(0)\nK2_B2:\n    s_barrier")
    stamp(5, 4, 1)
    def ea_writes(lab):
        per_record(lab, lambda k: e(f"    ds_write_b64 v{vR + 3 + 4 * k}, {vr(vR + 4 * k, 2)} offset:{EA}"))
    def first_gathers(lab, mid=None):
        e(f"""
    ds_read_b128 {vr(vSO, 4)}, v{vaS[0]} offset:{SO}
    ds_read_b128 {vr(vSO + 4, 4)}, v{vaS[1]} offset:{SO}
    ds_read_b128 {vr(vE, 4)}, v{vaS[0]} offset:{SO + 16}
    ds_read_b128 {vr(vE + 4, 4)}, v{vaS[1]} offset:{SO + 16}
""")
        if OPT["dep"] == 1:
            e("    s_waitcnt lgkmcnt(2)")
            gathers(vP[1], vSO)
            e("    s_waitcnt lgkmcnt(0)")
            gathers(vP[0], vE)
            return
        e(f"    s_bitcmp1_b32 s35, 0\n    s_cbranch_scc1 {lab}1")
        for a in range(2):
            if a: e(f"{lab}1:")
            e("    s_waitcnt lgkmcnt(2)")
            gathers(vP[a], vSO)
            e("    s_waitcnt lgkmcnt(0)")
            if mid: mid(a)
            gathers(vP[1 - a], vE)
            if not a: e(f"    s_branch {lab}D")
        e(f"{lab}D:")
    def addresses():
        e(f"""
    v_lshrrev_b32 v8, 4, v{vaS[0]}
    v_add_u32 v8, v8, v{vaN[1]}
    v_add_u32 v9, s35, v8
    ds_read_u8 v8, v8 offset:{FL}
    ds_read_u8 v9, v9 offset:{FL}
    ds_read_b128 {vr(vBw, 4)}, v{vW3a} offset:{W3L}
    s_add_u32 s61, s60, s77
    s_add_u32 s62, s61, s77
    s_add_u32 s63, s62, s77
    s_mov_b64 exec, s[78:79]
""")
        for k in range(4):
            e(f"    v_cmp_ge_u32 vcc, s{60 + k}, v{vE16}\n    s_bcnt1_i32_b64 s{64 + k}, vcc")
        e(f"""
    v_sub_u32 v{vQ16}, v{vQ16}, v{vC4}
    v_add_u32 v{vNp}, v{vNp}, v{vQ16}
    s_mov_b32 exec_hi, 0
    v_mad_u32_u24 v{vaN[1]}, s65, v{vRS}, v{vaN[0]}
    v_mad_u32_u24 v{vaN[0]}, s64, v{vRS}, v{vaN[0]}
    s_not_b64 exec, exec
    v_mad_u32_u24 v{vaN[1]}, s67, v{vRS}, v{vaN[0]}
    v_mad_u32_u24 v{vaN[0]}, s66, v{vRS}, v{vaN[0]}
    s_mov_b64 exec, -1
    s_lshl_b32 s36, s35, 5
    s_lshl1_add_u32 s37, s60, {EA}
    v_mad_u32_u24 v{vaE}, v{vStr}, s36, v{vaE}
    v_mad_u32_u24 v{vaE}, v{vAct}, s37, v{vaE}
    v_mov_b64 {vr(vAc[0], 2)}, 0
    v_mov_b64 {vr(vAc[1], 2)}, 0
    v_mov_b64 {vr(vM, 2)}, 0
    v_mov_b64 {vr(vDn[0], 2)}, {sr(sOne, 2)}
    v_mov_b64 {vr(vDn[1], 2)}, {sr(sOne, 2)}
    s_sub_u32 s34, {NT}, s35
    s_add_u32 s38, s77, {SO - 16 * NT}
    s_sub_u32 s39, s36, {32 * NT}
    s_waitcnt lgkmcnt(0)
    v_cmp_ne_u32 {sr(sFM[0], 2)}, 0, v8
    v_cmp_ne_u32 {sr(sFM[1], 2)}, 0, v9
""")
    def tile_write(src, o):
        for T in range(3):
            if T == 2: e(f"    s_mov_b32 exec_lo, {M9}\n    s_mov_b32 exec_hi, {M9}")
            for h in range(2):
                src(T, h)
            for h in range(2):
                e(f"    ds_write_b64 v{vTa}, {vr(o[0] + 4 * T + 2 * h, 2)} offset:{16 * RS * T + 16 * h + o[1]}")
        e("    s_mov_b64 exec, -1")
    e("    s_cbranch_scc0 K2_FG")
    prio(OPT["qp"])
    if not OPT["qpre"]: x_reads(108, xbq)
    node_mfma(vU, 92, xbq)
    stamp(401, 4, 1)
    ea_writes("K2_EAQ")
    e("    s_mov_b64 exec, -1\n    s_nop 0")
    tile_write(lambda T, h: e(f"    v_pk_mul_f32 {vr(vU + 4 * T + 2 * h, 2)}, {vr(vU + 4 * T + 2 * h, 2)}, s[72:73] op_sel_hi:[1,0]"), (vU, 0))
    stamp(402, 4, 1)
    e("    s_waitcnt lgkmcnt(0)")
    stamp(407, 4, 1)
    e("    s_barrier")
    stamp(403, 4, 1)
    if OPT["qp"] != OPT["gp2"]: prio(OPT["gp2"])
    def silu_q():
        for r in range(12):
            e(f"    v_exp_f32 v{92 + r}, v{vU + r}")
        for r in range(0, 12, 2):
            e(f"    v_pk_fma_f32 {vr(92 + r, 2)}, {vr(92 + r, 2)}, {KCOP}")
        for r in range(12):
            e(f"    v_rcp_f32 v{92 + r}, v{92 + r}")
        tile_write(lambda T, h: e(f"    v_pk_mul_f32 {vr(92 + 4 * T + 2 * h, 2)}, {vr(92 + 4 * T + 2 * h, 2)}, {vr(vU + 4 * T + 2 * h, 2)}"), (92, 8))
    if OPT["gpos"] == 0: silu_q()
    stamp(408, 4, 1)
    prio(0)
    first_gathers("K2_GQ")
    prio(OPT["gq2"])
    stamp(11, 4, 1)
    if OPT["gpos"] == 1: silu_q()
    addresses()
    if OPT["gpos"] == 2: silu_q()
    e("    s_branch K2_NOB\nK2_FG:")
    if OPT["stg"]:
        e(f"    s_cmp_lt_u32 s21, {OPT['stg']}\n    s_cbranch_scc1 K2_EARLY")
        ea_writes("K2_EAL")
        e("    s_mov_b64 exec, -1")
        addresses()
        stamp(407, 4, 1)
        e("    s_barrier")
        prio(OPT["gl"])
        first_gathers("K2_GL")
        prio(2)
        stamp(11, 4, 1)
        e("    s_branch K2_NOB\nK2_EARLY:")
        def mid(a):
            ea_writes(f"K2_EAR{a}")
            e("    s_mov_b64 exec, -1")
        first_gathers("K2_GR", mid)
        stamp(11, 4, 1)
    else:
        first_gathers("K2_GR")
        stamp(11, 4, 1)
        ea_writes("K2_EAR")
        e("    s_mov_b64 exec, -1")
    stamp(404, 4, 1)
    if OPT["rab"]:
        e(f"    s_cmp_lt_u32 s21, {OPT['rab']}\n    s_cbranch_scc1 K2_RA\n    s_waitcnt lgkmcnt(0)\n    s_barrier\nK2_RA:")
    addresses()
    stamp(407, 4, 1)
    if OPT["rab"]: e(f"    s_cmp_ge_u32 s21, {OPT['rab']}\n    s_cbranch_scc1 K2_NOB")
    if OPT["uw3"]:
        e(f"    s_cmp_lt_u32 s21, {OPT['uw3']}\n    s_cbranch_scc1 K2_U1\n    s_barrier\nK2_U1:\n    s_cmp_eq_u32 s{sFirst}, 0\n    s_cbranch_scc1 K2_U2")
        xbw = lambda T, s: ((8, 12, 32, 36), (40, 44, 48, 52), (56, 60, 64, 72))[T][s]
        x_addr(122); x_reads(122, xbw)
        e("    s_waitcnt vmcnt(16)")
        node_mfma(vU, 92, xbw)
        e(f"K2_U2:\n    s_cmp_ge_u32 s21, {OPT['uw3']}\n    s_cbranch_scc1 K2_NOB")
    e(f"""
    s_barrier
K2_NOB:
    ds_read_b64 {vr(vQ, 2)}, v{vaN[0]}
    ds_read_b64 {vr(vQ + 2, 2)}, v{vaN[1]}
    ds_read2_b64 {vr(vAe, 4)}, v{vaE} offset0:0 offset1:0
    ds_read_b128 {vr(vSO, 4)}, v{vaS[0]} offset:{SO + 32}
    ds_read_b128 {vr(vSO + 4, 4)}, v{vaS[1]} offset:{SO + 32}
    s_mov_b32 s{sFirst}, 0
""")
    for y in range(2):
        e(f"""
    s_lshl_b64 {sr(sFM[y], 2)}, {sr(sFM[y], 2)}, s34
    s_or_b32 s36, s{sFM[y]}, s{sFM[y] + 1}
    s_lshr_b32 s37, s36, 1
    s_or_b32 s{sEV[y]}, s36, s37
""")
    if OPT["cae"]:
        e("    s_cmp_lt_u32 s21, 8\n    s_cbranch_scc1 K2_NOCE")
        conv_addr(76)
        e("K2_NOCE:")
    stamp(12, 4, 1)
    e(f"""
    s_or_b32 s34, s34, 0x10000
    s_bitcmp1_b32 s35, 0
    s_waitcnt vmcnt(8) lgkmcnt(0)
""")
    stamp(6, 4, 1)
    e("    s_cbranch_scc1 K2_PA1")
    for a in range(2):
        if a: e("K2_PA1:")
        for q in range(4): e(mfma4(vD[a], vP[a] if OPT["dep"] == 2 else vP[1], q))
        if OPT["dep"] == 2:
            prio(1)
            e(f"    s_cmp_lt_u32 s35, 3\n    s_cbranch_scc1 K2_NGP{a}")
            gathers(vP[a], vSO)
            e(f"K2_NGP{a}:\n    s_nop 0\n{mfma32(vD[a])}")
        else:
            e(f"    s_nop 3\n{mfma32(vD[a])}")
        if not a: e("    s_branch K2_PAD")
    e(f"""
K2_PAD:
""")
    if OPT["dep"] == 2: e(f"    ds_read_b128 {vr(vSO, 4)}, v{vaS[0]} offset:{SO + 48}\n    ds_read_b128 {vr(vSO + 4, 4)}, v{vaS[1]} offset:{SO + 48}")
    e(f"""
    ds_read2_b64 {vr(vAe, 4)}, v{vaE} offset0:4 offset1:4
""")
    for y in range(2):
        e(f"""
    s_bfe_i32 exec_lo, s{sFM[y]}, s34
    s_bfe_i32 exec_hi, s{sFM[y] + 1}, s34
    ds_read_b64 {vr(vQ + 2 * y, 2)}, v{vaN[y]} offset:{RS}
""")
    e(f"""
    s_mov_b64 exec, -1
    v_mad_i32_i24 v{vaE}, v{vAct}, s39, v{vaE}
    v_add_u32 v{vaS[0]}, s38, v{vaS[0]}
    v_add_u32 v{vaS[1]}, s38, v{vaS[1]}
""")
    prio(PRIO_0)
    def edge_loop(v):
        for Lv in (10, 11, 9, 12, 8, 13, 7, 14, 6, 15, 5, 4, 3, 2, 1):
            e(f"    s_cmp_eq_u32 s35, {Lv}\n    s_cbranch_scc1 K2_{v}T{NT - Lv}")
        e(f"K2_{v}LOOP:")
        for t in range(NT):
            tile(t, v)
    if OPT["unc"]: e(f"    s_cmp_lg_u32 s{sGuard}, 0\n    s_cbranch_scc1 K2_GUARDED")
    edge_loop("")
    xbu = lambda T, s: 32 + 16 * T + 4 * s
    if OPT["unc"] == 2:
        e("K2_LDIV:"); divide(0, True); divide(1, True)
    e(f"""
K2_LDONE:
    s_cmp_ge_u32 s21, 8
    s_cbranch_scc1 K2_LD2
    s_lshl_b32 s36, s21, 12
    s_add_u32 s36, s36, {WUT}
    s_add_u32 s37, s36, {WUB - WUT}
""")
    for s in range(0 if OPT["uw3"] else 4):
        e(f"    buffer_load_dwordx4 {vr(16 + 4 * s, 4)}, v7, s[4:7], s36 offen offset:{1024 * s}")
    for s in range(4):
        e(f"    buffer_load_dwordx4 {vr(92 + 4 * s, 4)}, v7, s[4:7], s37 offen offset:{1024 * s}")
    e("K2_LD2:")
    for y in range(2):
        flush_adds(y)
    e(f"""
    v_mov_b32 v89, {MORE}
    v_add_f32 v{vM}, v{vM}, v{vM + 1}
    v_cmp_nge_f32 vcc, {f2u(2.0 ** (124 if OPT['unc'] == 2 else 64)):#x}, v{vM}
    ds_read_b32 v89, v89
    s_cbranch_vccnz K2_BIG
K2_BIGB:
""")
    stamp(7, 4, 1)
    e(f"""
    s_cmp_ge_u32 s21, 8
    s_cbranch_scc1 K2_NOU
""")
    if not OPT['uw3']: x_addr(84); x_reads(84, xbu)
    e(f"""
    v_mul_u32_u24 v{vFR}, {RB}, v6
    v_lshl_add_u32 v{vFR}, v5, 4, v{vFR}
    v_add_u32 v{vFR}, {AGB}, v{vFR}
    v_mul_u32_u24 v90, {RO}, v6
    v_lshl_add_u32 v90, v5, 3, v90
    s_lshl_b32 s36, s21, 5
    s_add_u32 s36, s36, {EA}
    v_add_u32 v90, s36, v90
    v_lshrrev_b32 v88, 4, v0
    v_mul_u32_u24 v91, {RO}, v88
    v_lshl_add_u32 v91, v6, 4, v91
    v_lshlrev_b32 v88, 16, v88
    v_lshl_or_b32 v88, v6, 4, v88
    s_lshl_b32 s36, s20, 8
    v_add_u32 v88, s36, v88
    v_add_u32 v125, 0x200000, v88
""")
    if not OPT["uw3"]:
        e("    s_waitcnt vmcnt(4)")
        node_mfma(vU, 16, xbu)
    e(f"""
    s_cmp_lt_u32 s21, 6
    s_cbranch_scc1 K2_NOCA
""")
    if not OPT['cae']: e('K2_NOU:')
    conv_addr(84)
    if OPT['cae']: e('K2_NOU:')
    e(f"""
K2_NOCA:
    s_waitcnt lgkmcnt(0)
    v_readfirstlane_b32 s{sMoreV}, v89
    s_barrier
""")
    stamp(8, 4, 1)
    e(f"""
    s_cmp_lg_u32 s{sMoreV}, 0
    s_cbranch_scc1 K2_NEXT
    v_mov_b32 v123, {BAD}
    ds_read_b32 v123, v123
    s_cmp_lt_u32 s21, 6
    s_cbranch_scc1 K2_NOCV
""")
    for k in range(4):
        e(f"    ds_read_b128 {vr(16 + 4 * k, 4)}, v{vCA} offset:{AG - QU + RS * k}\n    ds_read_b64 {vr(8 + 2 * k, 2)}, v{vCA} offset:{RS * k + 8}")
    for k in range(4):
        e(f"    s_waitcnt lgkmcnt({6 - k})")
        e(f"    v_cvt_f32_f64 v{32 + 2 * k}, {vr(16 + 4 * k, 2)}\n    v_cvt_f32_f64 v{33 + 2 * k}, {vr(18 + 4 * k, 2)}")
        e(f"    v_pk_mul_f32 {vr(8 + 2 * k, 2)}, {vr(8 + 2 * k, 2)}, {sr(60 + 2 * k, 2)} op_sel_hi:[1,0]")
        e(f"    v_pk_fma_f32 {vr(32 + 2 * k, 2)}, {vr(32 + 2 * k, 2)}, {sr(sScale, 2)}, {vr(8 + 2 * k, 2)} op_sel_hi:[1,0,1]")
        e(f"    v_cvt_pk_bf16_f32 v{40 + k}, v{32 + 2 * k}, v{33 + 2 * k}")
        e(f"    ds_write_b32 v{vCW}, v{40 + k} offset:{RB * k}")
    stamp(301, 4, 1)
    e(f"""
K2_NOCV:
    s_waitcnt lgkmcnt(0)
    v_readfirstlane_b32 s36, v123
    s_barrier
""")
    stamp(13, 4, 1)
    e("    s_cmp_lg_u32 s36, 0\n    s_cbranch_scc1 K2_RESTART\n    s_cmp_ge_u32 s21, 8\n    s_cbranch_scc1 K2_FIN")
    xbf = lambda T, s: 16 + 16 * T + 4 * s
    tmp, outr = 76, 8
    def M(T, s, wait=True):
        if wait: e(f"    s_waitcnt lgkmcnt({11 - 4 * T - s})")
        e(f"    v_mfma_f32_16x16x32_bf16 {vr(vU + 4 * T, 4)}, {vr(92 + 4 * s, 4)}, {vr(xbf(T, s), 4)}, {vr(vU + 4 * T, 4)}")
    def sc_(T):
        for m in (2 * T, 2 * T + 1): e(f"    v_pk_mul_f32 {vr(tmp + 2 * m, 2)}, {vr(vU + 2 * m, 2)}, s[72:73] op_sel_hi:[1,0]")
    def ex_(T, k): e(f"    v_exp_f32 v{tmp + 4 * T + k}, v{tmp + 4 * T + k}")
    def ad_(T):
        for m in (2 * T, 2 * T + 1): e(f"    v_pk_add_f32 {vr(tmp + 2 * m, 2)}, {vr(tmp + 2 * m, 2)}, 1.0 op_sel_hi:[1,0]")
    def rc_(T):
        for k in range(4): e(f"    v_rcp_f32 v{tmp + 4 * T + k}, v{tmp + 4 * T + k}")
    def out_(T):
        for m in (2 * T, 2 * T + 1): e(f"    v_pk_mul_f32 {vr(tmp + 2 * m, 2)}, {vr(tmp + 2 * m, 2)}, {vr(vU + 2 * m, 2)}")
        for m in (2 * T, 2 * T + 1): e(f"    v_cvt_pk_bf16_f32 v{outr + m}, v{tmp + 2 * m}, v{tmp + 2 * m + 1}")
        e(f"    ds_write_b64 v90, {vr(outr + 2 * T, 2)} offset:{16 * RO * T}")
    for T in range(3):
        for s in range(4):
            e(f"    ds_read_b128 {vr(xbf(T, s), 4)}, v{vFR} offset:{16 * RB * T + 64 * s}")
    e("    s_waitcnt vmcnt(0)")
    for s in range(4): M(0, s)
    for s in range(4): M(1, s)
    stamp(302, 4, 1)
    sc_(0)
    e("    s_waitcnt lgkmcnt(0)")
    for s in range(4): M(2, s, False); ex_(0, s)
    e("    s_nop 0")
    sc_(1)
    for k in range(4): ex_(1, k)
    ad_(0); rc_(0); sc_(2)
    for k in range(4): ex_(2, k)
    out_(0); stamp(303, 4, 1); ad_(1); rc_(1); ad_(2); out_(1); rc_(2); e("    s_nop 0"); out_(2); stamp(304, 4, 1)
    e(f"""
    s_cmp_ge_u32 s21, 2
    s_waitcnt lgkmcnt(0)
    s_barrier
""")
    stamp(305, 4, 1)
    e(f"""
    ds_read_b128 v[16:19], v91 offset:{EA}
    s_cbranch_scc1 K2_O1
    ds_read_b128 v[20:23], v91 offset:{EA + 32 * RO}
    s_waitcnt lgkmcnt(0)
    buffer_store_dwordx4 v[20:23], v125, s[16:19], 0 offen
K2_O1:
    s_waitcnt lgkmcnt(0)
    buffer_store_dwordx4 v[16:19], v88, s[16:19], 0 offen
K2_FIN:
""")
    light1(4, 1)
    if OPT["stamps"]:
        stamp(9, 4, 1); e("    s_waitcnt vmcnt(0)"); stamp(10, 4, 1); stamp_out(4, 1)
    e("K2_END:\n    s_endpgm")
    for t in range(NT - 1):
        for y in range(2):
            event_block(t, y, '')
    e(f"""
K2_TAILBLOCKS:
K2_MORE:
    v_mov_b32 v16, {MORE}
    ds_write_b32 v16, v59
    s_branch K2_MOREB
K2_BIG:
    v_mov_b32 v{vM}, {BAD}
    ds_write_b32 v{vM}, v{vM}
    s_branch K2_BIGB
K2_NEXT:
    v_mov_b32 v123, {BAD}
    ds_read_b32 v123, v123
    s_add_u32 s24, s24, s25
    s_waitcnt vmcnt(0) lgkmcnt(0)
    v_readfirstlane_b32 s36, v123
    s_barrier
    s_cmp_eq_u32 s36, 0
    s_cbranch_scc1 K2_AGAIN
K2_RESTART:
    s_mov_b32 s{sGuard}, 1
    s_mov_b32 s{sScale}, 1.0
    s_mov_b32 s24, 0
    v_mov_b32 v{vNp}, 0
    v_lshlrev_b32 v56, 4, v0
    v_mov_b64 v[8:9], 0
    v_mov_b64 v[10:11], 0
    v_add_u32 v57, {AG}, v56
    ds_write_b128 v57, v[8:11]
    ds_write_b128 v57, v[8:11] offset:16384
    s_cmp_ge_u32 s21, 11
    s_cbranch_scc1 K2_RS1
    ds_write_b128 v57, v[8:11] offset:32768
K2_RS1:
    s_waitcnt vmcnt(0) lgkmcnt(0)
    s_branch K2_AGAIN
K2_REDO:
    s_mov_b32 s25, 4
    s_waitcnt vmcnt(0) lgkmcnt(0)
    s_barrier
K2_AGAIN:
    v_lshlrev_b32 v56, 4, v0
    v_mov_b64 v[8:9], 0
    v_mov_b64 v[10:11], 0
    s_cmp_ge_u32 s21, 2
    s_cbranch_scc1 K2_ROUND
    ds_write_b128 v56, v[8:11] offset:{MISC}
    s_waitcnt lgkmcnt(0)
K2_LAST:
    s_branch K2_ROUND
""")
    if OPT["unc"]:
        e("K2_GUARDED:")
        edge_loop("G")
        e("    s_branch K2_LDONE")
        for t in range(NT - 1):
            for y in range(2):
                event_block(t, y, "G")

def desc(name, vg, sg):
    e(f"""
.p2align 6
.amdhsa_kernel {name}
  .amdhsa_next_free_vgpr {vg}
  .amdhsa_next_free_sgpr {sg}
  .amdhsa_accum_offset {vg}
  .amdhsa_group_segment_fixed_size 0
  .amdhsa_kernarg_size 72
  .amdhsa_user_sgpr_count 2
  .amdhsa_user_sgpr_kernarg_segment_ptr 1
  .amdhsa_system_sgpr_workgroup_id_x 1
.end_amdhsa_kernel
""")

e(f"""
; MPNN edge MLP, N=10000 nodes, E=320000 edges, D=128, De=4 (bf16 in, bf16 out), in two launches.
; launch 1: bins the edges by bucket (dst & 255) into (e_attr, src, node) records, P' = -log2e * x@W1 (bf16),
; launch 2: one workgroup per bucket: counting sort by node in LDS, q = -log2e * x@W2, then per 16 edges x 64 features
; @launch kernel=mpnn_bin_kernel grid=(512,1,1) block=(768,1,1) lds={K1_LDS}
; @launch kernel=mpnn_edge_kernel grid=(256,1,1) block=(1024,1,1) lds={K2_LDS}
.amdgcn_target "amdgcn-amd-amdhsa--gfx950"
""")
kernel1()
kernel2()
e('.section .rodata,"a"')
desc("mpnn_bin_kernel", 80, 96)
desc("mpnn_edge_kernel", 128, 102 if OPT["stamps"] else 96)
FL_ = {0: "", 1: " sc1", 2: " nt", 3: " sc0 sc1", 4: " sc1 nt", 5: " sc0"}
k2at = next(i for i, l in enumerate(L) if l.startswith("mpnn_edge_kernel:"))
for i, l in enumerate(L):
    c = l.split(";")
    fl = None
    if l.strip().startswith("buffer_store") and " off," not in l:
        fl = FL_[(OPT["stp"] if "v[76:79]" in l else OPT["st1"]) if i < k2at else OPT["st2"]]
    elif l.strip().startswith("buffer_load"):
        if i < k2at:
            if any(x in l for x in ("s[24:27]", "s[8:11], s22", "s[32:35]")): fl = " nt" * OPT["nte"]
            elif "s[4:7]" in l: fl = " nt" * OPT["ntx"]
            elif "s[12:15]" in l and "lds" in l: fl = " nt" * OPT["ntw"]
        else:
            if "s[12:15]" in l: fl = " nt" * OPT["ntx2"]
            elif "dwordx3" in l: fl = " nt" * OPT["ntr"]
    if fl:
        body = c[0].rstrip()
        body = body[:-4] + fl + " lds" if body.endswith(" lds") else body + fl
        L[i] = body + ("   ;" + c[1] if len(c) > 1 else "")
open(sys.argv[1], "w").write("\n".join(L) + "\n")
```
